```python
import torch

def _softmax(x, axis=-1):
    return torch.softmax(x, dim=axis)
def _gelu(x):
    return torch.nn.functional.gelu(x, approximate="tanh")
def _silu(x):
    return torch.nn.functional.silu(x)
def _sigmoid(x):
    return torch.sigmoid(x)
def _layernorm(x, axis=-1, eps=1e-5):
    m = x.mean(dim=axis, keepdim=True)
    v = x.var(dim=axis, keepdim=True, unbiased=False)
    return (x - m) / torch.sqrt(v + eps)
def _scatter_add(tgt, idx, src, axis=0):
    return tgt.clone().index_add_(axis, idx, src)
def _segment_sum(src, seg, n):
    out = torch.zeros((n,) + src.shape[1:], dtype=src.dtype)
    return out.index_add_(0, seg, src)
def _pad(x, pw):
    flat = tuple(v for pair in reversed(pw) for v in pair)
    return torch.nn.functional.pad(x, flat)

kernel_name = 'sequential_preLN__sliding_block_cached__swiglu_ffn__decode'

def setup_inputs():

    _w = (lambda a: (lambda t: t.to(torch.bfloat16) if t.is_floating_point() else t)(torch.as_tensor(a)))
    def _A_setup():
        B, Sq, D = 1, 1, 512
        Hq, Hkv, Sk, Dh = 32, 32, 32768, 128
        assert Hq % Hkv == 0, (Hq, Hkv)
        return {
            "x": _w((lambda *s: torch.randn(*s, dtype=torch.bfloat16) * 0.05)(B, Sq, D)),
            "k_cache": _w((lambda *s: torch.randn(*s, dtype=torch.bfloat16) * 3.2)(B, Hkv, Sk, Dh)),
            "v_cache": _w((lambda *s: torch.randn(*s, dtype=torch.bfloat16) * 0.4)(B, Hkv, Sk, Dh)),
            "wq": _w((lambda *s: torch.randn(*s, dtype=torch.bfloat16) * 3.2)(D, Hq * Dh) * (D ** -0.5)),
            "wo": _w((lambda *s: torch.randn(*s, dtype=torch.bfloat16) * 0.4)(Hq * Dh, D) * ((Hq * Dh) ** -0.5)),
        }
    _A_in = _A_setup()

    def _B_setup():
        B, S, D, F = 1, 1, 512, 1376
        return {
            "x": _w((lambda *s: torch.randn(*s, dtype=torch.bfloat16) * 0.05)(B, S, D)),
            "w_gate": _w((lambda *s: torch.randn(*s, dtype=torch.bfloat16) * 0.05)(D, F)),
            "w_up": _w((lambda *s: torch.randn(*s, dtype=torch.bfloat16) * 0.05)(D, F)),
            "w_down": _w((lambda *s: torch.randn(*s, dtype=torch.bfloat16) * 0.05)(F, D)),
        }
    _B_in = _B_setup()

    return {
        "A_x": _A_in["x"],
        "A_k_cache": _A_in["k_cache"],
        "A_v_cache": _A_in["v_cache"],
        "A_wq": _A_in["wq"],
        "A_wo": _A_in["wo"],
        "B_x": _B_in["x"],
        "B_w_gate": _B_in["w_gate"],
        "B_w_up": _B_in["w_up"],
        "B_w_down": _B_in["w_down"],
    }

def reference(A_x, A_k_cache, A_v_cache, A_wq, A_wo, B_x, B_w_gate, B_w_up, B_w_down):
    def _A_ref(x, k_cache, v_cache, wq, wo):
        B, Sq, D = x.shape
        Hq, Dh = 32, 128
        Hkv, Sk = k_cache.shape[1], k_cache.shape[2]
        W = min(4096, max(256, Sk // 4))
        rep = Hq // Hkv
        q = (lambda x, *d: x.permute(*d))((x @ wq).reshape(B, Sq, Hq, Dh), 0, 2, 1, 3)
        k = (lambda x, n, axis: torch.repeat_interleave(x, n, dim=axis))(k_cache[:, :, Sk - W:, :], rep, axis=1)
        v = (lambda x, n, axis: torch.repeat_interleave(x, n, dim=axis))(v_cache[:, :, Sk - W:, :], rep, axis=1)
        scores = torch.einsum("bhqd,bhkd->bhqk", q, k) * (Dh ** -0.5)
        p = _softmax(scores, axis=-1)
        o = torch.einsum("bhqk,bhkd->bhqd", p, v)
        return (lambda x, *d: x.permute(*d))(o, 0, 2, 1, 3).reshape(B, Sq, Hq * Dh) @ wo

    def _B_ref(x, w_gate, w_up, w_down):
        g = _silu(x @ w_gate)
        u = x @ w_up
        return (g * u) @ w_down

    x = A_x
    h = x + _A_ref(_layernorm(x, axis=-1), A_k_cache, A_v_cache, A_wq, A_wo)
    h2 = h + _B_ref(_layernorm(h, axis=-1), B_w_gate, B_w_up, B_w_down)
    return h2
```

```python
import re

REG = re.compile(r'(?<![\w.])([vas])(?:(\d+)|\[(\d+):(\d+)\])(?![\w])')
TRANS = ('v_exp_', 'v_log_', 'v_rcp_', 'v_rsq_', 'v_sqrt_', 'v_sin_', 'v_cos_')

def regs_of(tok):
    out = set()
    for m in REG.finditer(tok):
        f = m.group(1)
        lo, hi = (int(m.group(2)),) * 2 if m.group(2) else (int(m.group(3)), int(m.group(4)))
        out |= {(f, i) for i in range(lo, hi + 1)}
    if re.search(r'\bvcc(_lo|_hi)?\b', tok): out |= {('s', 'vcc')}
    if re.search(r'\bexec\b', tok): out |= {('s', 'exec')}
    if re.search(r'\bm0\b', tok): out |= {('s', 'm0')}
    return out

def split_ops(s):
    ops, depth, cur = [], 0, ''
    for ch in s:
        if ch in '[(': depth += 1
        if ch in '])': depth -= 1
        if ch == ',' and depth == 0: ops.append(cur.strip()); cur = ''
        else: cur += ch
    if cur.strip(): ops.append(cur.strip())
    return ops

class Ins:
    def __init__(self, text):
        self.text = text
        p = text.split(None, 1)
        self.mn = mn = p[0]
        ops = split_ops(p[1]) if len(p) > 1 else []
        self.ops = ops
        self.valu = mn.startswith('v_') and not mn.startswith('v_mfma')
        self.mfma = mn.startswith('v_mfma')
        self.salu = mn.startswith('s_')
        self.vmem = mn.startswith(('buffer_', 'global_'))
        self.ds = mn.startswith('ds_')
        self.dpp = '_dpp' in mn
        self.trans = mn.startswith(TRANS)
        self.dot = mn.startswith('v_dot')
        self.perml = mn.startswith('v_permlane')
        self.lane_rd = mn.startswith(('v_readlane', 'v_readfirstlane'))
        self.ldsdma = self.vmem and (' lds' in text or 'load_lds' in mn)
        self.states = int(ops[0], 0) + 1 if mn == 's_nop' else 1
        first = [regs_of(o.split()[0]) if o else set() for o in ops]
        self.defs, self.uses = set(), set()
        self.sdata = set(); self.srcc = set(); self.srcab = set()
        if self.mfma:
            self.defs = first[0]; self.srcab = first[1] | first[2]; self.srcc = first[3]
            self.uses = self.srcab | self.srcc
            self.passes = 8 if ('32x32' in mn or '16x16x4_f32' in mn) else 4
        elif self.valu:
            self.defs = set(first[0])
            for f in first[1:]: self.uses |= f
            if mn.startswith(('v_add_co', 'v_sub_co', 'v_addc_co', 'v_div_scale')):
                self.defs |= first[1]
            if mn.startswith('v_cmpx'): self.defs |= {('s', 'exec')}
            if self.perml: self.defs |= first[1]; self.uses |= first[0]
            if mn.startswith(('v_fmac', 'v_dot2c', 'v_writelane')) or self.dpp or '_sdwa' in mn: self.uses |= first[0]
        elif self.vmem:
            allr = set().union(*first) if first else set()
            if 'store' in mn or ('atomic' in mn and 'sc0' not in text):
                self.uses = allr
                d = first[0] if mn.startswith('buffer_') else first[1]
                if len(d) >= 3: self.sdata = d
            elif self.ldsdma: self.uses = allr | {('s', 'm0')}
            elif first:
                self.defs = first[0]; self.uses = set().union(*first[1:])
        elif self.ds:
            if mn.startswith(('ds_read', 'ds_bpermute', 'ds_permute', 'ds_swizzle')) or '_rtn' in mn:
                self.defs = first[0]; self.uses = set().union(*first[1:])
            else: self.uses = set().union(*first)
        elif self.salu and first:
            if mn.startswith(('s_cmp', 's_cbranch', 's_branch', 's_waitcnt', 's_nop', 's_bitcmp', 's_setprio', 's_sleep')):
                self.uses = set().union(*first)
            else:
                self.defs = set(first[0]); self.uses = set().union(*first[1:]) if len(first) > 1 else set()
                if 'saveexec' in mn: self.defs |= {('s', 'exec')}

def vec(s): return {r for r in s if r[0] in 'va'}
def sca(s): return {r for r in s if r[0] == 's'}

def need(p, c):
    n = 0
    if p.valu:
        vd = vec(p.defs); sd = sca(p.defs)
        if c.dpp and vd & c.uses: n = max(n, 2)
        if c.perml and vd & c.uses: n = max(n, 2)
        if c.lane_rd and vd & c.uses: n = max(n, 1)
        if c.mfma and vd & c.uses: n = max(n, 2)
        if p.trans and c.valu and vd & c.uses: n = max(n, 1)
        if '_sdwa' in p.mn and c.valu and vd & (c.uses | c.defs): n = max(n, 1)
        if p.dot and vd & (c.uses | c.defs):
            same_acc = c.mn == p.mn and not (vd & (regs_of(c.ops[1]) | regs_of(c.ops[2])))
            if not same_acc: n = max(n, 3)
        if sd:
            if c.valu and sd & c.uses: n = max(n, 4 if c.mn.startswith(('v_readlane', 'v_writelane', 'v_div_fmas')) else 2)
            if c.vmem and sd & c.uses: n = max(n, 5)
            if c.salu and sd & c.uses: n = max(n, 1)
            if ('s', 'exec') in sd:
                if c.dpp: n = max(n, 5)
                if c.lane_rd or c.perml or c.mfma or c.mn.startswith('v_writelane'): n = max(n, 4)
            if ('s', 'vcc') in sd and c.mn.startswith('s_cbranch_vcc'): n = max(n, 1)
    if p.salu and ('s', 'm0') in p.defs and c.ldsdma: n = max(n, 1)
    if p.sdata and p.sdata & c.defs: n = max(n, 2)
    if p.mfma:
        big = 12 if p.passes == 8 else 8
        if c.mfma:
            if p.defs & c.srcab: n = max(n, big)
            if p.defs & c.srcc and not (p.defs == c.srcc and p.mn == c.mn): n = max(n, big - 2)
            if p.defs & c.defs and not (p.defs == c.srcc): n = max(n, big)
        elif p.defs & (c.uses | c.defs): n = max(n, big)
        if c.valu and vec(p.srcc) & c.defs: n = max(n, 7 if p.passes == 8 else 3)
    return n

class Asm:
    def __init__(self):
        self.lines = []; self.hist = []
    def raw(self, s): self.lines.append(s)
    def __call__(self, text):
        for ln in text.split('\n'):
            code = ln.split(';')[0].strip()
            if not code:
                if ln.strip(): self.lines.append('    ' + ln.strip())
                continue
            if code.endswith(':') or code.startswith('.'):
                self.lines.append(ln.strip()); continue
            c = Ins(code)
            dist, pad = 0, 0
            for p in reversed(self.hist):
                pad = max(pad, need(p, c) - dist)
                dist += p.states
                if dist >= 20: break
            if pad > 0:
                self.lines.append(f'    s_nop {pad - 1}'); self.hist.append(Ins(f's_nop {pad - 1}'))
            self.lines.append('    ' + ln.strip()); self.hist.append(c)
            if c.mn in ('s_branch', 's_endpgm'): self.hist = []
    def text(self): return '\n'.join(self.lines) + '\n'
```

```python
import sys
from asmlib import Asm

NAME = 'sequential_preLN__sliding_block_cached__swiglu_ffn__decode'
WS_QA, WS_B, WS_H, WS_C, WS_ML, WS_E, WS_ST = 0x0, 0x40000, 0x44000, 0x44800, 0x80000, 0x82000, 0x100000
EPOCH_STEP = 0x5bd1e3c7
L_P, L_OP, L_SCR, L_H, L_RED, L_ML, L_W = 0x0, 0x400, 0x1400, 0x1800, 0x1c00, 0x1e00, 0x2000
LDS_BYTES = L_W + 0x8000
SPIN = 0x40000
LOG2E = 0x3fb8aa3b
SCALE = 0x3db504f3
EPS = 0x3727c5ac
FULL = 'row_mask:0xf bank_mask:0xf'

def gen(diag=False, w_early=True, f_early=False, bar3=True, sleep=0, mlsleep=2):
    A = Asm()
    uid = [0]
    def lab(s):
        uid[0] += 1
        return f'L_{s}_{uid[0]}'
    def ST(n):
        if diag: A(f's_memrealtime s[96:97]\ns_waitcnt lgkmcnt(0)\nv_writelane_b32 v7, s96, {n}')
    def finish():
        if diag:
            ST(15)
            A(f'''s_mov_b64 exec, 0xffff
s_lshl_b32 s34, s2, 3
s_add_u32 s34, s34, s28
s_lshl_b32 s34, s34, 6
s_add_u32 s34, s34, {WS_ST}
v_lshl_add_u32 v1, v0, 2, s34
global_store_dword v1, v7, s[26:27]''')
        A('s_endpgm')
    def srd(d, lo, hi, n):
        A(f's_mov_b32 s{d}, s{lo}\ns_mov_b32 s{d+1}, s{hi}\ns_mov_b32 s{d+2}, {n}\ns_mov_b32 s{d+3}, 0x20000')
    def wred(op, v, t):
        for r in (8, 4, 2, 1): A(f'{op}_dpp v{v}, v{v}, v{v} row_ror:{r} {FULL}')
        for sw in (16, 32): A(f'v_mov_b32 v{t}, v{v}\nv_permlane{sw}_swap_b32 v{v}, v{t}\n{op} v{v}, v{v}, v{t}')
    def rnd(v):
        A(f'v_cvt_pk_bf16_f32 v{v}, v{v}, v{v}\nv_lshlrev_b32 v{v}, 16, v{v}')
    def layernorm(x, u, o):
        s, t, mb, dl = u + 8, u + 9, u + 10, u + 11
        for i in range(4): A(f'v_lshlrev_b32 v{u+2*i}, 16, v{x+i}\nv_and_b32 v{u+2*i+1}, 0xffff0000, v{x+i}')
        A(f'v_add_f32 v{s}, v{u}, v{u+1}\nv_add_f32 v{t}, v{u+2}, v{u+3}\nv_add_f32 v{mb}, v{u+4}, v{u+5}\nv_add_f32 v{dl}, v{u+6}, v{u+7}')
        A(f'v_add_f32 v{s}, v{s}, v{t}\nv_add_f32 v{mb}, v{mb}, v{dl}\nv_add_f32 v{s}, v{s}, v{mb}')
        wred('v_add_f32', s, t)
        A(f'v_mul_f32 v{dl}, 0x3b000000, v{s}')
        A(f'v_cvt_pk_bf16_f32 v{mb}, v{dl}, v{dl}\nv_lshlrev_b32 v{mb}, 16, v{mb}')
        for i in range(8): A(f'v_sub_f32 v{u+i}, v{u+i}, v{mb}')
        A(f'v_sub_f32 v{dl}, v{dl}, v{mb}')
        A(f'v_mul_f32 v{s}, v{u}, v{u}\nv_mul_f32 v{t}, v{u+1}, v{u+1}')
        for i in range(2, 8, 2): A(f'v_fmac_f32 v{s}, v{u+i}, v{u+i}\nv_fmac_f32 v{t}, v{u+i+1}, v{u+i+1}')
        A(f'v_add_f32 v{s}, v{s}, v{t}')
        fill = [f'v_cvt_pk_bf16_f32 v{o+i}, v{u+2*i}, v{u+2*i+1}' for i in range(4)]
        for i in range(4): fill += [f'v_lshlrev_b32 v{u+2*i}, 16, v{o+i}', f'v_and_b32 v{u+2*i+1}, 0xffff0000, v{o+i}']
        fill.append(f'v_mul_f32 v{dl}, v{dl}, v{dl}')
        for r in (8, 4, 2, 1):
            A(fill.pop(0)); A(fill.pop(0))
            A(f'v_add_f32_dpp v{s}, v{s}, v{s} row_ror:{r} {FULL}')
        for sw in (16, 32):
            A(f'v_mov_b32 v{t}, v{s}'); A(fill.pop(0)); A(fill.pop(0))
            A(f'v_permlane{sw}_swap_b32 v{s}, v{t}\nv_add_f32 v{s}, v{s}, v{t}')
        A(fill.pop(0))
        A(f'v_mul_f32 v{s}, 0x3b000000, v{s}\nv_sub_f32 v{s}, v{s}, v{dl}\nv_max_f32 v{s}, 0, v{s}')
        rnd(s)
        A(f'v_add_f32 v{s}, {EPS:#x}, v{s}'); rnd(s)
        A(f'v_sqrt_f32 v{s}, v{s}'); rnd(s)
        A(f'v_rcp_f32 v{s}, v{s}')
        for i in range(8): A(f'v_mul_f32 v{u+i}, v{u+i}, v{s}')
        for i in range(4): A(f'v_cvt_pk_bf16_f32 v{o+i}, v{u+2*i}, v{u+2*i+1}')
    def selectors(sel, t):
        A(f'''v_and_b32 v{t}, 1, v0
v_cmp_eq_u32 vcc, 1, v{t}
v_mov_b32 v{t+1}, 0x0c0c0100
v_mov_b32 v{t+2}, 0x01000c0c
v_cndmask_b32 v{t+1}, v{t+1}, v{t+2}, vcc
v_mov_b32 v{t+2}, 0x0c0c0302
v_mov_b32 v{t+3}, 0x03020c0c
v_cndmask_b32 v{t+2}, v{t+2}, v{t+3}, vcc
v_mov_b32 v{t+3}, 0x0c0c0c0c
v_bfe_u32 v{t}, v0, 1, 2''')
        for w in range(4):
            A(f'v_cmp_eq_u32 vcc, {w}, v{t}\nv_cndmask_b32 v{sel+w}, v{t+3}, v{t+1}, vcc\nv_cndmask_b32 v{sel+4+w}, v{t+3}, v{t+2}, vcc')
    def afrag(dst, src, par, sel):
        for w in range(4): A(f'v_perm_b32 v{dst+w}, v{src}, v{src}, v{sel+4*par+w}')
    def quad_combine(d0, d1):
        for r in range(4): A(f'v_permlane32_swap_b32 v{d0+r}, v{d1+r}')
        for r in range(4): A(f'v_add_f32_dpp v{d0+r}, v{d1+r}, v{d0+r} row_ror:8 {FULL}')
        for r in range(4): A(f'v_min_u32 v{d0+r}, -2, v{d0+r}')
    def poll(loads, t, hook=None, init=None):
        n = len(loads)
        for i in range(n): A(f's_mov_b64 s[{48+2*i}:{49+2*i}], {init[i] if init else -1}')
        A(f's_mov_b32 s62, {SPIN}')
        L, Lc, Ld = lab('poll'), lab('chk'), lab('done')
        def issue():
            for i, (txt, r, c) in enumerate(loads): A(f's_mov_b64 exec, s[{48+2*i}:{49+2*i}]\n{txt}')
            A('s_mov_b64 exec, -1')
        if hook:
            issue(); hook(n); A(f's_branch {Lc}')
        A(f'{L}:')
        if sleep: A(f's_sleep {sleep}')
        issue()
        A(f'{Lc}:')
        for i, (txt, r, c) in enumerate(loads):
            A(f's_waitcnt vmcnt({n-1-i})')
            if c == 4: A(f'v_max3_u32 v{t}, v{r}, v{r+1}, v{r+2}\nv_max_u32 v{t}, v{t}, v{r+3}\nv_cmp_eq_u32 s[{48+2*i}:{49+2*i}], -1, v{t}')
            else: A(f'v_cmp_eq_u32 s[{48+2*i}:{49+2*i}], -1, v{r}')
            if i == 1: A('s_or_b64 vcc, s[48:49], s[50:51]')
            elif i > 1: A(f's_or_b64 vcc, vcc, s[{48+2*i}:{49+2*i}]')
        A(f's_cbranch_scc0 {Ld}\ns_sub_u32 s62, s62, 1\ns_cbranch_scc0 {L}\n{Ld}:')
    def sum8(g):
        for i in range(4): A(f'v_add_f32 v{g+i}, v{g+i}, v{g+4+i}\nv_add_f32 v{g+8+i}, v{g+8+i}, v{g+12+i}')
        for i in range(4): A(f'v_add_f32 v{g+i}, v{g+i}, v{g+8+i}')
        A(f'v_permlane32_swap_b32 v{g}, v{g+2}\nv_permlane32_swap_b32 v{g+1}, v{g+3}')
        A(f'v_add_f32 v{g}, v{g}, v{g+2}\nv_add_f32 v{g+1}, v{g+1}, v{g+3}')

    hdr = open('cdna_kernels/' + NAME + '.s.ref').read().split('\n')
    for ln in hdr:
        if ln.startswith('; @launch'): A.raw(f'; @launch grid=(256,1,1) block=(512,1,1) lds={LDS_BYTES}'); break
        A.raw(ln)
    A.raw(f'.amdgcn_target "amdgcn-amd-amdhsa--gfx950"\n.text\n.globl {NAME}_kernel\n.p2align 8\n.type {NAME}_kernel,@function\n{NAME}_kernel:')

    A(f'''s_cmp_ge_u32 s2, 256
s_cbranch_scc1 L_exit
s_load_dwordx16 s[4:19], s[0:1], 0
s_load_dwordx8 s[20:27], s[0:1], 64
v_lshrrev_b32 v1, 6, v0
v_and_b32 v0, 63, v0
v_readfirstlane_b32 s28, v1
s_and_b32 s29, s2, 7
s_lshr_b32 s30, s2, 3
s_and_b32 s31, s30, 3
s_lshl_b32 s34, s29, 2
s_add_u32 s31, s31, s34              ; head
s_lshr_b32 s32, s30, 2
v_lshrrev_b32 v3, 3, v0              ; lane >> 3
v_and_b32 v4, 7, v0
v_lshlrev_b32 v4, 4, v4              ; (lane & 7) * 16
v_lshl_add_u32 v2, v3, 8, v4
s_and_b32 s33, s30, 7
s_lshl_b32 s33, s33, 1
s_and_b32 s63, s28, 3
s_xor_b32 s33, s33, s63
s_lshl_b32 s33, s33, 11
s_lshl_b32 s34, s31, 23
s_lshl_b32 s35, s32, 17
s_add_u32 s34, s34, s35
s_add_u32 s34, s34, 0x700000
v_mov_b32 v8, -1
v_mov_b32 v9, -1
v_mov_b32 v10, -1
v_mov_b32 v11, -1
v_lshlrev_b32 v5, 4, v0              ; lane * 16''')
    if diag: A('v_mov_b32 v7, 0')
    A(f'''s_cmp_lt_u32 s28, 4
s_waitcnt lgkmcnt(0)
s_cselect_b32 s36, s6, s8
s_cselect_b32 s37, s7, s9
s_add_u32 s36, s36, s34
s_addc_u32 s37, s37, 0
s_mov_b32 s38, 0x20000
s_mov_b32 s39, 0x20000
s_load_dword s3, s[26:27], {WS_E:#x}''')
    ST(0)
    A('s_cmp_lt_u32 s28, 4\ns_cbranch_scc1 L_kwave')

    A(f'''s_lshl_b32 s34, s31, 3
s_add_u32 s34, s34, s32
s_lshl_b32 s35, s34, 10
s_add_u32 s44, s26, s35
s_addc_u32 s45, s27, 0
s_cmp_lg_u32 s28, 4
s_cbranch_scc1 L_vrest
s_setprio 3
global_store_dwordx4 v5, v[8:11], s[44:45] sc1
s_lshl_b32 s35, s2, 10
s_add_u32 s35, s35, {WS_B}
v_add_u32 v6, s35, v5
global_store_dwordx4 v6, v[8:11], s[26:27] sc1
s_lshl_b32 s35, s31, 8
s_lshl_b32 s63, s32, 3
s_add_u32 s35, s35, s63
s_add_u32 s35, s35, {WS_ML}
v_mov_b32 v6, s35
s_lshr_b32 s63, s63, 1
s_sub_u32 s35, s35, s63
v_mov_b32 v12, s35
s_mov_b64 exec, 1
global_store_dwordx2 v6, v[8:9], s[26:27] sc1
s_mov_b64 exec, -1
global_load_dwordx4 v[24:27], v5, s[4:5]
s_lshl_b32 s34, s32, 19
s_lshl_b32 s35, s31, 8
s_add_u32 s34, s34, s35
s_add_u32 s40, s10, s34
s_addc_u32 s41, s11, 0
s_mov_b32 s42, {63*8192+256}
s_mov_b32 s43, 0x20000
v_lshl_add_u32 v6, v3, 16, v4''')
    for n in range(8):
        A(f's_mov_b32 s34, {n*8192}')
        for hf in range(2): A(f'buffer_load_dwordx4 v[{64+8*n+4*hf}:{67+8*n+4*hf}], v6, s[40:43], s34 offen offset:{128*hf} nt')
    A('s_barrier')
    selectors(40, 28)
    A(f'''s_lshl_b32 s34, s32, 3
v_add_lshl_u32 v6, v3, s34, 2
s_waitcnt lgkmcnt(0)
s_add_u32 s3, s3, {EPOCH_STEP:#x}
v_mov_b32 v13, s3
s_mov_b64 exec, 1
s_waitcnt vmcnt(16)
global_store_dword v12, v13, s[26:27] offset:128 sc1
s_mov_b64 exec, -1''')
    ST(1)
    layernorm(24, 28, 24)
    for i in range(4): A(f'ds_bpermute_b32 v{48+i}, v6, v{24+i}')
    A('s_waitcnt lgkmcnt(0)')
    for n in range(8):
        afrag(24 + 4 * (n & 1), 48 + n // 2, n & 1, 40)
        A(f's_waitcnt vmcnt({15-2*n})')
        for hf in range(2):
            c = f'v[{16+4*hf}:{19+4*hf}]'
            A(f'v_mfma_f32_16x16x32_bf16 {c}, v[{24+4*(n&1)}:{27+4*(n&1)}], v[{64+8*n+4*hf}:{67+8*n+4*hf}], {c if n else 0}')
    A('v_lshrrev_b32 v6, 4, v0\nv_lshl_add_u32 v6, v6, 7, v4')
    quad_combine(16, 20)
    A(f'''s_mov_b32 exec_lo, 0x00ff00ff
s_mov_b32 exec_hi, 0x00ff00ff
global_store_dwordx4 v6, v[16:19], s[44:45] sc1
s_mov_b64 exec, -1
s_setprio 0''')
    ST(2)
    A('s_branch L_vstream')
    A('L_vrest:')
    A(f'''s_cmp_lg_u32 s28, 5
s_cbranch_scc1 L_vbar
s_getpc_b64 s[40:41]
L_pc:
s_sub_u32 s40, s40, L_pc-{NAME}_kernel
s_subb_u32 s41, s41, 0
v_lshlrev_b32 v6, 7, v0
global_load_dword v15, v6, s[40:41]
v_add_u32 v6, 0x2000, v6
v_min_u32 v6, L_code_end-{NAME}_kernel-4, v6
global_load_dword v15, v6, s[40:41]
v_mov_b32 v6, {L_ML}
ds_write_b128 v6, v[8:11]
ds_write_b128 v6, v[8:11] offset:16
ds_write_b128 v6, v[8:11] offset:32
s_waitcnt lgkmcnt(0)
L_vbar:
s_barrier''')
    selectors(40, 28)
    A('L_vstream:')
    for i in range(16):
        A(f's_xor_b32 s34, s33, {(4*i) << 11}')
        for hf in range(2): A(f'buffer_load_dwordx4 v[{128+8*i+4*hf}:{131+8*i+4*hf}], v2, s[36:39], s34 offen offset:{128*hf} nt')
    ST(3)
    A(f'''s_and_b32 s63, s28, 3
s_lshl_b32 s34, s63, 8
v_lshl_add_u32 v6, v3, 5, s34
s_lshl_b32 s34, s63, 10
s_add_u32 s34, s34, {L_OP}
v_lshrrev_b32 v12, 5, v0
v_lshl_add_u32 v12, v12, 9, s34
v_lshl_add_u32 v12, v4, 2, v12
v_bfe_u32 v13, v0, 4, 1
v_lshl_add_u32 v12, v13, 5, v12
v_lshlrev_b32 v14, 3, v0
s_barrier''')
    ST(4)
    A(f'ds_read_b128 v[48:51], v6 offset:{L_P}\nds_read_b128 v[52:55], v6 offset:{L_P+16}\ns_waitcnt lgkmcnt(0)')
    for i in range(16): afrag(64 + 4 * i, 48 + i // 2, i & 1, 40)
    for i in range(16):
        for hf in range(2):
            if hf == 0 or i >= 12: A(f's_waitcnt vmcnt({31-2*i-hf if i >= 12 else 30-2*i})')
            c = f'v[{16+4*hf}:{19+4*hf}]'
            A(f'v_mfma_f32_16x16x32_bf16 {c}, v[{64+4*i}:{67+4*i}], v[{128+8*i+4*hf}:{131+8*i+4*hf}], {c if i else 0}')
    A(f'''s_mov_b32 exec_lo, 0x00ff00ff
s_mov_b32 exec_hi, 0xff00ff00
ds_write2_b64 v12, v[16:17], v[20:21] offset0:0 offset1:1
ds_write2_b64 v12, v[18:19], v[22:23] offset0:2 offset1:3
s_mov_b64 exec, -1
s_waitcnt lgkmcnt(0)''')
    ST(5)
    A('s_barrier\ns_cmp_lg_u32 s28, 4\ns_cbranch_scc1 L_vend')
    for n in range(4): A(f'ds_read_b128 v[{16+4*n}:{19+4*n}], v5 offset:{L_OP+1024*n}')
    A('s_waitcnt lgkmcnt(0)')
    sum8(16)
    A('v_min_u32 v16, -2, v16\nv_min_u32 v17, -2, v17')
    A('global_store_dwordx2 v14, v[16:17], s[44:45] offset:512 sc1')
    if bar3: A('s_barrier')
    A('L_vend:')
    finish()

    A('L_kwave:')
    A('s_setprio 2\ns_barrier')
    for i in range(16):
        A(f's_xor_b32 s34, s33, {(4*i) << 11}')
        for hf in range(2): A(f'buffer_load_dwordx4 v[{128+8*i+4*hf}:{131+8*i+4*hf}], v2, s[36:39], s34 offen offset:{128*hf} nt')
        if i == 13: A(f's_lshl_b32 s35, s31, 8\ns_add_u32 s35, s35, {WS_ML+128}\ns_load_dwordx8 s[64:71], s[26:27], s35 glc')
    ST(1)
    L, Ld = lab('cnt'), lab('cntd')
    A(f's_mov_b32 s62, {SPIN}\ns_waitcnt lgkmcnt(0)\ns_add_u32 s72, s3, {EPOCH_STEP:#x}\ns_mov_b32 s73, s72\n{L}:')
    for i in range(4): A(f's_xor_b64 s[{64+2*i}:{65+2*i}], s[{64+2*i}:{65+2*i}], s[72:73]')
    A(f'''s_or_b64 s[64:65], s[64:65], s[66:67]
s_or_b64 s[68:69], s[68:69], s[70:71]
s_or_b64 s[64:65], s[64:65], s[68:69]
s_cbranch_scc0 {Ld}
s_sleep 4
s_load_dwordx8 s[64:71], s[26:27], s35 glc
s_sub_u32 s62, s62, 1
s_waitcnt lgkmcnt(0)
s_cbranch_scc0 {L}
{Ld}:
s_mov_b32 s3, s72''')
    ST(2)
    A(f'''s_lshl_b32 s34, s31, 13
s_add_u32 s44, s26, s34
s_addc_u32 s45, s27, 0
v_lshrrev_b32 v12, 5, v0             ; lane >> 5
v_and_b32 v13, 31, v0
v_lshlrev_b32 v13, 4, v13            ; (lane & 31) * 16
v_lshl_add_u32 v6, v12, 12, v13''')
    poll([(f'global_load_dwordx4 v[{16+4*n}:{19+4*n}], v6, s[44:45] offset:{1024*n} sc1', 16 + 4 * n, 4) for n in range(4)], 14)
    ST(3)
    sum8(16)
    A(f'''s_lshl_b32 s46, s28, 8
s_add_u32 s46, s46, {L_SCR}
v_cvt_pk_bf16_f32 v16, v16, v17
v_bfe_u32 v14, v0, 4, 1
v_lshl_add_u32 v14, v14, 7, v4
v_bfe_u32 v15, v0, 3, 1
v_lshl_add_u32 v14, v15, 3, v14
v_lshl_add_u32 v14, v12, 2, v14
v_add_u32 v14, s46, v14
v_add_u32 v15, s46, v4
ds_write_b32 v14, v16
s_waitcnt lgkmcnt(0)
ds_read_b128 v[16:19], v15
ds_read_b128 v[20:23], v15 offset:128
s_waitcnt lgkmcnt(0)''')
    for i0 in range(0, 16, 4):
        for e in range(8):
            for i in range(i0, i0 + 4):
                A(f'v_dot2_f32_bf16 v{32+i}, v{128+8*i+e}, v{16+e}, {"v%d" % (32+i) if e else 0}')
    for i in range(8):
        A(f'v_add_f32_dpp v{32+i}, v{32+i}, v{32+i} row_half_mirror row_mask:0xf bank_mask:0x5')
    for i in range(8):
        A(f'v_add_f32_dpp v{32+i}, v{40+i}, v{40+i} row_half_mirror row_mask:0xf bank_mask:0xa')
    A('s_mov_b32 vcc_lo, 0xcccccccc\ns_mov_b32 vcc_hi, 0xcccccccc')
    for i in range(4): A(f'v_cndmask_b32 v{40+i}, v{36+i}, v{32+i}, vcc\nv_cndmask_b32 v{32+i}, v{32+i}, v{36+i}, vcc')
    for i in range(4): A(f'v_add_f32_dpp v{32+i}, v{40+i}, v{32+i} quad_perm:[2,3,0,1] {FULL}')
    A('s_mov_b32 vcc_lo, 0xaaaaaaaa\ns_mov_b32 vcc_hi, 0xaaaaaaaa')
    for i in range(2): A(f'v_cndmask_b32 v{40+i}, v{34+i}, v{32+i}, vcc\nv_cndmask_b32 v{32+i}, v{32+i}, v{34+i}, vcc')
    for i in range(2): A(f'v_add_f32_dpp v{32+i}, v{40+i}, v{32+i} quad_perm:[1,0,3,2] {FULL}')
    A(f'''v_cvt_pk_bf16_f32 v34, v32, v33
v_lshlrev_b32 v32, 16, v34
v_and_b32 v33, 0xffff0000, v34
v_mul_f32 v32, {SCALE:#x}, v32
v_mul_f32 v33, {SCALE:#x}, v33
v_cvt_pk_bf16_f32 v34, v32, v33
v_lshlrev_b32 v32, 16, v34
v_and_b32 v33, 0xffff0000, v34       ; v32, v33 = scores
v_max_f32 v34, v32, v33''')
    wred('v_max_f32', 34, 36)
    A(f'''v_sub_f32 v35, v32, v34
v_sub_f32 v36, v33, v34
v_mul_f32 v35, {LOG2E:#x}, v35
v_mul_f32 v36, {LOG2E:#x}, v36
v_exp_f32 v35, v35
v_exp_f32 v36, v36
v_add_f32 v35, v35, v36''')
    wred('v_add_f32', 35, 36)
    L, Ld = lab('ml'), lab('mld')
    A(f'''v_min_u32 v34, -2, v34
v_min_u32 v35, -2, v35
s_lshl_b32 s34, s28, 3
v_mov_b32 v36, {L_ML}
v_add_u32 v37, s34, v36
ds_write_b64 v37, v[34:35]
s_mov_b32 s62, {SPIN}
s_cmp_lg_u32 s28, 0
s_cbranch_scc1 L_mlwait
{L}:
ds_read_b128 v[40:43], v36
ds_read_b128 v[44:47], v36 offset:16
s_waitcnt lgkmcnt(0)
v_max3_u32 v37, v40, v41, v42
v_max3_u32 v37, v37, v43, v44
v_max3_u32 v37, v37, v45, v46
v_max_u32 v37, v37, v47
v_cmp_eq_u32 vcc, -1, v37
s_cbranch_vccz {Ld}
s_sub_u32 s62, s62, 1
s_cbranch_scc0 {L}
{Ld}:''')
    ST(4)
    A(f'''s_lshl_b32 s35, s31, 8
s_add_u32 s35, s35, {WS_ML}
v_max3_f32 v34, v40, v42, v44
v_max_f32 v34, v34, v46''')
    for w in range(4): A(f'v_sub_f32 v{40+2*w}, v{40+2*w}, v34')
    for w in range(4): A(f'v_mul_f32 v{40+2*w}, {LOG2E:#x}, v{40+2*w}')
    for w in range(4): A(f'v_exp_f32 v{40+2*w}, v{40+2*w}')
    A('v_mul_f32 v35, v40, v41')
    for w in range(1, 4): A(f'v_fmac_f32 v35, v{40+2*w}, v{41+2*w}')
    A(f'''s_lshl_b32 s34, s32, 3
s_add_u32 s34, s34, s35
v_mov_b32 v37, s34
v_min_u32 v34, -2, v34
v_min_u32 v35, -2, v35
s_mov_b64 exec, 1
global_store_dwordx2 v37, v[34:35], s[26:27] sc1
s_mov_b64 exec, -1''')
    L, Ld = lab('mg'), lab('mgd')
    A(f's_mov_b32 s62, {SPIN}\n{L}:\ns_sleep {mlsleep}\ns_load_dwordx16 s[64:79], s[26:27], s35 glc\ns_waitcnt lgkmcnt(0)\ns_max_u32 s34, s64, s65')
    for i in range(2, 16): A(f's_max_u32 s34, s34, s{64+i}')
    A(f's_cmp_lg_u32 s34, -1\ns_cbranch_scc1 {Ld}\ns_sub_u32 s62, s62, 1\ns_cbranch_scc0 {L}\n{Ld}:')
    A('v_mov_b32 v34, s64')
    for c in range(1, 8): A(f'v_max_f32 v34, s{64+2*c}, v34')
    for c in range(8): A(f'v_sub_f32 v{40+c}, s{64+2*c}, v34')
    for c in range(8): A(f'v_mul_f32 v{40+c}, {LOG2E:#x}, v{40+c}')
    for c in range(8): A(f'v_exp_f32 v{40+c}, v{40+c}')
    A('v_mul_f32 v35, s65, v40')
    for c in range(1, 8): A(f'v_fmac_f32 v35, s{65+2*c}, v{40+c}')
    A(f'''v_rcp_f32 v35, v35
v_min_u32 v34, -2, v34
v_min_u32 v35, -2, v35
ds_write_b64 v36, v[34:35] offset:32
s_branch L_mlok
L_mlwait:
s_sleep 1
ds_read_b64 v[34:35], v36 offset:32
s_waitcnt lgkmcnt(0)
v_max_u32 v37, v34, v35
v_cmp_eq_u32 vcc, -1, v37
s_cbranch_vccz L_mlok
s_sub_u32 s62, s62, 1
s_cbranch_scc0 L_mlwait
L_mlok:''')
    ST(5)
    A(f'''v_sub_f32 v32, v32, v34
v_sub_f32 v33, v33, v34
v_mul_f32 v32, {LOG2E:#x}, v32
v_mul_f32 v33, {LOG2E:#x}, v33
v_exp_f32 v32, v32
v_exp_f32 v33, v33
s_lshl_b32 s34, s28, 8
v_lshl_add_u32 v36, v0, 2, s34
v_mul_f32 v32, v32, v35
v_mul_f32 v33, v33, v35
v_cvt_pk_bf16_f32 v32, v32, v33
ds_write_b32 v36, v32 offset:{L_P}
v_lshrrev_b32 v60, 1, v0
v_lshlrev_b32 v60, 8, v60
v_and_b32 v61, 1, v0
v_lshl_add_u32 v60, v61, 4, v60
v_add_u32 v60, {WS_ML+128}, v60
global_load_dwordx4 v[96:99], v60, s[26:27] sc1
s_waitcnt lgkmcnt(0)''')
    def allcheck(younger):
        L, Ld = lab('all'), lab('alld')
        A(f's_mov_b32 s62, {SPIN}\ns_waitcnt vmcnt({younger})\n{L}:')
        for i in range(4): A(f'v_xor_b32 v{96+i}, s3, v{96+i}')
        A(f'''v_or3_b32 v96, v96, v97, v98
v_or_b32 v96, v96, v99
v_cmp_ne_u32 vcc, 0, v96
s_cbranch_vccz {Ld}
global_load_dwordx4 v[96:99], v60, s[26:27] sc1
s_sub_u32 s62, s62, 1
s_waitcnt vmcnt(0)
s_cbranch_scc0 {L}
{Ld}:''')
    ST(6)
    A(f'''s_lshl_b32 s47, s28, 13
s_add_u32 s47, s47, {L_W}
s_cmp_ge_u32 s30, 16
s_cbranch_scc1 L_notw''')
    def bars(early, loads, nloads):
        A('s_barrier')
        if early: loads()
        allcheck(nloads if early else 0)
        A('s_barrier')
        ST(7)
        if not early:
            if bar3: A('s_barrier')
            loads()

    A(f'''s_lshl_b32 s34, s29, 2
s_add_u32 s34, s34, s28
s_lshl_b32 s35, s34, 13
s_add_u32 s35, s35, 512
s_add_u32 s44, s26, s35
s_addc_u32 s45, s27, 0
s_lshl_b32 s34, s34, 17
s_lshl_b32 s35, s30, 6
s_add_u32 s34, s34, s35
s_add_u32 s40, s12, s34
s_addc_u32 s41, s13, 0
s_mov_b32 s42, {127*1024+64}
s_mov_b32 s43, 0x20000
v_lshrrev_b32 v14, 4, v0             ; g
v_bfe_u32 v15, v0, 2, 2
v_lshl_add_u32 v15, v14, 3, v15
v_and_b32 v32, 1, v14
v_lshlrev_b32 v33, 1, v32
v_and_b32 v34, 3, v0
v_xor_b32 v33, v33, v34
v_lshlrev_b32 v33, 4, v33
v_lshl_add_u32 v15, v15, 10, v33
v_lshrrev_b32 v33, 2, v0
v_lshlrev_b32 v33, 6, v33
v_lshl_add_u32 v33, v34, 3, v33
v_lshl_add_u32 v33, v32, 5, v33
v_add_u32 v33, s47, v33
v_xor_b32 v34, 32, v33
v_lshrrev_b32 v35, 1, v13
v_lshl_add_u32 v35, v12, 2, v35
v_add_u32 v35, s46, v35
v_lshl_add_u32 v36, v14, 4, s46
s_lshl_b32 s34, s28, 2
s_add_u32 s34, s34, {L_RED}
v_add_u32 v37, s34, v13
s_lshl_b32 s34, s29, 11
s_lshl_b32 s35, s30, 7
s_add_u32 s34, s34, s35
s_add_u32 s34, s34, {WS_B}
v_lshl_add_u32 v38, v0, 2, s34''')
    def wloads():
        for n in range(8):
            A(f's_add_u32 m0, s47, {1024*n}\ns_mov_b32 s34, {(32*(n>>1)+4*(n&1))*1024}')
            A('buffer_load_dwordx4 v15, s[40:43], s34 offen nt lds')
    bars(w_early, wloads, 8)
    def whook(n):
        A(f's_waitcnt vmcnt({n})')
        for t in range(4):
            for cb in range(2):
                for hf in range(2):
                    r = 128 + 8 * t + 4 * cb + 2 * hf
                    A(f'ds_read_b64_tr_b16 v[{r}:{r+1}], v{33+cb} offset:{1024*(2*t+hf)}')
    poll([(f'global_load_dwordx4 v[{16+4*n}:{19+4*n}], v6, s[44:45] offset:{1024*n} sc1', 16 + 4 * n, 4) for n in range(4)], 39, hook=whook)
    ST(8)
    sum8(16)
    A('v_cvt_pk_bf16_f32 v16, v16, v17\nds_write_b32 v35, v16\ns_waitcnt lgkmcnt(0)')
    for t in range(4): A(f'ds_read_b128 v[{16+4*t}:{19+4*t}], v36 offset:{64*t}')
    A('s_mov_b32 vcc_lo, 0xffff0000\ns_mov_b32 vcc_hi, 0')
    for t in range(4):
        A(f's_waitcnt lgkmcnt({3-t})')
        for cb in range(2):
            c = f'v[{40+4*cb}:{43+4*cb}]'
            A(f'v_mfma_f32_16x16x32_bf16 {c}, v[{16+4*t}:{19+4*t}], v[{128+8*t+4*cb}:{131+8*t+4*cb}], {c if t else 0}')
    A(f'''v_cndmask_b32 v40, v40, v44, vcc
s_mov_b32 exec_hi, 0
ds_write_b32 v37, v40
s_waitcnt lgkmcnt(0)
s_barrier
s_cmp_lg_u32 s28, 0
s_cbranch_scc1 L_wend
ds_read_b128 v[16:19], v37
s_waitcnt lgkmcnt(0)
v_add_f32 v16, v16, v17
v_add_f32 v18, v18, v19
v_add_f32 v16, v16, v18
v_min_u32 v16, -2, v16
global_store_dword v38, v16, s[26:27] sc1
L_wend:''')
    finish()

    A(f'''L_notw:
s_cmp_ge_u32 s30, 27
s_cbranch_scc1 L_notf
s_mul_i32 s63, s29, 11
s_add_u32 s63, s63, s30
s_sub_u32 s63, s63, 16
s_cmp_ge_u32 s63, 86
s_cbranch_scc1 L_norole
s_mul_i32 s34, s28, {128*2752}
s_lshl_b32 s35, s63, 5
s_add_u32 s34, s34, s35
s_add_u32 s36, s16, s34
s_addc_u32 s37, s17, 0
s_mov_b32 s38, {127*2752+32}
s_mov_b32 s39, 0x20000
s_add_u32 s40, s18, s34
s_addc_u32 s41, s19, 0
s_mov_b32 s42, {127*2752+32}
s_mov_b32 s43, 0x20000
s_lshl_b32 s34, s63, 14
s_lshl_b32 s35, s28, 8
s_add_u32 s34, s34, s35
s_add_u32 s20, s20, s34
s_addc_u32 s21, s21, 0
s_add_u32 s4, s4, s35
s_addc_u32 s5, s5, 0
s_lshl_b32 s35, s28, 9
s_add_u32 s34, s35, {WS_B+4096}
s_add_u32 s44, s26, s34
s_addc_u32 s45, s27, 0
v_lshl_add_u32 v6, v12, 13, v13
v_bfe_u32 v14, v0, 3, 2
v_lshlrev_b32 v14, 3, v14
v_lshl_add_u32 v14, v12, 2, v14
v_bfe_u32 v15, v0, 1, 2
v_add_u32 v14, v14, v15
v_mul_u32_u24 v14, 2752, v14
v_and_b32 v15, 1, v0
v_lshl_add_u32 v15, v15, 4, v14
v_lshl_add_u32 v33, v0, 3, s47
v_lshl_add_u32 v34, v3, 10, v4
v_add_u32 v35, 0x2000, v34           ; rows 8..15
v_lshrrev_b32 v36, 1, v13
v_lshl_add_u32 v36, v12, 2, v36
s_add_u32 s34, s35, {WS_H}
v_lshl_add_u32 v39, v36, 1, s34
s_lshl_b32 s34, s28, 8
s_add_u32 s34, s34, {L_H}
v_add_u32 v37, s34, v36
v_and_b32 v38, 15, v0
v_lshrrev_b32 v14, 4, v0
v_lshlrev_b32 v56, 6, v38
v_lshl_add_u32 v56, v14, 4, v56
s_lshl_b32 s34, s28, 2
s_add_u32 s34, s34, {L_RED}
v_lshl_add_u32 v57, v38, 5, s34
v_bfe_u32 v58, v0, 2, 1
v_lshl_add_u32 v58, v58, 3, v3
v_lshlrev_b32 v58, 5, v58
s_lshl_b32 s34, s63, 11
s_add_u32 s34, s34, s35
s_add_u32 s34, s34, {WS_C}
v_lshl_add_u32 v59, v14, 7, v4
v_add_u32 v59, s34, v59
s_lshl_b32 s34, s28, 4
s_mov_b64 s[60:61], 0xffff
s_lshl_b64 s[60:61], s[60:61], s34''')
    selectors(48, 40)
    def floads():
        A('global_load_dword v32, v36, s[4:5]')
        for m in range(2):
            for t in range(4):
                A(f's_add_u32 m0, s47, {4096*m+1024*t}\ns_mov_b32 s34, {32*t*2752}')
                A(f'buffer_load_dwordx4 v15, s[{36+4*m}:{39+4*m}], s34 offen nt lds')
        for a in range(2):
            for hf in range(2): A(f'global_load_dwordx4 v[{160+8*a+4*hf}:{163+8*a+4*hf}], v{34+a}, s[20:21] offset:{128*hf} nt')
    bars(f_early, floads, 13)
    def fhook(n):
        A(f's_waitcnt vmcnt({n})')
        for m in range(2):
            for t in range(4):
                for hf in range(2):
                    r = 128 + 16 * m + 4 * t + 2 * hf
                    A(f'ds_read_b64_tr_b16 v[{r}:{r+1}], v33 offset:{4096*m+1024*t+512*hf}')
        A('v_and_b32 v41, 0xffff0000, v32\nv_lshlrev_b32 v40, 16, v32')
    poll([(f'global_load_dwordx4 v[{16+4*n}:{19+4*n}], v6, s[44:45] offset:{2048*n-4096} sc1', 16 + 4 * n, 4) for n in range(4)], 42, hook=fhook)
    ST(8)
    sum8(16)
    A(f'''v_cvt_pk_bf16_f32 v18, v16, v17
v_lshlrev_b32 v16, 16, v18
v_and_b32 v17, 0xffff0000, v18
v_add_f32 v16, v16, v40
v_add_f32 v17, v17, v41
v_cvt_pk_bf16_f32 v18, v16, v17
ds_write_b32 v37, v18
s_cmp_lg_u32 s63, 0
s_cbranch_scc1 L_noh
v_lshlrev_b32 v42, 16, v18
v_and_b32 v43, 0xffff0000, v18
global_store_dwordx2 v39, v[42:43], s[26:27] sc1
L_noh:
s_waitcnt lgkmcnt(0)
s_barrier
ds_read_b128 v[16:19], v56 offset:{L_H}
s_waitcnt lgkmcnt(0)''')
    layernorm(16, 20, 16)
    ST(9)
    for t in range(4):
        for m in range(2):
            A(f'v_mfma_f32_16x16x32_bf16 v[{64+16*m+4*t}:{67+16*m+4*t}], v[16:19], v[{128+16*m+4*t}:{131+16*m+4*t}], 0')
    A(f'''v_add_f32 v64, v64, v69
v_add_f32 v80, v80, v85
v_add_f32 v64, v64, v74
v_add_f32 v80, v80, v90
v_add_f32 v64, v64, v79
v_add_f32 v80, v80, v95
s_mov_b64 exec, s[60:61]
ds_write2_b32 v57, v64, v80 offset0:0 offset1:4
s_mov_b64 exec, -1
s_waitcnt lgkmcnt(0)
s_barrier
ds_read_b128 v[16:19], v58 offset:{L_RED}
ds_read_b128 v[20:23], v58 offset:{L_RED+16}
s_waitcnt lgkmcnt(1)
v_add_f32 v16, v16, v17
v_add_f32 v18, v18, v19
v_add_f32 v16, v16, v18
s_waitcnt lgkmcnt(0)
v_add_f32 v20, v20, v21
v_add_f32 v22, v22, v23
v_add_f32 v20, v20, v22
v_cvt_pk_bf16_f32 v20, v16, v20
v_lshlrev_b32 v16, 16, v20
v_mul_f32 v17, {LOG2E ^ 0x80000000:#x}, v16
v_exp_f32 v17, v17
v_and_b32 v20, 0xffff0000, v20
v_add_f32 v17, 1.0, v17
v_rcp_f32 v17, v17
v_mul_f32 v16, v16, v17''')
    rnd(16)
    A(f'''v_mul_f32 v16, v16, v20
v_mov_b32 v17, v16
v_mov_b32_dpp v17, v16 row_half_mirror row_mask:0xf bank_mask:0x5
v_mov_b32_dpp v16, v16 row_half_mirror row_mask:0xf bank_mask:0xa
v_cvt_pk_bf16_f32 v16, v16, v17''')
    for a in range(2): afrag(20 + 4 * a, 16, a, 48)
    for a in range(2):
        for hf in range(2):
            c = f'v[{64+4*hf}:{67+4*hf}]'
            A(f'v_mfma_f32_16x16x32_bf16 {c}, v[{20+4*a}:{23+4*a}], v[{160+8*a+4*hf}:{163+8*a+4*hf}], {c if a else 0}')
    quad_combine(64, 68)
    A(f'''s_mov_b32 exec_lo, 0x00ff00ff
s_mov_b32 exec_hi, 0x00ff00ff
global_store_dwordx4 v59, v[64:67], s[26:27] sc1''')
    finish()

    A(f'''L_notf:
s_cmp_lt_u32 s30, 28
s_cbranch_scc1 L_norole
s_cmp_lg_u32 s28, 0
s_cbranch_scc1 L_norole
s_lshl_b32 s63, s29, 2
s_add_u32 s63, s63, s30
s_sub_u32 s63, s63, 28
s_lshl_b32 s34, s63, 6
s_add_u32 s34, s34, {WS_C}
v_lshrrev_b32 v14, 2, v0
v_and_b32 v15, 3, v0
v_lshlrev_b32 v44, 11, v14
v_lshl_add_u32 v44, v15, 4, v44
v_add_u32 v44, s34, v44''')
    for n in range(1, 6): A(f'v_add_u32 v{44+n}, {32768*n}, v44')
    A(f'''s_lshr_b32 s34, s63, 2
s_lshl_b32 s34, s34, 6
s_and_b32 s35, s63, 1
s_lshl_b32 s35, s35, 5
s_add_u32 s34, s34, s35
s_and_b32 s35, s63, 2
s_lshl_b32 s35, s35, 1
s_add_u32 s34, s34, s35
v_lshrrev_b32 v14, 4, v0
v_lshl_add_u32 v14, v15, 3, v14
v_add_u32 v14, s34, v14
v_lshlrev_b32 v51, 1, v14
v_lshlrev_b32 v50, 2, v14
v_add_u32 v50, {WS_H}, v50
v_mov_b32 v36, 0
v_mov_b32 v37, 0
v_mov_b32 v38, 0
v_mov_b32 v39, 0
v_mov_b32 v52, {WS_E}
v_mov_b32 v53, s3
s_barrier''')
    allcheck(0)
    A('s_barrier')
    if bar3: A('s_barrier')
    ST(7)
    lds = [(f'global_load_dword v40, v50, s[26:27] sc1', 40, 1)]
    lds += [(f'global_load_dwordx4 v[{16+4*n}:{19+4*n}], v{44+n}, s[26:27] sc1', 16 + 4 * n, 4) for n in range(6)]
    poll(lds, 41, init=[-1] * 6 + [0xffffff])
    ST(8)
    for i in range(4): A(f'v_add_f32 v{16+i}, v{16+i}, v{20+i}\nv_add_f32 v{24+i}, v{24+i}, v{28+i}\nv_add_f32 v{32+i}, v{32+i}, v{36+i}')
    for i in range(4): A(f'v_add_f32 v{16+i}, v{16+i}, v{24+i}')
    for i in range(4): A(f'v_add_f32 v{16+i}, v{16+i}, v{32+i}')
    A(f'''v_permlane32_swap_b32 v16, v18
v_permlane32_swap_b32 v17, v19
v_add_f32 v16, v16, v18
v_add_f32 v17, v17, v19
v_permlane16_swap_b32 v16, v17
v_add_f32 v16, v16, v17
v_add_f32_dpp v16, v16, v16 row_ror:8 {FULL}
v_add_f32_dpp v16, v16, v16 row_ror:4 {FULL}''')
    rnd(16)
    A(f'''v_add_f32 v16, v16, v40
v_cvt_pk_bf16_f32 v16, v16, v16
s_mov_b32 exec_lo, 0x000f000f
s_mov_b32 exec_hi, 0x000f000f
global_store_short v51, v16, s[22:23]
s_cmp_lg_u32 s63, 0
s_cbranch_scc1 L_rend
s_mov_b64 exec, 1
global_store_dword v52, v53, s[26:27] sc1
L_rend:''')
    finish()
    A('L_norole:\ns_barrier')
    finish()
    A('L_exit:\ns_endpgm\nL_code_end:')
    A.raw(f'''.section .rodata,"a"
.p2align 6
.amdhsa_kernel {NAME}_kernel
  .amdhsa_next_free_vgpr 256
  .amdhsa_next_free_sgpr 102
  .amdhsa_accum_offset 256
  .amdhsa_group_segment_fixed_size 0
  .amdhsa_kernarg_size 96
  .amdhsa_user_sgpr_count 2
  .amdhsa_user_sgpr_kernarg_segment_ptr 1
  .amdhsa_system_sgpr_workgroup_id_x 1
  .amdhsa_float_denorm_mode_32 3
.end_amdhsa_kernel''')
    return A.text()

if __name__ == '__main__':
    out = sys.argv[1] if len(sys.argv) > 1 else f'cdna_kernels/{NAME}.s'
    kw = eval('dict(' + (sys.argv[2] if len(sys.argv) > 2 else '') + ')')
    open(out, 'w').write(gen(**kw))

def STAMPS(al, roles, KW, VW):
    return [('start', al, KW + VW, 0), ('Q: x landed', al, [4], 1), ('Q: stored', al, [4], 2), ('K issued', al, KW, 1), ('K cnt ok', al, KW, 2),
            ('K q gathered', al, KW, 3), ('K ml lds', al, [0], 4), ('K ml gathered', al, KW, 5), ('K p written', al, KW, 6), ('V issued', al, VW, 3),
            ('V bar1', al, VW, 4), ('V pv done', al, VW, 5), ('A stored', al, [4], 15),
            ('W gathered', roles == 'W', KW, 8), ('W end', roles == 'W', [0], 15), ('F gathered', roles == 'F', KW, 8), ('F ln done', roles == 'F', KW, 9),
            ('F end', roles == 'F', KW, 15), ('R gathered', roles == 'R', [0], 8), ('R end', roles == 'R', [0], 15)]
```

```python
import sys
from asmlib import Asm

NAME = 'sequential_preLN__sliding_block_cached__swiglu_ffn__decode'
WS_QA, WS_B, WS_H, WS_C, WS_ML, WS_E, WS_ST = 0x0, 0x40000, 0x44000, 0x44800, 0x80000, 0x82000, 0x100000
EPOCH_STEP = 0x5bd1e3c7
L_P, L_OP, L_SCR, L_H, L_RED, L_ML, L_W = 0x0, 0x400, 0x1400, 0x1800, 0x1c00, 0x1e00, 0x2000
LDS_BYTES = L_W + 0x8000
SPIN = 0x40000
LOG2E = 0x3fb8aa3b
SCALE = 0x3db504f3
EPS = 0x3727c5ac
FULL = 'row_mask:0xf bank_mask:0xf'

def gen(diag=False, w_early=True, f_early=False, bar3=True, sleep=0, mlsleep=2, amp=None):
    A = Asm()
    uid = [0]
    def lab(s):
        uid[0] += 1
        return f'L_{s}_{uid[0]}'
    def ST(n):
        if amp and n == amp[0]: A('s_memrealtime s[98:99]')
        if amp and n == amp[1]: A('s_memrealtime s[100:101]')
        if diag: A(f's_memrealtime s[96:97]\ns_waitcnt lgkmcnt(0)\nv_writelane_b32 v7, s96, {n}')
    def finish():
        if diag:
            ST(15)
            A(f'''s_mov_b64 exec, 0xffff
s_lshl_b32 s34, s2, 3
s_add_u32 s34, s34, s28
s_lshl_b32 s34, s34, 6
s_add_u32 s34, s34, {WS_ST}
v_lshl_add_u32 v1, v0, 2, s34
global_store_dword v1, v7, s[26:27]''')
        A('s_endpgm')
    def srd(d, lo, hi, n):
        A(f's_mov_b32 s{d}, s{lo}\ns_mov_b32 s{d+1}, s{hi}\ns_mov_b32 s{d+2}, {n}\ns_mov_b32 s{d+3}, 0x20000')
    def wred(op, v, t):
        for r in (8, 4, 2, 1): A(f'{op}_dpp v{v}, v{v}, v{v} row_ror:{r} {FULL}')
        for sw in (16, 32): A(f'v_mov_b32 v{t}, v{v}\nv_permlane{sw}_swap_b32 v{v}, v{t}\n{op} v{v}, v{v}, v{t}')
    def rnd(v):
        A(f'v_cvt_pk_bf16_f32 v{v}, v{v}, v{v}\nv_lshlrev_b32 v{v}, 16, v{v}')
    def layernorm(x, u, o):
        s, t, mb, dl = u + 8, u + 9, u + 10, u + 11
        for i in range(4): A(f'v_lshlrev_b32 v{u+2*i}, 16, v{x+i}\nv_and_b32 v{u+2*i+1}, 0xffff0000, v{x+i}')
        A(f'v_add_f32 v{s}, v{u}, v{u+1}\nv_add_f32 v{t}, v{u+2}, v{u+3}\nv_add_f32 v{mb}, v{u+4}, v{u+5}\nv_add_f32 v{dl}, v{u+6}, v{u+7}')
        A(f'v_add_f32 v{s}, v{s}, v{t}\nv_add_f32 v{mb}, v{mb}, v{dl}\nv_add_f32 v{s}, v{s}, v{mb}')
        wred('v_add_f32', s, t)
        A(f'v_mul_f32 v{dl}, 0x3b000000, v{s}')
        A(f'v_cvt_pk_bf16_f32 v{mb}, v{dl}, v{dl}\nv_lshlrev_b32 v{mb}, 16, v{mb}')
        for i in range(8): A(f'v_sub_f32 v{u+i}, v{u+i}, v{mb}')
        A(f'v_sub_f32 v{dl}, v{dl}, v{mb}')
        A(f'v_mul_f32 v{s}, v{u}, v{u}\nv_mul_f32 v{t}, v{u+1}, v{u+1}')
        for i in range(2, 8, 2): A(f'v_fmac_f32 v{s}, v{u+i}, v{u+i}\nv_fmac_f32 v{t}, v{u+i+1}, v{u+i+1}')
        A(f'v_add_f32 v{s}, v{s}, v{t}')
        fill = [f'v_cvt_pk_bf16_f32 v{o+i}, v{u+2*i}, v{u+2*i+1}' for i in range(4)]
        for i in range(4): fill += [f'v_lshlrev_b32 v{u+2*i}, 16, v{o+i}', f'v_and_b32 v{u+2*i+1}, 0xffff0000, v{o+i}']
        fill.append(f'v_mul_f32 v{dl}, v{dl}, v{dl}')
        for r in (8, 4, 2, 1):
            A(fill.pop(0)); A(fill.pop(0))
            A(f'v_add_f32_dpp v{s}, v{s}, v{s} row_ror:{r} {FULL}')
        for sw in (16, 32):
            A(f'v_mov_b32 v{t}, v{s}'); A(fill.pop(0)); A(fill.pop(0))
            A(f'v_permlane{sw}_swap_b32 v{s}, v{t}\nv_add_f32 v{s}, v{s}, v{t}')
        A(fill.pop(0))
        A(f'v_mul_f32 v{s}, 0x3b000000, v{s}\nv_sub_f32 v{s}, v{s}, v{dl}\nv_max_f32 v{s}, 0, v{s}')
        rnd(s)
        A(f'v_add_f32 v{s}, {EPS:#x}, v{s}'); rnd(s)
        A(f'v_sqrt_f32 v{s}, v{s}'); rnd(s)
        A(f'v_rcp_f32 v{s}, v{s}')
        for i in range(8): A(f'v_mul_f32 v{u+i}, v{u+i}, v{s}')
        for i in range(4): A(f'v_cvt_pk_bf16_f32 v{o+i}, v{u+2*i}, v{u+2*i+1}')
    def selectors(sel, t):
        A(f'''v_and_b32 v{t}, 1, v0
v_cmp_eq_u32 vcc, 1, v{t}
v_mov_b32 v{t+1}, 0x0c0c0100
v_mov_b32 v{t+2}, 0x01000c0c
v_cndmask_b32 v{t+1}, v{t+1}, v{t+2}, vcc
v_mov_b32 v{t+2}, 0x0c0c0302
v_mov_b32 v{t+3}, 0x03020c0c
v_cndmask_b32 v{t+2}, v{t+2}, v{t+3}, vcc
v_mov_b32 v{t+3}, 0x0c0c0c0c
v_bfe_u32 v{t}, v0, 1, 2''')
        for w in range(4):
            A(f'v_cmp_eq_u32 vcc, {w}, v{t}\nv_cndmask_b32 v{sel+w}, v{t+3}, v{t+1}, vcc\nv_cndmask_b32 v{sel+4+w}, v{t+3}, v{t+2}, vcc')
    def afrag(dst, src, par, sel):
        for w in range(4): A(f'v_perm_b32 v{dst+w}, v{src}, v{src}, v{sel+4*par+w}')
    def quad_combine(d0, d1):
        for r in range(4): A(f'v_permlane32_swap_b32 v{d0+r}, v{d1+r}')
        for r in range(4): A(f'v_add_f32_dpp v{d0+r}, v{d1+r}, v{d0+r} row_ror:8 {FULL}')
        for r in range(4): A(f'v_min_u32 v{d0+r}, -2, v{d0+r}')
    def poll(loads, t, hook=None, init=None):
        n = len(loads)
        for i in range(n): A(f's_mov_b64 s[{48+2*i}:{49+2*i}], {init[i] if init else -1}')
        A(f's_mov_b32 s62, {SPIN}')
        L, Lc, Ld = lab('poll'), lab('chk'), lab('done')
        def issue():
            for i, (txt, r, c) in enumerate(loads): A(f's_mov_b64 exec, s[{48+2*i}:{49+2*i}]\n{txt}')
            A('s_mov_b64 exec, -1')
        if hook:
            issue(); hook(n); A(f's_branch {Lc}')
        A(f'{L}:')
        if sleep: A(f's_sleep {sleep}')
        issue()
        A(f'{Lc}:')
        for i, (txt, r, c) in enumerate(loads):
            A(f's_waitcnt vmcnt({n-1-i})')
            if c == 4: A(f'v_max3_u32 v{t}, v{r}, v{r+1}, v{r+2}\nv_max_u32 v{t}, v{t}, v{r+3}\nv_cmp_eq_u32 s[{48+2*i}:{49+2*i}], -1, v{t}')
            else: A(f'v_cmp_eq_u32 s[{48+2*i}:{49+2*i}], -1, v{r}')
            if i == 1: A('s_or_b64 vcc, s[48:49], s[50:51]')
            elif i > 1: A(f's_or_b64 vcc, vcc, s[{48+2*i}:{49+2*i}]')
        A(f's_cbranch_scc0 {Ld}\ns_sub_u32 s62, s62, 1\ns_cbranch_scc0 {L}\n{Ld}:')
    def sum8(g):
        for i in range(4): A(f'v_add_f32 v{g+i}, v{g+i}, v{g+4+i}\nv_add_f32 v{g+8+i}, v{g+8+i}, v{g+12+i}')
        for i in range(4): A(f'v_add_f32 v{g+i}, v{g+i}, v{g+8+i}')
        A(f'v_permlane32_swap_b32 v{g}, v{g+2}\nv_permlane32_swap_b32 v{g+1}, v{g+3}')
        A(f'v_add_f32 v{g}, v{g}, v{g+2}\nv_add_f32 v{g+1}, v{g+1}, v{g+3}')

    hdr = open('cdna_kernels/' + NAME + '.s.ref').read().split('\n')
    for ln in hdr:
        if ln.startswith('; @launch'): A.raw(f'; @launch grid=(256,1,1) block=(512,1,1) lds={LDS_BYTES}'); break
        A.raw(ln)
    A.raw(f'.amdgcn_target "amdgcn-amd-amdhsa--gfx950"\n.text\n.globl {NAME}_kernel\n.p2align 8\n.type {NAME}_kernel,@function\n{NAME}_kernel:')

    if amp: ST(13)
    A(f'''s_cmp_ge_u32 s2, 256
s_cbranch_scc1 L_exit
s_load_dwordx16 s[4:19], s[0:1], 0
s_load_dwordx8 s[20:27], s[0:1], 64
v_lshrrev_b32 v1, 6, v0
v_and_b32 v0, 63, v0
v_readfirstlane_b32 s28, v1
s_and_b32 s29, s2, 7
s_lshr_b32 s30, s2, 3
s_and_b32 s31, s30, 3
s_lshl_b32 s34, s29, 2
s_add_u32 s31, s31, s34              ; head
s_lshr_b32 s32, s30, 2
v_lshrrev_b32 v3, 3, v0              ; lane >> 3
v_and_b32 v4, 7, v0
v_lshlrev_b32 v4, 4, v4              ; (lane & 7) * 16
v_lshl_add_u32 v2, v3, 8, v4
s_and_b32 s33, s30, 7
s_lshl_b32 s33, s33, 1
s_and_b32 s63, s28, 3
s_xor_b32 s33, s33, s63
s_lshl_b32 s33, s33, 11
s_lshl_b32 s34, s31, 23
s_lshl_b32 s35, s32, 17
s_add_u32 s34, s34, s35
s_add_u32 s34, s34, 0x700000
v_mov_b32 v8, -1
v_mov_b32 v9, -1
v_mov_b32 v10, -1
v_mov_b32 v11, -1
v_lshlrev_b32 v5, 4, v0              ; lane * 16''')
    if diag: A('v_mov_b32 v7, 0')
    A(f'''s_cmp_lt_u32 s28, 4
s_waitcnt lgkmcnt(0)
s_cselect_b32 s36, s6, s8
s_cselect_b32 s37, s7, s9
s_add_u32 s36, s36, s34
s_addc_u32 s37, s37, 0
s_mov_b32 s38, 0x20000
s_mov_b32 s39, 0x20000
s_load_dword s3, s[26:27], {WS_E:#x}''')
    ST(0)
    A('s_cmp_lt_u32 s28, 4\ns_cbranch_scc1 L_kwave')

    A(f'''s_lshl_b32 s34, s31, 3
s_add_u32 s34, s34, s32
s_lshl_b32 s35, s34, 10
s_add_u32 s44, s26, s35
s_addc_u32 s45, s27, 0
s_cmp_lg_u32 s28, 4
s_cbranch_scc1 L_vrest
s_setprio 3
global_store_dwordx4 v5, v[8:11], s[44:45] sc1
s_lshl_b32 s35, s2, 10
s_add_u32 s35, s35, {WS_B}
v_add_u32 v6, s35, v5
global_store_dwordx4 v6, v[8:11], s[26:27] sc1
s_lshl_b32 s35, s31, 8
s_lshl_b32 s63, s32, 3
s_add_u32 s35, s35, s63
s_add_u32 s35, s35, {WS_ML}
v_mov_b32 v6, s35
s_lshr_b32 s63, s63, 1
s_sub_u32 s35, s35, s63
v_mov_b32 v12, s35
s_mov_b64 exec, 1
global_store_dwordx2 v6, v[8:9], s[26:27] sc1
s_mov_b64 exec, -1
global_load_dwordx4 v[24:27], v5, s[4:5]
s_lshl_b32 s34, s32, 19
s_lshl_b32 s35, s31, 8
s_add_u32 s34, s34, s35
s_add_u32 s40, s10, s34
s_addc_u32 s41, s11, 0
s_mov_b32 s42, {63*8192+256}
s_mov_b32 s43, 0x20000
v_lshl_add_u32 v6, v3, 16, v4''')
    for n in range(8):
        A(f's_mov_b32 s34, {n*8192}')
        for hf in range(2): A(f'buffer_load_dwordx4 v[{64+8*n+4*hf}:{67+8*n+4*hf}], v6, s[40:43], s34 offen offset:{128*hf} nt')
    A('s_barrier')
    selectors(40, 28)
    A(f'''s_lshl_b32 s34, s32, 3
v_add_lshl_u32 v6, v3, s34, 2
s_waitcnt lgkmcnt(0)
s_add_u32 s3, s3, {EPOCH_STEP:#x}
v_mov_b32 v13, s3
s_mov_b64 exec, 1
s_waitcnt vmcnt(16)
global_store_dword v12, v13, s[26:27] offset:128 sc1
s_mov_b64 exec, -1''')
    ST(1)
    layernorm(24, 28, 24)
    for i in range(4): A(f'ds_bpermute_b32 v{48+i}, v6, v{24+i}')
    A('s_waitcnt lgkmcnt(0)')
    for n in range(8):
        afrag(24 + 4 * (n & 1), 48 + n // 2, n & 1, 40)
        A(f's_waitcnt vmcnt({15-2*n})')
        for hf in range(2):
            c = f'v[{16+4*hf}:{19+4*hf}]'
            A(f'v_mfma_f32_16x16x32_bf16 {c}, v[{24+4*(n&1)}:{27+4*(n&1)}], v[{64+8*n+4*hf}:{67+8*n+4*hf}], {c if n else 0}')
    A('v_lshrrev_b32 v6, 4, v0\nv_lshl_add_u32 v6, v6, 7, v4')
    quad_combine(16, 20)
    A(f'''s_mov_b32 exec_lo, 0x00ff00ff
s_mov_b32 exec_hi, 0x00ff00ff
global_store_dwordx4 v6, v[16:19], s[44:45] sc1
s_mov_b64 exec, -1
s_setprio 0''')
    ST(2)
    A('s_branch L_vstream')
    A('L_vrest:')
    A(f'''s_cmp_lg_u32 s28, 5
s_cbranch_scc1 L_vbar
s_getpc_b64 s[40:41]
L_pc:
s_sub_u32 s40, s40, L_pc-{NAME}_kernel
s_subb_u32 s41, s41, 0
v_lshlrev_b32 v6, 7, v0
global_load_dword v15, v6, s[40:41]
v_add_u32 v6, 0x2000, v6
v_min_u32 v6, L_code_end-{NAME}_kernel-4, v6
global_load_dword v15, v6, s[40:41]
v_mov_b32 v6, {L_ML}
ds_write_b128 v6, v[8:11]
ds_write_b128 v6, v[8:11] offset:16
ds_write_b128 v6, v[8:11] offset:32
s_waitcnt lgkmcnt(0)
L_vbar:
s_barrier''')
    selectors(40, 28)
    A('L_vstream:')
    for i in range(16):
        A(f's_xor_b32 s34, s33, {(4*i) << 11}')
        for hf in range(2): A(f'buffer_load_dwordx4 v[{128+8*i+4*hf}:{131+8*i+4*hf}], v2, s[36:39], s34 offen offset:{128*hf} nt')
    ST(3)
    A(f'''s_and_b32 s63, s28, 3
s_lshl_b32 s34, s63, 8
v_lshl_add_u32 v6, v3, 5, s34
s_lshl_b32 s34, s63, 10
s_add_u32 s34, s34, {L_OP}
v_lshrrev_b32 v12, 5, v0
v_lshl_add_u32 v12, v12, 9, s34
v_lshl_add_u32 v12, v4, 2, v12
v_bfe_u32 v13, v0, 4, 1
v_lshl_add_u32 v12, v13, 5, v12
v_lshlrev_b32 v14, 3, v0
s_barrier''')
    ST(4)
    A(f'ds_read_b128 v[48:51], v6 offset:{L_P}\nds_read_b128 v[52:55], v6 offset:{L_P+16}\ns_waitcnt lgkmcnt(0)')
    for i in range(16): afrag(64 + 4 * i, 48 + i // 2, i & 1, 40)
    for i in range(16):
        for hf in range(2):
            if hf == 0 or i >= 12: A(f's_waitcnt vmcnt({31-2*i-hf if i >= 12 else 30-2*i})')
            c = f'v[{16+4*hf}:{19+4*hf}]'
            A(f'v_mfma_f32_16x16x32_bf16 {c}, v[{64+4*i}:{67+4*i}], v[{128+8*i+4*hf}:{131+8*i+4*hf}], {c if i else 0}')
    A(f'''s_mov_b32 exec_lo, 0x00ff00ff
s_mov_b32 exec_hi, 0xff00ff00
ds_write2_b64 v12, v[16:17], v[20:21] offset0:0 offset1:1
ds_write2_b64 v12, v[18:19], v[22:23] offset0:2 offset1:3
s_mov_b64 exec, -1
s_waitcnt lgkmcnt(0)''')
    ST(5)
    A('s_barrier\ns_cmp_lg_u32 s28, 4\ns_cbranch_scc1 L_vend')
    for n in range(4): A(f'ds_read_b128 v[{16+4*n}:{19+4*n}], v5 offset:{L_OP+1024*n}')
    A('s_waitcnt lgkmcnt(0)')
    sum8(16)
    A('v_min_u32 v16, -2, v16\nv_min_u32 v17, -2, v17')
    A('global_store_dwordx2 v14, v[16:17], s[44:45] offset:512 sc1')
    if bar3: A('s_barrier')
    A('L_vend:')
    finish()

    A('L_kwave:')
    A('s_setprio 2\ns_barrier')
    for i in range(16):
        A(f's_xor_b32 s34, s33, {(4*i) << 11}')
        for hf in range(2): A(f'buffer_load_dwordx4 v[{128+8*i+4*hf}:{131+8*i+4*hf}], v2, s[36:39], s34 offen offset:{128*hf} nt')
        if i == 13: A(f's_lshl_b32 s35, s31, 8\ns_add_u32 s35, s35, {WS_ML+128}\ns_load_dwordx8 s[64:71], s[26:27], s35 glc')
    ST(1)
    L, Ld = lab('cnt'), lab('cntd')
    A(f's_mov_b32 s62, {SPIN}\ns_waitcnt lgkmcnt(0)\ns_add_u32 s72, s3, {EPOCH_STEP:#x}\ns_mov_b32 s73, s72\n{L}:')
    for i in range(4): A(f's_xor_b64 s[{64+2*i}:{65+2*i}], s[{64+2*i}:{65+2*i}], s[72:73]')
    A(f'''s_or_b64 s[64:65], s[64:65], s[66:67]
s_or_b64 s[68:69], s[68:69], s[70:71]
s_or_b64 s[64:65], s[64:65], s[68:69]
s_cbranch_scc0 {Ld}
s_sleep 4
s_load_dwordx8 s[64:71], s[26:27], s35 glc
s_sub_u32 s62, s62, 1
s_waitcnt lgkmcnt(0)
s_cbranch_scc0 {L}
{Ld}:
s_mov_b32 s3, s72''')
    ST(2)
    A(f'''s_lshl_b32 s34, s31, 13
s_add_u32 s44, s26, s34
s_addc_u32 s45, s27, 0
v_lshrrev_b32 v12, 5, v0             ; lane >> 5
v_and_b32 v13, 31, v0
v_lshlrev_b32 v13, 4, v13            ; (lane & 31) * 16
v_lshl_add_u32 v6, v12, 12, v13''')
    poll([(f'global_load_dwordx4 v[{16+4*n}:{19+4*n}], v6, s[44:45] offset:{1024*n} sc1', 16 + 4 * n, 4) for n in range(4)], 14)
    ST(3)
    sum8(16)
    A(f'''s_lshl_b32 s46, s28, 8
s_add_u32 s46, s46, {L_SCR}
v_cvt_pk_bf16_f32 v16, v16, v17
v_bfe_u32 v14, v0, 4, 1
v_lshl_add_u32 v14, v14, 7, v4
v_bfe_u32 v15, v0, 3, 1
v_lshl_add_u32 v14, v15, 3, v14
v_lshl_add_u32 v14, v12, 2, v14
v_add_u32 v14, s46, v14
v_add_u32 v15, s46, v4
ds_write_b32 v14, v16
s_waitcnt lgkmcnt(0)
ds_read_b128 v[16:19], v15
ds_read_b128 v[20:23], v15 offset:128
s_waitcnt lgkmcnt(0)''')
    for i0 in range(0, 16, 4):
        for e in range(8):
            for i in range(i0, i0 + 4):
                A(f'v_dot2_f32_bf16 v{32+i}, v{128+8*i+e}, v{16+e}, {"v%d" % (32+i) if e else 0}')
    for i in range(8):
        A(f'v_add_f32_dpp v{32+i}, v{32+i}, v{32+i} row_half_mirror row_mask:0xf bank_mask:0x5')
    for i in range(8):
        A(f'v_add_f32_dpp v{32+i}, v{40+i}, v{40+i} row_half_mirror row_mask:0xf bank_mask:0xa')
    A('s_mov_b32 vcc_lo, 0xcccccccc\ns_mov_b32 vcc_hi, 0xcccccccc')
    for i in range(4): A(f'v_cndmask_b32 v{40+i}, v{36+i}, v{32+i}, vcc\nv_cndmask_b32 v{32+i}, v{32+i}, v{36+i}, vcc')
    for i in range(4): A(f'v_add_f32_dpp v{32+i}, v{40+i}, v{32+i} quad_perm:[2,3,0,1] {FULL}')
    A('s_mov_b32 vcc_lo, 0xaaaaaaaa\ns_mov_b32 vcc_hi, 0xaaaaaaaa')
    for i in range(2): A(f'v_cndmask_b32 v{40+i}, v{34+i}, v{32+i}, vcc\nv_cndmask_b32 v{32+i}, v{32+i}, v{34+i}, vcc')
    for i in range(2): A(f'v_add_f32_dpp v{32+i}, v{40+i}, v{32+i} quad_perm:[1,0,3,2] {FULL}')
    A(f'''v_cvt_pk_bf16_f32 v34, v32, v33
v_lshlrev_b32 v32, 16, v34
v_and_b32 v33, 0xffff0000, v34
v_mul_f32 v32, {SCALE:#x}, v32
v_mul_f32 v33, {SCALE:#x}, v33
v_cvt_pk_bf16_f32 v34, v32, v33
v_lshlrev_b32 v32, 16, v34
v_and_b32 v33, 0xffff0000, v34       ; v32, v33 = scores
v_max_f32 v34, v32, v33''')
    wred('v_max_f32', 34, 36)
    A(f'''v_sub_f32 v35, v32, v34
v_sub_f32 v36, v33, v34
v_mul_f32 v35, {LOG2E:#x}, v35
v_mul_f32 v36, {LOG2E:#x}, v36
v_exp_f32 v35, v35
v_exp_f32 v36, v36
v_add_f32 v35, v35, v36''')
    wred('v_add_f32', 35, 36)
    L, Ld = lab('ml'), lab('mld')
    A(f'''v_min_u32 v34, -2, v34
v_min_u32 v35, -2, v35
s_lshl_b32 s34, s28, 3
v_mov_b32 v36, {L_ML}
v_add_u32 v37, s34, v36
ds_write_b64 v37, v[34:35]
s_mov_b32 s62, {SPIN}
s_cmp_lg_u32 s28, 0
s_cbranch_scc1 L_mlwait
{L}:
ds_read_b128 v[40:43], v36
ds_read_b128 v[44:47], v36 offset:16
s_waitcnt lgkmcnt(0)
v_max3_u32 v37, v40, v41, v42
v_max3_u32 v37, v37, v43, v44
v_max3_u32 v37, v37, v45, v46
v_max_u32 v37, v37, v47
v_cmp_eq_u32 vcc, -1, v37
s_cbranch_vccz {Ld}
s_sub_u32 s62, s62, 1
s_cbranch_scc0 {L}
{Ld}:''')
    ST(4)
    A(f'''s_lshl_b32 s35, s31, 8
s_add_u32 s35, s35, {WS_ML}
v_max3_f32 v34, v40, v42, v44
v_max_f32 v34, v34, v46''')
    for w in range(4): A(f'v_sub_f32 v{40+2*w}, v{40+2*w}, v34')
    for w in range(4): A(f'v_mul_f32 v{40+2*w}, {LOG2E:#x}, v{40+2*w}')
    for w in range(4): A(f'v_exp_f32 v{40+2*w}, v{40+2*w}')
    A('v_mul_f32 v35, v40, v41')
    for w in range(1, 4): A(f'v_fmac_f32 v35, v{40+2*w}, v{41+2*w}')
    A(f'''s_lshl_b32 s34, s32, 3
s_add_u32 s34, s34, s35
v_mov_b32 v37, s34
v_min_u32 v34, -2, v34
v_min_u32 v35, -2, v35
s_mov_b64 exec, 1
global_store_dwordx2 v37, v[34:35], s[26:27] sc1
s_mov_b64 exec, -1''')
    L, Ld = lab('mg'), lab('mgd')
    A(f's_mov_b32 s62, {SPIN}\n{L}:\ns_sleep {mlsleep}\ns_load_dwordx16 s[64:79], s[26:27], s35 glc\ns_waitcnt lgkmcnt(0)\ns_max_u32 s34, s64, s65')
    for i in range(2, 16): A(f's_max_u32 s34, s34, s{64+i}')
    A(f's_cmp_lg_u32 s34, -1\ns_cbranch_scc1 {Ld}\ns_sub_u32 s62, s62, 1\ns_cbranch_scc0 {L}\n{Ld}:')
    A('v_mov_b32 v34, s64')
    for c in range(1, 8): A(f'v_max_f32 v34, s{64+2*c}, v34')
    for c in range(8): A(f'v_sub_f32 v{40+c}, s{64+2*c}, v34')
    for c in range(8): A(f'v_mul_f32 v{40+c}, {LOG2E:#x}, v{40+c}')
    for c in range(8): A(f'v_exp_f32 v{40+c}, v{40+c}')
    A('v_mul_f32 v35, s65, v40')
    for c in range(1, 8): A(f'v_fmac_f32 v35, s{65+2*c}, v{40+c}')
    A(f'''v_rcp_f32 v35, v35
v_min_u32 v34, -2, v34
v_min_u32 v35, -2, v35
ds_write_b64 v36, v[34:35] offset:32
s_branch L_mlok
L_mlwait:
s_sleep 1
ds_read_b64 v[34:35], v36 offset:32
s_waitcnt lgkmcnt(0)
v_max_u32 v37, v34, v35
v_cmp_eq_u32 vcc, -1, v37
s_cbranch_vccz L_mlok
s_sub_u32 s62, s62, 1
s_cbranch_scc0 L_mlwait
L_mlok:''')
    ST(5)
    A(f'''v_sub_f32 v32, v32, v34
v_sub_f32 v33, v33, v34
v_mul_f32 v32, {LOG2E:#x}, v32
v_mul_f32 v33, {LOG2E:#x}, v33
v_exp_f32 v32, v32
v_exp_f32 v33, v33
s_lshl_b32 s34, s28, 8
v_lshl_add_u32 v36, v0, 2, s34
v_mul_f32 v32, v32, v35
v_mul_f32 v33, v33, v35
v_cvt_pk_bf16_f32 v32, v32, v33
ds_write_b32 v36, v32 offset:{L_P}
v_lshrrev_b32 v60, 1, v0
v_lshlrev_b32 v60, 8, v60
v_and_b32 v61, 1, v0
v_lshl_add_u32 v60, v61, 4, v60
v_add_u32 v60, {WS_ML+128}, v60
global_load_dwordx4 v[96:99], v60, s[26:27] sc1
s_waitcnt lgkmcnt(0)''')
    def allcheck(younger):
        L, Ld = lab('all'), lab('alld')
        A(f's_mov_b32 s62, {SPIN}\ns_waitcnt vmcnt({younger})\n{L}:')
        for i in range(4): A(f'v_xor_b32 v{96+i}, s3, v{96+i}')
        A(f'''v_or3_b32 v96, v96, v97, v98
v_or_b32 v96, v96, v99
v_cmp_ne_u32 vcc, 0, v96
s_cbranch_vccz {Ld}
global_load_dwordx4 v[96:99], v60, s[26:27] sc1
s_sub_u32 s62, s62, 1
s_waitcnt vmcnt(0)
s_cbranch_scc0 {L}
{Ld}:''')
    ST(6)
    A(f'''s_lshl_b32 s47, s28, 13
s_add_u32 s47, s47, {L_W}
s_cmp_ge_u32 s30, 16
s_cbranch_scc1 L_notw''')
    def bars(early, loads, nloads):
        A('s_barrier')
        if early: loads()
        allcheck(nloads if early else 0)
        A('s_barrier')
        ST(7)
        if not early:
            if bar3: A('s_barrier')
            loads()

    A(f'''s_lshl_b32 s34, s29, 2
s_add_u32 s34, s34, s28
s_lshl_b32 s35, s34, 13
s_add_u32 s35, s35, 512
s_add_u32 s44, s26, s35
s_addc_u32 s45, s27, 0
s_lshl_b32 s34, s34, 17
s_lshl_b32 s35, s30, 6
s_add_u32 s34, s34, s35
s_add_u32 s40, s12, s34
s_addc_u32 s41, s13, 0
s_mov_b32 s42, {127*1024+64}
s_mov_b32 s43, 0x20000
v_lshrrev_b32 v14, 4, v0             ; g
v_bfe_u32 v15, v0, 2, 2
v_lshl_add_u32 v15, v14, 3, v15
v_and_b32 v32, 1, v14
v_lshlrev_b32 v33, 1, v32
v_and_b32 v34, 3, v0
v_xor_b32 v33, v33, v34
v_lshlrev_b32 v33, 4, v33
v_lshl_add_u32 v15, v15, 10, v33
v_lshrrev_b32 v33, 2, v0
v_lshlrev_b32 v33, 6, v33
v_lshl_add_u32 v33, v34, 3, v33
v_lshl_add_u32 v33, v32, 5, v33
v_add_u32 v33, s47, v33
v_xor_b32 v34, 32, v33
v_lshrrev_b32 v35, 1, v13
v_lshl_add_u32 v35, v12, 2, v35
v_add_u32 v35, s46, v35
v_lshl_add_u32 v36, v14, 4, s46
s_lshl_b32 s34, s28, 2
s_add_u32 s34, s34, {L_RED}
v_add_u32 v37, s34, v13
s_lshl_b32 s34, s29, 11
s_lshl_b32 s35, s30, 7
s_add_u32 s34, s34, s35
s_add_u32 s34, s34, {WS_B}
v_lshl_add_u32 v38, v0, 2, s34''')
    def wloads():
        for n in range(8):
            A(f's_add_u32 m0, s47, {1024*n}\ns_mov_b32 s34, {(32*(n>>1)+4*(n&1))*1024}')
            A('buffer_load_dwordx4 v15, s[40:43], s34 offen nt lds')
    bars(w_early, wloads, 8)
    def whook(n):
        A(f's_waitcnt vmcnt({n})')
        for t in range(4):
            for cb in range(2):
                for hf in range(2):
                    r = 128 + 8 * t + 4 * cb + 2 * hf
                    A(f'ds_read_b64_tr_b16 v[{r}:{r+1}], v{33+cb} offset:{1024*(2*t+hf)}')
    poll([(f'global_load_dwordx4 v[{16+4*n}:{19+4*n}], v6, s[44:45] offset:{1024*n} sc1', 16 + 4 * n, 4) for n in range(4)], 39, hook=whook)
    ST(8)
    sum8(16)
    A('v_cvt_pk_bf16_f32 v16, v16, v17\nds_write_b32 v35, v16\ns_waitcnt lgkmcnt(0)')
    for t in range(4): A(f'ds_read_b128 v[{16+4*t}:{19+4*t}], v36 offset:{64*t}')
    A('s_mov_b32 vcc_lo, 0xffff0000\ns_mov_b32 vcc_hi, 0')
    for t in range(4):
        A(f's_waitcnt lgkmcnt({3-t})')
        for cb in range(2):
            c = f'v[{40+4*cb}:{43+4*cb}]'
            A(f'v_mfma_f32_16x16x32_bf16 {c}, v[{16+4*t}:{19+4*t}], v[{128+8*t+4*cb}:{131+8*t+4*cb}], {c if t else 0}')
    A(f'''v_cndmask_b32 v40, v40, v44, vcc
s_mov_b32 exec_hi, 0
ds_write_b32 v37, v40
s_waitcnt lgkmcnt(0)
s_barrier
s_cmp_lg_u32 s28, 0
s_cbranch_scc1 L_wend
ds_read_b128 v[16:19], v37
s_waitcnt lgkmcnt(0)
v_add_f32 v16, v16, v17
v_add_f32 v18, v18, v19
v_add_f32 v16, v16, v18
v_min_u32 v16, -2, v16
global_store_dword v38, v16, s[26:27] sc1
L_wend:''')
    finish()

    A(f'''L_notw:
s_cmp_ge_u32 s30, 27
s_cbranch_scc1 L_notf
s_mul_i32 s63, s29, 11
s_add_u32 s63, s63, s30
s_sub_u32 s63, s63, 16
s_cmp_ge_u32 s63, 86
s_cbranch_scc1 L_norole
s_mul_i32 s34, s28, {128*2752}
s_lshl_b32 s35, s63, 5
s_add_u32 s34, s34, s35
s_add_u32 s36, s16, s34
s_addc_u32 s37, s17, 0
s_mov_b32 s38, {127*2752+32}
s_mov_b32 s39, 0x20000
s_add_u32 s40, s18, s34
s_addc_u32 s41, s19, 0
s_mov_b32 s42, {127*2752+32}
s_mov_b32 s43, 0x20000
s_lshl_b32 s34, s63, 14
s_lshl_b32 s35, s28, 8
s_add_u32 s34, s34, s35
s_add_u32 s20, s20, s34
s_addc_u32 s21, s21, 0
s_add_u32 s4, s4, s35
s_addc_u32 s5, s5, 0
s_lshl_b32 s35, s28, 9
s_add_u32 s34, s35, {WS_B+4096}
s_add_u32 s44, s26, s34
s_addc_u32 s45, s27, 0
v_lshl_add_u32 v6, v12, 13, v13
v_bfe_u32 v14, v0, 3, 2
v_lshlrev_b32 v14, 3, v14
v_lshl_add_u32 v14, v12, 2, v14
v_bfe_u32 v15, v0, 1, 2
v_add_u32 v14, v14, v15
v_mul_u32_u24 v14, 2752, v14
v_and_b32 v15, 1, v0
v_lshl_add_u32 v15, v15, 4, v14
v_lshl_add_u32 v33, v0, 3, s47
v_lshl_add_u32 v34, v3, 10, v4
v_add_u32 v35, 0x2000, v34           ; rows 8..15
v_lshrrev_b32 v36, 1, v13
v_lshl_add_u32 v36, v12, 2, v36
s_add_u32 s34, s35, {WS_H}
v_lshl_add_u32 v39, v36, 1, s34
s_lshl_b32 s34, s28, 8
s_add_u32 s34, s34, {L_H}
v_add_u32 v37, s34, v36
v_and_b32 v38, 15, v0
v_lshrrev_b32 v14, 4, v0
v_lshlrev_b32 v56, 6, v38
v_lshl_add_u32 v56, v14, 4, v56
s_lshl_b32 s34, s28, 2
s_add_u32 s34, s34, {L_RED}
v_lshl_add_u32 v57, v38, 5, s34
v_bfe_u32 v58, v0, 2, 1
v_lshl_add_u32 v58, v58, 3, v3
v_lshlrev_b32 v58, 5, v58
s_lshl_b32 s34, s63, 11
s_add_u32 s34, s34, s35
s_add_u32 s34, s34, {WS_C}
v_lshl_add_u32 v59, v14, 7, v4
v_add_u32 v59, s34, v59
s_lshl_b32 s34, s28, 4
s_mov_b64 s[60:61], 0xffff
s_lshl_b64 s[60:61], s[60:61], s34''')
    selectors(48, 40)
    def floads():
        A('global_load_dword v32, v36, s[4:5]')
        for m in range(2):
            for t in range(4):
                A(f's_add_u32 m0, s47, {4096*m+1024*t}\ns_mov_b32 s34, {32*t*2752}')
                A(f'buffer_load_dwordx4 v15, s[{36+4*m}:{39+4*m}], s34 offen nt lds')
        for a in range(2):
            for hf in range(2): A(f'global_load_dwordx4 v[{160+8*a+4*hf}:{163+8*a+4*hf}], v{34+a}, s[20:21] offset:{128*hf} nt')
    bars(f_early, floads, 13)
    def fhook(n):
        A(f's_waitcnt vmcnt({n})')
        for m in range(2):
            for t in range(4):
                for hf in range(2):
                    r = 128 + 16 * m + 4 * t + 2 * hf
                    A(f'ds_read_b64_tr_b16 v[{r}:{r+1}], v33 offset:{4096*m+1024*t+512*hf}')
        A('v_and_b32 v41, 0xffff0000, v32\nv_lshlrev_b32 v40, 16, v32')
    poll([(f'global_load_dwordx4 v[{16+4*n}:{19+4*n}], v6, s[44:45] offset:{2048*n-4096} sc1', 16 + 4 * n, 4) for n in range(4)], 42, hook=fhook)
    ST(8)
    sum8(16)
    A(f'''v_cvt_pk_bf16_f32 v18, v16, v17
v_lshlrev_b32 v16, 16, v18
v_and_b32 v17, 0xffff0000, v18
v_add_f32 v16, v16, v40
v_add_f32 v17, v17, v41
v_cvt_pk_bf16_f32 v18, v16, v17
ds_write_b32 v37, v18
s_cmp_lg_u32 s63, 0
s_cbranch_scc1 L_noh
v_lshlrev_b32 v42, 16, v18
v_and_b32 v43, 0xffff0000, v18
global_store_dwordx2 v39, v[42:43], s[26:27] sc1
L_noh:
s_waitcnt lgkmcnt(0)
s_barrier
ds_read_b128 v[16:19], v56 offset:{L_H}
s_waitcnt lgkmcnt(0)''')
    layernorm(16, 20, 16)
    ST(9)
    for t in range(4):
        for m in range(2):
            A(f'v_mfma_f32_16x16x32_bf16 v[{64+16*m+4*t}:{67+16*m+4*t}], v[16:19], v[{128+16*m+4*t}:{131+16*m+4*t}], 0')
    A(f'''v_add_f32 v64, v64, v69
v_add_f32 v80, v80, v85
v_add_f32 v64, v64, v74
v_add_f32 v80, v80, v90
v_add_f32 v64, v64, v79
v_add_f32 v80, v80, v95
s_mov_b64 exec, s[60:61]
ds_write2_b32 v57, v64, v80 offset0:0 offset1:4
s_mov_b64 exec, -1
s_waitcnt lgkmcnt(0)
s_barrier
ds_read_b128 v[16:19], v58 offset:{L_RED}
ds_read_b128 v[20:23], v58 offset:{L_RED+16}
s_waitcnt lgkmcnt(1)
v_add_f32 v16, v16, v17
v_add_f32 v18, v18, v19
v_add_f32 v16, v16, v18
s_waitcnt lgkmcnt(0)
v_add_f32 v20, v20, v21
v_add_f32 v22, v22, v23
v_add_f32 v20, v20, v22
v_cvt_pk_bf16_f32 v20, v16, v20
v_lshlrev_b32 v16, 16, v20
v_mul_f32 v17, {LOG2E ^ 0x80000000:#x}, v16
v_exp_f32 v17, v17
v_and_b32 v20, 0xffff0000, v20
v_add_f32 v17, 1.0, v17
v_rcp_f32 v17, v17
v_mul_f32 v16, v16, v17''')
    rnd(16)
    A(f'''v_mul_f32 v16, v16, v20
v_mov_b32 v17, v16
v_mov_b32_dpp v17, v16 row_half_mirror row_mask:0xf bank_mask:0x5
v_mov_b32_dpp v16, v16 row_half_mirror row_mask:0xf bank_mask:0xa
v_cvt_pk_bf16_f32 v16, v16, v17''')
    for a in range(2): afrag(20 + 4 * a, 16, a, 48)
    for a in range(2):
        for hf in range(2):
            c = f'v[{64+4*hf}:{67+4*hf}]'
            A(f'v_mfma_f32_16x16x32_bf16 {c}, v[{20+4*a}:{23+4*a}], v[{160+8*a+4*hf}:{163+8*a+4*hf}], {c if a else 0}')
    quad_combine(64, 68)
    A(f'''s_mov_b32 exec_lo, 0x00ff00ff
s_mov_b32 exec_hi, 0x00ff00ff
global_store_dwordx4 v59, v[64:67], s[26:27] sc1''')
    finish()

    A(f'''L_notf:
s_cmp_lt_u32 s30, 28
s_cbranch_scc1 L_norole
s_cmp_lg_u32 s28, 0
s_cbranch_scc1 L_norole
s_lshl_b32 s63, s29, 2
s_add_u32 s63, s63, s30
s_sub_u32 s63, s63, 28
s_lshl_b32 s34, s63, 6
s_add_u32 s34, s34, {WS_C}
v_lshrrev_b32 v14, 2, v0
v_and_b32 v15, 3, v0
v_lshlrev_b32 v44, 11, v14
v_lshl_add_u32 v44, v15, 4, v44
v_add_u32 v44, s34, v44''')
    for n in range(1, 6): A(f'v_add_u32 v{44+n}, {32768*n}, v44')
    A(f'''s_lshr_b32 s34, s63, 2
s_lshl_b32 s34, s34, 6
s_and_b32 s35, s63, 1
s_lshl_b32 s35, s35, 5
s_add_u32 s34, s34, s35
s_and_b32 s35, s63, 2
s_lshl_b32 s35, s35, 1
s_add_u32 s34, s34, s35
v_lshrrev_b32 v14, 4, v0
v_lshl_add_u32 v14, v15, 3, v14
v_add_u32 v14, s34, v14
v_lshlrev_b32 v51, 1, v14
v_lshlrev_b32 v50, 2, v14
v_add_u32 v50, {WS_H}, v50
v_mov_b32 v36, 0
v_mov_b32 v37, 0
v_mov_b32 v38, 0
v_mov_b32 v39, 0
v_mov_b32 v52, {WS_E}
v_mov_b32 v53, s3
s_barrier''')
    allcheck(0)
    A('s_barrier')
    if bar3: A('s_barrier')
    ST(7)
    lds = [(f'global_load_dword v40, v50, s[26:27] sc1', 40, 1)]
    lds += [(f'global_load_dwordx4 v[{16+4*n}:{19+4*n}], v{44+n}, s[26:27] sc1', 16 + 4 * n, 4) for n in range(6)]
    poll(lds, 41, init=[-1] * 6 + [0xffffff])
    ST(8)
    for i in range(4): A(f'v_add_f32 v{16+i}, v{16+i}, v{20+i}\nv_add_f32 v{24+i}, v{24+i}, v{28+i}\nv_add_f32 v{32+i}, v{32+i}, v{36+i}')
    for i in range(4): A(f'v_add_f32 v{16+i}, v{16+i}, v{24+i}')
    for i in range(4): A(f'v_add_f32 v{16+i}, v{16+i}, v{32+i}')
    A(f'''v_permlane32_swap_b32 v16, v18
v_permlane32_swap_b32 v17, v19
v_add_f32 v16, v16, v18
v_add_f32 v17, v17, v19
v_permlane16_swap_b32 v16, v17
v_add_f32 v16, v16, v17
v_add_f32_dpp v16, v16, v16 row_ror:8 {FULL}
v_add_f32_dpp v16, v16, v16 row_ror:4 {FULL}''')
    rnd(16)
    A(f'''v_add_f32 v16, v16, v40
v_cvt_pk_bf16_f32 v16, v16, v16
s_mov_b32 exec_lo, 0x000f000f
s_mov_b32 exec_hi, 0x000f000f
global_store_short v51, v16, s[22:23]
s_cmp_lg_u32 s63, 0
s_cbranch_scc1 L_rend
s_mov_b64 exec, 1
global_store_dword v52, v53, s[26:27] sc1
L_rend:''')
    if amp:
        ST(14)
        A(f'''s_memrealtime s[96:97]
s_waitcnt lgkmcnt(0)
s_sub_u32 s98, s100, s98
s_mul_i32 s98, s98, {amp[2]}
s_cmp_lg_u32 s29, {amp[3]}
s_cbranch_scc1 L_ampd
L_amp:
s_memrealtime s[100:101]
s_waitcnt lgkmcnt(0)
s_sub_u32 s100, s100, s96
s_cmp_lt_u32 s100, s98
s_cbranch_scc1 L_amp
L_ampd:''')
    finish()
    A('L_norole:\ns_barrier')
    finish()
    A('L_exit:\ns_endpgm\nL_code_end:')
    A.raw(f'''.section .rodata,"a"
.p2align 6
.amdhsa_kernel {NAME}_kernel
  .amdhsa_next_free_vgpr 256
  .amdhsa_next_free_sgpr 102
  .amdhsa_accum_offset 256
  .amdhsa_group_segment_fixed_size 0
  .amdhsa_kernarg_size 96
  .amdhsa_user_sgpr_count 2
  .amdhsa_user_sgpr_kernarg_segment_ptr 1
  .amdhsa_system_sgpr_workgroup_id_x 1
  .amdhsa_float_denorm_mode_32 3
.end_amdhsa_kernel''')
    return A.text()

if __name__ == '__main__':
    out = sys.argv[1] if len(sys.argv) > 1 else f'cdna_kernels/{NAME}.s'
    kw = eval('dict(' + (sys.argv[2] if len(sys.argv) > 2 else '') + ')')
    open(out, 'w').write(gen(**kw))

def STAMPS(al, roles, KW, VW):
    return [('start', al, KW + VW, 0), ('Q: x landed', al, [4], 1), ('Q: stored', al, [4], 2), ('K issued', al, KW, 1), ('K cnt ok', al, KW, 2),
            ('K q gathered', al, KW, 3), ('K ml lds', al, [0], 4), ('K ml gathered', al, KW, 5), ('K p written', al, KW, 6), ('V issued', al, VW, 3),
            ('V bar1', al, VW, 4), ('V pv done', al, VW, 5), ('A stored', al, [4], 15),
            ('W gathered', roles == 'W', KW, 8), ('W end', roles == 'W', [0], 15), ('F gathered', roles == 'F', KW, 8), ('F ln done', roles == 'F', KW, 9),
            ('F end', roles == 'F', KW, 15), ('R gathered', roles == 'R', [0], 8), ('R end', roles == 'R', [0], 15)]
```

```python
import sys
from asmlib import Asm

NAME = 'sequential_preLN__sliding_block_cached__swiglu_ffn__decode'
WS_QA, WS_B, WS_H, WS_C, WS_ML, WS_E, WS_ST = 0x0, 0x40000, 0x44000, 0x44800, 0x80000, 0x82000, 0x100000
EPOCH_STEP = 0x5bd1e3c7
L_P, L_OP, L_SCR, L_H, L_RED, L_ML, L_W = 0x0, 0x400, 0x1400, 0x1800, 0x1c00, 0x1e00, 0x2000
LDS_BYTES = L_W + 0x8000
SPIN = 0x40000
LOG2E = 0x3fb8aa3b
SCALE = 0x3db504f3
EPS = 0x3727c5ac
FULL = 'row_mask:0xf bank_mask:0xf'

def gen(diag=False, w_early=True, f_early=False, bar3=True, sleep=0, mlsleep=2, amp=None, vgate=True, mlatomic=True, xfirst=True, kvf='nt'):
    A = Asm()
    uid = [0]
    def lab(s):
        uid[0] += 1
        return f'L_{s}_{uid[0]}'
    def ST(n):
        if amp and n == amp[0]: A('s_memrealtime s[98:99]')
        if amp and n == amp[1]: A('s_memrealtime s[100:101]')
        if diag: A(f's_memrealtime s[96:97]\ns_waitcnt lgkmcnt(0)\nv_writelane_b32 v7, s96, {n}')
    def finish():
        if diag:
            ST(15)
            A(f'''s_mov_b64 exec, 0xffff
s_lshl_b32 s34, s2, 3
s_add_u32 s34, s34, s28
s_lshl_b32 s34, s34, 6
s_add_u32 s34, s34, {WS_ST}
v_lshl_add_u32 v1, v0, 2, s34
global_store_dword v1, v7, s[26:27]''')
        A('s_endpgm')
    def srd(d, lo, hi, n):
        A(f's_mov_b32 s{d}, s{lo}\ns_mov_b32 s{d+1}, s{hi}\ns_mov_b32 s{d+2}, {n}\ns_mov_b32 s{d+3}, 0x20000')
    def wred(op, v, t):
        for r in (8, 4, 2, 1): A(f'{op}_dpp v{v}, v{v}, v{v} row_ror:{r} {FULL}')
        for sw in (16, 32): A(f'v_mov_b32 v{t}, v{v}\nv_permlane{sw}_swap_b32 v{v}, v{t}\n{op} v{v}, v{v}, v{t}')
    def rnd(v):
        A(f'v_cvt_pk_bf16_f32 v{v}, v{v}, v{v}\nv_lshlrev_b32 v{v}, 16, v{v}')
    def layernorm(x, u, o):
        s, t, mb, dl = u + 8, u + 9, u + 10, u + 11
        for i in range(4): A(f'v_lshlrev_b32 v{u+2*i}, 16, v{x+i}\nv_and_b32 v{u+2*i+1}, 0xffff0000, v{x+i}')
        A(f'v_add_f32 v{s}, v{u}, v{u+1}\nv_add_f32 v{t}, v{u+2}, v{u+3}\nv_add_f32 v{mb}, v{u+4}, v{u+5}\nv_add_f32 v{dl}, v{u+6}, v{u+7}')
        A(f'v_add_f32 v{s}, v{s}, v{t}\nv_add_f32 v{mb}, v{mb}, v{dl}\nv_add_f32 v{s}, v{s}, v{mb}')
        wred('v_add_f32', s, t)
        A(f'v_mul_f32 v{dl}, 0x3b000000, v{s}')
        A(f'v_cvt_pk_bf16_f32 v{mb}, v{dl}, v{dl}\nv_lshlrev_b32 v{mb}, 16, v{mb}')
        for i in range(8): A(f'v_sub_f32 v{u+i}, v{u+i}, v{mb}')
        A(f'v_sub_f32 v{dl}, v{dl}, v{mb}')
        A(f'v_mul_f32 v{s}, v{u}, v{u}\nv_mul_f32 v{t}, v{u+1}, v{u+1}')
        for i in range(2, 8, 2): A(f'v_fmac_f32 v{s}, v{u+i}, v{u+i}\nv_fmac_f32 v{t}, v{u+i+1}, v{u+i+1}')
        A(f'v_add_f32 v{s}, v{s}, v{t}')
        fill = [f'v_cvt_pk_bf16_f32 v{o+i}, v{u+2*i}, v{u+2*i+1}' for i in range(4)]
        for i in range(4): fill += [f'v_lshlrev_b32 v{u+2*i}, 16, v{o+i}', f'v_and_b32 v{u+2*i+1}, 0xffff0000, v{o+i}']
        fill.append(f'v_mul_f32 v{dl}, v{dl}, v{dl}')
        for r in (8, 4, 2, 1):
            A(fill.pop(0)); A(fill.pop(0))
            A(f'v_add_f32_dpp v{s}, v{s}, v{s} row_ror:{r} {FULL}')
        for sw in (16, 32):
            A(f'v_mov_b32 v{t}, v{s}'); A(fill.pop(0)); A(fill.pop(0))
            A(f'v_permlane{sw}_swap_b32 v{s}, v{t}\nv_add_f32 v{s}, v{s}, v{t}')
        A(fill.pop(0))
        A(f'v_mul_f32 v{s}, 0x3b000000, v{s}\nv_sub_f32 v{s}, v{s}, v{dl}\nv_max_f32 v{s}, 0, v{s}')
        rnd(s)
        A(f'v_add_f32 v{s}, {EPS:#x}, v{s}'); rnd(s)
        A(f'v_sqrt_f32 v{s}, v{s}'); rnd(s)
        A(f'v_rcp_f32 v{s}, v{s}')
        for i in range(8): A(f'v_mul_f32 v{u+i}, v{u+i}, v{s}')
        for i in range(4): A(f'v_cvt_pk_bf16_f32 v{o+i}, v{u+2*i}, v{u+2*i+1}')
    def selectors(sel, t):
        A(f'''v_and_b32 v{t}, 1, v0
v_cmp_eq_u32 vcc, 1, v{t}
v_mov_b32 v{t+1}, 0x0c0c0100
v_mov_b32 v{t+2}, 0x01000c0c
v_cndmask_b32 v{t+1}, v{t+1}, v{t+2}, vcc
v_mov_b32 v{t+2}, 0x0c0c0302
v_mov_b32 v{t+3}, 0x03020c0c
v_cndmask_b32 v{t+2}, v{t+2}, v{t+3}, vcc
v_mov_b32 v{t+3}, 0x0c0c0c0c
v_bfe_u32 v{t}, v0, 1, 2''')
        for w in range(4):
            A(f'v_cmp_eq_u32 vcc, {w}, v{t}\nv_cndmask_b32 v{sel+w}, v{t+3}, v{t+1}, vcc\nv_cndmask_b32 v{sel+4+w}, v{t+3}, v{t+2}, vcc')
    def afrag(dst, src, par, sel):
        for w in range(4): A(f'v_perm_b32 v{dst+w}, v{src}, v{src}, v{sel+4*par+w}')
    def quad_combine(d0, d1):
        for r in range(4): A(f'v_permlane32_swap_b32 v{d0+r}, v{d1+r}')
        for r in range(4): A(f'v_add_f32_dpp v{d0+r}, v{d1+r}, v{d0+r} row_ror:8 {FULL}')
        for r in range(4): A(f'v_min_u32 v{d0+r}, -2, v{d0+r}')
    def poll(loads, t, hook=None, init=None):
        n = len(loads)
        for i in range(n): A(f's_mov_b64 s[{48+2*i}:{49+2*i}], {init[i] if init else -1}')
        A(f's_mov_b32 s62, {SPIN}')
        L, Lc, Ld = lab('poll'), lab('chk'), lab('done')
        def issue():
            for i, (txt, r, c) in enumerate(loads): A(f's_mov_b64 exec, s[{48+2*i}:{49+2*i}]\n{txt}')
            A('s_mov_b64 exec, -1')
        if hook:
            issue(); hook(n); A(f's_branch {Lc}')
        A(f'{L}:')
        if sleep: A(f's_sleep {sleep}')
        issue()
        A(f'{Lc}:')
        for i, (txt, r, c) in enumerate(loads):
            A(f's_waitcnt vmcnt({n-1-i})')
            if c == 4: A(f'v_max3_u32 v{t}, v{r}, v{r+1}, v{r+2}\nv_max_u32 v{t}, v{t}, v{r+3}\nv_cmp_eq_u32 s[{48+2*i}:{49+2*i}], -1, v{t}')
            else: A(f'v_cmp_eq_u32 s[{48+2*i}:{49+2*i}], -1, v{r}')
            if i == 1: A('s_or_b64 vcc, s[48:49], s[50:51]')
            elif i > 1: A(f's_or_b64 vcc, vcc, s[{48+2*i}:{49+2*i}]')
        A(f's_cbranch_scc0 {Ld}\ns_sub_u32 s62, s62, 1\ns_cbranch_scc0 {L}\n{Ld}:')
    def sum8(g):
        for i in range(4): A(f'v_add_f32 v{g+i}, v{g+i}, v{g+4+i}\nv_add_f32 v{g+8+i}, v{g+8+i}, v{g+12+i}')
        for i in range(4): A(f'v_add_f32 v{g+i}, v{g+i}, v{g+8+i}')
        A(f'v_permlane32_swap_b32 v{g}, v{g+2}\nv_permlane32_swap_b32 v{g+1}, v{g+3}')
        A(f'v_add_f32 v{g}, v{g}, v{g+2}\nv_add_f32 v{g+1}, v{g+1}, v{g+3}')

    hdr = open('cdna_kernels/' + NAME + '.s.ref').read().split('\n')
    for ln in hdr:
        if ln.startswith('; @launch'): A.raw(f'; @launch grid=(256,1,1) block=(512,1,1) lds={LDS_BYTES}'); break
        A.raw(ln)
    A.raw(f'.amdgcn_target "amdgcn-amd-amdhsa--gfx950"\n.text\n.globl {NAME}_kernel\n.p2align 8\n.type {NAME}_kernel,@function\n{NAME}_kernel:')

    if amp: ST(13)
    A(f'''s_cmp_ge_u32 s2, 256
s_cbranch_scc1 L_exit
s_load_dwordx16 s[4:19], s[0:1], 0
s_load_dwordx8 s[20:27], s[0:1], 64
v_lshrrev_b32 v1, 6, v0
v_and_b32 v0, 63, v0
v_readfirstlane_b32 s28, v1
s_and_b32 s29, s2, 7
s_lshr_b32 s30, s2, 3
s_and_b32 s31, s30, 3
s_lshl_b32 s34, s29, 2
s_add_u32 s31, s31, s34              ; head
s_lshr_b32 s32, s30, 2
v_lshrrev_b32 v3, 3, v0              ; lane >> 3
v_and_b32 v4, 7, v0
v_lshlrev_b32 v4, 4, v4              ; (lane & 7) * 16
v_lshl_add_u32 v2, v3, 8, v4
s_and_b32 s33, s30, 7
s_lshl_b32 s33, s33, 1
s_and_b32 s63, s28, 3
s_xor_b32 s33, s33, s63
s_lshl_b32 s33, s33, 11
s_lshl_b32 s34, s31, 23
s_lshl_b32 s35, s32, 17
s_add_u32 s34, s34, s35
s_add_u32 s34, s34, 0x700000
v_mov_b32 v8, -1
v_mov_b32 v9, -1
v_mov_b32 v10, -1
v_mov_b32 v11, -1
v_lshlrev_b32 v5, 4, v0              ; lane * 16''')
    if diag: A('v_mov_b32 v7, 0')
    A(f'''s_cmp_lt_u32 s28, 4
s_waitcnt lgkmcnt(0)
s_cselect_b32 s36, s6, s8
s_cselect_b32 s37, s7, s9
s_add_u32 s36, s36, s34
s_addc_u32 s37, s37, 0
s_mov_b32 s38, 0x20000
s_mov_b32 s39, 0x20000
s_load_dword s3, s[26:27], {WS_E:#x}''')
    ST(0)
    A('s_cmp_lt_u32 s28, 4\ns_cbranch_scc1 L_kwave')

    A(f'''s_lshl_b32 s34, s31, 3
s_add_u32 s34, s34, s32
s_lshl_b32 s35, s34, 10
s_add_u32 s44, s26, s35
s_addc_u32 s45, s27, 0
s_cmp_lg_u32 s28, 4
s_cbranch_scc1 L_vrest
s_setprio 3
global_store_dwordx4 v5, v[8:11], s[44:45] sc1
s_lshl_b32 s35, s2, 10
s_add_u32 s35, s35, {WS_B}
v_add_u32 v6, s35, v5
global_store_dwordx4 v6, v[8:11], s[26:27] sc1
s_lshl_b32 s35, s31, 8
s_lshl_b32 s63, s32, 3
s_add_u32 s35, s35, s63
s_add_u32 s35, s35, {WS_ML}
v_mov_b32 v6, s35
s_lshr_b32 s63, s63, 1
s_sub_u32 s35, s35, s63
v_mov_b32 v12, s35
s_mov_b64 exec, 1
global_store_dwordx2 v6, v[8:9], s[26:27] sc1
s_mov_b64 exec, -1
global_load_dwordx4 v[24:27], v5, s[4:5]
s_lshl_b32 s34, s32, 19
s_lshl_b32 s35, s31, 8
s_add_u32 s34, s34, s35
s_add_u32 s40, s10, s34
s_addc_u32 s41, s11, 0
s_mov_b32 s42, {63*8192+256}
s_mov_b32 s43, 0x20000
v_lshl_add_u32 v6, v3, 16, v4''')
    for n in range(8):
        A(f's_mov_b32 s34, {n*8192}')
        for hf in range(2): A(f'buffer_load_dwordx4 v[{64+8*n+4*hf}:{67+8*n+4*hf}], v6, s[40:43], s34 offen offset:{128*hf} nt')
    ST(7)
    A('s_barrier')
    selectors(40, 28)
    A(f'''s_lshl_b32 s34, s32, 3
v_add_lshl_u32 v6, v3, s34, 2
s_waitcnt lgkmcnt(0)
s_add_u32 s3, s3, {EPOCH_STEP:#x}
v_mov_b32 v13, s3
s_mov_b64 exec, 1
s_waitcnt vmcnt(16)
global_store_dword v12, v13, s[26:27] offset:128 sc1
s_mov_b64 exec, -1''')
    ST(1)
    layernorm(24, 28, 24)
    for i in range(4): A(f'ds_bpermute_b32 v{48+i}, v6, v{24+i}')
    A('s_waitcnt lgkmcnt(0)')
    for n in range(8):
        afrag(24 + 4 * (n & 1), 48 + n // 2, n & 1, 40)
        A(f's_waitcnt vmcnt({15-2*n})')
        for hf in range(2):
            c = f'v[{16+4*hf}:{19+4*hf}]'
            A(f'v_mfma_f32_16x16x32_bf16 {c}, v[{24+4*(n&1)}:{27+4*(n&1)}], v[{64+8*n+4*hf}:{67+8*n+4*hf}], {c if n else 0}')
    A('v_lshrrev_b32 v6, 4, v0\nv_lshl_add_u32 v6, v6, 7, v4')
    quad_combine(16, 20)
    A(f'''s_mov_b32 exec_lo, 0x00ff00ff
s_mov_b32 exec_hi, 0x00ff00ff
global_store_dwordx4 v6, v[16:19], s[44:45] sc1
s_mov_b64 exec, -1
s_setprio 0''')
    ST(2)
    A('s_branch L_vstream')
    A('L_vrest:')
    A(f'''s_cmp_lg_u32 s28, 5
s_cbranch_scc1 L_vbar
s_getpc_b64 s[40:41]
L_pc:
s_sub_u32 s40, s40, L_pc-{NAME}_kernel
s_subb_u32 s41, s41, 0
v_lshlrev_b32 v6, 7, v0
global_load_dword v15, v6, s[40:41]
v_add_u32 v6, 0x2000, v6
v_min_u32 v6, L_code_end-{NAME}_kernel-4, v6
global_load_dword v15, v6, s[40:41]
v_mov_b32 v6, {L_ML}
ds_write_b128 v6, v[8:11]
ds_write_b128 v6, v[8:11] offset:16
ds_write_b128 v6, v[8:11] offset:32
s_waitcnt lgkmcnt(0)
L_vbar:
s_barrier''')
    selectors(40, 28)
    A('L_vstream:')
    if vgate: A('s_barrier')
    for i in range(16):
        A(f's_xor_b32 s34, s33, {(4*i) << 11}')
        for hf in range(2): A(f'buffer_load_dwordx4 v[{128+8*i+4*hf}:{131+8*i+4*hf}], v2, s[36:39], s34 offen offset:{128*hf} {kvf}')
    ST(3)
    A(f'''s_and_b32 s63, s28, 3
s_lshl_b32 s34, s63, 8
v_lshl_add_u32 v6, v3, 5, s34
s_lshl_b32 s34, s63, 10
s_add_u32 s34, s34, {L_OP}
v_lshrrev_b32 v12, 5, v0
v_lshl_add_u32 v12, v12, 9, s34
v_lshl_add_u32 v12, v4, 2, v12
v_bfe_u32 v13, v0, 4, 1
v_lshl_add_u32 v12, v13, 5, v12
v_lshlrev_b32 v14, 3, v0
s_barrier''')
    ST(4)
    A(f'ds_read_b128 v[48:51], v6 offset:{L_P}\nds_read_b128 v[52:55], v6 offset:{L_P+16}\ns_waitcnt lgkmcnt(0)')
    for i in range(16): afrag(64 + 4 * i, 48 + i // 2, i & 1, 40)
    for i in range(16):
        for hf in range(2):
            if hf == 0 or i >= 12: A(f's_waitcnt vmcnt({31-2*i-hf if i >= 12 else 30-2*i})')
            c = f'v[{16+4*hf}:{19+4*hf}]'
            A(f'v_mfma_f32_16x16x32_bf16 {c}, v[{64+4*i}:{67+4*i}], v[{128+8*i+4*hf}:{131+8*i+4*hf}], {c if i else 0}')
    A(f'''s_mov_b32 exec_lo, 0x00ff00ff
s_mov_b32 exec_hi, 0xff00ff00
ds_write2_b64 v12, v[16:17], v[20:21] offset0:0 offset1:1
ds_write2_b64 v12, v[18:19], v[22:23] offset0:2 offset1:3
s_mov_b64 exec, -1
s_waitcnt lgkmcnt(0)''')
    ST(5)
    A('s_barrier\ns_cmp_lg_u32 s28, 4\ns_cbranch_scc1 L_vend')
    for n in range(4): A(f'ds_read_b128 v[{16+4*n}:{19+4*n}], v5 offset:{L_OP+1024*n}')
    A('s_waitcnt lgkmcnt(0)')
    sum8(16)
    A('v_min_u32 v16, -2, v16\nv_min_u32 v17, -2, v17')
    A('global_store_dwordx2 v14, v[16:17], s[44:45] offset:512 sc1')
    ST(6)
    if bar3: A('s_barrier')
    A('L_vend:')
    finish()

    A('L_kwave:')
    A('s_setprio 2\ns_barrier')
    for i in range(16):
        A(f's_xor_b32 s34, s33, {(4*i) << 11}')
        for hf in range(2): A(f'buffer_load_dwordx4 v[{128+8*i+4*hf}:{131+8*i+4*hf}], v2, s[36:39], s34 offen offset:{128*hf} {kvf}')
        if i == 13: A(f's_lshl_b32 s35, s31, 8\ns_add_u32 s35, s35, {WS_ML+128}\ns_load_dwordx8 s[64:71], s[26:27], s35 glc')
    ST(1)
    L, Ld = lab('cnt'), lab('cntd')
    A(f's_mov_b32 s62, {SPIN}\ns_waitcnt lgkmcnt(0)\ns_add_u32 s72, s3, {EPOCH_STEP:#x}\ns_mov_b32 s73, s72\n{L}:')
    for i in range(4): A(f's_xor_b64 s[{64+2*i}:{65+2*i}], s[{64+2*i}:{65+2*i}], s[72:73]')
    A(f'''s_or_b64 s[64:65], s[64:65], s[66:67]
s_or_b64 s[68:69], s[68:69], s[70:71]
s_or_b64 s[64:65], s[64:65], s[68:69]
s_cbranch_scc0 {Ld}
s_sleep 4
s_load_dwordx8 s[64:71], s[26:27], s35 glc
s_sub_u32 s62, s62, 1
s_waitcnt lgkmcnt(0)
s_cbranch_scc0 {L}
{Ld}:
s_mov_b32 s3, s72''')
    ST(2)
    A(f'''s_lshl_b32 s34, s31, 13
s_add_u32 s44, s26, s34
s_addc_u32 s45, s27, 0
v_lshrrev_b32 v12, 5, v0             ; lane >> 5
v_and_b32 v13, 31, v0
v_lshlrev_b32 v13, 4, v13            ; (lane & 31) * 16
v_lshl_add_u32 v6, v12, 12, v13''')
    poll([(f'global_load_dwordx4 v[{16+4*n}:{19+4*n}], v6, s[44:45] offset:{1024*n} sc1', 16 + 4 * n, 4) for n in range(4)], 14, hook=(lambda n: A('s_barrier')) if vgate else None)
    ST(3)
    sum8(16)
    A(f'''s_lshl_b32 s46, s28, 8
s_add_u32 s46, s46, {L_SCR}
v_cvt_pk_bf16_f32 v16, v16, v17
v_bfe_u32 v14, v0, 4, 1
v_lshl_add_u32 v14, v14, 7, v4
v_bfe_u32 v15, v0, 3, 1
v_lshl_add_u32 v14, v15, 3, v14
v_lshl_add_u32 v14, v12, 2, v14
v_add_u32 v14, s46, v14
v_add_u32 v15, s46, v4
ds_write_b32 v14, v16
s_waitcnt lgkmcnt(0)
ds_read_b128 v[16:19], v15
ds_read_b128 v[20:23], v15 offset:128
s_waitcnt lgkmcnt(0)''')
    for i0 in range(0, 16, 4):
        for e in range(8):
            for i in range(i0, i0 + 4):
                A(f'v_dot2_f32_bf16 v{32+i}, v{128+8*i+e}, v{16+e}, {"v%d" % (32+i) if e else 0}')
    for i in range(8):
        A(f'v_add_f32_dpp v{32+i}, v{32+i}, v{32+i} row_half_mirror row_mask:0xf bank_mask:0x5')
    for i in range(8):
        A(f'v_add_f32_dpp v{32+i}, v{40+i}, v{40+i} row_half_mirror row_mask:0xf bank_mask:0xa')
    A('s_mov_b32 vcc_lo, 0xcccccccc\ns_mov_b32 vcc_hi, 0xcccccccc')
    for i in range(4): A(f'v_cndmask_b32 v{40+i}, v{36+i}, v{32+i}, vcc\nv_cndmask_b32 v{32+i}, v{32+i}, v{36+i}, vcc')
    for i in range(4): A(f'v_add_f32_dpp v{32+i}, v{40+i}, v{32+i} quad_perm:[2,3,0,1] {FULL}')
    A('s_mov_b32 vcc_lo, 0xaaaaaaaa\ns_mov_b32 vcc_hi, 0xaaaaaaaa')
    for i in range(2): A(f'v_cndmask_b32 v{40+i}, v{34+i}, v{32+i}, vcc\nv_cndmask_b32 v{32+i}, v{32+i}, v{34+i}, vcc')
    for i in range(2): A(f'v_add_f32_dpp v{32+i}, v{40+i}, v{32+i} quad_perm:[1,0,3,2] {FULL}')
    A(f'''v_cvt_pk_bf16_f32 v34, v32, v33
v_lshlrev_b32 v32, 16, v34
v_and_b32 v33, 0xffff0000, v34
v_mul_f32 v32, {SCALE:#x}, v32
v_mul_f32 v33, {SCALE:#x}, v33
v_cvt_pk_bf16_f32 v34, v32, v33
v_lshlrev_b32 v32, 16, v34
v_and_b32 v33, 0xffff0000, v34       ; v32, v33 = scores
v_max_f32 v34, v32, v33''')
    wred('v_max_f32', 34, 36)
    A(f'''v_sub_f32 v35, v32, v34
v_sub_f32 v36, v33, v34
v_mul_f32 v35, {LOG2E:#x}, v35
v_mul_f32 v36, {LOG2E:#x}, v36
v_exp_f32 v35, v35
v_exp_f32 v36, v36
v_add_f32 v35, v35, v36''')
    wred('v_add_f32', 35, 36)
    ST(11)
    L, Ld = lab('ml'), lab('mld')
    A(f'''v_min_u32 v34, -2, v34
v_min_u32 v35, -2, v35
s_lshl_b32 s34, s28, 3
v_mov_b32 v36, {L_ML}
v_add_u32 v37, s34, v36
ds_write_b64 v37, v[34:35]
s_mov_b32 s62, {SPIN}
s_cmp_lg_u32 s28, 0
s_cbranch_scc1 L_mlwait
{L}:
ds_read_b128 v[40:43], v36
ds_read_b128 v[44:47], v36 offset:16
s_waitcnt lgkmcnt(0)
v_max3_u32 v37, v40, v41, v42
v_max3_u32 v37, v37, v43, v44
v_max3_u32 v37, v37, v45, v46
v_max_u32 v37, v37, v47
v_cmp_eq_u32 vcc, -1, v37
s_cbranch_vccz {Ld}
s_sub_u32 s62, s62, 1
s_cbranch_scc0 {L}
{Ld}:''')
    ST(4)
    A(f'''s_lshl_b32 s35, s31, 8
s_add_u32 s35, s35, {WS_ML}
v_max3_f32 v34, v40, v42, v44
v_max_f32 v34, v34, v46''')
    for w in range(4): A(f'v_sub_f32 v{40+2*w}, v{40+2*w}, v34')
    for w in range(4): A(f'v_mul_f32 v{40+2*w}, {LOG2E:#x}, v{40+2*w}')
    for w in range(4): A(f'v_exp_f32 v{40+2*w}, v{40+2*w}')
    A('v_mul_f32 v35, v40, v41')
    for w in range(1, 4): A(f'v_fmac_f32 v35, v{40+2*w}, v{41+2*w}')
    A(f'''s_lshl_b32 s34, s32, 3
s_add_u32 s34, s34, s35
v_mov_b32 v37, s34
v_min_u32 v34, -2, v34
v_min_u32 v35, -2, v35''')
    if mlatomic: A('v_readfirstlane_b32 s80, v34\nv_readfirstlane_b32 s81, v35\ns_nop 3\ns_atomic_swap_x2 s[80:81], s[26:27], s34')
    else: A('s_mov_b64 exec, 1\nglobal_store_dwordx2 v37, v[34:35], s[26:27] sc1\ns_mov_b64 exec, -1')
    L, Ld = lab('mg'), lab('mgd')
    A(f's_mov_b32 s62, {SPIN}\n{L}:\ns_sleep {mlsleep}\ns_load_dwordx16 s[64:79], s[26:27], s35 glc\ns_waitcnt lgkmcnt(0)\ns_max_u32 s34, s64, s65')
    for i in range(2, 16): A(f's_max_u32 s34, s34, s{64+i}')
    A(f's_cmp_lg_u32 s34, -1\ns_cbranch_scc1 {Ld}\ns_sub_u32 s62, s62, 1\ns_cbranch_scc0 {L}\n{Ld}:')
    A('v_mov_b32 v34, s64')
    for c in range(1, 8): A(f'v_max_f32 v34, s{64+2*c}, v34')
    for c in range(8): A(f'v_sub_f32 v{40+c}, s{64+2*c}, v34')
    for c in range(8): A(f'v_mul_f32 v{40+c}, {LOG2E:#x}, v{40+c}')
    for c in range(8): A(f'v_exp_f32 v{40+c}, v{40+c}')
    A('v_mul_f32 v35, s65, v40')
    for c in range(1, 8): A(f'v_fmac_f32 v35, s{65+2*c}, v{40+c}')
    A(f'''v_rcp_f32 v35, v35
v_min_u32 v34, -2, v34
v_min_u32 v35, -2, v35
ds_write_b64 v36, v[34:35] offset:32
s_branch L_mlok
L_mlwait:
s_sleep 1
ds_read_b64 v[34:35], v36 offset:32
s_waitcnt lgkmcnt(0)
v_max_u32 v37, v34, v35
v_cmp_eq_u32 vcc, -1, v37
s_cbranch_vccz L_mlok
s_sub_u32 s62, s62, 1
s_cbranch_scc0 L_mlwait
L_mlok:''')
    ST(5)
    A(f'''v_sub_f32 v32, v32, v34
v_sub_f32 v33, v33, v34
v_mul_f32 v32, {LOG2E:#x}, v32
v_mul_f32 v33, {LOG2E:#x}, v33
v_exp_f32 v32, v32
v_exp_f32 v33, v33
s_lshl_b32 s34, s28, 8
v_lshl_add_u32 v36, v0, 2, s34
v_mul_f32 v32, v32, v35
v_mul_f32 v33, v33, v35
v_cvt_pk_bf16_f32 v32, v32, v33
ds_write_b32 v36, v32 offset:{L_P}
v_lshrrev_b32 v60, 1, v0
v_lshlrev_b32 v60, 8, v60
v_and_b32 v61, 1, v0
v_lshl_add_u32 v60, v61, 4, v60
v_add_u32 v60, {WS_ML+128}, v60
global_load_dwordx4 v[96:99], v60, s[26:27] sc1
s_waitcnt lgkmcnt(0)''')
    def allcheck(younger):
        L, Ld = lab('all'), lab('alld')
        A(f's_mov_b32 s62, {SPIN}\ns_waitcnt vmcnt({younger})\n{L}:')
        for i in range(4): A(f'v_xor_b32 v{96+i}, s3, v{96+i}')
        A(f'''v_or3_b32 v96, v96, v97, v98
v_or_b32 v96, v96, v99
v_cmp_ne_u32 vcc, 0, v96
s_cbranch_vccz {Ld}
global_load_dwordx4 v[96:99], v60, s[26:27] sc1
s_sub_u32 s62, s62, 1
s_waitcnt vmcnt(0)
s_cbranch_scc0 {L}
{Ld}:''')
    ST(6)
    A(f'''s_lshl_b32 s47, s28, 13
s_add_u32 s47, s47, {L_W}
s_cmp_ge_u32 s30, 16
s_cbranch_scc1 L_notw''')
    def bars(early, loads, nloads):
        A('s_barrier')
        if early: loads()
        allcheck(nloads if early else 0)
        A('s_barrier')
        ST(7)
        if not early:
            if bar3: A('s_barrier')
            loads()

    A(f'''s_lshl_b32 s34, s29, 2
s_add_u32 s34, s34, s28
s_lshl_b32 s35, s34, 13
s_add_u32 s35, s35, 512
s_add_u32 s44, s26, s35
s_addc_u32 s45, s27, 0
s_lshl_b32 s34, s34, 17
s_lshl_b32 s35, s30, 6
s_add_u32 s34, s34, s35
s_add_u32 s40, s12, s34
s_addc_u32 s41, s13, 0
s_mov_b32 s42, {127*1024+64}
s_mov_b32 s43, 0x20000
v_lshrrev_b32 v14, 4, v0             ; g
v_bfe_u32 v15, v0, 2, 2
v_lshl_add_u32 v15, v14, 3, v15
v_and_b32 v32, 1, v14
v_lshlrev_b32 v33, 1, v32
v_and_b32 v34, 3, v0
v_xor_b32 v33, v33, v34
v_lshlrev_b32 v33, 4, v33
v_lshl_add_u32 v15, v15, 10, v33
v_lshrrev_b32 v33, 2, v0
v_lshlrev_b32 v33, 6, v33
v_lshl_add_u32 v33, v34, 3, v33
v_lshl_add_u32 v33, v32, 5, v33
v_add_u32 v33, s47, v33
v_xor_b32 v34, 32, v33
v_lshrrev_b32 v35, 1, v13
v_lshl_add_u32 v35, v12, 2, v35
v_add_u32 v35, s46, v35
v_lshl_add_u32 v36, v14, 4, s46
s_lshl_b32 s34, s28, 2
s_add_u32 s34, s34, {L_RED}
v_add_u32 v37, s34, v13
s_lshl_b32 s34, s29, 11
s_lshl_b32 s35, s30, 7
s_add_u32 s34, s34, s35
s_add_u32 s34, s34, {WS_B}
v_lshl_add_u32 v38, v0, 2, s34''')
    def wloads():
        for n in range(8):
            A(f's_add_u32 m0, s47, {1024*n}\ns_mov_b32 s34, {(32*(n>>1)+4*(n&1))*1024}')
            A('buffer_load_dwordx4 v15, s[40:43], s34 offen nt lds')
    bars(w_early, wloads, 8)
    def whook(n):
        A(f's_waitcnt vmcnt({n})')
        ST(10)
        for t in range(4):
            for cb in range(2):
                for hf in range(2):
                    r = 128 + 8 * t + 4 * cb + 2 * hf
                    A(f'ds_read_b64_tr_b16 v[{r}:{r+1}], v{33+cb} offset:{1024*(2*t+hf)}')
    poll([(f'global_load_dwordx4 v[{16+4*n}:{19+4*n}], v6, s[44:45] offset:{1024*n} sc1', 16 + 4 * n, 4) for n in range(4)], 39, hook=whook)
    ST(8)
    sum8(16)
    A('v_cvt_pk_bf16_f32 v16, v16, v17\nds_write_b32 v35, v16\ns_waitcnt lgkmcnt(0)')
    for t in range(4): A(f'ds_read_b128 v[{16+4*t}:{19+4*t}], v36 offset:{64*t}')
    A('s_mov_b32 vcc_lo, 0xffff0000\ns_mov_b32 vcc_hi, 0')
    for t in range(4):
        A(f's_waitcnt lgkmcnt({3-t})')
        for cb in range(2):
            c = f'v[{40+4*cb}:{43+4*cb}]'
            A(f'v_mfma_f32_16x16x32_bf16 {c}, v[{16+4*t}:{19+4*t}], v[{128+8*t+4*cb}:{131+8*t+4*cb}], {c if t else 0}')
    A(f'''v_cndmask_b32 v40, v40, v44, vcc
s_mov_b32 exec_hi, 0
ds_write_b32 v37, v40
s_waitcnt lgkmcnt(0)
s_barrier
s_cmp_lg_u32 s28, 0
s_cbranch_scc1 L_wend
ds_read_b128 v[16:19], v37
s_waitcnt lgkmcnt(0)
v_add_f32 v16, v16, v17
v_add_f32 v18, v18, v19
v_add_f32 v16, v16, v18
v_min_u32 v16, -2, v16
global_store_dword v38, v16, s[26:27] sc1
L_wend:''')
    finish()

    A(f'''L_notw:
s_cmp_ge_u32 s30, 27
s_cbranch_scc1 L_notf
s_mul_i32 s63, s29, 11
s_add_u32 s63, s63, s30
s_sub_u32 s63, s63, 16
s_cmp_ge_u32 s63, 86
s_cbranch_scc1 L_norole
s_mul_i32 s34, s28, {128*2752}
s_lshl_b32 s35, s63, 5
s_add_u32 s34, s34, s35
s_add_u32 s36, s16, s34
s_addc_u32 s37, s17, 0
s_mov_b32 s38, {127*2752+32}
s_mov_b32 s39, 0x20000
s_add_u32 s40, s18, s34
s_addc_u32 s41, s19, 0
s_mov_b32 s42, {127*2752+32}
s_mov_b32 s43, 0x20000
s_lshl_b32 s34, s63, 14
s_lshl_b32 s35, s28, 8
s_add_u32 s34, s34, s35
s_add_u32 s20, s20, s34
s_addc_u32 s21, s21, 0
s_add_u32 s4, s4, s35
s_addc_u32 s5, s5, 0
s_lshl_b32 s35, s28, 9
s_add_u32 s34, s35, {WS_B+4096}
s_add_u32 s44, s26, s34
s_addc_u32 s45, s27, 0
v_lshl_add_u32 v6, v12, 13, v13
v_bfe_u32 v14, v0, 3, 2
v_lshlrev_b32 v14, 3, v14
v_lshl_add_u32 v14, v12, 2, v14
v_bfe_u32 v15, v0, 1, 2
v_add_u32 v14, v14, v15
v_mul_u32_u24 v14, 2752, v14
v_and_b32 v15, 1, v0
v_lshl_add_u32 v15, v15, 4, v14
v_lshl_add_u32 v33, v0, 3, s47
v_lshl_add_u32 v34, v3, 10, v4
v_add_u32 v35, 0x2000, v34           ; rows 8..15
v_lshrrev_b32 v36, 1, v13
v_lshl_add_u32 v36, v12, 2, v36
s_add_u32 s34, s35, {WS_H}
v_lshl_add_u32 v39, v36, 1, s34
s_lshl_b32 s34, s28, 8
s_add_u32 s34, s34, {L_H}
v_add_u32 v37, s34, v36
v_and_b32 v38, 15, v0
v_lshrrev_b32 v14, 4, v0
v_lshlrev_b32 v56, 6, v38
v_lshl_add_u32 v56, v14, 4, v56
s_lshl_b32 s34, s28, 2
s_add_u32 s34, s34, {L_RED}
v_lshl_add_u32 v57, v38, 5, s34
v_bfe_u32 v58, v0, 2, 1
v_lshl_add_u32 v58, v58, 3, v3
v_lshlrev_b32 v58, 5, v58
s_lshl_b32 s34, s63, 11
s_add_u32 s34, s34, s35
s_add_u32 s34, s34, {WS_C}
v_lshl_add_u32 v59, v14, 7, v4
v_add_u32 v59, s34, v59
s_lshl_b32 s34, s28, 4
s_mov_b64 s[60:61], 0xffff
s_lshl_b64 s[60:61], s[60:61], s34''')
    selectors(48, 40)
    def floads():
        A('global_load_dword v32, v36, s[4:5]')
        for m in range(2):
            for t in range(4):
                A(f's_add_u32 m0, s47, {4096*m+1024*t}\ns_mov_b32 s34, {32*t*2752}')
                A(f'buffer_load_dwordx4 v15, s[{36+4*m}:{39+4*m}], s34 offen nt lds')
        for a in range(2):
            for hf in range(2): A(f'global_load_dwordx4 v[{160+8*a+4*hf}:{163+8*a+4*hf}], v{34+a}, s[20:21] offset:{128*hf} nt')
    bars(f_early, floads, 13)
    def fhook(n):
        A(f's_waitcnt vmcnt({n})')
        ST(10)
        for m in range(2):
            for t in range(4):
                for hf in range(2):
                    r = 128 + 16 * m + 4 * t + 2 * hf
                    A(f'ds_read_b64_tr_b16 v[{r}:{r+1}], v33 offset:{4096*m+1024*t+512*hf}')
        A('v_and_b32 v41, 0xffff0000, v32\nv_lshlrev_b32 v40, 16, v32')
    poll([(f'global_load_dwordx4 v[{16+4*n}:{19+4*n}], v6, s[44:45] offset:{2048*n-4096} sc1', 16 + 4 * n, 4) for n in range(4)], 42, hook=fhook)
    ST(8)
    sum8(16)
    A(f'''v_cvt_pk_bf16_f32 v18, v16, v17
v_lshlrev_b32 v16, 16, v18
v_and_b32 v17, 0xffff0000, v18
v_add_f32 v16, v16, v40
v_add_f32 v17, v17, v41
v_cvt_pk_bf16_f32 v18, v16, v17
ds_write_b32 v37, v18
s_cmp_lg_u32 s63, 0
s_cbranch_scc1 L_noh
v_lshlrev_b32 v42, 16, v18
v_and_b32 v43, 0xffff0000, v18
global_store_dwordx2 v39, v[42:43], s[26:27] sc1
L_noh:
s_waitcnt lgkmcnt(0)
s_barrier
ds_read_b128 v[16:19], v56 offset:{L_H}
s_waitcnt lgkmcnt(0)''')
    layernorm(16, 20, 16)
    ST(9)
    for t in range(4):
        for m in range(2):
            A(f'v_mfma_f32_16x16x32_bf16 v[{64+16*m+4*t}:{67+16*m+4*t}], v[16:19], v[{128+16*m+4*t}:{131+16*m+4*t}], 0')
    A(f'''v_add_f32 v64, v64, v69
v_add_f32 v80, v80, v85
v_add_f32 v64, v64, v74
v_add_f32 v80, v80, v90
v_add_f32 v64, v64, v79
v_add_f32 v80, v80, v95
s_mov_b64 exec, s[60:61]
ds_write2_b32 v57, v64, v80 offset0:0 offset1:4
s_mov_b64 exec, -1
s_waitcnt lgkmcnt(0)
s_barrier
ds_read_b128 v[16:19], v58 offset:{L_RED}
ds_read_b128 v[20:23], v58 offset:{L_RED+16}
s_waitcnt lgkmcnt(1)
v_add_f32 v16, v16, v17
v_add_f32 v18, v18, v19
v_add_f32 v16, v16, v18
s_waitcnt lgkmcnt(0)
v_add_f32 v20, v20, v21
v_add_f32 v22, v22, v23
v_add_f32 v20, v20, v22
v_cvt_pk_bf16_f32 v20, v16, v20
v_lshlrev_b32 v16, 16, v20
v_mul_f32 v17, {LOG2E ^ 0x80000000:#x}, v16
v_exp_f32 v17, v17
v_and_b32 v20, 0xffff0000, v20
v_add_f32 v17, 1.0, v17
v_rcp_f32 v17, v17
v_mul_f32 v16, v16, v17''')
    rnd(16)
    A(f'''v_mul_f32 v16, v16, v20
v_mov_b32 v17, v16
v_mov_b32_dpp v17, v16 row_half_mirror row_mask:0xf bank_mask:0x5
v_mov_b32_dpp v16, v16 row_half_mirror row_mask:0xf bank_mask:0xa
v_cvt_pk_bf16_f32 v16, v16, v17''')
    for a in range(2): afrag(20 + 4 * a, 16, a, 48)
    for a in range(2):
        for hf in range(2):
            c = f'v[{64+4*hf}:{67+4*hf}]'
            A(f'v_mfma_f32_16x16x32_bf16 {c}, v[{20+4*a}:{23+4*a}], v[{160+8*a+4*hf}:{163+8*a+4*hf}], {c if a else 0}')
    quad_combine(64, 68)
    A(f'''s_mov_b32 exec_lo, 0x00ff00ff
s_mov_b32 exec_hi, 0x00ff00ff
global_store_dwordx4 v59, v[64:67], s[26:27] sc1''')
    finish()

    A(f'''L_notf:
s_cmp_lt_u32 s30, 28
s_cbranch_scc1 L_norole
s_cmp_lg_u32 s28, 0
s_cbranch_scc1 L_norole
s_lshl_b32 s63, s29, 2
s_add_u32 s63, s63, s30
s_sub_u32 s63, s63, 28
s_lshl_b32 s34, s63, 6
s_add_u32 s34, s34, {WS_C}
v_lshrrev_b32 v14, 2, v0
v_and_b32 v15, 3, v0
v_lshlrev_b32 v44, 11, v14
v_lshl_add_u32 v44, v15, 4, v44
v_add_u32 v44, s34, v44''')
    for n in range(1, 6): A(f'v_add_u32 v{44+n}, {32768*n}, v44')
    A(f'''s_lshr_b32 s34, s63, 2
s_lshl_b32 s34, s34, 6
s_and_b32 s35, s63, 1
s_lshl_b32 s35, s35, 5
s_add_u32 s34, s34, s35
s_and_b32 s35, s63, 2
s_lshl_b32 s35, s35, 1
s_add_u32 s34, s34, s35
v_lshrrev_b32 v14, 4, v0
v_lshl_add_u32 v14, v15, 3, v14
v_add_u32 v14, s34, v14
v_lshlrev_b32 v51, 1, v14
v_lshlrev_b32 v50, 2, v14
v_add_u32 v50, {WS_H}, v50
v_mov_b32 v36, 0
v_mov_b32 v37, 0
v_mov_b32 v38, 0
v_mov_b32 v39, 0
v_mov_b32 v52, {WS_E}
v_mov_b32 v53, s3
s_barrier''')
    allcheck(0)
    A('s_barrier')
    if bar3: A('s_barrier')
    ST(7)
    lds = [(f'global_load_dword v40, v50, s[26:27] sc1', 40, 1)]
    lds += [(f'global_load_dwordx4 v[{16+4*n}:{19+4*n}], v{44+n}, s[26:27] sc1', 16 + 4 * n, 4) for n in range(6)]
    poll(lds, 41, init=[-1] * 6 + [0xffffff])
    ST(8)
    for i in range(4): A(f'v_add_f32 v{16+i}, v{16+i}, v{20+i}\nv_add_f32 v{24+i}, v{24+i}, v{28+i}\nv_add_f32 v{32+i}, v{32+i}, v{36+i}')
    for i in range(4): A(f'v_add_f32 v{16+i}, v{16+i}, v{24+i}')
    for i in range(4): A(f'v_add_f32 v{16+i}, v{16+i}, v{32+i}')
    A(f'''v_permlane32_swap_b32 v16, v18
v_permlane32_swap_b32 v17, v19
v_add_f32 v16, v16, v18
v_add_f32 v17, v17, v19
v_permlane16_swap_b32 v16, v17
v_add_f32 v16, v16, v17
v_add_f32_dpp v16, v16, v16 row_ror:8 {FULL}
v_add_f32_dpp v16, v16, v16 row_ror:4 {FULL}''')
    rnd(16)
    A(f'''v_add_f32 v16, v16, v40
v_cvt_pk_bf16_f32 v16, v16, v16
s_mov_b32 exec_lo, 0x000f000f
s_mov_b32 exec_hi, 0x000f000f
global_store_short v51, v16, s[22:23]
s_cmp_lg_u32 s63, 0
s_cbranch_scc1 L_rend
s_mov_b64 exec, 1
global_store_dword v52, v53, s[26:27] sc1
L_rend:''')
    if amp:
        ST(14)
        A(f'''s_memrealtime s[96:97]
s_waitcnt lgkmcnt(0)
s_sub_u32 s98, s100, s98
s_mul_i32 s98, s98, {amp[2]}
s_cmp_lg_u32 s29, {amp[3] if amp[3] >= 0 else 's29'}
s_cbranch_scc1 L_ampd
L_amp:
s_memrealtime s[100:101]
s_waitcnt lgkmcnt(0)
s_sub_u32 s100, s100, s96
s_cmp_lt_u32 s100, s98
s_cbranch_scc1 L_amp
L_ampd:''')
    finish()
    A('L_norole:\ns_barrier')
    finish()
    A('L_exit:\ns_endpgm\nL_code_end:')
    A.raw(f'''.section .rodata,"a"
.p2align 6
.amdhsa_kernel {NAME}_kernel
  .amdhsa_next_free_vgpr 256
  .amdhsa_next_free_sgpr 102
  .amdhsa_accum_offset 256
  .amdhsa_group_segment_fixed_size 0
  .amdhsa_kernarg_size 96
  .amdhsa_user_sgpr_count 2
  .amdhsa_user_sgpr_kernarg_segment_ptr 1
  .amdhsa_system_sgpr_workgroup_id_x 1
  .amdhsa_float_denorm_mode_32 3
.end_amdhsa_kernel''')
    return A.text()

if __name__ == '__main__':
    out = sys.argv[1] if len(sys.argv) > 1 else f'cdna_kernels/{NAME}.s'
    kw = eval('dict(' + (sys.argv[2] if len(sys.argv) > 2 else '') + ')')
    open(out, 'w').write(gen(**kw))

def STAMPS(al, roles, KW, VW):
    return [('start', al, KW + VW, 0), ('Q: issued', al, [4], 7), ('Q: x landed', al, [4], 1), ('Q: stored', al, [4], 2), ('K issued', al, KW, 1), ('K cnt ok', al, KW, 2),
            ('K q gathered', al, KW, 3), ('K qk done', al, KW, 11), ('K ml lds', al, [0], 4), ('K ml gathered', al, KW, 5), ('K p written', al, KW, 6), ('V issued', al, VW, 3),
            ('V bar1', al, VW, 4), ('V pv done', al, VW, 5), ('A stored', al, [4], 6), ('K bar2', al, KW, 7), ('W wts landed', roles == 'W', KW, 10), ('F wts landed', roles == 'F', KW, 10),
            ('W gathered', roles == 'W', KW, 8), ('W end', roles == 'W', [0], 15), ('F gathered', roles == 'F', KW, 8), ('F ln done', roles == 'F', KW, 9),
            ('F end', roles == 'F', KW, 15), ('R gathered', roles == 'R', [0], 8), ('R end', roles == 'R', [0], 15)]
```

```python
import sys
from asmlib import Asm

NAME = 'sequential_preLN__sliding_block_cached__swiglu_ffn__decode'
WS_QA, WS_B, WS_H, WS_C, WS_ML, WS_E, WS_ST = 0x0, 0x40000, 0x44000, 0x44800, 0x78000, 0x7c000, 0x100000
EPOCH_STEP = 0x5bd1e3c7
L_P, L_OP, L_SCR, L_H, L_RED, L_ML, L_Q, L_W = 0x0, 0x400, 0x1400, 0x1800, 0x1c00, 0x1e00, 0x1f00, 0x2000
LDS_BYTES = L_W + 0x8000
SPIN = 0x40000
LOG2E = 0x3fb8aa3b
SCALE = 0x3db504f3
EPS = 0x3727c5ac
FULL = 'row_mask:0xf bank_mask:0xf'
nl = '\n'

def gen(diag=False, span=False, amp=None, mlsleep=2, kvf='nt', kpre=3, twhen=(1, 1), tf='', wf='', pf0=128, npf=3,
        thr=8, gow=4, qpos=24, depth=2, dearly=True, thrv=None, notail=False, noml=False, noq=False, tailtest=0, psleep=0, warm=False, nosr=0):
    A = Asm()
    cold = []
    uid = [0]
    def lab(s):
        uid[0] += 1
        return f'L_{s}_{uid[0]}'
    def ST(n):
        if amp and n == amp[0]: A('s_memrealtime s[98:99]')
        if amp and n == amp[1]: A('s_memrealtime s[100:101]')
        if diag: A(f's_memrealtime s[96:97]\ns_waitcnt lgkmcnt(0)\nv_writelane_b32 v7, s96, {n}')
    def flush_cold():
        for f in cold: f()
        cold.clear()
    def finish(last=False):
        if diag or (span and last):
            A(f'''s_memrealtime s[96:97]
s_waitcnt lgkmcnt(0)
v_writelane_b32 v7, s96, 15
v_writelane_b32 v7, s98, 0
s_mov_b64 exec, 0xffff
s_lshl_b32 s34, s2, 3
s_add_u32 s34, s34, s28
s_lshl_b32 s34, s34, 6
s_add_u32 s34, s34, {WS_ST}
v_lshl_add_u32 v1, v0, 2, s34
global_store_dword v1, v7, s[26:27]''')
        A('s_endpgm')
        flush_cold()
    def wred(op, v, t):
        for r in (8, 4, 2, 1): A(f'{op}_dpp v{v}, v{v}, v{v} row_ror:{r} {FULL}')
        for sw in (16, 32): A(f'v_mov_b32 v{t}, v{v}\nv_permlane{sw}_swap_b32 v{v}, v{t}\n{op} v{v}, v{v}, v{t}')
    def rnd(v):
        A(f'v_cvt_pk_bf16_f32 v{v}, v{v}, v{v}\nv_lshlrev_b32 v{v}, 16, v{v}')
    def layernorm(x, u, o):
        s, t, mb, dl = u + 8, u + 9, u + 10, u + 11
        for i in range(4): A(f'v_lshlrev_b32 v{u+2*i}, 16, v{x+i}\nv_and_b32 v{u+2*i+1}, 0xffff0000, v{x+i}')
        A(f'v_add_f32 v{s}, v{u}, v{u+1}\nv_add_f32 v{t}, v{u+2}, v{u+3}\nv_add_f32 v{mb}, v{u+4}, v{u+5}\nv_add_f32 v{dl}, v{u+6}, v{u+7}')
        A(f'v_add_f32 v{s}, v{s}, v{t}\nv_add_f32 v{mb}, v{mb}, v{dl}\nv_add_f32 v{s}, v{s}, v{mb}')
        wred('v_add_f32', s, t)
        A(f'v_mul_f32 v{dl}, 0x3b000000, v{s}')
        A(f'v_cvt_pk_bf16_f32 v{mb}, v{dl}, v{dl}\nv_lshlrev_b32 v{mb}, 16, v{mb}')
        for i in range(8): A(f'v_sub_f32 v{u+i}, v{u+i}, v{mb}')
        A(f'v_sub_f32 v{dl}, v{dl}, v{mb}')
        A(f'v_mul_f32 v{s}, v{u}, v{u}\nv_mul_f32 v{t}, v{u+1}, v{u+1}')
        for i in range(2, 8, 2): A(f'v_fmac_f32 v{s}, v{u+i}, v{u+i}\nv_fmac_f32 v{t}, v{u+i+1}, v{u+i+1}')
        A(f'v_add_f32 v{s}, v{s}, v{t}')
        fill = [f'v_cvt_pk_bf16_f32 v{o+i}, v{u+2*i}, v{u+2*i+1}' for i in range(4)]
        for i in range(4): fill += [f'v_lshlrev_b32 v{u+2*i}, 16, v{o+i}', f'v_and_b32 v{u+2*i+1}, 0xffff0000, v{o+i}']
        fill.append(f'v_mul_f32 v{dl}, v{dl}, v{dl}')
        for r in (8, 4, 2, 1):
            A(fill.pop(0)); A(fill.pop(0))
            A(f'v_add_f32_dpp v{s}, v{s}, v{s} row_ror:{r} {FULL}')
        for sw in (16, 32):
            A(f'v_mov_b32 v{t}, v{s}'); A(fill.pop(0)); A(fill.pop(0))
            A(f'v_permlane{sw}_swap_b32 v{s}, v{t}\nv_add_f32 v{s}, v{s}, v{t}')
        A(fill.pop(0))
        A(f'v_mul_f32 v{s}, 0x3b000000, v{s}\nv_sub_f32 v{s}, v{s}, v{dl}\nv_max_f32 v{s}, 0, v{s}')
        rnd(s)
        A(f'v_add_f32 v{s}, {EPS:#x}, v{s}'); rnd(s)
        A(f'v_sqrt_f32 v{s}, v{s}'); rnd(s)
        A(f'v_rcp_f32 v{s}, v{s}')
        for i in range(8): A(f'v_mul_f32 v{u+i}, v{u+i}, v{s}')
        for i in range(4): A(f'v_cvt_pk_bf16_f32 v{o+i}, v{u+2*i}, v{u+2*i+1}')
    def selectors(sel, t):
        A(f'''v_and_b32 v{t}, 1, v0
v_cmp_eq_u32 vcc, 1, v{t}
v_mov_b32 v{t+1}, 0x0c0c0100
v_mov_b32 v{t+2}, 0x01000c0c
v_cndmask_b32 v{t+1}, v{t+1}, v{t+2}, vcc
v_mov_b32 v{t+2}, 0x0c0c0302
v_mov_b32 v{t+3}, 0x03020c0c
v_cndmask_b32 v{t+2}, v{t+2}, v{t+3}, vcc
v_mov_b32 v{t+3}, 0x0c0c0c0c
v_bfe_u32 v{t}, v0, 1, 2''')
        for w in range(4):
            A(f'v_cmp_eq_u32 vcc, {w}, v{t}\nv_cndmask_b32 v{sel+w}, v{t+3}, v{t+1}, vcc\nv_cndmask_b32 v{sel+4+w}, v{t+3}, v{t+2}, vcc')
    def afrag(dst, src, par, sel):
        for w in range(4): A(f'v_perm_b32 v{dst+w}, v{src}, v{src}, v{sel+4*par+w}')
    def tagreg(dst, addr):
        A(f'v_lshrrev_b32 v{dst}, 1, v{addr}\nv_and_b32 v{dst}, 8, v{dst}\nv_xor_b32 v{dst}, s3, v{dst}\nv_and_b32 v{dst}, 15, v{dst}')
    def tag(v, T): A(f'v_and_or_b32 v{v}, v{v}, -16, v{T}')
    def check(x, y, c, T, t):
        for i in range(c): A(f'v_xor_b32 v{y+i}, v{x+i}, v{T}')
        if c == 4: A(f'v_or3_b32 v{t}, v{y}, v{y+1}, v{y+2}\nv_bitop3_b32 v{t}, v{t}, v{y+3}, 15 bitop3:0xa8')
        else: A(f'v_and_b32 v{t}, 15, v{y}')
        A(f'v_cmp_ne_u32 vcc, 0, v{t}')
    def invalidate(x, c, T):
        for i in range(c): A(f'v_xor_b32 v{x+i}, 1, v{T}')
    def poll(loads, t, hook=None, slp=0):
        A(f's_mov_b32 s62, {SPIN}')
        for l in loads: A(l[0])
        if hook: hook(len(loads))
        for n, (txt, x, y, c, T) in enumerate(loads):
            L, Lf, Lo = lab('chk'), lab('again'), lab('ok')
            A(f'{L}:')
            check(x, y, c, T, t)
            A(f's_cbranch_vccnz {Lf}\n{Lo}:')
            def again(n=n, L=L, Lf=Lf, Lo=Lo):
                A(f'{Lf}:')
                if slp or psleep: A(f's_sleep {slp or psleep}')
                for l in loads[n:]: A(l[0])
                A(f's_sub_u32 s62, s62, 1\ns_waitcnt vmcnt({(len(loads)-n)*(depth-1)})\ns_cbranch_scc0 {L}\ns_branch {Lo}')
            cold.append(again)
    def sum8(g):
        for i in range(4): A(f'v_add_f32 v{g+i}, v{g+i}, v{g+4+i}\nv_add_f32 v{g+8+i}, v{g+8+i}, v{g+12+i}')
        for i in range(4): A(f'v_add_f32 v{g+i}, v{g+i}, v{g+8+i}')
        A(f'v_permlane32_swap_b32 v{g}, v{g+2}\nv_permlane32_swap_b32 v{g+1}, v{g+3}')
        A(f'v_add_f32 v{g}, v{g}, v{g+2}\nv_add_f32 v{g+1}, v{g+1}, v{g+3}')
    def ldsspin(reads, test, slp=0):
        L, Ld = lab('spin'), lab('spun')
        A(f's_mov_b32 s62, {SPIN}\n{L}:')
        if slp: A(f's_sleep {slp}')
        A(f'{reads}\ns_waitcnt lgkmcnt(0)\n{test}\ns_cbranch_vccz {Ld}\ns_sub_u32 s62, s62, 1\ns_cbranch_scc0 {L}\n{Ld}:')
    def stream(hooks, th, extra_at=None):
        for i in range(16):
            if i: A('s_addk_i32 s33, 0x2000\ns_bitset0_b32 s33, 17')
            if th and 2 * i >= th:
                ex = 1 if extra_at is not None and 2 * i - (th - 2) < extra_at <= 2 * i else 0
                A(f's_waitcnt vmcnt({th-2+ex})')
            for hf in range(2):
                A(f'buffer_load_dwordx4 v[{128+8*i+4*hf}:{131+8*i+4*hf}], v2, s[36:39], s33 offen offset:{128*hf} {kvf}')
                if 2 * i + hf + 1 in hooks: A(hooks[2 * i + hf + 1])

    hdr = open('cdna_kernels/' + NAME + '.s.ref').read().split('\n')
    for ln in hdr:
        if ln.startswith('; @launch'): A.raw(f'; @launch grid=(256,1,1) block=(512,1,1) lds={LDS_BYTES}'); break
        A.raw(ln)
    A.raw(f'.amdgcn_target "amdgcn-amd-amdhsa--gfx950"\n.text\n.globl {NAME}_kernel\n.p2align 8\n.type {NAME}_kernel,@function\n{NAME}_kernel:')

    if amp: ST(13)
    if span or diag: A('s_memrealtime s[98:99]')
    A(f'''s_load_dwordx16 s[4:19], s[0:1], 0
s_load_dwordx8 s[20:27], s[0:1], 64
s_getpc_b64 s[40:41]
L_pc:
s_lshr_b32 s30, s2, 3
s_mul_i32 s35, s30, {128*npf}
{nl.join(f's_load_dword s42, s[40:41], s35 offset:{pf0+128*i}' for i in range(npf))}
s_cmp_ge_u32 s2, 256
s_cbranch_scc1 L_exit
v_lshrrev_b32 v1, 6, v0
v_and_b32 v0, 63, v0
v_readfirstlane_b32 s28, v1
s_and_b32 s29, s2, 7
s_and_b32 s31, s30, 3
s_lshl2_add_u32 s31, s29, s31        ; head
s_lshr_b32 s32, s30, 2
v_lshrrev_b32 v3, 3, v0              ; lane >> 3
v_and_b32 v4, 7, v0
v_lshlrev_b32 v4, 4, v4              ; (lane & 7) * 16
v_lshl_add_u32 v2, v3, 8, v4
v_lshlrev_b32 v5, 4, v0              ; lane * 16
s_and_b32 s63, s28, 3
s_lshl3_add_u32 s33, s29, s32
s_add_u32 s33, s33, s63
s_and_b32 s33, s33, 63
s_lshl_b32 s33, s33, 11
s_lshl_b32 s34, s31, 6
s_add_u32 s34, s34, s32
s_add_u32 s34, s34, 56
s_lshl_b32 s34, s34, 17
s_mov_b32 s38, 0x20000
s_mov_b32 s39, 0x20000''')
    if diag: A('v_mov_b32 v7, 0')
    A(f'''s_cmp_lt_u32 s28, 4
s_cbranch_scc1 L_kwave
s_setprio 3
s_lshl_b32 s35, s32, 5
s_add_u32 s35, s35, s63
s_lshl_b32 s35, s35, 6
s_add_u32 s35, s35, s31
s_lshl_b32 s35, s35, 8
v_lshl_add_u32 v6, v3, 16, v4
v_add_u32 v12, 0x2000, v6
v_subrev_u32 v13, 12, v0
v_ashrrev_i32 v13, 31, v13
v_lshlrev_b32 v14, 2, v0
ds_write_b32 v14, v13 offset:{L_ML}
s_waitcnt lgkmcnt(0)
global_load_dwordx4 v[24:27], v5, s[4:5]
s_load_dword s3, s[26:27], {WS_E:#x}
s_add_u32 s10, s10, s35
s_addc_u32 s11, s11, 0''')
    for n in range(2):
        for hf in range(2): A(f'global_load_dwordx4 v[{64+8*n+4*hf}:{67+8*n+4*hf}], v{(6, 12)[n]}, s[10:11] offset:{128*hf} nt')
    A('s_barrier\ns_branch L_vwave')

    A(f'''L_kwave:
s_setprio 2
s_waitcnt lgkmcnt(0)
s_add_u32 s36, s6, s34
s_addc_u32 s37, s7, 0''')
    qload = 'global_load_dwordx4 v[16:19], v6, s[44:45] sc1'
    stream({kpre: f's_load_dword s3, s[26:27], {WS_E:#x}\ns_barrier',
            8: f'''s_lshl_b32 s34, s31, 6
s_add_u32 s34, s34, s28
s_lshl_b32 s34, s34, 7
s_add_u32 s44, s26, s34
s_addc_u32 s45, s27, 0
v_lshl_add_u32 v6, v3, 10, v4''',
            qpos: '' if noq else qload}, thr, extra_at=None if noq else qpos)
    ST(1)
    A(f'''v_lshrrev_b32 v12, 5, v0             ; lane >> 5
v_and_b32 v13, 31, v0
v_lshlrev_b32 v13, 4, v13            ; (lane & 31) * 16
s_lshl_b32 s46, s28, 8
s_add_u32 s46, s46, {L_SCR}
s_lshl_b32 s34, s28, 6
v_lshrrev_b32 v14, 4, v0
v_lshlrev_b32 v14, 1, v14
v_lshrrev_b32 v15, 1, v4
v_add3_u32 v14, v14, v15, s34
v_mov_b32 v24, {L_ML}
v_mov_b32 v25, 1
s_lshl_b32 s34, s28, 2
v_mov_b32 v26, s34
s_waitcnt lgkmcnt(0)
s_add_u32 s3, s3, {EPOCH_STEP:#x}''')
    tagreg(8, 5)
    A(f's_waitcnt vmcnt({min(gow, 32-qpos)})\nds_write_b32 v26, v25 offset:{L_ML+64}')
    ST(2)
    A(f's_mov_b32 s62, {SPIN}\nL_qchk:')
    check(16, 20, 4, 8, 15)
    A(('' if noq else 's_cbranch_vccnz L_qagain\n') + 'L_qok:')
    cold.append(lambda: A(f'L_qagain:\n{qload}\ns_sub_u32 s62, s62, 1\ns_waitcnt vmcnt(0)\ns_cbranch_scc0 L_qchk\ns_branch L_qok'))
    ST(3)
    A(f'''v_permlane32_swap_b32 v20, v22
v_permlane32_swap_b32 v21, v23
v_add_f32 v20, v20, v22
v_add_f32 v21, v21, v23
v_permlane16_swap_b32 v20, v21
v_add_f32 v20, v20, v21
v_add_f32_dpp v20, v20, v20 row_ror:8 {FULL}
v_cvt_pk_bf16_f32 v20, v20, v20
v_lshl_add_u32 v6, v12, 12, v13
ds_write_b16 v14, v20 offset:{L_Q}
s_mov_b64 exec, 1
s_waitcnt lgkmcnt(0)
ds_add_u32 v24, v25 offset:52
s_mov_b64 exec, -1''')
    ldsspin('ds_read_b32 v15, v24 offset:52', 'v_cmp_ne_u32 vcc, 4, v15')
    A(f'ds_read_b128 v[16:19], v4 offset:{L_Q}\nds_read_b128 v[20:23], v4 offset:{L_Q+128}\ns_waitcnt lgkmcnt(0)')
    for i0 in range(0, 16, 4):
        A(f's_waitcnt vmcnt({24-2*i0})')
        for e in range(8):
            for i in range(i0, i0 + 4):
                A(f'v_dot2_f32_bf16 v{32+i}, v{128+8*i+e}, v{16+e}, {"v%d" % (32+i) if e else 0}')
    for i in range(8):
        A(f'v_add_f32_dpp v{32+i}, v{32+i}, v{32+i} row_half_mirror row_mask:0xf bank_mask:0x5')
    for i in range(8):
        A(f'v_add_f32_dpp v{32+i}, v{40+i}, v{40+i} row_half_mirror row_mask:0xf bank_mask:0xa')
    A('s_mov_b32 vcc_lo, 0xcccccccc\ns_mov_b32 vcc_hi, 0xcccccccc')
    for i in range(4): A(f'v_cndmask_b32 v{40+i}, v{36+i}, v{32+i}, vcc\nv_cndmask_b32 v{32+i}, v{32+i}, v{36+i}, vcc')
    for i in range(4): A(f'v_add_f32_dpp v{32+i}, v{40+i}, v{32+i} quad_perm:[2,3,0,1] {FULL}')
    A('s_mov_b32 vcc_lo, 0xaaaaaaaa\ns_mov_b32 vcc_hi, 0xaaaaaaaa')
    for i in range(2): A(f'v_cndmask_b32 v{40+i}, v{34+i}, v{32+i}, vcc\nv_cndmask_b32 v{32+i}, v{32+i}, v{34+i}, vcc')
    for i in range(2): A(f'v_add_f32_dpp v{32+i}, v{40+i}, v{32+i} quad_perm:[1,0,3,2] {FULL}')
    r2 = 'v_cvt_pk_bf16_f32 v34, v32, v33\nv_lshlrev_b32 v32, 16, v34\nv_and_b32 v33, 0xffff0000, v34'
    if not nosr & 1: A(r2)
    A(f'v_mul_f32 v32, {SCALE:#x}, v32\nv_mul_f32 v33, {SCALE:#x}, v33')
    if not nosr & 2: A(r2)
    A('v_max_f32 v34, v32, v33')
    wred('v_max_f32', 34, 36)
    A(f'''v_sub_f32 v35, v32, v34
v_sub_f32 v36, v33, v34
v_mul_f32 v35, {LOG2E:#x}, v35
v_mul_f32 v36, {LOG2E:#x}, v36
v_exp_f32 v35, v35
v_exp_f32 v36, v36
v_add_f32 v35, v35, v36''')
    wred('v_add_f32', 35, 36)
    ST(11)
    if noml: A('s_cmp_ge_u32 s30, 0\ns_cbranch_scc1 L_mlok')
    A(f'''v_min_u32 v34, -2, v34
v_min_u32 v35, -2, v35
v_lshl_add_u32 v37, v26, 1, v24
ds_write_b64 v37, v[34:35]
s_cmp_lg_u32 s28, 0
s_cbranch_scc1 L_mlwait''')
    ldsspin('ds_read_b128 v[40:43], v24\nds_read_b128 v[44:47], v24 offset:16',
            'v_max3_u32 v37, v40, v41, v42\nv_max3_u32 v37, v37, v43, v44\nv_max3_u32 v37, v37, v45, v46\nv_max_u32 v37, v37, v47\nv_cmp_eq_u32 vcc, -1, v37')
    ST(4)
    A(f'''s_lshl_b32 s35, s31, 8
s_add_u32 s35, s35, {WS_ML}
v_max3_f32 v48, v40, v42, v44
v_max_f32 v48, v48, v46''')
    for w in range(4): A(f'v_sub_f32 v{40+2*w}, v{40+2*w}, v48')
    for w in range(4): A(f'v_mul_f32 v{40+2*w}, {LOG2E:#x}, v{40+2*w}')
    for w in range(4): A(f'v_exp_f32 v{40+2*w}, v{40+2*w}')
    A('v_mov_b32 v49, s3\nv_mov_b32 v51, s3\nv_mul_f32 v50, v40, v41')
    for w in range(1, 4): A(f'v_fmac_f32 v50, v{40+2*w}, v{41+2*w}')
    A(f'''s_lshl4_add_u32 s34, s32, s35
v_mov_b32 v37, s34
s_mov_b64 exec, 1
global_store_dwordx4 v37, v[48:51], s[26:27] sc1
s_mov_b64 exec, -1''')
    L, Ld = lab('mg'), lab('mgd')
    A(f's_mov_b32 s62, {SPIN}\n{L}:\ns_sleep {mlsleep}\ns_load_dwordx16 s[64:79], s[26:27], s35 glc\ns_load_dwordx16 s[80:95], s[26:27], s35 offset:64 glc\ns_waitcnt lgkmcnt(0)')
    A('s_and_b32 s34, s65, s3\ns_or_b32 s47, s65, s3')
    for i in range(1, 16): A(f's_and_b32 s34, s34, s{65+2*i}\ns_or_b32 s47, s47, s{65+2*i}')
    A(f's_cmp_eq_u32 s34, s47\ns_cbranch_scc1 {Ld}\ns_sub_u32 s62, s62, 1\ns_cbranch_scc0 {L}\n{Ld}:')
    A('v_mov_b32 v34, s64')
    for c in range(1, 8): A(f'v_max_f32 v34, s{64+4*c}, v34')
    for c in range(8): A(f'v_sub_f32 v{40+c}, s{64+4*c}, v34')
    for c in range(8): A(f'v_mul_f32 v{40+c}, {LOG2E:#x}, v{40+c}')
    for c in range(8): A(f'v_exp_f32 v{40+c}, v{40+c}')
    A('v_mul_f32 v35, s66, v40')
    for c in range(1, 8): A(f'v_fmac_f32 v35, s{66+4*c}, v{40+c}')
    A(f'''v_rcp_f32 v35, v35
v_min_u32 v34, -2, v34
v_min_u32 v35, -2, v35
ds_write_b64 v24, v[34:35] offset:32
s_branch L_mlok
L_mlwait:''')
    ldsspin('ds_read_b64 v[34:35], v24 offset:32', 'v_max_u32 v37, v34, v35\nv_cmp_eq_u32 vcc, -1, v37', 1)
    A('L_mlok:')
    ST(5)
    A(f'''v_sub_f32 v32, v32, v34
v_sub_f32 v33, v33, v34
v_mul_f32 v32, {LOG2E:#x}, v32
v_mul_f32 v33, {LOG2E:#x}, v33
v_exp_f32 v32, v32
v_exp_f32 v33, v33
s_lshl_b32 s34, s28, 8
v_lshl_add_u32 v36, v0, 2, s34
v_mul_f32 v32, v32, v35
v_mul_f32 v33, v33, v35
v_cvt_pk_bf16_f32 v32, v32, v33
ds_write_b32 v36, v32 offset:{L_P}
s_cmp_lt_u32 s28, 2
s_cbranch_scc1 L_two
s_cmp_eq_u32 s28, 2
s_cselect_b32 s64, s16, s18
s_cselect_b32 s65, s17, s19
s_mov_b32 s66, {512*2752}
s_lshl_b32 s34, s30, 4
v_lshrrev_b32 v61, 2, v0
v_add_u32 v61, s34, v61
v_mul_u32_u24 v61, 2752, v61
v_and_b32 v62, 3, v0
v_lshlrev_b32 v62, 7, v62
v_min_u32 v62, 348, v62
s_mul_i32 s34, s29, 352
v_add3_u32 v61, v61, v62, s34
s_branch L_tj
L_two:
s_mov_b32 s64, s12
s_mov_b32 s65, s13
s_mov_b32 s66, {4096*1024}
s_lshl_b32 s34, s29, 5
s_add_u32 s34, s34, s30
s_lshl1_add_u32 s34, s34, s28
s_lshl_b32 s34, s34, 13
v_lshl_add_u32 v61, v0, 7, s34
L_tj:
s_mov_b32 s67, 0x20000''')
    def touch(when):
        lo, hi = twhen[0] == when, twhen[1] == when
        if not (lo or hi): return
        Ls = lab('nt')
        if not (lo and hi): A(f's_cmp_lt_u32 s28, 2\ns_cbranch_scc{0 if lo else 1} {Ls}')
        A(f'buffer_load_dword v62, v61, s[64:67], 0 offen {tf}\n{Ls}:')
    ST(6)
    touch(0)
    invalidate(96, 24, 8)
    A(f'''s_lshl_b32 s47, s28, 13
s_add_u32 s47, s47, {L_W}
s_waitcnt lgkmcnt(0)''')
    if notail: A('s_cmp_ge_u32 s30, 0\ns_cbranch_scc1 L_norole')
    A('s_cmp_ge_u32 s30, 16\ns_cbranch_scc1 L_notw')
    def bars(early=None):
        A('s_barrier')
        touch(1)
        if early: early()
        A('s_barrier\ns_barrier')
        touch(2)
        ST(7)

    A(f'''s_lshl2_add_u32 s34, s29, s28
s_lshl_b32 s35, s34, 13
s_add_u32 s35, s35, 512
s_add_u32 s44, s26, s35
s_addc_u32 s45, s27, 0
s_lshl_b32 s34, s34, 17
s_lshl_b32 s35, s30, 6
s_add_u32 s34, s34, s35
s_add_u32 s40, s12, s34
s_addc_u32 s41, s13, 0
s_mov_b32 s42, {127*1024+64}
s_mov_b32 s43, 0x20000
v_lshrrev_b32 v14, 4, v0             ; g
v_bfe_u32 v15, v0, 2, 2
v_lshl_add_u32 v15, v14, 3, v15
v_and_b32 v32, 1, v14
v_lshlrev_b32 v33, 1, v32
v_and_b32 v34, 3, v0
v_xor_b32 v33, v33, v34
v_lshlrev_b32 v33, 4, v33
v_lshl_add_u32 v15, v15, 10, v33
v_lshrrev_b32 v33, 2, v0
v_lshlrev_b32 v33, 6, v33
v_lshl_add_u32 v33, v34, 3, v33
v_lshl_add_u32 v33, v32, 5, v33
v_add_u32 v33, s47, v33
v_xor_b32 v34, 32, v33
v_lshrrev_b32 v35, 1, v13
v_lshl_add_u32 v35, v12, 2, v35
v_add_u32 v35, s46, v35
v_lshl_add_u32 v36, v14, 4, s46
s_lshl_b32 s34, s28, 2
s_add_u32 s34, s34, {L_RED}
v_add_u32 v37, s34, v13
s_lshl_b32 s34, s29, 11
s_lshl_b32 s35, s30, 7
s_add_u32 s34, s34, s35
s_add_u32 s34, s34, {WS_B}
v_lshl_add_u32 v38, v0, 2, s34''')
    tagreg(9, 38)
    bars()
    for n in range(8):
        A(f's_add_u32 m0, s47, {1024*n}\ns_mov_b32 s34, {(32*(n>>1)+4*(n&1))*1024}')
        A(f'buffer_load_dwordx4 v15, s[40:43], s34 offen {wf} lds')
    def whook(n):
        A(f's_waitcnt vmcnt({n})')
        ST(10)
        for t in range(4):
            for cb in range(2):
                for hf in range(2):
                    r = 128 + 8 * t + 4 * cb + 2 * hf
                    A(f'ds_read_b64_tr_b16 v[{r}:{r+1}], v{33+cb} offset:{1024*(2*t+hf)}')
    poll([(f'global_load_dwordx4 v[{96+4*n}:{99+4*n}], v6, s[44:45] offset:{1024*n} sc1', 96 + 4 * n, 16 + 4 * n, 4, 8) for n in range(4)], 39, hook=whook)
    ST(8)
    sum8(16)
    A('v_cvt_pk_bf16_f32 v16, v16, v17\nds_write_b32 v35, v16\ns_waitcnt lgkmcnt(0)')
    for t in range(4): A(f'ds_read_b128 v[{16+4*t}:{19+4*t}], v36 offset:{64*t}')
    A('s_mov_b32 vcc_lo, 0xffff0000\ns_mov_b32 vcc_hi, 0')
    for t in range(4):
        A(f's_waitcnt lgkmcnt({3-t})')
        for cb in range(2):
            c = f'v[{40+4*cb}:{43+4*cb}]'
            A(f'v_mfma_f32_16x16x32_bf16 {c}, v[{16+4*t}:{19+4*t}], v[{128+8*t+4*cb}:{131+8*t+4*cb}], {c if t else 0}')
    A(f'''v_cndmask_b32 v40, v40, v44, vcc
s_mov_b32 exec_hi, 0
ds_write_b32 v37, v40
s_waitcnt lgkmcnt(0)
s_barrier
s_cmp_lg_u32 s28, 0
s_cbranch_scc1 L_wend
ds_read_b128 v[16:19], v37
s_waitcnt lgkmcnt(0)
v_add_f32 v16, v16, v17
v_add_f32 v18, v18, v19
v_add_f32 v16, v16, v18''')
    tag(16, 9)
    A('global_store_dword v38, v16, s[26:27] sc1\nL_wend:')
    finish()

    A(f'''L_notw:
s_cmp_ge_u32 s30, 27
s_cbranch_scc1 L_notf
s_mul_i32 s63, s29, 11
s_add_u32 s63, s63, s30
s_sub_u32 s63, s63, 16
s_cmp_ge_u32 s63, 86
s_cbranch_scc1 L_norole
s_mul_i32 s34, s28, {128*2752}
s_lshl_b32 s35, s63, 5
s_add_u32 s34, s34, s35
s_add_u32 s36, s16, s34
s_addc_u32 s37, s17, 0
s_mov_b32 s38, {127*2752+32}
s_mov_b32 s39, 0x20000
s_add_u32 s40, s18, s34
s_addc_u32 s41, s19, 0
s_mov_b32 s42, {127*2752+32}
s_mov_b32 s43, 0x20000
s_lshl_b32 s34, s63, 14
s_lshl_b32 s35, s28, 8
s_add_u32 s34, s34, s35
s_add_u32 s20, s20, s34
s_addc_u32 s21, s21, 0
s_add_u32 s4, s4, s35
s_addc_u32 s5, s5, 0
s_lshl_b32 s35, s28, 9
s_add_u32 s34, s35, {WS_B+4096}
s_add_u32 s44, s26, s34
s_addc_u32 s45, s27, 0
v_lshl_add_u32 v6, v12, 13, v13
v_bfe_u32 v14, v0, 3, 2
v_lshlrev_b32 v14, 3, v14
v_lshl_add_u32 v14, v12, 2, v14
v_bfe_u32 v15, v0, 1, 2
v_add_u32 v14, v14, v15
v_mul_u32_u24 v14, 2752, v14
v_and_b32 v15, 1, v0
v_lshl_add_u32 v15, v15, 4, v14
v_lshl_add_u32 v33, v0, 3, s47
v_lshl_add_u32 v34, v3, 10, v4
v_add_u32 v35, 0x2000, v34           ; rows 8..15
v_lshrrev_b32 v36, 1, v13
v_lshl_add_u32 v36, v12, 2, v36
s_add_u32 s34, s35, {WS_H}
v_lshl_add_u32 v39, v36, 1, s34
s_lshl_b32 s34, s28, 8
s_add_u32 s34, s34, {L_H}
v_add_u32 v37, s34, v36
v_and_b32 v38, 15, v0
v_lshrrev_b32 v14, 4, v0
v_lshlrev_b32 v56, 6, v38
v_lshl_add_u32 v56, v14, 4, v56
s_lshl_b32 s34, s28, 2
s_add_u32 s34, s34, {L_RED}
v_lshl_add_u32 v57, v38, 5, s34
v_bfe_u32 v58, v0, 2, 1
v_lshl_add_u32 v58, v58, 3, v3
v_lshlrev_b32 v58, 5, v58
s_lshl_b32 s34, s63, 11
s_add_u32 s34, s34, s35
s_add_u32 s34, s34, {WS_C}
v_lshl_add_u32 v59, v14, 7, v4
v_add_u32 v59, s34, v59
s_lshl_b32 s34, s28, 4
s_mov_b64 s[60:61], 0xffff
s_lshl_b64 s[60:61], s[60:61], s34''')
    selectors(48, 40)
    def dloads():
        A('global_load_dword v32, v36, s[4:5]')
        for a in range(2):
            for hf in range(2): A(f'global_load_dwordx4 v[{160+8*a+4*hf}:{163+8*a+4*hf}], v{34+a}, s[20:21] offset:{128*hf} nt')
    bars(dloads if dearly else None)
    if not dearly: dloads()
    for m in range(2):
        for t in range(4):
            A(f's_add_u32 m0, s47, {4096*m+1024*t}\ns_mov_b32 s34, {32*t*2752}')
            A(f'buffer_load_dwordx4 v15, s[{36+4*m}:{39+4*m}], s34 offen {wf} lds')
    def fhook(n):
        A(f's_waitcnt vmcnt({n})')
        ST(10)
        for m in range(2):
            for t in range(4):
                for hf in range(2):
                    r = 128 + 16 * m + 4 * t + 2 * hf
                    A(f'ds_read_b64_tr_b16 v[{r}:{r+1}], v33 offset:{4096*m+1024*t+512*hf}')
        A('v_and_b32 v41, 0xffff0000, v32\nv_lshlrev_b32 v40, 16, v32')
    poll([(f'global_load_dwordx4 v[{96+4*n}:{99+4*n}], v6, s[44:45] offset:{2048*n-4096} sc1', 96 + 4 * n, 16 + 4 * n, 4, 8) for n in range(4)], 42, hook=fhook)
    ST(8)
    sum8(16)
    A(f'''v_cvt_pk_bf16_f32 v18, v16, v17
v_lshlrev_b32 v16, 16, v18
v_and_b32 v17, 0xffff0000, v18
v_add_f32 v16, v16, v40
v_add_f32 v17, v17, v41
v_cvt_pk_bf16_f32 v18, v16, v17
ds_write_b32 v37, v18
s_cmp_eq_u32 s63, 0
s_cbranch_scc1 L_puth
L_noh:
s_waitcnt lgkmcnt(0)
s_barrier
ds_read_b128 v[16:19], v56 offset:{L_H}
s_waitcnt lgkmcnt(0)''')
    cold.append(lambda: A('''L_puth:
v_lshl_or_b32 v42, v18, 16, v8
v_and_b32 v43, 0xffff0000, v18
v_or_b32 v43, v43, v8
global_store_dwordx2 v39, v[42:43], s[26:27] sc1
s_branch L_noh'''))
    layernorm(16, 20, 16)
    ST(9)
    for t in range(4):
        for m in range(2):
            A(f'v_mfma_f32_16x16x32_bf16 v[{64+16*m+4*t}:{67+16*m+4*t}], v[16:19], v[{128+16*m+4*t}:{131+16*m+4*t}], 0')
    A(f'''v_add_f32 v64, v64, v69
v_add_f32 v80, v80, v85
v_add_f32 v64, v64, v74
v_add_f32 v80, v80, v90
v_add_f32 v64, v64, v79
v_add_f32 v80, v80, v95
s_mov_b64 exec, s[60:61]
ds_write2_b32 v57, v64, v80 offset0:0 offset1:4
s_mov_b64 exec, -1
s_waitcnt lgkmcnt(0)
s_barrier
ds_read_b128 v[16:19], v58 offset:{L_RED}
ds_read_b128 v[20:23], v58 offset:{L_RED+16}
s_waitcnt lgkmcnt(1)
v_add_f32 v16, v16, v17
v_add_f32 v18, v18, v19
v_add_f32 v16, v16, v18
s_waitcnt lgkmcnt(0)
v_add_f32 v20, v20, v21
v_add_f32 v22, v22, v23
v_add_f32 v20, v20, v22
v_cvt_pk_bf16_f32 v20, v16, v20
v_lshlrev_b32 v16, 16, v20
v_mul_f32 v17, {LOG2E ^ 0x80000000:#x}, v16
v_exp_f32 v17, v17
v_and_b32 v20, 0xffff0000, v20
v_add_f32 v17, 1.0, v17
v_rcp_f32 v17, v17
v_mul_f32 v16, v16, v17''')
    rnd(16)
    A(f'''v_mul_f32 v16, v16, v20
v_mov_b32 v17, v16
v_mov_b32_dpp v17, v16 row_half_mirror row_mask:0xf bank_mask:0x5
v_mov_b32_dpp v16, v16 row_half_mirror row_mask:0xf bank_mask:0xa
v_cvt_pk_bf16_f32 v16, v16, v17''')
    for a in range(2): afrag(20 + 4 * a, 16, a, 48)
    for a in range(2):
        for hf in range(2):
            c = f'v[{64+4*hf}:{67+4*hf}]'
            A(f'v_mfma_f32_16x16x32_bf16 {c}, v[{20+4*a}:{23+4*a}], v[{160+8*a+4*hf}:{163+8*a+4*hf}], {c if a else 0}')
    for r in range(4): A(f'v_permlane32_swap_b32 v{64+r}, v{68+r}')
    for r in range(4): A(f'v_add_f32_dpp v{64+r}, v{68+r}, v{64+r} row_ror:8 {FULL}')
    for r in range(4): tag(64 + r, 8)
    A(f'''s_mov_b32 exec_lo, 0x00ff00ff
s_mov_b32 exec_hi, 0x00ff00ff
global_store_dwordx4 v59, v[64:67], s[26:27] sc1''')
    finish()

    A(f'''L_notf:
s_cmp_lt_u32 s30, 28
s_cbranch_scc1 L_norole
s_cmp_lg_u32 s28, 0
s_cbranch_scc1 L_norole
s_lshl2_add_u32 s63, s29, s30
s_sub_u32 s63, s63, 28
s_lshl_b32 s34, s63, 6
s_add_u32 s34, s34, {WS_C}
v_lshrrev_b32 v14, 2, v0
v_and_b32 v15, 3, v0
v_lshlrev_b32 v44, 11, v14
v_lshl_add_u32 v44, v15, 4, v44
v_add_u32 v44, s34, v44''')
    for n in range(1, 6): A(f'v_add_u32 v{44+n}, {32768*n}, v44')
    A(f'''s_lshr_b32 s34, s63, 2
s_lshl_b32 s34, s34, 6
s_and_b32 s35, s63, 1
s_lshl_b32 s35, s35, 5
s_add_u32 s34, s34, s35
s_and_b32 s35, s63, 2
s_lshl1_add_u32 s34, s35, s34
v_lshrrev_b32 v14, 4, v0
v_lshl_add_u32 v14, v15, 3, v14
v_add_u32 v14, s34, v14
v_lshlrev_b32 v51, 1, v14
v_lshlrev_b32 v50, 2, v14
v_add_u32 v50, {WS_H}, v50
v_mov_b32 v52, {WS_E}
v_mov_b32 v53, s3''')
    tagreg(9, 50)
    invalidate(120, 1, 9)
    A('s_mov_b32 exec_lo, 0xff000000')
    for i in range(4): A(f'v_mov_b32 v{116+i}, v8')
    A('s_mov_b64 exec, -1')
    bars()
    poll([('global_load_dword v120, v50, s[26:27] sc1', 120, 40, 1, 9)], 41, slp=1)
    ST(9)
    lds = [(f'global_load_dwordx4 v[{96+4*n}:{99+4*n}], v{44+n}, s[26:27] sc1', 96 + 4 * n, 16 + 4 * n, 4, 8) for n in range(5)]
    lds.append(('s_mov_b64 exec, 0xffffff\nglobal_load_dwordx4 v[116:119], v49, s[26:27] sc1\ns_mov_b64 exec, -1', 116, 36, 4, 8))
    poll(lds, 41)
    ST(8)
    for i in range(4): A(f'v_add_f32 v{16+i}, v{16+i}, v{20+i}\nv_add_f32 v{24+i}, v{24+i}, v{28+i}\nv_add_f32 v{32+i}, v{32+i}, v{36+i}')
    for i in range(4): A(f'v_add_f32 v{16+i}, v{16+i}, v{24+i}')
    for i in range(4): A(f'v_add_f32 v{16+i}, v{16+i}, v{32+i}')
    A(f'''v_permlane32_swap_b32 v16, v18
v_permlane32_swap_b32 v17, v19
v_add_f32 v16, v16, v18
v_add_f32 v17, v17, v19
v_permlane16_swap_b32 v16, v17
v_add_f32 v16, v16, v17
v_add_f32_dpp v16, v16, v16 row_ror:8 {FULL}
v_add_f32_dpp v16, v16, v16 row_ror:4 {FULL}''')
    rnd(16)
    A(f'''v_add_f32 v16, v16, v40
v_cvt_pk_bf16_f32 v16, v16, v16
s_mov_b32 exec_lo, 0x000f000f
s_mov_b32 exec_hi, 0x000f000f
global_store_short v51, v16, s[22:23]
s_cmp_lg_u32 s63, 0
s_cbranch_scc1 L_rend
s_mov_b64 exec, 1
global_store_dword v52, v53, s[26:27] sc1
L_rend:''')
    if amp:
        ST(14)
        A(f'''s_memrealtime s[96:97]
s_waitcnt lgkmcnt(0)
s_sub_u32 s98, s100, s98
s_mul_i32 s98, s98, {amp[2]}
s_cmp_lg_u32 s29, {amp[3] if amp[3] >= 0 else 's29'}
s_cbranch_scc1 L_ampd
L_amp:
s_memrealtime s[100:101]
s_waitcnt lgkmcnt(0)
s_sub_u32 s100, s100, s96
s_cmp_lt_u32 s100, s98
s_cbranch_scc1 L_amp
L_ampd:''')
    finish(True)
    A('L_norole:')
    if 2 in twhen: bars()
    else:
        A('s_barrier'); touch(1)
    finish()

    A(f'''L_vwave:
s_add_u32 s36, s8, s34
s_addc_u32 s37, s9, 0
s_lshl3_add_u32 s35, s31, s32
s_lshl_b32 s35, s35, 10
s_add_u32 s44, s26, s35
s_addc_u32 s45, s27, 0
v_mov_b32 v56, {L_ML}''')
    if warm: A('s_waitcnt lgkmcnt(0)')
    if warm:
        A(f'''s_lshl_b32 s34, s2, 2
s_add_u32 s34, s34, s63
s_lshl_b32 s34, s34, 9
s_cmp_lt_u32 s34, {WS_B}
s_cselect_b32 s35, 512, 0
s_or_b32 s34, s34, s35
v_lshl_add_u32 v12, v0, 3, s34
v_mov_b32 v30, s3
v_mov_b32 v31, s3
s_cmp_ge_u32 s34, {WS_ML}
s_cbranch_scc1 L_nowarm
global_store_dwordx2 v12, v[30:31], s[26:27] sc1
s_waitcnt vmcnt(0)
L_nowarm:''')
    ST(7)
    selectors(40, 28)
    A(f'''s_lshl_b32 s34, s63, 10
s_add_u32 s34, s34, {L_OP}
v_lshrrev_b32 v12, 5, v0
v_lshl_add_u32 v12, v12, 9, s34
v_lshl_add_u32 v12, v4, 2, v12
v_bfe_u32 v13, v0, 4, 1
v_lshl_add_u32 v12, v13, 5, v12
v_lshlrev_b32 v14, 3, v0
s_lshl_b32 s34, s32, 5
s_add_u32 s34, s34, s63
s_lshl_b32 s34, s34, 2
v_lshl_add_u32 v6, v3, 4, s34
v_mov_b32 v57, 1
s_waitcnt vmcnt(4)''')
    ST(1)
    layernorm(24, 28, 24)
    A(f'ds_write_b128 v5, v[24:27] offset:{L_H}\ns_waitcnt lgkmcnt(0)\nds_read_b32 v48, v6 offset:{L_H}\ns_add_u32 s3, s3, {EPOCH_STEP:#x}')
    tagreg(8, 14)
    A('s_waitcnt lgkmcnt(0)')
    for n in range(2): afrag(24 + 4 * n, 48, n, 40)
    A('s_waitcnt vmcnt(0)')
    for n in range(2):
        for hf in range(2):
            c = f'v[{16+4*hf}:{19+4*hf}]'
            A(f'v_mfma_f32_16x16x32_bf16 {c}, v[{24+4*n}:{27+4*n}], v[{64+8*n+4*hf}:{67+8*n+4*hf}], {c if n else 0}')
    def part_write():
        A(f'''s_mov_b32 exec_lo, 0x00ff00ff
s_mov_b32 exec_hi, 0xff00ff00
ds_write2_b64 v12, v[16:17], v[20:21] offset0:0 offset1:1
ds_write2_b64 v12, v[18:19], v[22:23] offset0:2 offset1:3''')
    def part_sum(off):
        for n in range(4): A(f'ds_read_b128 v[{16+4*n}:{19+4*n}], v5 offset:{L_OP+1024*n}')
        A('s_waitcnt lgkmcnt(0)')
        sum8(16)
        tag(16, 8); tag(17, 8)
        A(f'global_store_dwordx2 v14, v[16:17], s[44:45] offset:{off} sc1')
    part_write()
    A(f'''s_mov_b64 exec, 1
s_waitcnt lgkmcnt(0)
ds_add_u32 v56, v57 offset:48
s_mov_b64 exec, -1
s_cmp_lg_u32 s28, {99 if noq else 4}
s_cbranch_scc1 L_vstream''')
    ldsspin('ds_read_b32 v15, v56 offset:48', 'v_cmp_ne_u32 vcc, 4, v15')
    part_sum(0)
    ST(2)
    A(f'''L_vstream:
s_setprio 0
s_lshl_b32 s34, s63, 2
v_mov_b32 v28, s34''')
    ldsspin(f'ds_read_b32 v15, v28 offset:{L_ML+64}', 'v_cmp_eq_u32 vcc, 0, v15', 1)
    stream({}, thrv or thr)
    ST(3)
    A(f'''s_lshl_b32 s34, s63, 8
v_lshl_add_u32 v6, v3, 5, s34
s_barrier''')
    ST(4)
    A(f'ds_read_b128 v[48:51], v6 offset:{L_P}\nds_read_b128 v[52:55], v6 offset:{L_P+16}\ns_waitcnt lgkmcnt(0)')
    for i in range(16): afrag(64 + 4 * i, 48 + i // 2, i & 1, 40)
    for i in range(16):
        for hf in range(2):
            if hf == 0 or i >= 12: A(f's_waitcnt vmcnt({31-2*i-hf if i >= 12 else 30-2*i})')
            c = f'v[{16+4*hf}:{19+4*hf}]'
            A(f'v_mfma_f32_16x16x32_bf16 {c}, v[{64+4*i}:{67+4*i}], v[{128+8*i+4*hf}:{131+8*i+4*hf}], {c if i else 0}')
    part_write()
    A('s_mov_b64 exec, -1\ns_waitcnt lgkmcnt(0)')
    ST(5)
    A('s_setprio 3\ns_barrier\ns_cmp_lg_u32 s28, 4\ns_cbranch_scc1 L_vend')
    if tailtest:
        A(f'''s_barrier
L_tt:
s_memrealtime s[96:97]
s_waitcnt lgkmcnt(0)
s_sub_u32 s96, s96, s98
s_cmp_lt_u32 s96, {tailtest}
s_cbranch_scc1 L_tt''')
        ST(5)
    part_sum(512)
    ST(6)
    A(('' if tailtest else 's_barrier\n') + 'L_vend:')
    finish()
    A(f'L_exit:\ns_endpgm\nL_code_end:\n.fill (L_pc+{33*512+pf0}-L_code_end)/4, 4, 0xbf810000')
    A.raw(f'''.section .rodata,"a"
.p2align 6
.amdhsa_kernel {NAME}_kernel
  .amdhsa_next_free_vgpr 256
  .amdhsa_next_free_sgpr 102
  .amdhsa_accum_offset 256
  .amdhsa_group_segment_fixed_size 0
  .amdhsa_kernarg_size 96
  .amdhsa_user_sgpr_count 2
  .amdhsa_user_sgpr_kernarg_segment_ptr 1
  .amdhsa_system_sgpr_workgroup_id_x 1
  .amdhsa_float_denorm_mode_32 3
.end_amdhsa_kernel''')
    return A.text()

def STAMPS(al, roles, KW, VW):
    return [('start', al, KW + VW, 0), ('V at vwave', al, VW, 7), ('Q: x landed', al, VW, 1), ('Q: stored', al, [4], 2), ('K issued', al, KW, 1), ('K go', al, KW, 2),
            ('K q gathered', al, KW, 3), ('K qk done', al, KW, 11), ('K ml lds', al, [0], 4), ('K ml gathered', al, KW, 5), ('K p written', al, KW, 6),
            ('V issued', al, VW, 3), ('V bar1', al, VW, 4), ('V pv done', al, VW, 5), ('A stored', al, [4], 6), ('K bar3', al, KW, 7),
            ('W wts landed', roles == 'W', KW, 10), ('F wts landed', roles == 'F', KW, 10),
            ('W gathered', roles == 'W', KW, 8), ('W end', roles == 'W', [0], 15), ('F gathered', roles == 'F', KW, 8), ('F ln done', roles == 'F', KW, 9),
            ('F end', roles == 'F', KW, 15), ('R h seen', roles == 'R', [0], 9), ('R gathered', roles == 'R', [0], 8), ('R end', roles == 'R', [0], 15)]

if __name__ == '__main__':
    out = sys.argv[1] if len(sys.argv) > 1 else f'cdna_kernels/{NAME}.s'
    kw = eval('dict(' + (sys.argv[2] if len(sys.argv) > 2 else '') + ')')
    open(out, 'w').write(gen(**kw))
```

```python
import sys
from asmlib import Asm

NAME = 'sequential_preLN__sliding_block_cached__swiglu_ffn__decode'
WS_QA, WS_B, WS_H, WS_ML, WS_X, WS_E, WS_PR, WS_C, WS_ST = 0x0, 0x40000, 0x48000, 0x4c000, 0x4e000, 0x4f000, 0x60000, 0x80000, 0x100000
EPOCH_STEP = 0x5bd1e3c7
L_P, L_OP, L_SCR, L_H, L_RED, L_ML, L_Q, L_W = 0x0, 0x400, 0x1400, 0x1800, 0x1c00, 0x1e00, 0x1f00, 0x2000
LDS_BYTES = L_W + 0x8000
SPIN = 0x40000
LOG2E = 0x3fb8aa3b
SCALE = 0x3db504f3
EPS = 0x3727c5ac
FULL = 'row_mask:0xf bank_mask:0xf'
nl = '\n'

def gen(diag=False, span=False, amp=None, mlsleep=2, kvf='nt', kpre=3, twhen=(1, 1), tf='', wf='', thr=8, gow=4, qpos=24,
        dearly=True, thrv=None, notail=False, noml=False, noq=False, tailtest=0, psleep=0, nosr=0, afast=True, pages=True, pf=2, fdep=1, rdep=1, ftrig=False, pol=None, nprobe=2, psum=False, cfgy=True, guw=2, wsplit=4, dpos='last', wo0=False, trig=0):
    A = Asm()
    cold = []
    uid = [0]
    def lab(s):
        uid[0] += 1
        return f'L_{s}_{uid[0]}'
    def ST(n):
        if amp and n == amp[0]: A('s_memrealtime s[98:99]')
        if amp and n == amp[1]: A('s_memrealtime s[100:101]')
        if diag: A(f's_memrealtime s[96:97]\ns_waitcnt lgkmcnt(0)\nv_writelane_b32 v7, s96, {n}')
    def flush_cold():
        for f in cold: f()
        cold.clear()
    def finish(last=False):
        if diag or (span and last):
            A(f'''s_memrealtime s[96:97]
s_waitcnt lgkmcnt(0)
v_writelane_b32 v7, s96, 15
v_writelane_b32 v7, s98, 0
s_mov_b64 exec, 0xffff
s_lshl_b32 s34, s2, 3
s_add_u32 s34, s34, s28
s_lshl_b32 s34, s34, 6
s_add_u32 s34, s34, {WS_ST}
v_lshl_add_u32 v1, v0, 2, s34
global_store_dword v1, v7, s[26:27]''')
        A('s_endpgm')
        flush_cold()
    def wred(op, v, t):
        for r in (8, 4, 2, 1): A(f'{op}_dpp v{v}, v{v}, v{v} row_ror:{r} {FULL}')
        for sw in (16, 32): A(f'v_mov_b32 v{t}, v{v}\nv_permlane{sw}_swap_b32 v{v}, v{t}\n{op} v{v}, v{v}, v{t}')
    def rnd(v):
        A(f'v_cvt_pk_bf16_f32 v{v}, v{v}, v{v}\nv_lshlrev_b32 v{v}, 16, v{v}')
    def layernorm(x, u, o):
        s, t, mb, dl = u + 8, u + 9, u + 10, u + 11
        for i in range(4): A(f'v_lshlrev_b32 v{u+2*i}, 16, v{x+i}\nv_and_b32 v{u+2*i+1}, 0xffff0000, v{x+i}')
        A(f'v_add_f32 v{s}, v{u}, v{u+1}\nv_add_f32 v{t}, v{u+2}, v{u+3}\nv_add_f32 v{mb}, v{u+4}, v{u+5}\nv_add_f32 v{dl}, v{u+6}, v{u+7}')
        A(f'v_add_f32 v{s}, v{s}, v{t}\nv_add_f32 v{mb}, v{mb}, v{dl}\nv_add_f32 v{s}, v{s}, v{mb}')
        wred('v_add_f32', s, t)
        A(f'v_mul_f32 v{dl}, 0x3b000000, v{s}')
        A(f'v_cvt_pk_bf16_f32 v{mb}, v{dl}, v{dl}\nv_lshlrev_b32 v{mb}, 16, v{mb}')
        for i in range(8): A(f'v_sub_f32 v{u+i}, v{u+i}, v{mb}')
        A(f'v_sub_f32 v{dl}, v{dl}, v{mb}')
        A(f'v_mul_f32 v{s}, v{u}, v{u}\nv_mul_f32 v{t}, v{u+1}, v{u+1}')
        for i in range(2, 8, 2): A(f'v_fmac_f32 v{s}, v{u+i}, v{u+i}\nv_fmac_f32 v{t}, v{u+i+1}, v{u+i+1}')
        A(f'v_add_f32 v{s}, v{s}, v{t}')
        fill = [f'v_cvt_pk_bf16_f32 v{o+i}, v{u+2*i}, v{u+2*i+1}' for i in range(4)]
        for i in range(4): fill += [f'v_lshlrev_b32 v{u+2*i}, 16, v{o+i}', f'v_and_b32 v{u+2*i+1}, 0xffff0000, v{o+i}']
        fill.append(f'v_mul_f32 v{dl}, v{dl}, v{dl}')
        for r in (8, 4, 2, 1):
            A(fill.pop(0)); A(fill.pop(0))
            A(f'v_add_f32_dpp v{s}, v{s}, v{s} row_ror:{r} {FULL}')
        for sw in (16, 32):
            A(f'v_mov_b32 v{t}, v{s}'); A(fill.pop(0)); A(fill.pop(0))
            A(f'v_permlane{sw}_swap_b32 v{s}, v{t}\nv_add_f32 v{s}, v{s}, v{t}')
        A(fill.pop(0))
        A(f'v_mul_f32 v{s}, 0x3b000000, v{s}\nv_sub_f32 v{s}, v{s}, v{dl}\nv_max_f32 v{s}, 0, v{s}')
        rnd(s)
        A(f'v_add_f32 v{s}, {EPS:#x}, v{s}'); rnd(s)
        A(f'v_sqrt_f32 v{s}, v{s}'); rnd(s)
        A(f'v_rcp_f32 v{s}, v{s}')
        for i in range(8): A(f'v_mul_f32 v{u+i}, v{u+i}, v{s}')
        for i in range(4): A(f'v_cvt_pk_bf16_f32 v{o+i}, v{u+2*i}, v{u+2*i+1}')
    def selectors(sel, t):
        A(f'''v_and_b32 v{t}, 1, v0
v_cmp_eq_u32 vcc, 1, v{t}
v_mov_b32 v{t+1}, 0x0c0c0100
v_mov_b32 v{t+2}, 0x01000c0c
v_cndmask_b32 v{t+1}, v{t+1}, v{t+2}, vcc
v_mov_b32 v{t+2}, 0x0c0c0302
v_mov_b32 v{t+3}, 0x03020c0c
v_cndmask_b32 v{t+2}, v{t+2}, v{t+3}, vcc
v_mov_b32 v{t+3}, 0x0c0c0c0c
v_bfe_u32 v{t}, v0, 1, 2''')
        for w in range(4):
            A(f'v_cmp_eq_u32 vcc, {w}, v{t}\nv_cndmask_b32 v{sel+w}, v{t+3}, v{t+1}, vcc\nv_cndmask_b32 v{sel+4+w}, v{t+3}, v{t+2}, vcc')
    def afrag(dst, src, par, sel):
        for w in range(4): A(f'v_perm_b32 v{dst+w}, v{src}, v{src}, v{sel+4*par+w}')
    def tagreg(dst, addr, bits):
        A(f'v_bfe_u32 v{dst}, v{addr}, 4, 1\nv_lshlrev_b32 v{dst}, {bits-1}, v{dst}\nv_xor_b32 v{dst}, s3, v{dst}\nv_and_b32 v{dst}, {(1 << bits) - 1}, v{dst}')
    def tagmask(dst, addr):
        A(f'v_and_b32 v{dst}, 15, v{addr}\nv_cmp_eq_u32 vcc, 0, v{dst}\nv_mov_b32 v{dst}, 0\nv_cndmask_b32 v{dst}, v{dst}, v11, vcc')
    def poll(loads, y, T, t, hook=None, slp=0, part=None):
        n = len(loads)
        L, Lc, Ld = lab('again'), lab('chk'), lab('ok')
        full = lambda i: part if (part and i == n - 1) else -1
        def issue():
            for i, l in enumerate(loads): A((f's_mov_b64 exec, s[{48+2*i}:{49+2*i}]\n' if n > 1 else '') + l[0])
            if n > 1: A('s_mov_b64 exec, -1')
        if n > 1:
            for i in range(n): A(f's_mov_b64 s[{48+2*i}:{49+2*i}], {full(i)}')
        A(f's_mov_b32 s62, {SPIN}')
        issue()
        if hook: hook(n)
        A(f's_branch {Lc}\n{L}:')
        if slp or psleep: A(f's_sleep {slp or psleep}')
        issue()
        if n > 1:
            for i in range(n):
                A(f'v_and_b32 v{t}, v11, v{y+i}\nv_cmp_ne_u32 vcc, 0, v{t}\ns_cmp_lg_u64 vcc, 0\ns_cselect_b64 s[{48+2*i}:{49+2*i}], {full(i)}, 0')
        A(f's_sub_u32 s62, s62, 1\ns_cbranch_scc1 {Ld}\n{Lc}:\ns_waitcnt vmcnt(0)')
        for i, l in enumerate(loads): A(f'v_xor_b32 v{y+i}, v{l[1]}, v{T}')
        if n == 1: A(f'v_and_b32 v{t}, v11, v{y}')
        else:
            A(f'v_or3_b32 v{t}, v{y}, v{y+1}, v{y+2}')
            for i in range(3, n - 1, 2): A(f'v_or3_b32 v{t}, v{t}, v{y+i}, v{y+i+1}')
            A(f'v_bitop3_b32 v{t}, v{t}, v{y+n-1}, v11 bitop3:0xa8')
        A(f'v_cmp_ne_u32 vcc, 0, v{t}\ns_cbranch_vccnz {L}\n{Ld}:')
    def gsum(x, y, n, d):
        src = lambda i, r: f'v{y+i}' if r == 0 else f'v{x+4*i+r}'
        for i in range(0, n, 2):
            dd = d + 2 * i
            A(f'v_pk_add_f32 v[{dd+2}:{dd+3}], v[{x+4*i+2}:{x+4*i+3}], v[{x+4*i+6}:{x+4*i+7}]')
            for r in range(2): A(f'v_add_f32 v{dd+r}, {src(i, r)}, {src(i+1, r)}')
        for i in range(2, n, 2):
            for r in (2, 0): A(f'v_pk_add_f32 v[{d+r}:{d+r+1}], v[{d+r}:{d+r+1}], v[{d+2*i+r}:{d+2*i+r+1}]')
        A(f'v_permlane32_swap_b32 v{d}, v{d+2}\nv_permlane32_swap_b32 v{d+1}, v{d+3}')
        A(f'v_pk_add_f32 v[{d}:{d+1}], v[{d}:{d+1}], v[{d+2}:{d+3}]')
    def deep(load, n, sets, y, T, t, d):
        D = len(sets)
        L, J = lab('deep'), lab('join')
        oks = [lab('ok') for _ in sets]
        A(f's_mov_b32 s62, {SPIN}')
        for x in sets: load(x)
        A(f'{L}:')
        for x, ok in zip(sets, oks):
            A(f's_waitcnt vmcnt({n*(D-1)})')
            for i in range(n): A(f'v_xor_b32 v{y+i}, v{x+4*i}, v{T}')
            A(f'v_or3_b32 v{t}, v{y}, v{y+1}, v{y+2}')
            for i in range(3, n - 1, 2): A(f'v_or3_b32 v{t}, v{t}, v{y+i}, v{y+i+1}')
            A(f'v_bitop3_b32 v{t}, v{t}, v{y+n-1}, v11 bitop3:0xa8\nv_cmp_ne_u32 vcc, 0, v{t}\ns_cbranch_vccz {ok}')
            load(x)
        A(f's_sub_u32 s62, s62, 1\ns_cbranch_scc0 {L}')
        for x, ok in zip(sets, oks):
            A(f'{ok}:')
            gsum(x, y, n, d)
            if x != sets[-1]: A(f's_branch {J}')
        A(f'{J}:')
    def page():
        if pages: A('.p2align 12')
    def sum8(g):
        for i in (0, 2, 8, 10): A(f'v_pk_add_f32 v[{g+i}:{g+i+1}], v[{g+i}:{g+i+1}], v[{g+i+4}:{g+i+5}]')
        for i in (0, 2): A(f'v_pk_add_f32 v[{g+i}:{g+i+1}], v[{g+i}:{g+i+1}], v[{g+i+8}:{g+i+9}]')
        A(f'v_permlane32_swap_b32 v{g}, v{g+2}\nv_permlane32_swap_b32 v{g+1}, v{g+3}')
        A(f'v_pk_add_f32 v[{g}:{g+1}], v[{g}:{g+1}], v[{g+2}:{g+3}]')
    def ldsspin(reads, test, slp=0):
        L, Ld = lab('spin'), lab('spun')
        A(f's_mov_b32 s62, {SPIN}\n{L}:')
        if slp: A(f's_sleep {slp}')
        A(f'{reads}\ns_waitcnt lgkmcnt(0)\n{test}\ns_cbranch_vccz {Ld}\ns_sub_u32 s62, s62, 1\ns_cbranch_scc0 {L}\n{Ld}:')
    def stream(hooks, th, extra_at=None):
        for i in range(16):
            if i: A('s_addk_i32 s33, 0x2000\ns_bitset0_b32 s33, 17')
            if th and 2 * i >= th:
                ex = 1 if extra_at is not None and 2 * i - (th - 2) < extra_at <= 2 * i else 0
                A(f's_waitcnt vmcnt({th-2+ex})')
            for hf in range(2):
                A(f'buffer_load_dwordx4 v[{128+8*i+4*hf}:{131+8*i+4*hf}], v2, s[36:39], s33 offen offset:{128*hf} {kvf}')
                if 2 * i + hf + 1 in hooks: A(hooks[2 * i + hf + 1])

    hdr = open('cdna_kernels/' + NAME + '.s.ref').read().split('\n')
    for ln in hdr:
        if ln.startswith('; @launch'): A.raw(f'; @launch grid=(256,1,1) block=(512,1,1) lds={LDS_BYTES}'); break
        A.raw(ln)
    A.raw(f'.amdgcn_target "amdgcn-amd-amdhsa--gfx950"\n.text\n.globl {NAME}_kernel\n.p2align {12 if pages else 8}\n.p2align 8\n.type {NAME}_kernel,@function\n{NAME}_kernel:')

    if amp: ST(13)
    if span or diag: A('s_memrealtime s[98:99]')
    A(f'''s_load_dwordx16 s[4:19], s[0:1], 0
s_load_dwordx8 s[20:27], s[0:1], 64
s_getpc_b64 s[40:41]
L_pc:
v_lshrrev_b32 v1, 6, v0
s_lshr_b32 s30, s2, 3
v_readfirstlane_b32 s28, v1
v_and_b32 v0, 63, v0
s_lshl3_add_u32 s43, s30, s28
s_lshl_b32 s43, s43, 6
{'s_load_dword s42, s[40:41], s43' if pf == 1 else ''}
s_cmp_ge_u32 s2, 256
s_cbranch_scc1 L_exit
s_and_b32 s29, s2, 7
s_and_b32 s31, s30, 3
s_lshl2_add_u32 s31, s29, s31        ; head
s_lshr_b32 s32, s30, 2
v_lshrrev_b32 v3, 3, v0              ; lane >> 3
v_and_b32 v4, 7, v0
v_lshlrev_b32 v4, 4, v4              ; (lane & 7) * 16
v_lshl_add_u32 v2, v3, 8, v4
v_lshlrev_b32 v5, 4, v0              ; lane * 16
s_and_b32 s63, s28, 3
s_lshl3_add_u32 s33, s29, s32
s_add_u32 s33, s33, s63
s_and_b32 s33, s33, 63
s_lshl_b32 s33, s33, 11              ; first tile of this wave
s_lshl_b32 s34, s31, 6
s_add_u32 s34, s34, s32
s_add_u32 s34, s34, 56
s_lshl_b32 s34, s34, 17
s_mov_b32 s38, 0x20000
s_mov_b32 s39, 0x20000''')
    if diag: A('v_mov_b32 v7, 0')
    A(f'''s_cmp_lt_u32 s28, 4
s_cbranch_scc1 L_kwave
s_setprio 3
s_lshl_b32 s35, s32, 5
s_add_u32 s35, s35, s63
s_lshl_b32 s35, s35, 6
s_add_u32 s35, s35, s31
s_lshl_b32 s35, s35, 8
v_lshl_add_u32 v6, v3, 16, v4
v_add_u32 v12, 0x2000, v6
v_subrev_u32 v13, 12, v0
v_ashrrev_i32 v13, 31, v13
v_lshlrev_b32 v14, 2, v0
ds_write_b32 v14, v13 offset:{L_ML}
s_waitcnt lgkmcnt(0)
global_load_dwordx4 v[24:27], v5, s[4:5]
{'s_load_dword s42, s[40:41], s43' if pf == 2 else ''}
s_load_dword s3, s[26:27], {WS_E:#x}
s_add_u32 s10, s10, s35
s_addc_u32 s11, s11, 0''')
    for n in range(2):
        for hf in range(2): A(f'global_load_dwordx4 v[{64+8*n+4*hf}:{67+8*n+4*hf}], v{(6, 12)[n]}, s[10:11] offset:{128*hf} nt')
    A('s_barrier\ns_branch L_vwave')

    A(f'''L_kwave:
s_setprio 2
s_waitcnt lgkmcnt(0)
s_add_u32 s36, s6, s34
s_addc_u32 s37, s7, 0''')
    qload = 'global_load_dwordx4 v[16:19], v6, s[44:45] sc1'
    stream({1: 's_load_dword s42, s[40:41], s43' if pf == 2 else '', kpre: f's_load_dword s3, s[26:27], {WS_E:#x}\ns_barrier',
            8: f'''s_lshl_b32 s34, s31, 6
s_add_u32 s34, s34, s28
s_lshl_b32 s34, s34, 7
s_add_u32 s44, s26, s34
s_addc_u32 s45, s27, 0
v_lshl_add_u32 v6, v3, 10, v4''',
            qpos: '' if noq else qload}, thr, extra_at=None if noq else qpos)
    ST(1)
    A(f'''v_lshrrev_b32 v12, 5, v0             ; lane >> 5
v_and_b32 v13, 31, v0
v_lshlrev_b32 v13, 4, v13            ; (lane & 31) * 16
s_lshl_b32 s46, s28, 8
s_add_u32 s46, s46, {L_SCR}
s_lshl_b32 s34, s28, 6
v_lshrrev_b32 v14, 4, v0
v_lshlrev_b32 v14, 1, v14
v_lshrrev_b32 v15, 1, v4
v_add3_u32 v14, v14, v15, s34
v_mov_b32 v24, {L_ML}
v_mov_b32 v25, 1
s_lshl_b32 s34, s28, 2
v_mov_b32 v26, s34
s_waitcnt lgkmcnt(0)
s_add_u32 s3, s3, {EPOCH_STEP:#x}''')
    tagreg(8, 5, 4)
    A(f's_waitcnt vmcnt({min(gow, 32-qpos)})\nds_write_b32 v26, v25 offset:{L_ML+64}')
    ST(2)
    A(f's_mov_b32 s62, {SPIN}\nL_qchk:')
    for i in range(4): A(f'v_xor_b32 v{20+i}, v{16+i}, v8')
    A('v_or3_b32 v15, v20, v21, v22\nv_bitop3_b32 v15, v15, v23, 15 bitop3:0xa8\nv_cmp_ne_u32 vcc, 0, v15')
    A(('' if noq else 's_cbranch_vccnz L_qagain\n') + 'L_qok:')
    cold.append(lambda: A(f'L_qagain:\n{qload}\ns_sub_u32 s62, s62, 1\ns_waitcnt vmcnt(0)\ns_cbranch_scc0 L_qchk\ns_branch L_qok'))
    ST(3)
    A(f'''v_permlane32_swap_b32 v20, v22
v_permlane32_swap_b32 v21, v23
v_add_f32 v20, v20, v22
v_add_f32 v21, v21, v23
v_permlane16_swap_b32 v20, v21
v_add_f32 v20, v20, v21
v_add_f32_dpp v20, v20, v20 row_ror:8 {FULL}
v_cvt_pk_bf16_f32 v20, v20, v20
v_lshl_add_u32 v6, v12, 12, v13
ds_write_b16 v14, v20 offset:{L_Q}
s_mov_b64 exec, 1
s_waitcnt lgkmcnt(0)
ds_add_u32 v24, v25 offset:52
s_mov_b64 exec, -1''')
    ldsspin('ds_read_b32 v15, v24 offset:52', 'v_cmp_ne_u32 vcc, 4, v15')
    A(f'ds_read_b128 v[16:19], v4 offset:{L_Q}\nds_read_b128 v[20:23], v4 offset:{L_Q+128}\ns_waitcnt lgkmcnt(0)')
    for i0 in range(0, 16, 4):
        A(f's_waitcnt vmcnt({24-2*i0})')
        for e in range(8):
            for i in range(i0, i0 + 4):
                A(f'v_dot2_f32_bf16 v{32+i}, v{128+8*i+e}, v{16+e}, {"v%d" % (32+i) if e else 0}')
    for i in range(8):
        A(f'v_add_f32_dpp v{32+i}, v{32+i}, v{32+i} row_half_mirror row_mask:0xf bank_mask:0x5')
    for i in range(8):
        A(f'v_add_f32_dpp v{32+i}, v{40+i}, v{40+i} row_half_mirror row_mask:0xf bank_mask:0xa')
    A('s_mov_b32 vcc_lo, 0xcccccccc\ns_mov_b32 vcc_hi, 0xcccccccc')
    for i in range(4): A(f'v_cndmask_b32 v{40+i}, v{36+i}, v{32+i}, vcc\nv_cndmask_b32 v{32+i}, v{32+i}, v{36+i}, vcc')
    for i in range(4): A(f'v_add_f32_dpp v{32+i}, v{40+i}, v{32+i} quad_perm:[2,3,0,1] {FULL}')
    A('s_mov_b32 vcc_lo, 0xaaaaaaaa\ns_mov_b32 vcc_hi, 0xaaaaaaaa')
    for i in range(2): A(f'v_cndmask_b32 v{40+i}, v{34+i}, v{32+i}, vcc\nv_cndmask_b32 v{32+i}, v{32+i}, v{34+i}, vcc')
    for i in range(2): A(f'v_add_f32_dpp v{32+i}, v{40+i}, v{32+i} quad_perm:[1,0,3,2] {FULL}')
    r2 = 'v_cvt_pk_bf16_f32 v34, v32, v33\nv_lshlrev_b32 v32, 16, v34\nv_and_b32 v33, 0xffff0000, v34'
    if not nosr & 1: A(r2)
    A(f'v_mul_f32 v32, {SCALE:#x}, v32\nv_mul_f32 v33, {SCALE:#x}, v33')
    if not nosr & 2: A(r2)
    A('v_max_f32 v34, v32, v33')
    wred('v_max_f32', 34, 36)
    A(f'''v_sub_f32 v35, v32, v34
v_sub_f32 v36, v33, v34
v_mul_f32 v35, {LOG2E:#x}, v35
v_mul_f32 v36, {LOG2E:#x}, v36
v_exp_f32 v35, v35
v_exp_f32 v36, v36
v_add_f32 v35, v35, v36''')
    wred('v_add_f32', 35, 36)
    ST(11)
    A(f's_lshl_b32 s34, s29, 8\ns_add_u32 s34, s34, {WS_X}\nv_lshrrev_b32 v10, 2, v13\nv_add_u32 v10, s34, v10\nglobal_load_dword v9, v10, s[26:27] sc1')
    if noml: A('s_cmp_ge_u32 s30, 0\ns_cbranch_scc1 L_mlok')
    A(f'''v_min_u32 v34, -2, v34
v_min_u32 v35, -2, v35
v_lshl_add_u32 v37, v26, 1, v24
ds_write_b64 v37, v[34:35]
s_cmp_lg_u32 s28, 0
s_cbranch_scc1 L_mlwait''')
    ldsspin('ds_read_b128 v[40:43], v24\nds_read_b128 v[44:47], v24 offset:16',
            'v_max3_u32 v37, v40, v41, v42\nv_max3_u32 v37, v37, v43, v44\nv_max3_u32 v37, v37, v45, v46\nv_max_u32 v37, v37, v47\nv_cmp_eq_u32 vcc, -1, v37')
    ST(4)
    A(f'''s_lshl_b32 s35, s31, 8
s_add_u32 s35, s35, {WS_ML}
v_max3_f32 v48, v40, v42, v44
v_max_f32 v48, v48, v46''')
    for w in range(4): A(f'v_sub_f32 v{40+2*w}, v{40+2*w}, v48')
    for w in range(4): A(f'v_mul_f32 v{40+2*w}, {LOG2E:#x}, v{40+2*w}')
    for w in range(4): A(f'v_exp_f32 v{40+2*w}, v{40+2*w}')
    A('v_mov_b32 v49, s3\nv_mov_b32 v51, s3\nv_mul_f32 v50, v40, v41')
    for w in range(1, 4): A(f'v_fmac_f32 v50, v{40+2*w}, v{41+2*w}')
    A(f'''s_lshl4_add_u32 s34, s32, s35
v_mov_b32 v37, s34
s_mov_b64 exec, 1
global_store_dwordx4 v37, v[48:51], s[26:27] sc1
s_mov_b64 exec, -1''')
    L, Ld = lab('mg'), lab('mgd')
    A(f's_mov_b32 s62, {SPIN}\n{L}:\ns_sleep {mlsleep}\ns_load_dwordx16 s[64:79], s[26:27], s35 glc\ns_load_dwordx16 s[80:95], s[26:27], s35 offset:64 glc\ns_waitcnt lgkmcnt(0)')
    A('s_and_b32 s34, s65, s3\ns_or_b32 s47, s65, s3')
    for i in range(1, 16): A(f's_and_b32 s34, s34, s{65+2*i}\ns_or_b32 s47, s47, s{65+2*i}')
    A(f's_cmp_eq_u32 s34, s47\ns_cbranch_scc1 {Ld}\ns_sub_u32 s62, s62, 1\ns_cbranch_scc0 {L}\n{Ld}:')
    A('v_mov_b32 v34, s64')
    for c in range(1, 8): A(f'v_max_f32 v34, s{64+4*c}, v34')
    for c in range(8): A(f'v_sub_f32 v{40+c}, s{64+4*c}, v34')
    for c in range(8): A(f'v_mul_f32 v{40+c}, {LOG2E:#x}, v{40+c}')
    for c in range(8): A(f'v_exp_f32 v{40+c}, v{40+c}')
    A('v_mul_f32 v35, s66, v40')
    for c in range(1, 8): A(f'v_fmac_f32 v35, s{66+4*c}, v{40+c}')
    A(f'''v_rcp_f32 v35, v35
v_min_u32 v34, -2, v34
v_min_u32 v35, -2, v35
ds_write_b64 v24, v[34:35] offset:32
s_branch L_mlok
L_mlwait:''')
    ldsspin('ds_read_b64 v[34:35], v24 offset:32', 'v_max_u32 v37, v34, v35\nv_cmp_eq_u32 vcc, -1, v37', 1)
    A('L_mlok:')
    ST(5)
    A(f'''v_sub_f32 v32, v32, v34
v_sub_f32 v33, v33, v34
v_mul_f32 v32, {LOG2E:#x}, v32
v_mul_f32 v33, {LOG2E:#x}, v33
v_exp_f32 v32, v32
v_exp_f32 v33, v33
s_lshl_b32 s34, s28, 8
v_lshl_add_u32 v36, v0, 2, s34
v_mul_f32 v32, v32, v35
v_mul_f32 v33, v33, v35
v_cvt_pk_bf16_f32 v32, v32, v33
ds_write_b32 v36, v32 offset:{L_P}
''')
    if not cfgy: A(f'''s_cmp_lt_u32 s28, 2
s_cbranch_scc1 L_two
s_cmp_eq_u32 s28, 2
s_cselect_b32 s64, s16, s18
s_cselect_b32 s65, s17, s19
s_mov_b32 s66, {512*2752}
s_lshl_b32 s34, s30, 4
v_lshrrev_b32 v61, 2, v0
v_add_u32 v61, s34, v61
v_mul_u32_u24 v61, 2752, v61
v_and_b32 v62, 3, v0
v_lshlrev_b32 v62, 7, v62
v_min_u32 v62, 348, v62
s_mul_i32 s34, s29, 352
v_add3_u32 v61, v61, v62, s34
s_branch L_tj
L_two:
s_mov_b32 s64, s12
s_mov_b32 s65, s13
s_mov_b32 s66, {4096*1024}
s_lshl_b32 s34, s29, 5
s_add_u32 s34, s34, s30
s_lshl1_add_u32 s34, s34, s28
s_lshl_b32 s34, s34, 13
v_lshl_add_u32 v61, v0, 7, s34
L_tj:
s_mov_b32 s67, 0x20000''')
    if cfgy: A(f'''s_bitcmp1_b32 s28, 0
s_cselect_b32 s64, s18, s16
s_cselect_b32 s65, s19, s17
s_mov_b32 s66, {512*2752}
s_mov_b32 s67, 0x20000
s_and_b32 s34, s30, 15
s_lshr_b32 s35, s28, 1
s_lshl1_add_u32 s34, s34, s35
s_lshl_b32 s34, s34, 4
v_lshrrev_b32 v61, 2, v0
v_add_u32 v61, s34, v61
v_mul_u32_u24 v61, 2752, v61
v_and_b32 v62, 3, v0
v_lshlrev_b32 v62, 7, v62
v_min_u32 v62, 348, v62
s_mul_i32 s34, s29, 352
v_add3_u32 v61, v61, v62, s34''')
    def touch(when, role=None):
        if cfgy:
            if when == guw and role != 'W':
                Ls = lab('nt')
                if role is None: A(f's_cmp_lt_u32 s30, 16\ns_cbranch_scc1 {Ls}')
                A(f'buffer_load_dword v62, v61, s[64:67], 0 offen {tf}\n{Ls}:')
            return
        lo, hi = twhen[0] == when, twhen[1] == when
        if not (lo or hi): return
        Ls = lab('nt')
        if not (lo and hi): A(f's_cmp_lt_u32 s28, 2\ns_cbranch_scc{0 if lo else 1} {Ls}')
        A(f'buffer_load_dword v62, v61, s[64:67], 0 offen {tf}\n{Ls}:')
    ST(6)
    A(f'''s_getreg_b32 s34, hwreg(HW_REG_XCC_ID, 0, 4)
s_andn2_b32 s35, s3, 31
s_or_b32 s34, s34, s35
s_or_b32 s35, s34, 16
s_waitcnt vmcnt(0)
v_cmp_eq_u32 s[48:49], s34, v9
v_cmp_eq_u32 s[50:51], s35, v9
s_or_b32 s35, s48, s50
s_bcnt1_i32_b32 s48, s48
s_bcnt1_i32_b32 s50, s50
s_cmp_gt_u32 s50, s48
s_cselect_b32 s34, 0x2000, 0
v_mov_b32 v10, s34
s_andn2_b32 s35, 0xffff, s35
s_cselect_b32 s34, 0, 1
v_mov_b32 v9, s34
ds_write_b32 v24, v9 offset:56''')
    if diag: A('s_sub_u32 s34, s50, s48\ns_add_u32 s34, s34, s98\nv_writelane_b32 v7, s34, 12')
    touch(0)
    if wo0: A(f'''s_lshl_b32 s34, s29, 5
s_add_u32 s34, s34, s30
s_lshl2_add_u32 s34, s34, s28
s_lshl_b32 s34, s34, 12
v_lshl_add_u32 v63, v0, 7, s34
s_mov_b32 exec_hi, 0
global_load_dword v62, v63, s[12:13] {tf}
s_mov_b32 exec_hi, -1''')
    tagreg(8, 5, 8)
    A(f'''v_mov_b32 v11, 0xff
s_lshl_b32 s47, s28, 13
s_add_u32 s47, s47, {L_W}
s_waitcnt lgkmcnt(0)''')
    if pol is not None: A(f's_lshr_b32 s34, s29, 2\ns_xor_b32 s34, s34, {pol}\ns_lshl_b32 s34, s34, 13\nv_mov_b32 v10, s34')
    if notail: A('s_cmp_ge_u32 s30, 0\ns_cbranch_scc1 L_norole')
    A('s_cmp_ge_u32 s30, 16\ns_cbranch_scc1 L_notw')
    def bars(early=None, role='x'):
        A('s_barrier')
        touch(1, role)
        if early: early()
        A('s_barrier\ns_barrier')
        if trig and role != 'W':
            L, Ld = lab('trig'), lab('trigd')
            A(f'''s_lshl_b32 s34, s29, 15
v_lshl_add_u32 v125, v13, 6, s34
s_mov_b32 s62, {SPIN}
{L}:
global_load_ubyte v126, v125, s[26:27] offset:512 sc1
s_and_b32 s34, s3, 0xff
s_waitcnt vmcnt(0)
v_cmp_eq_u32 vcc, s34, v126
s_bcnt1_i32_b32 s34, vcc_lo
s_cmp_ge_u32 s34, {trig}
s_cbranch_scc1 {Ld}
s_sleep 2
s_sub_u32 s62, s62, 1
s_cbranch_scc0 {L}
{Ld}:''')
        touch(2, role)
        ST(7)

    A(f'''s_lshl2_add_u32 s34, s29, s28
s_lshl_b32 s35, s34, 13
s_add_u32 s35, s35, 512
s_add_u32 s44, s26, s35
s_addc_u32 s45, s27, 0
s_lshl_b32 s34, s34, 17
s_lshl_b32 s35, s30, 6
s_add_u32 s34, s34, s35
s_add_u32 s40, s12, s34
s_addc_u32 s41, s13, 0
s_mov_b32 s42, {127*1024+64}
s_mov_b32 s43, 0x20000
v_lshrrev_b32 v14, 4, v0             ; g
v_bfe_u32 v15, v0, 2, 2
v_lshl_add_u32 v15, v14, 3, v15
v_and_b32 v32, 1, v14
v_lshlrev_b32 v33, 1, v32
v_and_b32 v34, 3, v0
v_xor_b32 v33, v33, v34
v_lshlrev_b32 v33, 4, v33
v_lshl_add_u32 v15, v15, 10, v33
v_lshrrev_b32 v33, 2, v0
v_lshlrev_b32 v33, 6, v33
v_lshl_add_u32 v33, v34, 3, v33
v_lshl_add_u32 v33, v32, 5, v33
v_add_u32 v33, s47, v33
v_xor_b32 v34, 32, v33
v_lshrrev_b32 v35, 1, v13
v_lshl_add_u32 v35, v12, 2, v35
v_add_u32 v35, s46, v35
v_lshl_add_u32 v36, v14, 4, s46
s_lshl_b32 s34, s28, 2
s_add_u32 s34, s34, {L_RED}
v_add_u32 v37, s34, v13
s_and_b32 s34, s29, 4
s_add_u32 s34, s34, s29
s_lshl4_add_u32 s34, s34, s30
s_lshl_b32 s34, s34, 7
s_add_u32 s34, s34, {WS_B}
v_lshrrev_b32 v38, 2, v13
v_lshl_add_u32 v38, v12, 13, v38
v_add_u32 v38, s34, v38''')
    tagreg(9, 38, 8)
    tagmask(10, 38)
    A('s_and_b32 s60, s30, 1\ns_lshl_b32 s61, s60, 16\ns_lshl_b32 s60, s60, 12')
    def wl(a, b):
        for n in range(a, b):
            A(f's_xor_b32 s34, s60, {1024*n}\ns_add_u32 m0, s47, s34\ns_xor_b32 s34, s61, {(32*(n>>1)+4*(n&1))*1024}')
            A(f'buffer_load_dwordx4 v15, s[40:43], s34 offen {wf} lds')
    ws_ = wsplit if cfgy else 0
    bars(lambda: wl(0, ws_), 'W')
    wl(ws_, 8)
    def whook(n):
        A(f's_waitcnt vmcnt({n})')
        ST(10)
        for t in range(4):
            for cb in range(2):
                for hf in range(2):
                    r = 128 + 8 * t + 4 * cb + 2 * hf
                    A(f'ds_read_b64_tr_b16 v[{r}:{r+1}], v{33+cb} offset:{1024*(2*t+hf)}')
    poll([(f'global_load_dwordx4 v[{96+4*n}:{99+4*n}], v6, s[44:45] offset:{1024*n} sc1', 96 + 4 * n) for n in range(4)], 120, 8, 39, hook=whook)
    ST(8)
    gsum(96, 120, 4, 16)
    A('v_cvt_pk_bf16_f32 v16, v16, v17\nds_write_b32 v35, v16')
    for t in range(4): A(f'ds_read_b128 v[{20+4*t}:{23+4*t}], v36 offset:{64*t}')
    A('s_mov_b32 vcc_lo, 0xffff0000\ns_mov_b32 vcc_hi, 0xffff0000')
    for t in range(4):
        A(f's_waitcnt lgkmcnt({3-t})')
        for cb in range(2):
            c = f'v[{40+4*cb}:{43+4*cb}]'
            A(f'v_mfma_f32_16x16x32_bf16 {c}, v[{20+4*t}:{23+4*t}], v[{128+8*t+4*cb}:{131+8*t+4*cb}], {c if t else 0}')
    A(f'''s_mov_b32 exec_hi, 0
v_cndmask_b32 v40, v40, v44, vcc
ds_write_b32 v37, v40
s_mov_b32 exec_hi, -1
s_cmp_lg_u32 s28, 0
s_waitcnt lgkmcnt(0)
s_barrier
s_cbranch_scc1 L_wend
ds_read_b128 v[16:19], v13 offset:{L_RED}
s_waitcnt lgkmcnt(0)
v_pk_add_f32 v[16:17], v[16:17], v[18:19]
v_add_f32 v16, v16, v17
v_bfi_b32 v16, v10, v9, v16''')
    A('global_store_dword v38, v16, s[26:27] sc1\nL_wend:')
    finish()

    A(f'''L_notw:
s_cmp_lt_u32 s30, 27
s_cbranch_scc1 L_rolef
s_cmp_lt_u32 s30, 28
s_cbranch_scc1 L_norole
s_cmp_lg_u32 s28, 0
s_cbranch_scc1 L_norole
s_lshl2_add_u32 s63, s29, s30
s_sub_u32 s63, s63, 28
s_lshl_b32 s34, s63, 6
s_add_u32 s34, s34, {WS_C}
v_lshrrev_b32 v14, 2, v0
v_and_b32 v15, 12, v14
v_add_u32 v14, v14, v15
v_and_b32 v15, 3, v0
v_lshl_add_u32 v44, v14, 11, v10
v_lshl_add_u32 v44, v15, 4, v44
v_add_u32 v44, s34, v44''')
    for n in range(1, 6): A(f'v_add_u32 v{44+n}, {65536*n}, v44')
    A(f'''s_lshr_b32 s34, s63, 2
s_lshl_b32 s34, s34, 6
s_and_b32 s35, s63, 1
s_lshl_b32 s35, s35, 5
s_add_u32 s34, s34, s35
s_and_b32 s35, s63, 2
s_lshl1_add_u32 s34, s35, s34
v_lshrrev_b32 v14, 4, v0
v_lshl_add_u32 v14, v15, 3, v14
v_add_u32 v14, s34, v14
v_lshlrev_b32 v51, 1, v14
v_lshlrev_b32 v50, 2, v14
v_add_u32 v50, {WS_H}, v50
v_add_u32 v50, v50, v10
v_mov_b32 v52, {WS_E}
v_mov_b32 v53, s3''')
    tagreg(9, 50, 8)
    for x in (96, 128, 152, 176)[:max(rdep, 1)]: A(f'v_mov_b32 v{x+20}, v8\nv_mov_b32 v{x+21}, 0\nv_mov_b32 v{x+22}, 0\nv_mov_b32 v{x+23}, 0')
    bars()
    lds = [(f'global_load_dwordx4 v[{96+4*n}:{99+4*n}], v{44+n}, s[26:27] sc1', 96 + 4 * n) for n in range(6)]
    for l in lds[:5]: A(l[0])
    A(f's_mov_b64 exec, 0xffffff\n{lds[5][0]}\ns_mov_b64 exec, -1')
    poll([('global_load_dword v41, v50, s[26:27] sc1', 41)], 40, 9, 42, slp=1)
    ST(9)
    if rdep:
        def rload(x):
            for n in range(6): A(('s_mov_b64 exec, 0xffffff\n' if n == 5 else '') + f'global_load_dwordx4 v[{x+4*n}:{x+4*n+3}], v{44+n}, s[26:27] sc1')
            A('s_mov_b64 exec, -1')
        deep(rload, 6, [96, 128, 152, 176][:rdep], 120, 8, 42, 16)
        A('s_nop 1')
        ST(8)
    else:
        poll(lds, 120, 8, 42, part=0xffffff)
        ST(8)
        gsum(96, 120, 6, 16)
    A(f'''v_permlane16_swap_b32 v16, v17
v_add_f32 v16, v16, v17
v_add_f32_dpp v16, v16, v16 row_ror:8 {FULL}
v_add_f32_dpp v16, v16, v16 row_ror:4 {FULL}''')
    rnd(16)
    A(f'''v_add_f32 v16, v16, v40
v_cvt_pk_bf16_f32 v16, v16, v16
s_mov_b32 exec_lo, 0x000f000f
s_mov_b32 exec_hi, 0x000f000f
global_store_short v51, v16, s[22:23]
s_cmp_lg_u32 s63, 0
s_cbranch_scc1 L_rend
s_mov_b64 exec, 1
global_store_dword v52, v53, s[26:27] sc1
L_rend:''')
    if amp:
        ST(14)
        A(f'''s_memrealtime s[96:97]
s_waitcnt lgkmcnt(0)
s_sub_u32 s98, s100, s98
s_mul_i32 s98, s98, {amp[2]}
s_cmp_lg_u32 s29, {amp[3] if amp[3] >= 0 else 's29'}
s_cbranch_scc1 L_ampd
L_amp:
s_memrealtime s[100:101]
s_waitcnt lgkmcnt(0)
s_sub_u32 s100, s100, s96
s_cmp_lt_u32 s100, s98
s_cbranch_scc1 L_amp
L_ampd:''')
    finish(True)
    A('L_norole:')
    if (guw == 2 if cfgy else 2 in twhen): bars()
    else:
        A('s_barrier'); touch(1, 'x')
    finish()

    page()
    A(f'''L_rolef:
s_mul_i32 s63, s29, 11
s_add_u32 s63, s63, s30
s_sub_u32 s63, s63, 16
s_cmp_ge_u32 s63, 86
s_cbranch_scc1 L_norole
s_mul_i32 s34, s28, {128*2752}
s_lshl_b32 s35, s63, 5
s_add_u32 s34, s34, s35
s_add_u32 s36, s16, s34
s_addc_u32 s37, s17, 0
s_mov_b32 s38, {127*2752+32}
s_mov_b32 s39, 0x20000
s_add_u32 s40, s18, s34
s_addc_u32 s41, s19, 0
s_mov_b32 s42, {127*2752+32}
s_mov_b32 s43, 0x20000
s_lshl_b32 s34, s63, 14
s_lshl_b32 s35, s28, 8
s_add_u32 s34, s34, s35
s_add_u32 s20, s20, s34
s_addc_u32 s21, s21, 0
s_add_u32 s4, s4, s35
s_addc_u32 s5, s5, 0
s_lshl_b32 s35, s28, 9
s_add_u32 s34, s35, {WS_B+4096}
s_add_u32 s44, s26, s34
s_addc_u32 s45, s27, 0
v_lshl_add_u32 v6, v12, 14, v13
v_add_u32 v6, v6, v10
v_bfe_u32 v14, v0, 3, 2
v_lshlrev_b32 v14, 3, v14
v_lshl_add_u32 v14, v12, 2, v14
v_bfe_u32 v15, v0, 1, 2
v_add_u32 v14, v14, v15
v_mul_u32_u24 v14, 2752, v14
v_and_b32 v15, 1, v0
v_lshl_add_u32 v15, v15, 4, v14
v_lshl_add_u32 v33, v0, 3, s47
v_lshl_add_u32 v34, v3, 10, v4
v_add_u32 v35, 0x2000, v34           ; rows 8..15
v_lshrrev_b32 v36, 1, v13
v_lshl_add_u32 v36, v12, 2, v36
s_add_u32 s34, s35, {WS_H}
v_lshl_add_u32 v39, v36, 1, s34
v_add_u32 v37, s46, v36
v_and_b32 v38, 15, v0
v_lshrrev_b32 v14, 4, v0
v_lshl_add_u32 v56, v14, 4, s46
s_lshl_b32 s34, s28, 2
v_lshl_add_u32 v57, v38, 5, s34
v_lshl_add_u32 v60, v12, 4, s34
v_bfe_u32 v58, v0, 2, 1
v_lshl_add_u32 v58, v58, 3, v3
v_lshlrev_b32 v58, 5, v58
s_andn2_b32 s34, s63, 3
s_add_u32 s34, s34, s63
s_lshl2_add_u32 s34, s34, s28
s_lshl_b32 s34, s34, 9
s_add_u32 s34, s34, {WS_C}
v_lshl_add_u32 v59, v14, 7, v4
v_add_u32 v59, s34, v59
v_add_u32 v38, 0x2000, v59
v_mov_b32 v44, 0x3f803f80
v_mov_b32 v45, 0x3f803f80
v_mov_b32 v46, 0x3f803f80
v_mov_b32 v47, 0x3f803f80
v_mov_b32 v63, {L_H+512}
s_mov_b32 s60, 1
s_mov_b32 s61, 1''')
    selectors(48, 40)
    def dloads(x=True):
        if x: A('global_load_dword v32, v36, s[4:5]')
        for a in range(2):
            for hf in range(2): A(f'global_load_dwordx4 v[{160+8*a+4*hf}:{163+8*a+4*hf}], v{34+a}, s[20:21] offset:{128*hf} nt')
    dp = dpos if cfgy else ('bar1' if dearly else 'first')
    if dp == 'mid': dloads()
    bars(dloads if dp == 'bar1' else None)
    if dp == 'first': dloads()
    if dp == 'last': A('global_load_dword v32, v36, s[4:5]')
    for m in range(2):
        for t in range(4):
            A(f's_add_u32 m0, s47, {4096*m+1024*t}\ns_mov_b32 s34, {32*t*2752}')
            A(f'buffer_load_dwordx4 v15, s[{36+4*m}:{39+4*m}], s34 offen {wf} lds')
    if dp == 'last': dloads(False)
    def fhook(n):
        A(f's_waitcnt vmcnt({n + (4 if dp == "last" else 0)})')
        ST(10)
        for m in range(2):
            for t in range(4):
                for hf in range(2):
                    r = 128 + 16 * m + 4 * t + 2 * hf
                    A(f'ds_read_b64_tr_b16 v[{r}:{r+1}], v33 offset:{4096*m+1024*t+512*hf}')
        A('v_and_b32 v41, 0xffff0000, v32\nv_lshlrev_b32 v40, 16, v32\ns_waitcnt lgkmcnt(0)')
        gemv(lambda t: 44)
        A(f'''s_mov_b64 exec, 0xffff
ds_write2_b32 v57, v64, v68 offset0:{L_P//4} offset1:{L_P//4+4}
s_mov_b64 exec, -1
s_waitcnt lgkmcnt(0)
s_barrier
ds_read_b128 v[16:19], v58 offset:{L_P}
ds_read_b128 v[20:23], v58 offset:{L_P+16}
s_waitcnt lgkmcnt(0)
v_pk_add_f32 v[16:17], v[16:17], v[18:19]
v_pk_add_f32 v[20:21], v[20:21], v[22:23]
v_add_f32 v46, v16, v17
v_add_f32 v47, v20, v21
v_add_u32 v57, {L_H}, v57''')
    def gemv(a, between=None):
        for t in range(4):
            if between: between(t)
            for m in range(2):
                c = f'v[{64+4*m}:{67+4*m}]'
                A(f'v_mfma_f32_16x16x32_bf16 {c}, v[{a(t)}:{a(t)+3}], v[{128+16*m+4*t}:{131+16*m+4*t}], {c if t else 0}')
    if fdep:
        def fload(x):
            for n in range(4): A(f'global_load_dwordx4 v[{x+4*n}:{x+4*n+3}], v6, s[44:45] offset:{2048*n-4096} sc1')
        if ftrig:
            fload(96)
            A('s_and_b32 s34, s29, 4\ns_add_u32 s34, s34, s29\ns_lshl_b32 s34, s34, 11\nv_and_b32 v9, 1, v0\nv_lshl_add_u32 v9, v9, 4, s34\nv_add_u32 v9, v9, v10')
            poll([('global_load_dword v124, v9, s[44:45] offset:-4096 sc1', 124)], 120, 8, 42, hook=lambda n: fhook(5), slp=1)
        else: fhook(0)
        deep(fload, 4, [96, 176, 192, 208][:fdep], 120, 8, 42, 16)
        ST(8)
    else:
        poll([(f'global_load_dwordx4 v[{96+4*n}:{99+4*n}], v6, s[44:45] offset:{2048*n-4096} sc1', 96 + 4 * n) for n in range(4)], 120, 8, 42, hook=fhook)
        ST(8)
        gsum(96, 120, 4, 16)
    A(f'''v_cvt_pk_bf16_f32 v18, v16, v17
v_lshlrev_b32 v16, 16, v18
v_and_b32 v17, 0xffff0000, v18
v_pk_add_f32 v[16:17], v[16:17], v[40:41]
v_cvt_pk_bf16_f32 v18, v16, v17
ds_write_b32 v37, v18''')
    for t in range(4): A(f'ds_read_b128 v[{72+4*t}:{75+4*t}], v56 offset:{64*t}')
    A(f'''v_dot2_f32_bf16 v16, v18, v44, 0
v_dot2_f32_bf16 v17, v18, v18, 0
s_cmp_eq_u32 s63, 0
s_cbranch_scc1 L_puth
L_noh:
v_permlane32_swap_b32 v16, v17
v_add_f32 v16, v16, v17''')
    cold.append(lambda: A('''L_puth:
v_lshl_or_b32 v42, v18, 16, v8
v_and_b32 v43, 0xffff0000, v18
v_or_b32 v43, v43, v8
global_store_dwordx2 v39, v[42:43], s[26:27] sc1
v_add_u32 v39, 0x2000, v39
global_store_dwordx2 v39, v[42:43], s[26:27] sc1
s_branch L_noh'''))
    for r in (8, 4): A(f'v_add_f32_dpp v16, v16, v16 row_ror:{r} {FULL}')
    def between(t):
        if t == 1: A(f'v_add_f32_dpp v16, v16, v16 row_ror:2 {FULL}')
        if t == 2: A(f'v_add_f32_dpp v16, v16, v16 row_ror:1 {FULL}\nv_mov_b32 v17, v16')
        if t == 3: A('v_permlane16_swap_b32 v16, v17\nv_add_f32 v16, v16, v17')
        A(f's_waitcnt lgkmcnt({3-t})')
    gemv(lambda t: 72 + 4 * t, between)
    A(f'''s_mov_b64 exec, s[60:61]
ds_write_b32 v60, v16 offset:{L_H+512}
s_mov_b64 exec, 0xffff
ds_write2_b32 v57, v64, v68 offset0:0 offset1:4
s_mov_b64 exec, -1
s_waitcnt lgkmcnt(0)''')
    ST(9)
    A(f'''s_barrier
ds_read_b128 v[24:27], v63
ds_read_b128 v[28:31], v63 offset:16
ds_read_b128 v[16:19], v58 offset:{L_H}
ds_read_b128 v[20:23], v58 offset:{L_H+16}
v_mov_b32 v32, {EPS:#x}
s_waitcnt lgkmcnt(2)
v_pk_add_f32 v[24:25], v[24:25], v[26:27]
v_pk_add_f32 v[28:29], v[28:29], v[30:31]
v_add_f32 v24, v24, v25
v_add_f32 v28, v28, v29
v_mul_f32 v24, 0xbb000000, v24       ; -mean
v_fmamk_f32 v28, v28, 0x3b000000, v32
v_fma_f32 v28, -v24, v24, v28
v_max_f32 v28, v28, v32
v_rsq_f32 v28, v28
s_waitcnt lgkmcnt(0)
v_pk_add_f32 v[16:17], v[16:17], v[18:19]
v_pk_add_f32 v[20:21], v[20:21], v[22:23]
v_fmac_f32 v16, v24, v46
v_fmac_f32 v20, v24, v47
v_add_f32 v16, v16, v17
v_add_f32 v20, v20, v21
v_mul_f32 v16, v16, v28              ; gate
v_mul_f32 v17, {LOG2E ^ 0x80000000:#x}, v16
v_exp_f32 v17, v17
v_mul_f32 v20, v20, v28              ; up
v_add_f32 v17, 1.0, v17
v_rcp_f32 v17, v17
v_mul_f32 v16, v16, v20
v_mul_f32 v16, v16, v17
v_mov_b32 v17, v16
v_mov_b32_dpp v17, v16 row_half_mirror row_mask:0xf bank_mask:0x5
v_mov_b32_dpp v16, v16 row_half_mirror row_mask:0xf bank_mask:0xa
v_cvt_pk_bf16_f32 v16, v16, v17''')
    for a in range(2): afrag(20 + 4 * a, 16, a, 48)
    for a in range(2):
        for hf in range(2):
            c = f'v[{64+4*hf}:{67+4*hf}]'
            A(f'v_mfma_f32_16x16x32_bf16 {c}, v[{20+4*a}:{23+4*a}], v[{160+8*a+4*hf}:{163+8*a+4*hf}], {c if a else 0}')
    for r in range(4): A(f'v_permlane32_swap_b32 v{64+r}, v{68+r}')
    for r in range(4): A(f'v_add_f32_dpp v{64+r}, v{68+r}, v{64+r} row_ror:8 {FULL}')
    A('v_bfi_b32 v64, v11, v8, v64')
    A(f'''s_mov_b32 exec_lo, 0x00ff00ff
s_mov_b32 exec_hi, 0x00ff00ff
global_store_dwordx4 v59, v[64:67], s[26:27] sc1''')
    A('global_store_dwordx4 v38, v[64:67], s[26:27] sc1')
    finish()

    page()
    A(f'''L_vwave:
s_add_u32 s36, s8, s34
s_addc_u32 s37, s9, 0
s_lshl3_add_u32 s35, s31, s32
s_lshl_b32 s35, s35, 10
s_add_u32 s44, s26, s35
s_addc_u32 s45, s27, 0
v_mov_b32 v56, {L_ML}
s_lshr_b32 s56, s2, 6
s_lshl_b32 s56, s56, 7
s_and_b32 s35, s2, 63
s_add_u32 s56, s56, s35
s_lshl_b32 s56, s56, 7
s_add_u32 s56, s56, {WS_PR}
s_cmp_lg_u32 s28, 5
s_cbranch_scc1 L_nowarm
s_load_dword s54, s[26:27], s56 glc
s_load_dword s55, s[26:27], s56 offset:0x2000 glc
L_nowarm:''')
    ST(7)
    selectors(40, 28)
    A(f'''s_lshl_b32 s34, s63, 10
s_add_u32 s34, s34, {L_OP}
v_lshrrev_b32 v12, 5, v0
v_lshl_add_u32 v12, v12, 9, s34
v_lshl_add_u32 v12, v4, 2, v12
v_bfe_u32 v13, v0, 4, 1
v_lshl_add_u32 v12, v13, 5, v12
v_lshlrev_b32 v14, 3, v0
s_lshl_b32 s34, s32, 5
s_add_u32 s34, s34, s63
s_lshl_b32 s34, s34, 2
v_lshl_add_u32 v6, v3, 4, s34
v_mov_b32 v57, 1
s_waitcnt vmcnt(4)''')
    ST(1)
    layernorm(24, 28, 24)
    A(f'ds_write_b128 v5, v[24:27] offset:{L_H}\ns_waitcnt lgkmcnt(0)\nds_read_b32 v48, v6 offset:{L_H}\ns_add_u32 s3, s3, {EPOCH_STEP:#x}')
    tagreg(8, 14, 4)
    A('s_waitcnt lgkmcnt(0)')
    for n in range(2): afrag(24 + 4 * n, 48, n, 40)
    A('s_waitcnt vmcnt(0)')
    for n in range(2):
        for hf in range(2):
            c = f'v[{16+4*hf}:{19+4*hf}]'
            A(f'v_mfma_f32_16x16x32_bf16 {c}, v[{24+4*n}:{27+4*n}], v[{64+8*n+4*hf}:{67+8*n+4*hf}], {c if n else 0}')
    def part_write():
        A(f'''s_mov_b32 exec_lo, 0x00ff00ff
s_mov_b32 exec_hi, 0xff00ff00
ds_write2_b64 v12, v[16:17], v[20:21] offset0:0 offset1:1
ds_write2_b64 v12, v[18:19], v[22:23] offset0:2 offset1:3''')
    def part_sum(off):
        for n in range(4): A(f'ds_read_b128 v[{16+4*n}:{19+4*n}], v5 offset:{L_OP+1024*n}')
        A('s_waitcnt lgkmcnt(0)')
        sum8(16)
    part_write()
    A(f'''s_mov_b64 exec, 1
s_waitcnt lgkmcnt(0)
ds_add_u32 v56, v57 offset:48
s_mov_b64 exec, -1
s_cmp_lg_u32 s28, {99 if noq else 4}
s_cbranch_scc1 L_vstream
''')
    ldsspin('ds_read_b32 v15, v56 offset:48', 'v_cmp_ne_u32 vcc, 4, v15')
    part_sum(0)
    A('v_and_or_b32 v16, v16, -16, v8\nv_and_or_b32 v17, v17, -16, v8\nglobal_store_dwordx2 v14, v[16:17], s[44:45] sc1')
    ST(2)
    A(f'''L_vstream:
s_setprio 0
s_cmp_lg_u32 s28, 5
s_cbranch_scc1 L_noprobe
s_mov_b32 s54, {0 if psum else -1}
s_mov_b32 s55, {0 if psum else -1}
s_waitcnt lgkmcnt(0)''')
    for i in range(2 * nprobe):
        A(f's_memtime s[50:51]\ns_load_dword s35, s[26:27], s56 offset:{0x2000 * (i & 1)} glc\ns_waitcnt lgkmcnt(0)\ns_memtime s[52:53]\ns_waitcnt lgkmcnt(0)\ns_sub_u32 s35, s52, s50\n{"s_add_u32" if psum else "s_min_u32"} s{54 + (i & 1)}, s{54 + (i & 1)}, s35')
    A(f'''s_getreg_b32 s34, hwreg(HW_REG_XCC_ID, 0, 4)
s_andn2_b32 s35, s3, 31
s_or_b32 s34, s34, s35
s_cmp_lt_u32 s55, s54
s_cselect_b32 s35, 16, 0
s_or_b32 s34, s34, s35
v_mov_b32 v31, s34
s_lshl_b32 s34, s29, 6
s_add_u32 s34, s34, s30
s_lshl_b32 s34, s34, 2
s_add_u32 s34, s34, {WS_X}
v_mov_b32 v30, s34
s_mov_b64 exec, 1
global_store_dword v30, v31, s[26:27] sc1
s_mov_b64 exec, -1
L_noprobe:
s_lshl_b32 s34, s63, 2
v_mov_b32 v28, s34''')
    ST(8)
    ldsspin(f'ds_read_b32 v15, v28 offset:{L_ML+64}', 'v_cmp_eq_u32 vcc, 0, v15', 1)
    stream({}, thrv or thr)
    A('v_mov_b32 v11, 0xff')
    tagreg(8, 14, 8)
    tagmask(10, 14)
    ST(3)
    A(f'''s_lshl_b32 s34, s63, 8
v_lshl_add_u32 v6, v3, 5, s34
s_barrier''')
    ST(4)
    A(f'ds_read_b128 v[48:51], v6 offset:{L_P}\nds_read_b128 v[52:55], v6 offset:{L_P+16}\nds_read_b32 v31, v56 offset:56\ns_waitcnt lgkmcnt(0)\nv_cmp_ne_u32 s[50:51], 0, v31\nv_cmp_eq_u32 s[52:53], 0, v31')
    for i in range(16): afrag(64 + 4 * i, 48 + i // 2, i & 1, 40)
    for i in range(16):
        for hf in range(2):
            if hf == 0 or i >= 12: A(f's_waitcnt vmcnt({31-2*i-hf if i >= 12 else 30-2*i})')
            c = f'v[{16+4*hf}:{19+4*hf}]'
            A(f'v_mfma_f32_16x16x32_bf16 {c}, v[{64+4*i}:{67+4*i}], v[{128+8*i+4*hf}:{131+8*i+4*hf}], {c if i else 0}')
    part_write()
    A('s_mov_b64 exec, -1\ns_waitcnt lgkmcnt(0)')
    ST(5)
    A('s_setprio 3\ns_barrier\ns_cmp_lg_u32 s28, 4\ns_cbranch_scc1 L_vend')
    if tailtest:
        A(f'''s_barrier
L_tt:
s_memrealtime s[96:97]
s_waitcnt lgkmcnt(0)
s_sub_u32 s96, s96, s98
s_cmp_lt_u32 s96, {tailtest}
s_cbranch_scc1 L_tt''')
        ST(5)
    part_sum(512)
    A('v_bfi_b32 v16, v10, v8, v16')
    if afast: A('s_mov_b64 exec, s[50:51]\nglobal_store_dwordx2 v14, v[16:17], s[44:45] offset:512\ns_mov_b64 exec, s[52:53]')
    A('global_store_dwordx2 v14, v[16:17], s[44:45] offset:512 sc1')
    ST(6)
    A(('' if tailtest else 's_barrier\n') + 'L_vend:')
    finish()
    A(f'L_exit:\ns_endpgm\nL_code_end:\n.fill (L_pc+{33*512}-L_code_end)/4, 4, 0xbf810000')
    A.raw(f'''.section .rodata,"a"
.p2align 6
.amdhsa_kernel {NAME}_kernel
  .amdhsa_next_free_vgpr 256
  .amdhsa_next_free_sgpr 102
  .amdhsa_accum_offset 256
  .amdhsa_group_segment_fixed_size 0
  .amdhsa_kernarg_size 96
  .amdhsa_user_sgpr_count 2
  .amdhsa_user_sgpr_kernarg_segment_ptr 1
  .amdhsa_system_sgpr_workgroup_id_x 1
  .amdhsa_float_denorm_mode_32 3
.end_amdhsa_kernel''')
    return A.text()

def STAMPS(al, roles, KW, VW):
    import numpy as np
    return [('start', al, KW + VW, 0), ('V at vwave', al, VW, 7), ('Q: x landed', al, VW, 1), ('Q: stored', al, [4], 2), ('V probed', al, VW, 8), ('probe/100 lo', np.arange(256) % 8 < 4, KW, 12), ('probe/100 hi', np.arange(256) % 8 >= 4, KW, 12), ('K issued', al, KW, 1), ('K go', al, KW, 2),
            ('K q gathered', al, KW, 3), ('K qk done', al, KW, 11), ('K ml lds', al, [0], 4), ('K ml gathered', al, KW, 5), ('K p written', al, KW, 6),
            ('V issued', al, VW, 3), ('V bar1', al, VW, 4), ('V pv done', al, VW, 5), ('A stored', al, [4], 6), ('K bar3', al, KW, 7),
            ('W wts landed', roles == 'W', KW, 10), ('F wts landed', roles == 'F', KW, 10),
            ('W gathered', roles == 'W', KW, 8), ('W end', roles == 'W', [0], 15), ('F gathered', roles == 'F', KW, 8), ('F gemv done', roles == 'F', KW, 9),
            ('F end', roles == 'F', KW, 15), ('R h seen', roles == 'R', [0], 9), ('R gathered', roles == 'R', [0], 8), ('R end', roles == 'R', [0], 15)]

if __name__ == '__main__':
    out = sys.argv[1] if len(sys.argv) > 1 else f'cdna_kernels/{NAME}.s'
    kw = eval('dict(' + (sys.argv[2] if len(sys.argv) > 2 else '') + ')')
    open(out, 'w').write(gen(**kw))
```

```python
import sys
from asmlib import Asm

NAME = 'sequential_preLN__sliding_block_cached__swiglu_ffn__decode'
WS_QA, WS_B, WS_H, WS_ML, WS_X, WS_E, WS_PR, WS_C, WS_ST = 0x0, 0x40000, 0x48000, 0x4c000, 0x4e000, 0x4f000, 0x60000, 0x80000, 0x100000
EPOCH_STEP = 0x5bd1e3c7
L_P, L_OP, L_SCR, L_H, L_RED, L_ML, L_Q, L_W = 0x0, 0x400, 0x1400, 0x1800, 0x1c00, 0x1e00, 0x1f00, 0x2000
LDS_BYTES = L_W + 0x8000
SPIN = 0x40000
LOG2E = 0x3fb8aa3b
SCALE = 0x3db504f3
EPS = 0x3727c5ac
FULL = 'row_mask:0xf bank_mask:0xf'
nl = '\n'

def gen(diag=False, span=False, amp=None, mlsleep=2, kvf='nt', kpre=3, twhen=(1, 1), tf='', wf='', thr=8, gow=4, qpos=24,
        dearly=True, thrv=None, notail=False, noml=False, noq=False, tailtest=0, psleep=0, nosr=0, afast=True, pages=True, pf=2, fdep=1, rdep=1, ftrig=False, pol=None, nprobe=2, psum=False, cfgy=True, guw=2, wsplit=2, dpos='last', wo0=False, trig=0, tlb=0, outf='', slowk=(), slowv=(), slowif='ge', fsplit=0, dtouch=2, frot=0, fpeel=False, bpre=False, apre=False, nox=False, qst='', xst='', xpos=4, wo1=1, late=0, fbar=(0,), xbar=True, guall=False, edge=False, repoll=False, gut=None):
    A = Asm()
    cold = []
    uid = [0]
    def lab(s):
        uid[0] += 1
        return f'L_{s}_{uid[0]}'
    def ST(n):
        if amp and n == amp[0]: A('s_memrealtime s[98:99]')
        if amp and n == amp[1]: A('s_memrealtime s[100:101]')
        if diag: A(f's_memrealtime s[96:97]\ns_waitcnt lgkmcnt(0)\nv_writelane_b32 v7, s96, {n}')
    def flush_cold():
        for f in cold: f()
        cold.clear()
    def finish(last=False):
        if diag or (span and last):
            A(f'''s_memrealtime s[96:97]
s_waitcnt lgkmcnt(0)
v_writelane_b32 v7, s96, 15
v_writelane_b32 v7, s98, 0
s_mov_b64 exec, 0xffff
s_lshl_b32 s34, s2, 3
s_add_u32 s34, s34, s28
s_lshl_b32 s34, s34, 6
s_add_u32 s34, s34, {WS_ST}
v_lshl_add_u32 v1, v0, 2, s34
global_store_dword v1, v7, s[26:27]''')
        A('s_endpgm')
        flush_cold()
    def wred(op, v, t):
        for r in (8, 4, 2, 1): A(f'{op}_dpp v{v}, v{v}, v{v} row_ror:{r} {FULL}')
        for sw in (16, 32): A(f'v_mov_b32 v{t}, v{v}\nv_permlane{sw}_swap_b32 v{v}, v{t}\n{op} v{v}, v{v}, v{t}')
    def rnd(v):
        A(f'v_cvt_pk_bf16_f32 v{v}, v{v}, v{v}\nv_lshlrev_b32 v{v}, 16, v{v}')
    def layernorm(x, u, o):
        s, t, mb, dl = u + 8, u + 9, u + 10, u + 11
        for i in range(4): A(f'v_lshlrev_b32 v{u+2*i}, 16, v{x+i}\nv_and_b32 v{u+2*i+1}, 0xffff0000, v{x+i}')
        A(f'v_add_f32 v{s}, v{u}, v{u+1}\nv_add_f32 v{t}, v{u+2}, v{u+3}\nv_add_f32 v{mb}, v{u+4}, v{u+5}\nv_add_f32 v{dl}, v{u+6}, v{u+7}')
        A(f'v_add_f32 v{s}, v{s}, v{t}\nv_add_f32 v{mb}, v{mb}, v{dl}\nv_add_f32 v{s}, v{s}, v{mb}')
        wred('v_add_f32', s, t)
        A(f'v_mul_f32 v{dl}, 0x3b000000, v{s}')
        A(f'v_cvt_pk_bf16_f32 v{mb}, v{dl}, v{dl}\nv_lshlrev_b32 v{mb}, 16, v{mb}')
        for i in range(8): A(f'v_sub_f32 v{u+i}, v{u+i}, v{mb}')
        A(f'v_sub_f32 v{dl}, v{dl}, v{mb}')
        A(f'v_mul_f32 v{s}, v{u}, v{u}\nv_mul_f32 v{t}, v{u+1}, v{u+1}')
        for i in range(2, 8, 2): A(f'v_fmac_f32 v{s}, v{u+i}, v{u+i}\nv_fmac_f32 v{t}, v{u+i+1}, v{u+i+1}')
        A(f'v_add_f32 v{s}, v{s}, v{t}')
        fill = [f'v_cvt_pk_bf16_f32 v{o+i}, v{u+2*i}, v{u+2*i+1}' for i in range(4)]
        for i in range(4): fill += [f'v_lshlrev_b32 v{u+2*i}, 16, v{o+i}', f'v_and_b32 v{u+2*i+1}, 0xffff0000, v{o+i}']
        fill.append(f'v_mul_f32 v{dl}, v{dl}, v{dl}')
        for r in (8, 4, 2, 1):
            A(fill.pop(0)); A(fill.pop(0))
            A(f'v_add_f32_dpp v{s}, v{s}, v{s} row_ror:{r} {FULL}')
        for sw in (16, 32):
            A(f'v_mov_b32 v{t}, v{s}'); A(fill.pop(0)); A(fill.pop(0))
            A(f'v_permlane{sw}_swap_b32 v{s}, v{t}\nv_add_f32 v{s}, v{s}, v{t}')
        A(fill.pop(0))
        A(f'v_mul_f32 v{s}, 0x3b000000, v{s}\nv_sub_f32 v{s}, v{s}, v{dl}\nv_max_f32 v{s}, 0, v{s}')
        rnd(s)
        A(f'v_add_f32 v{s}, {EPS:#x}, v{s}'); rnd(s)
        A(f'v_sqrt_f32 v{s}, v{s}'); rnd(s)
        A(f'v_rcp_f32 v{s}, v{s}')
        for i in range(8): A(f'v_mul_f32 v{u+i}, v{u+i}, v{s}')
        for i in range(4): A(f'v_cvt_pk_bf16_f32 v{o+i}, v{u+2*i}, v{u+2*i+1}')
    def selectors(sel, t):
        A(f'''v_and_b32 v{t}, 1, v0
v_cmp_eq_u32 vcc, 1, v{t}
v_mov_b32 v{t+1}, 0x0c0c0100
v_mov_b32 v{t+2}, 0x01000c0c
v_cndmask_b32 v{t+1}, v{t+1}, v{t+2}, vcc
v_mov_b32 v{t+2}, 0x0c0c0302
v_mov_b32 v{t+3}, 0x03020c0c
v_cndmask_b32 v{t+2}, v{t+2}, v{t+3}, vcc
v_mov_b32 v{t+3}, 0x0c0c0c0c
v_bfe_u32 v{t}, v0, 1, 2''')
        for w in range(4):
            A(f'v_cmp_eq_u32 vcc, {w}, v{t}\nv_cndmask_b32 v{sel+w}, v{t+3}, v{t+1}, vcc\nv_cndmask_b32 v{sel+4+w}, v{t+3}, v{t+2}, vcc')
    def afrag(dst, src, par, sel):
        for w in range(4): A(f'v_perm_b32 v{dst+w}, v{src}, v{src}, v{sel+4*par+w}')
    def tagreg(dst, addr, bits):
        A(f'v_bfe_u32 v{dst}, v{addr}, 4, 1\nv_lshlrev_b32 v{dst}, {bits-1}, v{dst}\nv_xor_b32 v{dst}, s3, v{dst}\nv_and_b32 v{dst}, {(1 << bits) - 1}, v{dst}')
    def tagmask(dst, addr):
        A(f'v_and_b32 v{dst}, 15, v{addr}\nv_cmp_eq_u32 vcc, 0, v{dst}\nv_mov_b32 v{dst}, 0\nv_cndmask_b32 v{dst}, v{dst}, v11, vcc')
    def poll(loads, y, T, t, hook=None, slp=0, part=None):
        n = len(loads)
        L, Lc, Ld = lab('again'), lab('chk'), lab('ok')
        full = lambda i: part if (part and i == n - 1) else -1
        def issue():
            for i, l in enumerate(loads): A((f's_mov_b64 exec, s[{48+2*i}:{49+2*i}]\n' if n > 1 else '') + l[0])
            if n > 1: A('s_mov_b64 exec, -1')
        if n > 1:
            for i in range(n): A(f's_mov_b64 s[{48+2*i}:{49+2*i}], {full(i)}')
        A(f's_mov_b32 s62, {SPIN}')
        issue()
        if hook: hook(n)
        A(f's_branch {Lc}\n{L}:')
        if slp or psleep: A(f's_sleep {slp or psleep}')
        issue()
        if n > 1:
            for i in range(n):
                A(f'v_and_b32 v{t}, v11, v{y+i}\nv_cmp_ne_u32 vcc, 0, v{t}\ns_cmp_lg_u64 vcc, 0\ns_cselect_b64 s[{48+2*i}:{49+2*i}], {full(i)}, 0')
        A(f's_sub_u32 s62, s62, 1\ns_cbranch_scc1 {Ld}\n{Lc}:\ns_waitcnt vmcnt(0)')
        for i, l in enumerate(loads): A(f'v_xor_b32 v{y+i}, v{l[1]}, v{T}')
        if n == 1: A(f'v_and_b32 v{t}, v11, v{y}')
        else:
            A(f'v_or3_b32 v{t}, v{y}, v{y+1}, v{y+2}')
            for i in range(3, n - 1, 2): A(f'v_or3_b32 v{t}, v{t}, v{y+i}, v{y+i+1}')
            A(f'v_bitop3_b32 v{t}, v{t}, v{y+n-1}, v11 bitop3:0xa8')
        A(f'v_cmp_ne_u32 vcc, 0, v{t}\ns_cbranch_vccnz {L}\n{Ld}:')
    def gsum(x, y, n, d):
        src = lambda i, r: f'v{y+i}' if r == 0 else f'v{x+4*i+r}'
        for i in range(0, n, 2):
            dd = d + 2 * i
            A(f'v_pk_add_f32 v[{dd+2}:{dd+3}], v[{x+4*i+2}:{x+4*i+3}], v[{x+4*i+6}:{x+4*i+7}]')
            for r in range(2): A(f'v_add_f32 v{dd+r}, {src(i, r)}, {src(i+1, r)}')
        for i in range(2, n, 2):
            for r in (2, 0): A(f'v_pk_add_f32 v[{d+r}:{d+r+1}], v[{d+r}:{d+r+1}], v[{d+2*i+r}:{d+2*i+r+1}]')
        A(f'v_permlane32_swap_b32 v{d}, v{d+2}\nv_permlane32_swap_b32 v{d+1}, v{d+3}')
        A(f'v_pk_add_f32 v[{d}:{d+1}], v[{d}:{d+1}], v[{d+2}:{d+3}]')
    def deep(load, n, sets, y, T, t, d, hook=None, issued=False):
        x = sets[0]
        L, Lc, Lo = lab('again'), lab('chk'), lab('ok')
        A(f's_mov_b32 s62, {SPIN}')
        if issued: A(f's_branch {Lc}')
        A(f'{L}:')
        load(x)
        A(f's_sub_u32 s62, s62, 1\ns_cbranch_scc1 {Lo}\n{Lc}:')
        for i in range(n):
            if i % 2 == 0: A(f's_waitcnt vmcnt({n-2-i})')
            A(f'v_xor_b32 v{y+i}, v{x+4*i}, v{T}')
            if i % 2 == 1:
                dd = d + 2 * (i - 1)
                if i == 1: A(f'v_or_b32 v{t}, v{y}, v{y+1}')
                elif i < n - 1: A(f'v_or3_b32 v{t}, v{t}, v{y+i-1}, v{y+i}')
                else: A(f'v_or_b32 v{t}, v{t}, v{y+i-1}\nv_bitop3_b32 v{t}, v{t}, v{y+i}, v11 bitop3:0xa8\nv_cmp_ne_u32 vcc, 0, v{t}')
                A(f'v_pk_add_f32 v[{dd+2}:{dd+3}], v[{x+4*i-2}:{x+4*i-1}], v[{x+4*i+2}:{x+4*i+3}]')
                if i == n - 1: A(f's_cbranch_vccnz {L}\n{Lo}:')
                A(f'v_add_f32 v{dd}, v{y+i-1}, v{y+i}\nv_add_f32 v{dd+1}, v{x+4*i-3}, v{x+4*i+1}')
                if i > 1:
                    for r in (2, 0): A(f'v_pk_add_f32 v[{d+r}:{d+r+1}], v[{d+r}:{d+r+1}], v[{dd+r}:{dd+r+1}]')
        A(f'v_permlane32_swap_b32 v{d}, v{d+2}\nv_permlane32_swap_b32 v{d+1}, v{d+3}')
        A(f'v_pk_add_f32 v[{d}:{d+1}], v[{d}:{d+1}], v[{d+2}:{d+3}]')
    def page():
        if pages: A('.p2align 12')
    def sum8(g):
        for i in (0, 2, 8, 10): A(f'v_pk_add_f32 v[{g+i}:{g+i+1}], v[{g+i}:{g+i+1}], v[{g+i+4}:{g+i+5}]')
        for i in (0, 2): A(f'v_pk_add_f32 v[{g+i}:{g+i+1}], v[{g+i}:{g+i+1}], v[{g+i+8}:{g+i+9}]')
        A(f'v_permlane32_swap_b32 v{g}, v{g+2}\nv_permlane32_swap_b32 v{g+1}, v{g+3}')
        A(f'v_pk_add_f32 v[{g}:{g+1}], v[{g}:{g+1}], v[{g+2}:{g+3}]')
    def ldsspin(reads, test, slp=0):
        L, Ld = lab('spin'), lab('spun')
        A(f's_mov_b32 s62, {SPIN}\n{L}:')
        if slp: A(f's_sleep {slp}')
        A(f'{reads}\ns_waitcnt lgkmcnt(0)\n{test}\ns_cbranch_vccz {Ld}\ns_sub_u32 s62, s62, 1\ns_cbranch_scc0 {L}\n{Ld}:')
    def stream(hooks, th, extra_at=None, slow=()):
        if slow: A(f's_cmp_{slowif}_u32 s30, 16\ns_cselect_b64 vcc, -1, 0')
        for i in range(16):
            if i: A('s_addk_i32 s33, 0x2000\ns_bitset0_b32 s33, 17')
            if th and 2 * i >= th:
                ex = 1 if extra_at is not None and 2 * i - (th - 2) < extra_at <= 2 * i else 0
                A(f's_waitcnt vmcnt({th-2+ex})')
            if i in slow:
                Ls = lab('fast')
                A(f's_cbranch_vccz {Ls}\ns_waitcnt vmcnt({th-4})\n{Ls}:')
            for hf in range(2):
                A(f'buffer_load_dwordx4 v[{128+8*i+4*hf}:{131+8*i+4*hf}], v2, s[36:39], s33 offen offset:{128*hf} {kvf}')
                if 2 * i + hf + 1 in hooks: A(hooks[2 * i + hf + 1])

    hdr = open('cdna_kernels/' + NAME + '.s.ref').read().split('\n')
    for ln in hdr:
        if ln.startswith('; @launch'): A.raw(f'; @launch grid=(256,1,1) block=(512,1,1) lds={LDS_BYTES}'); break
        A.raw(ln)
    A.raw(f'.amdgcn_target "amdgcn-amd-amdhsa--gfx950"\n.text\n.globl {NAME}_kernel\n.p2align {12 if pages else 8}\n.p2align 8\n.type {NAME}_kernel,@function\n{NAME}_kernel:')

    if amp: ST(13)
    if span or diag: A('s_memrealtime s[98:99]')
    A(f'''s_load_dwordx16 s[4:19], s[0:1], 0
s_load_dwordx8 s[20:27], s[0:1], 64
s_getpc_b64 s[40:41]
L_pc:
v_lshrrev_b32 v1, 6, v0
s_lshr_b32 s30, s2, 3                ; index inside the head group
v_readfirstlane_b32 s28, v1
v_and_b32 v0, 63, v0
s_lshl3_add_u32 s43, s30, s28
s_lshl_b32 s43, s43, 6
{'s_load_dword s42, s[40:41], s43' if pf == 1 else ''}
s_cmp_ge_u32 s2, 256
s_cbranch_scc1 L_exit
s_and_b32 s29, s2, 7
s_and_b32 s31, s30, 3
s_lshl2_add_u32 s31, s29, s31        ; head
s_lshr_b32 s32, s30, 2
v_lshrrev_b32 v3, 3, v0              ; lane >> 3
v_and_b32 v4, 7, v0
v_lshlrev_b32 v4, 4, v4              ; (lane & 7) * 16
v_lshl_add_u32 v2, v3, 8, v4
v_lshlrev_b32 v5, 4, v0              ; lane * 16
s_and_b32 s63, s28, 3
s_lshl3_add_u32 s33, s29, s32
s_add_u32 s33, s33, s63
s_and_b32 s33, s33, 63
s_lshl_b32 s33, s33, 11              ; first tile of this wave
s_lshl_b32 s34, s31, 6
s_add_u32 s34, s34, s32
s_add_u32 s34, s34, 56
s_lshl_b32 s34, s34, 17              ; byte offset of this chunk of the window
s_mov_b32 s38, 0x20000
s_mov_b32 s39, 0x20000''')
    if diag: A('v_mov_b32 v7, 0')
    A(f'''s_cmp_lt_u32 s28, 4
s_cbranch_scc1 L_kwave
s_setprio 3
s_lshl_b32 s35, s32, 5
s_add_u32 s35, s35, s63
s_lshl_b32 s35, s35, 6
s_add_u32 s35, s35, s31
s_lshl_b32 s35, s35, 8
v_lshl_add_u32 v6, v3, 16, v4
v_add_u32 v12, 0x2000, v6
v_subrev_u32 v13, 12, v0
v_ashrrev_i32 v13, 31, v13
v_lshlrev_b32 v14, 2, v0
ds_write_b32 v14, v13 offset:{L_ML}
s_waitcnt lgkmcnt(0)
global_load_dwordx4 v[24:27], v5, s[4:5]
{'s_load_dword s42, s[40:41], s43' if pf == 2 else ''}
s_load_dword s3, s[26:27], {WS_E:#x}
s_add_u32 s10, s10, s35
s_addc_u32 s11, s11, 0''')
    for n in range(2):
        for hf in range(2): A(f'global_load_dwordx4 v[{64+8*n+4*hf}:{67+8*n+4*hf}], v{(6, 12)[n]}, s[10:11] offset:{128*hf} nt')
    A('s_barrier\ns_branch L_vwave')

    A(f'''L_kwave:
s_setprio 2
s_waitcnt lgkmcnt(0)
s_add_u32 s36, s6, s34
s_addc_u32 s37, s7, 0''')
    qload = 'global_load_dwordx4 v[16:19], v6, s[44:45] sc1'
    stream({1: 's_load_dword s42, s[40:41], s43' if pf == 2 else '', kpre: f's_load_dword s3, s[26:27], {WS_E:#x}\ns_barrier',
            8: f'''s_lshl_b32 s34, s31, 6
s_add_u32 s34, s34, s28
s_lshl_b32 s34, s34, 7
s_add_u32 s44, s26, s34
s_addc_u32 s45, s27, 0
v_lshl_add_u32 v6, v3, 10, v4''',
            qpos: '' if noq else qload}, thr, extra_at=None if noq else qpos, slow=slowk)
    ST(1)
    A(f'''v_lshrrev_b32 v12, 5, v0             ; lane >> 5
v_and_b32 v13, 31, v0
v_lshlrev_b32 v13, 4, v13            ; (lane & 31) * 16
s_lshl_b32 s46, s28, 8
s_add_u32 s46, s46, {L_SCR}
s_lshl_b32 s34, s28, 6
v_lshrrev_b32 v14, 4, v0
v_lshlrev_b32 v14, 1, v14
v_lshrrev_b32 v15, 1, v4
v_add3_u32 v14, v14, v15, s34
v_mov_b32 v24, {L_ML}
v_mov_b32 v25, 1
s_lshl_b32 s34, s28, 2
v_mov_b32 v26, s34
s_waitcnt lgkmcnt(0)
s_add_u32 s3, s3, {EPOCH_STEP:#x}''')
    tagreg(8, 5, 4)
    A(f's_waitcnt vmcnt({min(gow, 32-qpos)})\nds_write_b32 v26, v25 offset:{L_ML+64}')
    ST(2)
    A(f's_mov_b32 s62, {SPIN}\nL_qchk:')
    for i in range(4): A(f'v_xor_b32 v{20+i}, v{16+i}, v8')
    A('v_or3_b32 v15, v20, v21, v22\nv_bitop3_b32 v15, v15, v23, 15 bitop3:0xa8\nv_cmp_ne_u32 vcc, 0, v15')
    A(('' if noq else 's_cbranch_vccnz L_qagain\n') + 'L_qok:')
    cold.append(lambda: A(f'L_qagain:\n{qload}\ns_sub_u32 s62, s62, 1\ns_waitcnt vmcnt(0)\ns_cbranch_scc0 L_qchk\ns_branch L_qok'))
    ST(3)
    A(f'''v_permlane32_swap_b32 v20, v22
v_permlane32_swap_b32 v21, v23
v_add_f32 v20, v20, v22
v_add_f32 v21, v21, v23
v_permlane16_swap_b32 v20, v21
v_add_f32 v20, v20, v21
v_add_f32_dpp v20, v20, v20 row_ror:8 {FULL}
v_cvt_pk_bf16_f32 v20, v20, v20
v_lshl_add_u32 v6, v12, 12, v13
ds_write_b16 v14, v20 offset:{L_Q}
s_mov_b64 exec, 1
s_waitcnt lgkmcnt(0)
ds_add_u32 v24, v25 offset:52
s_mov_b64 exec, -1''')
    ldsspin('ds_read_b32 v15, v24 offset:52', 'v_cmp_ne_u32 vcc, 4, v15')
    A(f'ds_read_b128 v[16:19], v4 offset:{L_Q}\nds_read_b128 v[20:23], v4 offset:{L_Q+128}\ns_waitcnt lgkmcnt(0)')
    for i0 in range(0, 16, 4):
        A(f's_waitcnt vmcnt({24-2*i0})')
        for e in range(8):
            for i in range(i0, i0 + 4):
                A(f'v_dot2_f32_bf16 v{32+i}, v{128+8*i+e}, v{16+e}, {"v%d" % (32+i) if e else 0}')
    for i in range(8):
        A(f'v_add_f32_dpp v{32+i}, v{32+i}, v{32+i} row_half_mirror row_mask:0xf bank_mask:0x5')
    for i in range(8):
        A(f'v_add_f32_dpp v{32+i}, v{40+i}, v{40+i} row_half_mirror row_mask:0xf bank_mask:0xa')
    A('s_mov_b32 vcc_lo, 0xcccccccc\ns_mov_b32 vcc_hi, 0xcccccccc')
    for i in range(4): A(f'v_cndmask_b32 v{40+i}, v{36+i}, v{32+i}, vcc\nv_cndmask_b32 v{32+i}, v{32+i}, v{36+i}, vcc')
    for i in range(4): A(f'v_add_f32_dpp v{32+i}, v{40+i}, v{32+i} quad_perm:[2,3,0,1] {FULL}')
    A('s_mov_b32 vcc_lo, 0xaaaaaaaa\ns_mov_b32 vcc_hi, 0xaaaaaaaa')
    for i in range(2): A(f'v_cndmask_b32 v{40+i}, v{34+i}, v{32+i}, vcc\nv_cndmask_b32 v{32+i}, v{32+i}, v{34+i}, vcc')
    for i in range(2): A(f'v_add_f32_dpp v{32+i}, v{40+i}, v{32+i} quad_perm:[1,0,3,2] {FULL}')
    r2 = 'v_cvt_pk_bf16_f32 v34, v32, v33\nv_lshlrev_b32 v32, 16, v34\nv_and_b32 v33, 0xffff0000, v34'
    if not nosr & 1: A(r2)
    A(f'v_mul_f32 v32, {SCALE:#x}, v32\nv_mul_f32 v33, {SCALE:#x}, v33')
    if not nosr & 2: A(r2)
    A('v_max_f32 v34, v32, v33')
    wred('v_max_f32', 34, 36)
    A(f'''v_sub_f32 v35, v32, v34
v_sub_f32 v36, v33, v34
v_mul_f32 v35, {LOG2E:#x}, v35
v_mul_f32 v36, {LOG2E:#x}, v36
v_exp_f32 v35, v35
v_exp_f32 v36, v36
v_add_f32 v35, v35, v36''')
    wred('v_add_f32', 35, 36)
    ST(11)
    A(f's_lshl_b32 s34, s29, 8\ns_add_u32 s34, s34, {WS_X}\nv_lshrrev_b32 v10, 2, v13\nv_add_u32 v10, s34, v10\n' + ('' if nox else 'global_load_dword v9, v10, s[26:27] sc1'))
    if noml: A('s_cmp_ge_u32 s30, 0\ns_cbranch_scc1 L_mlok')
    A(f'''v_min_u32 v34, -2, v34
v_min_u32 v35, -2, v35
v_lshl_add_u32 v37, v26, 1, v24
ds_write_b64 v37, v[34:35]
s_cmp_lg_u32 s28, 0
s_cbranch_scc1 L_mlwait''')
    ldsspin('ds_read_b128 v[40:43], v24\nds_read_b128 v[44:47], v24 offset:16',
            'v_max3_u32 v37, v40, v41, v42\nv_max3_u32 v37, v37, v43, v44\nv_max3_u32 v37, v37, v45, v46\nv_max_u32 v37, v37, v47\nv_cmp_eq_u32 vcc, -1, v37')
    ST(4)
    A(f'''s_lshl_b32 s35, s31, 8
s_add_u32 s35, s35, {WS_ML}
v_max3_f32 v48, v40, v42, v44
v_max_f32 v48, v48, v46''')
    for w in range(4): A(f'v_sub_f32 v{40+2*w}, v{40+2*w}, v48')
    for w in range(4): A(f'v_mul_f32 v{40+2*w}, {LOG2E:#x}, v{40+2*w}')
    for w in range(4): A(f'v_exp_f32 v{40+2*w}, v{40+2*w}')
    A('v_mov_b32 v49, s3\nv_mov_b32 v51, s3\nv_mul_f32 v50, v40, v41')
    for w in range(1, 4): A(f'v_fmac_f32 v50, v{40+2*w}, v{41+2*w}')
    A(f'''s_lshl4_add_u32 s34, s32, s35
v_mov_b32 v37, s34
s_mov_b64 exec, 1
global_store_dwordx4 v37, v[48:51], s[26:27] sc1
s_mov_b64 exec, -1''')
    L, Ld = lab('mg'), lab('mgd')
    A(f's_mov_b32 s62, {SPIN}\n{L}:\ns_sleep {mlsleep}\ns_load_dwordx16 s[64:79], s[26:27], s35 glc\ns_load_dwordx16 s[80:95], s[26:27], s35 offset:64 glc\ns_waitcnt lgkmcnt(0)')
    A('s_and_b32 s34, s65, s3\ns_or_b32 s47, s65, s3')
    for i in range(1, 16): A(f's_and_b32 s34, s34, s{65+2*i}\ns_or_b32 s47, s47, s{65+2*i}')
    A(f's_cmp_eq_u32 s34, s47\ns_cbranch_scc1 {Ld}\ns_sub_u32 s62, s62, 1\ns_cbranch_scc0 {L}\n{Ld}:')
    A('v_mov_b32 v34, s64')
    for c in range(1, 8): A(f'v_max_f32 v34, s{64+4*c}, v34')
    for c in range(8): A(f'v_sub_f32 v{40+c}, s{64+4*c}, v34')
    for c in range(8): A(f'v_mul_f32 v{40+c}, {LOG2E:#x}, v{40+c}')
    for c in range(8): A(f'v_exp_f32 v{40+c}, v{40+c}')
    A('v_mul_f32 v35, s66, v40')
    for c in range(1, 8): A(f'v_fmac_f32 v35, s{66+4*c}, v{40+c}')
    A(f'''v_rcp_f32 v35, v35
v_min_u32 v34, -2, v34
v_min_u32 v35, -2, v35
ds_write_b64 v24, v[34:35] offset:32
s_branch L_mlok
L_mlwait:''')
    ldsspin('ds_read_b64 v[34:35], v24 offset:32', 'v_max_u32 v37, v34, v35\nv_cmp_eq_u32 vcc, -1, v37', 1)
    A('L_mlok:')
    ST(5)
    A(f'''v_sub_f32 v32, v32, v34
v_sub_f32 v33, v33, v34
v_mul_f32 v32, {LOG2E:#x}, v32
v_mul_f32 v33, {LOG2E:#x}, v33
v_exp_f32 v32, v32
v_exp_f32 v33, v33
s_lshl_b32 s34, s28, 8
v_lshl_add_u32 v36, v0, 2, s34
v_mul_f32 v32, v32, v35
v_mul_f32 v33, v33, v35
v_cvt_pk_bf16_f32 v32, v32, v33
ds_write_b32 v36, v32 offset:{L_P}
''')
    if not cfgy: A(f'''s_cmp_lt_u32 s28, 2
s_cbranch_scc1 L_two
s_cmp_eq_u32 s28, 2
s_cselect_b32 s64, s16, s18
s_cselect_b32 s65, s17, s19
s_mov_b32 s66, {512*2752}
s_lshl_b32 s34, s30, 4
v_lshrrev_b32 v61, 2, v0
v_add_u32 v61, s34, v61
v_mul_u32_u24 v61, 2752, v61
v_and_b32 v62, 3, v0
v_lshlrev_b32 v62, 7, v62
v_min_u32 v62, 348, v62
s_mul_i32 s34, s29, 352
v_add3_u32 v61, v61, v62, s34
s_branch L_tj
L_two:
s_mov_b32 s64, s12
s_mov_b32 s65, s13
s_mov_b32 s66, {4096*1024}
s_lshl_b32 s34, s29, 5
s_add_u32 s34, s34, s30
s_lshl1_add_u32 s34, s34, s28
s_lshl_b32 s34, s34, 13
v_lshl_add_u32 v61, v0, 7, s34
L_tj:
s_mov_b32 s67, 0x20000''')
    if cfgy: A(f'''s_bitcmp1_b32 s28, 0
s_cselect_b32 s64, s18, s16
s_cselect_b32 s65, s19, s17
s_mov_b32 s66, {512*2752}
s_mov_b32 s67, 0x20000
s_and_b32 s34, s30, {31 if guall else 15}
s_lshr_b32 s35, s28, 1
s_lshl1_add_u32 s34, s34, s35
s_lshl_b32 s34, s34, {3 if guall else 4}
v_lshrrev_b32 v61, 2, v0
v_add_u32 v61, s34, v61
v_mul_u32_u24 v61, 2752, v61
v_and_b32 v62, 3, v0
v_lshlrev_b32 v62, 7, v62
v_min_u32 v62, 348, v62
s_mul_i32 s34, s29, 352
v_add3_u32 v61, v61, v62, s34''')
    def touch(when, role=None):
        if cfgy:
            if when == wo1 and role != 'W':
                Ls = lab('nt')
                if role is None: A(f's_cmp_lt_u32 s30, 16\ns_cbranch_scc1 {Ls}')
                A(f'''s_and_b32 s34, s30, 15
s_lshl2_add_u32 s34, s34, s28
s_andn2_b32 s35, s34, 7
s_add_u32 s34, s34, s35
s_add_u32 s34, s34, 8
s_lshl_b32 s35, s29, 7
s_add_u32 s34, s34, s35
s_lshl_b32 s34, s34, 12
v_lshl_add_u32 v127, v0, 7, s34
s_mov_b32 exec_hi, 0
global_load_dword v62, v127, s[12:13] {tf}
s_mov_b32 exec_hi, -1
{Ls}:''')
            if when == 2 and edge and role == 'x':
                A(f'''s_mul_i32 s34, s29, 11
s_and_b32 s35, s34, 1
s_add_u32 s35, s35, 29
s_sub_u32 s48, s34, s30
s_add_u32 s48, s48, 26
s_sub_u32 s49, s30, s35
s_add_u32 s49, s49, s34
s_add_u32 s49, s49, 11
s_add_u32 s50, s34, 10
s_cmp_lt_u32 s30, s35
s_cselect_b32 s48, s48, s49
s_cselect_b32 s50, s34, s50
s_and_b32 s35, s48, 3
s_lshl2_add_u32 s35, s28, s35
s_lshl_b32 s35, s35, 5
v_and_b32 v63, 31, v0
v_add_u32 v63, s35, v63
v_mul_u32_u24 v63, 2752, v63
s_lshl_b32 s48, s48, 5
s_lshl_b32 s50, s50, 5
v_add_u32 v127, s48, v63
v_add_u32 v63, s50, v63
v_xor_b32 v127, v127, v63
v_min_u32 v63, {512*2752-4}, v63
v_cmp_gt_u32 vcc, 0x80, v127
s_mov_b32 exec_hi, 0
s_mov_b32 exec_lo, vcc_lo
global_load_dword v62, v63, s[16:17] {tf}
global_load_dword v62, v63, s[18:19] {tf}
s_mov_b64 exec, -1''')
            if guall and (when == guw if gut is None else (role is not None and when == gut['WFx'.index(role)])):
                A(f's_mov_b32 exec_hi, 0\nbuffer_load_dword v62, v61, s[64:67], 0 offen {tf}\ns_mov_b32 exec_hi, -1')
            elif not guall and when == guw and role != 'W':
                Ls = lab('nt')
                if role is None: A(f's_cmp_lt_u32 s30, 16\ns_cbranch_scc1 {Ls}')
                A(f'buffer_load_dword v62, v61, s[64:67], 0 offen {tf}\n{Ls}:')
            if when == dtouch and role == 'x':
                if xbar and when == 2: A('s_barrier')
                A(f'''s_sub_u32 s34, s30, 27
s_lshl2_add_u32 s34, s34, s28
s_mul_i32 s34, s34, {71*128}
s_mul_i32 s35, s29, {176*1024}
s_add_u32 s34, s34, s35
v_lshl_add_u32 v63, v0, 7, s34
v_min_u32 v63, {1376*1024-4}, v63
global_load_dword v62, v63, s[20:21]
v_add_u32 v63, 0x2000, v63
v_min_u32 v63, {1376*1024-4}, v63
s_mov_b64 exec, 0x7f
global_load_dword v62, v63, s[20:21]
s_mov_b64 exec, -1''')
            return
        lo, hi = twhen[0] == when, twhen[1] == when
        if not (lo or hi): return
        Ls = lab('nt')
        if not (lo and hi): A(f's_cmp_lt_u32 s28, 2\ns_cbranch_scc{0 if lo else 1} {Ls}')
        A(f'buffer_load_dword v62, v61, s[64:67], 0 offen {tf}\n{Ls}:')
    ST(6)
    A(f'''s_getreg_b32 s34, hwreg(HW_REG_XCC_ID, 0, 4)
s_andn2_b32 s35, s3, 31
s_or_b32 s34, s34, s35
s_or_b32 s35, s34, 16
s_waitcnt vmcnt(0)
v_cmp_eq_u32 s[48:49], s34, v9
v_cmp_eq_u32 s[50:51], s35, v9
s_bcnt1_i32_b32 s48, s48
s_bcnt1_i32_b32 s50, s50
s_cmp_gt_u32 s50, s48
s_cselect_b32 s34, 0x2000, 0
v_mov_b32 v10, s34
''')
    if diag: A('s_sub_u32 s34, s50, s48\ns_add_u32 s34, s34, s98\nv_writelane_b32 v7, s34, 12')
    touch(0)
    if wo0: A(f'''s_lshl_b32 s34, s29, 5
s_add_u32 s34, s34, s30
s_lshl2_add_u32 s34, s34, s28
s_lshl_b32 s34, s34, 12
v_lshl_add_u32 v63, v0, 7, s34
s_mov_b32 exec_hi, 0
global_load_dword v62, v63, s[12:13] {tf}
s_mov_b32 exec_hi, -1''')
    tagreg(8, 5, 8)
    A(f'''v_mov_b32 v11, 0xff
s_lshl_b32 s47, s28, 13
s_add_u32 s47, s47, {L_W}            ; this wave's weight staging area
s_waitcnt lgkmcnt(0)''')
    if pol is not None: A(f's_lshr_b32 s34, s29, 2\ns_xor_b32 s34, s34, {pol}\ns_lshl_b32 s34, s34, 13\nv_mov_b32 v10, s34')
    if notail: A('s_cmp_ge_u32 s30, 0\ns_cbranch_scc1 L_norole')
    A('s_cmp_ge_u32 s30, 16\ns_cbranch_scc1 L_notw')
    def bars(early=None, role='x'):
        A('s_barrier')
        if role == 'W': early()
        touch(1, role)
        if early and role != 'W': early()
        A('s_barrier\ns_barrier')
        if trig and role != 'W':
            L, Ld = lab('trig'), lab('trigd')
            A(f'''s_lshl_b32 s34, s29, 15
v_lshl_add_u32 v125, v13, 6, s34
s_mov_b32 s62, {SPIN}
{L}:
global_load_ubyte v126, v125, s[26:27] offset:512 sc1
s_and_b32 s34, s3, 0xff
s_waitcnt vmcnt(0)
v_cmp_eq_u32 vcc, s34, v126
s_bcnt1_i32_b32 s34, vcc_lo
s_cmp_ge_u32 s34, {trig}
s_cbranch_scc1 {Ld}
s_sleep 2
s_sub_u32 s62, s62, 1
s_cbranch_scc0 {L}
{Ld}:''')
        touch(2, role)
        ST(7)

    A(f'''s_lshl2_add_u32 s34, s29, s28
s_lshl_b32 s35, s34, 13
s_add_u32 s35, s35, 512
s_add_u32 s44, s26, s35
s_addc_u32 s45, s27, 0
s_lshl_b32 s34, s34, 17
s_lshl_b32 s35, s30, 6
s_add_u32 s34, s34, s35
s_add_u32 s40, s12, s34
s_addc_u32 s41, s13, 0
s_mov_b32 s42, {127*1024+64}
s_mov_b32 s43, 0x20000
v_lshrrev_b32 v14, 4, v0             ; g
v_bfe_u32 v15, v0, 2, 2
v_lshl_add_u32 v15, v14, 3, v15
v_and_b32 v32, 1, v14
v_lshlrev_b32 v33, 1, v32
v_and_b32 v34, 3, v0
v_xor_b32 v33, v33, v34
v_lshlrev_b32 v33, 4, v33
v_lshl_add_u32 v15, v15, 10, v33
v_lshrrev_b32 v33, 2, v0
v_lshlrev_b32 v33, 6, v33
v_lshl_add_u32 v33, v34, 3, v33
v_lshl_add_u32 v33, v32, 5, v33
v_add_u32 v33, s47, v33
v_xor_b32 v34, 32, v33
v_lshrrev_b32 v35, 1, v13
v_lshl_add_u32 v35, v12, 2, v35
v_add_u32 v35, s46, v35
v_lshl_add_u32 v36, v14, 4, s46
s_lshl_b32 s34, s28, 2
s_add_u32 s34, s34, {L_RED}
v_add_u32 v37, s34, v13
s_and_b32 s34, s29, 4
s_add_u32 s34, s34, s29
s_lshl4_add_u32 s34, s34, s30
s_lshl_b32 s34, s34, 7
s_add_u32 s34, s34, {WS_B}
v_lshrrev_b32 v38, 2, v13
v_lshl_add_u32 v38, v12, 13, v38
v_add_u32 v38, s34, v38''')
    tagreg(9, 38, 8)
    tagmask(10, 38)
    if tlb & 1: A('s_mov_b64 exec, 1\nbuffer_load_dword v62, v15, s[40:43], 0 offen\ns_mov_b64 exec, -1')
    A('s_and_b32 s60, s30, 1\ns_lshl_b32 s61, s60, 16\ns_lshl_b32 s60, s60, 12')
    def wl(a, b):
        for n in range(a, b):
            A(f's_xor_b32 s34, s60, {1024*n}\ns_add_u32 m0, s47, s34\ns_xor_b32 s34, s61, {(32*(n>>1)+4*(n&1))*1024}')
            A(f'buffer_load_dwordx4 v15, s[40:43], s34 offen {wf} lds')
    if apre:
        A('s_mov_b32 exec_lo, 0x01010101\ns_mov_b32 exec_hi, 0x01010101\ns_and_b32 s34, s30, 3\ns_lshl_b32 s34, s34, 10\nv_add_u32 v63, s34, v6\nglobal_load_dword v62, v63, s[44:45] sc1\ns_mov_b64 exec, -1')
    ws_ = wsplit if cfgy else 0
    bars(lambda: wl(0, ws_), 'W')
    wl(ws_, 8)
    touch(3, 'W')
    def whook(n):
        A(f's_waitcnt vmcnt({n})')
        ST(10)
        for t in range(4):
            for cb in range(2):
                for hf in range(2):
                    r = 128 + 8 * t + 4 * cb + 2 * hf
                    A(f'ds_read_b64_tr_b16 v[{r}:{r+1}], v{33+cb} offset:{1024*(2*t+hf)}')
    poll([(f'global_load_dwordx4 v[{96+4*n}:{99+4*n}], v6, s[44:45] offset:{1024*n} sc1', 96 + 4 * n) for n in range(4)], 120, 8, 39, hook=whook)
    ST(8)
    gsum(96, 120, 4, 16)
    A('v_cvt_pk_bf16_f32 v16, v16, v17\nds_write_b32 v35, v16')
    for t in range(4): A(f'ds_read_b128 v[{20+4*t}:{23+4*t}], v36 offset:{64*t}')
    A('s_mov_b32 vcc_lo, 0xffff0000\ns_mov_b32 vcc_hi, 0xffff0000')
    for t in range(4):
        A(f's_waitcnt lgkmcnt({3-t})')
        for cb in range(2):
            c = f'v[{40+4*cb}:{43+4*cb}]'
            A(f'v_mfma_f32_16x16x32_bf16 {c}, v[{20+4*t}:{23+4*t}], v[{128+8*t+4*cb}:{131+8*t+4*cb}], {c if t else 0}')
    A(f'''s_mov_b32 exec_hi, 0
v_cndmask_b32 v40, v40, v44, vcc
ds_write_b32 v37, v40
s_mov_b32 exec_hi, -1
s_cmp_lg_u32 s28, 0
s_waitcnt lgkmcnt(0)
s_barrier
s_cbranch_scc1 L_wend
ds_read_b128 v[16:19], v13 offset:{L_RED}
s_waitcnt lgkmcnt(0)
v_pk_add_f32 v[16:17], v[16:17], v[18:19]
v_add_f32 v16, v16, v17
v_bfi_b32 v16, v10, v9, v16''')
    A('global_store_dword v38, v16, s[26:27] sc1\nL_wend:')
    finish()

    A(f'''L_notw:
s_cmp_lt_u32 s30, 27
s_cbranch_scc1 L_rolef
s_cmp_lt_u32 s30, 28
s_cbranch_scc1 L_norole
s_cmp_lg_u32 s28, 0
s_cbranch_scc1 L_norole
s_lshl2_add_u32 s63, s29, s30
s_sub_u32 s63, s63, 28               ; reducer index
s_lshl_b32 s34, s63, 6
s_add_u32 s34, s34, {WS_C}
v_lshrrev_b32 v14, 2, v0
v_and_b32 v15, 12, v14
v_add_u32 v14, v14, v15
v_and_b32 v15, 3, v0
v_lshl_add_u32 v44, v14, 11, v10
v_lshl_add_u32 v44, v15, 4, v44
v_add_u32 v44, s34, v44''')
    for n in range(1, 6): A(f'v_add_u32 v{44+n}, {65536*n}, v44')
    A(f'''s_lshr_b32 s34, s63, 3
s_lshl_b32 s34, s34, 7
s_and_b32 s35, s63, 3
s_lshl_b32 s35, s35, 5
s_add_u32 s34, s34, s35
s_and_b32 s35, s63, 4
s_add_u32 s34, s34, s35
v_lshrrev_b32 v14, 4, v0
v_lshl_add_u32 v14, v15, 3, v14
v_add_u32 v14, s34, v14
v_lshlrev_b32 v51, 1, v14
v_lshlrev_b32 v50, 2, v14
v_add_u32 v50, {WS_H}, v50
v_add_u32 v50, v50, v10
v_mov_b32 v52, {WS_E}
v_mov_b32 v53, s3''')
    tagreg(9, 50, 8)
    if tlb & 4: A('s_mov_b64 exec, 1\nglobal_load_ushort v62, v51, s[22:23]\ns_mov_b64 exec, -1')
    for x in (96, 128, 152, 176)[:max(rdep, 1)]: A(f'v_mov_b32 v{x+20}, v8\nv_mov_b32 v{x+21}, 0\nv_mov_b32 v{x+22}, 0\nv_mov_b32 v{x+23}, 0')
    bars()
    lds = [(f'global_load_dwordx4 v[{96+4*n}:{99+4*n}], v{44+n}, s[26:27] sc1', 96 + 4 * n) for n in range(6)]
    for l in lds[:5]: A(l[0])
    A(f's_mov_b64 exec, 0xffffff\n{lds[5][0]}\ns_mov_b64 exec, -1')
    poll([('global_load_dword v41, v50, s[26:27] sc1', 41)], 40, 9, 42, slp=1)
    ST(9)
    if rdep:
        def rload(x):
            for n in range(6): A(('s_mov_b64 exec, 0xffffff\n' if n == 5 else '') + f'global_load_dwordx4 v[{x+4*n}:{x+4*n+3}], v{44+n}, s[26:27] sc1')
            A('s_mov_b64 exec, -1')
        deep(rload, 6, [96, 128, 152, 176][:rdep], 120, 8, 42, 16)
        ST(8)
    else:
        poll(lds, 120, 8, 42, part=0xffffff)
        ST(8)
        gsum(96, 120, 6, 16)
    A(f'''v_permlane16_swap_b32 v16, v17
v_add_f32 v16, v16, v17
v_add_f32_dpp v16, v16, v16 row_ror:8 {FULL}
v_add_f32_dpp v16, v16, v16 row_ror:4 {FULL}''')
    A(f'''v_add_f32 v16, v16, v40
v_cvt_pk_bf16_f32 v16, v16, v16
s_mov_b32 exec_lo, 0x000f000f
s_mov_b32 exec_hi, 0x000f000f
global_store_short v51, v16, s[22:23] {outf}
s_cmp_lg_u32 s63, 0
s_cbranch_scc1 L_rend
s_mov_b64 exec, 1
global_store_dword v52, v53, s[26:27] sc1
L_rend:''')
    if amp:
        ST(14)
        A(f'''s_memrealtime s[96:97]
s_waitcnt lgkmcnt(0)
s_sub_u32 s98, s100, s98
s_mul_i32 s98, s98, {amp[2]}
s_cmp_lg_u32 s29, {amp[3] if amp[3] >= 0 else 's29'}
s_cbranch_scc1 L_ampd
L_amp:
s_memrealtime s[100:101]
s_waitcnt lgkmcnt(0)
s_sub_u32 s100, s100, s96
s_cmp_lt_u32 s100, s98
s_cbranch_scc1 L_amp
L_ampd:''')
    finish(True)
    A('L_norole:')
    if ((guw == 2 or dtouch == 2 or edge) if cfgy else 2 in twhen): bars()
    else:
        A('s_barrier'); touch(1, 'x')
    finish()

    page()
    A(f'''L_rolef:
s_mul_i32 s63, s29, 11
s_add_u32 s63, s63, s30
s_sub_u32 s63, s63, 16
s_cmp_ge_u32 s63, 86
s_cbranch_scc1 L_norole
s_mul_i32 s34, s28, {128*2752}
s_lshl_b32 s35, s63, 5
s_add_u32 s34, s34, s35
s_add_u32 s36, s16, s34
s_addc_u32 s37, s17, 0
s_mov_b32 s38, {127*2752+32}
s_mov_b32 s39, 0x20000
s_add_u32 s40, s18, s34
s_addc_u32 s41, s19, 0
s_mov_b32 s42, {127*2752+32}
s_mov_b32 s43, 0x20000
s_lshl_b32 s34, s63, 14
s_lshl_b32 s35, s28, 8
s_add_u32 s34, s34, s35
s_add_u32 s20, s20, s34
s_addc_u32 s21, s21, 0
s_add_u32 s4, s4, s35
s_addc_u32 s5, s5, 0
s_lshl_b32 s35, s28, 9
s_add_u32 s34, s35, {WS_B+4096}
s_add_u32 s44, s26, s34
s_addc_u32 s45, s27, 0
v_lshl_add_u32 v6, v12, 14, v13
v_add_u32 v6, v6, v10
v_bfe_u32 v14, v0, 3, 2
v_lshlrev_b32 v14, 3, v14
v_lshl_add_u32 v14, v12, 2, v14
v_bfe_u32 v15, v0, 1, 2
v_add_u32 v14, v14, v15
v_mul_u32_u24 v14, 2752, v14
v_and_b32 v15, 1, v0
v_lshl_add_u32 v15, v15, 4, v14
v_lshl_add_u32 v33, v0, 3, s47
v_lshrrev_b32 v36, 1, v13
v_lshl_add_u32 v36, v12, 2, v36      ; byte offset of this lane's bf16 pair inside 128 columns
s_add_u32 s34, s35, {WS_H}
v_lshl_add_u32 v39, v36, 1, s34
v_add_u32 v37, s46, v36
v_and_b32 v38, 15, v0
v_lshrrev_b32 v14, 4, v0
v_lshlrev_b32 v34, 4, v38
v_lshl_add_u32 v34, v14, 10, v34
v_add_u32 v34, 0x1000, v34
v_add_u32 v35, 0x2000, v34
v_lshl_add_u32 v56, v14, 4, s46
v_mov_b32 v57, {L_RED+256}
v_cmp_eq_u32 vcc, 1, v38
v_cndmask_b32 v56, v56, v57, vcc
s_lshl_b32 s34, s28, 2
v_lshl_add_u32 v60, v12, 4, s34
s_lshl_b32 s34, s28, 3
s_add_u32 s34, s34, {L_OP}
v_mul_u32_u24 v57, 80, v38
v_add_u32 v57, s34, v57
v_and_b32 v58, 12, v0
v_add_u32 v58, v58, v14
v_mul_u32_u24 v58, 80, v58
s_andn2_b32 s34, s63, 3
s_add_u32 s34, s34, s63
s_lshl2_add_u32 s34, s34, s28
s_lshl_b32 s34, s34, 9
s_add_u32 s34, s34, {WS_C}
v_lshl_add_u32 v59, v12, 13, v13
v_add_u32 v59, s34, v59
v_mov_b32 v44, 0x3f803f80
v_lshlrev_b32 v45, 2, v0
ds_write_b32 v45, v44 offset:{L_RED+256}
v_mov_b32 v63, {L_RED}
v_mov_b32 v46, {EPS:#x}
v_and_b32 v40, 1, v0
v_lshlrev_b32 v40, 4, v40
v_mov_b32 v41, 0xffff
v_lshlrev_b32 v40, v40, v41
v_bfe_u32 v41, v0, 1, 2
s_mov_b32 s60, 1
s_mov_b32 s61, 1''')
    for w in range(4): A(f'v_cmp_eq_u32 vcc, {w}, v41\nv_cndmask_b32 v{48+w}, 0, v40, vcc')
    if tlb & 2: A('s_mov_b64 exec, 1\nbuffer_load_dword v62, v15, s[36:39], 0 offen\nbuffer_load_dword v62, v15, s[40:43], 0 offen\nglobal_load_dword v62, v34, s[20:21]\ns_mov_b64 exec, -1')
    def dloads():
        for n in range(4): A(f'global_load_dwordx4 v[{160+4*n}:{163+4*n}], v{34+(n>>1)}, s[20:21] offset:{4096*(n&1)-4096} {"" if dtouch else "nt"}')
    dp = dpos if cfgy else ('bar1' if dearly else 'first')
    A(f's_and_b32 s68, s63, {frot}\ns_lshl_b32 s34, s68, 6\nv_xor_b32 v37, s34, v37')
    def fl(a, b):
        for jm in range(a, b):
            j, m = jm >> 1, jm & 1
            if jm in fbar and jm >= fsplit: A('s_barrier')
            A(f's_xor_b32 s34, s68, {j}\ns_mul_i32 s34, s34, {32*2752}\ns_add_u32 m0, s47, {4096*m+1024*j}')
            A(f'buffer_load_dwordx4 v15, s[{36+4*m}:{39+4*m}], s34 offen {wf} lds')
    A('global_load_dword v32, v36, s[4:5]')
    if bpre:
        A('s_sub_u32 s34, s30, 16\ns_lshl_b32 s34, s34, 1\ns_mov_b64 exec, 0x01010101\ns_mov_b32 exec_hi, 0x01010101')
        A('s_and_b32 s34, s30, 3\ns_lshl_b32 s34, s34, 11\nv_add_u32 v9, s34, v6\nglobal_load_dword v62, v9, s[44:45] offset:-4096 sc1\ns_mov_b64 exec, -1')
    if dp == 'mid': dloads()
    def fearly():
        if dp == 'bar1': dloads()
        fl(0, fsplit)
    bars(fearly, 'F')
    if dp == 'first': dloads()
    fl(fsplit, 8)
    if dp == 'last': dloads()
    def fhook(n, inner=None):
        n += 4 if dp == 'last' else 0
        for t in range(4):
            A(f's_waitcnt vmcnt({n + 6 - 2 * t})')
            if inner and t == late - 1: n += inner()
            if t == 3:
                ST(10)
                if inner and repoll and late < 4: fload(96)
            for m in range(2):
                for hf in range(2):
                    r = 128 + 16 * m + 4 * t + 2 * hf
                    A(f'ds_read_b64_tr_b16 v[{r}:{r+1}], v33 offset:{4096*m+1024*t+512*hf}')
            if t == 0: A('v_and_b32 v41, 0xffff0000, v32\nv_lshlrev_b32 v40, 16, v32')
    def gemv(a, between=None):
        for t in range(4):
            if between: between(t)
            for m in range(2):
                c = f'v[{64+4*m}:{67+4*m}]'
                A(f'v_mfma_f32_16x16x32_bf16 {c}, v[{a(t)}:{a(t)+3}], v[{128+16*m+4*t}:{131+16*m+4*t}], {c if t else 0}')
    if fdep:
        def fload(x):
            for n in range(4): A(f'global_load_dwordx4 v[{x+4*n}:{x+4*n+3}], v6, s[44:45] offset:{2048*n-4096} sc1')
        if ftrig:
            fload(96)
            A('s_and_b32 s34, s29, 4\ns_add_u32 s34, s34, s29\ns_lshl_b32 s34, s34, 11\nv_and_b32 v9, 1, v0\nv_lshl_add_u32 v9, v9, 4, s34\nv_add_u32 v9, v9, v10')
            poll([('global_load_dword v124, v9, s[44:45] offset:-4096 sc1', 124)], 120, 8, 42, hook=lambda n: fhook(5), slp=1)
        def inner():
            if dp == 'in': dloads()
            fload(96)
            return 8 if dp == 'in' else 4
        if late: fhook(0, inner)
        elif not ftrig and not fpeel: fhook(0)
        deep(fload, 4, [96, 176, 192, 208][:fdep], 120, 8, 42, 16, hook=fhook if fpeel and not ftrig else None, issued=bool(late))
        ST(8)
    else:
        poll([(f'global_load_dwordx4 v[{96+4*n}:{99+4*n}], v6, s[44:45] offset:{2048*n-4096} sc1', 96 + 4 * n) for n in range(4)], 120, 8, 42, hook=fhook)
        ST(8)
        gsum(96, 120, 4, 16)
    A(f'''v_pk_add_f32 v[16:17], v[16:17], v[40:41]
v_cvt_pk_bf16_f32 v18, v16, v17
ds_write_b32 v37, v18''')
    for t in range(4): A(f'ds_read_b128 v[{72+4*t}:{75+4*t}], v56 offset:{64*t}')
    A(f'''v_dot2_f32_bf16 v16, v18, v44, 0
v_dot2_f32_bf16 v17, v18, v18, 0
s_cmp_eq_u32 s63, 0
s_cbranch_scc1 L_puth
L_noh:
v_permlane32_swap_b32 v16, v17
v_add_f32 v16, v16, v17''')
    cold.append(lambda: A('''L_puth:
v_lshl_or_b32 v42, v18, 16, v8
v_and_b32 v43, 0xffff0000, v18
v_or_b32 v43, v43, v8
global_store_dwordx2 v39, v[42:43], s[26:27] sc1
v_add_u32 v39, 0x2000, v39
global_store_dwordx2 v39, v[42:43], s[26:27] sc1
s_branch L_noh'''))
    for r in (8, 4): A(f'v_add_f32_dpp v16, v16, v16 row_ror:{r} {FULL}')
    def between(t):
        if t == 1: A(f'v_add_f32_dpp v16, v16, v16 row_ror:2 {FULL}')
        if t == 2: A(f'v_add_f32_dpp v16, v16, v16 row_ror:1 {FULL}\nv_mov_b32 v17, v16')
        if t == 3: A('v_permlane16_swap_b32 v16, v17\nv_add_f32 v16, v16, v17')
        A(f's_waitcnt lgkmcnt({3-t})')
    gemv(lambda t: 72 + 4 * t, between)
    A(f'''s_mov_b64 exec, s[60:61]
ds_write_b32 v60, v16 offset:{L_RED}
s_mov_b64 exec, 0xffff
ds_write2_b64 v57, v[64:65], v[68:69] offset0:0 offset1:4
s_mov_b64 exec, -1
s_waitcnt lgkmcnt(0)''')
    ST(9)
    A(f'''s_barrier
ds_read_b128 v[24:27], v63
ds_read_b128 v[28:31], v63 offset:16
ds_read_b128 v[16:19], v58 offset:{L_OP}
ds_read_b128 v[20:23], v58 offset:{L_OP+16}
ds_read_b128 v[72:75], v58 offset:{L_OP+32}
ds_read_b128 v[76:79], v58 offset:{L_OP+48}
s_waitcnt lgkmcnt(4)
v_pk_add_f32 v[24:25], v[24:25], v[26:27]
v_pk_add_f32 v[28:29], v[28:29], v[30:31]
v_add_f32 v24, v24, v25
v_add_f32 v28, v28, v29
v_mul_f32 v24, 0xbb000000, v24       ; -mean
v_fmamk_f32 v28, v28, 0x3b000000, v46
v_fma_f32 v28, -v24, v24, v28
v_max_f32 v28, v28, v46
v_rsq_f32 v28, v28
s_waitcnt lgkmcnt(2)
v_pk_add_f32 v[16:17], v[16:17], v[18:19]
v_pk_add_f32 v[20:21], v[20:21], v[22:23]
v_mul_f32 v29, {LOG2E ^ 0x80000000:#x}, v28
v_pk_add_f32 v[16:17], v[16:17], v[20:21]
v_fmac_f32 v16, v24, v17
v_mul_f32 v17, v16, v29
v_exp_f32 v17, v17
s_waitcnt lgkmcnt(0)
v_pk_add_f32 v[72:73], v[72:73], v[74:75]
v_add_f32 v17, 1.0, v17
v_rcp_f32 v17, v17
v_pk_add_f32 v[76:77], v[76:77], v[78:79]
v_mul_f32 v16, v16, v28              ; gate
v_pk_add_f32 v[72:73], v[72:73], v[76:77]
v_mul_f32 v16, v16, v17              ; silu(gate)
v_fmac_f32 v72, v24, v73
v_mul_f32 v16, v16, v28
v_mul_f32 v16, v16, v72
v_cvt_pk_bf16_f32 v16, v16, v16''')
    ops = [f'v_and_b32_dpp v{72+4*n+w}, v16, v{48+w} row_newbcast:{4*n} {FULL}' for n in range(4) for w in range(4)]
    for n in range(4):
        for o in ops[(4 * n + 2 if n else 0):4 * n + 6]: A(o)
        A(f'v_mfma_f32_16x16x32_bf16 v[64:67], v[{72+4*n}:{75+4*n}], v[{160+4*n}:{163+4*n}], {"v[64:67]" if n else 0}')
    A('v_bfi_b32 v64, v11, v8, v64\nglobal_store_dwordx4 v59, v[64:67], s[26:27] sc1')
    finish()

    page()
    A(f'''L_vwave:
s_add_u32 s36, s8, s34
s_addc_u32 s37, s9, 0
s_lshl3_add_u32 s35, s31, s32
s_lshl_b32 s35, s35, 10
s_add_u32 s44, s26, s35
s_addc_u32 s45, s27, 0
v_mov_b32 v56, {L_ML}
s_lshr_b32 s56, s2, 6
s_lshl_b32 s56, s56, 7
s_and_b32 s35, s2, 63
s_add_u32 s56, s56, s35
s_lshl_b32 s56, s56, 7
s_add_u32 s56, s56, {WS_PR}
s_cmp_lg_u32 s28, {99 if nox else 5}
s_cbranch_scc1 L_nowarm
s_load_dword s54, s[26:27], s56 glc
s_load_dword s55, s[26:27], s56 offset:0x2000 glc
L_nowarm:''')
    ST(7)
    selectors(40, 28)
    A(f'''s_lshl_b32 s34, s63, 10
s_add_u32 s34, s34, {L_OP}
v_lshrrev_b32 v12, 5, v0
v_lshl_add_u32 v12, v12, 9, s34
v_lshl_add_u32 v12, v4, 2, v12
v_bfe_u32 v13, v0, 4, 1
v_lshl_add_u32 v12, v13, 5, v12
v_lshlrev_b32 v14, 3, v0
s_lshl_b32 s34, s32, 5
s_add_u32 s34, s34, s63
s_lshl_b32 s34, s34, 2
v_lshl_add_u32 v6, v3, 4, s34
v_mov_b32 v57, 1
s_waitcnt vmcnt(4)''')
    ST(1)
    layernorm(24, 28, 24)
    A(f'ds_write_b128 v5, v[24:27] offset:{L_H}\ns_waitcnt lgkmcnt(0)\nds_read_b32 v48, v6 offset:{L_H}\ns_add_u32 s3, s3, {EPOCH_STEP:#x}')
    tagreg(8, 14, 4)
    A('s_waitcnt lgkmcnt(0)')
    for n in range(2): afrag(24 + 4 * n, 48, n, 40)
    A('s_waitcnt vmcnt(0)')
    for n in range(2):
        for hf in range(2):
            c = f'v[{16+4*hf}:{19+4*hf}]'
            A(f'v_mfma_f32_16x16x32_bf16 {c}, v[{24+4*n}:{27+4*n}], v[{64+8*n+4*hf}:{67+8*n+4*hf}], {c if n else 0}')
    def part_write():
        A(f'''s_mov_b32 exec_lo, 0x00ff00ff
s_mov_b32 exec_hi, 0xff00ff00
ds_write2_b64 v12, v[16:17], v[20:21] offset0:0 offset1:1
ds_write2_b64 v12, v[18:19], v[22:23] offset0:2 offset1:3''')
    def part_sum(off):
        for n in range(4): A(f'ds_read_b128 v[{16+4*n}:{19+4*n}], v5 offset:{L_OP+1024*n}')
        A('s_waitcnt lgkmcnt(0)')
        sum8(16)
    part_write()
    A(f'''s_mov_b64 exec, 1
s_waitcnt lgkmcnt(0)
ds_add_u32 v56, v57 offset:48
s_mov_b64 exec, -1
s_cmp_lg_u32 s28, {99 if noq else 4}
s_cbranch_scc1 L_vstream
''')
    ldsspin('ds_read_b32 v15, v56 offset:48', 'v_cmp_ne_u32 vcc, 4, v15')
    part_sum(0)
    A('v_and_or_b32 v16, v16, -16, v8\nv_and_or_b32 v17, v17, -16, v8\nglobal_store_dwordx2 v14, v[16:17], s[44:45] ' + qst)
    ST(2)
    A(f'''L_vstream:
{'s_mov_b64 exec, 1' + nl + 'buffer_load_dword v15, v2, s[36:39], s33 offen nt' + nl + 's_mov_b64 exec, -1' + nl + 's_waitcnt vmcnt(0)' if tlb & 8 else ''}
s_setprio 0
s_cmp_lg_u32 s28, {99 if nox else 5}
s_cbranch_scc1 L_noprobe
s_mov_b32 s54, {0 if psum else -1}
s_mov_b32 s55, {0 if psum else -1}
s_waitcnt lgkmcnt(0)''')
    for i in range(2 * nprobe):
        A(f's_memtime s[50:51]\ns_load_dword s35, s[26:27], s56 offset:{0x2000 * (i & 1)} glc\ns_waitcnt lgkmcnt(0)\ns_memtime s[52:53]\ns_waitcnt lgkmcnt(0)\ns_sub_u32 s35, s52, s50\n{"s_add_u32" if psum else "s_min_u32"} s{54 + (i & 1)}, s{54 + (i & 1)}, s35')
    A(f'''s_getreg_b32 s34, hwreg(HW_REG_XCC_ID, 0, 4)
s_andn2_b32 s35, s3, 31
s_or_b32 s34, s34, s35
s_cmp_lt_u32 s55, s54
s_cselect_b32 s35, 16, 0
s_or_b32 s34, s34, s35
v_mov_b32 v31, s34
s_lshl_b32 s34, s29, 6
s_add_u32 s34, s34, s30
s_lshl_b32 s34, s34, 2
s_add_u32 s34, s34, {WS_X}
v_mov_b32 v30, s34
s_mov_b64 exec, 1
global_store_dword v30, v31, s[26:27] {xst}
s_mov_b64 exec, -1
L_noprobe:
s_lshl_b32 s34, s63, 2
v_mov_b32 v28, s34''')
    ST(8)
    ldsspin(f'ds_read_b32 v15, v28 offset:{L_ML+64}', 'v_cmp_eq_u32 vcc, 0, v15', 1)
    A(f'''s_lshl_b32 s34, s29, 8
s_add_u32 s34, s34, {WS_X}
v_and_b32 v30, 31, v0
v_lshl_add_u32 v30, v30, 2, s34
s_getreg_b32 s34, hwreg(HW_REG_XCC_ID, 0, 4)
s_andn2_b32 s46, s3, 31
s_or_b32 s46, s46, s34''')
    tv = thrv or thr
    stream({xpos: 'global_load_dword v31, v30, s[26:27] sc1',
            xpos + tv: f'''v_and_b32 v31, -17, v31
v_cmp_ne_u32 s[48:49], s46, v31
s_cmp_eq_u64 s[48:49], {"s[48:49]" if nox else 0}
s_cselect_b64 s[50:51], -1, 0
s_cselect_b64 s[52:53], 0, -1
s_cbranch_scc0 L_requeue
L_requeued:'''}, tv, extra_at=xpos, slow=slowv)
    cold.append(lambda: A('''L_requeue:
s_cmp_lg_u32 s28, 4
s_cbranch_scc1 L_requeued
global_store_dwordx2 v14, v[16:17], s[44:45] sc1
s_waitcnt vmcnt(0)
s_branch L_requeued'''))
    A('v_mov_b32 v11, 0xff')
    tagreg(8, 14, 8)
    tagmask(10, 14)
    ST(3)
    A(f'''s_lshl_b32 s34, s63, 8
v_lshl_add_u32 v6, v3, 5, s34
s_barrier''')
    ST(4)
    A(f'ds_read_b128 v[48:51], v6 offset:{L_P}\nds_read_b128 v[52:55], v6 offset:{L_P+16}\ns_waitcnt lgkmcnt(0)')
    for i in range(16): afrag(64 + 4 * i, 48 + i // 2, i & 1, 40)
    for i in range(16):
        for hf in range(2):
            if hf == 0 or i >= 12: A(f's_waitcnt vmcnt({31-2*i-hf if i >= 12 else 30-2*i})')
            c = f'v[{16+4*hf}:{19+4*hf}]'
            A(f'v_mfma_f32_16x16x32_bf16 {c}, v[{64+4*i}:{67+4*i}], v[{128+8*i+4*hf}:{131+8*i+4*hf}], {c if i else 0}')
    part_write()
    A('s_mov_b64 exec, -1\ns_waitcnt lgkmcnt(0)')
    ST(5)
    A('s_setprio 3\ns_barrier\ns_cmp_lg_u32 s28, 4\ns_cbranch_scc1 L_vend')
    if tailtest:
        A(f'''s_barrier
L_tt:
s_memrealtime s[96:97]
s_waitcnt lgkmcnt(0)
s_sub_u32 s96, s96, s98
s_cmp_lt_u32 s96, {tailtest}
s_cbranch_scc1 L_tt''')
        ST(5)
    part_sum(512)
    A('v_bfi_b32 v16, v10, v8, v16')
    if afast: A('s_mov_b64 exec, s[50:51]\nglobal_store_dwordx2 v14, v[16:17], s[44:45] offset:512\ns_mov_b64 exec, s[52:53]')
    A('global_store_dwordx2 v14, v[16:17], s[44:45] offset:512 sc1')
    ST(6)
    A(('' if tailtest else 's_barrier\n') + 'L_vend:')
    finish()
    A(f'L_exit:\ns_endpgm\nL_code_end:\n.fill (L_pc+{33*512}-L_code_end)/4, 4, 0xbf810000')
    A.raw(f'''.section .rodata,"a"
.p2align 6
.amdhsa_kernel {NAME}_kernel
  .amdhsa_next_free_vgpr 256
  .amdhsa_next_free_sgpr 102
  .amdhsa_accum_offset 256
  .amdhsa_group_segment_fixed_size 0
  .amdhsa_kernarg_size 96
  .amdhsa_user_sgpr_count 2
  .amdhsa_user_sgpr_kernarg_segment_ptr 1
  .amdhsa_system_sgpr_workgroup_id_x 1
  .amdhsa_float_denorm_mode_32 3
.end_amdhsa_kernel''')
    return A.text()

def STAMPS(al, roles, KW, VW):
    import numpy as np
    return [('start', al, KW + VW, 0), ('V at vwave', al, VW, 7), ('Q: x landed', al, VW, 1), ('Q: stored', al, [4], 2), ('V probed', al, VW, 8), ('probe/100 lo', np.arange(256) % 8 < 4, KW, 12), ('probe/100 hi', np.arange(256) % 8 >= 4, KW, 12), ('K issued', al, KW, 1), ('K go', al, KW, 2),
            ('K q gathered', al, KW, 3), ('K qk done', al, KW, 11), ('K ml lds', al, [0], 4), ('K ml gathered', al, KW, 5), ('K p written', al, KW, 6),
            ('V issued', al, VW, 3), ('V bar1', al, VW, 4), ('V pv done', al, VW, 5), ('A stored', al, [4], 6), ('K bar3', al, KW, 7),
            ('W wts landed', roles == 'W', KW, 10), ('F wts landed', roles == 'F', KW, 10),
            ('W gathered', roles == 'W', KW, 8), ('W end', roles == 'W', [0], 15), ('F gathered', roles == 'F', KW, 8), ('F gemv done', roles == 'F', KW, 9),
            ('F end', roles == 'F', KW, 15), ('R h seen', roles == 'R', [0], 9), ('R gathered', roles == 'R', [0], 8), ('R end', roles == 'R', [0], 15)]

if __name__ == '__main__':
    out = sys.argv[1] if len(sys.argv) > 1 else f'cdna_kernels/{NAME}.s'
    kw = eval('dict(' + (sys.argv[2] if len(sys.argv) > 2 else '') + ')')
    open(out, 'w').write(gen(**kw))
```

```python
import sys
from asmlib import Asm

NAME = 'sequential_preLN__sliding_block_cached__swiglu_ffn__decode'
WS_QA, WS_B, WS_H, WS_ML, WS_X, WS_E, WS_PR, WS_C, WS_ST = 0x0, 0x40000, 0x48000, 0x4c000, 0x4e000, 0x4f000, 0x60000, 0x80000, 0x100000
EPOCH_STEP = 0x5bd1e3c7
L_P, L_OP, L_SCR, L_H, L_RED, L_ML, L_Q, L_W = 0x0, 0x400, 0x1400, 0x1800, 0x1c00, 0x1e00, 0x1f00, 0x2000
LDS_BYTES = L_W + 0x8000
SPIN = 0x40000
LOG2E = 0x3fb8aa3b
SCALE = 0x3db504f3
EPS = 0x3727c5ac
FULL = 'row_mask:0xf bank_mask:0xf'
nl = '\n'

def gen(diag=False, span=False, amp=None, mlsleep=2, kvf='nt', kpre=3, twhen=(1, 1), tf='', wf='', thr=8, gow=4, qpos=24,
        dearly=True, thrv=None, notail=False, noml=False, noq=False, tailtest=0, psleep=0, nosr=0, afast=True, pages=True, pf=2, fdep=1, rdep=1, ftrig=False, pol=None, nprobe=2, psum=False, cfgy=True, guw=2, wsplit=2, dpos='last', wo0=False, trig=0, tlb=0, outf='', slowk=(), slowv=(), slowif='ge', fsplit=0, dtouch=2, frot=0, fpeel=False, bpre=False, apre=False, nox=False, qst='', xst='', xpos=4, wo1=1, late=0, fbar=(0,), xbar=True, guall=False, edge=False, repoll=False, gut=None, dbgp=False):
    A = Asm()
    cold = []
    uid = [0]
    def lab(s):
        uid[0] += 1
        return f'L_{s}_{uid[0]}'
    def ST(n):
        if amp and n == amp[0]: A('s_memrealtime s[98:99]')
        if amp and n == amp[1]: A('s_memrealtime s[100:101]')
        if diag: A(f's_memrealtime s[96:97]\ns_waitcnt lgkmcnt(0)\nv_writelane_b32 v7, s96, {n}')
    def flush_cold():
        for f in cold: f()
        cold.clear()
    def finish(last=False):
        if diag or (span and last):
            A(f'''s_memrealtime s[96:97]
s_waitcnt lgkmcnt(0)
v_writelane_b32 v7, s96, 15
v_writelane_b32 v7, s98, 0
s_mov_b64 exec, 0xffff
s_lshl_b32 s34, s2, 3
s_add_u32 s34, s34, s28
s_lshl_b32 s34, s34, 6
s_add_u32 s34, s34, {WS_ST}
v_lshl_add_u32 v1, v0, 2, s34
global_store_dword v1, v7, s[26:27]''')
        A('s_endpgm')
        flush_cold()
    def wred(op, v, t):
        for r in (8, 4, 2, 1): A(f'{op}_dpp v{v}, v{v}, v{v} row_ror:{r} {FULL}')
        for sw in (16, 32): A(f'v_mov_b32 v{t}, v{v}\nv_permlane{sw}_swap_b32 v{v}, v{t}\n{op} v{v}, v{v}, v{t}')
    def rnd(v):
        A(f'v_cvt_pk_bf16_f32 v{v}, v{v}, v{v}\nv_lshlrev_b32 v{v}, 16, v{v}')
    def layernorm(x, u, o):
        s, t, mb, dl = u + 8, u + 9, u + 10, u + 11
        for i in range(4): A(f'v_lshlrev_b32 v{u+2*i}, 16, v{x+i}\nv_and_b32 v{u+2*i+1}, 0xffff0000, v{x+i}')
        A(f'v_add_f32 v{s}, v{u}, v{u+1}\nv_add_f32 v{t}, v{u+2}, v{u+3}\nv_add_f32 v{mb}, v{u+4}, v{u+5}\nv_add_f32 v{dl}, v{u+6}, v{u+7}')
        A(f'v_add_f32 v{s}, v{s}, v{t}\nv_add_f32 v{mb}, v{mb}, v{dl}\nv_add_f32 v{s}, v{s}, v{mb}')
        wred('v_add_f32', s, t)
        A(f'v_mul_f32 v{dl}, 0x3b000000, v{s}')
        A(f'v_cvt_pk_bf16_f32 v{mb}, v{dl}, v{dl}\nv_lshlrev_b32 v{mb}, 16, v{mb}')
        for i in range(8): A(f'v_sub_f32 v{u+i}, v{u+i}, v{mb}')
        A(f'v_sub_f32 v{dl}, v{dl}, v{mb}')
        A(f'v_mul_f32 v{s}, v{u}, v{u}\nv_mul_f32 v{t}, v{u+1}, v{u+1}')
        for i in range(2, 8, 2): A(f'v_fmac_f32 v{s}, v{u+i}, v{u+i}\nv_fmac_f32 v{t}, v{u+i+1}, v{u+i+1}')
        A(f'v_add_f32 v{s}, v{s}, v{t}')
        fill = [f'v_cvt_pk_bf16_f32 v{o+i}, v{u+2*i}, v{u+2*i+1}' for i in range(4)]
        for i in range(4): fill += [f'v_lshlrev_b32 v{u+2*i}, 16, v{o+i}', f'v_and_b32 v{u+2*i+1}, 0xffff0000, v{o+i}']
        fill.append(f'v_mul_f32 v{dl}, v{dl}, v{dl}')
        for r in (8, 4, 2, 1):
            A(fill.pop(0)); A(fill.pop(0))
            A(f'v_add_f32_dpp v{s}, v{s}, v{s} row_ror:{r} {FULL}')
        for sw in (16, 32):
            A(f'v_mov_b32 v{t}, v{s}'); A(fill.pop(0)); A(fill.pop(0))
            A(f'v_permlane{sw}_swap_b32 v{s}, v{t}\nv_add_f32 v{s}, v{s}, v{t}')
        A(fill.pop(0))
        A(f'v_mul_f32 v{s}, 0x3b000000, v{s}\nv_sub_f32 v{s}, v{s}, v{dl}\nv_max_f32 v{s}, 0, v{s}')
        rnd(s)
        A(f'v_add_f32 v{s}, {EPS:#x}, v{s}'); rnd(s)
        A(f'v_sqrt_f32 v{s}, v{s}'); rnd(s)
        A(f'v_rcp_f32 v{s}, v{s}')
        for i in range(8): A(f'v_mul_f32 v{u+i}, v{u+i}, v{s}')
        for i in range(4): A(f'v_cvt_pk_bf16_f32 v{o+i}, v{u+2*i}, v{u+2*i+1}')
    def selectors(sel, t):
        A(f'''v_and_b32 v{t}, 1, v0
v_cmp_eq_u32 vcc, 1, v{t}
v_mov_b32 v{t+1}, 0x0c0c0100
v_mov_b32 v{t+2}, 0x01000c0c
v_cndmask_b32 v{t+1}, v{t+1}, v{t+2}, vcc
v_mov_b32 v{t+2}, 0x0c0c0302
v_mov_b32 v{t+3}, 0x03020c0c
v_cndmask_b32 v{t+2}, v{t+2}, v{t+3}, vcc
v_mov_b32 v{t+3}, 0x0c0c0c0c
v_bfe_u32 v{t}, v0, 1, 2''')
        for w in range(4):
            A(f'v_cmp_eq_u32 vcc, {w}, v{t}\nv_cndmask_b32 v{sel+w}, v{t+3}, v{t+1}, vcc\nv_cndmask_b32 v{sel+4+w}, v{t+3}, v{t+2}, vcc')
    def afrag(dst, src, par, sel):
        for w in range(4): A(f'v_perm_b32 v{dst+w}, v{src}, v{src}, v{sel+4*par+w}')
    def tagreg(dst, addr, bits):
        A(f'v_bfe_u32 v{dst}, v{addr}, 4, 1\nv_lshlrev_b32 v{dst}, {bits-1}, v{dst}\nv_xor_b32 v{dst}, s3, v{dst}\nv_and_b32 v{dst}, {(1 << bits) - 1}, v{dst}')
    def tagmask(dst, addr):
        A(f'v_and_b32 v{dst}, 15, v{addr}\nv_cmp_eq_u32 vcc, 0, v{dst}\nv_mov_b32 v{dst}, 0\nv_cndmask_b32 v{dst}, v{dst}, v11, vcc')
    def poll(loads, y, T, t, hook=None, slp=0, part=None):
        n = len(loads)
        L, Lc, Ld = lab('again'), lab('chk'), lab('ok')
        full = lambda i: part if (part and i == n - 1) else -1
        def issue():
            for i, l in enumerate(loads): A((f's_mov_b64 exec, s[{48+2*i}:{49+2*i}]\n' if n > 1 else '') + l[0])
            if n > 1: A('s_mov_b64 exec, -1')
        if n > 1:
            for i in range(n): A(f's_mov_b64 s[{48+2*i}:{49+2*i}], {full(i)}')
        A(f's_mov_b32 s62, {SPIN}')
        issue()
        if hook: hook(n)
        A(f's_branch {Lc}\n{L}:')
        if slp or psleep: A(f's_sleep {slp or psleep}')
        issue()
        if n > 1:
            for i in range(n):
                A(f'v_and_b32 v{t}, v11, v{y+i}\nv_cmp_ne_u32 vcc, 0, v{t}\ns_cmp_lg_u64 vcc, 0\ns_cselect_b64 s[{48+2*i}:{49+2*i}], {full(i)}, 0')
        A(f's_sub_u32 s62, s62, 1\ns_cbranch_scc1 {Ld}\n{Lc}:\ns_waitcnt vmcnt(0)')
        for i, l in enumerate(loads): A(f'v_xor_b32 v{y+i}, v{l[1]}, v{T}')
        if n == 1: A(f'v_and_b32 v{t}, v11, v{y}')
        else:
            A(f'v_or3_b32 v{t}, v{y}, v{y+1}, v{y+2}')
            for i in range(3, n - 1, 2): A(f'v_or3_b32 v{t}, v{t}, v{y+i}, v{y+i+1}')
            A(f'v_bitop3_b32 v{t}, v{t}, v{y+n-1}, v11 bitop3:0xa8')
        A(f'v_cmp_ne_u32 vcc, 0, v{t}\ns_cbranch_vccnz {L}\n{Ld}:')
    def gsum(x, y, n, d):
        src = lambda i, r: f'v{y+i}' if r == 0 else f'v{x+4*i+r}'
        for i in range(0, n, 2):
            dd = d + 2 * i
            A(f'v_pk_add_f32 v[{dd+2}:{dd+3}], v[{x+4*i+2}:{x+4*i+3}], v[{x+4*i+6}:{x+4*i+7}]')
            for r in range(2): A(f'v_add_f32 v{dd+r}, {src(i, r)}, {src(i+1, r)}')
        for i in range(2, n, 2):
            for r in (2, 0): A(f'v_pk_add_f32 v[{d+r}:{d+r+1}], v[{d+r}:{d+r+1}], v[{d+2*i+r}:{d+2*i+r+1}]')
        A(f'v_permlane32_swap_b32 v{d}, v{d+2}\nv_permlane32_swap_b32 v{d+1}, v{d+3}')
        A(f'v_pk_add_f32 v[{d}:{d+1}], v[{d}:{d+1}], v[{d+2}:{d+3}]')
    def deep(load, n, sets, y, T, t, d, hook=None, issued=False):
        x = sets[0]
        L, Lc, Lo = lab('again'), lab('chk'), lab('ok')
        A(f's_mov_b32 s62, {SPIN}')
        if issued: A(f's_branch {Lc}')
        A(f'{L}:')
        load(x)
        A(f's_sub_u32 s62, s62, 1\ns_cbranch_scc1 {Lo}\n{Lc}:')
        for i in range(n):
            if i % 2 == 0: A(f's_waitcnt vmcnt({n-2-i})')
            A(f'v_xor_b32 v{y+i}, v{x+4*i}, v{T}')
            if i % 2 == 1:
                dd = d + 2 * (i - 1)
                if i == 1: A(f'v_or_b32 v{t}, v{y}, v{y+1}')
                elif i < n - 1: A(f'v_or3_b32 v{t}, v{t}, v{y+i-1}, v{y+i}')
                else: A(f'v_or_b32 v{t}, v{t}, v{y+i-1}\nv_bitop3_b32 v{t}, v{t}, v{y+i}, v11 bitop3:0xa8\nv_cmp_ne_u32 vcc, 0, v{t}')
                A(f'v_pk_add_f32 v[{dd+2}:{dd+3}], v[{x+4*i-2}:{x+4*i-1}], v[{x+4*i+2}:{x+4*i+3}]')
                if i == n - 1: A(f's_cbranch_vccnz {L}\n{Lo}:')
                A(f'v_add_f32 v{dd}, v{y+i-1}, v{y+i}\nv_add_f32 v{dd+1}, v{x+4*i-3}, v{x+4*i+1}')
                if i > 1:
                    for r in (2, 0): A(f'v_pk_add_f32 v[{d+r}:{d+r+1}], v[{d+r}:{d+r+1}], v[{dd+r}:{dd+r+1}]')
        A(f'v_permlane32_swap_b32 v{d}, v{d+2}\nv_permlane32_swap_b32 v{d+1}, v{d+3}')
        A(f'v_pk_add_f32 v[{d}:{d+1}], v[{d}:{d+1}], v[{d+2}:{d+3}]')
    def page():
        if pages: A('.p2align 12')
    def sum8(g):
        for i in (0, 2, 8, 10): A(f'v_pk_add_f32 v[{g+i}:{g+i+1}], v[{g+i}:{g+i+1}], v[{g+i+4}:{g+i+5}]')
        for i in (0, 2): A(f'v_pk_add_f32 v[{g+i}:{g+i+1}], v[{g+i}:{g+i+1}], v[{g+i+8}:{g+i+9}]')
        A(f'v_permlane32_swap_b32 v{g}, v{g+2}\nv_permlane32_swap_b32 v{g+1}, v{g+3}')
        A(f'v_pk_add_f32 v[{g}:{g+1}], v[{g}:{g+1}], v[{g+2}:{g+3}]')
    def ldsspin(reads, test, slp=0):
        L, Ld = lab('spin'), lab('spun')
        A(f's_mov_b32 s62, {SPIN}\n{L}:')
        if slp: A(f's_sleep {slp}')
        A(f'{reads}\ns_waitcnt lgkmcnt(0)\n{test}\ns_cbranch_vccz {Ld}\ns_sub_u32 s62, s62, 1\ns_cbranch_scc0 {L}\n{Ld}:')
    def stream(hooks, th, extra_at=None, slow=()):
        if slow: A(f's_cmp_{slowif}_u32 s30, 16\ns_cselect_b64 vcc, -1, 0')
        for i in range(16):
            if i: A('s_addk_i32 s33, 0x2000\ns_bitset0_b32 s33, 17')
            if th and 2 * i >= th:
                ex = 1 if extra_at is not None and 2 * i - (th - 2) < extra_at <= 2 * i else 0
                A(f's_waitcnt vmcnt({th-2+ex})')
            if i in slow:
                Ls = lab('fast')
                A(f's_cbranch_vccz {Ls}\ns_waitcnt vmcnt({th-4})\n{Ls}:')
            for hf in range(2):
                A(f'buffer_load_dwordx4 v[{128+8*i+4*hf}:{131+8*i+4*hf}], v2, s[36:39], s33 offen offset:{128*hf} {kvf}')
                if 2 * i + hf + 1 in hooks: A(hooks[2 * i + hf + 1])

    hdr = open('cdna_kernels/' + NAME + '.s.ref').read().split('\n')
    for ln in hdr:
        if ln.startswith('; @launch'): A.raw(f'; @launch grid=(256,1,1) block=(512,1,1) lds={LDS_BYTES}'); break
        A.raw(ln)
    A.raw(f'.amdgcn_target "amdgcn-amd-amdhsa--gfx950"\n.text\n.globl {NAME}_kernel\n.p2align {12 if pages else 8}\n.p2align 8\n.type {NAME}_kernel,@function\n{NAME}_kernel:')

    if amp: ST(13)
    if span or diag: A('s_memrealtime s[98:99]')
    A(f'''s_load_dwordx16 s[4:19], s[0:1], 0
s_load_dwordx8 s[20:27], s[0:1], 64
s_getpc_b64 s[40:41]
L_pc:
v_lshrrev_b32 v1, 6, v0
s_lshr_b32 s30, s2, 3                ; index inside the head group
v_readfirstlane_b32 s28, v1
v_and_b32 v0, 63, v0
s_lshl3_add_u32 s43, s30, s28
s_lshl_b32 s43, s43, 6
{'s_load_dword s42, s[40:41], s43' if pf == 1 else ''}
s_cmp_ge_u32 s2, 256
s_cbranch_scc1 L_exit
s_and_b32 s29, s2, 7
s_and_b32 s31, s30, 3
s_lshl2_add_u32 s31, s29, s31        ; head
s_lshr_b32 s32, s30, 2
v_lshrrev_b32 v3, 3, v0              ; lane >> 3
v_and_b32 v4, 7, v0
v_lshlrev_b32 v4, 4, v4              ; (lane & 7) * 16
v_lshl_add_u32 v2, v3, 8, v4
v_lshlrev_b32 v5, 4, v0              ; lane * 16
s_and_b32 s63, s28, 3
s_lshl3_add_u32 s33, s29, s32
s_add_u32 s33, s33, s63
s_and_b32 s33, s33, 63
s_lshl_b32 s33, s33, 11              ; first tile of this wave
s_lshl_b32 s34, s31, 6
s_add_u32 s34, s34, s32
s_add_u32 s34, s34, 56
s_lshl_b32 s34, s34, 17              ; byte offset of this chunk of the window
s_mov_b32 s38, 0x20000
s_mov_b32 s39, 0x20000''')
    if diag: A('v_mov_b32 v7, 0')
    A(f'''s_cmp_lt_u32 s28, 4
s_cbranch_scc1 L_kwave
s_setprio 3
s_lshl_b32 s35, s32, 5
s_add_u32 s35, s35, s63
s_lshl_b32 s35, s35, 6
s_add_u32 s35, s35, s31
s_lshl_b32 s35, s35, 8
v_lshl_add_u32 v6, v3, 16, v4
v_add_u32 v12, 0x2000, v6
v_subrev_u32 v13, 12, v0
v_ashrrev_i32 v13, 31, v13
v_lshlrev_b32 v14, 2, v0
ds_write_b32 v14, v13 offset:{L_ML}
s_waitcnt lgkmcnt(0)
global_load_dwordx4 v[24:27], v5, s[4:5]
{'s_load_dword s42, s[40:41], s43' if pf == 2 else ''}
s_load_dword s3, s[26:27], {WS_E:#x}
s_add_u32 s10, s10, s35
s_addc_u32 s11, s11, 0''')
    for n in range(2):
        for hf in range(2): A(f'global_load_dwordx4 v[{64+8*n+4*hf}:{67+8*n+4*hf}], v{(6, 12)[n]}, s[10:11] offset:{128*hf} nt')
    A('s_barrier\ns_branch L_vwave')

    A(f'''L_kwave:
s_setprio 2
s_waitcnt lgkmcnt(0)
s_add_u32 s36, s6, s34
s_addc_u32 s37, s7, 0''')
    qload = 'global_load_dwordx4 v[16:19], v6, s[44:45] sc1'
    stream({1: 's_load_dword s42, s[40:41], s43' if pf == 2 else '', kpre: f's_load_dword s3, s[26:27], {WS_E:#x}\ns_barrier',
            8: f'''s_lshl_b32 s34, s31, 6
s_add_u32 s34, s34, s28
s_lshl_b32 s34, s34, 7
s_add_u32 s44, s26, s34
s_addc_u32 s45, s27, 0
v_lshl_add_u32 v6, v3, 10, v4''',
            qpos: '' if noq else qload}, thr, extra_at=None if noq else qpos, slow=slowk)
    ST(1)
    A(f'''v_lshrrev_b32 v12, 5, v0             ; lane >> 5
v_and_b32 v13, 31, v0
v_lshlrev_b32 v13, 4, v13            ; (lane & 31) * 16
s_lshl_b32 s46, s28, 8
s_add_u32 s46, s46, {L_SCR}
s_lshl_b32 s34, s28, 6
v_lshrrev_b32 v14, 4, v0
v_lshlrev_b32 v14, 1, v14
v_lshrrev_b32 v15, 1, v4
v_add3_u32 v14, v14, v15, s34
v_mov_b32 v24, {L_ML}
v_mov_b32 v25, 1
s_lshl_b32 s34, s28, 2
v_mov_b32 v26, s34
s_waitcnt lgkmcnt(0)
s_add_u32 s3, s3, {EPOCH_STEP:#x}''')
    tagreg(8, 5, 4)
    A(f's_waitcnt vmcnt({min(gow, 32-qpos)})\nds_write_b32 v26, v25 offset:{L_ML+64}')
    ST(2)
    A(f's_mov_b32 s62, {SPIN}\nL_qchk:')
    for i in range(4): A(f'v_xor_b32 v{20+i}, v{16+i}, v8')
    A('v_or3_b32 v15, v20, v21, v22\nv_bitop3_b32 v15, v15, v23, 15 bitop3:0xa8\nv_cmp_ne_u32 vcc, 0, v15')
    A(('' if noq else 's_cbranch_vccnz L_qagain\n') + 'L_qok:')
    cold.append(lambda: A(f'L_qagain:\n{qload}\ns_sub_u32 s62, s62, 1\ns_waitcnt vmcnt(0)\ns_cbranch_scc0 L_qchk\ns_branch L_qok'))
    ST(3)
    A(f'''v_permlane32_swap_b32 v20, v22
v_permlane32_swap_b32 v21, v23
v_add_f32 v20, v20, v22
v_add_f32 v21, v21, v23
v_permlane16_swap_b32 v20, v21
v_add_f32 v20, v20, v21
v_add_f32_dpp v20, v20, v20 row_ror:8 {FULL}
v_cvt_pk_bf16_f32 v20, v20, v20
v_lshl_add_u32 v6, v12, 12, v13
ds_write_b16 v14, v20 offset:{L_Q}
s_mov_b64 exec, 1
s_waitcnt lgkmcnt(0)
ds_add_u32 v24, v25 offset:52
s_mov_b64 exec, -1''')
    ldsspin('ds_read_b32 v15, v24 offset:52', 'v_cmp_ne_u32 vcc, 4, v15')
    A(f'ds_read_b128 v[16:19], v4 offset:{L_Q}\nds_read_b128 v[20:23], v4 offset:{L_Q+128}\ns_waitcnt lgkmcnt(0)')
    for i0 in range(0, 16, 4):
        A(f's_waitcnt vmcnt({24-2*i0})')
        for e in range(8):
            for i in range(i0, i0 + 4):
                A(f'v_dot2_f32_bf16 v{32+i}, v{128+8*i+e}, v{16+e}, {"v%d" % (32+i) if e else 0}')
    for i in range(8):
        A(f'v_add_f32_dpp v{32+i}, v{32+i}, v{32+i} row_half_mirror row_mask:0xf bank_mask:0x5')
    for i in range(8):
        A(f'v_add_f32_dpp v{32+i}, v{40+i}, v{40+i} row_half_mirror row_mask:0xf bank_mask:0xa')
    A('s_mov_b32 vcc_lo, 0xcccccccc\ns_mov_b32 vcc_hi, 0xcccccccc')
    for i in range(4): A(f'v_cndmask_b32 v{40+i}, v{36+i}, v{32+i}, vcc\nv_cndmask_b32 v{32+i}, v{32+i}, v{36+i}, vcc')
    for i in range(4): A(f'v_add_f32_dpp v{32+i}, v{40+i}, v{32+i} quad_perm:[2,3,0,1] {FULL}')
    A('s_mov_b32 vcc_lo, 0xaaaaaaaa\ns_mov_b32 vcc_hi, 0xaaaaaaaa')
    for i in range(2): A(f'v_cndmask_b32 v{40+i}, v{34+i}, v{32+i}, vcc\nv_cndmask_b32 v{32+i}, v{32+i}, v{34+i}, vcc')
    for i in range(2): A(f'v_add_f32_dpp v{32+i}, v{40+i}, v{32+i} quad_perm:[1,0,3,2] {FULL}')
    r2 = 'v_cvt_pk_bf16_f32 v34, v32, v33\nv_lshlrev_b32 v32, 16, v34\nv_and_b32 v33, 0xffff0000, v34'
    if not nosr & 1: A(r2)
    A(f'v_mul_f32 v32, {SCALE:#x}, v32\nv_mul_f32 v33, {SCALE:#x}, v33')
    if not nosr & 2: A(r2)
    A('v_max_f32 v34, v32, v33')
    wred('v_max_f32', 34, 36)
    A(f'''v_sub_f32 v35, v32, v34
v_sub_f32 v36, v33, v34
v_mul_f32 v35, {LOG2E:#x}, v35
v_mul_f32 v36, {LOG2E:#x}, v36
v_exp_f32 v35, v35
v_exp_f32 v36, v36
v_add_f32 v35, v35, v36''')
    wred('v_add_f32', 35, 36)
    ST(11)
    A(f's_lshl_b32 s34, s29, 8\ns_add_u32 s34, s34, {WS_X}\nv_lshrrev_b32 v10, 2, v13\nv_add_u32 v10, s34, v10\n' + ('' if nox else 'global_load_dword v9, v10, s[26:27] sc1'))
    if noml: A('s_cmp_ge_u32 s30, 0\ns_cbranch_scc1 L_mlok')
    A(f'''v_min_u32 v34, -2, v34
v_min_u32 v35, -2, v35
v_lshl_add_u32 v37, v26, 1, v24
ds_write_b64 v37, v[34:35]
s_cmp_lg_u32 s28, 0
s_cbranch_scc1 L_mlwait''')
    ldsspin('ds_read_b128 v[40:43], v24\nds_read_b128 v[44:47], v24 offset:16',
            'v_max3_u32 v37, v40, v41, v42\nv_max3_u32 v37, v37, v43, v44\nv_max3_u32 v37, v37, v45, v46\nv_max_u32 v37, v37, v47\nv_cmp_eq_u32 vcc, -1, v37')
    ST(4)
    A(f'''s_lshl_b32 s35, s31, 8
s_add_u32 s35, s35, {WS_ML}
v_max3_f32 v48, v40, v42, v44
v_max_f32 v48, v48, v46''')
    for w in range(4): A(f'v_sub_f32 v{40+2*w}, v{40+2*w}, v48')
    for w in range(4): A(f'v_mul_f32 v{40+2*w}, {LOG2E:#x}, v{40+2*w}')
    for w in range(4): A(f'v_exp_f32 v{40+2*w}, v{40+2*w}')
    A('v_mov_b32 v49, s3\nv_mov_b32 v51, s3\nv_mul_f32 v50, v40, v41')
    for w in range(1, 4): A(f'v_fmac_f32 v50, v{40+2*w}, v{41+2*w}')
    A(f'''s_lshl4_add_u32 s34, s32, s35
v_mov_b32 v37, s34
s_mov_b64 exec, 1
global_store_dwordx4 v37, v[48:51], s[26:27] sc1
s_mov_b64 exec, -1''')
    L, Ld = lab('mg'), lab('mgd')
    A(f's_mov_b32 s62, {SPIN}\n{L}:\ns_sleep {mlsleep}\ns_load_dwordx16 s[64:79], s[26:27], s35 glc\ns_load_dwordx16 s[80:95], s[26:27], s35 offset:64 glc\ns_waitcnt lgkmcnt(0)')
    A('s_and_b32 s34, s65, s3\ns_or_b32 s47, s65, s3')
    for i in range(1, 16): A(f's_and_b32 s34, s34, s{65+2*i}\ns_or_b32 s47, s47, s{65+2*i}')
    A(f's_cmp_eq_u32 s34, s47\ns_cbranch_scc1 {Ld}\ns_sub_u32 s62, s62, 1\ns_cbranch_scc0 {L}\n{Ld}:')
    A('v_mov_b32 v34, s64')
    for c in range(1, 8): A(f'v_max_f32 v34, s{64+4*c}, v34')
    for c in range(8): A(f'v_sub_f32 v{40+c}, s{64+4*c}, v34')
    for c in range(8): A(f'v_mul_f32 v{40+c}, {LOG2E:#x}, v{40+c}')
    for c in range(8): A(f'v_exp_f32 v{40+c}, v{40+c}')
    A('v_mul_f32 v35, s66, v40')
    for c in range(1, 8): A(f'v_fmac_f32 v35, s{66+4*c}, v{40+c}')
    A(f'''v_rcp_f32 v35, v35
v_min_u32 v34, -2, v34
v_min_u32 v35, -2, v35
ds_write_b64 v24, v[34:35] offset:32
s_branch L_mlok
L_mlwait:''')
    ldsspin('ds_read_b64 v[34:35], v24 offset:32', 'v_max_u32 v37, v34, v35\nv_cmp_eq_u32 vcc, -1, v37', 1)
    A('L_mlok:')
    ST(5)
    A(f'''v_sub_f32 v32, v32, v34
v_sub_f32 v33, v33, v34
v_mul_f32 v32, {LOG2E:#x}, v32
v_mul_f32 v33, {LOG2E:#x}, v33
v_exp_f32 v32, v32
v_exp_f32 v33, v33
s_lshl_b32 s34, s28, 8
v_lshl_add_u32 v36, v0, 2, s34
v_mul_f32 v32, v32, v35
v_mul_f32 v33, v33, v35
v_cvt_pk_bf16_f32 v32, v32, v33
ds_write_b32 v36, v32 offset:{L_P}
''')
    if not cfgy: A(f'''s_cmp_lt_u32 s28, 2
s_cbranch_scc1 L_two
s_cmp_eq_u32 s28, 2
s_cselect_b32 s64, s16, s18
s_cselect_b32 s65, s17, s19
s_mov_b32 s66, {512*2752}
s_lshl_b32 s34, s30, 4
v_lshrrev_b32 v61, 2, v0
v_add_u32 v61, s34, v61
v_mul_u32_u24 v61, 2752, v61
v_and_b32 v62, 3, v0
v_lshlrev_b32 v62, 7, v62
v_min_u32 v62, 348, v62
s_mul_i32 s34, s29, 352
v_add3_u32 v61, v61, v62, s34
s_branch L_tj
L_two:
s_mov_b32 s64, s12
s_mov_b32 s65, s13
s_mov_b32 s66, {4096*1024}
s_lshl_b32 s34, s29, 5
s_add_u32 s34, s34, s30
s_lshl1_add_u32 s34, s34, s28
s_lshl_b32 s34, s34, 13
v_lshl_add_u32 v61, v0, 7, s34
L_tj:
s_mov_b32 s67, 0x20000''')
    if cfgy: A(f'''s_bitcmp1_b32 s28, 0
s_cselect_b32 s64, s18, s16
s_cselect_b32 s65, s19, s17
s_mov_b32 s66, {512*2752}
s_mov_b32 s67, 0x20000
s_and_b32 s34, s30, {31 if guall else 15}
s_lshr_b32 s35, s28, 1
s_lshl1_add_u32 s34, s34, s35
s_lshl_b32 s34, s34, {3 if guall else 4}
v_lshrrev_b32 v61, 2, v0
v_add_u32 v61, s34, v61
v_mul_u32_u24 v61, 2752, v61
v_and_b32 v62, 3, v0
v_lshlrev_b32 v62, 7, v62
v_min_u32 v62, 348, v62
s_mul_i32 s34, s29, 352
v_add3_u32 v61, v61, v62, s34''')
    def touch(when, role=None):
        if cfgy:
            if when == wo1 and role != 'W':
                Ls = lab('nt')
                if role is None: A(f's_cmp_lt_u32 s30, 16\ns_cbranch_scc1 {Ls}')
                A(f'''s_and_b32 s34, s30, 15
s_lshl2_add_u32 s34, s34, s28
s_andn2_b32 s35, s34, 7
s_add_u32 s34, s34, s35
s_add_u32 s34, s34, 8
s_lshl_b32 s35, s29, 7
s_add_u32 s34, s34, s35
s_lshl_b32 s34, s34, 12
v_lshl_add_u32 v127, v0, 7, s34
s_mov_b32 exec_hi, 0
global_load_dword v62, v127, s[12:13] {tf}
s_mov_b32 exec_hi, -1
{Ls}:''')
            if when == 2 and edge and role == 'x':
                A(f'''s_mul_i32 s34, s29, 11
s_and_b32 s35, s34, 1
s_add_u32 s35, s35, 29
s_sub_u32 s48, s34, s30
s_add_u32 s48, s48, 26
s_sub_u32 s49, s30, s35
s_add_u32 s49, s49, s34
s_add_u32 s49, s49, 11
s_add_u32 s50, s34, 10
s_cmp_lt_u32 s30, s35
s_cselect_b32 s48, s48, s49
s_cselect_b32 s50, s34, s50
s_and_b32 s35, s48, 3
s_lshl2_add_u32 s35, s28, s35
s_lshl_b32 s35, s35, 5
v_and_b32 v63, 31, v0
v_add_u32 v63, s35, v63
v_mul_u32_u24 v63, 2752, v63
s_lshl_b32 s48, s48, 5
s_lshl_b32 s50, s50, 5
v_add_u32 v127, s48, v63
v_add_u32 v63, s50, v63
v_xor_b32 v127, v127, v63
v_min_u32 v63, {512*2752-4}, v63
v_cmp_gt_u32 vcc, 0x80, v127
s_mov_b32 exec_hi, 0
s_mov_b32 exec_lo, vcc_lo
global_load_dword v62, v63, s[16:17] {tf}
global_load_dword v62, v63, s[18:19] {tf}
s_mov_b64 exec, -1''')
            if guall and (when == guw if gut is None else (role is not None and when == gut['WFx'.index(role)])):
                A(f's_mov_b32 exec_hi, 0\nbuffer_load_dword v62, v61, s[64:67], 0 offen {tf}\ns_mov_b32 exec_hi, -1')
            elif not guall and when == guw and role != 'W':
                Ls = lab('nt')
                if role is None: A(f's_cmp_lt_u32 s30, 16\ns_cbranch_scc1 {Ls}')
                A(f'buffer_load_dword v62, v61, s[64:67], 0 offen {tf}\n{Ls}:')
            if when == dtouch and role == 'x':
                if xbar and when == 2: A('s_barrier')
                A(f'''s_sub_u32 s34, s30, 27
s_lshl2_add_u32 s34, s34, s28
s_mul_i32 s34, s34, {71*128}
s_mul_i32 s35, s29, {176*1024}
s_add_u32 s34, s34, s35
v_lshl_add_u32 v63, v0, 7, s34
v_min_u32 v63, {1376*1024-4}, v63
global_load_dword v62, v63, s[20:21]
v_add_u32 v63, 0x2000, v63
v_min_u32 v63, {1376*1024-4}, v63
s_mov_b64 exec, 0x7f
global_load_dword v62, v63, s[20:21]
s_mov_b64 exec, -1''')
            return
        lo, hi = twhen[0] == when, twhen[1] == when
        if not (lo or hi): return
        Ls = lab('nt')
        if not (lo and hi): A(f's_cmp_lt_u32 s28, 2\ns_cbranch_scc{0 if lo else 1} {Ls}')
        A(f'buffer_load_dword v62, v61, s[64:67], 0 offen {tf}\n{Ls}:')
    ST(6)
    A(f'''s_getreg_b32 s34, hwreg(HW_REG_XCC_ID, 0, 4)
s_andn2_b32 s35, s3, 31
s_or_b32 s34, s34, s35
s_or_b32 s35, s34, 16
s_waitcnt vmcnt(0)
v_cmp_eq_u32 s[48:49], s34, v9
v_cmp_eq_u32 s[50:51], s35, v9
s_bcnt1_i32_b32 s48, s48
s_bcnt1_i32_b32 s50, s50
s_cmp_gt_u32 s50, s48
s_cselect_b32 s34, 0x2000, 0
v_mov_b32 v10, s34
''')
    if diag: A('s_sub_u32 s34, s50, s48\ns_add_u32 s34, s34, s98\nv_writelane_b32 v7, s34, 12')
    touch(0)
    if wo0: A(f'''s_lshl_b32 s34, s29, 5
s_add_u32 s34, s34, s30
s_lshl2_add_u32 s34, s34, s28
s_lshl_b32 s34, s34, 12
v_lshl_add_u32 v63, v0, 7, s34
s_mov_b32 exec_hi, 0
global_load_dword v62, v63, s[12:13] {tf}
s_mov_b32 exec_hi, -1''')
    tagreg(8, 5, 8)
    A(f'''v_mov_b32 v11, 0xff
s_lshl_b32 s47, s28, 13
s_add_u32 s47, s47, {L_W}            ; this wave's weight staging area
s_waitcnt lgkmcnt(0)''')
    if pol is not None: A(f's_lshr_b32 s34, s29, 2\ns_xor_b32 s34, s34, {pol}\ns_lshl_b32 s34, s34, 13\nv_mov_b32 v10, s34')
    if notail: A('s_cmp_ge_u32 s30, 0\ns_cbranch_scc1 L_norole')
    A('s_cmp_ge_u32 s30, 16\ns_cbranch_scc1 L_notw')
    def bars(early=None, role='x'):
        A('s_barrier')
        if role == 'W': early()
        touch(1, role)
        if early and role != 'W': early()
        A('s_barrier\ns_barrier')
        if trig and role != 'W':
            L, Ld = lab('trig'), lab('trigd')
            A(f'''s_lshl_b32 s34, s29, 15
v_lshl_add_u32 v125, v13, 6, s34
s_mov_b32 s62, {SPIN}
{L}:
global_load_ubyte v126, v125, s[26:27] offset:512 sc1
s_and_b32 s34, s3, 0xff
s_waitcnt vmcnt(0)
v_cmp_eq_u32 vcc, s34, v126
s_bcnt1_i32_b32 s34, vcc_lo
s_cmp_ge_u32 s34, {trig}
s_cbranch_scc1 {Ld}
s_sleep 2
s_sub_u32 s62, s62, 1
s_cbranch_scc0 {L}
{Ld}:''')
        touch(2, role)
        ST(7)

    A(f'''s_lshl2_add_u32 s34, s29, s28
s_lshl_b32 s35, s34, 13
s_add_u32 s35, s35, 512
s_add_u32 s44, s26, s35
s_addc_u32 s45, s27, 0
s_lshl_b32 s34, s34, 17
s_lshl_b32 s35, s30, 6
s_add_u32 s34, s34, s35
s_add_u32 s40, s12, s34
s_addc_u32 s41, s13, 0
s_mov_b32 s42, {127*1024+64}
s_mov_b32 s43, 0x20000
v_lshrrev_b32 v14, 4, v0             ; g
v_bfe_u32 v15, v0, 2, 2
v_lshl_add_u32 v15, v14, 3, v15
v_and_b32 v32, 1, v14
v_lshlrev_b32 v33, 1, v32
v_and_b32 v34, 3, v0
v_xor_b32 v33, v33, v34
v_lshlrev_b32 v33, 4, v33
v_lshl_add_u32 v15, v15, 10, v33
v_lshrrev_b32 v33, 2, v0
v_lshlrev_b32 v33, 6, v33
v_lshl_add_u32 v33, v34, 3, v33
v_lshl_add_u32 v33, v32, 5, v33
v_add_u32 v33, s47, v33
v_xor_b32 v34, 32, v33
v_lshrrev_b32 v35, 1, v13
v_lshl_add_u32 v35, v12, 2, v35
v_add_u32 v35, s46, v35
v_lshl_add_u32 v36, v14, 4, s46
s_lshl_b32 s34, s28, 2
s_add_u32 s34, s34, {L_RED}
v_add_u32 v37, s34, v13
s_and_b32 s34, s29, 4
s_add_u32 s34, s34, s29
s_lshl4_add_u32 s34, s34, s30
s_lshl_b32 s34, s34, 7
s_add_u32 s34, s34, {WS_B}
v_lshrrev_b32 v38, 2, v13
v_lshl_add_u32 v38, v12, 13, v38
v_add_u32 v38, s34, v38''')
    tagreg(9, 38, 8)
    tagmask(10, 38)
    if tlb & 1: A('s_mov_b64 exec, 1\nbuffer_load_dword v62, v15, s[40:43], 0 offen\ns_mov_b64 exec, -1')
    A('s_and_b32 s60, s30, 1\ns_lshl_b32 s61, s60, 16\ns_lshl_b32 s60, s60, 12')
    def wl(a, b):
        for n in range(a, b):
            A(f's_xor_b32 s34, s60, {1024*n}\ns_add_u32 m0, s47, s34\ns_xor_b32 s34, s61, {(32*(n>>1)+4*(n&1))*1024}')
            A(f'buffer_load_dwordx4 v15, s[40:43], s34 offen {wf} lds')
    if apre:
        A('s_mov_b32 exec_lo, 0x01010101\ns_mov_b32 exec_hi, 0x01010101\ns_and_b32 s34, s30, 3\ns_lshl_b32 s34, s34, 10\nv_add_u32 v63, s34, v6\nglobal_load_dword v62, v63, s[44:45] sc1\ns_mov_b64 exec, -1')
    ws_ = wsplit if cfgy else 0
    bars(lambda: wl(0, ws_), 'W')
    wl(ws_, 8)
    touch(3, 'W')
    def whook(n):
        A(f's_waitcnt vmcnt({n})')
        ST(10)
        for t in range(4):
            for cb in range(2):
                for hf in range(2):
                    r = 128 + 8 * t + 4 * cb + 2 * hf
                    A(f'ds_read_b64_tr_b16 v[{r}:{r+1}], v{33+cb} offset:{1024*(2*t+hf)}')
    poll([(f'global_load_dwordx4 v[{96+4*n}:{99+4*n}], v6, s[44:45] offset:{1024*n} sc1', 96 + 4 * n) for n in range(4)], 120, 8, 39, hook=whook)
    ST(8)
    gsum(96, 120, 4, 16)
    A('v_cvt_pk_bf16_f32 v16, v16, v17\nds_write_b32 v35, v16')
    for t in range(4): A(f'ds_read_b128 v[{20+4*t}:{23+4*t}], v36 offset:{64*t}')
    A('s_mov_b32 vcc_lo, 0xffff0000\ns_mov_b32 vcc_hi, 0xffff0000')
    for t in range(4):
        A(f's_waitcnt lgkmcnt({3-t})')
        for cb in range(2):
            c = f'v[{40+4*cb}:{43+4*cb}]'
            A(f'v_mfma_f32_16x16x32_bf16 {c}, v[{20+4*t}:{23+4*t}], v[{128+8*t+4*cb}:{131+8*t+4*cb}], {c if t else 0}')
    A(f'''s_mov_b32 exec_hi, 0
v_cndmask_b32 v40, v40, v44, vcc
ds_write_b32 v37, v40
s_mov_b32 exec_hi, -1
s_cmp_lg_u32 s28, 0
s_waitcnt lgkmcnt(0)
s_barrier
s_cbranch_scc1 L_wend
ds_read_b128 v[16:19], v13 offset:{L_RED}
s_waitcnt lgkmcnt(0)
v_pk_add_f32 v[16:17], v[16:17], v[18:19]
v_add_f32 v16, v16, v17
v_bfi_b32 v16, v10, v9, v16''')
    A('global_store_dword v38, v16, s[26:27] sc1\nL_wend:')
    finish()

    A(f'''L_notw:
s_cmp_lt_u32 s30, 27
s_cbranch_scc1 L_rolef
s_cmp_lt_u32 s30, 28
s_cbranch_scc1 L_norole
s_cmp_lg_u32 s28, 0
s_cbranch_scc1 L_norole
s_lshl2_add_u32 s63, s29, s30
s_sub_u32 s63, s63, 28               ; reducer index
s_lshl_b32 s34, s63, 6
s_add_u32 s34, s34, {WS_C}
v_lshrrev_b32 v14, 2, v0
v_and_b32 v15, 12, v14
v_add_u32 v14, v14, v15
v_and_b32 v15, 3, v0
v_lshl_add_u32 v44, v14, 11, v10
v_lshl_add_u32 v44, v15, 4, v44
v_add_u32 v44, s34, v44''')
    for n in range(1, 6): A(f'v_add_u32 v{44+n}, {65536*n}, v44')
    A(f'''s_lshr_b32 s34, s63, 3
s_lshl_b32 s34, s34, 7
s_and_b32 s35, s63, 3
s_lshl_b32 s35, s35, 5
s_add_u32 s34, s34, s35
s_and_b32 s35, s63, 4
s_add_u32 s34, s34, s35
v_lshrrev_b32 v14, 4, v0
v_lshl_add_u32 v14, v15, 3, v14
v_add_u32 v14, s34, v14
v_lshlrev_b32 v51, 1, v14
v_lshlrev_b32 v50, 2, v14
v_add_u32 v50, {WS_H}, v50
v_add_u32 v50, v50, v10
v_mov_b32 v52, {WS_E}
v_mov_b32 v53, s3''')
    tagreg(9, 50, 8)
    if tlb & 4: A('s_mov_b64 exec, 1\nglobal_load_ushort v62, v51, s[22:23]\ns_mov_b64 exec, -1')
    for x in (96, 128, 152, 176)[:max(rdep, 1)]: A(f'v_mov_b32 v{x+20}, v8\nv_mov_b32 v{x+21}, 0\nv_mov_b32 v{x+22}, 0\nv_mov_b32 v{x+23}, 0')
    bars()
    lds = [(f'global_load_dwordx4 v[{96+4*n}:{99+4*n}], v{44+n}, s[26:27] sc1', 96 + 4 * n) for n in range(6)]
    for l in lds[:5]: A(l[0])
    A(f's_mov_b64 exec, 0xffffff\n{lds[5][0]}\ns_mov_b64 exec, -1')
    poll([('global_load_dword v41, v50, s[26:27] sc1', 41)], 40, 9, 42, slp=1)
    ST(9)
    if rdep:
        def rload(x):
            for n in range(6): A(('s_mov_b64 exec, 0xffffff\n' if n == 5 else '') + f'global_load_dwordx4 v[{x+4*n}:{x+4*n+3}], v{44+n}, s[26:27] sc1')
            A('s_mov_b64 exec, -1')
        deep(rload, 6, [96, 128, 152, 176][:rdep], 120, 8, 42, 16)
        ST(8)
    else:
        poll(lds, 120, 8, 42, part=0xffffff)
        ST(8)
        gsum(96, 120, 6, 16)
    A(f'''v_permlane16_swap_b32 v16, v17
v_add_f32 v16, v16, v17
v_add_f32_dpp v16, v16, v16 row_ror:8 {FULL}
v_add_f32_dpp v16, v16, v16 row_ror:4 {FULL}''')
    A(f'''v_add_f32 v16, v16, v40
v_cvt_pk_bf16_f32 v16, v16, v16
s_mov_b32 exec_lo, 0x000f000f
s_mov_b32 exec_hi, 0x000f000f
global_store_short v51, v16, s[22:23] {outf}
s_cmp_lg_u32 s63, 0
s_cbranch_scc1 L_rend
s_mov_b64 exec, 1
global_store_dword v52, v53, s[26:27] sc1''')
    if dbgp:
        A('v_mov_b32 v20, 0')
        for i, r in enumerate((26, 27, 6, 7, 8, 9, 12, 16, 18, 20, 22, 24, 4, 10)): A(f'v_mov_b32 v21, s{r}\nglobal_store_dword v20, v21, s[24:25] offset:{4*i}')
        A('global_store_dword v20, v10, s[24:25] offset:56')
    A('L_rend:')
    if amp:
        ST(14)
        A(f'''s_memrealtime s[96:97]
s_waitcnt lgkmcnt(0)
s_sub_u32 s98, s100, s98
s_mul_i32 s98, s98, {amp[2]}
s_cmp_lg_u32 s29, {amp[3] if amp[3] >= 0 else 's29'}
s_cbranch_scc1 L_ampd
L_amp:
s_memrealtime s[100:101]
s_waitcnt lgkmcnt(0)
s_sub_u32 s100, s100, s96
s_cmp_lt_u32 s100, s98
s_cbranch_scc1 L_amp
L_ampd:''')
    finish(True)
    A('L_norole:')
    if ((guw == 2 or dtouch == 2 or edge) if cfgy else 2 in twhen): bars()
    else:
        A('s_barrier'); touch(1, 'x')
    finish()

    page()
    A(f'''L_rolef:
s_mul_i32 s63, s29, 11
s_add_u32 s63, s63, s30
s_sub_u32 s63, s63, 16
s_cmp_ge_u32 s63, 86
s_cbranch_scc1 L_norole
s_mul_i32 s34, s28, {128*2752}
s_lshl_b32 s35, s63, 5
s_add_u32 s34, s34, s35
s_add_u32 s36, s16, s34
s_addc_u32 s37, s17, 0
s_mov_b32 s38, {127*2752+32}
s_mov_b32 s39, 0x20000
s_add_u32 s40, s18, s34
s_addc_u32 s41, s19, 0
s_mov_b32 s42, {127*2752+32}
s_mov_b32 s43, 0x20000
s_lshl_b32 s34, s63, 14
s_lshl_b32 s35, s28, 8
s_add_u32 s34, s34, s35
s_add_u32 s20, s20, s34
s_addc_u32 s21, s21, 0
s_add_u32 s4, s4, s35
s_addc_u32 s5, s5, 0
s_lshl_b32 s35, s28, 9
s_add_u32 s34, s35, {WS_B+4096}
s_add_u32 s44, s26, s34
s_addc_u32 s45, s27, 0
v_lshl_add_u32 v6, v12, 14, v13
v_add_u32 v6, v6, v10
v_bfe_u32 v14, v0, 3, 2
v_lshlrev_b32 v14, 3, v14
v_lshl_add_u32 v14, v12, 2, v14
v_bfe_u32 v15, v0, 1, 2
v_add_u32 v14, v14, v15
v_mul_u32_u24 v14, 2752, v14
v_and_b32 v15, 1, v0
v_lshl_add_u32 v15, v15, 4, v14
v_lshl_add_u32 v33, v0, 3, s47
v_lshrrev_b32 v36, 1, v13
v_lshl_add_u32 v36, v12, 2, v36      ; byte offset of this lane's bf16 pair inside 128 columns
s_add_u32 s34, s35, {WS_H}
v_lshl_add_u32 v39, v36, 1, s34
v_add_u32 v37, s46, v36
v_and_b32 v38, 15, v0
v_lshrrev_b32 v14, 4, v0
v_lshlrev_b32 v34, 4, v38
v_lshl_add_u32 v34, v14, 10, v34
v_add_u32 v34, 0x1000, v34
v_add_u32 v35, 0x2000, v34
v_lshl_add_u32 v56, v14, 4, s46
v_mov_b32 v57, {L_RED+256}
v_cmp_eq_u32 vcc, 1, v38
v_cndmask_b32 v56, v56, v57, vcc
s_lshl_b32 s34, s28, 2
v_lshl_add_u32 v60, v12, 4, s34
s_lshl_b32 s34, s28, 3
s_add_u32 s34, s34, {L_OP}
v_mul_u32_u24 v57, 80, v38
v_add_u32 v57, s34, v57
v_and_b32 v58, 12, v0
v_add_u32 v58, v58, v14
v_mul_u32_u24 v58, 80, v58
s_andn2_b32 s34, s63, 3
s_add_u32 s34, s34, s63
s_lshl2_add_u32 s34, s34, s28
s_lshl_b32 s34, s34, 9
s_add_u32 s34, s34, {WS_C}
v_lshl_add_u32 v59, v12, 13, v13
v_add_u32 v59, s34, v59
v_mov_b32 v44, 0x3f803f80
v_lshlrev_b32 v45, 2, v0
ds_write_b32 v45, v44 offset:{L_RED+256}
v_mov_b32 v63, {L_RED}
v_mov_b32 v46, {EPS:#x}
v_and_b32 v40, 1, v0
v_lshlrev_b32 v40, 4, v40
v_mov_b32 v41, 0xffff
v_lshlrev_b32 v40, v40, v41
v_bfe_u32 v41, v0, 1, 2
s_mov_b32 s60, 1
s_mov_b32 s61, 1''')
    for w in range(4): A(f'v_cmp_eq_u32 vcc, {w}, v41\nv_cndmask_b32 v{48+w}, 0, v40, vcc')
    if tlb & 2: A('s_mov_b64 exec, 1\nbuffer_load_dword v62, v15, s[36:39], 0 offen\nbuffer_load_dword v62, v15, s[40:43], 0 offen\nglobal_load_dword v62, v34, s[20:21]\ns_mov_b64 exec, -1')
    def dloads():
        for n in range(4): A(f'global_load_dwordx4 v[{160+4*n}:{163+4*n}], v{34+(n>>1)}, s[20:21] offset:{4096*(n&1)-4096} {"" if dtouch else "nt"}')
    dp = dpos if cfgy else ('bar1' if dearly else 'first')
    A(f's_and_b32 s68, s63, {frot}\ns_lshl_b32 s34, s68, 6\nv_xor_b32 v37, s34, v37')
    def fl(a, b):
        for jm in range(a, b):
            j, m = jm >> 1, jm & 1
            if jm in fbar and jm >= fsplit: A('s_barrier')
            A(f's_xor_b32 s34, s68, {j}\ns_mul_i32 s34, s34, {32*2752}\ns_add_u32 m0, s47, {4096*m+1024*j}')
            A(f'buffer_load_dwordx4 v15, s[{36+4*m}:{39+4*m}], s34 offen {wf} lds')
    A('global_load_dword v32, v36, s[4:5]')
    if bpre:
        A('s_sub_u32 s34, s30, 16\ns_lshl_b32 s34, s34, 1\ns_mov_b64 exec, 0x01010101\ns_mov_b32 exec_hi, 0x01010101')
        A('s_and_b32 s34, s30, 3\ns_lshl_b32 s34, s34, 11\nv_add_u32 v9, s34, v6\nglobal_load_dword v62, v9, s[44:45] offset:-4096 sc1\ns_mov_b64 exec, -1')
    if dp == 'mid': dloads()
    def fearly():
        if dp == 'bar1': dloads()
        fl(0, fsplit)
    bars(fearly, 'F')
    if dp == 'first': dloads()
    fl(fsplit, 8)
    if dp == 'last': dloads()
    def fhook(n, inner=None):
        n += 4 if dp == 'last' else 0
        for t in range(4):
            A(f's_waitcnt vmcnt({n + 6 - 2 * t})')
            if inner and t == late - 1: n += inner()
            if t == 3:
                ST(10)
                if inner and repoll and late < 4: fload(96)
            for m in range(2):
                for hf in range(2):
                    r = 128 + 16 * m + 4 * t + 2 * hf
                    A(f'ds_read_b64_tr_b16 v[{r}:{r+1}], v33 offset:{4096*m+1024*t+512*hf}')
            if t == 0: A('v_and_b32 v41, 0xffff0000, v32\nv_lshlrev_b32 v40, 16, v32')
    def gemv(a, between=None):
        for t in range(4):
            if between: between(t)
            for m in range(2):
                c = f'v[{64+4*m}:{67+4*m}]'
                A(f'v_mfma_f32_16x16x32_bf16 {c}, v[{a(t)}:{a(t)+3}], v[{128+16*m+4*t}:{131+16*m+4*t}], {c if t else 0}')
    if fdep:
        def fload(x):
            for n in range(4): A(f'global_load_dwordx4 v[{x+4*n}:{x+4*n+3}], v6, s[44:45] offset:{2048*n-4096} sc1')
        if ftrig:
            fload(96)
            A('s_and_b32 s34, s29, 4\ns_add_u32 s34, s34, s29\ns_lshl_b32 s34, s34, 11\nv_and_b32 v9, 1, v0\nv_lshl_add_u32 v9, v9, 4, s34\nv_add_u32 v9, v9, v10')
            poll([('global_load_dword v124, v9, s[44:45] offset:-4096 sc1', 124)], 120, 8, 42, hook=lambda n: fhook(5), slp=1)
        def inner():
            if dp == 'in': dloads()
            fload(96)
            return 8 if dp == 'in' else 4
        if late: fhook(0, inner)
        elif not ftrig and not fpeel: fhook(0)
        deep(fload, 4, [96, 176, 192, 208][:fdep], 120, 8, 42, 16, hook=fhook if fpeel and not ftrig else None, issued=bool(late))
        ST(8)
    else:
        poll([(f'global_load_dwordx4 v[{96+4*n}:{99+4*n}], v6, s[44:45] offset:{2048*n-4096} sc1', 96 + 4 * n) for n in range(4)], 120, 8, 42, hook=fhook)
        ST(8)
        gsum(96, 120, 4, 16)
    A(f'''v_pk_add_f32 v[16:17], v[16:17], v[40:41]
v_cvt_pk_bf16_f32 v18, v16, v17
ds_write_b32 v37, v18''')
    for t in range(4): A(f'ds_read_b128 v[{72+4*t}:{75+4*t}], v56 offset:{64*t}')
    A(f'''v_dot2_f32_bf16 v16, v18, v44, 0
v_dot2_f32_bf16 v17, v18, v18, 0
s_cmp_eq_u32 s63, 0
s_cbranch_scc1 L_puth
L_noh:
v_permlane32_swap_b32 v16, v17
v_add_f32 v16, v16, v17''')
    cold.append(lambda: A('''L_puth:
v_lshl_or_b32 v42, v18, 16, v8
v_and_b32 v43, 0xffff0000, v18
v_or_b32 v43, v43, v8
global_store_dwordx2 v39, v[42:43], s[26:27] sc1
v_add_u32 v39, 0x2000, v39
global_store_dwordx2 v39, v[42:43], s[26:27] sc1
s_branch L_noh'''))
    for r in (8, 4): A(f'v_add_f32_dpp v16, v16, v16 row_ror:{r} {FULL}')
    def between(t):
        if t == 1: A(f'v_add_f32_dpp v16, v16, v16 row_ror:2 {FULL}')
        if t == 2: A(f'v_add_f32_dpp v16, v16, v16 row_ror:1 {FULL}\nv_mov_b32 v17, v16')
        if t == 3: A('v_permlane16_swap_b32 v16, v17\nv_add_f32 v16, v16, v17')
        A(f's_waitcnt lgkmcnt({3-t})')
    gemv(lambda t: 72 + 4 * t, between)
    A(f'''s_mov_b64 exec, s[60:61]
ds_write_b32 v60, v16 offset:{L_RED}
s_mov_b64 exec, 0xffff
ds_write2_b64 v57, v[64:65], v[68:69] offset0:0 offset1:4
s_mov_b64 exec, -1
s_waitcnt lgkmcnt(0)''')
    ST(9)
    A(f'''s_barrier
ds_read_b128 v[24:27], v63
ds_read_b128 v[28:31], v63 offset:16
ds_read_b128 v[16:19], v58 offset:{L_OP}
ds_read_b128 v[20:23], v58 offset:{L_OP+16}
ds_read_b128 v[72:75], v58 offset:{L_OP+32}
ds_read_b128 v[76:79], v58 offset:{L_OP+48}
s_waitcnt lgkmcnt(4)
v_pk_add_f32 v[24:25], v[24:25], v[26:27]
v_pk_add_f32 v[28:29], v[28:29], v[30:31]
v_add_f32 v24, v24, v25
v_add_f32 v28, v28, v29
v_mul_f32 v24, 0xbb000000, v24       ; -mean
v_fmamk_f32 v28, v28, 0x3b000000, v46
v_fma_f32 v28, -v24, v24, v28
v_max_f32 v28, v28, v46
v_rsq_f32 v28, v28
s_waitcnt lgkmcnt(2)
v_pk_add_f32 v[16:17], v[16:17], v[18:19]
v_pk_add_f32 v[20:21], v[20:21], v[22:23]
v_mul_f32 v29, {LOG2E ^ 0x80000000:#x}, v28
v_pk_add_f32 v[16:17], v[16:17], v[20:21]
v_fmac_f32 v16, v24, v17
v_mul_f32 v17, v16, v29
v_exp_f32 v17, v17
s_waitcnt lgkmcnt(0)
v_pk_add_f32 v[72:73], v[72:73], v[74:75]
v_add_f32 v17, 1.0, v17
v_rcp_f32 v17, v17
v_pk_add_f32 v[76:77], v[76:77], v[78:79]
v_mul_f32 v16, v16, v28              ; gate
v_pk_add_f32 v[72:73], v[72:73], v[76:77]
v_mul_f32 v16, v16, v17              ; silu(gate)
v_fmac_f32 v72, v24, v73
v_mul_f32 v16, v16, v28
v_mul_f32 v16, v16, v72
v_cvt_pk_bf16_f32 v16, v16, v16''')
    ops = [f'v_and_b32_dpp v{72+4*n+w}, v16, v{48+w} row_newbcast:{4*n} {FULL}' for n in range(4) for w in range(4)]
    for n in range(4):
        for o in ops[(4 * n + 2 if n else 0):4 * n + 6]: A(o)
        A(f'v_mfma_f32_16x16x32_bf16 v[64:67], v[{72+4*n}:{75+4*n}], v[{160+4*n}:{163+4*n}], {"v[64:67]" if n else 0}')
    A('v_bfi_b32 v64, v11, v8, v64\nglobal_store_dwordx4 v59, v[64:67], s[26:27] sc1')
    finish()

    page()
    A(f'''L_vwave:
s_add_u32 s36, s8, s34
s_addc_u32 s37, s9, 0
s_lshl3_add_u32 s35, s31, s32
s_lshl_b32 s35, s35, 10
s_add_u32 s44, s26, s35
s_addc_u32 s45, s27, 0
v_mov_b32 v56, {L_ML}
s_lshr_b32 s56, s2, 6
s_lshl_b32 s56, s56, 7
s_and_b32 s35, s2, 63
s_add_u32 s56, s56, s35
s_lshl_b32 s56, s56, 7
s_add_u32 s56, s56, {WS_PR}
s_cmp_lg_u32 s28, {99 if nox else 5}
s_cbranch_scc1 L_nowarm
s_load_dword s54, s[26:27], s56 glc
s_load_dword s55, s[26:27], s56 offset:0x2000 glc
L_nowarm:''')
    ST(7)
    selectors(40, 28)
    A(f'''s_lshl_b32 s34, s63, 10
s_add_u32 s34, s34, {L_OP}
v_lshrrev_b32 v12, 5, v0
v_lshl_add_u32 v12, v12, 9, s34
v_lshl_add_u32 v12, v4, 2, v12
v_bfe_u32 v13, v0, 4, 1
v_lshl_add_u32 v12, v13, 5, v12
v_lshlrev_b32 v14, 3, v0
s_lshl_b32 s34, s32, 5
s_add_u32 s34, s34, s63
s_lshl_b32 s34, s34, 2
v_lshl_add_u32 v6, v3, 4, s34
v_mov_b32 v57, 1
s_waitcnt vmcnt(4)''')
    ST(1)
    layernorm(24, 28, 24)
    A(f'ds_write_b128 v5, v[24:27] offset:{L_H}\ns_waitcnt lgkmcnt(0)\nds_read_b32 v48, v6 offset:{L_H}\ns_add_u32 s3, s3, {EPOCH_STEP:#x}')
    tagreg(8, 14, 4)
    A('s_waitcnt lgkmcnt(0)')
    for n in range(2): afrag(24 + 4 * n, 48, n, 40)
    A('s_waitcnt vmcnt(0)')
    for n in range(2):
        for hf in range(2):
            c = f'v[{16+4*hf}:{19+4*hf}]'
            A(f'v_mfma_f32_16x16x32_bf16 {c}, v[{24+4*n}:{27+4*n}], v[{64+8*n+4*hf}:{67+8*n+4*hf}], {c if n else 0}')
    def part_write():
        A(f'''s_mov_b32 exec_lo, 0x00ff00ff
s_mov_b32 exec_hi, 0xff00ff00
ds_write2_b64 v12, v[16:17], v[20:21] offset0:0 offset1:1
ds_write2_b64 v12, v[18:19], v[22:23] offset0:2 offset1:3''')
    def part_sum(off):
        for n in range(4): A(f'ds_read_b128 v[{16+4*n}:{19+4*n}], v5 offset:{L_OP+1024*n}')
        A('s_waitcnt lgkmcnt(0)')
        sum8(16)
    part_write()
    A(f'''s_mov_b64 exec, 1
s_waitcnt lgkmcnt(0)
ds_add_u32 v56, v57 offset:48
s_mov_b64 exec, -1
s_cmp_lg_u32 s28, {99 if noq else 4}
s_cbranch_scc1 L_vstream
''')
    ldsspin('ds_read_b32 v15, v56 offset:48', 'v_cmp_ne_u32 vcc, 4, v15')
    part_sum(0)
    A('v_and_or_b32 v16, v16, -16, v8\nv_and_or_b32 v17, v17, -16, v8\nglobal_store_dwordx2 v14, v[16:17], s[44:45] ' + qst)
    ST(2)
    A(f'''L_vstream:
{'s_mov_b64 exec, 1' + nl + 'buffer_load_dword v15, v2, s[36:39], s33 offen nt' + nl + 's_mov_b64 exec, -1' + nl + 's_waitcnt vmcnt(0)' if tlb & 8 else ''}
s_setprio 0
s_cmp_lg_u32 s28, {99 if nox else 5}
s_cbranch_scc1 L_noprobe
s_mov_b32 s54, {0 if psum else -1}
s_mov_b32 s55, {0 if psum else -1}
s_waitcnt lgkmcnt(0)''')
    for i in range(2 * nprobe):
        A(f's_memtime s[50:51]\ns_load_dword s35, s[26:27], s56 offset:{0x2000 * (i & 1)} glc\ns_waitcnt lgkmcnt(0)\ns_memtime s[52:53]\ns_waitcnt lgkmcnt(0)\ns_sub_u32 s35, s52, s50\n{"s_add_u32" if psum else "s_min_u32"} s{54 + (i & 1)}, s{54 + (i & 1)}, s35')
    A(f'''s_getreg_b32 s34, hwreg(HW_REG_XCC_ID, 0, 4)
s_andn2_b32 s35, s3, 31
s_or_b32 s34, s34, s35
s_cmp_lt_u32 s55, s54
s_cselect_b32 s35, 16, 0
s_or_b32 s34, s34, s35
v_mov_b32 v31, s34
s_lshl_b32 s34, s29, 6
s_add_u32 s34, s34, s30
s_lshl_b32 s34, s34, 2
s_add_u32 s34, s34, {WS_X}
v_mov_b32 v30, s34
s_mov_b64 exec, 1
global_store_dword v30, v31, s[26:27] {xst}
s_mov_b64 exec, -1
L_noprobe:
s_lshl_b32 s34, s63, 2
v_mov_b32 v28, s34''')
    ST(8)
    ldsspin(f'ds_read_b32 v15, v28 offset:{L_ML+64}', 'v_cmp_eq_u32 vcc, 0, v15', 1)
    A(f'''s_lshl_b32 s34, s29, 8
s_add_u32 s34, s34, {WS_X}
v_and_b32 v30, 31, v0
v_lshl_add_u32 v30, v30, 2, s34
s_getreg_b32 s34, hwreg(HW_REG_XCC_ID, 0, 4)
s_andn2_b32 s46, s3, 31
s_or_b32 s46, s46, s34''')
    tv = thrv or thr
    stream({xpos: 'global_load_dword v31, v30, s[26:27] sc1',
            xpos + tv: f'''v_and_b32 v31, -17, v31
v_cmp_ne_u32 s[48:49], s46, v31
s_cmp_eq_u64 s[48:49], {"s[48:49]" if nox else 0}
s_cselect_b64 s[50:51], -1, 0
s_cselect_b64 s[52:53], 0, -1
s_cbranch_scc0 L_requeue
L_requeued:'''}, tv, extra_at=xpos, slow=slowv)
    cold.append(lambda: A('''L_requeue:
s_cmp_lg_u32 s28, 4
s_cbranch_scc1 L_requeued
global_store_dwordx2 v14, v[16:17], s[44:45] sc1
s_waitcnt vmcnt(0)
s_branch L_requeued'''))
    A('v_mov_b32 v11, 0xff')
    tagreg(8, 14, 8)
    tagmask(10, 14)
    ST(3)
    A(f'''s_lshl_b32 s34, s63, 8
v_lshl_add_u32 v6, v3, 5, s34
s_barrier''')
    ST(4)
    A(f'ds_read_b128 v[48:51], v6 offset:{L_P}\nds_read_b128 v[52:55], v6 offset:{L_P+16}\ns_waitcnt lgkmcnt(0)')
    for i in range(16): afrag(64 + 4 * i, 48 + i // 2, i & 1, 40)
    for i in range(16):
        for hf in range(2):
            if hf == 0 or i >= 12: A(f's_waitcnt vmcnt({31-2*i-hf if i >= 12 else 30-2*i})')
            c = f'v[{16+4*hf}:{19+4*hf}]'
            A(f'v_mfma_f32_16x16x32_bf16 {c}, v[{64+4*i}:{67+4*i}], v[{128+8*i+4*hf}:{131+8*i+4*hf}], {c if i else 0}')
    part_write()
    A('s_mov_b64 exec, -1\ns_waitcnt lgkmcnt(0)')
    ST(5)
    A('s_setprio 3\ns_barrier\ns_cmp_lg_u32 s28, 4\ns_cbranch_scc1 L_vend')
    if tailtest:
        A(f'''s_barrier
L_tt:
s_memrealtime s[96:97]
s_waitcnt lgkmcnt(0)
s_sub_u32 s96, s96, s98
s_cmp_lt_u32 s96, {tailtest}
s_cbranch_scc1 L_tt''')
        ST(5)
    part_sum(512)
    A('v_bfi_b32 v16, v10, v8, v16')
    if afast: A('s_mov_b64 exec, s[50:51]\nglobal_store_dwordx2 v14, v[16:17], s[44:45] offset:512\ns_mov_b64 exec, s[52:53]')
    A('global_store_dwordx2 v14, v[16:17], s[44:45] offset:512 sc1')
    ST(6)
    A(('' if tailtest else 's_barrier\n') + 'L_vend:')
    finish()
    A(f'L_exit:\ns_endpgm\nL_code_end:\n.fill (L_pc+{33*512}-L_code_end)/4, 4, 0xbf810000')
    A.raw(f'''.section .rodata,"a"
.p2align 6
.amdhsa_kernel {NAME}_kernel
  .amdhsa_next_free_vgpr 256
  .amdhsa_next_free_sgpr 102
  .amdhsa_accum_offset 256
  .amdhsa_group_segment_fixed_size 0
  .amdhsa_kernarg_size 96
  .amdhsa_user_sgpr_count 2
  .amdhsa_user_sgpr_kernarg_segment_ptr 1
  .amdhsa_system_sgpr_workgroup_id_x 1
  .amdhsa_float_denorm_mode_32 3
.end_amdhsa_kernel''')
    return A.text()

def STAMPS(al, roles, KW, VW):
    import numpy as np
    return [('start', al, KW + VW, 0), ('V at vwave', al, VW, 7), ('Q: x landed', al, VW, 1), ('Q: stored', al, [4], 2), ('V probed', al, VW, 8), ('probe/100 lo', np.arange(256) % 8 < 4, KW, 12), ('probe/100 hi', np.arange(256) % 8 >= 4, KW, 12), ('K issued', al, KW, 1), ('K go', al, KW, 2),
            ('K q gathered', al, KW, 3), ('K qk done', al, KW, 11), ('K ml lds', al, [0], 4), ('K ml gathered', al, KW, 5), ('K p written', al, KW, 6),
            ('V issued', al, VW, 3), ('V bar1', al, VW, 4), ('V pv done', al, VW, 5), ('A stored', al, [4], 6), ('K bar3', al, KW, 7),
            ('W wts landed', roles == 'W', KW, 10), ('F wts landed', roles == 'F', KW, 10),
            ('W gathered', roles == 'W', KW, 8), ('W end', roles == 'W', [0], 15), ('F gathered', roles == 'F', KW, 8), ('F gemv done', roles == 'F', KW, 9),
            ('F end', roles == 'F', KW, 15), ('R h seen', roles == 'R', [0], 9), ('R gathered', roles == 'R', [0], 8), ('R end', roles == 'R', [0], 15)]

if __name__ == '__main__':
    out = sys.argv[1] if len(sys.argv) > 1 else f'cdna_kernels/{NAME}.s'
    kw = eval('dict(' + (sys.argv[2] if len(sys.argv) > 2 else '') + ')')
    open(out, 'w').write(gen(**kw))
```

```python
import sys
from asmlib import Asm

NAME = 'sequential_preLN__sliding_block_cached__swiglu_ffn__decode'
WS_QA, WS_B, WS_PR, WS_ML, WS_X, WS_E, WS_C, WS_ST = 0x0, 0x40000, 0x60000, 0x70000, 0x72000, 0x73000, 0x80000, 0x100000
EPOCH_STEP = 0x5bd1e3c7
L_P, L_OP, L_SCR, L_H, L_RED, L_ML, L_Q, L_W = 0x0, 0x400, 0x1600, 0x1a00, 0x1e00, 0x2000, 0x2100, 0x2400
LDS_BYTES = L_W + 0x8000
SPIN = 0x40000
LOG2E = 0x3fb8aa3b
SCALE = 0x3db504f3
EPS = 0x3727c5ac
FULL = 'row_mask:0xf bank_mask:0xf'
nl = '\n'

def gen(diag=False, span=False, lite=False, amp=None, mlsleep=2, kvf='nt', kpre=3, twhen=(1, 1), tf='', wf='', thr=8, gow=4, qpos=24,
        dearly=True, thrv=None, notail=False, noml=False, noq=False, tailtest=0, psleep=0, nosr=0, afast=True, pages=True, pf=2, fdep=1, rdep=1, ftrig=False, pol=None, nprobe=2, psum=False, cfgy=True, guw=2, wsplit=2, dpos='post', wo0=False, trig=0, tlb=0, outf='', slowk=(), slowv=(), slowif='ge', fsplit=0, dtouch=2, frot=0, fpeel=False, bpre=False, apre=False, nox=False, qst='', xst='', xpos=12, wo1=1, late=4, fbar=(), xbar=True, guall=False, edge=False, repoll=False, gut=None, dbgp=False, rot=(0, 4, 1), v4=True, wqm=0, cpre=True, rslp=0, eend=False, vprio=0, rb=1, fmask=0, wmask=2, wb=0, slowall=False, share=True, wbs=0, dtrig=0, wox=False, gsplit=0, fresh=0, rep4=True, wslp=0, fslp=0, cslp=0, dppa=True, mstat=False, fine=False, early=True, fill=0, vfill=0, wk=(0, 0, 0, 0, 0, 0), wlast=True, vlast=True, fspin=0, gsr='F', sq=()):
    WK = lambda i: nl.join(['v_mov_b32 v1, v1'] * wk[i])
    if isinstance(rot, int): rotcode = f's_mul_i32 s33, s2, {rot:#x}\ns_lshr_b32 s33, s33, 26'
    elif rot == (0, 4, 1): rotcode = 's_lshl2_add_u32 s33, s31, s32'
    else: rotcode = f's_mul_i32 s33, s29, {rot[0]}\ns_mul_i32 s34, s31, {rot[1]}\ns_add_u32 s33, s33, s34\ns_mul_i32 s34, s32, {rot[2]}\ns_add_u32 s33, s33, s34'
    AOFF = 0 if share else 512
    if vlast: v4 = False
    assert v4 or vlast or not dppa
    wot = '''s_lshl_b32 s35, s29, 6
s_add_u32 s34, s34, s35
s_lshl_b32 s34, s34, 13
s_add_u32 s34, s34, 2048
v_and_b32 v127, 16, v0
v_add_u32 v127, v127, v0
v_lshl_add_u32 v127, v127, 7, s34''' if dppa and v4 else '''s_andn2_b32 s35, s34, 3
s_add_u32 s34, s34, s35
s_add_u32 s34, s34, 4
s_lshl_b32 s35, s29, 7
s_add_u32 s34, s34, s35
s_lshl_b32 s34, s34, 12
v_lshl_add_u32 v127, v0, 7, s34''' if dppa else '''s_andn2_b32 s35, s34, 7
s_add_u32 s34, s34, s35
s_add_u32 s34, s34, 8
s_lshl_b32 s35, s29, 7
s_add_u32 s34, s34, s35
s_lshl_b32 s34, s34, 12
v_lshl_add_u32 v127, v0, 7, s34'''
    frow = '''v_bfe_u32 v14, v0, 3, 1
v_lshl_add_u32 v14, v14, 3, v12
v_bfe_u32 v15, v0, 2, 1
v_lshl_add_u32 v14, v14, 1, v15
v_bfe_u32 v15, v0, 4, 1
v_lshl_add_u32 v14, v14, 1, v15
v_bfe_u32 v15, v0, 1, 1
v_lshl_add_u32 v14, v14, 1, v15'''
    wrow = '''v_bfe_u32 v15, v0, 3, 1
v_lshl_add_u32 v15, v32, 2, v15
v_lshl_add_u32 v15, v15, 1, v12
v_bfe_u32 v33, v0, 2, 1
v_lshl_add_u32 v15, v15, 1, v33
v_lshlrev_b32 v15, 2, v15''' if v4 else '''v_bfe_u32 v15, v0, 3, 1
v_lshl_add_u32 v15, v32, 4, v15
v_lshl_add_u32 v15, v15, 1, v12
v_bfe_u32 v33, v0, 2, 1
v_lshl_add_u32 v15, v15, 1, v33'''
    A = Asm()
    cold = []
    uid = [0]
    def lab(s):
        uid[0] += 1
        return f'L_{s}_{uid[0]}'
    def ST(n):
        if amp and n == amp[0]: A('s_memrealtime s[98:99]')
        if amp and n == amp[1]: A('s_memrealtime s[100:101]')
        if diag: A(f's_memrealtime s[96:97]\ns_waitcnt lgkmcnt(0)\nv_writelane_b32 v7, s96, {n}')
        if lite and n in (8, 10): A(f's_memrealtime s[{(90, 92)[n == 10]}:{(91, 93)[n == 10]}]')
    def FS(n):
        return f's_memtime s[{70+2*n}:{71+2*n}]' if fine == 1 else ''
    def F2(n):
        if fine == 2: A(f's_memrealtime s[{70+2*n}:{71+2*n}]')
    def flush_cold():
        for f in cold: f()
        cold.clear()
    def finish(last=False):
        if diag or lite or (span and last == span):
            A(f'''s_memrealtime s[96:97]
s_waitcnt lgkmcnt(0)
v_writelane_b32 v7, s96, 15
v_writelane_b32 v7, s98, 0
{nl.join(f'v_writelane_b32 v7, s{70+2*i}, {1+i}' for i in range(7)) if fine else ''}
{'v_writelane_b32 v7, s90, 8' + nl + 'v_writelane_b32 v7, s92, 10' if lite else ''}
s_mov_b64 exec, 0xffff
s_lshl_b32 s34, s2, 3
s_add_u32 s34, s34, s28
s_lshl_b32 s34, s34, 6
s_add_u32 s34, s34, {WS_ST}
v_lshl_add_u32 v1, v0, 2, s34
global_store_dword v1, v7, s[26:27]''')
        A('s_endpgm')
        flush_cold()
    def wred(op, v, t):
        for r in (8, 4, 2, 1): A(f'{op}_dpp v{v}, v{v}, v{v} row_ror:{r} {FULL}')
        for sw in (16, 32): A(f'v_mov_b32 v{t}, v{v}\nv_permlane{sw}_swap_b32 v{v}, v{t}\n{op} v{v}, v{v}, v{t}')
    def rnd(v):
        A(f'v_cvt_pk_bf16_f32 v{v}, v{v}, v{v}\nv_lshlrev_b32 v{v}, 16, v{v}')
    def layernorm(x, u, o):
        s, t, mb, dl = u + 8, u + 9, u + 10, u + 11
        for i in range(4): A(f'v_lshlrev_b32 v{u+2*i}, 16, v{x+i}\nv_and_b32 v{u+2*i+1}, 0xffff0000, v{x+i}')
        A(f'v_add_f32 v{s}, v{u}, v{u+1}\nv_add_f32 v{t}, v{u+2}, v{u+3}\nv_add_f32 v{mb}, v{u+4}, v{u+5}\nv_add_f32 v{dl}, v{u+6}, v{u+7}')
        A(f'v_add_f32 v{s}, v{s}, v{t}\nv_add_f32 v{mb}, v{mb}, v{dl}\nv_add_f32 v{s}, v{s}, v{mb}')
        wred('v_add_f32', s, t)
        A(f'v_mul_f32 v{dl}, 0x3b000000, v{s}')
        A(f'v_cvt_pk_bf16_f32 v{mb}, v{dl}, v{dl}\nv_lshlrev_b32 v{mb}, 16, v{mb}')
        for i in range(8): A(f'v_sub_f32 v{u+i}, v{u+i}, v{mb}')
        A(f'v_sub_f32 v{dl}, v{dl}, v{mb}')
        A(f'v_mul_f32 v{s}, v{u}, v{u}\nv_mul_f32 v{t}, v{u+1}, v{u+1}')
        for i in range(2, 8, 2): A(f'v_fmac_f32 v{s}, v{u+i}, v{u+i}\nv_fmac_f32 v{t}, v{u+i+1}, v{u+i+1}')
        A(f'v_add_f32 v{s}, v{s}, v{t}')
        fill = [f'v_cvt_pk_bf16_f32 v{o+i}, v{u+2*i}, v{u+2*i+1}' for i in range(4)]
        for i in range(4): fill += [f'v_lshlrev_b32 v{u+2*i}, 16, v{o+i}', f'v_and_b32 v{u+2*i+1}, 0xffff0000, v{o+i}']
        fill.append(f'v_mul_f32 v{dl}, v{dl}, v{dl}')
        for r in (8, 4, 2, 1):
            A(fill.pop(0)); A(fill.pop(0))
            A(f'v_add_f32_dpp v{s}, v{s}, v{s} row_ror:{r} {FULL}')
        for sw in (16, 32):
            A(f'v_mov_b32 v{t}, v{s}'); A(fill.pop(0)); A(fill.pop(0))
            A(f'v_permlane{sw}_swap_b32 v{s}, v{t}\nv_add_f32 v{s}, v{s}, v{t}')
        A(fill.pop(0))
        A(f'v_mul_f32 v{s}, 0x3b000000, v{s}\nv_sub_f32 v{s}, v{s}, v{dl}\nv_max_f32 v{s}, 0, v{s}')
        rnd(s)
        A(f'v_add_f32 v{s}, {EPS:#x}, v{s}'); rnd(s)
        A(f'v_sqrt_f32 v{s}, v{s}'); rnd(s)
        A(f'v_rcp_f32 v{s}, v{s}')
        for i in range(8): A(f'v_mul_f32 v{u+i}, v{u+i}, v{s}')
        for i in range(4): A(f'v_cvt_pk_bf16_f32 v{o+i}, v{u+2*i}, v{u+2*i+1}')
    def selectors(sel, t):
        A(f'''v_and_b32 v{t}, 1, v0
v_cmp_eq_u32 vcc, 1, v{t}
v_mov_b32 v{t+1}, 0x0c0c0100
v_mov_b32 v{t+2}, 0x01000c0c
v_cndmask_b32 v{t+1}, v{t+1}, v{t+2}, vcc
v_mov_b32 v{t+2}, 0x0c0c0302
v_mov_b32 v{t+3}, 0x03020c0c
v_cndmask_b32 v{t+2}, v{t+2}, v{t+3}, vcc
v_mov_b32 v{t+3}, 0x0c0c0c0c
v_bfe_u32 v{t}, v0, 1, 2''')
        for w in range(4):
            A(f'v_cmp_eq_u32 vcc, {w}, v{t}\nv_cndmask_b32 v{sel+w}, v{t+3}, v{t+1}, vcc\nv_cndmask_b32 v{sel+4+w}, v{t+3}, v{t+2}, vcc')
    def afrag(dst, src, par, sel):
        for w in range(4): A(f'v_perm_b32 v{dst+w}, v{src}, v{src}, v{sel+4*par+w}')
    def tagreg(dst, addr, bits):
        A(f'v_bfe_u32 v{dst}, v{addr}, 4, 1\nv_lshlrev_b32 v{dst}, {bits-1}, v{dst}\nv_xor_b32 v{dst}, s3, v{dst}\nv_and_b32 v{dst}, {(1 << bits) - 1}, v{dst}')
        if bits == 4: A(f'v_xor_b32 v{dst}, 4, v{dst}')
    def tagmask(dst, addr):
        A(f'v_and_b32 v{dst}, 15, v{addr}\nv_cmp_eq_u32 vcc, 0, v{dst}\nv_mov_b32 v{dst}, 0\nv_cndmask_b32 v{dst}, v{dst}, v11, vcc')
    def poll(loads, y, T, t, hook=None, slp=0, part=None):
        n = len(loads)
        L, Lc, Ld = lab('again'), lab('chk'), lab('ok')
        full = lambda i: part if (part and i == n - 1) else -1
        def issue():
            for i, l in enumerate(loads): A((f's_mov_b64 exec, s[{48+2*i}:{49+2*i}]\n' if n > 1 else '') + l[0])
            if n > 1: A('s_mov_b64 exec, -1')
        if n > 1:
            for i in range(n): A(f's_mov_b64 s[{48+2*i}:{49+2*i}], {full(i)}')
        A(f's_mov_b32 s62, {SPIN}')
        issue()
        if hook: hook(n)
        A(f's_branch {Lc}\n{L}:')
        if slp or psleep: A(f's_sleep {slp or psleep}')
        issue()
        if n > 1:
            for i in range(n):
                A(f'v_and_b32 v{t}, v11, v{y+i}\nv_cmp_ne_u32 vcc, 0, v{t}\ns_cmp_lg_u64 vcc, 0\ns_cselect_b64 s[{48+2*i}:{49+2*i}], {full(i)}, 0')
        A(f's_sub_u32 s62, s62, 1\ns_cbranch_scc1 {Ld}\n{Lc}:\ns_waitcnt vmcnt(0)')
        for i, l in enumerate(loads): A(f'v_xor_b32 v{y+i}, v{l[1]}, v{T}')
        if n == 1: A(f'v_and_b32 v{t}, v11, v{y}')
        else:
            A(f'v_or3_b32 v{t}, v{y}, v{y+1}, v{y+2}')
            for i in range(3, n - 1, 2): A(f'v_or3_b32 v{t}, v{t}, v{y+i}, v{y+i+1}')
            A(f'v_bitop3_b32 v{t}, v{t}, v{y+n-1}, v11 bitop3:0xa8')
        A(f'v_cmp_ne_u32 vcc, 0, v{t}\ns_cbranch_vccnz {L}\n{Ld}:')
    def gsum(x, y, n, d):
        src = lambda i, r: f'v{y+i}' if r == 0 else f'v{x+4*i+r}'
        for i in range(0, n, 2):
            dd = d + 2 * i
            A(f'v_pk_add_f32 v[{dd+2}:{dd+3}], v[{x+4*i+2}:{x+4*i+3}], v[{x+4*i+6}:{x+4*i+7}]')
            for r in range(2): A(f'v_add_f32 v{dd+r}, {src(i, r)}, {src(i+1, r)}')
        for i in range(2, n, 2):
            for r in (2, 0): A(f'v_pk_add_f32 v[{d+r}:{d+r+1}], v[{d+r}:{d+r+1}], v[{d+2*i+r}:{d+2*i+r+1}]')
        A(f'v_permlane32_swap_b32 v{d}, v{d+2}\nv_permlane32_swap_b32 v{d+1}, v{d+3}')
        A(f'v_pk_add_f32 v[{d}:{d+1}], v[{d}:{d+1}], v[{d+2}:{d+3}]')
    def deep(load, n, sets, y, T, t, d, hook=None, issued=False, masked=False, slp=0):
        x = sets[0]
        L, Lc, Lo = lab('again'), lab('chk'), lab('ok')
        A(f's_mov_b32 s62, {SPIN}')
        if issued: A(f's_branch {Lc}')
        A(f'{L}:')
        if slp: A(f's_sleep {slp}')
        load(x)
        if masked:
            for i in range(n):
                A(f'v_and_b32 v{t}, v11, v{y+i}\nv_cmp_ne_u32 vcc, 0, v{t}')
                if masked == 1: A(f's_cmp_lg_u64 vcc, 0\ns_cselect_b64 s[{48+2*i}:{49+2*i}], -1, 0')
                else: A(f's_cmp_lg_u32 vcc_lo, 0\ns_cselect_b32 s{48+2*i}, -1, 0\ns_cmp_lg_u32 vcc_hi, 0\ns_cselect_b32 s{49+2*i}, -1, 0')
        for i in range(fill): A('v_mov_b32 v1, v1')
        A(f's_sub_u32 s62, s62, 1\ns_cbranch_scc1 {Lo}\n{Lc}:')
        for i in range(n):
            if i % 2 == 0: A(f's_waitcnt vmcnt({n-2-i})')
            A(f'v_xor_b32 v{y+i}, v{x+4*i}, v{T}')
            if i % 2 == 1:
                dd = d + 2 * (i - 1)
                if i == 1: A(f'v_or_b32 v{t}, v{y}, v{y+1}')
                elif i < n - 1: A(f'v_or3_b32 v{t}, v{t}, v{y+i-1}, v{y+i}')
                else: A(f'v_or_b32 v{t}, v{t}, v{y+i-1}\nv_bitop3_b32 v{t}, v{t}, v{y+i}, v11 bitop3:0xa8\nv_cmp_ne_u32 vcc, 0, v{t}')
                A(f'v_pk_add_f32 v[{dd+2}:{dd+3}], v[{x+4*i-2}:{x+4*i-1}], v[{x+4*i+2}:{x+4*i+3}]')
                if i == n - 1: A(f's_cbranch_vccnz {L}\n{Lo}:')
                A(f'v_add_f32 v{dd}, v{y+i-1}, v{y+i}\nv_add_f32 v{dd+1}, v{x+4*i-3}, v{x+4*i+1}')
                if i > 1:
                    for r in (2, 0): A(f'v_pk_add_f32 v[{d+r}:{d+r+1}], v[{d+r}:{d+r+1}], v[{dd+r}:{dd+r+1}]')
        A(f'v_permlane32_swap_b32 v{d}, v{d+2}\nv_permlane32_swap_b32 v{d+1}, v{d+3}')
        A(f'v_pk_add_f32 v[{d}:{d+1}], v[{d}:{d+1}], v[{d+2}:{d+3}]')
    def page():
        if pages: A('.p2align 12')
    def sum8(g):
        for i in (0, 2, 8, 10): A(f'v_pk_add_f32 v[{g+i}:{g+i+1}], v[{g+i}:{g+i+1}], v[{g+i+4}:{g+i+5}]')
        for i in (0, 2): A(f'v_pk_add_f32 v[{g+i}:{g+i+1}], v[{g+i}:{g+i+1}], v[{g+i+8}:{g+i+9}]')
        A(f'v_permlane32_swap_b32 v{g}, v{g+2}\nv_permlane32_swap_b32 v{g+1}, v{g+3}')
        A(f'v_pk_add_f32 v[{g}:{g+1}], v[{g}:{g+1}], v[{g+2}:{g+3}]')
    def ldsspin(reads, test, slp=0):
        L, Ld = lab('spin'), lab('spun')
        A(f's_mov_b32 s62, {SPIN}\n{L}:')
        if slp: A(f's_sleep {slp}')
        A(f'{reads}\ns_waitcnt lgkmcnt(0)\n{test}\ns_cbranch_vccz {Ld}\ns_sub_u32 s62, s62, 1\ns_cbranch_scc0 {L}\n{Ld}:')
    def stream(hooks, th, extra_at=None, slow=()):
        if slow: A(f's_cmp_{slowif}_u32 s30, 16\ns_cselect_b64 vcc, -1, 0')
        for i in range(16):
            if i: A('s_addk_i32 s33, 0x2000\ns_bitset0_b32 s33, 17')
            if th and 2 * i >= th:
                ex = 1 if extra_at is not None and 2 * i - (th - 2) < extra_at <= 2 * i else 0
                A(f's_waitcnt vmcnt({th-2+ex})')
            if i in slow:
                Ls = lab('fast')
                A(f's_cbranch_vccz {Ls}\ns_waitcnt vmcnt({th-4})\n{Ls}:')
            for hf in range(2):
                A(f'buffer_load_dwordx4 v[{128+8*i+4*hf}:{131+8*i+4*hf}], v2, s[36:39], s33 offen offset:{128*hf} {kvf}')
                if 2 * i + hf + 1 in hooks: A(hooks[2 * i + hf + 1])

    hdr = open('cdna_kernels/' + NAME + '.s.ref').read().split('\n')
    for ln in hdr:
        if ln.startswith('; @launch'): A.raw(f'; @launch grid=(256,1,1) block=(512,1,1) lds={LDS_BYTES}'); break
        A.raw(ln)
    A.raw(f'.amdgcn_target "amdgcn-amd-amdhsa--gfx950"\n.text\n.globl {NAME}_kernel\n.p2align {12 if pages else 8}\n.p2align 8\n.type {NAME}_kernel,@function\n{NAME}_kernel:')

    if amp: ST(13)
    if span or diag: A('s_memrealtime s[98:99]')
    A(f'''s_load_dwordx16 s[4:19], s[0:1], 0
s_load_dwordx8 s[20:27], s[0:1], 64
s_getpc_b64 s[40:41]
L_pc:
v_lshrrev_b32 v1, 6, v0
s_lshr_b32 s30, s2, 3                ; index inside the head group
v_readfirstlane_b32 s28, v1
v_and_b32 v0, 63, v0
s_lshl3_add_u32 s43, s30, s28
s_lshl_b32 s43, s43, 6
{'s_load_dword s42, s[40:41], s43' if pf == 1 else ''}
s_cmp_ge_u32 s2, 256
s_cbranch_scc1 L_exit
s_and_b32 s29, s2, 7
s_and_b32 s31, s30, 3
s_lshl2_add_u32 s31, s29, s31        ; head
s_lshr_b32 s32, s30, 2
v_lshrrev_b32 v3, 3, v0              ; lane >> 3
v_and_b32 v4, 7, v0
v_lshlrev_b32 v4, 4, v4              ; (lane & 7) * 16
v_lshl_add_u32 v2, v3, 8, v4
v_lshlrev_b32 v5, 4, v0              ; lane * 16
s_and_b32 s63, s28, 3
{rotcode}
s_add_u32 s33, s33, s63
s_and_b32 s33, s33, 63
s_lshl_b32 s33, s33, 11              ; first tile of this wave
s_lshl_b32 s34, s31, 6
s_add_u32 s34, s34, s32
s_add_u32 s34, s34, 56
s_lshl_b32 s34, s34, 17              ; byte offset of this chunk of the window
s_mov_b32 s38, 0x20000
s_mov_b32 s39, 0x20000''')
    if diag: A('v_mov_b32 v7, 0')
    A(f'''s_cmp_lt_u32 s28, 4
s_cbranch_scc1 L_kwave
s_setprio 3
s_lshl_b32 s35, s32, 5
s_add_u32 s35, s35, s63
s_lshl_b32 s35, s35, 6
s_add_u32 s35, s35, s31
s_lshl_b32 s35, s35, 8
v_lshl_add_u32 v6, v3, 16, v4
v_add_u32 v12, 0x2000, v6
{'s_lshl2_add_u32 s35, s2, s63' + nl + 's_lshl_b32 s35, s35, 12' + nl + 'v_mov_b32 v6, v2' + nl + 'v_add_u32 v12, 0x800, v6' if wqm == 1 else ''}
{'s_mov_b32 s35, 0' + nl + 'v_mov_b32 v6, v4' + nl + 'v_mov_b32 v12, v4' if wqm == 2 else ''}
v_subrev_u32 v13, 12, v0
v_ashrrev_i32 v13, 31, v13
v_lshlrev_b32 v14, 2, v0
ds_write_b32 v14, v13 offset:{L_ML}
s_waitcnt lgkmcnt(0)
global_load_dwordx4 v[24:27], v5, s[4:5]
{'s_load_dword s42, s[40:41], s43' if pf == 2 else ''}
s_load_dword s3, s[26:27], {WS_E:#x}
s_add_u32 s10, s10, s35
s_addc_u32 s11, s11, 0''')
    for n in range(2):
        for hf in range(2): A(f'global_load_dwordx4 v[{64+8*n+4*hf}:{67+8*n+4*hf}], v{(6, 12)[n]}, s[10:11] offset:{128*hf} nt')
    A('s_barrier\ns_branch L_vwave')

    A(f'''L_kwave:
s_setprio 2
s_waitcnt lgkmcnt(0)
s_add_u32 s36, s6, s34
s_addc_u32 s37, s7, 0''')
    qload = 'global_load_dwordx4 v[16:19], v6, s[44:45] sc1'
    stream({1: 's_load_dword s42, s[40:41], s43' if pf == 2 else '', kpre: f's_load_dword s3, s[26:27], {WS_E:#x}\ns_barrier' + ('\ns_memrealtime s[100:101]' if amp and amp[1] == 22 else ''), 10: 's_memrealtime s[100:101]' if amp and amp[1] == 23 else '',
            8: f'''s_lshl_b32 s34, s31, 6
s_add_u32 s34, s34, s28
s_lshl_b32 s34, s34, 7
s_add_u32 s44, s26, s34
s_addc_u32 s45, s27, 0
v_lshl_add_u32 v6, v3, 10, v4''',
            qpos: '' if noq else qload}, thr, extra_at=None if noq else qpos, slow=slowk)
    ST(1)
    A(f'''v_lshrrev_b32 v12, 5, v0             ; lane >> 5
v_and_b32 v13, 31, v0
v_lshlrev_b32 v13, 4, v13            ; (lane & 31) * 16
s_lshl_b32 s46, s28, 8
s_add_u32 s46, s46, {L_SCR}
s_lshl_b32 s34, s28, 6
v_lshrrev_b32 v14, 4, v0
v_lshlrev_b32 v14, 1, v14
v_lshrrev_b32 v15, 1, v4
v_add3_u32 v14, v14, v15, s34
v_mov_b32 v24, {L_ML}
v_mov_b32 v25, 1
s_lshl_b32 s34, s28, 2
v_mov_b32 v26, s34
s_waitcnt lgkmcnt(0)
s_add_u32 s3, s3, {EPOCH_STEP:#x}''')
    tagreg(8, 5, 4)
    A(f's_waitcnt vmcnt({min(gow, 32-qpos)})\nds_write_b32 v26, v25 offset:{L_ML+64}')
    ST(2)
    A(f's_mov_b32 s62, {SPIN}\nL_qchk:')
    for i in range(4): A(f'v_xor_b32 v{20+i}, v{16+i}, v8')
    A('v_or3_b32 v15, v20, v21, v22\nv_bitop3_b32 v15, v15, v23, 15 bitop3:0xa8\nv_cmp_ne_u32 vcc, 0, v15')
    A(('' if noq else 's_cbranch_vccnz L_qagain\n') + 'L_qok:')
    cold.append(lambda: A(f'L_qagain:\n{qload}\ns_sub_u32 s62, s62, 1\ns_waitcnt vmcnt(0)\ns_cbranch_scc0 L_qchk\ns_branch L_qok'))
    ST(3)
    A(f'''v_permlane32_swap_b32 v20, v22
v_permlane32_swap_b32 v21, v23
v_add_f32 v20, v20, v22
v_add_f32 v21, v21, v23
v_permlane16_swap_b32 v20, v21
v_add_f32 v20, v20, v21
v_add_f32_dpp v20, v20, v20 row_ror:8 {FULL}
v_cvt_pk_bf16_f32 v20, v20, v20
v_lshl_add_u32 v6, v12, 12, v13
ds_write_b16 v14, v20 offset:{L_Q}
s_mov_b64 exec, 1
s_waitcnt lgkmcnt(0)
ds_add_u32 v24, v25 offset:52
s_mov_b64 exec, -1''')
    ldsspin('ds_read_b32 v15, v24 offset:52', 'v_cmp_ne_u32 vcc, 4, v15')
    A(f'ds_read_b128 v[16:19], v4 offset:{L_Q}\nds_read_b128 v[20:23], v4 offset:{L_Q+128}\ns_waitcnt lgkmcnt(0)')
    for i0 in range(0, 16, 4):
        A(f's_waitcnt vmcnt({24-2*i0})')
        for e in range(8):
            for i in range(i0, i0 + 4):
                A(f'v_dot2_f32_bf16 v{32+i}, v{128+8*i+e}, v{16+e}, {"v%d" % (32+i) if e else 0}')
    for i in range(8):
        A(f'v_add_f32_dpp v{32+i}, v{32+i}, v{32+i} row_half_mirror row_mask:0xf bank_mask:0x5')
    for i in range(8):
        A(f'v_add_f32_dpp v{32+i}, v{40+i}, v{40+i} row_half_mirror row_mask:0xf bank_mask:0xa')
    A('s_mov_b32 vcc_lo, 0xcccccccc\ns_mov_b32 vcc_hi, 0xcccccccc')
    for i in range(4): A(f'v_cndmask_b32 v{40+i}, v{36+i}, v{32+i}, vcc\nv_cndmask_b32 v{32+i}, v{32+i}, v{36+i}, vcc')
    for i in range(4): A(f'v_add_f32_dpp v{32+i}, v{40+i}, v{32+i} quad_perm:[2,3,0,1] {FULL}')
    A('s_mov_b32 vcc_lo, 0xaaaaaaaa\ns_mov_b32 vcc_hi, 0xaaaaaaaa')
    for i in range(2): A(f'v_cndmask_b32 v{40+i}, v{34+i}, v{32+i}, vcc\nv_cndmask_b32 v{32+i}, v{32+i}, v{34+i}, vcc')
    for i in range(2): A(f'v_add_f32_dpp v{32+i}, v{40+i}, v{32+i} quad_perm:[1,0,3,2] {FULL}')
    r2 = 'v_cvt_pk_bf16_f32 v34, v32, v33\nv_lshlrev_b32 v32, 16, v34\nv_and_b32 v33, 0xffff0000, v34'
    if not nosr & 1: A(r2)
    A(f'v_mul_f32 v32, {SCALE:#x}, v32\nv_mul_f32 v33, {SCALE:#x}, v33')
    if not nosr & 2: A(r2)
    A('v_max_f32 v34, v32, v33')
    wred('v_max_f32', 34, 36)
    A(f'''v_sub_f32 v35, v32, v34
v_sub_f32 v36, v33, v34
v_mul_f32 v35, {LOG2E:#x}, v35
v_mul_f32 v36, {LOG2E:#x}, v36
v_exp_f32 v35, v35
v_exp_f32 v36, v36
v_add_f32 v35, v35, v36''')
    wred('v_add_f32', 35, 36)
    ST(11)
    A(f's_lshl_b32 s34, s29, 8\ns_add_u32 s34, s34, {WS_X}\nv_lshrrev_b32 v10, 2, v13\nv_add_u32 v10, s34, v10\n' + ('' if nox else 'global_load_dword v9, v10, s[26:27] sc1'))
    if noml: A('s_cmp_ge_u32 s30, 0\ns_cbranch_scc1 L_mlok')
    A(f'''v_min_u32 v34, -2, v34
v_min_u32 v35, -2, v35
v_lshl_add_u32 v37, v26, 1, v24
ds_write_b64 v37, v[34:35]
s_cmp_lg_u32 s28, 0
s_cbranch_scc1 L_mlwait''')
    ldsspin('ds_read_b128 v[40:43], v24\nds_read_b128 v[44:47], v24 offset:16',
            'v_max3_u32 v37, v40, v41, v42\nv_max3_u32 v37, v37, v43, v44\nv_max3_u32 v37, v37, v45, v46\nv_max_u32 v37, v37, v47\nv_cmp_eq_u32 vcc, -1, v37')
    ST(4)
    A(f'''s_lshl_b32 s35, s31, 8
s_add_u32 s35, s35, {WS_ML}
v_max3_f32 v48, v40, v42, v44
v_max_f32 v48, v48, v46''')
    for w in range(4): A(f'v_sub_f32 v{40+2*w}, v{40+2*w}, v48')
    for w in range(4): A(f'v_mul_f32 v{40+2*w}, {LOG2E:#x}, v{40+2*w}')
    for w in range(4): A(f'v_exp_f32 v{40+2*w}, v{40+2*w}')
    A('v_mov_b32 v49, s3\nv_mov_b32 v51, s3\nv_mul_f32 v50, v40, v41')
    for w in range(1, 4): A(f'v_fmac_f32 v50, v{40+2*w}, v{41+2*w}')
    A(f'''s_lshl4_add_u32 s34, s32, s35
v_mov_b32 v37, s34
s_mov_b64 exec, 1
global_store_dwordx4 v37, v[48:51], s[26:27] sc1
s_mov_b64 exec, -1''')
    L, Ld = lab('mg'), lab('mgd')
    A(f's_mov_b32 s62, {SPIN}\n{L}:\ns_sleep {mlsleep}\ns_load_dwordx16 s[64:79], s[26:27], s35 glc\ns_load_dwordx16 s[80:95], s[26:27], s35 offset:64 glc\ns_waitcnt lgkmcnt(0)')
    A('s_and_b32 s34, s65, s3\ns_or_b32 s47, s65, s3')
    for i in range(1, 16): A(f's_and_b32 s34, s34, s{65+2*i}\ns_or_b32 s47, s47, s{65+2*i}')
    A(f's_cmp_eq_u32 s34, s47\ns_cbranch_scc1 {Ld}\ns_sub_u32 s62, s62, 1\ns_cbranch_scc0 {L}\n{Ld}:')
    A('v_mov_b32 v34, s64')
    for c in range(1, 8): A(f'v_max_f32 v34, s{64+4*c}, v34')
    for c in range(8): A(f'v_sub_f32 v{40+c}, s{64+4*c}, v34')
    for c in range(8): A(f'v_mul_f32 v{40+c}, {LOG2E:#x}, v{40+c}')
    for c in range(8): A(f'v_exp_f32 v{40+c}, v{40+c}')
    A('v_mul_f32 v35, s66, v40')
    for c in range(1, 8): A(f'v_fmac_f32 v35, s{66+4*c}, v{40+c}')
    A(f'''v_rcp_f32 v35, v35
v_min_u32 v34, -2, v34
v_min_u32 v35, -2, v35
ds_write_b64 v24, v[34:35] offset:32
s_branch L_mlok
L_mlwait:''')
    ldsspin('ds_read_b64 v[34:35], v24 offset:32', 'v_max_u32 v37, v34, v35\nv_cmp_eq_u32 vcc, -1, v37', 1)
    A('L_mlok:')
    ST(5)
    A(f'''v_sub_f32 v32, v32, v34
v_sub_f32 v33, v33, v34
v_mul_f32 v32, {LOG2E:#x}, v32
v_mul_f32 v33, {LOG2E:#x}, v33
v_exp_f32 v32, v32
v_exp_f32 v33, v33
s_lshl_b32 s34, s28, 8
v_lshl_add_u32 v36, v0, 2, s34
v_mul_f32 v32, v32, v35
v_mul_f32 v33, v33, v35
v_cvt_pk_bf16_f32 v32, v32, v33
ds_write_b32 v36, v32 offset:{L_P}
''')
    if not cfgy: A(f'''s_cmp_lt_u32 s28, 2
s_cbranch_scc1 L_two
s_cmp_eq_u32 s28, 2
s_cselect_b32 s64, s16, s18
s_cselect_b32 s65, s17, s19
s_mov_b32 s66, {512*2752}
s_lshl_b32 s34, s30, 4
v_lshrrev_b32 v61, 2, v0
v_add_u32 v61, s34, v61
v_mul_u32_u24 v61, 2752, v61
v_and_b32 v62, 3, v0
v_lshlrev_b32 v62, 7, v62
v_min_u32 v62, 348, v62
s_mul_i32 s34, s29, 352
v_add3_u32 v61, v61, v62, s34
s_branch L_tj
L_two:
s_mov_b32 s64, s12
s_mov_b32 s65, s13
s_mov_b32 s66, {4096*1024}
s_lshl_b32 s34, s29, 5
s_add_u32 s34, s34, s30
s_lshl1_add_u32 s34, s34, s28
s_lshl_b32 s34, s34, 13
v_lshl_add_u32 v61, v0, 7, s34
L_tj:
s_mov_b32 s67, 0x20000''')
    if cfgy: A(f'''s_bitcmp1_b32 s28, 0
s_cselect_b32 s64, s18, s16
s_cselect_b32 s65, s19, s17
s_mov_b32 s66, {512*2752}
s_mov_b32 s67, 0x20000
s_and_b32 s34, s30, {31 if guall else 15}
s_lshr_b32 s35, s28, 1
s_lshl1_add_u32 s34, s34, s35
s_lshl_b32 s34, s34, {3 if guall else 4}
v_lshrrev_b32 v61, 2, v0
v_add_u32 v61, s34, v61
v_mul_u32_u24 v61, 2752, v61
v_and_b32 v62, 3, v0
v_lshlrev_b32 v62, 7, v62
v_min_u32 v62, 348, v62
s_mul_i32 s34, s29, 352
v_add3_u32 v61, v61, v62, s34''')
    def trigger(n):
        if True:
            L, Ld = lab('trig'), lab('trigd')
            A(f'''s_lshl_b32 s34, s29, 15
v_lshl_add_u32 v125, v13, 6, s34
s_mov_b32 s62, {SPIN}
{L}:
global_load_ubyte v126, v125, s[26:27] offset:{AOFF} sc1
s_and_b32 s34, s3, 0xff
s_waitcnt vmcnt(0)
v_cmp_eq_u32 vcc, s34, v126
s_bcnt1_i32_b32 s34, vcc_lo
s_cmp_ge_u32 s34, {n}
s_cbranch_scc1 {Ld}
s_sleep 2
s_sub_u32 s62, s62, 1
s_cbranch_scc0 {L}
{Ld}:''')
    def touch(when, role=None):
        if cfgy:
            if wox and when == 1 and role == 'x':
                A(f'''s_sub_u32 s34, s30, 27
s_lshl2_add_u32 s34, s34, s28
s_mul_i32 s34, s34, 52
v_add_u32 v127, s34, v0
v_min_u32 v127, 1023, v127
v_lshrrev_b32 v63, 7, v127
v_mul_u32_u24 v63, 384, v63
s_lshl_b32 s35, s29, 12
s_add_u32 s35, s35, 384
v_add3_u32 v127, v127, v63, s35
v_lshlrev_b32 v127, 7, v127
s_mov_b32 exec_hi, 0xfffff
global_load_dword v62, v127, s[12:13] {tf}
s_mov_b32 exec_hi, -1''')
            if when == wo1 and role != 'W':
                Ls = lab('nt')
                if role is None: A(f's_cmp_lt_u32 s30, 16\ns_cbranch_scc1 {Ls}')
                A(f'''s_and_b32 s34, s30, 15
s_lshl2_add_u32 s34, s34, s28
{wot}
s_mov_b32 exec_hi, 0
global_load_dword v62, v127, s[12:13] {tf}
s_mov_b32 exec_hi, -1
{Ls}:''')
            if gsplit and role is not None and role in gsr and when in (1, 2):
                m = (1 << gsplit) - 1
                m = m if when == 1 else ~m & (2**64 - 1)
                if m: A(f's_mov_b32 exec_lo, {m & 0xffffffff:#x}\ns_mov_b32 exec_hi, {m >> 32:#x}\nbuffer_load_dword v62, v61, s[64:67], 0 offen {tf}\ns_mov_b64 exec, -1')
            if when == 2 and edge and role == 'x':
                A(f'''s_mul_i32 s34, s29, 11
s_and_b32 s35, s34, 1
s_add_u32 s35, s35, 29
s_sub_u32 s48, s34, s30
s_add_u32 s48, s48, 26
s_sub_u32 s49, s30, s35
s_add_u32 s49, s49, s34
s_add_u32 s49, s49, 11
s_add_u32 s50, s34, 10
s_cmp_lt_u32 s30, s35
s_cselect_b32 s48, s48, s49
s_cselect_b32 s50, s34, s50
s_and_b32 s35, s48, 3
s_lshl2_add_u32 s35, s28, s35
s_lshl_b32 s35, s35, 5
v_and_b32 v63, 31, v0
v_add_u32 v63, s35, v63
v_mul_u32_u24 v63, 2752, v63
s_lshl_b32 s48, s48, 5
s_lshl_b32 s50, s50, 5
v_add_u32 v127, s48, v63
v_add_u32 v63, s50, v63
v_xor_b32 v127, v127, v63
v_min_u32 v63, {512*2752-4}, v63
v_cmp_gt_u32 vcc, 0x80, v127
s_mov_b32 exec_hi, 0
s_mov_b32 exec_lo, vcc_lo
global_load_dword v62, v63, s[16:17] {tf}
global_load_dword v62, v63, s[18:19] {tf}
s_mov_b64 exec, -1''')
            if guall and (when == guw if gut is None else (role is not None and when == gut['WFx'.index(role)])):
                A(f's_mov_b32 exec_hi, 0\nbuffer_load_dword v62, v61, s[64:67], 0 offen {tf}\ns_mov_b32 exec_hi, -1')
            elif not guall and when == guw and role != 'W' and not (gsplit and role in gsr):
                Ls = lab('nt')
                if role is None: A(f's_cmp_lt_u32 s30, 16\ns_cbranch_scc1 {Ls}')
                A(f'buffer_load_dword v62, v61, s[64:67], 0 offen {tf}\n{Ls}:')
            if when == dtouch and role == 'x':
                if fine == 2: A('s_waitcnt vmcnt(1)'); F2(1); A('s_waitcnt vmcnt(0)'); F2(2)
                if xbar and when == 2 and not tailtest: A('s_barrier')
                if dtrig: trigger(dtrig)
                A(f'''s_sub_u32 s34, s30, 27
s_lshl2_add_u32 s34, s34, s28
s_mul_i32 s34, s34, {71*128}
s_mul_i32 s35, s29, {176*1024}
s_add_u32 s34, s34, s35
v_lshl_add_u32 v63, v0, 7, s34
v_min_u32 v63, {1376*1024-4}, v63
global_load_dword v62, v63, s[20:21]
v_add_u32 v63, 0x2000, v63
v_min_u32 v63, {1376*1024-4}, v63
s_mov_b64 exec, 0x7f
global_load_dword v62, v63, s[20:21]
s_mov_b64 exec, -1''')
                if fine == 2: F2(3); A('s_waitcnt vmcnt(0)'); F2(4)
            return
        lo, hi = twhen[0] == when, twhen[1] == when
        if not (lo or hi): return
        Ls = lab('nt')
        if not (lo and hi): A(f's_cmp_lt_u32 s28, 2\ns_cbranch_scc{0 if lo else 1} {Ls}')
        A(f'buffer_load_dword v62, v61, s[64:67], 0 offen {tf}\n{Ls}:')
    ST(6)
    A(f'''s_getreg_b32 s34, hwreg(HW_REG_XCC_ID, 0, 4)
s_andn2_b32 s35, s3, 31
s_or_b32 s34, s34, s35
s_or_b32 s35, s34, 16
s_waitcnt vmcnt(0)
v_cmp_eq_u32 s[48:49], s34, v9
v_cmp_eq_u32 s[50:51], s35, v9
s_bcnt1_i32_b32 s48, s48
s_bcnt1_i32_b32 s50, s50
s_cmp_gt_u32 s50, s48
s_cselect_b32 s34, 0x2000, 0
v_mov_b32 v10, s34
''')
    if diag: A('s_sub_u32 s34, s50, s48\ns_add_u32 s34, s34, s98\nv_writelane_b32 v7, s34, 12')
    touch(0)
    if wo0: A(f'''s_lshl_b32 s34, s29, 5
s_add_u32 s34, s34, s30
s_lshl2_add_u32 s34, s34, s28
s_lshl_b32 s34, s34, 12
v_lshl_add_u32 v63, v0, 7, s34
s_mov_b32 exec_hi, 0
global_load_dword v62, v63, s[12:13] {tf}
s_mov_b32 exec_hi, -1''')
    tagreg(8, 5, 8)
    A(f'''v_mov_b32 v11, 0xff
s_lshl_b32 s47, s28, 13
s_add_u32 s47, s47, {L_W}            ; this wave's weight staging area
s_waitcnt lgkmcnt(0)''')
    if pol is not None: A(f's_lshr_b32 s34, s29, 2\ns_xor_b32 s34, s34, {pol}\ns_lshl_b32 s34, s34, 13\nv_mov_b32 v10, s34')
    if notail: A('s_cmp_ge_u32 s30, 0\ns_cbranch_scc1 L_norole')
    A('s_cmp_ge_u32 s30, 16\ns_cbranch_scc1 L_notw')
    def bars(early=None, role='x'):
        A('s_barrier')
        if amp: ST(20)
        if role == 'W': early()
        touch(1, role)
        if early and role != 'W': early()
        A('s_barrier' if vlast else 's_barrier\ns_barrier')
        F2(0)
        if amp: ST(21)
        if trig and role != 'W': trigger(trig)
        touch(2, role)
        ST(7)

    A(f'''s_lshl2_add_u32 s34, s29, s28
s_lshl_b32 s35, s34, 13
s_add_u32 s35, s35, {AOFF}
s_add_u32 s44, s26, s35
s_addc_u32 s45, s27, 0
s_lshl_b32 s34, s34, 17
s_lshl_b32 s35, s30, 6
s_add_u32 s34, s34, s35
s_add_u32 s40, s12, s34
s_addc_u32 s41, s13, 0
s_mov_b32 s42, {127*1024+64}
s_mov_b32 s43, 0x20000
v_lshrrev_b32 v14, 4, v0             ; g
v_bfe_u32 v15, v0, 2, 2
{'v_lshl_add_u32 v15, v15, 2, v14' if v4 else 'v_lshl_add_u32 v15, v14, 3, v15'}
v_and_b32 v32, 1, v14
{wrow if dppa else ''}
v_lshlrev_b32 v33, 1, v32
v_and_b32 v34, 3, v0
v_xor_b32 v33, v33, v34
v_lshlrev_b32 v33, 4, v33
v_lshl_add_u32 v15, v15, 10, v33
v_lshrrev_b32 v33, 2, v0
v_lshlrev_b32 v33, 6, v33
v_lshl_add_u32 v33, v34, 3, v33
v_lshl_add_u32 v33, v32, 5, v33
v_add_u32 v33, s47, v33
v_xor_b32 v34, 32, v33
v_lshrrev_b32 v35, 1, v13
v_lshl_add_u32 v35, v12, 2, v35
v_add_u32 v35, s46, v35
v_lshl_add_u32 v36, v14, 4, s46
s_lshl_b32 s34, s28, 2
s_add_u32 s34, s34, {L_RED}
v_add_u32 v37, s34, v13
s_and_b32 s34, s29, 4
s_add_u32 s34, s34, s29
s_lshl4_add_u32 s34, s34, s30
s_lshl_b32 s34, s34, 7
s_mul_i32 s35, s28, {0 if wlast else 32768}
s_add_u32 s34, s34, s35
s_add_u32 s34, s34, {WS_B}
s_add_u32 s56, s26, 0x8000
s_addc_u32 s57, s27, 0
s_add_u32 s58, s26, 0x10000
s_addc_u32 s59, s27, 0
s_add_u32 s68, s26, 0x18000
s_addc_u32 s69, s27, 0
v_lshrrev_b32 v38, 2, v13
v_lshl_add_u32 v38, v12, 13, v38
v_add_u32 v38, s34, v38''')
    if fresh:
        A(f'''v_and_b32 v50, 7, v0
v_and_b32 v51, 4, v50
v_add_u32 v50, v50, v51
v_lshl_add_u32 v50, v50, 11, v10
s_lshl_b32 s34, s30, 7
s_add_u32 s34, s34, {WS_B}
v_add_u32 v50, s34, v50              ; this slice's B line of every group''')
        tagreg(51, 50, 8)
    tagreg(9, 38, 8)
    tagmask(10, 38)
    if tlb & 1: A('s_mov_b64 exec, 1\nbuffer_load_dword v62, v15, s[40:43], 0 offen\ns_mov_b64 exec, -1')
    A('s_and_b32 s60, s30, 1\n' + f's_lshl_b32 s61, s60, {15 if dppa else 16}' + '\ns_lshl_b32 s60, s60, 12')
    def wl(a, b):
        for n in range(a, b):
            A(f's_xor_b32 s34, s60, {1024*n}\ns_add_u32 m0, s47, s34\ns_xor_b32 s34, s61, {((32*(n>>2)+(n&3) if v4 else 8*n) if dppa else 32*(n>>1)+(16 if v4 else 4)*(n&1))*1024}')
            A(f'buffer_load_dwordx4 v15, s[40:43], s34 offen {wf} lds')
    if apre:
        A('s_mov_b32 exec_lo, 0x01010101\ns_mov_b32 exec_hi, 0x01010101\ns_and_b32 s34, s30, 3\ns_lshl_b32 s34, s34, 10\nv_add_u32 v63, s34, v6\nglobal_load_dword v62, v63, s[44:45] sc1\ns_mov_b64 exec, -1')
    ws_ = wsplit if cfgy else 0
    bars(lambda: wl(0, ws_), 'W')
    wl(ws_, 8)
    touch(3, 'W')
    def whook(n):
        A(f's_waitcnt vmcnt({n})')
        ST(10)
        for t in range(4):
            for cb in range(2):
                for hf in range(2):
                    r = 128 + 8 * t + 4 * cb + 2 * hf
                    A(f'ds_read_b64_tr_b16 v[{r}:{r+1}], v{33+cb} offset:{1024*(2*t+hf)}')
    def aload(x):
        for n in range(4): A(f's_mov_b64 exec, s[{48+2*n}:{49+2*n}]\nglobal_load_dwordx4 v[{x+4*n}:{x+4*n+3}], v6, s[44:45] offset:{1024*n} sc1')
        A('s_mov_b64 exec, -1')
    for n in range(4): A(f's_mov_b64 s[{48+2*n}:{49+2*n}], -1')
    aload(96); whook(4)
    deep(aload, 4, [96], 120, 8, 39, 16, issued=True, masked=wmask, slp=wslp)
    ST(8)
    def bcast(src, dst, bank):
        return [f'v_mov_b32_dpp v{dst+i}, v{src} row_newbcast:{i} row_mask:0xf bank_mask:{bank:#x}' for i in range(16)]
    A(FS(0))
    A('v_cvt_pk_bf16_f32 v16, v16, v17')
    if dppa:
        mv = bcast(16, 64, 0xf)
        A('s_waitcnt lgkmcnt(0)')
        for o in mv[:6]: A(o)
        mv = mv[6:]
    else:
        A('ds_write_b32 v35, v16')
        for t in range(4): A(f'ds_read_b128 v[{64+4*t}:{67+4*t}], v36 offset:{64*t}')
    for t in range(4):
        if not dppa: A(f's_waitcnt lgkmcnt({3-t})')
        for cb in range(2):
            c = f'v[{40+4*cb}:{43+4*cb}]'
            A(f'v_mfma_f32_16x16x32_bf16 {c}, v[{64+4*t}:{67+4*t}], v[{128+8*t+4*cb}:{131+8*t+4*cb}], {c if t else 0}')
            if dppa:
                for o in mv[:2]: A(o)
                mv = mv[2:]
    if wlast:
        A(f'''{FS(1)}
s_mov_b64 exec, 0xffff
ds_write2_b32 v37, v40, v44 offset0:0 offset1:64
ds_write_b32 v26, v11 offset:{L_ML+96}
s_mov_b64 exec, -1
ds_read_b128 v[20:23], v24 offset:96
ds_read_b128 v[16:19], v13 offset:{L_RED}
s_waitcnt lgkmcnt(1)
{FS(2)}
v_min3_u32 v20, v20, v21, v22
v_min_u32 v20, v20, v23
v_cmp_ne_u32 vcc, 0, v20
s_waitcnt lgkmcnt(0)
v_pk_add_f32 v[16:17], v[16:17], v[18:19]
s_mov_b64 exec, vcc
v_add_f32 v16, v16, v17
v_bfi_b32 v16, v10, v9, v16
{FS(3)}
global_store_dword v38, v16, s[26:27] sc1
global_store_dword v38, v16, s[56:57] sc1
global_store_dword v38, v16, s[58:59] sc1
global_store_dword v38, v16, s[68:69] sc1
{FS(4)}''')
    else:
        A(f'''{FS(1)}
s_mov_b64 exec, 0xffff
s_cmp_lg_u32 s28, 0
ds_write2_b32 v37, v40, v44 offset0:0 offset1:64
s_mov_b64 exec, -1
{WK(2)}
s_waitcnt lgkmcnt(0)
{FS(2)}
s_barrier
{FS(3)}
{'' if rep4 else 's_cbranch_scc1 ' + ('L_wfresh' if fresh else 'L_wend')}
ds_read_b128 v[16:19], v13 offset:{L_RED}
{WK(3)}
s_waitcnt lgkmcnt(0)
{FS(4)}
v_pk_add_f32 v[16:17], v[16:17], v[18:19]
v_add_f32 v16, v16, v17
v_bfi_b32 v16, v10, v9, v16''')
        A('global_store_dword v38, v16, s[26:27] sc1')
    A(FS(5)); A(FS(6))
    if wb == 1: A('s_cmp_lg_u32 s30, 0\ns_cbranch_scc1 L_wend\nbuffer_wbl2 sc1\ns_waitcnt vmcnt(0)')
    A('L_wend:')
    def wfresh():
        A(f'L_wfresh:\ns_cmp_gt_u32 s28, {fresh}\ns_cbranch_scc1 L_wend\ns_mov_b64 exec, 0xff')
        poll([('global_load_dword v52, v50, s[26:27] sc1', 52)], 53, 51, 54)
        A('s_branch L_wend')
    if fresh: cold.append(wfresh)
    finish()

    A(f'''L_notw:
s_cmp_lt_u32 s30, 27
s_cbranch_scc1 L_rolef
s_cmp_lt_u32 s30, 28
s_cbranch_scc1 L_norole
s_cmp_lg_u32 s28, 0
s_cbranch_scc1 L_norole
s_lshl2_add_u32 s63, s29, s30
s_sub_u32 s63, s63, 28               ; reducer index
s_lshl_b32 s34, s63, 6
s_add_u32 s34, s34, {WS_C}
v_lshrrev_b32 v14, 2, v0
v_and_b32 v15, 12, v14
v_add_u32 v14, v14, v15
v_and_b32 v15, 3, v0
v_lshl_add_u32 v44, v14, 11, v10
v_lshl_add_u32 v44, v15, 4, v44
v_add_u32 v44, s34, v44''')
    for n in range(1, 6): A(f'v_add_u32 v{44+n}, {65536*n}, v44')
    A(f'''s_lshr_b32 s34, s63, 3
s_lshl_b32 s34, s34, 7
s_and_b32 s35, s63, 3
s_lshl_b32 s35, s35, 5
s_add_u32 s34, s34, s35
s_and_b32 s35, s63, 4
s_add_u32 s34, s34, s35
v_lshrrev_b32 v14, 4, v0
v_lshl_add_u32 v14, v15, 3, v14
v_add_u32 v14, s34, v14
v_lshlrev_b32 v51, 1, v14
global_load_ushort v43, v51, s[4:5]
s_lshl_b32 s34, s34, 2
s_and_b32 s35, s29, {3 if rep4 else 0}
s_lshl_b32 s35, s35, 15
s_add_u32 s34, s34, s35
s_add_u32 s34, s34, {WS_B}
v_bfe_u32 v50, v0, 2, 3
v_and_b32 v14, 4, v50
v_add_u32 v50, v50, v14
v_lshl_add_u32 v50, v50, 11, v10
v_lshl_add_u32 v50, v15, 5, v50
v_add_u32 v50, s34, v50
v_mov_b32 v52, {WS_E}
v_mov_b32 v53, s3''')
    tagreg(9, 50, 8)
    if tlb & 4: A('s_mov_b64 exec, 1\nglobal_load_ushort v62, v51, s[22:23]\ns_mov_b64 exec, -1')
    for x in (96, 128, 152, 176)[:max(rdep, 1)]: A(f'v_mov_b32 v{x+20}, v8\nv_mov_b32 v{x+21}, 0\nv_mov_b32 v{x+22}, 0\nv_mov_b32 v{x+23}, 0')
    bars()
    lds = [(f'global_load_dwordx4 v[{96+4*n}:{99+4*n}], v{44+n}, s[26:27] sc1', 96 + 4 * n) for n in range(6)]
    if cpre:
        for l in lds[:5]: A(l[0])
        A(f's_mov_b64 exec, 0xffffff\n{lds[5][0]}\ns_mov_b64 exec, -1')
    A('v_mov_b32 v36, v9\nv_mov_b32 v37, 0\nv_mov_b32 v38, 0\nv_mov_b32 v39, 0')
    poll([('s_mov_b32 exec_hi, 0\nglobal_load_dwordx4 v[36:39], v50, s[26:27] sc1\ns_mov_b32 exec_hi, -1', 36)], 40, 9, 42, slp=rb)
    ST(9)
    est = '''s_cmp_eq_u32 s63, 0
s_cselect_b32 exec_lo, 1, 0
s_mov_b32 exec_hi, 0
global_store_dword v52, v53, s[26:27] sc1
s_mov_b64 exec, -1'''
    if not eend: A(est)
    A(f'''v_permlane32_swap_b32 v40, v38
v_permlane32_swap_b32 v37, v39
v_permlane16_swap_b32 v40, v37
v_add_f32 v40, v40, v37
v_lshlrev_b32 v43, 16, v43
v_add_f32_dpp v40, v40, v40 row_ror:8 {FULL}
v_add_f32_dpp v40, v40, v40 row_ror:4 {FULL}
v_add_f32 v40, v40, v43''')
    rnd(40)
    if rslp: A(f's_sleep {rslp}')
    if rdep:
        def rload(x):
            for n in range(6): A(('s_mov_b64 exec, 0xffffff\n' if n == 5 else '') + f'global_load_dwordx4 v[{x+4*n}:{x+4*n+3}], v{44+n}, s[26:27] sc1')
            A('s_mov_b64 exec, -1')
        deep(rload, 6, [96, 128, 152, 176][:rdep], 120, 8, 42, 16, slp=cslp)
        ST(8)
    else:
        poll(lds, 120, 8, 42, part=0xffffff)
        ST(8)
        gsum(96, 120, 6, 16)
    A(f'''v_permlane16_swap_b32 v16, v17
v_add_f32 v16, v16, v17
v_add_f32_dpp v16, v16, v16 row_ror:8 {FULL}
v_add_f32_dpp v16, v16, v16 row_ror:4 {FULL}''')
    A(f'''v_add_f32 v16, v16, v40
v_cvt_pk_bf16_f32 v16, v16, v16
s_mov_b32 exec_lo, 0x000f000f
s_mov_b32 exec_hi, 0x000f000f
global_store_short v51, v16, s[22:23] {outf}
''')
    if eend: A(est)
    if dbgp:
        A('s_mov_b64 exec, 1\nv_mov_b32 v20, 0')
        for i, r in enumerate((26, 27, 6, 7, 8, 9, 12, 16, 18, 20, 22, 24, 4, 10)): A(f'v_mov_b32 v21, s{r}\nglobal_store_dword v20, v21, s[24:25] offset:{4*i}')
        A('global_store_dword v20, v10, s[24:25] offset:56')
    A('L_rend:')
    if amp:
        ST(14)
        A(f'''s_memrealtime s[96:97]
s_waitcnt lgkmcnt(0)
s_sub_u32 s98, s100, s98
s_mul_i32 s98, s98, {amp[2]}
{f's_mov_b32 s98, {amp[4]}' if len(amp) > 4 else ''}
s_cmp_lg_u32 s29, {amp[3] if amp[3] >= 0 else 's29'}
s_cbranch_scc1 L_ampd
L_amp:
s_memrealtime s[100:101]
s_waitcnt lgkmcnt(0)
s_sub_u32 s100, s100, s96
s_cmp_lt_u32 s100, s98
s_cbranch_scc1 L_amp
L_ampd:''')
    finish(True)
    A('L_norole:')
    if ((guw == 2 or dtouch == 2 or edge) if cfgy else 2 in twhen): bars()
    else:
        A('s_barrier'); touch(1, 'x')
    if wb == 2:
        A(f'''s_cmp_lg_u32 s30, 27
s_cbranch_scc1 L_nowb
s_cmp_lg_u32 s28, 0
s_cbranch_scc1 L_nowb
v_and_b32 v50, 7, v0
v_and_b32 v14, 4, v50
v_add_u32 v50, v50, v14
v_lshl_add_u32 v50, v50, 11, v10
v_add_u32 v50, {WS_B}, v50''')
        tagreg(9, 50, 8)
        poll([('global_load_dword v36, v50, s[26:27] sc1', 36)], 40, 9, 42, slp=2)
        if wbs: A(f's_sleep {wbs}')
        A('buffer_wbl2 sc1\ns_waitcnt vmcnt(0)\nL_nowb:')
    finish(2)

    page()
    A(f'''L_rolef:
s_mul_i32 s63, s29, 11
s_add_u32 s63, s63, s30
s_sub_u32 s63, s63, 16
s_cmp_ge_u32 s63, 86
s_cbranch_scc1 L_norole
s_mul_i32 s34, s28, {128*2752}
s_lshl_b32 s35, s63, 5
s_add_u32 s34, s34, s35
s_add_u32 s36, s16, s34
s_addc_u32 s37, s17, 0
s_mov_b32 s38, {127*2752+32}
s_mov_b32 s39, 0x20000
s_add_u32 s40, s18, s34
s_addc_u32 s41, s19, 0
s_mov_b32 s42, {127*2752+32}
s_mov_b32 s43, 0x20000
s_lshl_b32 s34, s63, 14
s_lshl_b32 s35, s28, 8
s_add_u32 s34, s34, s35
s_add_u32 s20, s20, s34
s_addc_u32 s21, s21, 0
s_add_u32 s4, s4, s35
s_addc_u32 s5, s5, 0
s_lshl_b32 s35, s28, 9
s_and_b32 s34, s29, {3 if rep4 else 0}
s_lshl_b32 s34, s34, 15
s_add_u32 s34, s34, s35
s_add_u32 s34, s34, {WS_B+4096}
s_add_u32 s44, s26, s34
s_addc_u32 s45, s27, 0
v_lshl_add_u32 v6, v12, 14, v13
v_add_u32 v6, v6, v10
v_bfe_u32 v14, v0, 3, 2
v_lshlrev_b32 v14, 3, v14
v_lshl_add_u32 v14, v12, 2, v14
v_bfe_u32 v15, v0, 1, 2
v_add_u32 v14, v14, v15
{frow if dppa else ''}
v_mul_u32_u24 v14, 2752, v14
v_and_b32 v15, 1, v0
v_lshl_add_u32 v15, v15, 4, v14
v_lshl_add_u32 v33, v0, 3, s47
v_lshrrev_b32 v36, 1, v13
v_lshl_add_u32 v36, v12, 2, v36      ; byte offset of this lane's bf16 pair inside 128 columns
v_add_u32 v37, s46, v36
v_and_b32 v38, 15, v0
v_lshrrev_b32 v14, 4, v0
v_lshlrev_b32 v34, 4, v38
v_lshl_add_u32 v34, v14, 10, v34
v_add_u32 v34, 0x1000, v34
v_add_u32 v35, 0x2000, v34
v_lshl_add_u32 v56, v14, 4, s46
v_mov_b32 v57, {L_RED+256}
v_cmp_eq_u32 vcc, 1, v38
v_cndmask_b32 v56, v56, v57, vcc
s_lshl_b32 s34, s28, 2
v_lshl_add_u32 v60, v12, 4, s34
s_lshl_b32 s34, s28, 3
s_add_u32 s34, s34, {L_OP}
v_mul_u32_u24 v57, 80, v38
v_add_u32 v57, s34, v57
{'v_lshl_add_u32 v57, v14, 2, v57' if dppa else ''}
{'s_lshl_b32 s34, s28, 2' + nl + 'v_xor_b32 v60, 1, v14' + nl + 'v_lshl_add_u32 v60, v60, 4, s34' if mstat else ''}
v_and_b32 v58, 12, v0
v_add_u32 v58, v58, v14
v_mul_u32_u24 v58, 80, v58
s_andn2_b32 s34, s63, 3
s_add_u32 s34, s34, s63
s_lshl2_add_u32 s34, s34, s28
s_lshl_b32 s34, s34, 9
s_add_u32 s34, s34, {WS_C}
v_lshl_add_u32 v59, v12, 13, v13
v_add_u32 v59, s34, v59
v_mov_b32 v44, 0x3f803f80
v_lshlrev_b32 v45, 2, v0
ds_write_b32 v45, v44 offset:{L_RED+256}
v_mov_b32 v63, {L_RED}
v_mov_b32 v46, {EPS:#x}
v_and_b32 v40, 1, v0
v_lshlrev_b32 v40, 4, v40
v_mov_b32 v41, 0xffff
v_lshlrev_b32 v40, v40, v41
v_bfe_u32 v41, v0, 1, 2
s_mov_b32 s60, 1
s_mov_b32 s61, 1''')
    if dppa:
        for i in range(16): A(f'v_mov_b32 v{72+i}, v44')
    if mstat: A('s_mov_b32 s60, 0x10001\ns_mov_b32 s61, 0')
    if early: A('s_lshl_b32 s34, s28, 3\nv_lshl_add_u32 v60, v12, 2, s34\nv_and_b32 v42, 3, v0\nv_lshl_add_u32 v58, v42, 4, v58')
    for w in range(4): A(f'v_cmp_eq_u32 vcc, {w}, v41\nv_cndmask_b32 v{48+w}, 0, v40, vcc')
    if tlb & 2: A('s_mov_b64 exec, 1\nbuffer_load_dword v62, v15, s[36:39], 0 offen\nbuffer_load_dword v62, v15, s[40:43], 0 offen\nglobal_load_dword v62, v34, s[20:21]\ns_mov_b64 exec, -1')
    def dloads():
        for n in range(4): A(f'global_load_dwordx4 v[{160+4*n}:{163+4*n}], v{34+(n>>1)}, s[20:21] offset:{4096*(n&1)-4096} {"" if dtouch else "nt"}')
    dp = dpos if cfgy else ('bar1' if dearly else 'first')
    A(f's_and_b32 s68, s63, {frot}\ns_lshl_b32 s34, s68, 6\nv_xor_b32 v37, s34, v37')
    def fl(a, b):
        for jm in range(a, b):
            j, m = jm >> 1, jm & 1
            if jm in fbar and jm >= fsplit: A('s_barrier')
            A(f's_xor_b32 s34, s68, {j}\ns_mul_i32 s34, s34, {(16 if dppa else 32)*2752}\ns_add_u32 m0, s47, {4096*m+1024*j}')
            A(f'buffer_load_dwordx4 v15, s[{36+4*m}:{39+4*m}], s34 offen {wf} lds')
    A('global_load_dword v32, v36, s[4:5]')
    if bpre:
        A('s_sub_u32 s34, s30, 16\ns_lshl_b32 s34, s34, 1\ns_mov_b64 exec, 0x01010101\ns_mov_b32 exec_hi, 0x01010101')
        A('s_and_b32 s34, s30, 3\ns_lshl_b32 s34, s34, 11\nv_add_u32 v9, s34, v6\nglobal_load_dword v62, v9, s[44:45] offset:-4096 sc1\ns_mov_b64 exec, -1')
    if dp == 'mid': dloads()
    def fearly():
        if dp == 'bar1': dloads()
        fl(0, fsplit)
    bars(fearly, 'F')
    if dp == 'first': dloads()
    fl(fsplit, 8)
    F2(1)
    if fine == 2: A('s_waitcnt vmcnt(8)')
    F2(2)
    if dp == 'last': dloads()
    def fhook(n, inner=None):
        n += 4 if dp == 'last' else 0
        for t in range(4):
            A(f's_waitcnt vmcnt({n + 6 - 2 * t})')
            F2(3 + t)
            if inner and t == late - 1: n += inner()
            if t == 3:
                ST(10)
                if inner and repoll and late < 4: fload(96)
            for m in range(2):
                for hf in range(2):
                    r = 128 + 16 * m + 4 * t + 2 * hf
                    A(f'ds_read_b64_tr_b16 v[{r}:{r+1}], v33 offset:{4096*m+1024*t+512*hf}')
            if t == 0: A('v_and_b32 v41, 0xffff0000, v32\nv_lshlrev_b32 v40, 16, v32')
    def gemv(a, between=None):
        for t in range(4):
            if between: between(t)
            for m in range(2):
                c = f'v[{64+4*m}:{67+4*m}]'
                A(f'v_mfma_f32_16x16x32_bf16 {c}, v[{a(t)}:{a(t)+3}], v[{128+16*m+4*t}:{131+16*m+4*t}], {c if t else 0}')
    if fdep:
        def fload(x):
            for n in range(4): A((f's_mov_b64 exec, s[{48+2*n}:{49+2*n}]\n' if fmask else '') + f'global_load_dwordx4 v[{x+4*n}:{x+4*n+3}], v6, s[44:45] offset:{2048*n-4096} sc1')
            if fmask: A('s_mov_b64 exec, -1')
        if fmask:
            for n in range(4): A(f's_mov_b64 s[{48+2*n}:{49+2*n}], -1')
        if ftrig:
            fload(96)
            A('s_and_b32 s34, s29, 4\ns_add_u32 s34, s34, s29\ns_lshl_b32 s34, s34, 11\nv_and_b32 v9, 1, v0\nv_lshl_add_u32 v9, v9, 4, s34\nv_add_u32 v9, v9, v10')
            poll([('global_load_dword v124, v9, s[44:45] offset:-4096 sc1', 124)], 120, 8, 42, hook=lambda n: fhook(5), slp=1)
        def inner():
            if dp == 'in': dloads()
            fload(96)
            return 8 if dp == 'in' else 4
        if late: fhook(0, inner)
        elif not ftrig and not fpeel: fhook(0)
        deep(fload, 4, [96, 176, 192, 208][:fdep], 120, 8, 42, 16, hook=fhook if fpeel and not ftrig else None, issued=bool(late), masked=fmask, slp=fslp)
        ST(8)
    else:
        poll([(f'global_load_dwordx4 v[{96+4*n}:{99+4*n}], v6, s[44:45] offset:{2048*n-4096} sc1', 96 + 4 * n) for n in range(4)], 120, 8, 42, hook=fhook)
        ST(8)
        gsum(96, 120, 4, 16)
    A(f'''{FS(0)}
v_pk_add_f32 v[16:17], v[16:17], v[40:41]
v_cvt_pk_bf16_f32 v18, v16, v17
''')
    if dppa:
        mv = bcast(18, 72, 0xd)
        st = [['v_permlane32_swap_b32 v16, v17', 'v_add_f32 v16, v16, v17']] + [[f'v_add_f32_dpp v16, v16, v16 row_ror:{r} {FULL}'] for r in (8, 4, 2)]
        st += [[f'v_add_f32_dpp v16, v16, v16 row_ror:1 {FULL}', 'v_mov_b32 v17, v16'], [], ['v_permlane16_swap_b32 v16, v17', 'v_add_f32 v16, v16, v17'], []]
        if early:
            dpp = lambda r: f'v_add_f32_dpp v16, v16, v16 row_ror:{r} {FULL}'
            A('v_dot2_f32_bf16 v16, v18, v44, 0\nv_dot2_f32_bf16 v17, v18, v18, 0\ns_waitcnt lgkmcnt(0)')
            mv = mv[:2] + ['v_permlane32_swap_b32 v16, v17'] + mv[2:4] + ['v_add_f32 v16, v16, v17'] + mv[4:]
            for o in mv[:2]: A(o)
            mv = mv[2:]
            st = [[dpp(8)], [dpp(4)], [dpp(2)], [dpp(1), 'v_mov_b32 v17, v16'], ['v_permlane16_swap_b32 v16, v17', 'v_add_f32 v16, v16, v17'], [f's_mov_b64 exec, s[60:61]\nds_write_b32 v60, v16 offset:{L_RED}\ns_mov_b64 exec, -1'], [], []]
        elif mstat: A('s_waitcnt lgkmcnt(0)')
        else: A('v_dot2_f32_bf16 v16, v18, v44, 0\nv_dot2_f32_bf16 v17, v18, v18, 0\ns_waitcnt lgkmcnt(0)')
        for o in mv[:6]: A(o)
        mv = mv[6:]
        dl = [f'global_load_dwordx4 v[{160+4*n}:{163+4*n}], v{34+(n>>1)}, s[20:21] offset:{4096*(n&1)-4096}' for n in range(4)] if dp == 'post' else []
        for t in range(4):
            if mstat: A(f'v_mfma_f32_16x16x32_bf16 v[88:91], v[{72+4*t}:{75+4*t}], v[{72+4*t}:{75+4*t}], {"v[88:91]" if t else 0}')
            for m in range(2):
                c = f'v[{64+4*m}:{67+4*m}]'
                A(f'v_mfma_f32_16x16x32_bf16 {c}, v[{72+4*t}:{75+4*t}], v[{128+16*m+4*t}:{131+16*m+4*t}], {c if t else 0}')
                if dl: A(dl.pop(0))
                for o in mv[:2]: A(o)
                mv = mv[2:]
                if not mstat:
                    for o in st.pop(0): A(o)
    else:
        A('ds_write_b32 v37, v18')
        for t in range(4): A(f'ds_read_b128 v[{72+4*t}:{75+4*t}], v56 offset:{64*t}')
        if dp == 'post': dloads()
        A('v_dot2_f32_bf16 v16, v18, v44, 0\nv_dot2_f32_bf16 v17, v18, v18, 0\nv_permlane32_swap_b32 v16, v17\nv_add_f32 v16, v16, v17')
        for r in (8, 4): A(f'v_add_f32_dpp v16, v16, v16 row_ror:{r} {FULL}')
        def between(t):
            if t == 1: A(f'v_add_f32_dpp v16, v16, v16 row_ror:2 {FULL}')
            if t == 2: A(f'v_add_f32_dpp v16, v16, v16 row_ror:1 {FULL}\nv_mov_b32 v17, v16')
            if t == 3: A('v_permlane16_swap_b32 v16, v17\nv_add_f32 v16, v16, v17')
            A(f's_waitcnt lgkmcnt({3-t})')
        gemv(lambda t: 72 + 4 * t, between)
    if early:
        A(f'''{FS(1)}
s_mov_b32 exec_hi, 0
ds_write2_b32 v57, v64, v68 offset0:0 offset1:8
s_mov_b32 exec_hi, -1
s_waitcnt lgkmcnt(1)
s_barrier
ds_read_b128 v[24:27], v63
ds_read_b128 v[28:31], v63 offset:16
{WK(0)}
s_waitcnt lgkmcnt(2)
{FS(2)}
s_barrier
{FS(3)}
ds_read_b128 v[16:19], v58 offset:{L_OP}
{WK(1)}
s_waitcnt lgkmcnt(1)
v_pk_add_f32 v[24:25], v[24:25], v[26:27]
v_pk_add_f32 v[28:29], v[28:29], v[30:31]
v_pk_add_f32 v[24:25], v[24:25], v[28:29]
v_mul_f32 v24, 0xbb000000, v24       ; -mean
v_fmamk_f32 v28, v25, 0x3b000000, v46
v_fma_f32 v28, -v24, v24, v28
v_max_f32 v28, v28, v46
v_rsq_f32 v29, v28
s_waitcnt lgkmcnt(0)
{FS(4)}
v_pk_add_f32 v[16:17], v[16:17], v[18:19]
v_fmac_f32 v16, v24, v17
v_rcp_f32 v28, v28
v_mul_f32 v29, {LOG2E ^ 0x80000000:#x}, v29
v_add_f32_dpp v16, v16, v16 quad_perm:[1,0,3,2] {FULL}
v_mul_f32 v17, v16, v29
v_exp_f32 v17, v17
v_mul_f32_dpp v18, v16, v16 quad_perm:[2,3,0,1] {FULL}
v_add_f32 v17, 1.0, v17
v_rcp_f32 v17, v17
v_mul_f32 v18, v18, v28
v_mul_f32 v16, v18, v17
v_cvt_pk_bf16_f32 v16, v16, v16''')
    else:
        A(f'''{FS(1)}
s_mov_b64 exec, s[60:61]
ds_write_b32 v60, v{88 if mstat else 16} offset:{L_RED}
{'s_mov_b32 exec_lo, -1' + nl + 's_mov_b32 exec_hi, 0' + nl + 'ds_write2_b32 v57, v64, v68 offset0:0 offset1:8' if dppa else 's_mov_b64 exec, 0xffff' + nl + 'ds_write2_b64 v57, v[64:65], v[68:69] offset0:0 offset1:4'}
s_mov_b64 exec, -1
s_waitcnt lgkmcnt(0)''')
        ST(9)
        A(f'''{FS(2)}
s_barrier
{FS(3)}
ds_read_b128 v[24:27], v63
ds_read_b128 v[28:31], v63 offset:16
ds_read_b128 v[16:19], v58 offset:{L_OP}
ds_read_b128 v[20:23], v58 offset:{L_OP+16}
ds_read_b128 v[72:75], v58 offset:{L_OP+32}
ds_read_b128 v[76:79], v58 offset:{L_OP+48}
s_waitcnt lgkmcnt(4)
{FS(4)}
v_pk_add_f32 v[24:25], v[24:25], v[26:27]
v_pk_add_f32 v[28:29], v[28:29], v[30:31]
v_add_f32 v24, v24, v25
v_add_f32 v28, v28, v29
v_mul_f32 v24, 0xbb000000, v24       ; -mean
v_fmamk_f32 v28, v28, 0x3b000000, v46
v_fma_f32 v28, -v24, v24, v28
v_max_f32 v28, v28, v46
v_rsq_f32 v28, v28
s_waitcnt lgkmcnt(2)
v_pk_add_f32 v[16:17], v[16:17], v[18:19]
v_pk_add_f32 v[20:21], v[20:21], v[22:23]
v_mul_f32 v29, {LOG2E ^ 0x80000000:#x}, v28
v_pk_add_f32 v[16:17], v[16:17], v[20:21]
v_fmac_f32 v16, v24, v17
v_mul_f32 v17, v16, v29
v_exp_f32 v17, v17
s_waitcnt lgkmcnt(0)
v_pk_add_f32 v[72:73], v[72:73], v[74:75]
v_add_f32 v17, 1.0, v17
v_rcp_f32 v17, v17
v_pk_add_f32 v[76:77], v[76:77], v[78:79]
v_mul_f32 v16, v16, v28              ; gate
v_pk_add_f32 v[72:73], v[72:73], v[76:77]
v_mul_f32 v16, v16, v17              ; silu(gate)
v_fmac_f32 v72, v24, v73
v_mul_f32 v16, v16, v28
v_mul_f32 v16, v16, v72
v_cvt_pk_bf16_f32 v16, v16, v16''')
    A(FS(5))
    if dp == 'post': A('s_waitcnt vmcnt(0)')
    ops = [f'v_and_b32_dpp v{72+4*n+w}, v16, v{48+w} row_newbcast:{4*n} {FULL}' for n in range(4) for w in range(4)]
    for n in range(4):
        for o in ops[(4 * n + 2 if n else 0):4 * n + 6]: A(o)
        A(f'v_mfma_f32_16x16x32_bf16 v[64:67], v[{72+4*n}:{75+4*n}], v[{160+4*n}:{163+4*n}], {"v[64:67]" if n else 0}')
    A('v_bfi_b32 v64, v11, v8, v64\nglobal_store_dwordx4 v59, v[64:67], s[26:27] sc1')
    A(FS(6))
    finish()

    page()
    A(f'''L_vwave:
s_add_u32 s36, s8, s34
s_addc_u32 s37, s9, 0
s_lshl3_add_u32 s35, s31, s32
s_lshl_b32 s35, s35, 10
s_add_u32 s44, s26, s35
s_addc_u32 s45, s27, 0
v_mov_b32 v56, {L_ML}
s_lshr_b32 s56, s2, 6
s_lshl_b32 s56, s56, 7
s_and_b32 s35, s2, 63
s_add_u32 s56, s56, s35
s_lshl_b32 s56, s56, 7
s_add_u32 s56, s56, {WS_PR}
s_cmp_lg_u32 s28, {99 if nox else 5}
s_cbranch_scc1 L_nowarm
s_load_dword s54, s[26:27], s56 glc
s_load_dword s55, s[26:27], s56 offset:0x2000 glc
L_nowarm:''')
    ST(7)
    selectors(40, 28)
    A(f'''s_lshl_b32 s34, s63, 10
s_add_u32 s34, s34, {L_OP}
v_lshrrev_b32 v12, 5, v0
v_lshl_add_u32 v12, v12, 9, s34
v_lshl_add_u32 v12, v4, 2, v12
v_bfe_u32 v13, v0, 4, 1
v_lshl_add_u32 v12, v13, 5, v12
v_lshlrev_b32 v14, 3, v0
s_lshl_b32 s34, s32, 5
s_add_u32 s34, s34, s63
s_lshl_b32 s34, s34, 2
v_lshl_add_u32 v6, v3, 4, s34
v_mov_b32 v57, 1
s_waitcnt vmcnt(4)''')
    ST(1)
    layernorm(24, 28, 24)
    A(f'ds_write_b128 v5, v[24:27] offset:{L_H}\ns_waitcnt lgkmcnt(0)\nds_read_b32 v48, v6 offset:{L_H}\ns_add_u32 s3, s3, {EPOCH_STEP:#x}')
    tagreg(8, 14, 4)
    A('s_waitcnt lgkmcnt(0)')
    for n in range(2): afrag(24 + 4 * n, 48, n, 40)
    A('s_waitcnt vmcnt(0)')
    for n in range(2):
        for hf in range(2):
            c = f'v[{16+4*hf}:{19+4*hf}]'
            A(f'v_mfma_f32_16x16x32_bf16 {c}, v[{24+4*n}:{27+4*n}], v[{64+8*n+4*hf}:{67+8*n+4*hf}], {c if n else 0}')
    def part_write():
        A(f'''s_mov_b32 exec_lo, 0x00ff00ff
s_mov_b32 exec_hi, 0xff00ff00
ds_write2_b64 v12, v[16:17], v[20:21] offset0:0 offset1:1
ds_write2_b64 v12, v[18:19], v[22:23] offset0:2 offset1:3''')
    def part_sum(off):
        for n in range(4): A(f'ds_read_b128 v[{16+4*n}:{19+4*n}], v5 offset:{L_OP+1024*n}')
        A('s_waitcnt lgkmcnt(0)')
        sum8(16)
    part_write()
    A(f'''s_mov_b64 exec, 1
s_waitcnt lgkmcnt(0)
ds_add_u32 v56, v57 offset:48
s_mov_b64 exec, -1
s_cmp_lg_u32 s28, {99 if noq else 4}
s_cbranch_scc1 L_vstream
''')
    ldsspin('ds_read_b32 v15, v56 offset:48', 'v_cmp_ne_u32 vcc, 4, v15')
    part_sum(0)
    A('v_and_or_b32 v16, v16, -16, v8\nv_and_or_b32 v17, v17, -16, v8\nglobal_store_dwordx2 v14, v[16:17], s[44:45] ' + qst)
    ST(2)
    A(f'''L_vstream:
{'s_mov_b64 exec, 1' + nl + 'buffer_load_dword v15, v2, s[36:39], s33 offen nt' + nl + 's_mov_b64 exec, -1' + nl + 's_waitcnt vmcnt(0)' if tlb & 8 else ''}
s_setprio 0
s_cmp_lg_u32 s28, {99 if nox else 5}
s_cbranch_scc1 L_noprobe
s_mov_b32 s54, {0 if psum else -1}
s_mov_b32 s55, {0 if psum else -1}
s_waitcnt lgkmcnt(0)''')
    for i in range(2 * nprobe):
        A(f's_memtime s[50:51]\ns_load_dword s35, s[26:27], s56 offset:{0x2000 * (i & 1)} glc\ns_waitcnt lgkmcnt(0)\ns_memtime s[52:53]\ns_waitcnt lgkmcnt(0)\ns_sub_u32 s35, s52, s50\n{"s_add_u32" if psum else "s_min_u32"} s{54 + (i & 1)}, s{54 + (i & 1)}, s35')
    A(f'''s_getreg_b32 s34, hwreg(HW_REG_XCC_ID, 0, 4)
s_andn2_b32 s35, s3, 31
s_or_b32 s34, s34, s35
s_cmp_lt_u32 s55, s54
s_cselect_b32 s35, 16, 0
s_or_b32 s34, s34, s35
v_mov_b32 v31, s34
s_lshl_b32 s34, s29, 6
s_add_u32 s34, s34, s30
s_lshl_b32 s34, s34, 2
s_add_u32 s34, s34, {WS_X}
v_mov_b32 v30, s34
s_mov_b64 exec, 1
global_store_dword v30, v31, s[26:27] {xst}
s_mov_b64 exec, -1
L_noprobe:
s_lshl_b32 s34, s63, 2
v_mov_b32 v28, s34''')
    ST(8)
    ldsspin(f'ds_read_b32 v15, v28 offset:{L_ML+64}', 'v_cmp_eq_u32 vcc, 0, v15', 1)
    A(f'''s_lshl_b32 s34, s29, 8
s_add_u32 s34, s34, {WS_X}
v_and_b32 v30, 31, v0
v_lshl_add_u32 v30, v30, 2, s34
s_getreg_b32 s34, hwreg(HW_REG_XCC_ID, 0, 4)
s_andn2_b32 s46, s3, 31
s_or_b32 s46, s46, s34''')
    tv = thrv or thr
    stream({xpos: 'global_load_dword v31, v30, s[26:27] sc1',
            xpos + tv: f'''v_and_b32 v31, -17, v31
v_cmp_ne_u32 s[48:49], s46, v31
s_cmp_eq_u64 s[48:49], {"s[48:49]" if nox else (1 if slowall else 0)}
s_cselect_b64 s[50:51], -1, 0
s_cselect_b64 s[52:53], 0, -1
s_cbranch_scc0 L_requeue
L_requeued:'''}, tv, extra_at=xpos, slow=slowv)
    cold.append(lambda: A('''L_requeue:
s_cmp_lg_u32 s28, 4
s_cbranch_scc1 L_requeued
global_store_dwordx2 v14, v[16:17], s[44:45] sc1
s_waitcnt vmcnt(0)
s_branch L_requeued'''))
    A('v_mov_b32 v11, 0xff')
    if vprio == 0: A('s_setprio 3')
    if sq: A(f'''s_lshl2_add_u32 s54, s30, s63
s_andn2_b32 s55, s54, 15
s_mul_i32 s55, s55, 3
s_add_u32 s54, s54, s55
s_mul_i32 s54, s54, 2752
s_mul_i32 s55, s29, 352
s_andn2_b32 s55, s55, 63
s_min_u32 s55, s55, {2752-384}
s_add_u32 s54, s54, s55''')
    if v4:
        A(f'''s_mul_i32 s34, s63, {2*528}
s_add_u32 s34, s34, {L_OP}
v_lshrrev_b32 v12, 5, v0
v_mul_u32_u24 v12, 528, v12
v_lshl_add_u32 v12, v4, 1, v12
v_bfe_u32 v13, v0, 4, 1
v_lshl_add_u32 v12, v13, 4, v12
v_add_u32 v12, s34, v12
s_lshl_b32 s34, s63, 7
v_mul_u32_u24 v13, 528, v3
v_add3_u32 v13, v13, v4, s34
v_add_u32 v13, {L_OP}, v13
v_lshrrev_b32 v14, 4, v0
v_lshlrev_b32 v14, 5, v14
v_lshrrev_b32 v15, 2, v4
v_add3_u32 v14, v14, v15, s34        ; position inside the A record
s_and_b32 s50, s50, 0x00ff00ff
s_and_b32 s51, s51, 0x00ff00ff
s_and_b32 s52, s52, 0x00ff00ff
s_and_b32 s53, s53, 0x00ff00ff''')
    tagreg(8, 14, 8)
    tagmask(10, 14)
    ST(3)
    A(f'''s_lshl_b32 s34, s63, 8
v_lshl_add_u32 v6, v3, 5, s34
s_barrier''')
    ST(4)
    A(f'ds_read_b128 v[48:51], v6 offset:{L_P}\nds_read_b128 v[52:55], v6 offset:{L_P+16}\ns_waitcnt lgkmcnt(0)')
    for i in range(16): afrag(64 + 4 * i, 48 + i // 2, i & 1, 40)
    for i in range(16):
        for hf in range(2):
            if vprio == 1 and (i, hf) == (12, 0): A('s_setprio 3')
            if vfill and i >= 13 and hf == 0:
                Lw = lab('busy')
                A(f'{Lw}:\nv_mov_b32 v1, v1\ns_getreg_b32 s34, hwreg(HW_REG_IB_STS, 0, 4)\ns_cmp_gt_u32 s34, {31-2*i}\ns_cbranch_scc1 {Lw}')
            if hf == 0 or i >= 12: A(f's_waitcnt vmcnt({31-2*i-hf if i >= 12 else 30-2*i})')
            c = f'v[{16+4*hf}:{19+4*hf}]'
            A(f'v_mfma_f32_16x16x32_bf16 {c}, v[{64+4*i}:{67+4*i}], v[{128+8*i+4*hf}:{131+8*i+4*hf}], {c if i else 0}')
    def stouch():
        for t in sq:
            for m in range(2):
                for j in range(6): A(f's_load_dword s35, s[{16+2*m}:{17+2*m}], s54 offset:{16*t*2752+64*j}')
    def ttwait():
        stouch()
        A(f'''s_barrier
L_tt:
s_memrealtime s[96:97]
s_waitcnt lgkmcnt(0)
s_sub_u32 s96, s96, s98
s_cmp_lt_u32 s96, {tailtest}
s_cbranch_scc1 L_tt''')
    if vlast:
        if tailtest: ttwait()
        part_write()
        A(f'ds_write_b32 v28, v11 offset:{L_ML+80}\ns_mov_b64 exec, -1\nds_read_b128 v[32:35], v56 offset:80')
        for n in range(4): A(f'ds_read_b128 v[{64+4*n}:{67+4*n}], v5 offset:{L_OP+1024*n}')
        A(f'''s_waitcnt lgkmcnt(4)
v_min3_u32 v32, v32, v33, v34
v_min_u32 v32, v32, v35
v_cmp_ne_u32 vcc, 0, v32
s_waitcnt lgkmcnt(2)
v_pk_add_f32 v[64:65], v[64:65], v[68:69]
v_pk_add_f32 v[66:67], v[66:67], v[70:71]
s_and_b64 s[50:51], s[50:51], vcc
s_and_b64 s[52:53], s[52:53], vcc
s_waitcnt lgkmcnt(0)
v_pk_add_f32 v[72:73], v[72:73], v[76:77]
v_pk_add_f32 v[74:75], v[74:75], v[78:79]
v_pk_add_f32 v[64:65], v[64:65], v[72:73]
v_pk_add_f32 v[66:67], v[66:67], v[74:75]
v_permlane32_swap_b32 v64, v66
v_permlane32_swap_b32 v65, v67
v_pk_add_f32 v[64:65], v[64:65], v[66:67]
v_bfi_b32 v64, v10, v8, v64
s_mov_b64 exec, s[50:51]
global_store_dwordx2 v14, v[64:65], s[44:45] offset:{AOFF}
s_mov_b64 exec, s[52:53]
global_store_dwordx2 v14, v[64:65], s[44:45] offset:{AOFF} sc1''')
    elif v4:
        A(f'''s_mov_b32 exec_lo, 0x00ff00ff
s_mov_b32 exec_hi, 0xff00ff00
ds_write_b128 v12, v[16:19]
ds_write_b128 v12, v[20:23] offset:256
s_mov_b64 exec, -1
{WK(4)}
s_waitcnt lgkmcnt(0)''')
        ST(5)
        A('s_barrier')
    else:
        part_write()
        A('s_mov_b64 exec, -1\ns_waitcnt lgkmcnt(0)')
        ST(5)
        A('s_barrier\ns_cmp_lg_u32 s28, 4\ns_cbranch_scc1 L_vend')
    if tailtest and not vlast: ttwait()
    if v4:
        A(f'''ds_read_b128 v[16:19], v13
{WK(5)}
s_waitcnt lgkmcnt(0)
v_permlane32_swap_b32 v16, v18
v_permlane32_swap_b32 v17, v19
v_pk_add_f32 v[16:17], v[16:17], v[18:19]
v_permlane16_swap_b32 v16, v17
v_add_f32 v16, v16, v17
v_add_f32_dpp v16, v16, v16 row_ror:8 {FULL}
s_mov_b64 exec, s[50:51]
v_bfi_b32 v17, v10, v8, v16
global_store_dword v14, v17, s[44:45] offset:{AOFF}
s_mov_b64 exec, s[52:53]
v_bfi_b32 v16, v10, v8, v16
global_store_dword v14, v16, s[44:45] offset:{AOFF} sc1''')
    elif not vlast:
        part_sum(512)
        A('v_bfi_b32 v16, v10, v8, v16')
        A(f's_mov_b64 exec, s[50:51]\nglobal_store_dwordx2 v14, v[16:17], s[44:45] offset:{AOFF}\ns_mov_b64 exec, s[52:53]')
        A(f'global_store_dwordx2 v14, v[16:17], s[44:45] offset:{AOFF} sc1')
    ST(6)
    A(('' if tailtest else 's_barrier\n') + 'L_vend:')
    if not tailtest: stouch()
    finish()
    A(f'L_exit:\ns_endpgm\nL_code_end:\n.fill (L_pc+{33*512}-L_code_end)/4, 4, 0xbf810000')
    A.raw(f'''.section .rodata,"a"
.p2align 6
.amdhsa_kernel {NAME}_kernel
  .amdhsa_next_free_vgpr 256
  .amdhsa_next_free_sgpr 102
  .amdhsa_accum_offset 256
  .amdhsa_group_segment_fixed_size 0
  .amdhsa_kernarg_size 96
  .amdhsa_user_sgpr_count 2
  .amdhsa_user_sgpr_kernarg_segment_ptr 1
  .amdhsa_system_sgpr_workgroup_id_x 1
  .amdhsa_float_denorm_mode_32 3
.end_amdhsa_kernel''')
    return A.text()

def STAMPS(al, roles, KW, VW):
    import numpy as np
    return [('start', al, KW + VW, 0), ('V at vwave', al, VW, 7), ('Q: x landed', al, VW, 1), ('Q: stored', al, [4], 2), ('V probed', al, VW, 8), ('probe/100 lo', np.arange(256) % 8 < 4, KW, 12), ('probe/100 hi', np.arange(256) % 8 >= 4, KW, 12), ('K issued', al, KW, 1), ('K go', al, KW, 2),
            ('K q gathered', al, KW, 3), ('K qk done', al, KW, 11), ('K ml lds', al, [0], 4), ('K ml gathered', al, KW, 5), ('K p written', al, KW, 6),
            ('V issued', al, VW, 3), ('V bar1', al, VW, 4), ('V pv done', al, VW, 5), ('A stored', al, VW, 6), ('K bar3', al, KW, 7),
            ('W wts landed', roles == 'W', KW, 10), ('F wts landed', roles == 'F', KW, 10),
            ('W gathered', roles == 'W', KW, 8), ('W end', roles == 'W', KW, 15), ('F gathered', roles == 'F', KW, 8), ('F gemv done', roles == 'F', KW, 9),
            ('F end', roles == 'F', KW, 15), ('R h seen', roles == 'R', [0], 9), ('R gathered', roles == 'R', [0], 8), ('R end', roles == 'R', [0], 15)]

if __name__ == '__main__':
    out = sys.argv[1] if len(sys.argv) > 1 else f'cdna_kernels/{NAME}.s'
    kw = eval('dict(' + (sys.argv[2] if len(sys.argv) > 2 else '') + ')')
    open(out, 'w').write(gen(**kw))
```

```python
import sys
from asmlib import Asm

NAME = 'sequential_preLN__sliding_block_cached__swiglu_ffn__decode'
WS_QA, WS_B, WS_PR, WS_ML, WS_X, WS_E, WS_C, WS_ST = 0x0, 0x40000, 0x60000, 0x70000, 0x72000, 0x73000, 0x80000, 0x100000
EPOCH_STEP = 0x5bd1e3c7
L_P, L_OP, L_SCR, L_H, L_RED, L_ML, L_Q, L_W = 0x0, 0x400, 0x1600, 0x1a00, 0x1e00, 0x2000, 0x2100, 0x2400
LDS_BYTES = L_W + 0x8000
SPIN = 0x40000
LOG2E = 0x3fb8aa3b
SCALE = 0x3db504f3
EPS = 0x3727c5ac
FULL = 'row_mask:0xf bank_mask:0xf'
nl = '\n'

def gen(diag=False, span=False, lite=False, amp=None, mlsleep=2, kvf='nt', kpre=3, twhen=(1, 1), tf='', wf='', thr=8, gow=4, qpos=24,
        dearly=True, thrv=None, notail=False, noml=False, noq=False, tailtest=0, psleep=0, nosr=0, afast=True, pages=True, pf=2, fdep=1, rdep=1, ftrig=False, pol=None, nprobe=2, psum=False, cfgy=True, guw=2, wsplit=2, dpos='post', wo0=False, trig=0, tlb=0, outf='', slowk=(), slowv=(), slowif='ge', fsplit=0, dtouch=2, frot=0, fpeel=False, bpre=False, apre=False, nox=False, qst='', xst='', xpos=12, wo1=1, late=4, fbar=(), xbar=True, guall=False, edge=False, repoll=False, gut=None, dbgp=False, rot=(0, 4, 1), v4=True, wqm=0, cpre=True, rslp=0, eend=False, vprio=0, rb=1, fmask=0, wmask=2, wb=0, slowall=False, share=True, wbs=0, dtrig=0, wox=False, gsplit=0, fresh=0, rep4=True, wslp=0, fslp=0, cslp=0, dppa=True, mstat=False, fine=False, early=True, fill=0, vfill=0, wk=(0, 0, 0, 0, 0, 0), wlast=True, vlast=True, fspin=0, gsr='F', sq=()):
    WK = lambda i: nl.join(['v_mov_b32 v1, v1'] * wk[i])
    if isinstance(rot, int): rotcode = f's_mul_i32 s33, s2, {rot:#x}\ns_lshr_b32 s33, s33, 26'
    elif rot == (0, 4, 1): rotcode = 's_lshl2_add_u32 s33, s31, s32'
    else: rotcode = f's_mul_i32 s33, s29, {rot[0]}\ns_mul_i32 s34, s31, {rot[1]}\ns_add_u32 s33, s33, s34\ns_mul_i32 s34, s32, {rot[2]}\ns_add_u32 s33, s33, s34'
    AOFF = 0 if share else 512
    if vlast: v4 = False
    assert v4 or vlast or not dppa
    wot = '''s_lshl_b32 s35, s29, 6
s_add_u32 s34, s34, s35
s_lshl_b32 s34, s34, 13
s_add_u32 s34, s34, 2048
v_and_b32 v127, 16, v0
v_add_u32 v127, v127, v0
v_lshl_add_u32 v127, v127, 7, s34''' if dppa and v4 else '''s_andn2_b32 s35, s34, 3
s_add_u32 s34, s34, s35
s_add_u32 s34, s34, 4
s_lshl_b32 s35, s29, 7
s_add_u32 s34, s34, s35
s_lshl_b32 s34, s34, 12
v_lshl_add_u32 v127, v0, 7, s34''' if dppa else '''s_andn2_b32 s35, s34, 7
s_add_u32 s34, s34, s35
s_add_u32 s34, s34, 8
s_lshl_b32 s35, s29, 7
s_add_u32 s34, s34, s35
s_lshl_b32 s34, s34, 12
v_lshl_add_u32 v127, v0, 7, s34'''
    frow = '''v_bfe_u32 v14, v0, 3, 1
v_lshl_add_u32 v14, v14, 3, v12
v_bfe_u32 v15, v0, 2, 1
v_lshl_add_u32 v14, v14, 1, v15
v_bfe_u32 v15, v0, 4, 1
v_lshl_add_u32 v14, v14, 1, v15
v_bfe_u32 v15, v0, 1, 1
v_lshl_add_u32 v14, v14, 1, v15'''
    wrow = '''v_bfe_u32 v15, v0, 3, 1
v_lshl_add_u32 v15, v32, 2, v15
v_lshl_add_u32 v15, v15, 1, v12
v_bfe_u32 v33, v0, 2, 1
v_lshl_add_u32 v15, v15, 1, v33
v_lshlrev_b32 v15, 2, v15''' if v4 else '''v_bfe_u32 v15, v0, 3, 1
v_lshl_add_u32 v15, v32, 4, v15
v_lshl_add_u32 v15, v15, 1, v12
v_bfe_u32 v33, v0, 2, 1
v_lshl_add_u32 v15, v15, 1, v33'''
    A = Asm()
    cold = []
    uid = [0]
    def lab(s):
        uid[0] += 1
        return f'L_{s}_{uid[0]}'
    def ST(n):
        if amp and n == amp[0]: A(f's_mem{"" if amp[2] == 0 else "real"}time s[98:99]')
        if amp and n == amp[1]: A(f's_mem{"" if amp[2] == 0 else "real"}time s[100:101]')
        if diag: A(f's_memrealtime s[96:97]\ns_waitcnt lgkmcnt(0)\nv_writelane_b32 v7, s96, {n}')
        if lite and n in (8, 10): A(f's_memrealtime s[{(90, 92)[n == 10]}:{(91, 93)[n == 10]}]')
    def FS(n):
        return f's_memtime s[{70+2*n}:{71+2*n}]' if fine == 1 else ''
    def F2(n):
        if fine == 2: A(f's_memrealtime s[{70+2*n}:{71+2*n}]')
    def flush_cold():
        for f in cold: f()
        cold.clear()
    def finish(last=False):
        if diag or lite or (span and last == span):
            A(f'''s_memrealtime s[96:97]
s_waitcnt lgkmcnt(0)
v_writelane_b32 v7, s96, 15
v_writelane_b32 v7, s98, 0
{nl.join(f'v_writelane_b32 v7, s{70+2*i}, {1+i}' for i in range(7)) if fine else ''}
{'v_writelane_b32 v7, s90, 8' + nl + 'v_writelane_b32 v7, s92, 10' if lite else ''}
s_mov_b64 exec, 0xffff
s_lshl_b32 s34, s2, 3
s_add_u32 s34, s34, s28
s_lshl_b32 s34, s34, 6
s_add_u32 s34, s34, {WS_ST}
v_lshl_add_u32 v1, v0, 2, s34
global_store_dword v1, v7, s[26:27]''')
        A('s_endpgm')
        flush_cold()
    def wred(op, v, t):
        for r in (8, 4, 2, 1): A(f'{op}_dpp v{v}, v{v}, v{v} row_ror:{r} {FULL}')
        for sw in (16, 32): A(f'v_mov_b32 v{t}, v{v}\nv_permlane{sw}_swap_b32 v{v}, v{t}\n{op} v{v}, v{v}, v{t}')
    def rnd(v):
        A(f'v_cvt_pk_bf16_f32 v{v}, v{v}, v{v}\nv_lshlrev_b32 v{v}, 16, v{v}')
    def layernorm(x, u, o):
        s, t, mb, dl = u + 8, u + 9, u + 10, u + 11
        for i in range(4): A(f'v_lshlrev_b32 v{u+2*i}, 16, v{x+i}\nv_and_b32 v{u+2*i+1}, 0xffff0000, v{x+i}')
        A(f'v_add_f32 v{s}, v{u}, v{u+1}\nv_add_f32 v{t}, v{u+2}, v{u+3}\nv_add_f32 v{mb}, v{u+4}, v{u+5}\nv_add_f32 v{dl}, v{u+6}, v{u+7}')
        A(f'v_add_f32 v{s}, v{s}, v{t}\nv_add_f32 v{mb}, v{mb}, v{dl}\nv_add_f32 v{s}, v{s}, v{mb}')
        wred('v_add_f32', s, t)
        A(f'v_mul_f32 v{dl}, 0x3b000000, v{s}')
        A(f'v_cvt_pk_bf16_f32 v{mb}, v{dl}, v{dl}\nv_lshlrev_b32 v{mb}, 16, v{mb}')
        for i in range(8): A(f'v_sub_f32 v{u+i}, v{u+i}, v{mb}')
        A(f'v_sub_f32 v{dl}, v{dl}, v{mb}')
        A(f'v_mul_f32 v{s}, v{u}, v{u}\nv_mul_f32 v{t}, v{u+1}, v{u+1}')
        for i in range(2, 8, 2): A(f'v_fmac_f32 v{s}, v{u+i}, v{u+i}\nv_fmac_f32 v{t}, v{u+i+1}, v{u+i+1}')
        A(f'v_add_f32 v{s}, v{s}, v{t}')
        fill = [f'v_cvt_pk_bf16_f32 v{o+i}, v{u+2*i}, v{u+2*i+1}' for i in range(4)]
        for i in range(4): fill += [f'v_lshlrev_b32 v{u+2*i}, 16, v{o+i}', f'v_and_b32 v{u+2*i+1}, 0xffff0000, v{o+i}']
        fill.append(f'v_mul_f32 v{dl}, v{dl}, v{dl}')
        for r in (8, 4, 2, 1):
            A(fill.pop(0)); A(fill.pop(0))
            A(f'v_add_f32_dpp v{s}, v{s}, v{s} row_ror:{r} {FULL}')
        for sw in (16, 32):
            A(f'v_mov_b32 v{t}, v{s}'); A(fill.pop(0)); A(fill.pop(0))
            A(f'v_permlane{sw}_swap_b32 v{s}, v{t}\nv_add_f32 v{s}, v{s}, v{t}')
        A(fill.pop(0))
        A(f'v_mul_f32 v{s}, 0x3b000000, v{s}\nv_sub_f32 v{s}, v{s}, v{dl}\nv_max_f32 v{s}, 0, v{s}')
        rnd(s)
        A(f'v_add_f32 v{s}, {EPS:#x}, v{s}'); rnd(s)
        A(f'v_sqrt_f32 v{s}, v{s}'); rnd(s)
        A(f'v_rcp_f32 v{s}, v{s}')
        for i in range(8): A(f'v_mul_f32 v{u+i}, v{u+i}, v{s}')
        for i in range(4): A(f'v_cvt_pk_bf16_f32 v{o+i}, v{u+2*i}, v{u+2*i+1}')
    def selectors(sel, t):
        A(f'''v_and_b32 v{t}, 1, v0
v_cmp_eq_u32 vcc, 1, v{t}
v_mov_b32 v{t+1}, 0x0c0c0100
v_mov_b32 v{t+2}, 0x01000c0c
v_cndmask_b32 v{t+1}, v{t+1}, v{t+2}, vcc
v_mov_b32 v{t+2}, 0x0c0c0302
v_mov_b32 v{t+3}, 0x03020c0c
v_cndmask_b32 v{t+2}, v{t+2}, v{t+3}, vcc
v_mov_b32 v{t+3}, 0x0c0c0c0c
v_bfe_u32 v{t}, v0, 1, 2''')
        for w in range(4):
            A(f'v_cmp_eq_u32 vcc, {w}, v{t}\nv_cndmask_b32 v{sel+w}, v{t+3}, v{t+1}, vcc\nv_cndmask_b32 v{sel+4+w}, v{t+3}, v{t+2}, vcc')
    def afrag(dst, src, par, sel):
        for w in range(4): A(f'v_perm_b32 v{dst+w}, v{src}, v{src}, v{sel+4*par+w}')
    def tagreg(dst, addr, bits):
        A(f'v_bfe_u32 v{dst}, v{addr}, 4, 1\nv_lshlrev_b32 v{dst}, {bits-1}, v{dst}\nv_xor_b32 v{dst}, s3, v{dst}\nv_and_b32 v{dst}, {(1 << bits) - 1}, v{dst}')
        if bits == 4: A(f'v_xor_b32 v{dst}, 4, v{dst}')
    def tagmask(dst, addr):
        A(f'v_and_b32 v{dst}, 15, v{addr}\nv_cmp_eq_u32 vcc, 0, v{dst}\nv_mov_b32 v{dst}, 0\nv_cndmask_b32 v{dst}, v{dst}, v11, vcc')
    def poll(loads, y, T, t, hook=None, slp=0, part=None):
        n = len(loads)
        L, Lc, Ld = lab('again'), lab('chk'), lab('ok')
        full = lambda i: part if (part and i == n - 1) else -1
        def issue():
            for i, l in enumerate(loads): A((f's_mov_b64 exec, s[{48+2*i}:{49+2*i}]\n' if n > 1 else '') + l[0])
            if n > 1: A('s_mov_b64 exec, -1')
        if n > 1:
            for i in range(n): A(f's_mov_b64 s[{48+2*i}:{49+2*i}], {full(i)}')
        A(f's_mov_b32 s62, {SPIN}')
        issue()
        if hook: hook(n)
        A(f's_branch {Lc}\n{L}:')
        if slp or psleep: A(f's_sleep {slp or psleep}')
        issue()
        if n > 1:
            for i in range(n):
                A(f'v_and_b32 v{t}, v11, v{y+i}\nv_cmp_ne_u32 vcc, 0, v{t}\ns_cmp_lg_u64 vcc, 0\ns_cselect_b64 s[{48+2*i}:{49+2*i}], {full(i)}, 0')
        A(f's_sub_u32 s62, s62, 1\ns_cbranch_scc1 {Ld}\n{Lc}:\ns_waitcnt vmcnt(0)')
        for i, l in enumerate(loads): A(f'v_xor_b32 v{y+i}, v{l[1]}, v{T}')
        if n == 1: A(f'v_and_b32 v{t}, v11, v{y}')
        else:
            A(f'v_or3_b32 v{t}, v{y}, v{y+1}, v{y+2}')
            for i in range(3, n - 1, 2): A(f'v_or3_b32 v{t}, v{t}, v{y+i}, v{y+i+1}')
            A(f'v_bitop3_b32 v{t}, v{t}, v{y+n-1}, v11 bitop3:0xa8')
        A(f'v_cmp_ne_u32 vcc, 0, v{t}\ns_cbranch_vccnz {L}\n{Ld}:')
    def gsum(x, y, n, d):
        src = lambda i, r: f'v{y+i}' if r == 0 else f'v{x+4*i+r}'
        for i in range(0, n, 2):
            dd = d + 2 * i
            A(f'v_pk_add_f32 v[{dd+2}:{dd+3}], v[{x+4*i+2}:{x+4*i+3}], v[{x+4*i+6}:{x+4*i+7}]')
            for r in range(2): A(f'v_add_f32 v{dd+r}, {src(i, r)}, {src(i+1, r)}')
        for i in range(2, n, 2):
            for r in (2, 0): A(f'v_pk_add_f32 v[{d+r}:{d+r+1}], v[{d+r}:{d+r+1}], v[{d+2*i+r}:{d+2*i+r+1}]')
        A(f'v_permlane32_swap_b32 v{d}, v{d+2}\nv_permlane32_swap_b32 v{d+1}, v{d+3}')
        A(f'v_pk_add_f32 v[{d}:{d+1}], v[{d}:{d+1}], v[{d+2}:{d+3}]')
    def deep(load, n, sets, y, T, t, d, hook=None, issued=False, masked=False, slp=0):
        x = sets[0]
        L, Lc, Lo = lab('again'), lab('chk'), lab('ok')
        A(f's_mov_b32 s62, {SPIN}')
        if issued: A(f's_branch {Lc}')
        A(f'{L}:')
        if slp: A(f's_sleep {slp}')
        load(x)
        if masked:
            for i in range(n):
                A(f'v_and_b32 v{t}, v11, v{y+i}\nv_cmp_ne_u32 vcc, 0, v{t}')
                if masked == 1: A(f's_cmp_lg_u64 vcc, 0\ns_cselect_b64 s[{48+2*i}:{49+2*i}], -1, 0')
                else: A(f's_cmp_lg_u32 vcc_lo, 0\ns_cselect_b32 s{48+2*i}, -1, 0\ns_cmp_lg_u32 vcc_hi, 0\ns_cselect_b32 s{49+2*i}, -1, 0')
        for i in range(fill): A('v_mov_b32 v1, v1')
        A(f's_sub_u32 s62, s62, 1\ns_cbranch_scc1 {Lo}\n{Lc}:')
        for i in range(n):
            if i % 2 == 0: A(f's_waitcnt vmcnt({n-2-i})')
            A(f'v_xor_b32 v{y+i}, v{x+4*i}, v{T}')
            if i % 2 == 1:
                dd = d + 2 * (i - 1)
                if i == 1: A(f'v_or_b32 v{t}, v{y}, v{y+1}')
                elif i < n - 1: A(f'v_or3_b32 v{t}, v{t}, v{y+i-1}, v{y+i}')
                else: A(f'v_or_b32 v{t}, v{t}, v{y+i-1}\nv_bitop3_b32 v{t}, v{t}, v{y+i}, v11 bitop3:0xa8\nv_cmp_ne_u32 vcc, 0, v{t}')
                A(f'v_pk_add_f32 v[{dd+2}:{dd+3}], v[{x+4*i-2}:{x+4*i-1}], v[{x+4*i+2}:{x+4*i+3}]')
                if i == n - 1: A(f's_cbranch_vccnz {L}\n{Lo}:')
                A(f'v_add_f32 v{dd}, v{y+i-1}, v{y+i}\nv_add_f32 v{dd+1}, v{x+4*i-3}, v{x+4*i+1}')
                if i > 1:
                    for r in (2, 0): A(f'v_pk_add_f32 v[{d+r}:{d+r+1}], v[{d+r}:{d+r+1}], v[{dd+r}:{dd+r+1}]')
        A(f'v_permlane32_swap_b32 v{d}, v{d+2}\nv_permlane32_swap_b32 v{d+1}, v{d+3}')
        A(f'v_pk_add_f32 v[{d}:{d+1}], v[{d}:{d+1}], v[{d+2}:{d+3}]')
    def page():
        if pages: A('.p2align 12')
    def sum8(g):
        for i in (0, 2, 8, 10): A(f'v_pk_add_f32 v[{g+i}:{g+i+1}], v[{g+i}:{g+i+1}], v[{g+i+4}:{g+i+5}]')
        for i in (0, 2): A(f'v_pk_add_f32 v[{g+i}:{g+i+1}], v[{g+i}:{g+i+1}], v[{g+i+8}:{g+i+9}]')
        A(f'v_permlane32_swap_b32 v{g}, v{g+2}\nv_permlane32_swap_b32 v{g+1}, v{g+3}')
        A(f'v_pk_add_f32 v[{g}:{g+1}], v[{g}:{g+1}], v[{g+2}:{g+3}]')
    def ldsspin(reads, test, slp=0):
        L, Ld = lab('spin'), lab('spun')
        A(f's_mov_b32 s62, {SPIN}\n{L}:')
        if slp: A(f's_sleep {slp}')
        A(f'{reads}\ns_waitcnt lgkmcnt(0)\n{test}\ns_cbranch_vccz {Ld}\ns_sub_u32 s62, s62, 1\ns_cbranch_scc0 {L}\n{Ld}:')
    def stream(hooks, th, extra_at=None, slow=()):
        if slow: A(f's_cmp_{slowif}_u32 s30, 16\ns_cselect_b64 vcc, -1, 0')
        for i in range(16):
            if i: A('s_addk_i32 s33, 0x2000\ns_bitset0_b32 s33, 17')
            if th and 2 * i >= th:
                ex = 1 if extra_at is not None and 2 * i - (th - 2) < extra_at <= 2 * i else 0
                A(f's_waitcnt vmcnt({th-2+ex})')
            if i in slow:
                Ls = lab('fast')
                A(f's_cbranch_vccz {Ls}\ns_waitcnt vmcnt({th-4})\n{Ls}:')
            for hf in range(2):
                A(f'buffer_load_dwordx4 v[{128+8*i+4*hf}:{131+8*i+4*hf}], v2, s[36:39], s33 offen offset:{128*hf} {kvf}')
                if 2 * i + hf + 1 in hooks: A(hooks[2 * i + hf + 1])

    hdr = open('cdna_kernels/' + NAME + '.s.ref').read().split('\n')
    for ln in hdr:
        if ln.startswith('; @launch'): A.raw(f'; @launch grid=(256,1,1) block=(512,1,1) lds={LDS_BYTES}'); break
        A.raw(ln)
    A.raw(f'.amdgcn_target "amdgcn-amd-amdhsa--gfx950"\n.text\n.globl {NAME}_kernel\n.p2align {12 if pages else 8}\n.p2align 8\n.type {NAME}_kernel,@function\n{NAME}_kernel:')

    if amp: ST(13)
    if span or diag: A('s_memrealtime s[98:99]')
    A(f'''s_load_dwordx16 s[4:19], s[0:1], 0
s_load_dwordx8 s[20:27], s[0:1], 64
s_getpc_b64 s[40:41]
L_pc:
v_lshrrev_b32 v1, 6, v0
s_lshr_b32 s30, s2, 3                ; index inside the head group
v_readfirstlane_b32 s28, v1
v_and_b32 v0, 63, v0
s_lshl3_add_u32 s43, s30, s28
s_lshl_b32 s43, s43, 6
{'s_load_dword s42, s[40:41], s43' if pf == 1 else ''}
{'s_lshl_b32 s42, s43, 1' + nl + 'v_mov_b32 v1, s42' + nl + 'global_load_dword v1, v1, s[40:41]' if pf == 3 else ''}
s_cmp_ge_u32 s2, 256
s_cbranch_scc1 L_exit
s_and_b32 s29, s2, 7
s_and_b32 s31, s30, 3
s_lshl2_add_u32 s31, s29, s31        ; head
s_lshr_b32 s32, s30, 2
v_lshrrev_b32 v3, 3, v0              ; lane >> 3
v_and_b32 v4, 7, v0
v_lshlrev_b32 v4, 4, v4              ; (lane & 7) * 16
v_lshl_add_u32 v2, v3, 8, v4
v_lshlrev_b32 v5, 4, v0              ; lane * 16
s_and_b32 s63, s28, 3
{rotcode}
s_add_u32 s33, s33, s63
s_and_b32 s33, s33, 63
s_lshl_b32 s33, s33, 11              ; first tile of this wave
s_lshl_b32 s34, s31, 6
s_add_u32 s34, s34, s32
s_add_u32 s34, s34, 56
s_lshl_b32 s34, s34, 17              ; byte offset of this chunk of the window
s_mov_b32 s38, 0x20000
s_mov_b32 s39, 0x20000''')
    if diag: A('v_mov_b32 v7, 0')
    A(f'''s_cmp_lt_u32 s28, 4
s_cbranch_scc1 L_kwave
s_setprio 3
s_lshl_b32 s35, s32, 5
s_add_u32 s35, s35, s63
s_lshl_b32 s35, s35, 6
s_add_u32 s35, s35, s31
s_lshl_b32 s35, s35, 8
v_lshl_add_u32 v6, v3, 16, v4
v_add_u32 v12, 0x2000, v6
{'s_lshl2_add_u32 s35, s2, s63' + nl + 's_lshl_b32 s35, s35, 12' + nl + 'v_mov_b32 v6, v2' + nl + 'v_add_u32 v12, 0x800, v6' if wqm == 1 else ''}
{'s_mov_b32 s35, 0' + nl + 'v_mov_b32 v6, v4' + nl + 'v_mov_b32 v12, v4' if wqm == 2 else ''}
v_subrev_u32 v13, 12, v0
v_ashrrev_i32 v13, 31, v13
v_lshlrev_b32 v14, 2, v0
ds_write_b32 v14, v13 offset:{L_ML}
s_waitcnt lgkmcnt(0)
global_load_dwordx4 v[24:27], v5, s[4:5]
{'s_load_dword s42, s[40:41], s43' if pf == 2 else ''}
s_load_dword s3, s[26:27], {WS_E:#x}
s_add_u32 s10, s10, s35
s_addc_u32 s11, s11, 0''')
    for n in range(2):
        for hf in range(2): A(f'global_load_dwordx4 v[{64+8*n+4*hf}:{67+8*n+4*hf}], v{(6, 12)[n]}, s[10:11] offset:{128*hf} nt')
    A('s_barrier\ns_branch L_vwave')

    A(f'''L_kwave:
s_setprio 2
s_waitcnt lgkmcnt(0)
s_add_u32 s36, s6, s34
s_addc_u32 s37, s7, 0''')
    qload = 'global_load_dwordx4 v[16:19], v6, s[44:45] sc1'
    stream({1: 's_load_dword s42, s[40:41], s43' if pf == 2 else '', kpre: f's_load_dword s3, s[26:27], {WS_E:#x}\ns_barrier' + ('\ns_memrealtime s[100:101]' if amp and amp[1] == 22 else ''), 10: 's_memrealtime s[100:101]' if amp and amp[1] == 23 else '',
            8: f'''s_lshl_b32 s34, s31, 6
s_add_u32 s34, s34, s28
s_lshl_b32 s34, s34, 7
s_add_u32 s44, s26, s34
s_addc_u32 s45, s27, 0
v_lshl_add_u32 v6, v3, 10, v4''',
            qpos: '' if noq else qload}, thr, extra_at=None if noq else qpos, slow=slowk)
    ST(1)
    A(f'''v_lshrrev_b32 v12, 5, v0             ; lane >> 5
v_and_b32 v13, 31, v0
v_lshlrev_b32 v13, 4, v13            ; (lane & 31) * 16
s_lshl_b32 s46, s28, 8
s_add_u32 s46, s46, {L_SCR}
s_lshl_b32 s34, s28, 6
v_lshrrev_b32 v14, 4, v0
v_lshlrev_b32 v14, 1, v14
v_lshrrev_b32 v15, 1, v4
v_add3_u32 v14, v14, v15, s34
v_mov_b32 v24, {L_ML}
v_mov_b32 v25, 1
s_lshl_b32 s34, s28, 2
v_mov_b32 v26, s34
s_waitcnt lgkmcnt(0)
s_add_u32 s3, s3, {EPOCH_STEP:#x}''')
    tagreg(8, 5, 4)
    A(f's_waitcnt vmcnt({min(gow, 32-qpos)})\nds_write_b32 v26, v25 offset:{L_ML+64}')
    ST(2)
    A(f's_mov_b32 s62, {SPIN}\nL_qchk:')
    for i in range(4): A(f'v_xor_b32 v{20+i}, v{16+i}, v8')
    A('v_or3_b32 v15, v20, v21, v22\nv_bitop3_b32 v15, v15, v23, 15 bitop3:0xa8\nv_cmp_ne_u32 vcc, 0, v15')
    A(('' if noq else 's_cbranch_vccnz L_qagain\n') + 'L_qok:')
    cold.append(lambda: A(f'L_qagain:\n{qload}\ns_sub_u32 s62, s62, 1\ns_waitcnt vmcnt(0)\ns_cbranch_scc0 L_qchk\ns_branch L_qok'))
    ST(3)
    A(f'''v_permlane32_swap_b32 v20, v22
v_permlane32_swap_b32 v21, v23
v_add_f32 v20, v20, v22
v_add_f32 v21, v21, v23
v_permlane16_swap_b32 v20, v21
v_add_f32 v20, v20, v21
v_add_f32_dpp v20, v20, v20 row_ror:8 {FULL}
v_cvt_pk_bf16_f32 v20, v20, v20
v_lshl_add_u32 v6, v12, 12, v13
ds_write_b16 v14, v20 offset:{L_Q}
s_mov_b64 exec, 1
s_waitcnt lgkmcnt(0)
ds_add_u32 v24, v25 offset:52
s_mov_b64 exec, -1''')
    ldsspin('ds_read_b32 v15, v24 offset:52', 'v_cmp_ne_u32 vcc, 4, v15')
    A(f'ds_read_b128 v[16:19], v4 offset:{L_Q}\nds_read_b128 v[20:23], v4 offset:{L_Q+128}\ns_waitcnt lgkmcnt(0)')
    for i0 in range(0, 16, 4):
        A(f's_waitcnt vmcnt({24-2*i0})')
        for e in range(8):
            for i in range(i0, i0 + 4):
                A(f'v_dot2_f32_bf16 v{32+i}, v{128+8*i+e}, v{16+e}, {"v%d" % (32+i) if e else 0}')
    for i in range(8):
        A(f'v_add_f32_dpp v{32+i}, v{32+i}, v{32+i} row_half_mirror row_mask:0xf bank_mask:0x5')
    for i in range(8):
        A(f'v_add_f32_dpp v{32+i}, v{40+i}, v{40+i} row_half_mirror row_mask:0xf bank_mask:0xa')
    A('s_mov_b32 vcc_lo, 0xcccccccc\ns_mov_b32 vcc_hi, 0xcccccccc')
    for i in range(4): A(f'v_cndmask_b32 v{40+i}, v{36+i}, v{32+i}, vcc\nv_cndmask_b32 v{32+i}, v{32+i}, v{36+i}, vcc')
    for i in range(4): A(f'v_add_f32_dpp v{32+i}, v{40+i}, v{32+i} quad_perm:[2,3,0,1] {FULL}')
    A('s_mov_b32 vcc_lo, 0xaaaaaaaa\ns_mov_b32 vcc_hi, 0xaaaaaaaa')
    for i in range(2): A(f'v_cndmask_b32 v{40+i}, v{34+i}, v{32+i}, vcc\nv_cndmask_b32 v{32+i}, v{32+i}, v{34+i}, vcc')
    for i in range(2): A(f'v_add_f32_dpp v{32+i}, v{40+i}, v{32+i} quad_perm:[1,0,3,2] {FULL}')
    r2 = 'v_cvt_pk_bf16_f32 v34, v32, v33\nv_lshlrev_b32 v32, 16, v34\nv_and_b32 v33, 0xffff0000, v34'
    if not nosr & 1: A(r2)
    A(f'v_mul_f32 v32, {SCALE:#x}, v32\nv_mul_f32 v33, {SCALE:#x}, v33')
    if not nosr & 2: A(r2)
    A('v_max_f32 v34, v32, v33')
    wred('v_max_f32', 34, 36)
    A(f'''v_sub_f32 v35, v32, v34
v_sub_f32 v36, v33, v34
v_mul_f32 v35, {LOG2E:#x}, v35
v_mul_f32 v36, {LOG2E:#x}, v36
v_exp_f32 v35, v35
v_exp_f32 v36, v36
v_add_f32 v35, v35, v36''')
    wred('v_add_f32', 35, 36)
    ST(11)
    A(f's_lshl_b32 s34, s29, 8\ns_add_u32 s34, s34, {WS_X}\nv_lshrrev_b32 v10, 2, v13\nv_add_u32 v10, s34, v10\n' + ('' if nox else 'global_load_dword v9, v10, s[26:27] sc1'))
    if noml: A('s_cmp_ge_u32 s30, 0\ns_cbranch_scc1 L_mlok')
    A(f'''v_min_u32 v34, -2, v34
v_min_u32 v35, -2, v35
v_lshl_add_u32 v37, v26, 1, v24
ds_write_b64 v37, v[34:35]
s_cmp_lg_u32 s28, 0
s_cbranch_scc1 L_mlwait''')
    ldsspin('ds_read_b128 v[40:43], v24\nds_read_b128 v[44:47], v24 offset:16',
            'v_max3_u32 v37, v40, v41, v42\nv_max3_u32 v37, v37, v43, v44\nv_max3_u32 v37, v37, v45, v46\nv_max_u32 v37, v37, v47\nv_cmp_eq_u32 vcc, -1, v37')
    ST(4)
    A(f'''s_lshl_b32 s35, s31, 8
s_add_u32 s35, s35, {WS_ML}
v_max3_f32 v48, v40, v42, v44
v_max_f32 v48, v48, v46''')
    for w in range(4): A(f'v_sub_f32 v{40+2*w}, v{40+2*w}, v48')
    for w in range(4): A(f'v_mul_f32 v{40+2*w}, {LOG2E:#x}, v{40+2*w}')
    for w in range(4): A(f'v_exp_f32 v{40+2*w}, v{40+2*w}')
    A('v_mov_b32 v49, s3\nv_mov_b32 v51, s3\nv_mul_f32 v50, v40, v41')
    for w in range(1, 4): A(f'v_fmac_f32 v50, v{40+2*w}, v{41+2*w}')
    A(f'''s_lshl4_add_u32 s34, s32, s35
v_mov_b32 v37, s34
s_mov_b64 exec, 1
global_store_dwordx4 v37, v[48:51], s[26:27] sc1
s_mov_b64 exec, -1''')
    L, Ld = lab('mg'), lab('mgd')
    A(f's_mov_b32 s62, {SPIN}\n{L}:\ns_sleep {mlsleep}\ns_load_dwordx16 s[64:79], s[26:27], s35 glc\ns_load_dwordx16 s[80:95], s[26:27], s35 offset:64 glc\ns_waitcnt lgkmcnt(0)')
    A('s_and_b32 s34, s65, s3\ns_or_b32 s47, s65, s3')
    for i in range(1, 16): A(f's_and_b32 s34, s34, s{65+2*i}\ns_or_b32 s47, s47, s{65+2*i}')
    A(f's_cmp_eq_u32 s34, s47\ns_cbranch_scc1 {Ld}\ns_sub_u32 s62, s62, 1\ns_cbranch_scc0 {L}\n{Ld}:')
    A('v_mov_b32 v34, s64')
    for c in range(1, 8): A(f'v_max_f32 v34, s{64+4*c}, v34')
    for c in range(8): A(f'v_sub_f32 v{40+c}, s{64+4*c}, v34')
    for c in range(8): A(f'v_mul_f32 v{40+c}, {LOG2E:#x}, v{40+c}')
    for c in range(8): A(f'v_exp_f32 v{40+c}, v{40+c}')
    A('v_mul_f32 v35, s66, v40')
    for c in range(1, 8): A(f'v_fmac_f32 v35, s{66+4*c}, v{40+c}')
    A(f'''v_rcp_f32 v35, v35
v_min_u32 v34, -2, v34
v_min_u32 v35, -2, v35
ds_write_b64 v24, v[34:35] offset:32
s_branch L_mlok
L_mlwait:''')
    ldsspin('ds_read_b64 v[34:35], v24 offset:32', 'v_max_u32 v37, v34, v35\nv_cmp_eq_u32 vcc, -1, v37', 1)
    A('L_mlok:')
    ST(5)
    A(f'''v_sub_f32 v32, v32, v34
v_sub_f32 v33, v33, v34
v_mul_f32 v32, {LOG2E:#x}, v32
v_mul_f32 v33, {LOG2E:#x}, v33
v_exp_f32 v32, v32
v_exp_f32 v33, v33
s_lshl_b32 s34, s28, 8
v_lshl_add_u32 v36, v0, 2, s34
v_mul_f32 v32, v32, v35
v_mul_f32 v33, v33, v35
v_cvt_pk_bf16_f32 v32, v32, v33
ds_write_b32 v36, v32 offset:{L_P}
''')
    if not cfgy: A(f'''s_cmp_lt_u32 s28, 2
s_cbranch_scc1 L_two
s_cmp_eq_u32 s28, 2
s_cselect_b32 s64, s16, s18
s_cselect_b32 s65, s17, s19
s_mov_b32 s66, {512*2752}
s_lshl_b32 s34, s30, 4
v_lshrrev_b32 v61, 2, v0
v_add_u32 v61, s34, v61
v_mul_u32_u24 v61, 2752, v61
v_and_b32 v62, 3, v0
v_lshlrev_b32 v62, 7, v62
v_min_u32 v62, 348, v62
s_mul_i32 s34, s29, 352
v_add3_u32 v61, v61, v62, s34
s_branch L_tj
L_two:
s_mov_b32 s64, s12
s_mov_b32 s65, s13
s_mov_b32 s66, {4096*1024}
s_lshl_b32 s34, s29, 5
s_add_u32 s34, s34, s30
s_lshl1_add_u32 s34, s34, s28
s_lshl_b32 s34, s34, 13
v_lshl_add_u32 v61, v0, 7, s34
L_tj:
s_mov_b32 s67, 0x20000''')
    if cfgy: A(f'''s_bitcmp1_b32 s28, 0
s_cselect_b32 s64, s18, s16
s_cselect_b32 s65, s19, s17
s_mov_b32 s66, {512*2752}
s_mov_b32 s67, 0x20000
s_and_b32 s34, s30, {31 if guall else 15}
s_lshr_b32 s35, s28, 1
s_lshl1_add_u32 s34, s34, s35
s_lshl_b32 s34, s34, {3 if guall else 4}
v_lshrrev_b32 v61, 2, v0
v_add_u32 v61, s34, v61
v_mul_u32_u24 v61, 2752, v61
v_and_b32 v62, 3, v0
v_lshlrev_b32 v62, 7, v62
v_min_u32 v62, 348, v62
s_mul_i32 s34, s29, 352
v_add3_u32 v61, v61, v62, s34''')
    def trigger(n):
        if True:
            L, Ld = lab('trig'), lab('trigd')
            A(f'''s_lshl_b32 s34, s29, 15
v_lshl_add_u32 v125, v13, 6, s34
s_mov_b32 s62, {SPIN}
{L}:
global_load_ubyte v126, v125, s[26:27] offset:{AOFF} sc1
s_and_b32 s34, s3, 0xff
s_waitcnt vmcnt(0)
v_cmp_eq_u32 vcc, s34, v126
s_bcnt1_i32_b32 s34, vcc_lo
s_cmp_ge_u32 s34, {n}
s_cbranch_scc1 {Ld}
s_sleep 2
s_sub_u32 s62, s62, 1
s_cbranch_scc0 {L}
{Ld}:''')
    def touch(when, role=None):
        if cfgy:
            if wox and when == 1 and role == 'x':
                A(f'''s_sub_u32 s34, s30, 27
s_lshl2_add_u32 s34, s34, s28
s_mul_i32 s34, s34, 52
v_add_u32 v127, s34, v0
v_min_u32 v127, 1023, v127
v_lshrrev_b32 v63, 7, v127
v_mul_u32_u24 v63, 384, v63
s_lshl_b32 s35, s29, 12
s_add_u32 s35, s35, 384
v_add3_u32 v127, v127, v63, s35
v_lshlrev_b32 v127, 7, v127
s_mov_b32 exec_hi, 0xfffff
global_load_dword v62, v127, s[12:13] {tf}
s_mov_b32 exec_hi, -1''')
            if when == wo1 and role != 'W':
                Ls = lab('nt')
                if role is None: A(f's_cmp_lt_u32 s30, 16\ns_cbranch_scc1 {Ls}')
                A(f'''s_and_b32 s34, s30, 15
s_lshl2_add_u32 s34, s34, s28
{wot}
s_mov_b32 exec_hi, 0
global_load_dword v62, v127, s[12:13] {tf}
s_mov_b32 exec_hi, -1
{Ls}:''')
            if gsplit and role is not None and role in gsr and when in (1, 2):
                m = (1 << gsplit) - 1
                m = m if when == 1 else ~m & (2**64 - 1)
                if m: A(f's_mov_b32 exec_lo, {m & 0xffffffff:#x}\ns_mov_b32 exec_hi, {m >> 32:#x}\nbuffer_load_dword v62, v61, s[64:67], 0 offen {tf}\ns_mov_b64 exec, -1')
            if when == 2 and edge and role == 'x':
                A(f'''s_mul_i32 s34, s29, 11
s_and_b32 s35, s34, 1
s_add_u32 s35, s35, 29
s_sub_u32 s48, s34, s30
s_add_u32 s48, s48, 26
s_sub_u32 s49, s30, s35
s_add_u32 s49, s49, s34
s_add_u32 s49, s49, 11
s_add_u32 s50, s34, 10
s_cmp_lt_u32 s30, s35
s_cselect_b32 s48, s48, s49
s_cselect_b32 s50, s34, s50
s_and_b32 s35, s48, 3
s_lshl2_add_u32 s35, s28, s35
s_lshl_b32 s35, s35, 5
v_and_b32 v63, 31, v0
v_add_u32 v63, s35, v63
v_mul_u32_u24 v63, 2752, v63
s_lshl_b32 s48, s48, 5
s_lshl_b32 s50, s50, 5
v_add_u32 v127, s48, v63
v_add_u32 v63, s50, v63
v_xor_b32 v127, v127, v63
v_min_u32 v63, {512*2752-4}, v63
v_cmp_gt_u32 vcc, 0x80, v127
s_mov_b32 exec_hi, 0
s_mov_b32 exec_lo, vcc_lo
global_load_dword v62, v63, s[16:17] {tf}
global_load_dword v62, v63, s[18:19] {tf}
s_mov_b64 exec, -1''')
            if guall and (when == guw if gut is None else (role is not None and when == gut['WFx'.index(role)])):
                A(f's_mov_b32 exec_hi, 0\nbuffer_load_dword v62, v61, s[64:67], 0 offen {tf}\ns_mov_b32 exec_hi, -1')
            elif not guall and when == guw and role != 'W' and not (gsplit and role in gsr):
                Ls = lab('nt')
                if role is None: A(f's_cmp_lt_u32 s30, 16\ns_cbranch_scc1 {Ls}')
                A(f'buffer_load_dword v62, v61, s[64:67], 0 offen {tf}\n{Ls}:')
            if when == dtouch and role == 'x':
                if fine == 2: A('s_waitcnt vmcnt(1)'); F2(1); A('s_waitcnt vmcnt(0)'); F2(2)
                if xbar and when == 2 and not tailtest: A('s_barrier')
                if dtrig: trigger(dtrig)
                A(f'''s_sub_u32 s34, s30, 27
s_lshl2_add_u32 s34, s34, s28
s_mul_i32 s34, s34, {71*128}
s_mul_i32 s35, s29, {176*1024}
s_add_u32 s34, s34, s35
v_lshl_add_u32 v63, v0, 7, s34
v_min_u32 v63, {1376*1024-4}, v63
global_load_dword v62, v63, s[20:21]
v_add_u32 v63, 0x2000, v63
v_min_u32 v63, {1376*1024-4}, v63
s_mov_b64 exec, 0x7f
global_load_dword v62, v63, s[20:21]
s_mov_b64 exec, -1''')
                if fine == 2: F2(3); A('s_waitcnt vmcnt(0)'); F2(4)
            return
        lo, hi = twhen[0] == when, twhen[1] == when
        if not (lo or hi): return
        Ls = lab('nt')
        if not (lo and hi): A(f's_cmp_lt_u32 s28, 2\ns_cbranch_scc{0 if lo else 1} {Ls}')
        A(f'buffer_load_dword v62, v61, s[64:67], 0 offen {tf}\n{Ls}:')
    ST(6)
    A(f'''s_getreg_b32 s34, hwreg(HW_REG_XCC_ID, 0, 4)
s_andn2_b32 s35, s3, 31
s_or_b32 s34, s34, s35
s_or_b32 s35, s34, 16
s_waitcnt vmcnt(0)
v_cmp_eq_u32 s[48:49], s34, v9
v_cmp_eq_u32 s[50:51], s35, v9
s_bcnt1_i32_b32 s48, s48
s_bcnt1_i32_b32 s50, s50
s_cmp_gt_u32 s50, s48
s_cselect_b32 s34, 0x2000, 0
v_mov_b32 v10, s34
''')
    if diag: A('s_sub_u32 s34, s50, s48\ns_add_u32 s34, s34, s98\nv_writelane_b32 v7, s34, 12')
    touch(0)
    if wo0: A(f'''s_lshl_b32 s34, s29, 5
s_add_u32 s34, s34, s30
s_lshl2_add_u32 s34, s34, s28
s_lshl_b32 s34, s34, 12
v_lshl_add_u32 v63, v0, 7, s34
s_mov_b32 exec_hi, 0
global_load_dword v62, v63, s[12:13] {tf}
s_mov_b32 exec_hi, -1''')
    tagreg(8, 5, 8)
    A(f'''v_mov_b32 v11, 0xff
s_lshl_b32 s47, s28, 13
s_add_u32 s47, s47, {L_W}            ; this wave's weight staging area
s_waitcnt lgkmcnt(0)''')
    if pol is not None: A(f's_lshr_b32 s34, s29, 2\ns_xor_b32 s34, s34, {pol}\ns_lshl_b32 s34, s34, 13\nv_mov_b32 v10, s34')
    if notail: A('s_cmp_ge_u32 s30, 0\ns_cbranch_scc1 L_norole')
    A('s_cmp_ge_u32 s30, 16\ns_cbranch_scc1 L_notw')
    def bars(early=None, role='x'):
        A('s_barrier')
        if amp: ST(20)
        if role == 'W': early()
        touch(1, role)
        if early and role != 'W': early()
        A('s_barrier' if vlast else 's_barrier\ns_barrier')
        F2(0)
        if amp: ST(21)
        if trig and role != 'W': trigger(trig)
        touch(2, role)
        ST(7)

    A(f'''s_lshl2_add_u32 s34, s29, s28
s_lshl_b32 s35, s34, 13
s_add_u32 s35, s35, {AOFF}
s_add_u32 s44, s26, s35
s_addc_u32 s45, s27, 0
s_lshl_b32 s34, s34, 17
s_lshl_b32 s35, s30, 6
s_add_u32 s34, s34, s35
s_add_u32 s40, s12, s34
s_addc_u32 s41, s13, 0
s_mov_b32 s42, {127*1024+64}
s_mov_b32 s43, 0x20000
v_lshrrev_b32 v14, 4, v0             ; g
v_bfe_u32 v15, v0, 2, 2
{'v_lshl_add_u32 v15, v15, 2, v14' if v4 else 'v_lshl_add_u32 v15, v14, 3, v15'}
v_and_b32 v32, 1, v14
{wrow if dppa else ''}
v_lshlrev_b32 v33, 1, v32
v_and_b32 v34, 3, v0
v_xor_b32 v33, v33, v34
v_lshlrev_b32 v33, 4, v33
v_lshl_add_u32 v15, v15, 10, v33
v_lshrrev_b32 v33, 2, v0
v_lshlrev_b32 v33, 6, v33
v_lshl_add_u32 v33, v34, 3, v33
v_lshl_add_u32 v33, v32, 5, v33
v_add_u32 v33, s47, v33
v_xor_b32 v34, 32, v33
v_lshrrev_b32 v35, 1, v13
v_lshl_add_u32 v35, v12, 2, v35
v_add_u32 v35, s46, v35
v_lshl_add_u32 v36, v14, 4, s46
s_lshl_b32 s34, s28, 2
s_add_u32 s34, s34, {L_RED}
v_add_u32 v37, s34, v13
s_and_b32 s34, s29, 4
s_add_u32 s34, s34, s29
s_lshl4_add_u32 s34, s34, s30
s_lshl_b32 s34, s34, 7
s_mul_i32 s35, s28, {0 if wlast else 32768}
s_add_u32 s34, s34, s35
s_add_u32 s34, s34, {WS_B}
s_add_u32 s56, s26, 0x8000
s_addc_u32 s57, s27, 0
s_add_u32 s58, s26, 0x10000
s_addc_u32 s59, s27, 0
s_add_u32 s68, s26, 0x18000
s_addc_u32 s69, s27, 0
v_lshrrev_b32 v38, 2, v13
v_lshl_add_u32 v38, v12, 13, v38
v_add_u32 v38, s34, v38''')
    if fresh:
        A(f'''v_and_b32 v50, 7, v0
v_and_b32 v51, 4, v50
v_add_u32 v50, v50, v51
v_lshl_add_u32 v50, v50, 11, v10
s_lshl_b32 s34, s30, 7
s_add_u32 s34, s34, {WS_B}
v_add_u32 v50, s34, v50              ; this slice's B line of every group''')
        tagreg(51, 50, 8)
    tagreg(9, 38, 8)
    tagmask(10, 38)
    if tlb & 1: A('s_mov_b64 exec, 1\nbuffer_load_dword v62, v15, s[40:43], 0 offen\ns_mov_b64 exec, -1')
    A('s_and_b32 s60, s30, 1\n' + f's_lshl_b32 s61, s60, {15 if dppa else 16}' + '\ns_lshl_b32 s60, s60, 12')
    def wl(a, b):
        for n in range(a, b):
            A(f's_xor_b32 s34, s60, {1024*n}\ns_add_u32 m0, s47, s34\ns_xor_b32 s34, s61, {((32*(n>>2)+(n&3) if v4 else 8*n) if dppa else 32*(n>>1)+(16 if v4 else 4)*(n&1))*1024}')
            A(f'buffer_load_dwordx4 v15, s[40:43], s34 offen {wf} lds')
    if apre:
        A('s_mov_b32 exec_lo, 0x01010101\ns_mov_b32 exec_hi, 0x01010101\ns_and_b32 s34, s30, 3\ns_lshl_b32 s34, s34, 10\nv_add_u32 v63, s34, v6\nglobal_load_dword v62, v63, s[44:45] sc1\ns_mov_b64 exec, -1')
    ws_ = wsplit if cfgy else 0
    bars(lambda: wl(0, ws_), 'W')
    wl(ws_, 8)
    touch(3, 'W')
    def whook(n):
        A(f's_waitcnt vmcnt({n})')
        ST(10)
        for t in range(4):
            for cb in range(2):
                for hf in range(2):
                    r = 128 + 8 * t + 4 * cb + 2 * hf
                    A(f'ds_read_b64_tr_b16 v[{r}:{r+1}], v{33+cb} offset:{1024*(2*t+hf)}')
    def aload(x):
        for n in range(4): A(f's_mov_b64 exec, s[{48+2*n}:{49+2*n}]\nglobal_load_dwordx4 v[{x+4*n}:{x+4*n+3}], v6, s[44:45] offset:{1024*n} sc1')
        A('s_mov_b64 exec, -1')
    for n in range(4): A(f's_mov_b64 s[{48+2*n}:{49+2*n}], -1')
    aload(96); whook(4)
    deep(aload, 4, [96], 120, 8, 39, 16, issued=True, masked=wmask, slp=wslp)
    ST(8)
    def bcast(src, dst, bank):
        return [f'v_mov_b32_dpp v{dst+i}, v{src} row_newbcast:{i} row_mask:0xf bank_mask:{bank:#x}' for i in range(16)]
    A(FS(0))
    A('v_cvt_pk_bf16_f32 v16, v16, v17')
    if dppa:
        mv = bcast(16, 64, 0xf)
        A('s_waitcnt lgkmcnt(0)')
        for o in mv[:6]: A(o)
        mv = mv[6:]
    else:
        A('ds_write_b32 v35, v16')
        for t in range(4): A(f'ds_read_b128 v[{64+4*t}:{67+4*t}], v36 offset:{64*t}')
    for t in range(4):
        if not dppa: A(f's_waitcnt lgkmcnt({3-t})')
        for cb in range(2):
            c = f'v[{40+4*cb}:{43+4*cb}]'
            A(f'v_mfma_f32_16x16x32_bf16 {c}, v[{64+4*t}:{67+4*t}], v[{128+8*t+4*cb}:{131+8*t+4*cb}], {c if t else 0}')
            if dppa:
                for o in mv[:2]: A(o)
                mv = mv[2:]
    if wlast:
        A(f'''{FS(1)}
s_mov_b64 exec, 0xffff
ds_write2_b32 v37, v40, v44 offset0:0 offset1:64
ds_write_b32 v26, v11 offset:{L_ML+96}
s_mov_b64 exec, -1
ds_read_b128 v[20:23], v24 offset:96
ds_read_b128 v[16:19], v13 offset:{L_RED}
s_waitcnt lgkmcnt(1)
{FS(2)}
v_min3_u32 v20, v20, v21, v22
v_min_u32 v20, v20, v23
v_cmp_ne_u32 vcc, 0, v20
s_waitcnt lgkmcnt(0)
v_pk_add_f32 v[16:17], v[16:17], v[18:19]
s_mov_b64 exec, vcc
v_add_f32 v16, v16, v17
v_bfi_b32 v16, v10, v9, v16
{FS(3)}
global_store_dword v38, v16, s[26:27] sc1
global_store_dword v38, v16, s[56:57] sc1
global_store_dword v38, v16, s[58:59] sc1
global_store_dword v38, v16, s[68:69] sc1
{FS(4)}''')
    else:
        A(f'''{FS(1)}
s_mov_b64 exec, 0xffff
s_cmp_lg_u32 s28, 0
ds_write2_b32 v37, v40, v44 offset0:0 offset1:64
s_mov_b64 exec, -1
{WK(2)}
s_waitcnt lgkmcnt(0)
{FS(2)}
s_barrier
{FS(3)}
{'' if rep4 else 's_cbranch_scc1 ' + ('L_wfresh' if fresh else 'L_wend')}
ds_read_b128 v[16:19], v13 offset:{L_RED}
{WK(3)}
s_waitcnt lgkmcnt(0)
{FS(4)}
v_pk_add_f32 v[16:17], v[16:17], v[18:19]
v_add_f32 v16, v16, v17
v_bfi_b32 v16, v10, v9, v16''')
        A('global_store_dword v38, v16, s[26:27] sc1')
    A(FS(5)); A(FS(6))
    if wb == 1: A('s_cmp_lg_u32 s30, 0\ns_cbranch_scc1 L_wend\nbuffer_wbl2 sc1\ns_waitcnt vmcnt(0)')
    A('L_wend:')
    def wfresh():
        A(f'L_wfresh:\ns_cmp_gt_u32 s28, {fresh}\ns_cbranch_scc1 L_wend\ns_mov_b64 exec, 0xff')
        poll([('global_load_dword v52, v50, s[26:27] sc1', 52)], 53, 51, 54)
        A('s_branch L_wend')
    if fresh: cold.append(wfresh)
    finish()

    A(f'''L_notw:
s_cmp_lt_u32 s30, 27
s_cbranch_scc1 L_rolef
s_cmp_lt_u32 s30, 28
s_cbranch_scc1 L_norole
s_cmp_lg_u32 s28, 0
s_cbranch_scc1 L_norole
s_lshl2_add_u32 s63, s29, s30
s_sub_u32 s63, s63, 28               ; reducer index
s_lshl_b32 s34, s63, 6
s_add_u32 s34, s34, {WS_C}
v_lshrrev_b32 v14, 2, v0
v_and_b32 v15, 12, v14
v_add_u32 v14, v14, v15
v_and_b32 v15, 3, v0
v_lshl_add_u32 v44, v14, 11, v10
v_lshl_add_u32 v44, v15, 4, v44
v_add_u32 v44, s34, v44''')
    for n in range(1, 6): A(f'v_add_u32 v{44+n}, {65536*n}, v44')
    A(f'''s_lshr_b32 s34, s63, 3
s_lshl_b32 s34, s34, 7
s_and_b32 s35, s63, 3
s_lshl_b32 s35, s35, 5
s_add_u32 s34, s34, s35
s_and_b32 s35, s63, 4
s_add_u32 s34, s34, s35
v_lshrrev_b32 v14, 4, v0
v_lshl_add_u32 v14, v15, 3, v14
v_add_u32 v14, s34, v14
v_lshlrev_b32 v51, 1, v14
global_load_ushort v43, v51, s[4:5]
s_lshl_b32 s34, s34, 2
s_and_b32 s35, s29, {3 if rep4 else 0}
s_lshl_b32 s35, s35, 15
s_add_u32 s34, s34, s35
s_add_u32 s34, s34, {WS_B}
v_bfe_u32 v50, v0, 2, 3
v_and_b32 v14, 4, v50
v_add_u32 v50, v50, v14
v_lshl_add_u32 v50, v50, 11, v10
v_lshl_add_u32 v50, v15, 5, v50
v_add_u32 v50, s34, v50
v_mov_b32 v52, {WS_E}
v_mov_b32 v53, s3''')
    tagreg(9, 50, 8)
    if tlb & 4: A('s_mov_b64 exec, 1\nglobal_load_ushort v62, v51, s[22:23]\ns_mov_b64 exec, -1')
    for x in (96, 128, 152, 176)[:max(rdep, 1)]: A(f'v_mov_b32 v{x+20}, v8\nv_mov_b32 v{x+21}, 0\nv_mov_b32 v{x+22}, 0\nv_mov_b32 v{x+23}, 0')
    bars()
    lds = [(f'global_load_dwordx4 v[{96+4*n}:{99+4*n}], v{44+n}, s[26:27] sc1', 96 + 4 * n) for n in range(6)]
    if cpre:
        for l in lds[:5]: A(l[0])
        A(f's_mov_b64 exec, 0xffffff\n{lds[5][0]}\ns_mov_b64 exec, -1')
    A('v_mov_b32 v36, v9\nv_mov_b32 v37, 0\nv_mov_b32 v38, 0\nv_mov_b32 v39, 0')
    poll([('s_mov_b32 exec_hi, 0\nglobal_load_dwordx4 v[36:39], v50, s[26:27] sc1\ns_mov_b32 exec_hi, -1', 36)], 40, 9, 42, slp=rb)
    ST(9)
    est = '''s_cmp_eq_u32 s63, 0
s_cselect_b32 exec_lo, 1, 0
s_mov_b32 exec_hi, 0
global_store_dword v52, v53, s[26:27] sc1
s_mov_b64 exec, -1'''
    if not eend: A(est)
    A(f'''v_permlane32_swap_b32 v40, v38
v_permlane32_swap_b32 v37, v39
v_permlane16_swap_b32 v40, v37
v_add_f32 v40, v40, v37
v_lshlrev_b32 v43, 16, v43
v_add_f32_dpp v40, v40, v40 row_ror:8 {FULL}
v_add_f32_dpp v40, v40, v40 row_ror:4 {FULL}
v_add_f32 v40, v40, v43''')
    rnd(40)
    if rslp: A(f's_sleep {rslp}')
    if rdep:
        def rload(x):
            for n in range(6): A(('s_mov_b64 exec, 0xffffff\n' if n == 5 else '') + f'global_load_dwordx4 v[{x+4*n}:{x+4*n+3}], v{44+n}, s[26:27] sc1')
            A('s_mov_b64 exec, -1')
        deep(rload, 6, [96, 128, 152, 176][:rdep], 120, 8, 42, 16, slp=cslp)
        ST(8)
    else:
        poll(lds, 120, 8, 42, part=0xffffff)
        ST(8)
        gsum(96, 120, 6, 16)
    A(f'''v_permlane16_swap_b32 v16, v17
v_add_f32 v16, v16, v17
v_add_f32_dpp v16, v16, v16 row_ror:8 {FULL}
v_add_f32_dpp v16, v16, v16 row_ror:4 {FULL}''')
    A(f'''v_add_f32 v16, v16, v40
v_cvt_pk_bf16_f32 v16, v16, v16
s_mov_b32 exec_lo, 0x000f000f
s_mov_b32 exec_hi, 0x000f000f
global_store_short v51, v16, s[22:23] {outf}
''')
    if eend: A(est)
    if dbgp:
        A('s_mov_b64 exec, 1\nv_mov_b32 v20, 0')
        for i, r in enumerate((26, 27, 6, 7, 8, 9, 12, 16, 18, 20, 22, 24, 4, 10)): A(f'v_mov_b32 v21, s{r}\nglobal_store_dword v20, v21, s[24:25] offset:{4*i}')
        A('global_store_dword v20, v10, s[24:25] offset:56')
    A('L_rend:')
    if amp:
        ST(14)
        A(f'''s_memrealtime s[96:97]
s_waitcnt lgkmcnt(0)
s_sub_u32 s98, s100, s98
{f's_mul_i32 s98, s98, {amp[2]}' if amp[2] else 's_lshr_b32 s98, s98, 1'}
{f's_mov_b32 s98, {amp[4]}' if len(amp) > 4 else ''}
s_cmp_lg_u32 s29, {amp[3] if amp[3] >= 0 else 's29'}
s_cbranch_scc1 L_ampd
L_amp:
s_memrealtime s[100:101]
s_waitcnt lgkmcnt(0)
s_sub_u32 s100, s100, s96
s_cmp_lt_u32 s100, s98
s_cbranch_scc1 L_amp
L_ampd:''')
    finish(True)
    A('L_norole:')
    if ((guw == 2 or dtouch == 2 or edge) if cfgy else 2 in twhen): bars()
    else:
        A('s_barrier'); touch(1, 'x')
    if wb == 2:
        A(f'''s_cmp_lg_u32 s30, 27
s_cbranch_scc1 L_nowb
s_cmp_lg_u32 s28, 0
s_cbranch_scc1 L_nowb
v_and_b32 v50, 7, v0
v_and_b32 v14, 4, v50
v_add_u32 v50, v50, v14
v_lshl_add_u32 v50, v50, 11, v10
v_add_u32 v50, {WS_B}, v50''')
        tagreg(9, 50, 8)
        poll([('global_load_dword v36, v50, s[26:27] sc1', 36)], 40, 9, 42, slp=2)
        if wbs: A(f's_sleep {wbs}')
        A('buffer_wbl2 sc1\ns_waitcnt vmcnt(0)\nL_nowb:')
    finish(2)

    page()
    A(f'''L_rolef:
s_mul_i32 s63, s29, 11
s_add_u32 s63, s63, s30
s_sub_u32 s63, s63, 16
s_cmp_ge_u32 s63, 86
s_cbranch_scc1 L_norole
s_mul_i32 s34, s28, {128*2752}
s_lshl_b32 s35, s63, 5
s_add_u32 s34, s34, s35
s_add_u32 s36, s16, s34
s_addc_u32 s37, s17, 0
s_mov_b32 s38, {127*2752+32}
s_mov_b32 s39, 0x20000
s_add_u32 s40, s18, s34
s_addc_u32 s41, s19, 0
s_mov_b32 s42, {127*2752+32}
s_mov_b32 s43, 0x20000
s_lshl_b32 s34, s63, 14
s_lshl_b32 s35, s28, 8
s_add_u32 s34, s34, s35
s_add_u32 s20, s20, s34
s_addc_u32 s21, s21, 0
s_add_u32 s4, s4, s35
s_addc_u32 s5, s5, 0
s_lshl_b32 s35, s28, 9
s_and_b32 s34, s29, {3 if rep4 else 0}
s_lshl_b32 s34, s34, 15
s_add_u32 s34, s34, s35
s_add_u32 s34, s34, {WS_B+4096}
s_add_u32 s44, s26, s34
s_addc_u32 s45, s27, 0
v_lshl_add_u32 v6, v12, 14, v13
v_add_u32 v6, v6, v10
v_bfe_u32 v14, v0, 3, 2
v_lshlrev_b32 v14, 3, v14
v_lshl_add_u32 v14, v12, 2, v14
v_bfe_u32 v15, v0, 1, 2
v_add_u32 v14, v14, v15
{frow if dppa else ''}
v_mul_u32_u24 v14, 2752, v14
v_and_b32 v15, 1, v0
v_lshl_add_u32 v15, v15, 4, v14
v_lshl_add_u32 v33, v0, 3, s47
v_lshrrev_b32 v36, 1, v13
v_lshl_add_u32 v36, v12, 2, v36      ; byte offset of this lane's bf16 pair inside 128 columns
v_add_u32 v37, s46, v36
v_and_b32 v38, 15, v0
v_lshrrev_b32 v14, 4, v0
v_lshlrev_b32 v34, 4, v38
v_lshl_add_u32 v34, v14, 10, v34
v_add_u32 v34, 0x1000, v34
v_add_u32 v35, 0x2000, v34
v_lshl_add_u32 v56, v14, 4, s46
v_mov_b32 v57, {L_RED+256}
v_cmp_eq_u32 vcc, 1, v38
v_cndmask_b32 v56, v56, v57, vcc
s_lshl_b32 s34, s28, 2
v_lshl_add_u32 v60, v12, 4, s34
s_lshl_b32 s34, s28, 3
s_add_u32 s34, s34, {L_OP}
v_mul_u32_u24 v57, 80, v38
v_add_u32 v57, s34, v57
{'v_lshl_add_u32 v57, v14, 2, v57' if dppa else ''}
{'s_lshl_b32 s34, s28, 2' + nl + 'v_xor_b32 v60, 1, v14' + nl + 'v_lshl_add_u32 v60, v60, 4, s34' if mstat else ''}
v_and_b32 v58, 12, v0
v_add_u32 v58, v58, v14
v_mul_u32_u24 v58, 80, v58
s_andn2_b32 s34, s63, 3
s_add_u32 s34, s34, s63
s_lshl2_add_u32 s34, s34, s28
s_lshl_b32 s34, s34, 9
s_add_u32 s34, s34, {WS_C}
v_lshl_add_u32 v59, v12, 13, v13
v_add_u32 v59, s34, v59
v_mov_b32 v44, 0x3f803f80
v_lshlrev_b32 v45, 2, v0
ds_write_b32 v45, v44 offset:{L_RED+256}
v_mov_b32 v63, {L_RED}
v_mov_b32 v46, {EPS:#x}
v_and_b32 v40, 1, v0
v_lshlrev_b32 v40, 4, v40
v_mov_b32 v41, 0xffff
v_lshlrev_b32 v40, v40, v41
v_bfe_u32 v41, v0, 1, 2
s_mov_b32 s60, 1
s_mov_b32 s61, 1''')
    if dppa:
        for i in range(16): A(f'v_mov_b32 v{72+i}, v44')
    if mstat: A('s_mov_b32 s60, 0x10001\ns_mov_b32 s61, 0')
    if early: A('s_lshl_b32 s34, s28, 3\nv_lshl_add_u32 v60, v12, 2, s34\nv_and_b32 v42, 3, v0\nv_lshl_add_u32 v58, v42, 4, v58')
    for w in range(4): A(f'v_cmp_eq_u32 vcc, {w}, v41\nv_cndmask_b32 v{48+w}, 0, v40, vcc')
    if tlb & 2: A('s_mov_b64 exec, 1\nbuffer_load_dword v62, v15, s[36:39], 0 offen\nbuffer_load_dword v62, v15, s[40:43], 0 offen\nglobal_load_dword v62, v34, s[20:21]\ns_mov_b64 exec, -1')
    def dloads():
        for n in range(4): A(f'global_load_dwordx4 v[{160+4*n}:{163+4*n}], v{34+(n>>1)}, s[20:21] offset:{4096*(n&1)-4096} {"" if dtouch else "nt"}')
    dp = dpos if cfgy else ('bar1' if dearly else 'first')
    A(f's_and_b32 s68, s63, {frot}\ns_lshl_b32 s34, s68, 6\nv_xor_b32 v37, s34, v37')
    def fl(a, b):
        for jm in range(a, b):
            j, m = jm >> 1, jm & 1
            if jm in fbar and jm >= fsplit: A('s_barrier')
            A(f's_xor_b32 s34, s68, {j}\ns_mul_i32 s34, s34, {(16 if dppa else 32)*2752}\ns_add_u32 m0, s47, {4096*m+1024*j}')
            A(f'buffer_load_dwordx4 v15, s[{36+4*m}:{39+4*m}], s34 offen {wf} lds')
    A('global_load_dword v32, v36, s[4:5]')
    if bpre:
        A('s_sub_u32 s34, s30, 16\ns_lshl_b32 s34, s34, 1\ns_mov_b64 exec, 0x01010101\ns_mov_b32 exec_hi, 0x01010101')
        A('s_and_b32 s34, s30, 3\ns_lshl_b32 s34, s34, 11\nv_add_u32 v9, s34, v6\nglobal_load_dword v62, v9, s[44:45] offset:-4096 sc1\ns_mov_b64 exec, -1')
    if dp == 'mid': dloads()
    def fearly():
        if dp == 'bar1': dloads()
        fl(0, fsplit)
    bars(fearly, 'F')
    if dp == 'first': dloads()
    fl(fsplit, 8)
    F2(1)
    if fine == 2: A('s_waitcnt vmcnt(8)')
    F2(2)
    if dp == 'last': dloads()
    def fhook(n, inner=None):
        n += 4 if dp == 'last' else 0
        for t in range(4):
            A(f's_waitcnt vmcnt({n + 6 - 2 * t})')
            F2(3 + t)
            if inner and t == late - 1: n += inner()
            if t == 3:
                ST(10)
                if inner and repoll and late < 4: fload(96)
            for m in range(2):
                for hf in range(2):
                    r = 128 + 16 * m + 4 * t + 2 * hf
                    A(f'ds_read_b64_tr_b16 v[{r}:{r+1}], v33 offset:{4096*m+1024*t+512*hf}')
            if t == 0: A('v_and_b32 v41, 0xffff0000, v32\nv_lshlrev_b32 v40, 16, v32')
    def gemv(a, between=None):
        for t in range(4):
            if between: between(t)
            for m in range(2):
                c = f'v[{64+4*m}:{67+4*m}]'
                A(f'v_mfma_f32_16x16x32_bf16 {c}, v[{a(t)}:{a(t)+3}], v[{128+16*m+4*t}:{131+16*m+4*t}], {c if t else 0}')
    if fdep:
        def fload(x):
            for n in range(4): A((f's_mov_b64 exec, s[{48+2*n}:{49+2*n}]\n' if fmask else '') + f'global_load_dwordx4 v[{x+4*n}:{x+4*n+3}], v6, s[44:45] offset:{2048*n-4096} sc1')
            if fmask: A('s_mov_b64 exec, -1')
        if fmask:
            for n in range(4): A(f's_mov_b64 s[{48+2*n}:{49+2*n}], -1')
        if ftrig:
            fload(96)
            A('s_and_b32 s34, s29, 4\ns_add_u32 s34, s34, s29\ns_lshl_b32 s34, s34, 11\nv_and_b32 v9, 1, v0\nv_lshl_add_u32 v9, v9, 4, s34\nv_add_u32 v9, v9, v10')
            poll([('global_load_dword v124, v9, s[44:45] offset:-4096 sc1', 124)], 120, 8, 42, hook=lambda n: fhook(5), slp=1)
        def inner():
            if dp == 'in': dloads()
            fload(96)
            return 8 if dp == 'in' else 4
        if late: fhook(0, inner)
        elif not ftrig and not fpeel: fhook(0)
        deep(fload, 4, [96, 176, 192, 208][:fdep], 120, 8, 42, 16, hook=fhook if fpeel and not ftrig else None, issued=bool(late), masked=fmask, slp=fslp)
        ST(8)
    else:
        poll([(f'global_load_dwordx4 v[{96+4*n}:{99+4*n}], v6, s[44:45] offset:{2048*n-4096} sc1', 96 + 4 * n) for n in range(4)], 120, 8, 42, hook=fhook)
        ST(8)
        gsum(96, 120, 4, 16)
    A(f'''{FS(0)}
v_pk_add_f32 v[16:17], v[16:17], v[40:41]
v_cvt_pk_bf16_f32 v18, v16, v17
''')
    if dppa:
        mv = bcast(18, 72, 0xd)
        st = [['v_permlane32_swap_b32 v16, v17', 'v_add_f32 v16, v16, v17']] + [[f'v_add_f32_dpp v16, v16, v16 row_ror:{r} {FULL}'] for r in (8, 4, 2)]
        st += [[f'v_add_f32_dpp v16, v16, v16 row_ror:1 {FULL}', 'v_mov_b32 v17, v16'], [], ['v_permlane16_swap_b32 v16, v17', 'v_add_f32 v16, v16, v17'], []]
        if early:
            dpp = lambda r: f'v_add_f32_dpp v16, v16, v16 row_ror:{r} {FULL}'
            A('v_dot2_f32_bf16 v16, v18, v44, 0\nv_dot2_f32_bf16 v17, v18, v18, 0\ns_waitcnt lgkmcnt(0)')
            mv = mv[:2] + ['v_permlane32_swap_b32 v16, v17'] + mv[2:4] + ['v_add_f32 v16, v16, v17'] + mv[4:]
            for o in mv[:2]: A(o)
            mv = mv[2:]
            st = [[dpp(8)], [dpp(4)], [dpp(2)], [dpp(1), 'v_mov_b32 v17, v16'], ['v_permlane16_swap_b32 v16, v17', 'v_add_f32 v16, v16, v17'], [f's_mov_b64 exec, s[60:61]\nds_write_b32 v60, v16 offset:{L_RED}\ns_mov_b64 exec, -1'], [], []]
        elif mstat: A('s_waitcnt lgkmcnt(0)')
        else: A('v_dot2_f32_bf16 v16, v18, v44, 0\nv_dot2_f32_bf16 v17, v18, v18, 0\ns_waitcnt lgkmcnt(0)')
        for o in mv[:6]: A(o)
        mv = mv[6:]
        dl = [f'global_load_dwordx4 v[{160+4*n}:{163+4*n}], v{34+(n>>1)}, s[20:21] offset:{4096*(n&1)-4096}' for n in range(4)] if dp == 'post' else []
        for t in range(4):
            if mstat: A(f'v_mfma_f32_16x16x32_bf16 v[88:91], v[{72+4*t}:{75+4*t}], v[{72+4*t}:{75+4*t}], {"v[88:91]" if t else 0}')
            for m in range(2):
                c = f'v[{64+4*m}:{67+4*m}]'
                A(f'v_mfma_f32_16x16x32_bf16 {c}, v[{72+4*t}:{75+4*t}], v[{128+16*m+4*t}:{131+16*m+4*t}], {c if t else 0}')
                if dl: A(dl.pop(0))
                for o in mv[:2]: A(o)
                mv = mv[2:]
                if not mstat:
                    for o in st.pop(0): A(o)
    else:
        A('ds_write_b32 v37, v18')
        for t in range(4): A(f'ds_read_b128 v[{72+4*t}:{75+4*t}], v56 offset:{64*t}')
        if dp == 'post': dloads()
        A('v_dot2_f32_bf16 v16, v18, v44, 0\nv_dot2_f32_bf16 v17, v18, v18, 0\nv_permlane32_swap_b32 v16, v17\nv_add_f32 v16, v16, v17')
        for r in (8, 4): A(f'v_add_f32_dpp v16, v16, v16 row_ror:{r} {FULL}')
        def between(t):
            if t == 1: A(f'v_add_f32_dpp v16, v16, v16 row_ror:2 {FULL}')
            if t == 2: A(f'v_add_f32_dpp v16, v16, v16 row_ror:1 {FULL}\nv_mov_b32 v17, v16')
            if t == 3: A('v_permlane16_swap_b32 v16, v17\nv_add_f32 v16, v16, v17')
            A(f's_waitcnt lgkmcnt({3-t})')
        gemv(lambda t: 72 + 4 * t, between)
    if early:
        A(f'''{FS(1)}
s_mov_b32 exec_hi, 0
ds_write2_b32 v57, v64, v68 offset0:0 offset1:8
s_mov_b32 exec_hi, -1
s_waitcnt lgkmcnt(1)
s_barrier
ds_read_b128 v[24:27], v63
ds_read_b128 v[28:31], v63 offset:16
{WK(0)}
s_waitcnt lgkmcnt(2)
{FS(2)}
s_barrier
{FS(3)}
ds_read_b128 v[16:19], v58 offset:{L_OP}
{WK(1)}
s_waitcnt lgkmcnt(1)
v_pk_add_f32 v[24:25], v[24:25], v[26:27]
v_pk_add_f32 v[28:29], v[28:29], v[30:31]
v_pk_add_f32 v[24:25], v[24:25], v[28:29]
v_mul_f32 v24, 0xbb000000, v24       ; -mean
v_fmamk_f32 v28, v25, 0x3b000000, v46
v_fma_f32 v28, -v24, v24, v28
v_max_f32 v28, v28, v46
v_rsq_f32 v29, v28
s_waitcnt lgkmcnt(0)
{FS(4)}
v_pk_add_f32 v[16:17], v[16:17], v[18:19]
v_fmac_f32 v16, v24, v17
v_rcp_f32 v28, v28
v_mul_f32 v29, {LOG2E ^ 0x80000000:#x}, v29
v_add_f32_dpp v16, v16, v16 quad_perm:[1,0,3,2] {FULL}
v_mul_f32 v17, v16, v29
v_exp_f32 v17, v17
v_mul_f32_dpp v18, v16, v16 quad_perm:[2,3,0,1] {FULL}
v_add_f32 v17, 1.0, v17
v_rcp_f32 v17, v17
v_mul_f32 v18, v18, v28
v_mul_f32 v16, v18, v17
v_cvt_pk_bf16_f32 v16, v16, v16''')
    else:
        A(f'''{FS(1)}
s_mov_b64 exec, s[60:61]
ds_write_b32 v60, v{88 if mstat else 16} offset:{L_RED}
{'s_mov_b32 exec_lo, -1' + nl + 's_mov_b32 exec_hi, 0' + nl + 'ds_write2_b32 v57, v64, v68 offset0:0 offset1:8' if dppa else 's_mov_b64 exec, 0xffff' + nl + 'ds_write2_b64 v57, v[64:65], v[68:69] offset0:0 offset1:4'}
s_mov_b64 exec, -1
s_waitcnt lgkmcnt(0)''')
        ST(9)
        A(f'''{FS(2)}
s_barrier
{FS(3)}
ds_read_b128 v[24:27], v63
ds_read_b128 v[28:31], v63 offset:16
ds_read_b128 v[16:19], v58 offset:{L_OP}
ds_read_b128 v[20:23], v58 offset:{L_OP+16}
ds_read_b128 v[72:75], v58 offset:{L_OP+32}
ds_read_b128 v[76:79], v58 offset:{L_OP+48}
s_waitcnt lgkmcnt(4)
{FS(4)}
v_pk_add_f32 v[24:25], v[24:25], v[26:27]
v_pk_add_f32 v[28:29], v[28:29], v[30:31]
v_add_f32 v24, v24, v25
v_add_f32 v28, v28, v29
v_mul_f32 v24, 0xbb000000, v24       ; -mean
v_fmamk_f32 v28, v28, 0x3b000000, v46
v_fma_f32 v28, -v24, v24, v28
v_max_f32 v28, v28, v46
v_rsq_f32 v28, v28
s_waitcnt lgkmcnt(2)
v_pk_add_f32 v[16:17], v[16:17], v[18:19]
v_pk_add_f32 v[20:21], v[20:21], v[22:23]
v_mul_f32 v29, {LOG2E ^ 0x80000000:#x}, v28
v_pk_add_f32 v[16:17], v[16:17], v[20:21]
v_fmac_f32 v16, v24, v17
v_mul_f32 v17, v16, v29
v_exp_f32 v17, v17
s_waitcnt lgkmcnt(0)
v_pk_add_f32 v[72:73], v[72:73], v[74:75]
v_add_f32 v17, 1.0, v17
v_rcp_f32 v17, v17
v_pk_add_f32 v[76:77], v[76:77], v[78:79]
v_mul_f32 v16, v16, v28              ; gate
v_pk_add_f32 v[72:73], v[72:73], v[76:77]
v_mul_f32 v16, v16, v17              ; silu(gate)
v_fmac_f32 v72, v24, v73
v_mul_f32 v16, v16, v28
v_mul_f32 v16, v16, v72
v_cvt_pk_bf16_f32 v16, v16, v16''')
    A(FS(5))
    if dp == 'post': A('s_waitcnt vmcnt(0)')
    ops = [f'v_and_b32_dpp v{72+4*n+w}, v16, v{48+w} row_newbcast:{4*n} {FULL}' for n in range(4) for w in range(4)]
    for n in range(4):
        for o in ops[(4 * n + 2 if n else 0):4 * n + 6]: A(o)
        A(f'v_mfma_f32_16x16x32_bf16 v[64:67], v[{72+4*n}:{75+4*n}], v[{160+4*n}:{163+4*n}], {"v[64:67]" if n else 0}')
    A('v_bfi_b32 v64, v11, v8, v64\nglobal_store_dwordx4 v59, v[64:67], s[26:27] sc1')
    A(FS(6))
    finish()

    page()
    A(f'''L_vwave:
s_add_u32 s36, s8, s34
s_addc_u32 s37, s9, 0
s_lshl3_add_u32 s35, s31, s32
s_lshl_b32 s35, s35, 10
s_add_u32 s44, s26, s35
s_addc_u32 s45, s27, 0
v_mov_b32 v56, {L_ML}
s_lshr_b32 s56, s2, 6
s_lshl_b32 s56, s56, 7
s_and_b32 s35, s2, 63
s_add_u32 s56, s56, s35
s_lshl_b32 s56, s56, 7
s_add_u32 s56, s56, {WS_PR}
s_cmp_lg_u32 s28, {99 if nox else 5}
s_cbranch_scc1 L_nowarm
s_load_dword s54, s[26:27], s56 glc
s_load_dword s55, s[26:27], s56 offset:0x2000 glc
L_nowarm:''')
    ST(7)
    selectors(40, 28)
    A(f'''s_lshl_b32 s34, s63, 10
s_add_u32 s34, s34, {L_OP}
v_lshrrev_b32 v12, 5, v0
v_lshl_add_u32 v12, v12, 9, s34
v_lshl_add_u32 v12, v4, 2, v12
v_bfe_u32 v13, v0, 4, 1
v_lshl_add_u32 v12, v13, 5, v12
v_lshlrev_b32 v14, 3, v0
s_lshl_b32 s34, s32, 5
s_add_u32 s34, s34, s63
s_lshl_b32 s34, s34, 2
v_lshl_add_u32 v6, v3, 4, s34
v_mov_b32 v57, 1
s_waitcnt vmcnt(4)''')
    ST(1)
    layernorm(24, 28, 24)
    A(f'ds_write_b128 v5, v[24:27] offset:{L_H}\ns_waitcnt lgkmcnt(0)\nds_read_b32 v48, v6 offset:{L_H}\ns_add_u32 s3, s3, {EPOCH_STEP:#x}')
    tagreg(8, 14, 4)
    A('s_waitcnt lgkmcnt(0)')
    for n in range(2): afrag(24 + 4 * n, 48, n, 40)
    A('s_waitcnt vmcnt(0)')
    for n in range(2):
        for hf in range(2):
            c = f'v[{16+4*hf}:{19+4*hf}]'
            A(f'v_mfma_f32_16x16x32_bf16 {c}, v[{24+4*n}:{27+4*n}], v[{64+8*n+4*hf}:{67+8*n+4*hf}], {c if n else 0}')
    def part_write():
        A(f'''s_mov_b32 exec_lo, 0x00ff00ff
s_mov_b32 exec_hi, 0xff00ff00
ds_write2_b64 v12, v[16:17], v[20:21] offset0:0 offset1:1
ds_write2_b64 v12, v[18:19], v[22:23] offset0:2 offset1:3''')
    def part_sum(off):
        for n in range(4): A(f'ds_read_b128 v[{16+4*n}:{19+4*n}], v5 offset:{L_OP+1024*n}')
        A('s_waitcnt lgkmcnt(0)')
        sum8(16)
    part_write()
    A(f'''s_mov_b64 exec, 1
s_waitcnt lgkmcnt(0)
ds_add_u32 v56, v57 offset:48
s_mov_b64 exec, -1
s_cmp_lg_u32 s28, {99 if noq else 4}
s_cbranch_scc1 L_vstream
''')
    ldsspin('ds_read_b32 v15, v56 offset:48', 'v_cmp_ne_u32 vcc, 4, v15')
    part_sum(0)
    A('v_and_or_b32 v16, v16, -16, v8\nv_and_or_b32 v17, v17, -16, v8\nglobal_store_dwordx2 v14, v[16:17], s[44:45] ' + qst)
    ST(2)
    A(f'''L_vstream:
{'s_mov_b64 exec, 1' + nl + 'buffer_load_dword v29, v2, s[36:39], s33 offen nt' + nl + 's_mov_b64 exec, -1' if tlb & 8 else ''}
s_setprio 0
s_cmp_lg_u32 s28, {99 if nox else 5}
s_cbranch_scc1 L_noprobe
s_mov_b32 s54, {0 if psum else -1}
s_mov_b32 s55, {0 if psum else -1}
s_waitcnt lgkmcnt(0)''')
    for i in range(2 * nprobe):
        A(f's_memtime s[50:51]\ns_load_dword s35, s[26:27], s56 offset:{0x2000 * (i & 1)} glc\ns_waitcnt lgkmcnt(0)\ns_memtime s[52:53]\ns_waitcnt lgkmcnt(0)\ns_sub_u32 s35, s52, s50\n{"s_add_u32" if psum else "s_min_u32"} s{54 + (i & 1)}, s{54 + (i & 1)}, s35')
    A(f'''s_getreg_b32 s34, hwreg(HW_REG_XCC_ID, 0, 4)
s_andn2_b32 s35, s3, 31
s_or_b32 s34, s34, s35
s_cmp_lt_u32 s55, s54
s_cselect_b32 s35, 16, 0
s_or_b32 s34, s34, s35
v_mov_b32 v31, s34
s_lshl_b32 s34, s29, 6
s_add_u32 s34, s34, s30
s_lshl_b32 s34, s34, 2
s_add_u32 s34, s34, {WS_X}
v_mov_b32 v30, s34
s_mov_b64 exec, 1
global_store_dword v30, v31, s[26:27] {xst}
s_mov_b64 exec, -1
L_noprobe:
s_lshl_b32 s34, s63, 2
v_mov_b32 v28, s34''')
    ST(8)
    ldsspin(f'ds_read_b32 v15, v28 offset:{L_ML+64}', 'v_cmp_eq_u32 vcc, 0, v15', 1)
    A(f'''s_lshl_b32 s34, s29, 8
s_add_u32 s34, s34, {WS_X}
v_and_b32 v30, 31, v0
v_lshl_add_u32 v30, v30, 2, s34
s_getreg_b32 s34, hwreg(HW_REG_XCC_ID, 0, 4)
s_andn2_b32 s46, s3, 31
s_or_b32 s46, s46, s34''')
    tv = thrv or thr
    stream({xpos: 'global_load_dword v31, v30, s[26:27] sc1',
            xpos + tv: f'''v_and_b32 v31, -17, v31
v_cmp_ne_u32 s[48:49], s46, v31
s_cmp_eq_u64 s[48:49], {"s[48:49]" if nox else (1 if slowall else 0)}
s_cselect_b64 s[50:51], -1, 0
s_cselect_b64 s[52:53], 0, -1
s_cbranch_scc0 L_requeue
L_requeued:'''}, tv, extra_at=xpos, slow=slowv)
    cold.append(lambda: A('''L_requeue:
s_cmp_lg_u32 s28, 4
s_cbranch_scc1 L_requeued
global_store_dwordx2 v14, v[16:17], s[44:45] sc1
s_waitcnt vmcnt(0)
s_branch L_requeued'''))
    A('v_mov_b32 v11, 0xff')
    if vprio == 0: A('s_setprio 3')
    if sq: A(f'''s_lshl2_add_u32 s54, s30, s63
s_andn2_b32 s55, s54, 15
s_mul_i32 s55, s55, 3
s_add_u32 s54, s54, s55
s_mul_i32 s54, s54, 2752
s_mul_i32 s55, s29, 352
s_andn2_b32 s55, s55, 63
s_min_u32 s55, s55, {2752-384}
s_add_u32 s54, s54, s55''')
    if v4:
        A(f'''s_mul_i32 s34, s63, {2*528}
s_add_u32 s34, s34, {L_OP}
v_lshrrev_b32 v12, 5, v0
v_mul_u32_u24 v12, 528, v12
v_lshl_add_u32 v12, v4, 1, v12
v_bfe_u32 v13, v0, 4, 1
v_lshl_add_u32 v12, v13, 4, v12
v_add_u32 v12, s34, v12
s_lshl_b32 s34, s63, 7
v_mul_u32_u24 v13, 528, v3
v_add3_u32 v13, v13, v4, s34
v_add_u32 v13, {L_OP}, v13
v_lshrrev_b32 v14, 4, v0
v_lshlrev_b32 v14, 5, v14
v_lshrrev_b32 v15, 2, v4
v_add3_u32 v14, v14, v15, s34        ; position inside the A record
s_and_b32 s50, s50, 0x00ff00ff
s_and_b32 s51, s51, 0x00ff00ff
s_and_b32 s52, s52, 0x00ff00ff
s_and_b32 s53, s53, 0x00ff00ff''')
    tagreg(8, 14, 8)
    tagmask(10, 14)
    ST(3)
    A(f'''s_lshl_b32 s34, s63, 8
v_lshl_add_u32 v6, v3, 5, s34
s_barrier''')
    ST(4)
    A(f'ds_read_b128 v[48:51], v6 offset:{L_P}\nds_read_b128 v[52:55], v6 offset:{L_P+16}\ns_waitcnt lgkmcnt(0)')
    for i in range(16): afrag(64 + 4 * i, 48 + i // 2, i & 1, 40)
    for i in range(16):
        for hf in range(2):
            if vprio == 1 and (i, hf) == (12, 0): A('s_setprio 3')
            if vfill and i >= 13 and hf == 0:
                Lw = lab('busy')
                A(f'{Lw}:\nv_mov_b32 v1, v1\ns_getreg_b32 s34, hwreg(HW_REG_IB_STS, 0, 4)\ns_cmp_gt_u32 s34, {31-2*i}\ns_cbranch_scc1 {Lw}')
            if hf == 0 or i >= 12: A(f's_waitcnt vmcnt({31-2*i-hf if i >= 12 else 30-2*i})')
            c = f'v[{16+4*hf}:{19+4*hf}]'
            A(f'v_mfma_f32_16x16x32_bf16 {c}, v[{64+4*i}:{67+4*i}], v[{128+8*i+4*hf}:{131+8*i+4*hf}], {c if i else 0}')
    def stouch():
        for t in sq:
            for m in range(2):
                for j in range(6): A(f's_load_dword s35, s[{16+2*m}:{17+2*m}], s54 offset:{16*t*2752+64*j}')
    def ttwait():
        stouch()
        A(f'''s_barrier
L_tt:
s_memrealtime s[96:97]
s_waitcnt lgkmcnt(0)
s_sub_u32 s96, s96, s98
s_cmp_lt_u32 s96, {tailtest}
s_cbranch_scc1 L_tt''')
    if vlast:
        if tailtest: ttwait()
        part_write()
        A(f'ds_write_b32 v28, v11 offset:{L_ML+80}\ns_mov_b64 exec, -1\nds_read_b128 v[32:35], v56 offset:80')
        for n in range(4): A(f'ds_read_b128 v[{64+4*n}:{67+4*n}], v5 offset:{L_OP+1024*n}')
        A(f'''s_waitcnt lgkmcnt(4)
v_min3_u32 v32, v32, v33, v34
v_min_u32 v32, v32, v35
v_cmp_ne_u32 vcc, 0, v32
s_waitcnt lgkmcnt(2)
v_pk_add_f32 v[64:65], v[64:65], v[68:69]
v_pk_add_f32 v[66:67], v[66:67], v[70:71]
s_and_b64 s[50:51], s[50:51], vcc
s_and_b64 s[52:53], s[52:53], vcc
s_waitcnt lgkmcnt(0)
v_pk_add_f32 v[72:73], v[72:73], v[76:77]
v_pk_add_f32 v[74:75], v[74:75], v[78:79]
v_pk_add_f32 v[64:65], v[64:65], v[72:73]
v_pk_add_f32 v[66:67], v[66:67], v[74:75]
v_permlane32_swap_b32 v64, v66
v_permlane32_swap_b32 v65, v67
v_pk_add_f32 v[64:65], v[64:65], v[66:67]
v_bfi_b32 v64, v10, v8, v64
s_mov_b64 exec, s[50:51]
global_store_dwordx2 v14, v[64:65], s[44:45] offset:{AOFF}
s_mov_b64 exec, s[52:53]
global_store_dwordx2 v14, v[64:65], s[44:45] offset:{AOFF} sc1''')
    elif v4:
        A(f'''s_mov_b32 exec_lo, 0x00ff00ff
s_mov_b32 exec_hi, 0xff00ff00
ds_write_b128 v12, v[16:19]
ds_write_b128 v12, v[20:23] offset:256
s_mov_b64 exec, -1
{WK(4)}
s_waitcnt lgkmcnt(0)''')
        ST(5)
        A('s_barrier')
    else:
        part_write()
        A('s_mov_b64 exec, -1\ns_waitcnt lgkmcnt(0)')
        ST(5)
        A('s_barrier\ns_cmp_lg_u32 s28, 4\ns_cbranch_scc1 L_vend')
    if tailtest and not vlast: ttwait()
    if v4:
        A(f'''ds_read_b128 v[16:19], v13
{WK(5)}
s_waitcnt lgkmcnt(0)
v_permlane32_swap_b32 v16, v18
v_permlane32_swap_b32 v17, v19
v_pk_add_f32 v[16:17], v[16:17], v[18:19]
v_permlane16_swap_b32 v16, v17
v_add_f32 v16, v16, v17
v_add_f32_dpp v16, v16, v16 row_ror:8 {FULL}
s_mov_b64 exec, s[50:51]
v_bfi_b32 v17, v10, v8, v16
global_store_dword v14, v17, s[44:45] offset:{AOFF}
s_mov_b64 exec, s[52:53]
v_bfi_b32 v16, v10, v8, v16
global_store_dword v14, v16, s[44:45] offset:{AOFF} sc1''')
    elif not vlast:
        part_sum(512)
        A('v_bfi_b32 v16, v10, v8, v16')
        A(f's_mov_b64 exec, s[50:51]\nglobal_store_dwordx2 v14, v[16:17], s[44:45] offset:{AOFF}\ns_mov_b64 exec, s[52:53]')
        A(f'global_store_dwordx2 v14, v[16:17], s[44:45] offset:{AOFF} sc1')
    ST(6)
    A(('' if tailtest else 's_barrier\n') + 'L_vend:')
    if not tailtest: stouch()
    finish()
    A(f'L_exit:\ns_endpgm\nL_code_end:\n.fill (L_pc+{33*(1024 if pf == 3 else 512)}-L_code_end)/4, 4, 0xbf810000')
    A.raw(f'''.section .rodata,"a"
.p2align 6
.amdhsa_kernel {NAME}_kernel
  .amdhsa_next_free_vgpr 256
  .amdhsa_next_free_sgpr 102
  .amdhsa_accum_offset 256
  .amdhsa_group_segment_fixed_size 0
  .amdhsa_kernarg_size 96
  .amdhsa_user_sgpr_count 2
  .amdhsa_user_sgpr_kernarg_segment_ptr 1
  .amdhsa_system_sgpr_workgroup_id_x 1
  .amdhsa_float_denorm_mode_32 3
.end_amdhsa_kernel''')
    return A.text()

def STAMPS(al, roles, KW, VW):
    import numpy as np
    return [('start', al, KW + VW, 0), ('V at vwave', al, VW, 7), ('Q: x landed', al, VW, 1), ('Q: stored', al, [4], 2), ('V probed', al, VW, 8), ('probe/100 lo', np.arange(256) % 8 < 4, KW, 12), ('probe/100 hi', np.arange(256) % 8 >= 4, KW, 12), ('K issued', al, KW, 1), ('K go', al, KW, 2),
            ('K q gathered', al, KW, 3), ('K qk done', al, KW, 11), ('K ml lds', al, [0], 4), ('K ml gathered', al, KW, 5), ('K p written', al, KW, 6),
            ('V issued', al, VW, 3), ('V bar1', al, VW, 4), ('V pv done', al, VW, 5), ('A stored', al, VW, 6), ('K bar3', al, KW, 7),
            ('W wts landed', roles == 'W', KW, 10), ('F wts landed', roles == 'F', KW, 10),
            ('W gathered', roles == 'W', KW, 8), ('W end', roles == 'W', KW, 15), ('F gathered', roles == 'F', KW, 8), ('F gemv done', roles == 'F', KW, 9),
            ('F end', roles == 'F', KW, 15), ('R h seen', roles == 'R', [0], 9), ('R gathered', roles == 'R', [0], 8), ('R end', roles == 'R', [0], 15)]

if __name__ == '__main__':
    out = sys.argv[1] if len(sys.argv) > 1 else f'cdna_kernels/{NAME}.s'
    kw = eval('dict(' + (sys.argv[2] if len(sys.argv) > 2 else '') + ')')
    open(out, 'w').write(gen(**kw))
```

```python
import sys
from asmlib import Asm

NAME = 'sequential_preLN__sliding_block_cached__swiglu_ffn__decode'
WS_QA, WS_B, WS_PR, WS_ML, WS_X, WS_E, WS_C, WS_ST = 0x0, 0x40000, 0x60000, 0x70000, 0x72000, 0x73000, 0x80000, 0x100000
EPOCH_STEP = 0x5bd1e3c7
L_P, L_OP, L_SCR, L_H, L_RED, L_ML, L_Q, L_W = 0x0, 0x400, 0x1600, 0x1a00, 0x1e00, 0x2000, 0x2100, 0x2400
LDS_BYTES = L_W + 0x8000
SPIN = 0x40000
LOG2E = 0x3fb8aa3b
SCALE = 0x3db504f3
EPS = 0x3727c5ac
FULL = 'row_mask:0xf bank_mask:0xf'
nl = '\n'

def gen(diag=False, span=False, lite=False, amp=None, mlsleep=2, kvf='nt', kpre=3, twhen=(1, 1), tf='', wf='', thr=8, gow=4, qpos=24,
        dearly=True, thrv=None, notail=False, noml=False, noq=False, tailtest=0, psleep=0, nosr=0, afast=True, pages=True, pf=2, fdep=1, rdep=1, ftrig=False, pol=None, nprobe=2, psum=False, cfgy=True, guw=2, wsplit=2, dpos='post', wo0=False, trig=0, tlb=0, outf='', slowk=(), slowv=(), slowif='ge', fsplit=0, dtouch=2, frot=0, fpeel=False, bpre=False, apre=False, nox=False, qst='', xst='', xpos=12, wo1=1, late=4, fbar=(), xbar=True, guall=False, edge=False, repoll=False, gut=None, dbgp=False, rot=(0, 4, 1), v4=True, wqm=0, cpre=True, rslp=0, eend=False, vprio=0, rb=1, fmask=0, wmask=2, wb=0, slowall=False, share=True, wbs=0, dtrig=0, wox=False, gsplit=0, fresh=0, rep4=True, wslp=0, fslp=0, cslp=0, dppa=True, mstat=False, fine=False, early=True, fill=0, vfill=0, wk=(0, 0, 0, 0, 0, 0), wlast=True, vlast=True, fspin=0, gsr='F', sq=(), stlb=0):
    WK = lambda i: nl.join(['v_mov_b32 v1, v1'] * wk[i])
    if isinstance(rot, int): rotcode = f's_mul_i32 s33, s2, {rot:#x}\ns_lshr_b32 s33, s33, 26'
    elif rot == (0, 4, 1): rotcode = 's_lshl2_add_u32 s33, s31, s32'
    else: rotcode = f's_mul_i32 s33, s29, {rot[0]}\ns_mul_i32 s34, s31, {rot[1]}\ns_add_u32 s33, s33, s34\ns_mul_i32 s34, s32, {rot[2]}\ns_add_u32 s33, s33, s34'
    AOFF = 0 if share else 512
    if vlast: v4 = False
    assert v4 or vlast or not dppa
    wot = '''s_lshl_b32 s35, s29, 6
s_add_u32 s34, s34, s35
s_lshl_b32 s34, s34, 13
s_add_u32 s34, s34, 2048
v_and_b32 v127, 16, v0
v_add_u32 v127, v127, v0
v_lshl_add_u32 v127, v127, 7, s34''' if dppa and v4 else '''s_andn2_b32 s35, s34, 3
s_add_u32 s34, s34, s35
s_add_u32 s34, s34, 4
s_lshl_b32 s35, s29, 7
s_add_u32 s34, s34, s35
s_lshl_b32 s34, s34, 12
v_lshl_add_u32 v127, v0, 7, s34''' if dppa else '''s_andn2_b32 s35, s34, 7
s_add_u32 s34, s34, s35
s_add_u32 s34, s34, 8
s_lshl_b32 s35, s29, 7
s_add_u32 s34, s34, s35
s_lshl_b32 s34, s34, 12
v_lshl_add_u32 v127, v0, 7, s34'''
    frow = '''v_bfe_u32 v14, v0, 3, 1
v_lshl_add_u32 v14, v14, 3, v12
v_bfe_u32 v15, v0, 2, 1
v_lshl_add_u32 v14, v14, 1, v15
v_bfe_u32 v15, v0, 4, 1
v_lshl_add_u32 v14, v14, 1, v15
v_bfe_u32 v15, v0, 1, 1
v_lshl_add_u32 v14, v14, 1, v15'''
    wrow = '''v_bfe_u32 v15, v0, 3, 1
v_lshl_add_u32 v15, v32, 2, v15
v_lshl_add_u32 v15, v15, 1, v12
v_bfe_u32 v33, v0, 2, 1
v_lshl_add_u32 v15, v15, 1, v33
v_lshlrev_b32 v15, 2, v15''' if v4 else '''v_bfe_u32 v15, v0, 3, 1
v_lshl_add_u32 v15, v32, 4, v15
v_lshl_add_u32 v15, v15, 1, v12
v_bfe_u32 v33, v0, 2, 1
v_lshl_add_u32 v15, v15, 1, v33'''
    A = Asm()
    cold = []
    uid = [0]
    def lab(s):
        uid[0] += 1
        return f'L_{s}_{uid[0]}'
    def ST(n):
        if amp and n == amp[0]: A(f's_mem{"" if amp[2] == 0 else "real"}time s[98:99]')
        if amp and n == amp[1]: A(f's_mem{"" if amp[2] == 0 else "real"}time s[100:101]')
        if diag: A(f's_memrealtime s[96:97]\ns_waitcnt lgkmcnt(0)\nv_writelane_b32 v7, s96, {n}')
        if lite and n in (8, 10): A(f's_memrealtime s[{(90, 92)[n == 10]}:{(91, 93)[n == 10]}]')
    def FS(n):
        return f's_memtime s[{70+2*n}:{71+2*n}]' if fine == 1 else ''
    def F2(n):
        if fine == 2: A(f's_memrealtime s[{70+2*n}:{71+2*n}]')
    def flush_cold():
        for f in cold: f()
        cold.clear()
    def finish(last=False):
        if diag or lite or (span and last == span):
            A(f'''s_memrealtime s[96:97]
s_waitcnt lgkmcnt(0)
v_writelane_b32 v7, s96, 15
v_writelane_b32 v7, s98, 0
{nl.join(f'v_writelane_b32 v7, s{70+2*i}, {1+i}' for i in range(7)) if fine else ''}
{'v_writelane_b32 v7, s90, 8' + nl + 'v_writelane_b32 v7, s92, 10' if lite else ''}
s_mov_b64 exec, 0xffff
s_lshl_b32 s34, s2, 3
s_add_u32 s34, s34, s28
s_lshl_b32 s34, s34, 6
s_add_u32 s34, s34, {WS_ST}
v_lshl_add_u32 v1, v0, 2, s34
global_store_dword v1, v7, s[26:27]''')
        A('s_endpgm')
        flush_cold()
    def wred(op, v, t):
        for r in (8, 4, 2, 1): A(f'{op}_dpp v{v}, v{v}, v{v} row_ror:{r} {FULL}')
        for sw in (16, 32): A(f'v_mov_b32 v{t}, v{v}\nv_permlane{sw}_swap_b32 v{v}, v{t}\n{op} v{v}, v{v}, v{t}')
    def rnd(v):
        A(f'v_cvt_pk_bf16_f32 v{v}, v{v}, v{v}\nv_lshlrev_b32 v{v}, 16, v{v}')
    def layernorm(x, u, o):
        s, t, mb, dl = u + 8, u + 9, u + 10, u + 11
        for i in range(4): A(f'v_lshlrev_b32 v{u+2*i}, 16, v{x+i}\nv_and_b32 v{u+2*i+1}, 0xffff0000, v{x+i}')
        A(f'v_add_f32 v{s}, v{u}, v{u+1}\nv_add_f32 v{t}, v{u+2}, v{u+3}\nv_add_f32 v{mb}, v{u+4}, v{u+5}\nv_add_f32 v{dl}, v{u+6}, v{u+7}')
        A(f'v_add_f32 v{s}, v{s}, v{t}\nv_add_f32 v{mb}, v{mb}, v{dl}\nv_add_f32 v{s}, v{s}, v{mb}')
        wred('v_add_f32', s, t)
        A(f'v_mul_f32 v{dl}, 0x3b000000, v{s}')
        A(f'v_cvt_pk_bf16_f32 v{mb}, v{dl}, v{dl}\nv_lshlrev_b32 v{mb}, 16, v{mb}')
        for i in range(8): A(f'v_sub_f32 v{u+i}, v{u+i}, v{mb}')
        A(f'v_sub_f32 v{dl}, v{dl}, v{mb}')
        A(f'v_mul_f32 v{s}, v{u}, v{u}\nv_mul_f32 v{t}, v{u+1}, v{u+1}')
        for i in range(2, 8, 2): A(f'v_fmac_f32 v{s}, v{u+i}, v{u+i}\nv_fmac_f32 v{t}, v{u+i+1}, v{u+i+1}')
        A(f'v_add_f32 v{s}, v{s}, v{t}')
        fill = [f'v_cvt_pk_bf16_f32 v{o+i}, v{u+2*i}, v{u+2*i+1}' for i in range(4)]
        for i in range(4): fill += [f'v_lshlrev_b32 v{u+2*i}, 16, v{o+i}', f'v_and_b32 v{u+2*i+1}, 0xffff0000, v{o+i}']
        fill.append(f'v_mul_f32 v{dl}, v{dl}, v{dl}')
        for r in (8, 4, 2, 1):
            A(fill.pop(0)); A(fill.pop(0))
            A(f'v_add_f32_dpp v{s}, v{s}, v{s} row_ror:{r} {FULL}')
        for sw in (16, 32):
            A(f'v_mov_b32 v{t}, v{s}'); A(fill.pop(0)); A(fill.pop(0))
            A(f'v_permlane{sw}_swap_b32 v{s}, v{t}\nv_add_f32 v{s}, v{s}, v{t}')
        A(fill.pop(0))
        A(f'v_mul_f32 v{s}, 0x3b000000, v{s}\nv_sub_f32 v{s}, v{s}, v{dl}\nv_max_f32 v{s}, 0, v{s}')
        rnd(s)
        A(f'v_add_f32 v{s}, {EPS:#x}, v{s}'); rnd(s)
        A(f'v_sqrt_f32 v{s}, v{s}'); rnd(s)
        A(f'v_rcp_f32 v{s}, v{s}')
        for i in range(8): A(f'v_mul_f32 v{u+i}, v{u+i}, v{s}')
        for i in range(4): A(f'v_cvt_pk_bf16_f32 v{o+i}, v{u+2*i}, v{u+2*i+1}')
    def selectors(sel, t):
        A(f'''v_and_b32 v{t}, 1, v0
v_cmp_eq_u32 vcc, 1, v{t}
v_mov_b32 v{t+1}, 0x0c0c0100
v_mov_b32 v{t+2}, 0x01000c0c
v_cndmask_b32 v{t+1}, v{t+1}, v{t+2}, vcc
v_mov_b32 v{t+2}, 0x0c0c0302
v_mov_b32 v{t+3}, 0x03020c0c
v_cndmask_b32 v{t+2}, v{t+2}, v{t+3}, vcc
v_mov_b32 v{t+3}, 0x0c0c0c0c
v_bfe_u32 v{t}, v0, 1, 2''')
        for w in range(4):
            A(f'v_cmp_eq_u32 vcc, {w}, v{t}\nv_cndmask_b32 v{sel+w}, v{t+3}, v{t+1}, vcc\nv_cndmask_b32 v{sel+4+w}, v{t+3}, v{t+2}, vcc')
    def afrag(dst, src, par, sel):
        for w in range(4): A(f'v_perm_b32 v{dst+w}, v{src}, v{src}, v{sel+4*par+w}')
    def tagreg(dst, addr, bits):
        A(f'v_bfe_u32 v{dst}, v{addr}, 4, 1\nv_lshlrev_b32 v{dst}, {bits-1}, v{dst}\nv_xor_b32 v{dst}, s3, v{dst}\nv_and_b32 v{dst}, {(1 << bits) - 1}, v{dst}')
        if bits == 4: A(f'v_xor_b32 v{dst}, 4, v{dst}')
    def tagmask(dst, addr):
        A(f'v_and_b32 v{dst}, 15, v{addr}\nv_cmp_eq_u32 vcc, 0, v{dst}\nv_mov_b32 v{dst}, 0\nv_cndmask_b32 v{dst}, v{dst}, v11, vcc')
    def poll(loads, y, T, t, hook=None, slp=0, part=None):
        n = len(loads)
        L, Lc, Ld = lab('again'), lab('chk'), lab('ok')
        full = lambda i: part if (part and i == n - 1) else -1
        def issue():
            for i, l in enumerate(loads): A((f's_mov_b64 exec, s[{48+2*i}:{49+2*i}]\n' if n > 1 else '') + l[0])
            if n > 1: A('s_mov_b64 exec, -1')
        if n > 1:
            for i in range(n): A(f's_mov_b64 s[{48+2*i}:{49+2*i}], {full(i)}')
        A(f's_mov_b32 s62, {SPIN}')
        issue()
        if hook: hook(n)
        A(f's_branch {Lc}\n{L}:')
        if slp or psleep: A(f's_sleep {slp or psleep}')
        issue()
        if n > 1:
            for i in range(n):
                A(f'v_and_b32 v{t}, v11, v{y+i}\nv_cmp_ne_u32 vcc, 0, v{t}\ns_cmp_lg_u64 vcc, 0\ns_cselect_b64 s[{48+2*i}:{49+2*i}], {full(i)}, 0')
        A(f's_sub_u32 s62, s62, 1\ns_cbranch_scc1 {Ld}\n{Lc}:\ns_waitcnt vmcnt(0)')
        for i, l in enumerate(loads): A(f'v_xor_b32 v{y+i}, v{l[1]}, v{T}')
        if n == 1: A(f'v_and_b32 v{t}, v11, v{y}')
        else:
            A(f'v_or3_b32 v{t}, v{y}, v{y+1}, v{y+2}')
            for i in range(3, n - 1, 2): A(f'v_or3_b32 v{t}, v{t}, v{y+i}, v{y+i+1}')
            A(f'v_bitop3_b32 v{t}, v{t}, v{y+n-1}, v11 bitop3:0xa8')
        A(f'v_cmp_ne_u32 vcc, 0, v{t}\ns_cbranch_vccnz {L}\n{Ld}:')
    def gsum(x, y, n, d):
        src = lambda i, r: f'v{y+i}' if r == 0 else f'v{x+4*i+r}'
        for i in range(0, n, 2):
            dd = d + 2 * i
            A(f'v_pk_add_f32 v[{dd+2}:{dd+3}], v[{x+4*i+2}:{x+4*i+3}], v[{x+4*i+6}:{x+4*i+7}]')
            for r in range(2): A(f'v_add_f32 v{dd+r}, {src(i, r)}, {src(i+1, r)}')
        for i in range(2, n, 2):
            for r in (2, 0): A(f'v_pk_add_f32 v[{d+r}:{d+r+1}], v[{d+r}:{d+r+1}], v[{d+2*i+r}:{d+2*i+r+1}]')
        A(f'v_permlane32_swap_b32 v{d}, v{d+2}\nv_permlane32_swap_b32 v{d+1}, v{d+3}')
        A(f'v_pk_add_f32 v[{d}:{d+1}], v[{d}:{d+1}], v[{d+2}:{d+3}]')
    def deep(load, n, sets, y, T, t, d, hook=None, issued=False, masked=False, slp=0):
        x = sets[0]
        L, Lc, Lo = lab('again'), lab('chk'), lab('ok')
        A(f's_mov_b32 s62, {SPIN}')
        if issued: A(f's_branch {Lc}')
        A(f'{L}:')
        if slp: A(f's_sleep {slp}')
        load(x)
        if masked:
            for i in range(n):
                A(f'v_and_b32 v{t}, v11, v{y+i}\nv_cmp_ne_u32 vcc, 0, v{t}')
                if masked == 1: A(f's_cmp_lg_u64 vcc, 0\ns_cselect_b64 s[{48+2*i}:{49+2*i}], -1, 0')
                else: A(f's_cmp_lg_u32 vcc_lo, 0\ns_cselect_b32 s{48+2*i}, -1, 0\ns_cmp_lg_u32 vcc_hi, 0\ns_cselect_b32 s{49+2*i}, -1, 0')
        for i in range(fill): A('v_mov_b32 v1, v1')
        A(f's_sub_u32 s62, s62, 1\ns_cbranch_scc1 {Lo}\n{Lc}:')
        for i in range(n):
            if i % 2 == 0: A(f's_waitcnt vmcnt({n-2-i})')
            A(f'v_xor_b32 v{y+i}, v{x+4*i}, v{T}')
            if i % 2 == 1:
                dd = d + 2 * (i - 1)
                if i == 1: A(f'v_or_b32 v{t}, v{y}, v{y+1}')
                elif i < n - 1: A(f'v_or3_b32 v{t}, v{t}, v{y+i-1}, v{y+i}')
                else: A(f'v_or_b32 v{t}, v{t}, v{y+i-1}\nv_bitop3_b32 v{t}, v{t}, v{y+i}, v11 bitop3:0xa8\nv_cmp_ne_u32 vcc, 0, v{t}')
                A(f'v_pk_add_f32 v[{dd+2}:{dd+3}], v[{x+4*i-2}:{x+4*i-1}], v[{x+4*i+2}:{x+4*i+3}]')
                if i == n - 1: A(f's_cbranch_vccnz {L}\n{Lo}:')
                A(f'v_add_f32 v{dd}, v{y+i-1}, v{y+i}\nv_add_f32 v{dd+1}, v{x+4*i-3}, v{x+4*i+1}')
                if i > 1:
                    for r in (2, 0): A(f'v_pk_add_f32 v[{d+r}:{d+r+1}], v[{d+r}:{d+r+1}], v[{dd+r}:{dd+r+1}]')
        A(f'v_permlane32_swap_b32 v{d}, v{d+2}\nv_permlane32_swap_b32 v{d+1}, v{d+3}')
        A(f'v_pk_add_f32 v[{d}:{d+1}], v[{d}:{d+1}], v[{d+2}:{d+3}]')
    def page():
        if pages: A('.p2align 12')
    def sum8(g):
        for i in (0, 2, 8, 10): A(f'v_pk_add_f32 v[{g+i}:{g+i+1}], v[{g+i}:{g+i+1}], v[{g+i+4}:{g+i+5}]')
        for i in (0, 2): A(f'v_pk_add_f32 v[{g+i}:{g+i+1}], v[{g+i}:{g+i+1}], v[{g+i+8}:{g+i+9}]')
        A(f'v_permlane32_swap_b32 v{g}, v{g+2}\nv_permlane32_swap_b32 v{g+1}, v{g+3}')
        A(f'v_pk_add_f32 v[{g}:{g+1}], v[{g}:{g+1}], v[{g+2}:{g+3}]')
    def ldsspin(reads, test, slp=0):
        L, Ld = lab('spin'), lab('spun')
        A(f's_mov_b32 s62, {SPIN}\n{L}:')
        if slp: A(f's_sleep {slp}')
        A(f'{reads}\ns_waitcnt lgkmcnt(0)\n{test}\ns_cbranch_vccz {Ld}\ns_sub_u32 s62, s62, 1\ns_cbranch_scc0 {L}\n{Ld}:')
    def stream(hooks, th, extra_at=None, slow=()):
        if slow: A(f's_cmp_{slowif}_u32 s30, 16\ns_cselect_b64 vcc, -1, 0')
        for i in range(16):
            if i: A('s_addk_i32 s33, 0x2000\ns_bitset0_b32 s33, 17')
            if th and 2 * i >= th:
                ex = 1 if extra_at is not None and 2 * i - (th - 2) < extra_at <= 2 * i else 0
                A(f's_waitcnt vmcnt({th-2+ex})')
            if i in slow:
                Ls = lab('fast')
                A(f's_cbranch_vccz {Ls}\ns_waitcnt vmcnt({th-4})\n{Ls}:')
            for hf in range(2):
                A(f'buffer_load_dwordx4 v[{128+8*i+4*hf}:{131+8*i+4*hf}], v2, s[36:39], s33 offen offset:{128*hf} {kvf}')
                if 2 * i + hf + 1 in hooks: A(hooks[2 * i + hf + 1])

    hdr = open('cdna_kernels/' + NAME + '.s.ref').read().split('\n')
    for ln in hdr:
        if ln.startswith('; @launch'): A.raw(f'; @launch grid=(256,1,1) block=(512,1,1) lds={LDS_BYTES}'); break
        A.raw(ln)
    A.raw(f'.amdgcn_target "amdgcn-amd-amdhsa--gfx950"\n.text\n.globl {NAME}_kernel\n.p2align {12 if pages else 8}\n.p2align 8\n.type {NAME}_kernel,@function\n{NAME}_kernel:')

    if amp: ST(13)
    if span or diag: A('s_memrealtime s[98:99]')
    A(f'''s_load_dwordx16 s[4:19], s[0:1], 0
s_load_dwordx8 s[20:27], s[0:1], 64
s_getpc_b64 s[40:41]
L_pc:
v_lshrrev_b32 v1, 6, v0
s_lshr_b32 s30, s2, 3                ; index inside the head group
v_readfirstlane_b32 s28, v1
v_and_b32 v0, 63, v0
s_lshl3_add_u32 s43, s30, s28
s_lshl_b32 s43, s43, 6
{'s_load_dword s42, s[40:41], s43' if pf == 1 else ''}
{'s_lshl_b32 s42, s43, 1' + nl + 'v_mov_b32 v1, s42' + nl + 'global_load_dword v1, v1, s[40:41]' if pf == 3 else ''}
s_cmp_ge_u32 s2, 256
s_cbranch_scc1 L_exit
s_and_b32 s29, s2, 7
s_and_b32 s31, s30, 3
s_lshl2_add_u32 s31, s29, s31        ; head
s_lshr_b32 s32, s30, 2
v_lshrrev_b32 v3, 3, v0              ; lane >> 3
v_and_b32 v4, 7, v0
v_lshlrev_b32 v4, 4, v4              ; (lane & 7) * 16
v_lshl_add_u32 v2, v3, 8, v4
v_lshlrev_b32 v5, 4, v0              ; lane * 16
s_and_b32 s63, s28, 3
{rotcode}
s_add_u32 s33, s33, s63
s_and_b32 s33, s33, 63
s_lshl_b32 s33, s33, 11              ; first tile of this wave
s_lshl_b32 s34, s31, 6
s_add_u32 s34, s34, s32
s_add_u32 s34, s34, 56
s_lshl_b32 s34, s34, 17              ; byte offset of this chunk of the window
s_mov_b32 s38, 0x20000
s_mov_b32 s39, 0x20000''')
    if diag: A('v_mov_b32 v7, 0')
    A(f'''s_cmp_lt_u32 s28, 4
s_cbranch_scc1 L_kwave
s_setprio 3
s_lshl_b32 s35, s32, 5
s_add_u32 s35, s35, s63
s_lshl_b32 s35, s35, 6
s_add_u32 s35, s35, s31
s_lshl_b32 s35, s35, 8
v_lshl_add_u32 v6, v3, 16, v4
v_add_u32 v12, 0x2000, v6
{'s_lshl2_add_u32 s35, s2, s63' + nl + 's_lshl_b32 s35, s35, 12' + nl + 'v_mov_b32 v6, v2' + nl + 'v_add_u32 v12, 0x800, v6' if wqm == 1 else ''}
{'s_mov_b32 s35, 0' + nl + 'v_mov_b32 v6, v4' + nl + 'v_mov_b32 v12, v4' if wqm == 2 else ''}
v_subrev_u32 v13, 12, v0
v_ashrrev_i32 v13, 31, v13
v_lshlrev_b32 v14, 2, v0
ds_write_b32 v14, v13 offset:{L_ML}
s_waitcnt lgkmcnt(0)
global_load_dwordx4 v[24:27], v5, s[4:5]
{'s_load_dword s42, s[40:41], s43' if pf == 2 else ''}
s_load_dword s3, s[26:27], {WS_E:#x}
s_add_u32 s10, s10, s35
s_addc_u32 s11, s11, 0''')
    for n in range(2):
        for hf in range(2): A(f'global_load_dwordx4 v[{64+8*n+4*hf}:{67+8*n+4*hf}], v{(6, 12)[n]}, s[10:11] offset:{128*hf} nt')
    A('s_barrier\ns_branch L_vwave')

    A(f'''L_kwave:
s_setprio 2
s_lshl_b32 s35, s32, 19
s_lshl_b32 s44, s29, 19
s_waitcnt lgkmcnt(0)
s_add_u32 s36, s6, s34
s_addc_u32 s37, s7, 0''')
    pages = ['s[10:11], s35', 's[4:5], 0', 's[8:9], s34', 's[12:13], s44', 's[16:17], 0', 's[18:19], 0', 's[20:21], 0', 's[22:23], 0']
    tl = nl.join(f's_load_dword s45, {p}' for i, p in enumerate(pages) if stlb >> i & 1)
    qload = 'global_load_dwordx4 v[16:19], v6, s[44:45] sc1'
    stream({1: tl + nl + ('s_load_dword s42, s[40:41], s43' if pf == 2 else ''), kpre: f's_load_dword s3, s[26:27], {WS_E:#x}\ns_barrier' + ('\ns_memrealtime s[100:101]' if amp and amp[1] == 22 else ''), 10: 's_memrealtime s[100:101]' if amp and amp[1] == 23 else '',
            12: f'''s_waitcnt lgkmcnt(0)
s_lshl_b32 s34, s31, 6
s_add_u32 s34, s34, s28
s_lshl_b32 s34, s34, 7
s_add_u32 s44, s26, s34
s_addc_u32 s45, s27, 0
v_lshl_add_u32 v6, v3, 10, v4''',
            qpos: '' if noq else qload}, thr, extra_at=None if noq else qpos, slow=slowk)
    ST(1)
    A(f'''v_lshrrev_b32 v12, 5, v0             ; lane >> 5
v_and_b32 v13, 31, v0
v_lshlrev_b32 v13, 4, v13            ; (lane & 31) * 16
s_lshl_b32 s46, s28, 8
s_add_u32 s46, s46, {L_SCR}
s_lshl_b32 s34, s28, 6
v_lshrrev_b32 v14, 4, v0
v_lshlrev_b32 v14, 1, v14
v_lshrrev_b32 v15, 1, v4
v_add3_u32 v14, v14, v15, s34
v_mov_b32 v24, {L_ML}
v_mov_b32 v25, 1
s_lshl_b32 s34, s28, 2
v_mov_b32 v26, s34
s_waitcnt lgkmcnt(0)
s_add_u32 s3, s3, {EPOCH_STEP:#x}''')
    tagreg(8, 5, 4)
    A(f's_waitcnt vmcnt({min(gow, 32-qpos)})\nds_write_b32 v26, v25 offset:{L_ML+64}')
    ST(2)
    A(f's_mov_b32 s62, {SPIN}\nL_qchk:')
    for i in range(4): A(f'v_xor_b32 v{20+i}, v{16+i}, v8')
    A('v_or3_b32 v15, v20, v21, v22\nv_bitop3_b32 v15, v15, v23, 15 bitop3:0xa8\nv_cmp_ne_u32 vcc, 0, v15')
    A(('' if noq else 's_cbranch_vccnz L_qagain\n') + 'L_qok:')
    cold.append(lambda: A(f'L_qagain:\n{qload}\ns_sub_u32 s62, s62, 1\ns_waitcnt vmcnt(0)\ns_cbranch_scc0 L_qchk\ns_branch L_qok'))
    ST(3)
    A(f'''v_permlane32_swap_b32 v20, v22
v_permlane32_swap_b32 v21, v23
v_add_f32 v20, v20, v22
v_add_f32 v21, v21, v23
v_permlane16_swap_b32 v20, v21
v_add_f32 v20, v20, v21
v_add_f32_dpp v20, v20, v20 row_ror:8 {FULL}
v_cvt_pk_bf16_f32 v20, v20, v20
v_lshl_add_u32 v6, v12, 12, v13
ds_write_b16 v14, v20 offset:{L_Q}
s_mov_b64 exec, 1
s_waitcnt lgkmcnt(0)
ds_add_u32 v24, v25 offset:52
s_mov_b64 exec, -1''')
    ldsspin('ds_read_b32 v15, v24 offset:52', 'v_cmp_ne_u32 vcc, 4, v15')
    A(f'ds_read_b128 v[16:19], v4 offset:{L_Q}\nds_read_b128 v[20:23], v4 offset:{L_Q+128}\ns_waitcnt lgkmcnt(0)')
    for i0 in range(0, 16, 4):
        A(f's_waitcnt vmcnt({24-2*i0})')
        for e in range(8):
            for i in range(i0, i0 + 4):
                A(f'v_dot2_f32_bf16 v{32+i}, v{128+8*i+e}, v{16+e}, {"v%d" % (32+i) if e else 0}')
    for i in range(8):
        A(f'v_add_f32_dpp v{32+i}, v{32+i}, v{32+i} row_half_mirror row_mask:0xf bank_mask:0x5')
    for i in range(8):
        A(f'v_add_f32_dpp v{32+i}, v{40+i}, v{40+i} row_half_mirror row_mask:0xf bank_mask:0xa')
    A('s_mov_b32 vcc_lo, 0xcccccccc\ns_mov_b32 vcc_hi, 0xcccccccc')
    for i in range(4): A(f'v_cndmask_b32 v{40+i}, v{36+i}, v{32+i}, vcc\nv_cndmask_b32 v{32+i}, v{32+i}, v{36+i}, vcc')
    for i in range(4): A(f'v_add_f32_dpp v{32+i}, v{40+i}, v{32+i} quad_perm:[2,3,0,1] {FULL}')
    A('s_mov_b32 vcc_lo, 0xaaaaaaaa\ns_mov_b32 vcc_hi, 0xaaaaaaaa')
    for i in range(2): A(f'v_cndmask_b32 v{40+i}, v{34+i}, v{32+i}, vcc\nv_cndmask_b32 v{32+i}, v{32+i}, v{34+i}, vcc')
    for i in range(2): A(f'v_add_f32_dpp v{32+i}, v{40+i}, v{32+i} quad_perm:[1,0,3,2] {FULL}')
    r2 = 'v_cvt_pk_bf16_f32 v34, v32, v33\nv_lshlrev_b32 v32, 16, v34\nv_and_b32 v33, 0xffff0000, v34'
    if not nosr & 1: A(r2)
    A(f'v_mul_f32 v32, {SCALE:#x}, v32\nv_mul_f32 v33, {SCALE:#x}, v33')
    if not nosr & 2: A(r2)
    A('v_max_f32 v34, v32, v33')
    wred('v_max_f32', 34, 36)
    A(f'''v_sub_f32 v35, v32, v34
v_sub_f32 v36, v33, v34
v_mul_f32 v35, {LOG2E:#x}, v35
v_mul_f32 v36, {LOG2E:#x}, v36
v_exp_f32 v35, v35
v_exp_f32 v36, v36
v_add_f32 v35, v35, v36''')
    wred('v_add_f32', 35, 36)
    ST(11)
    A(f's_lshl_b32 s34, s29, 8\ns_add_u32 s34, s34, {WS_X}\nv_lshrrev_b32 v10, 2, v13\nv_add_u32 v10, s34, v10\n' + ('' if nox else 'global_load_dword v9, v10, s[26:27] sc1'))
    if noml: A('s_cmp_ge_u32 s30, 0\ns_cbranch_scc1 L_mlok')
    A(f'''v_min_u32 v34, -2, v34
v_min_u32 v35, -2, v35
v_lshl_add_u32 v37, v26, 1, v24
ds_write_b64 v37, v[34:35]
s_cmp_lg_u32 s28, 0
s_cbranch_scc1 L_mlwait''')
    ldsspin('ds_read_b128 v[40:43], v24\nds_read_b128 v[44:47], v24 offset:16',
            'v_max3_u32 v37, v40, v41, v42\nv_max3_u32 v37, v37, v43, v44\nv_max3_u32 v37, v37, v45, v46\nv_max_u32 v37, v37, v47\nv_cmp_eq_u32 vcc, -1, v37')
    ST(4)
    A(f'''s_lshl_b32 s35, s31, 8
s_add_u32 s35, s35, {WS_ML}
v_max3_f32 v48, v40, v42, v44
v_max_f32 v48, v48, v46''')
    for w in range(4): A(f'v_sub_f32 v{40+2*w}, v{40+2*w}, v48')
    for w in range(4): A(f'v_mul_f32 v{40+2*w}, {LOG2E:#x}, v{40+2*w}')
    for w in range(4): A(f'v_exp_f32 v{40+2*w}, v{40+2*w}')
    A('v_mov_b32 v49, s3\nv_mov_b32 v51, s3\nv_mul_f32 v50, v40, v41')
    for w in range(1, 4): A(f'v_fmac_f32 v50, v{40+2*w}, v{41+2*w}')
    A(f'''s_lshl4_add_u32 s34, s32, s35
v_mov_b32 v37, s34
s_mov_b64 exec, 1
global_store_dwordx4 v37, v[48:51], s[26:27] sc1
s_mov_b64 exec, -1''')
    L, Ld = lab('mg'), lab('mgd')
    A(f's_mov_b32 s62, {SPIN}\n{L}:\ns_sleep {mlsleep}\ns_load_dwordx16 s[64:79], s[26:27], s35 glc\ns_load_dwordx16 s[80:95], s[26:27], s35 offset:64 glc\ns_waitcnt lgkmcnt(0)')
    A('s_and_b32 s34, s65, s3\ns_or_b32 s47, s65, s3')
    for i in range(1, 16): A(f's_and_b32 s34, s34, s{65+2*i}\ns_or_b32 s47, s47, s{65+2*i}')
    A(f's_cmp_eq_u32 s34, s47\ns_cbranch_scc1 {Ld}\ns_sub_u32 s62, s62, 1\ns_cbranch_scc0 {L}\n{Ld}:')
    A('v_mov_b32 v34, s64')
    for c in range(1, 8): A(f'v_max_f32 v34, s{64+4*c}, v34')
    for c in range(8): A(f'v_sub_f32 v{40+c}, s{64+4*c}, v34')
    for c in range(8): A(f'v_mul_f32 v{40+c}, {LOG2E:#x}, v{40+c}')
    for c in range(8): A(f'v_exp_f32 v{40+c}, v{40+c}')
    A('v_mul_f32 v35, s66, v40')
    for c in range(1, 8): A(f'v_fmac_f32 v35, s{66+4*c}, v{40+c}')
    A(f'''v_rcp_f32 v35, v35
v_min_u32 v34, -2, v34
v_min_u32 v35, -2, v35
ds_write_b64 v24, v[34:35] offset:32
s_branch L_mlok
L_mlwait:''')
    ldsspin('ds_read_b64 v[34:35], v24 offset:32', 'v_max_u32 v37, v34, v35\nv_cmp_eq_u32 vcc, -1, v37', 1)
    A('L_mlok:')
    ST(5)
    A(f'''v_sub_f32 v32, v32, v34
v_sub_f32 v33, v33, v34
v_mul_f32 v32, {LOG2E:#x}, v32
v_mul_f32 v33, {LOG2E:#x}, v33
v_exp_f32 v32, v32
v_exp_f32 v33, v33
s_lshl_b32 s34, s28, 8
v_lshl_add_u32 v36, v0, 2, s34
v_mul_f32 v32, v32, v35
v_mul_f32 v33, v33, v35
v_cvt_pk_bf16_f32 v32, v32, v33
ds_write_b32 v36, v32 offset:{L_P}
''')
    if not cfgy: A(f'''s_cmp_lt_u32 s28, 2
s_cbranch_scc1 L_two
s_cmp_eq_u32 s28, 2
s_cselect_b32 s64, s16, s18
s_cselect_b32 s65, s17, s19
s_mov_b32 s66, {512*2752}
s_lshl_b32 s34, s30, 4
v_lshrrev_b32 v61, 2, v0
v_add_u32 v61, s34, v61
v_mul_u32_u24 v61, 2752, v61
v_and_b32 v62, 3, v0
v_lshlrev_b32 v62, 7, v62
v_min_u32 v62, 348, v62
s_mul_i32 s34, s29, 352
v_add3_u32 v61, v61, v62, s34
s_branch L_tj
L_two:
s_mov_b32 s64, s12
s_mov_b32 s65, s13
s_mov_b32 s66, {4096*1024}
s_lshl_b32 s34, s29, 5
s_add_u32 s34, s34, s30
s_lshl1_add_u32 s34, s34, s28
s_lshl_b32 s34, s34, 13
v_lshl_add_u32 v61, v0, 7, s34
L_tj:
s_mov_b32 s67, 0x20000''')
    if cfgy: A(f'''s_bitcmp1_b32 s28, 0
s_cselect_b32 s64, s18, s16
s_cselect_b32 s65, s19, s17
s_mov_b32 s66, {512*2752}
s_mov_b32 s67, 0x20000
s_and_b32 s34, s30, {31 if guall else 15}
s_lshr_b32 s35, s28, 1
s_lshl1_add_u32 s34, s34, s35
s_lshl_b32 s34, s34, {3 if guall else 4}
v_lshrrev_b32 v61, 2, v0
v_add_u32 v61, s34, v61
v_mul_u32_u24 v61, 2752, v61
v_and_b32 v62, 3, v0
v_lshlrev_b32 v62, 7, v62
v_min_u32 v62, 348, v62
s_mul_i32 s34, s29, 352
v_add3_u32 v61, v61, v62, s34''')
    def trigger(n):
        if True:
            L, Ld = lab('trig'), lab('trigd')
            A(f'''s_lshl_b32 s34, s29, 15
v_lshl_add_u32 v125, v13, 6, s34
s_mov_b32 s62, {SPIN}
{L}:
global_load_ubyte v126, v125, s[26:27] offset:{AOFF} sc1
s_and_b32 s34, s3, 0xff
s_waitcnt vmcnt(0)
v_cmp_eq_u32 vcc, s34, v126
s_bcnt1_i32_b32 s34, vcc_lo
s_cmp_ge_u32 s34, {n}
s_cbranch_scc1 {Ld}
s_sleep 2
s_sub_u32 s62, s62, 1
s_cbranch_scc0 {L}
{Ld}:''')
    def touch(when, role=None):
        if cfgy:
            if wox and when == 1 and role == 'x':
                A(f'''s_sub_u32 s34, s30, 27
s_lshl2_add_u32 s34, s34, s28
s_mul_i32 s34, s34, 52
v_add_u32 v127, s34, v0
v_min_u32 v127, 1023, v127
v_lshrrev_b32 v63, 7, v127
v_mul_u32_u24 v63, 384, v63
s_lshl_b32 s35, s29, 12
s_add_u32 s35, s35, 384
v_add3_u32 v127, v127, v63, s35
v_lshlrev_b32 v127, 7, v127
s_mov_b32 exec_hi, 0xfffff
global_load_dword v62, v127, s[12:13] {tf}
s_mov_b32 exec_hi, -1''')
            if when == wo1 and role != 'W':
                Ls = lab('nt')
                if role is None: A(f's_cmp_lt_u32 s30, 16\ns_cbranch_scc1 {Ls}')
                A(f'''s_and_b32 s34, s30, 15
s_lshl2_add_u32 s34, s34, s28
{wot}
s_mov_b32 exec_hi, 0
global_load_dword v62, v127, s[12:13] {tf}
s_mov_b32 exec_hi, -1
{Ls}:''')
            if gsplit and role is not None and role in gsr and when in (1, 2):
                m = (1 << gsplit) - 1
                m = m if when == 1 else ~m & (2**64 - 1)
                if m: A(f's_mov_b32 exec_lo, {m & 0xffffffff:#x}\ns_mov_b32 exec_hi, {m >> 32:#x}\nbuffer_load_dword v62, v61, s[64:67], 0 offen {tf}\ns_mov_b64 exec, -1')
            if when == 2 and edge and role == 'x':
                A(f'''s_mul_i32 s34, s29, 11
s_and_b32 s35, s34, 1
s_add_u32 s35, s35, 29
s_sub_u32 s48, s34, s30
s_add_u32 s48, s48, 26
s_sub_u32 s49, s30, s35
s_add_u32 s49, s49, s34
s_add_u32 s49, s49, 11
s_add_u32 s50, s34, 10
s_cmp_lt_u32 s30, s35
s_cselect_b32 s48, s48, s49
s_cselect_b32 s50, s34, s50
s_and_b32 s35, s48, 3
s_lshl2_add_u32 s35, s28, s35
s_lshl_b32 s35, s35, 5
v_and_b32 v63, 31, v0
v_add_u32 v63, s35, v63
v_mul_u32_u24 v63, 2752, v63
s_lshl_b32 s48, s48, 5
s_lshl_b32 s50, s50, 5
v_add_u32 v127, s48, v63
v_add_u32 v63, s50, v63
v_xor_b32 v127, v127, v63
v_min_u32 v63, {512*2752-4}, v63
v_cmp_gt_u32 vcc, 0x80, v127
s_mov_b32 exec_hi, 0
s_mov_b32 exec_lo, vcc_lo
global_load_dword v62, v63, s[16:17] {tf}
global_load_dword v62, v63, s[18:19] {tf}
s_mov_b64 exec, -1''')
            if guall and (when == guw if gut is None else (role is not None and when == gut['WFx'.index(role)])):
                A(f's_mov_b32 exec_hi, 0\nbuffer_load_dword v62, v61, s[64:67], 0 offen {tf}\ns_mov_b32 exec_hi, -1')
            elif not guall and when == guw and role != 'W' and not (gsplit and role in gsr):
                Ls = lab('nt')
                if role is None: A(f's_cmp_lt_u32 s30, 16\ns_cbranch_scc1 {Ls}')
                A(f'buffer_load_dword v62, v61, s[64:67], 0 offen {tf}\n{Ls}:')
            if when == dtouch and role == 'x':
                if fine == 2: A('s_waitcnt vmcnt(1)'); F2(1); A('s_waitcnt vmcnt(0)'); F2(2)
                if xbar and when == 2 and not tailtest: A('s_barrier')
                if dtrig: trigger(dtrig)
                A(f'''s_sub_u32 s34, s30, 27
s_lshl2_add_u32 s34, s34, s28
s_mul_i32 s34, s34, {71*128}
s_mul_i32 s35, s29, {176*1024}
s_add_u32 s34, s34, s35
v_lshl_add_u32 v63, v0, 7, s34
v_min_u32 v63, {1376*1024-4}, v63
global_load_dword v62, v63, s[20:21]
v_add_u32 v63, 0x2000, v63
v_min_u32 v63, {1376*1024-4}, v63
s_mov_b64 exec, 0x7f
global_load_dword v62, v63, s[20:21]
s_mov_b64 exec, -1''')
                if fine == 2: F2(3); A('s_waitcnt vmcnt(0)'); F2(4)
            return
        lo, hi = twhen[0] == when, twhen[1] == when
        if not (lo or hi): return
        Ls = lab('nt')
        if not (lo and hi): A(f's_cmp_lt_u32 s28, 2\ns_cbranch_scc{0 if lo else 1} {Ls}')
        A(f'buffer_load_dword v62, v61, s[64:67], 0 offen {tf}\n{Ls}:')
    ST(6)
    A(f'''s_getreg_b32 s34, hwreg(HW_REG_XCC_ID, 0, 4)
s_andn2_b32 s35, s3, 31
s_or_b32 s34, s34, s35
s_or_b32 s35, s34, 16
s_waitcnt vmcnt(0)
v_cmp_eq_u32 s[48:49], s34, v9
v_cmp_eq_u32 s[50:51], s35, v9
s_bcnt1_i32_b32 s48, s48
s_bcnt1_i32_b32 s50, s50
s_cmp_gt_u32 s50, s48
s_cselect_b32 s34, 0x2000, 0
v_mov_b32 v10, s34
''')
    if diag: A('s_sub_u32 s34, s50, s48\ns_add_u32 s34, s34, s98\nv_writelane_b32 v7, s34, 12')
    touch(0)
    if wo0: A(f'''s_lshl_b32 s34, s29, 5
s_add_u32 s34, s34, s30
s_lshl2_add_u32 s34, s34, s28
s_lshl_b32 s34, s34, 12
v_lshl_add_u32 v63, v0, 7, s34
s_mov_b32 exec_hi, 0
global_load_dword v62, v63, s[12:13] {tf}
s_mov_b32 exec_hi, -1''')
    tagreg(8, 5, 8)
    A(f'''v_mov_b32 v11, 0xff
s_lshl_b32 s47, s28, 13
s_add_u32 s47, s47, {L_W}            ; this wave's weight staging area
s_waitcnt lgkmcnt(0)''')
    if pol is not None: A(f's_lshr_b32 s34, s29, 2\ns_xor_b32 s34, s34, {pol}\ns_lshl_b32 s34, s34, 13\nv_mov_b32 v10, s34')
    if notail: A('s_cmp_ge_u32 s30, 0\ns_cbranch_scc1 L_norole')
    A('s_cmp_ge_u32 s30, 16\ns_cbranch_scc1 L_notw')
    def bars(early=None, role='x'):
        A('s_barrier')
        if amp: ST(20)
        if role == 'W': early()
        touch(1, role)
        if early and role != 'W': early()
        A('s_barrier' if vlast else 's_barrier\ns_barrier')
        F2(0)
        if amp: ST(21)
        if trig and role != 'W': trigger(trig)
        touch(2, role)
        ST(7)

    A(f'''s_lshl2_add_u32 s34, s29, s28
s_lshl_b32 s35, s34, 13
s_add_u32 s35, s35, {AOFF}
s_add_u32 s44, s26, s35
s_addc_u32 s45, s27, 0
s_lshl_b32 s34, s34, 17
s_lshl_b32 s35, s30, 6
s_add_u32 s34, s34, s35
s_add_u32 s40, s12, s34
s_addc_u32 s41, s13, 0
s_mov_b32 s42, {127*1024+64}
s_mov_b32 s43, 0x20000
v_lshrrev_b32 v14, 4, v0             ; g
v_bfe_u32 v15, v0, 2, 2
{'v_lshl_add_u32 v15, v15, 2, v14' if v4 else 'v_lshl_add_u32 v15, v14, 3, v15'}
v_and_b32 v32, 1, v14
{wrow if dppa else ''}
v_lshlrev_b32 v33, 1, v32
v_and_b32 v34, 3, v0
v_xor_b32 v33, v33, v34
v_lshlrev_b32 v33, 4, v33
v_lshl_add_u32 v15, v15, 10, v33
v_lshrrev_b32 v33, 2, v0
v_lshlrev_b32 v33, 6, v33
v_lshl_add_u32 v33, v34, 3, v33
v_lshl_add_u32 v33, v32, 5, v33
v_add_u32 v33, s47, v33
v_xor_b32 v34, 32, v33
v_lshrrev_b32 v35, 1, v13
v_lshl_add_u32 v35, v12, 2, v35
v_add_u32 v35, s46, v35
v_lshl_add_u32 v36, v14, 4, s46
s_lshl_b32 s34, s28, 2
s_add_u32 s34, s34, {L_RED}
v_add_u32 v37, s34, v13
s_and_b32 s34, s29, 4
s_add_u32 s34, s34, s29
s_lshl4_add_u32 s34, s34, s30
s_lshl_b32 s34, s34, 7
s_mul_i32 s35, s28, {0 if wlast else 32768}
s_add_u32 s34, s34, s35
s_add_u32 s34, s34, {WS_B}
s_add_u32 s56, s26, 0x8000
s_addc_u32 s57, s27, 0
s_add_u32 s58, s26, 0x10000
s_addc_u32 s59, s27, 0
s_add_u32 s68, s26, 0x18000
s_addc_u32 s69, s27, 0
v_lshrrev_b32 v38, 2, v13
v_lshl_add_u32 v38, v12, 13, v38
v_add_u32 v38, s34, v38''')
    if fresh:
        A(f'''v_and_b32 v50, 7, v0
v_and_b32 v51, 4, v50
v_add_u32 v50, v50, v51
v_lshl_add_u32 v50, v50, 11, v10
s_lshl_b32 s34, s30, 7
s_add_u32 s34, s34, {WS_B}
v_add_u32 v50, s34, v50              ; this slice's B line of every group''')
        tagreg(51, 50, 8)
    tagreg(9, 38, 8)
    tagmask(10, 38)
    if tlb & 1: A('s_mov_b64 exec, 1\nbuffer_load_dword v62, v15, s[40:43], 0 offen\ns_mov_b64 exec, -1')
    A('s_and_b32 s60, s30, 1\n' + f's_lshl_b32 s61, s60, {15 if dppa else 16}' + '\ns_lshl_b32 s60, s60, 12')
    def wl(a, b):
        for n in range(a, b):
            A(f's_xor_b32 s34, s60, {1024*n}\ns_add_u32 m0, s47, s34\ns_xor_b32 s34, s61, {((32*(n>>2)+(n&3) if v4 else 8*n) if dppa else 32*(n>>1)+(16 if v4 else 4)*(n&1))*1024}')
            A(f'buffer_load_dwordx4 v15, s[40:43], s34 offen {wf} lds')
    if apre:
        A('s_mov_b32 exec_lo, 0x01010101\ns_mov_b32 exec_hi, 0x01010101\ns_and_b32 s34, s30, 3\ns_lshl_b32 s34, s34, 10\nv_add_u32 v63, s34, v6\nglobal_load_dword v62, v63, s[44:45] sc1\ns_mov_b64 exec, -1')
    ws_ = wsplit if cfgy else 0
    bars(lambda: wl(0, ws_), 'W')
    wl(ws_, 8)
    touch(3, 'W')
    def whook(n):
        A(f's_waitcnt vmcnt({n})')
        ST(10)
        for t in range(4):
            for cb in range(2):
                for hf in range(2):
                    r = 128 + 8 * t + 4 * cb + 2 * hf
                    A(f'ds_read_b64_tr_b16 v[{r}:{r+1}], v{33+cb} offset:{1024*(2*t+hf)}')
    def aload(x):
        for n in range(4): A(f's_mov_b64 exec, s[{48+2*n}:{49+2*n}]\nglobal_load_dwordx4 v[{x+4*n}:{x+4*n+3}], v6, s[44:45] offset:{1024*n} sc1')
        A('s_mov_b64 exec, -1')
    for n in range(4): A(f's_mov_b64 s[{48+2*n}:{49+2*n}], -1')
    aload(96); whook(4)
    deep(aload, 4, [96], 120, 8, 39, 16, issued=True, masked=wmask, slp=wslp)
    ST(8)
    def bcast(src, dst, bank):
        return [f'v_mov_b32_dpp v{dst+i}, v{src} row_newbcast:{i} row_mask:0xf bank_mask:{bank:#x}' for i in range(16)]
    A(FS(0))
    A('v_cvt_pk_bf16_f32 v16, v16, v17')
    if dppa:
        mv = bcast(16, 64, 0xf)
        A('s_waitcnt lgkmcnt(0)')
        for o in mv[:6]: A(o)
        mv = mv[6:]
    else:
        A('ds_write_b32 v35, v16')
        for t in range(4): A(f'ds_read_b128 v[{64+4*t}:{67+4*t}], v36 offset:{64*t}')
    for t in range(4):
        if not dppa: A(f's_waitcnt lgkmcnt({3-t})')
        for cb in range(2):
            c = f'v[{40+4*cb}:{43+4*cb}]'
            A(f'v_mfma_f32_16x16x32_bf16 {c}, v[{64+4*t}:{67+4*t}], v[{128+8*t+4*cb}:{131+8*t+4*cb}], {c if t else 0}')
            if dppa:
                for o in mv[:2]: A(o)
                mv = mv[2:]
    if wlast:
        A(f'''{FS(1)}
s_mov_b64 exec, 0xffff
ds_write2_b32 v37, v40, v44 offset0:0 offset1:64
ds_write_b32 v26, v11 offset:{L_ML+96}
s_mov_b64 exec, -1
ds_read_b128 v[20:23], v24 offset:96
ds_read_b128 v[16:19], v13 offset:{L_RED}
s_waitcnt lgkmcnt(1)
{FS(2)}
v_min3_u32 v20, v20, v21, v22
v_min_u32 v20, v20, v23
v_cmp_ne_u32 vcc, 0, v20
s_waitcnt lgkmcnt(0)
v_pk_add_f32 v[16:17], v[16:17], v[18:19]
s_mov_b64 exec, vcc
v_add_f32 v16, v16, v17
v_bfi_b32 v16, v10, v9, v16
{FS(3)}
global_store_dword v38, v16, s[26:27] sc1
global_store_dword v38, v16, s[56:57] sc1
global_store_dword v38, v16, s[58:59] sc1
global_store_dword v38, v16, s[68:69] sc1
{FS(4)}''')
    else:
        A(f'''{FS(1)}
s_mov_b64 exec, 0xffff
s_cmp_lg_u32 s28, 0
ds_write2_b32 v37, v40, v44 offset0:0 offset1:64
s_mov_b64 exec, -1
{WK(2)}
s_waitcnt lgkmcnt(0)
{FS(2)}
s_barrier
{FS(3)}
{'' if rep4 else 's_cbranch_scc1 ' + ('L_wfresh' if fresh else 'L_wend')}
ds_read_b128 v[16:19], v13 offset:{L_RED}
{WK(3)}
s_waitcnt lgkmcnt(0)
{FS(4)}
v_pk_add_f32 v[16:17], v[16:17], v[18:19]
v_add_f32 v16, v16, v17
v_bfi_b32 v16, v10, v9, v16''')
        A('global_store_dword v38, v16, s[26:27] sc1')
    A(FS(5)); A(FS(6))
    if wb == 1: A('s_cmp_lg_u32 s30, 0\ns_cbranch_scc1 L_wend\nbuffer_wbl2 sc1\ns_waitcnt vmcnt(0)')
    A('L_wend:')
    def wfresh():
        A(f'L_wfresh:\ns_cmp_gt_u32 s28, {fresh}\ns_cbranch_scc1 L_wend\ns_mov_b64 exec, 0xff')
        poll([('global_load_dword v52, v50, s[26:27] sc1', 52)], 53, 51, 54)
        A('s_branch L_wend')
    if fresh: cold.append(wfresh)
    finish()

    A(f'''L_notw:
s_cmp_lt_u32 s30, 27
s_cbranch_scc1 L_rolef
s_cmp_lt_u32 s30, 28
s_cbranch_scc1 L_norole
s_cmp_lg_u32 s28, 0
s_cbranch_scc1 L_norole
s_lshl2_add_u32 s63, s29, s30
s_sub_u32 s63, s63, 28               ; reducer index
s_lshl_b32 s34, s63, 6
s_add_u32 s34, s34, {WS_C}
v_lshrrev_b32 v14, 2, v0
v_and_b32 v15, 12, v14
v_add_u32 v14, v14, v15
v_and_b32 v15, 3, v0
v_lshl_add_u32 v44, v14, 11, v10
v_lshl_add_u32 v44, v15, 4, v44
v_add_u32 v44, s34, v44''')
    for n in range(1, 6): A(f'v_add_u32 v{44+n}, {65536*n}, v44')
    A(f'''s_lshr_b32 s34, s63, 3
s_lshl_b32 s34, s34, 7
s_and_b32 s35, s63, 3
s_lshl_b32 s35, s35, 5
s_add_u32 s34, s34, s35
s_and_b32 s35, s63, 4
s_add_u32 s34, s34, s35
v_lshrrev_b32 v14, 4, v0
v_lshl_add_u32 v14, v15, 3, v14
v_add_u32 v14, s34, v14
v_lshlrev_b32 v51, 1, v14
global_load_ushort v43, v51, s[4:5]
s_lshl_b32 s34, s34, 2
s_and_b32 s35, s29, {3 if rep4 else 0}
s_lshl_b32 s35, s35, 15
s_add_u32 s34, s34, s35
s_add_u32 s34, s34, {WS_B}
v_bfe_u32 v50, v0, 2, 3
v_and_b32 v14, 4, v50
v_add_u32 v50, v50, v14
v_lshl_add_u32 v50, v50, 11, v10
v_lshl_add_u32 v50, v15, 5, v50
v_add_u32 v50, s34, v50
v_mov_b32 v52, {WS_E}
v_mov_b32 v53, s3''')
    tagreg(9, 50, 8)
    if tlb & 4: A('s_mov_b64 exec, 1\nglobal_load_ushort v62, v51, s[22:23]\ns_mov_b64 exec, -1')
    for x in (96, 128, 152, 176)[:max(rdep, 1)]: A(f'v_mov_b32 v{x+20}, v8\nv_mov_b32 v{x+21}, 0\nv_mov_b32 v{x+22}, 0\nv_mov_b32 v{x+23}, 0')
    bars()
    lds = [(f'global_load_dwordx4 v[{96+4*n}:{99+4*n}], v{44+n}, s[26:27] sc1', 96 + 4 * n) for n in range(6)]
    if cpre:
        for l in lds[:5]: A(l[0])
        A(f's_mov_b64 exec, 0xffffff\n{lds[5][0]}\ns_mov_b64 exec, -1')
    A('v_mov_b32 v36, v9\nv_mov_b32 v37, 0\nv_mov_b32 v38, 0\nv_mov_b32 v39, 0')
    poll([('s_mov_b32 exec_hi, 0\nglobal_load_dwordx4 v[36:39], v50, s[26:27] sc1\ns_mov_b32 exec_hi, -1', 36)], 40, 9, 42, slp=rb)
    ST(9)
    est = '''s_cmp_eq_u32 s63, 0
s_cselect_b32 exec_lo, 1, 0
s_mov_b32 exec_hi, 0
global_store_dword v52, v53, s[26:27] sc1
s_mov_b64 exec, -1'''
    if not eend: A(est)
    A(f'''v_permlane32_swap_b32 v40, v38
v_permlane32_swap_b32 v37, v39
v_permlane16_swap_b32 v40, v37
v_add_f32 v40, v40, v37
v_lshlrev_b32 v43, 16, v43
v_add_f32_dpp v40, v40, v40 row_ror:8 {FULL}
v_add_f32_dpp v40, v40, v40 row_ror:4 {FULL}
v_add_f32 v40, v40, v43''')
    rnd(40)
    if rslp: A(f's_sleep {rslp}')
    if rdep:
        def rload(x):
            for n in range(6): A(('s_mov_b64 exec, 0xffffff\n' if n == 5 else '') + f'global_load_dwordx4 v[{x+4*n}:{x+4*n+3}], v{44+n}, s[26:27] sc1')
            A('s_mov_b64 exec, -1')
        deep(rload, 6, [96, 128, 152, 176][:rdep], 120, 8, 42, 16, slp=cslp)
        ST(8)
    else:
        poll(lds, 120, 8, 42, part=0xffffff)
        ST(8)
        gsum(96, 120, 6, 16)
    A(f'''v_permlane16_swap_b32 v16, v17
v_add_f32 v16, v16, v17
v_add_f32_dpp v16, v16, v16 row_ror:8 {FULL}
v_add_f32_dpp v16, v16, v16 row_ror:4 {FULL}''')
    A(f'''v_add_f32 v16, v16, v40
v_cvt_pk_bf16_f32 v16, v16, v16
s_mov_b32 exec_lo, 0x000f000f
s_mov_b32 exec_hi, 0x000f000f
global_store_short v51, v16, s[22:23] {outf}
''')
    if eend: A(est)
    if dbgp:
        A('s_mov_b64 exec, 1\nv_mov_b32 v20, 0')
        for i, r in enumerate((26, 27, 6, 7, 8, 9, 12, 16, 18, 20, 22, 24, 4, 10)): A(f'v_mov_b32 v21, s{r}\nglobal_store_dword v20, v21, s[24:25] offset:{4*i}')
        A('global_store_dword v20, v10, s[24:25] offset:56')
    A('L_rend:')
    if amp:
        ST(14)
        A(f'''s_memrealtime s[96:97]
s_waitcnt lgkmcnt(0)
s_sub_u32 s98, s100, s98
{f's_mul_i32 s98, s98, {amp[2]}' if amp[2] else 's_lshr_b32 s98, s98, 1'}
{f's_mov_b32 s98, {amp[4]}' if len(amp) > 4 else ''}
s_cmp_lg_u32 s29, {amp[3] if amp[3] >= 0 else 's29'}
s_cbranch_scc1 L_ampd
L_amp:
s_memrealtime s[100:101]
s_waitcnt lgkmcnt(0)
s_sub_u32 s100, s100, s96
s_cmp_lt_u32 s100, s98
s_cbranch_scc1 L_amp
L_ampd:''')
    finish(True)
    A('L_norole:')
    if ((guw == 2 or dtouch == 2 or edge) if cfgy else 2 in twhen): bars()
    else:
        A('s_barrier'); touch(1, 'x')
    if wb == 2:
        A(f'''s_cmp_lg_u32 s30, 27
s_cbranch_scc1 L_nowb
s_cmp_lg_u32 s28, 0
s_cbranch_scc1 L_nowb
v_and_b32 v50, 7, v0
v_and_b32 v14, 4, v50
v_add_u32 v50, v50, v14
v_lshl_add_u32 v50, v50, 11, v10
v_add_u32 v50, {WS_B}, v50''')
        tagreg(9, 50, 8)
        poll([('global_load_dword v36, v50, s[26:27] sc1', 36)], 40, 9, 42, slp=2)
        if wbs: A(f's_sleep {wbs}')
        A('buffer_wbl2 sc1\ns_waitcnt vmcnt(0)\nL_nowb:')
    finish(2)

    page()
    A(f'''L_rolef:
s_mul_i32 s63, s29, 11
s_add_u32 s63, s63, s30
s_sub_u32 s63, s63, 16
s_cmp_ge_u32 s63, 86
s_cbranch_scc1 L_norole
s_mul_i32 s34, s28, {128*2752}
s_lshl_b32 s35, s63, 5
s_add_u32 s34, s34, s35
s_add_u32 s36, s16, s34
s_addc_u32 s37, s17, 0
s_mov_b32 s38, {127*2752+32}
s_mov_b32 s39, 0x20000
s_add_u32 s40, s18, s34
s_addc_u32 s41, s19, 0
s_mov_b32 s42, {127*2752+32}
s_mov_b32 s43, 0x20000
s_lshl_b32 s34, s63, 14
s_lshl_b32 s35, s28, 8
s_add_u32 s34, s34, s35
s_add_u32 s20, s20, s34
s_addc_u32 s21, s21, 0
s_add_u32 s4, s4, s35
s_addc_u32 s5, s5, 0
s_lshl_b32 s35, s28, 9
s_and_b32 s34, s29, {3 if rep4 else 0}
s_lshl_b32 s34, s34, 15
s_add_u32 s34, s34, s35
s_add_u32 s34, s34, {WS_B+4096}
s_add_u32 s44, s26, s34
s_addc_u32 s45, s27, 0
v_lshl_add_u32 v6, v12, 14, v13
v_add_u32 v6, v6, v10
v_bfe_u32 v14, v0, 3, 2
v_lshlrev_b32 v14, 3, v14
v_lshl_add_u32 v14, v12, 2, v14
v_bfe_u32 v15, v0, 1, 2
v_add_u32 v14, v14, v15
{frow if dppa else ''}
v_mul_u32_u24 v14, 2752, v14
v_and_b32 v15, 1, v0
v_lshl_add_u32 v15, v15, 4, v14
v_lshl_add_u32 v33, v0, 3, s47
v_lshrrev_b32 v36, 1, v13
v_lshl_add_u32 v36, v12, 2, v36      ; byte offset of this lane's bf16 pair inside 128 columns
v_add_u32 v37, s46, v36
v_and_b32 v38, 15, v0
v_lshrrev_b32 v14, 4, v0
v_lshlrev_b32 v34, 4, v38
v_lshl_add_u32 v34, v14, 10, v34
v_add_u32 v34, 0x1000, v34
v_add_u32 v35, 0x2000, v34
v_lshl_add_u32 v56, v14, 4, s46
v_mov_b32 v57, {L_RED+256}
v_cmp_eq_u32 vcc, 1, v38
v_cndmask_b32 v56, v56, v57, vcc
s_lshl_b32 s34, s28, 2
v_lshl_add_u32 v60, v12, 4, s34
s_lshl_b32 s34, s28, 3
s_add_u32 s34, s34, {L_OP}
v_mul_u32_u24 v57, 80, v38
v_add_u32 v57, s34, v57
{'v_lshl_add_u32 v57, v14, 2, v57' if dppa else ''}
{'s_lshl_b32 s34, s28, 2' + nl + 'v_xor_b32 v60, 1, v14' + nl + 'v_lshl_add_u32 v60, v60, 4, s34' if mstat else ''}
v_and_b32 v58, 12, v0
v_add_u32 v58, v58, v14
v_mul_u32_u24 v58, 80, v58
s_andn2_b32 s34, s63, 3
s_add_u32 s34, s34, s63
s_lshl2_add_u32 s34, s34, s28
s_lshl_b32 s34, s34, 9
s_add_u32 s34, s34, {WS_C}
v_lshl_add_u32 v59, v12, 13, v13
v_add_u32 v59, s34, v59
v_mov_b32 v44, 0x3f803f80
v_lshlrev_b32 v45, 2, v0
ds_write_b32 v45, v44 offset:{L_RED+256}
v_mov_b32 v63, {L_RED}
v_mov_b32 v46, {EPS:#x}
v_and_b32 v40, 1, v0
v_lshlrev_b32 v40, 4, v40
v_mov_b32 v41, 0xffff
v_lshlrev_b32 v40, v40, v41
v_bfe_u32 v41, v0, 1, 2
s_mov_b32 s60, 1
s_mov_b32 s61, 1''')
    if dppa:
        for i in range(16): A(f'v_mov_b32 v{72+i}, v44')
    if mstat: A('s_mov_b32 s60, 0x10001\ns_mov_b32 s61, 0')
    if early: A('s_lshl_b32 s34, s28, 3\nv_lshl_add_u32 v60, v12, 2, s34\nv_and_b32 v42, 3, v0\nv_lshl_add_u32 v58, v42, 4, v58')
    for w in range(4): A(f'v_cmp_eq_u32 vcc, {w}, v41\nv_cndmask_b32 v{48+w}, 0, v40, vcc')
    if tlb & 2: A('s_mov_b64 exec, 1\nbuffer_load_dword v62, v15, s[36:39], 0 offen\nbuffer_load_dword v62, v15, s[40:43], 0 offen\nglobal_load_dword v62, v34, s[20:21]\ns_mov_b64 exec, -1')
    def dloads():
        for n in range(4): A(f'global_load_dwordx4 v[{160+4*n}:{163+4*n}], v{34+(n>>1)}, s[20:21] offset:{4096*(n&1)-4096} {"" if dtouch else "nt"}')
    dp = dpos if cfgy else ('bar1' if dearly else 'first')
    A(f's_and_b32 s68, s63, {frot}\ns_lshl_b32 s34, s68, 6\nv_xor_b32 v37, s34, v37')
    def fl(a, b):
        for jm in range(a, b):
            j, m = jm >> 1, jm & 1
            if jm in fbar and jm >= fsplit: A('s_barrier')
            A(f's_xor_b32 s34, s68, {j}\ns_mul_i32 s34, s34, {(16 if dppa else 32)*2752}\ns_add_u32 m0, s47, {4096*m+1024*j}')
            A(f'buffer_load_dwordx4 v15, s[{36+4*m}:{39+4*m}], s34 offen {wf} lds')
    A('global_load_dword v32, v36, s[4:5]')
    if bpre:
        A('s_sub_u32 s34, s30, 16\ns_lshl_b32 s34, s34, 1\ns_mov_b64 exec, 0x01010101\ns_mov_b32 exec_hi, 0x01010101')
        A('s_and_b32 s34, s30, 3\ns_lshl_b32 s34, s34, 11\nv_add_u32 v9, s34, v6\nglobal_load_dword v62, v9, s[44:45] offset:-4096 sc1\ns_mov_b64 exec, -1')
    if dp == 'mid': dloads()
    def fearly():
        if dp == 'bar1': dloads()
        fl(0, fsplit)
    bars(fearly, 'F')
    if dp == 'first': dloads()
    fl(fsplit, 8)
    F2(1)
    if fine == 2: A('s_waitcnt vmcnt(8)')
    F2(2)
    if dp == 'last': dloads()
    def fhook(n, inner=None):
        n += 4 if dp == 'last' else 0
        for t in range(4):
            A(f's_waitcnt vmcnt({n + 6 - 2 * t})')
            F2(3 + t)
            if inner and t == late - 1: n += inner()
            if t == 3:
                ST(10)
                if inner and repoll and late < 4: fload(96)
            for m in range(2):
                for hf in range(2):
                    r = 128 + 16 * m + 4 * t + 2 * hf
                    A(f'ds_read_b64_tr_b16 v[{r}:{r+1}], v33 offset:{4096*m+1024*t+512*hf}')
            if t == 0: A('v_and_b32 v41, 0xffff0000, v32\nv_lshlrev_b32 v40, 16, v32')
    def gemv(a, between=None):
        for t in range(4):
            if between: between(t)
            for m in range(2):
                c = f'v[{64+4*m}:{67+4*m}]'
                A(f'v_mfma_f32_16x16x32_bf16 {c}, v[{a(t)}:{a(t)+3}], v[{128+16*m+4*t}:{131+16*m+4*t}], {c if t else 0}')
    if fdep:
        def fload(x):
            for n in range(4): A((f's_mov_b64 exec, s[{48+2*n}:{49+2*n}]\n' if fmask else '') + f'global_load_dwordx4 v[{x+4*n}:{x+4*n+3}], v6, s[44:45] offset:{2048*n-4096} sc1')
            if fmask: A('s_mov_b64 exec, -1')
        if fmask:
            for n in range(4): A(f's_mov_b64 s[{48+2*n}:{49+2*n}], -1')
        if ftrig:
            fload(96)
            A('s_and_b32 s34, s29, 4\ns_add_u32 s34, s34, s29\ns_lshl_b32 s34, s34, 11\nv_and_b32 v9, 1, v0\nv_lshl_add_u32 v9, v9, 4, s34\nv_add_u32 v9, v9, v10')
            poll([('global_load_dword v124, v9, s[44:45] offset:-4096 sc1', 124)], 120, 8, 42, hook=lambda n: fhook(5), slp=1)
        def inner():
            if dp == 'in': dloads()
            fload(96)
            return 8 if dp == 'in' else 4
        if late: fhook(0, inner)
        elif not ftrig and not fpeel: fhook(0)
        deep(fload, 4, [96, 176, 192, 208][:fdep], 120, 8, 42, 16, hook=fhook if fpeel and not ftrig else None, issued=bool(late), masked=fmask, slp=fslp)
        ST(8)
    else:
        poll([(f'global_load_dwordx4 v[{96+4*n}:{99+4*n}], v6, s[44:45] offset:{2048*n-4096} sc1', 96 + 4 * n) for n in range(4)], 120, 8, 42, hook=fhook)
        ST(8)
        gsum(96, 120, 4, 16)
    A(f'''{FS(0)}
v_pk_add_f32 v[16:17], v[16:17], v[40:41]
v_cvt_pk_bf16_f32 v18, v16, v17
''')
    if dppa:
        mv = bcast(18, 72, 0xd)
        st = [['v_permlane32_swap_b32 v16, v17', 'v_add_f32 v16, v16, v17']] + [[f'v_add_f32_dpp v16, v16, v16 row_ror:{r} {FULL}'] for r in (8, 4, 2)]
        st += [[f'v_add_f32_dpp v16, v16, v16 row_ror:1 {FULL}', 'v_mov_b32 v17, v16'], [], ['v_permlane16_swap_b32 v16, v17', 'v_add_f32 v16, v16, v17'], []]
        if early:
            dpp = lambda r: f'v_add_f32_dpp v16, v16, v16 row_ror:{r} {FULL}'
            A('v_dot2_f32_bf16 v16, v18, v44, 0\nv_dot2_f32_bf16 v17, v18, v18, 0\ns_waitcnt lgkmcnt(0)')
            mv = mv[:2] + ['v_permlane32_swap_b32 v16, v17'] + mv[2:4] + ['v_add_f32 v16, v16, v17'] + mv[4:]
            for o in mv[:2]: A(o)
            mv = mv[2:]
            st = [[dpp(8)], [dpp(4)], [dpp(2)], [dpp(1), 'v_mov_b32 v17, v16'], ['v_permlane16_swap_b32 v16, v17', 'v_add_f32 v16, v16, v17'], [f's_mov_b64 exec, s[60:61]\nds_write_b32 v60, v16 offset:{L_RED}\ns_mov_b64 exec, -1'], [], []]
        elif mstat: A('s_waitcnt lgkmcnt(0)')
        else: A('v_dot2_f32_bf16 v16, v18, v44, 0\nv_dot2_f32_bf16 v17, v18, v18, 0\ns_waitcnt lgkmcnt(0)')
        for o in mv[:6]: A(o)
        mv = mv[6:]
        dl = [f'global_load_dwordx4 v[{160+4*n}:{163+4*n}], v{34+(n>>1)}, s[20:21] offset:{4096*(n&1)-4096}' for n in range(4)] if dp == 'post' else []
        for t in range(4):
            if mstat: A(f'v_mfma_f32_16x16x32_bf16 v[88:91], v[{72+4*t}:{75+4*t}], v[{72+4*t}:{75+4*t}], {"v[88:91]" if t else 0}')
            for m in range(2):
                c = f'v[{64+4*m}:{67+4*m}]'
                A(f'v_mfma_f32_16x16x32_bf16 {c}, v[{72+4*t}:{75+4*t}], v[{128+16*m+4*t}:{131+16*m+4*t}], {c if t else 0}')
                if dl: A(dl.pop(0))
                for o in mv[:2]: A(o)
                mv = mv[2:]
                if not mstat:
                    for o in st.pop(0): A(o)
    else:
        A('ds_write_b32 v37, v18')
        for t in range(4): A(f'ds_read_b128 v[{72+4*t}:{75+4*t}], v56 offset:{64*t}')
        if dp == 'post': dloads()
        A('v_dot2_f32_bf16 v16, v18, v44, 0\nv_dot2_f32_bf16 v17, v18, v18, 0\nv_permlane32_swap_b32 v16, v17\nv_add_f32 v16, v16, v17')
        for r in (8, 4): A(f'v_add_f32_dpp v16, v16, v16 row_ror:{r} {FULL}')
        def between(t):
            if t == 1: A(f'v_add_f32_dpp v16, v16, v16 row_ror:2 {FULL}')
            if t == 2: A(f'v_add_f32_dpp v16, v16, v16 row_ror:1 {FULL}\nv_mov_b32 v17, v16')
            if t == 3: A('v_permlane16_swap_b32 v16, v17\nv_add_f32 v16, v16, v17')
            A(f's_waitcnt lgkmcnt({3-t})')
        gemv(lambda t: 72 + 4 * t, between)
    if early:
        A(f'''{FS(1)}
s_mov_b32 exec_hi, 0
ds_write2_b32 v57, v64, v68 offset0:0 offset1:8
s_mov_b32 exec_hi, -1
s_waitcnt lgkmcnt(1)
s_barrier
ds_read_b128 v[24:27], v63
ds_read_b128 v[28:31], v63 offset:16
{WK(0)}
s_waitcnt lgkmcnt(2)
{FS(2)}
s_barrier
{FS(3)}
ds_read_b128 v[16:19], v58 offset:{L_OP}
{WK(1)}
s_waitcnt lgkmcnt(1)
v_pk_add_f32 v[24:25], v[24:25], v[26:27]
v_pk_add_f32 v[28:29], v[28:29], v[30:31]
v_pk_add_f32 v[24:25], v[24:25], v[28:29]
v_mul_f32 v24, 0xbb000000, v24       ; -mean
v_fmamk_f32 v28, v25, 0x3b000000, v46
v_fma_f32 v28, -v24, v24, v28
v_max_f32 v28, v28, v46
v_rsq_f32 v29, v28
s_waitcnt lgkmcnt(0)
{FS(4)}
v_pk_add_f32 v[16:17], v[16:17], v[18:19]
v_fmac_f32 v16, v24, v17
v_rcp_f32 v28, v28
v_mul_f32 v29, {LOG2E ^ 0x80000000:#x}, v29
v_add_f32_dpp v16, v16, v16 quad_perm:[1,0,3,2] {FULL}
v_mul_f32 v17, v16, v29
v_exp_f32 v17, v17
v_mul_f32_dpp v18, v16, v16 quad_perm:[2,3,0,1] {FULL}
v_add_f32 v17, 1.0, v17
v_rcp_f32 v17, v17
v_mul_f32 v18, v18, v28
v_mul_f32 v16, v18, v17
v_cvt_pk_bf16_f32 v16, v16, v16''')
    else:
        A(f'''{FS(1)}
s_mov_b64 exec, s[60:61]
ds_write_b32 v60, v{88 if mstat else 16} offset:{L_RED}
{'s_mov_b32 exec_lo, -1' + nl + 's_mov_b32 exec_hi, 0' + nl + 'ds_write2_b32 v57, v64, v68 offset0:0 offset1:8' if dppa else 's_mov_b64 exec, 0xffff' + nl + 'ds_write2_b64 v57, v[64:65], v[68:69] offset0:0 offset1:4'}
s_mov_b64 exec, -1
s_waitcnt lgkmcnt(0)''')
        ST(9)
        A(f'''{FS(2)}
s_barrier
{FS(3)}
ds_read_b128 v[24:27], v63
ds_read_b128 v[28:31], v63 offset:16
ds_read_b128 v[16:19], v58 offset:{L_OP}
ds_read_b128 v[20:23], v58 offset:{L_OP+16}
ds_read_b128 v[72:75], v58 offset:{L_OP+32}
ds_read_b128 v[76:79], v58 offset:{L_OP+48}
s_waitcnt lgkmcnt(4)
{FS(4)}
v_pk_add_f32 v[24:25], v[24:25], v[26:27]
v_pk_add_f32 v[28:29], v[28:29], v[30:31]
v_add_f32 v24, v24, v25
v_add_f32 v28, v28, v29
v_mul_f32 v24, 0xbb000000, v24       ; -mean
v_fmamk_f32 v28, v28, 0x3b000000, v46
v_fma_f32 v28, -v24, v24, v28
v_max_f32 v28, v28, v46
v_rsq_f32 v28, v28
s_waitcnt lgkmcnt(2)
v_pk_add_f32 v[16:17], v[16:17], v[18:19]
v_pk_add_f32 v[20:21], v[20:21], v[22:23]
v_mul_f32 v29, {LOG2E ^ 0x80000000:#x}, v28
v_pk_add_f32 v[16:17], v[16:17], v[20:21]
v_fmac_f32 v16, v24, v17
v_mul_f32 v17, v16, v29
v_exp_f32 v17, v17
s_waitcnt lgkmcnt(0)
v_pk_add_f32 v[72:73], v[72:73], v[74:75]
v_add_f32 v17, 1.0, v17
v_rcp_f32 v17, v17
v_pk_add_f32 v[76:77], v[76:77], v[78:79]
v_mul_f32 v16, v16, v28              ; gate
v_pk_add_f32 v[72:73], v[72:73], v[76:77]
v_mul_f32 v16, v16, v17              ; silu(gate)
v_fmac_f32 v72, v24, v73
v_mul_f32 v16, v16, v28
v_mul_f32 v16, v16, v72
v_cvt_pk_bf16_f32 v16, v16, v16''')
    A(FS(5))
    if dp == 'post': A('s_waitcnt vmcnt(0)')
    ops = [f'v_and_b32_dpp v{72+4*n+w}, v16, v{48+w} row_newbcast:{4*n} {FULL}' for n in range(4) for w in range(4)]
    for n in range(4):
        for o in ops[(4 * n + 2 if n else 0):4 * n + 6]: A(o)
        A(f'v_mfma_f32_16x16x32_bf16 v[64:67], v[{72+4*n}:{75+4*n}], v[{160+4*n}:{163+4*n}], {"v[64:67]" if n else 0}')
    A('v_bfi_b32 v64, v11, v8, v64\nglobal_store_dwordx4 v59, v[64:67], s[26:27] sc1')
    A(FS(6))
    finish()

    page()
    A(f'''L_vwave:
s_add_u32 s36, s8, s34
s_addc_u32 s37, s9, 0
s_lshl3_add_u32 s35, s31, s32
s_lshl_b32 s35, s35, 10
s_add_u32 s44, s26, s35
s_addc_u32 s45, s27, 0
v_mov_b32 v56, {L_ML}
s_lshr_b32 s56, s2, 6
s_lshl_b32 s56, s56, 7
s_and_b32 s35, s2, 63
s_add_u32 s56, s56, s35
s_lshl_b32 s56, s56, 7
s_add_u32 s56, s56, {WS_PR}
s_cmp_lg_u32 s28, {99 if nox else 5}
s_cbranch_scc1 L_nowarm
s_load_dword s54, s[26:27], s56 glc
s_load_dword s55, s[26:27], s56 offset:0x2000 glc
L_nowarm:''')
    ST(7)
    selectors(40, 28)
    A(f'''s_lshl_b32 s34, s63, 10
s_add_u32 s34, s34, {L_OP}
v_lshrrev_b32 v12, 5, v0
v_lshl_add_u32 v12, v12, 9, s34
v_lshl_add_u32 v12, v4, 2, v12
v_bfe_u32 v13, v0, 4, 1
v_lshl_add_u32 v12, v13, 5, v12
v_lshlrev_b32 v14, 3, v0
s_lshl_b32 s34, s32, 5
s_add_u32 s34, s34, s63
s_lshl_b32 s34, s34, 2
v_lshl_add_u32 v6, v3, 4, s34
v_mov_b32 v57, 1
s_waitcnt vmcnt(4)''')
    ST(1)
    layernorm(24, 28, 24)
    A(f'ds_write_b128 v5, v[24:27] offset:{L_H}\ns_waitcnt lgkmcnt(0)\nds_read_b32 v48, v6 offset:{L_H}\ns_add_u32 s3, s3, {EPOCH_STEP:#x}')
    tagreg(8, 14, 4)
    A('s_waitcnt lgkmcnt(0)')
    for n in range(2): afrag(24 + 4 * n, 48, n, 40)
    A('s_waitcnt vmcnt(0)')
    for n in range(2):
        for hf in range(2):
            c = f'v[{16+4*hf}:{19+4*hf}]'
            A(f'v_mfma_f32_16x16x32_bf16 {c}, v[{24+4*n}:{27+4*n}], v[{64+8*n+4*hf}:{67+8*n+4*hf}], {c if n else 0}')
    def part_write():
        A(f'''s_mov_b32 exec_lo, 0x00ff00ff
s_mov_b32 exec_hi, 0xff00ff00
ds_write2_b64 v12, v[16:17], v[20:21] offset0:0 offset1:1
ds_write2_b64 v12, v[18:19], v[22:23] offset0:2 offset1:3''')
    def part_sum(off):
        for n in range(4): A(f'ds_read_b128 v[{16+4*n}:{19+4*n}], v5 offset:{L_OP+1024*n}')
        A('s_waitcnt lgkmcnt(0)')
        sum8(16)
    part_write()
    A(f'''s_mov_b64 exec, 1
s_waitcnt lgkmcnt(0)
ds_add_u32 v56, v57 offset:48
s_mov_b64 exec, -1
s_cmp_lg_u32 s28, {99 if noq else 4}
s_cbranch_scc1 L_vstream
''')
    ldsspin('ds_read_b32 v15, v56 offset:48', 'v_cmp_ne_u32 vcc, 4, v15')
    part_sum(0)
    A('v_and_or_b32 v16, v16, -16, v8\nv_and_or_b32 v17, v17, -16, v8\nglobal_store_dwordx2 v14, v[16:17], s[44:45] ' + qst)
    ST(2)
    A(f'''L_vstream:
{'s_mov_b64 exec, 1' + nl + 'buffer_load_dword v29, v2, s[36:39], s33 offen nt' + nl + 's_mov_b64 exec, -1' if tlb & 8 else ''}
s_setprio 0
s_cmp_lg_u32 s28, {99 if nox else 5}
s_cbranch_scc1 L_noprobe
s_mov_b32 s54, {0 if psum else -1}
s_mov_b32 s55, {0 if psum else -1}
s_waitcnt lgkmcnt(0)''')
    for i in range(2 * nprobe):
        A(f's_memtime s[50:51]\ns_load_dword s35, s[26:27], s56 offset:{0x2000 * (i & 1)} glc\ns_waitcnt lgkmcnt(0)\ns_memtime s[52:53]\ns_waitcnt lgkmcnt(0)\ns_sub_u32 s35, s52, s50\n{"s_add_u32" if psum else "s_min_u32"} s{54 + (i & 1)}, s{54 + (i & 1)}, s35')
    A(f'''s_getreg_b32 s34, hwreg(HW_REG_XCC_ID, 0, 4)
s_andn2_b32 s35, s3, 31
s_or_b32 s34, s34, s35
s_cmp_lt_u32 s55, s54
s_cselect_b32 s35, 16, 0
s_or_b32 s34, s34, s35
v_mov_b32 v31, s34
s_lshl_b32 s34, s29, 6
s_add_u32 s34, s34, s30
s_lshl_b32 s34, s34, 2
s_add_u32 s34, s34, {WS_X}
v_mov_b32 v30, s34
s_mov_b64 exec, 1
global_store_dword v30, v31, s[26:27] {xst}
s_mov_b64 exec, -1
L_noprobe:
s_lshl_b32 s34, s63, 2
v_mov_b32 v28, s34''')
    ST(8)
    ldsspin(f'ds_read_b32 v15, v28 offset:{L_ML+64}', 'v_cmp_eq_u32 vcc, 0, v15', 1)
    A(f'''s_lshl_b32 s34, s29, 8
s_add_u32 s34, s34, {WS_X}
v_and_b32 v30, 31, v0
v_lshl_add_u32 v30, v30, 2, s34
s_getreg_b32 s34, hwreg(HW_REG_XCC_ID, 0, 4)
s_andn2_b32 s46, s3, 31
s_or_b32 s46, s46, s34''')
    tv = thrv or thr
    stream({xpos: 'global_load_dword v31, v30, s[26:27] sc1',
            xpos + tv: f'''v_and_b32 v31, -17, v31
v_cmp_ne_u32 s[48:49], s46, v31
s_cmp_eq_u64 s[48:49], {"s[48:49]" if nox else (1 if slowall else 0)}
s_cselect_b64 s[50:51], -1, 0
s_cselect_b64 s[52:53], 0, -1
s_cbranch_scc0 L_requeue
L_requeued:'''}, tv, extra_at=xpos, slow=slowv)
    cold.append(lambda: A('''L_requeue:
s_cmp_lg_u32 s28, 4
s_cbranch_scc1 L_requeued
global_store_dwordx2 v14, v[16:17], s[44:45] sc1
s_waitcnt vmcnt(0)
s_branch L_requeued'''))
    A('v_mov_b32 v11, 0xff')
    if vprio == 0: A('s_setprio 3')
    if sq: A(f'''s_lshl2_add_u32 s54, s30, s63
s_andn2_b32 s55, s54, 15
s_mul_i32 s55, s55, 3
s_add_u32 s54, s54, s55
s_mul_i32 s54, s54, 2752
s_mul_i32 s55, s29, 352
s_andn2_b32 s55, s55, 63
s_min_u32 s55, s55, {2752-384}
s_add_u32 s54, s54, s55''')
    if v4:
        A(f'''s_mul_i32 s34, s63, {2*528}
s_add_u32 s34, s34, {L_OP}
v_lshrrev_b32 v12, 5, v0
v_mul_u32_u24 v12, 528, v12
v_lshl_add_u32 v12, v4, 1, v12
v_bfe_u32 v13, v0, 4, 1
v_lshl_add_u32 v12, v13, 4, v12
v_add_u32 v12, s34, v12
s_lshl_b32 s34, s63, 7
v_mul_u32_u24 v13, 528, v3
v_add3_u32 v13, v13, v4, s34
v_add_u32 v13, {L_OP}, v13
v_lshrrev_b32 v14, 4, v0
v_lshlrev_b32 v14, 5, v14
v_lshrrev_b32 v15, 2, v4
v_add3_u32 v14, v14, v15, s34        ; position inside the A record
s_and_b32 s50, s50, 0x00ff00ff
s_and_b32 s51, s51, 0x00ff00ff
s_and_b32 s52, s52, 0x00ff00ff
s_and_b32 s53, s53, 0x00ff00ff''')
    tagreg(8, 14, 8)
    tagmask(10, 14)
    ST(3)
    A(f'''s_lshl_b32 s34, s63, 8
v_lshl_add_u32 v6, v3, 5, s34
s_barrier''')
    ST(4)
    A(f'ds_read_b128 v[48:51], v6 offset:{L_P}\nds_read_b128 v[52:55], v6 offset:{L_P+16}\ns_waitcnt lgkmcnt(0)')
    for i in range(16): afrag(64 + 4 * i, 48 + i // 2, i & 1, 40)
    for i in range(16):
        for hf in range(2):
            if vprio == 1 and (i, hf) == (12, 0): A('s_setprio 3')
            if vfill and i >= 13 and hf == 0:
                Lw = lab('busy')
                A(f'{Lw}:\nv_mov_b32 v1, v1\ns_getreg_b32 s34, hwreg(HW_REG_IB_STS, 0, 4)\ns_cmp_gt_u32 s34, {31-2*i}\ns_cbranch_scc1 {Lw}')
            if hf == 0 or i >= 12: A(f's_waitcnt vmcnt({31-2*i-hf if i >= 12 else 30-2*i})')
            c = f'v[{16+4*hf}:{19+4*hf}]'
            A(f'v_mfma_f32_16x16x32_bf16 {c}, v[{64+4*i}:{67+4*i}], v[{128+8*i+4*hf}:{131+8*i+4*hf}], {c if i else 0}')
    def stouch():
        for t in sq:
            for m in range(2):
                for j in range(6): A(f's_load_dword s35, s[{16+2*m}:{17+2*m}], s54 offset:{16*t*2752+64*j}')
    def ttwait():
        stouch()
        A(f'''s_barrier
L_tt:
s_memrealtime s[96:97]
s_waitcnt lgkmcnt(0)
s_sub_u32 s96, s96, s98
s_cmp_lt_u32 s96, {tailtest}
s_cbranch_scc1 L_tt''')
    if vlast:
        if tailtest: ttwait()
        part_write()
        A(f'ds_write_b32 v28, v11 offset:{L_ML+80}\ns_mov_b64 exec, -1\nds_read_b128 v[32:35], v56 offset:80')
        for n in range(4): A(f'ds_read_b128 v[{64+4*n}:{67+4*n}], v5 offset:{L_OP+1024*n}')
        A(f'''s_waitcnt lgkmcnt(4)
v_min3_u32 v32, v32, v33, v34
v_min_u32 v32, v32, v35
v_cmp_ne_u32 vcc, 0, v32
s_waitcnt lgkmcnt(2)
v_pk_add_f32 v[64:65], v[64:65], v[68:69]
v_pk_add_f32 v[66:67], v[66:67], v[70:71]
s_and_b64 s[50:51], s[50:51], vcc
s_and_b64 s[52:53], s[52:53], vcc
s_waitcnt lgkmcnt(0)
v_pk_add_f32 v[72:73], v[72:73], v[76:77]
v_pk_add_f32 v[74:75], v[74:75], v[78:79]
v_pk_add_f32 v[64:65], v[64:65], v[72:73]
v_pk_add_f32 v[66:67], v[66:67], v[74:75]
v_permlane32_swap_b32 v64, v66
v_permlane32_swap_b32 v65, v67
v_pk_add_f32 v[64:65], v[64:65], v[66:67]
v_bfi_b32 v64, v10, v8, v64
s_mov_b64 exec, s[50:51]
global_store_dwordx2 v14, v[64:65], s[44:45] offset:{AOFF}
s_mov_b64 exec, s[52:53]
global_store_dwordx2 v14, v[64:65], s[44:45] offset:{AOFF} sc1''')
    elif v4:
        A(f'''s_mov_b32 exec_lo, 0x00ff00ff
s_mov_b32 exec_hi, 0xff00ff00
ds_write_b128 v12, v[16:19]
ds_write_b128 v12, v[20:23] offset:256
s_mov_b64 exec, -1
{WK(4)}
s_waitcnt lgkmcnt(0)''')
        ST(5)
        A('s_barrier')
    else:
        part_write()
        A('s_mov_b64 exec, -1\ns_waitcnt lgkmcnt(0)')
        ST(5)
        A('s_barrier\ns_cmp_lg_u32 s28, 4\ns_cbranch_scc1 L_vend')
    if tailtest and not vlast: ttwait()
    if v4:
        A(f'''ds_read_b128 v[16:19], v13
{WK(5)}
s_waitcnt lgkmcnt(0)
v_permlane32_swap_b32 v16, v18
v_permlane32_swap_b32 v17, v19
v_pk_add_f32 v[16:17], v[16:17], v[18:19]
v_permlane16_swap_b32 v16, v17
v_add_f32 v16, v16, v17
v_add_f32_dpp v16, v16, v16 row_ror:8 {FULL}
s_mov_b64 exec, s[50:51]
v_bfi_b32 v17, v10, v8, v16
global_store_dword v14, v17, s[44:45] offset:{AOFF}
s_mov_b64 exec, s[52:53]
v_bfi_b32 v16, v10, v8, v16
global_store_dword v14, v16, s[44:45] offset:{AOFF} sc1''')
    elif not vlast:
        part_sum(512)
        A('v_bfi_b32 v16, v10, v8, v16')
        A(f's_mov_b64 exec, s[50:51]\nglobal_store_dwordx2 v14, v[16:17], s[44:45] offset:{AOFF}\ns_mov_b64 exec, s[52:53]')
        A(f'global_store_dwordx2 v14, v[16:17], s[44:45] offset:{AOFF} sc1')
    ST(6)
    A(('' if tailtest else 's_barrier\n') + 'L_vend:')
    if not tailtest: stouch()
    finish()
    A(f'L_exit:\ns_endpgm\nL_code_end:\n.fill (L_pc+{33*(1024 if pf == 3 else 512)}-L_code_end)/4, 4, 0xbf810000')
    A.raw(f'''.section .rodata,"a"
.p2align 6
.amdhsa_kernel {NAME}_kernel
  .amdhsa_next_free_vgpr 256
  .amdhsa_next_free_sgpr 102
  .amdhsa_accum_offset 256
  .amdhsa_group_segment_fixed_size 0
  .amdhsa_kernarg_size 96
  .amdhsa_user_sgpr_count 2
  .amdhsa_user_sgpr_kernarg_segment_ptr 1
  .amdhsa_system_sgpr_workgroup_id_x 1
  .amdhsa_float_denorm_mode_32 3
.end_amdhsa_kernel''')
    return A.text()

def STAMPS(al, roles, KW, VW):
    import numpy as np
    return [('start', al, KW + VW, 0), ('V at vwave', al, VW, 7), ('Q: x landed', al, VW, 1), ('Q: stored', al, [4], 2), ('V probed', al, VW, 8), ('probe/100 lo', np.arange(256) % 8 < 4, KW, 12), ('probe/100 hi', np.arange(256) % 8 >= 4, KW, 12), ('K issued', al, KW, 1), ('K go', al, KW, 2),
            ('K q gathered', al, KW, 3), ('K qk done', al, KW, 11), ('K ml lds', al, [0], 4), ('K ml gathered', al, KW, 5), ('K p written', al, KW, 6),
            ('V issued', al, VW, 3), ('V bar1', al, VW, 4), ('V pv done', al, VW, 5), ('A stored', al, VW, 6), ('K bar3', al, KW, 7),
            ('W wts landed', roles == 'W', KW, 10), ('F wts landed', roles == 'F', KW, 10),
            ('W gathered', roles == 'W', KW, 8), ('W end', roles == 'W', KW, 15), ('F gathered', roles == 'F', KW, 8), ('F gemv done', roles == 'F', KW, 9),
            ('F end', roles == 'F', KW, 15), ('R h seen', roles == 'R', [0], 9), ('R gathered', roles == 'R', [0], 8), ('R end', roles == 'R', [0], 15)]

if __name__ == '__main__':
    out = sys.argv[1] if len(sys.argv) > 1 else f'cdna_kernels/{NAME}.s'
    kw = eval('dict(' + (sys.argv[2] if len(sys.argv) > 2 else '') + ')')
    open(out, 'w').write(gen(**kw))
```

```python
import sys
from asmlib import Asm

NAME = 'sequential_preLN__sliding_block_cached__swiglu_ffn__decode'
WS_QA, WS_B, WS_PR, WS_ML, WS_X, WS_E, WS_C, WS_ST = 0x0, 0x40000, 0x60000, 0x70000, 0x72000, 0x73000, 0x80000, 0x100000
EPOCH_STEP = 0x5bd1e3c7
L_P, L_OP, L_SCR, L_H, L_RED, L_ML, L_Q, L_W = 0x0, 0x400, 0x1600, 0x1a00, 0x1e00, 0x2000, 0x2100, 0x2400
LDS_BYTES = L_W + 0x8000
SPIN = 0x40000
LOG2E = 0x3fb8aa3b
SCALE = 0x3db504f3
EPS = 0x3727c5ac
FULL = 'row_mask:0xf bank_mask:0xf'
nl = '\n'

def gen(diag=False, span=False, lite=False, amp=None, mlsleep=2, kvf='nt', kpre=3, twhen=(1, 1), tf='', wf='', thr=8, gow=4, qpos=24,
        dearly=True, thrv=None, notail=False, noml=False, noq=False, tailtest=0, psleep=0, nosr=0, afast=True, pages=True, pf=2, fdep=1, rdep=1, ftrig=False, pol=None, nprobe=2, psum=False, cfgy=True, guw=2, wsplit=2, dpos='post', wo0=False, trig=0, tlb=0, outf='', slowk=(), slowv=(), slowif='ge', fsplit=0, dtouch=2, frot=0, fpeel=False, bpre=False, apre=False, nox=False, qst='', xst='', xpos=12, wo1=1, late=4, fbar=(), xbar=True, guall=False, edge=False, repoll=False, gut=None, dbgp=False, rot=(0, 4, 1), v4=True, wqm=0, cpre=True, rslp=0, eend=False, vprio=0, rb=1, fmask=0, wmask=2, wb=0, slowall=False, share=True, wbs=0, dtrig=0, wox=False, gsplit=0, fresh=0, rep4=True, wslp=0, fslp=0, cslp=0, dppa=True, mstat=False, fine=False, early=True, fill=0, vfill=0, wk=(0, 0, 0, 0, 0, 0), wlast=True, vlast=True, fspin=0, gsr='F', sq=(), stlb=0, clk=False, ampclk=0):
    WK = lambda i: nl.join(['v_mov_b32 v1, v1'] * wk[i])
    if isinstance(rot, int): rotcode = f's_mul_i32 s33, s2, {rot:#x}\ns_lshr_b32 s33, s33, 26'
    elif rot == (0, 4, 1): rotcode = 's_lshl2_add_u32 s33, s31, s32'
    else: rotcode = f's_mul_i32 s33, s29, {rot[0]}\ns_mul_i32 s34, s31, {rot[1]}\ns_add_u32 s33, s33, s34\ns_mul_i32 s34, s32, {rot[2]}\ns_add_u32 s33, s33, s34'
    AOFF = 0 if share else 512
    if vlast: v4 = False
    assert v4 or vlast or not dppa
    wot = '''s_lshl_b32 s35, s29, 6
s_add_u32 s34, s34, s35
s_lshl_b32 s34, s34, 13
s_add_u32 s34, s34, 2048
v_and_b32 v127, 16, v0
v_add_u32 v127, v127, v0
v_lshl_add_u32 v127, v127, 7, s34''' if dppa and v4 else '''s_andn2_b32 s35, s34, 3
s_add_u32 s34, s34, s35
s_add_u32 s34, s34, 4
s_lshl_b32 s35, s29, 7
s_add_u32 s34, s34, s35
s_lshl_b32 s34, s34, 12
v_lshl_add_u32 v127, v0, 7, s34''' if dppa else '''s_andn2_b32 s35, s34, 7
s_add_u32 s34, s34, s35
s_add_u32 s34, s34, 8
s_lshl_b32 s35, s29, 7
s_add_u32 s34, s34, s35
s_lshl_b32 s34, s34, 12
v_lshl_add_u32 v127, v0, 7, s34'''
    frow = '''v_bfe_u32 v14, v0, 3, 1
v_lshl_add_u32 v14, v14, 3, v12
v_bfe_u32 v15, v0, 2, 1
v_lshl_add_u32 v14, v14, 1, v15
v_bfe_u32 v15, v0, 4, 1
v_lshl_add_u32 v14, v14, 1, v15
v_bfe_u32 v15, v0, 1, 1
v_lshl_add_u32 v14, v14, 1, v15'''
    wrow = '''v_bfe_u32 v15, v0, 3, 1
v_lshl_add_u32 v15, v32, 2, v15
v_lshl_add_u32 v15, v15, 1, v12
v_bfe_u32 v33, v0, 2, 1
v_lshl_add_u32 v15, v15, 1, v33
v_lshlrev_b32 v15, 2, v15''' if v4 else '''v_bfe_u32 v15, v0, 3, 1
v_lshl_add_u32 v15, v32, 4, v15
v_lshl_add_u32 v15, v15, 1, v12
v_bfe_u32 v33, v0, 2, 1
v_lshl_add_u32 v15, v15, 1, v33'''
    A = Asm()
    cold = []
    uid = [0]
    def lab(s):
        uid[0] += 1
        return f'L_{s}_{uid[0]}'
    def ST(n):
        if amp and n == amp[0]: A(f's_mem{"" if amp[2] == 0 else "real"}time s[98:99]')
        if amp and n == amp[1]: A(f's_mem{"" if amp[2] == 0 else "real"}time s[100:101]')
        if diag: A(f's_memrealtime s[96:97]\ns_waitcnt lgkmcnt(0)\nv_writelane_b32 v7, s96, {n}')
        if lite and n in (8, 10): A(f's_memrealtime s[{(90, 92)[n == 10]}:{(91, 93)[n == 10]}]')
    def FS(n):
        return f's_memtime s[{70+2*n}:{71+2*n}]' if fine == 1 else ''
    def F2(n):
        if fine == 2: A(f's_memrealtime s[{70+2*n}:{71+2*n}]')
    def flush_cold():
        for f in cold: f()
        cold.clear()
    def finish(last=False):
        if diag or lite or (span and last == span):
            if clk: A('s_memtime s[94:95]\ns_waitcnt lgkmcnt(0)\ns_sub_u32 s94, s94, s92\nv_writelane_b32 v7, s94, 14')
            A(f'''s_memrealtime s[96:97]
s_waitcnt lgkmcnt(0)
v_writelane_b32 v7, s96, 15
v_writelane_b32 v7, s98, 0
{nl.join(f'v_writelane_b32 v7, s{70+2*i}, {1+i}' for i in range(7)) if fine else ''}
{'v_writelane_b32 v7, s90, 8' + nl + 'v_writelane_b32 v7, s92, 10' if lite else ''}
s_mov_b64 exec, 0xffff
s_lshl_b32 s34, s2, 3
s_add_u32 s34, s34, s28
s_lshl_b32 s34, s34, 6
s_add_u32 s34, s34, {WS_ST}
v_lshl_add_u32 v1, v0, 2, s34
global_store_dword v1, v7, s[26:27]''')
        A('s_endpgm')
        flush_cold()
    def wred(op, v, t):
        for r in (8, 4, 2, 1): A(f'{op}_dpp v{v}, v{v}, v{v} row_ror:{r} {FULL}')
        for sw in (16, 32): A(f'v_mov_b32 v{t}, v{v}\nv_permlane{sw}_swap_b32 v{v}, v{t}\n{op} v{v}, v{v}, v{t}')
    def rnd(v):
        A(f'v_cvt_pk_bf16_f32 v{v}, v{v}, v{v}\nv_lshlrev_b32 v{v}, 16, v{v}')
    def layernorm(x, u, o):
        s, t, mb, dl = u + 8, u + 9, u + 10, u + 11
        for i in range(4): A(f'v_lshlrev_b32 v{u+2*i}, 16, v{x+i}\nv_and_b32 v{u+2*i+1}, 0xffff0000, v{x+i}')
        A(f'v_add_f32 v{s}, v{u}, v{u+1}\nv_add_f32 v{t}, v{u+2}, v{u+3}\nv_add_f32 v{mb}, v{u+4}, v{u+5}\nv_add_f32 v{dl}, v{u+6}, v{u+7}')
        A(f'v_add_f32 v{s}, v{s}, v{t}\nv_add_f32 v{mb}, v{mb}, v{dl}\nv_add_f32 v{s}, v{s}, v{mb}')
        wred('v_add_f32', s, t)
        A(f'v_mul_f32 v{dl}, 0x3b000000, v{s}')
        A(f'v_cvt_pk_bf16_f32 v{mb}, v{dl}, v{dl}\nv_lshlrev_b32 v{mb}, 16, v{mb}')
        for i in range(8): A(f'v_sub_f32 v{u+i}, v{u+i}, v{mb}')
        A(f'v_sub_f32 v{dl}, v{dl}, v{mb}')
        A(f'v_mul_f32 v{s}, v{u}, v{u}\nv_mul_f32 v{t}, v{u+1}, v{u+1}')
        for i in range(2, 8, 2): A(f'v_fmac_f32 v{s}, v{u+i}, v{u+i}\nv_fmac_f32 v{t}, v{u+i+1}, v{u+i+1}')
        A(f'v_add_f32 v{s}, v{s}, v{t}')
        fill = [f'v_cvt_pk_bf16_f32 v{o+i}, v{u+2*i}, v{u+2*i+1}' for i in range(4)]
        for i in range(4): fill += [f'v_lshlrev_b32 v{u+2*i}, 16, v{o+i}', f'v_and_b32 v{u+2*i+1}, 0xffff0000, v{o+i}']
        fill.append(f'v_mul_f32 v{dl}, v{dl}, v{dl}')
        for r in (8, 4, 2, 1):
            A(fill.pop(0)); A(fill.pop(0))
            A(f'v_add_f32_dpp v{s}, v{s}, v{s} row_ror:{r} {FULL}')
        for sw in (16, 32):
            A(f'v_mov_b32 v{t}, v{s}'); A(fill.pop(0)); A(fill.pop(0))
            A(f'v_permlane{sw}_swap_b32 v{s}, v{t}\nv_add_f32 v{s}, v{s}, v{t}')
        A(fill.pop(0))
        A(f'v_mul_f32 v{s}, 0x3b000000, v{s}\nv_sub_f32 v{s}, v{s}, v{dl}\nv_max_f32 v{s}, 0, v{s}')
        rnd(s)
        A(f'v_add_f32 v{s}, {EPS:#x}, v{s}'); rnd(s)
        A(f'v_sqrt_f32 v{s}, v{s}'); rnd(s)
        A(f'v_rcp_f32 v{s}, v{s}')
        for i in range(8): A(f'v_mul_f32 v{u+i}, v{u+i}, v{s}')
        for i in range(4): A(f'v_cvt_pk_bf16_f32 v{o+i}, v{u+2*i}, v{u+2*i+1}')
    def selectors(sel, t):
        A(f'''v_and_b32 v{t}, 1, v0
v_cmp_eq_u32 vcc, 1, v{t}
v_mov_b32 v{t+1}, 0x0c0c0100
v_mov_b32 v{t+2}, 0x01000c0c
v_cndmask_b32 v{t+1}, v{t+1}, v{t+2}, vcc
v_mov_b32 v{t+2}, 0x0c0c0302
v_mov_b32 v{t+3}, 0x03020c0c
v_cndmask_b32 v{t+2}, v{t+2}, v{t+3}, vcc
v_mov_b32 v{t+3}, 0x0c0c0c0c
v_bfe_u32 v{t}, v0, 1, 2''')
        for w in range(4):
            A(f'v_cmp_eq_u32 vcc, {w}, v{t}\nv_cndmask_b32 v{sel+w}, v{t+3}, v{t+1}, vcc\nv_cndmask_b32 v{sel+4+w}, v{t+3}, v{t+2}, vcc')
    def afrag(dst, src, par, sel):
        for w in range(4): A(f'v_perm_b32 v{dst+w}, v{src}, v{src}, v{sel+4*par+w}')
    def tagreg(dst, addr, bits):
        A(f'v_bfe_u32 v{dst}, v{addr}, 4, 1\nv_lshlrev_b32 v{dst}, {bits-1}, v{dst}\nv_xor_b32 v{dst}, s3, v{dst}\nv_and_b32 v{dst}, {(1 << bits) - 1}, v{dst}')
        if bits == 4: A(f'v_xor_b32 v{dst}, 4, v{dst}')
    def tagmask(dst, addr):
        A(f'v_and_b32 v{dst}, 15, v{addr}\nv_cmp_eq_u32 vcc, 0, v{dst}\nv_mov_b32 v{dst}, 0\nv_cndmask_b32 v{dst}, v{dst}, v11, vcc')
    def poll(loads, y, T, t, hook=None, slp=0, part=None):
        n = len(loads)
        L, Lc, Ld = lab('again'), lab('chk'), lab('ok')
        full = lambda i: part if (part and i == n - 1) else -1
        def issue():
            for i, l in enumerate(loads): A((f's_mov_b64 exec, s[{48+2*i}:{49+2*i}]\n' if n > 1 else '') + l[0])
            if n > 1: A('s_mov_b64 exec, -1')
        if n > 1:
            for i in range(n): A(f's_mov_b64 s[{48+2*i}:{49+2*i}], {full(i)}')
        A(f's_mov_b32 s62, {SPIN}')
        issue()
        if hook: hook(n)
        A(f's_branch {Lc}\n{L}:')
        if slp or psleep: A(f's_sleep {slp or psleep}')
        issue()
        if n > 1:
            for i in range(n):
                A(f'v_and_b32 v{t}, v11, v{y+i}\nv_cmp_ne_u32 vcc, 0, v{t}\ns_cmp_lg_u64 vcc, 0\ns_cselect_b64 s[{48+2*i}:{49+2*i}], {full(i)}, 0')
        A(f's_sub_u32 s62, s62, 1\ns_cbranch_scc1 {Ld}\n{Lc}:\ns_waitcnt vmcnt(0)')
        for i, l in enumerate(loads): A(f'v_xor_b32 v{y+i}, v{l[1]}, v{T}')
        if n == 1: A(f'v_and_b32 v{t}, v11, v{y}')
        else:
            A(f'v_or3_b32 v{t}, v{y}, v{y+1}, v{y+2}')
            for i in range(3, n - 1, 2): A(f'v_or3_b32 v{t}, v{t}, v{y+i}, v{y+i+1}')
            A(f'v_bitop3_b32 v{t}, v{t}, v{y+n-1}, v11 bitop3:0xa8')
        A(f'v_cmp_ne_u32 vcc, 0, v{t}\ns_cbranch_vccnz {L}\n{Ld}:')
    def gsum(x, y, n, d):
        src = lambda i, r: f'v{y+i}' if r == 0 else f'v{x+4*i+r}'
        for i in range(0, n, 2):
            dd = d + 2 * i
            A(f'v_pk_add_f32 v[{dd+2}:{dd+3}], v[{x+4*i+2}:{x+4*i+3}], v[{x+4*i+6}:{x+4*i+7}]')
            for r in range(2): A(f'v_add_f32 v{dd+r}, {src(i, r)}, {src(i+1, r)}')
        for i in range(2, n, 2):
            for r in (2, 0): A(f'v_pk_add_f32 v[{d+r}:{d+r+1}], v[{d+r}:{d+r+1}], v[{d+2*i+r}:{d+2*i+r+1}]')
        A(f'v_permlane32_swap_b32 v{d}, v{d+2}\nv_permlane32_swap_b32 v{d+1}, v{d+3}')
        A(f'v_pk_add_f32 v[{d}:{d+1}], v[{d}:{d+1}], v[{d+2}:{d+3}]')
    def deep(load, n, sets, y, T, t, d, hook=None, issued=False, masked=False, slp=0):
        x = sets[0]
        L, Lc, Lo = lab('again'), lab('chk'), lab('ok')
        A(f's_mov_b32 s62, {SPIN}')
        if issued: A(f's_branch {Lc}')
        A(f'{L}:')
        if slp: A(f's_sleep {slp}')
        load(x)
        if masked:
            for i in range(n):
                A(f'v_and_b32 v{t}, v11, v{y+i}\nv_cmp_ne_u32 vcc, 0, v{t}')
                if masked == 1: A(f's_cmp_lg_u64 vcc, 0\ns_cselect_b64 s[{48+2*i}:{49+2*i}], -1, 0')
                else: A(f's_cmp_lg_u32 vcc_lo, 0\ns_cselect_b32 s{48+2*i}, -1, 0\ns_cmp_lg_u32 vcc_hi, 0\ns_cselect_b32 s{49+2*i}, -1, 0')
        for i in range(fill): A('v_mov_b32 v1, v1')
        A(f's_sub_u32 s62, s62, 1\ns_cbranch_scc1 {Lo}\n{Lc}:')
        for i in range(n):
            if i % 2 == 0: A(f's_waitcnt vmcnt({n-2-i})')
            A(f'v_xor_b32 v{y+i}, v{x+4*i}, v{T}')
            if i % 2 == 1:
                dd = d + 2 * (i - 1)
                if i == 1: A(f'v_or_b32 v{t}, v{y}, v{y+1}')
                elif i < n - 1: A(f'v_or3_b32 v{t}, v{t}, v{y+i-1}, v{y+i}')
                else: A(f'v_or_b32 v{t}, v{t}, v{y+i-1}\nv_bitop3_b32 v{t}, v{t}, v{y+i}, v11 bitop3:0xa8\nv_cmp_ne_u32 vcc, 0, v{t}')
                A(f'v_pk_add_f32 v[{dd+2}:{dd+3}], v[{x+4*i-2}:{x+4*i-1}], v[{x+4*i+2}:{x+4*i+3}]')
                if i == n - 1: A(f's_cbranch_vccnz {L}\n{Lo}:')
                A(f'v_add_f32 v{dd}, v{y+i-1}, v{y+i}\nv_add_f32 v{dd+1}, v{x+4*i-3}, v{x+4*i+1}')
                if i > 1:
                    for r in (2, 0): A(f'v_pk_add_f32 v[{d+r}:{d+r+1}], v[{d+r}:{d+r+1}], v[{dd+r}:{dd+r+1}]')
        A(f'v_permlane32_swap_b32 v{d}, v{d+2}\nv_permlane32_swap_b32 v{d+1}, v{d+3}')
        A(f'v_pk_add_f32 v[{d}:{d+1}], v[{d}:{d+1}], v[{d+2}:{d+3}]')
    def page():
        if pages: A('.p2align 12')
    def sum8(g):
        for i in (0, 2, 8, 10): A(f'v_pk_add_f32 v[{g+i}:{g+i+1}], v[{g+i}:{g+i+1}], v[{g+i+4}:{g+i+5}]')
        for i in (0, 2): A(f'v_pk_add_f32 v[{g+i}:{g+i+1}], v[{g+i}:{g+i+1}], v[{g+i+8}:{g+i+9}]')
        A(f'v_permlane32_swap_b32 v{g}, v{g+2}\nv_permlane32_swap_b32 v{g+1}, v{g+3}')
        A(f'v_pk_add_f32 v[{g}:{g+1}], v[{g}:{g+1}], v[{g+2}:{g+3}]')
    def ldsspin(reads, test, slp=0):
        L, Ld = lab('spin'), lab('spun')
        A(f's_mov_b32 s62, {SPIN}\n{L}:')
        if slp: A(f's_sleep {slp}')
        A(f'{reads}\ns_waitcnt lgkmcnt(0)\n{test}\ns_cbranch_vccz {Ld}\ns_sub_u32 s62, s62, 1\ns_cbranch_scc0 {L}\n{Ld}:')
    def stream(hooks, th, extra_at=None, slow=()):
        if slow: A(f's_cmp_{slowif}_u32 s30, 16\ns_cselect_b64 vcc, -1, 0')
        for i in range(16):
            if i: A('s_addk_i32 s33, 0x2000\ns_bitset0_b32 s33, 17')
            if th and 2 * i >= th:
                ex = 1 if extra_at is not None and 2 * i - (th - 2) < extra_at <= 2 * i else 0
                A(f's_waitcnt vmcnt({th-2+ex})')
            if i in slow:
                Ls = lab('fast')
                A(f's_cbranch_vccz {Ls}\ns_waitcnt vmcnt({th-4})\n{Ls}:')
            for hf in range(2):
                A(f'buffer_load_dwordx4 v[{128+8*i+4*hf}:{131+8*i+4*hf}], v2, s[36:39], s33 offen offset:{128*hf} {kvf}')
                if 2 * i + hf + 1 in hooks: A(hooks[2 * i + hf + 1])

    hdr = open('cdna_kernels/' + NAME + '.s.ref').read().split('\n')
    for ln in hdr:
        if ln.startswith('; @launch'): A.raw(f'; @launch grid=(256,1,1) block=(512,1,1) lds={LDS_BYTES}'); break
        A.raw(ln)
    A.raw(f'.amdgcn_target "amdgcn-amd-amdhsa--gfx950"\n.text\n.globl {NAME}_kernel\n.p2align {12 if pages else 8}\n.p2align 8\n.type {NAME}_kernel,@function\n{NAME}_kernel:')

    if amp: ST(13)
    if ampclk: A('s_memtime s[58:59]')
    if span or diag: A('s_memrealtime s[98:99]')
    if clk: A('s_memtime s[92:93]')
    A(f'''s_load_dwordx16 s[4:19], s[0:1], 0
s_load_dwordx8 s[20:27], s[0:1], 64
s_getpc_b64 s[40:41]
L_pc:
v_lshrrev_b32 v1, 6, v0
s_lshr_b32 s30, s2, 3                ; index inside the head group
v_readfirstlane_b32 s28, v1
v_and_b32 v0, 63, v0
s_lshl3_add_u32 s43, s30, s28
s_lshl_b32 s43, s43, 6
{'s_load_dword s42, s[40:41], s43' if pf == 1 else ''}
{'s_lshl_b32 s42, s43, 1' + nl + 'v_mov_b32 v1, s42' + nl + 'global_load_dword v1, v1, s[40:41]' if pf == 3 else ''}
s_cmp_ge_u32 s2, 256
s_cbranch_scc1 L_exit
s_and_b32 s29, s2, 7
s_and_b32 s31, s30, 3
s_lshl2_add_u32 s31, s29, s31        ; head
s_lshr_b32 s32, s30, 2
v_lshrrev_b32 v3, 3, v0              ; lane >> 3
v_and_b32 v4, 7, v0
v_lshlrev_b32 v4, 4, v4              ; (lane & 7) * 16
v_lshl_add_u32 v2, v3, 8, v4
v_lshlrev_b32 v5, 4, v0              ; lane * 16
s_and_b32 s63, s28, 3
{rotcode}
s_add_u32 s33, s33, s63
s_and_b32 s33, s33, 63
s_lshl_b32 s33, s33, 11              ; first tile of this wave
s_lshl_b32 s34, s31, 6
s_add_u32 s34, s34, s32
s_add_u32 s34, s34, 56
s_lshl_b32 s34, s34, 17              ; byte offset of this chunk of the window
s_mov_b32 s38, 0x20000
s_mov_b32 s39, 0x20000''')
    if diag: A('v_mov_b32 v7, 0')
    A(f'''s_cmp_lt_u32 s28, 4
s_cbranch_scc1 L_kwave
s_setprio 3
s_lshl_b32 s35, s32, 5
s_add_u32 s35, s35, s63
s_lshl_b32 s35, s35, 6
s_add_u32 s35, s35, s31
s_lshl_b32 s35, s35, 8
v_lshl_add_u32 v6, v3, 16, v4
v_add_u32 v12, 0x2000, v6
{'s_lshl2_add_u32 s35, s2, s63' + nl + 's_lshl_b32 s35, s35, 12' + nl + 'v_mov_b32 v6, v2' + nl + 'v_add_u32 v12, 0x800, v6' if wqm == 1 else ''}
{'s_mov_b32 s35, 0' + nl + 'v_mov_b32 v6, v4' + nl + 'v_mov_b32 v12, v4' if wqm == 2 else ''}
v_subrev_u32 v13, 12, v0
v_ashrrev_i32 v13, 31, v13
v_lshlrev_b32 v14, 2, v0
ds_write_b32 v14, v13 offset:{L_ML}
s_waitcnt lgkmcnt(0)
global_load_dwordx4 v[24:27], v5, s[4:5]
{'s_load_dword s42, s[40:41], s43' if pf == 2 else ''}
s_load_dword s3, s[26:27], {WS_E:#x}
s_add_u32 s10, s10, s35
s_addc_u32 s11, s11, 0''')
    for n in range(2):
        for hf in range(2): A(f'global_load_dwordx4 v[{64+8*n+4*hf}:{67+8*n+4*hf}], v{(6, 12)[n]}, s[10:11] offset:{128*hf} nt')
    A('s_barrier\ns_branch L_vwave')

    A(f'''L_kwave:
s_setprio 2
s_lshl_b32 s35, s32, 19
s_lshl_b32 s44, s29, 19
s_waitcnt lgkmcnt(0)
s_add_u32 s36, s6, s34
s_addc_u32 s37, s7, 0''')
    pages = ['s[10:11], s35', 's[4:5], 0', 's[8:9], s34', 's[12:13], s44', 's[16:17], 0', 's[18:19], 0', 's[20:21], 0', 's[22:23], 0']
    tl = nl.join(f's_load_dword s45, {p}' for i, p in enumerate(pages) if stlb >> i & 1)
    qload = 'global_load_dwordx4 v[16:19], v6, s[44:45] sc1'
    stream({1: tl + nl + ('s_load_dword s42, s[40:41], s43' if pf == 2 else ''), kpre: f's_load_dword s3, s[26:27], {WS_E:#x}\ns_barrier' + ('\ns_memrealtime s[100:101]' if amp and amp[1] == 22 else ''), 10: 's_memrealtime s[100:101]' if amp and amp[1] == 23 else '',
            12: f'''s_waitcnt lgkmcnt(0)
s_lshl_b32 s34, s31, 6
s_add_u32 s34, s34, s28
s_lshl_b32 s34, s34, 7
s_add_u32 s44, s26, s34
s_addc_u32 s45, s27, 0
v_lshl_add_u32 v6, v3, 10, v4''',
            qpos: '' if noq else qload}, thr, extra_at=None if noq else qpos, slow=slowk)
    ST(1)
    A(f'''v_lshrrev_b32 v12, 5, v0             ; lane >> 5
v_and_b32 v13, 31, v0
v_lshlrev_b32 v13, 4, v13            ; (lane & 31) * 16
s_lshl_b32 s46, s28, 8
s_add_u32 s46, s46, {L_SCR}
s_lshl_b32 s34, s28, 6
v_lshrrev_b32 v14, 4, v0
v_lshlrev_b32 v14, 1, v14
v_lshrrev_b32 v15, 1, v4
v_add3_u32 v14, v14, v15, s34
v_mov_b32 v24, {L_ML}
v_mov_b32 v25, 1
s_lshl_b32 s34, s28, 2
v_mov_b32 v26, s34
s_waitcnt lgkmcnt(0)
s_add_u32 s3, s3, {EPOCH_STEP:#x}''')
    tagreg(8, 5, 4)
    A(f's_waitcnt vmcnt({min(gow, 32-qpos)})\nds_write_b32 v26, v25 offset:{L_ML+64}')
    ST(2)
    A(f's_mov_b32 s62, {SPIN}\nL_qchk:')
    for i in range(4): A(f'v_xor_b32 v{20+i}, v{16+i}, v8')
    A('v_or3_b32 v15, v20, v21, v22\nv_bitop3_b32 v15, v15, v23, 15 bitop3:0xa8\nv_cmp_ne_u32 vcc, 0, v15')
    A(('' if noq else 's_cbranch_vccnz L_qagain\n') + 'L_qok:')
    cold.append(lambda: A(f'L_qagain:\n{qload}\ns_sub_u32 s62, s62, 1\ns_waitcnt vmcnt(0)\ns_cbranch_scc0 L_qchk\ns_branch L_qok'))
    ST(3)
    A(f'''v_permlane32_swap_b32 v20, v22
v_permlane32_swap_b32 v21, v23
v_add_f32 v20, v20, v22
v_add_f32 v21, v21, v23
v_permlane16_swap_b32 v20, v21
v_add_f32 v20, v20, v21
v_add_f32_dpp v20, v20, v20 row_ror:8 {FULL}
v_cvt_pk_bf16_f32 v20, v20, v20
v_lshl_add_u32 v6, v12, 12, v13
ds_write_b16 v14, v20 offset:{L_Q}
s_mov_b64 exec, 1
s_waitcnt lgkmcnt(0)
ds_add_u32 v24, v25 offset:52
s_mov_b64 exec, -1''')
    ldsspin('ds_read_b32 v15, v24 offset:52', 'v_cmp_ne_u32 vcc, 4, v15')
    A(f'ds_read_b128 v[16:19], v4 offset:{L_Q}\nds_read_b128 v[20:23], v4 offset:{L_Q+128}\ns_waitcnt lgkmcnt(0)')
    for i0 in range(0, 16, 4):
        A(f's_waitcnt vmcnt({24-2*i0})')
        for e in range(8):
            for i in range(i0, i0 + 4):
                A(f'v_dot2_f32_bf16 v{32+i}, v{128+8*i+e}, v{16+e}, {"v%d" % (32+i) if e else 0}')
    for i in range(8):
        A(f'v_add_f32_dpp v{32+i}, v{32+i}, v{32+i} row_half_mirror row_mask:0xf bank_mask:0x5')
    for i in range(8):
        A(f'v_add_f32_dpp v{32+i}, v{40+i}, v{40+i} row_half_mirror row_mask:0xf bank_mask:0xa')
    A('s_mov_b32 vcc_lo, 0xcccccccc\ns_mov_b32 vcc_hi, 0xcccccccc')
    for i in range(4): A(f'v_cndmask_b32 v{40+i}, v{36+i}, v{32+i}, vcc\nv_cndmask_b32 v{32+i}, v{32+i}, v{36+i}, vcc')
    for i in range(4): A(f'v_add_f32_dpp v{32+i}, v{40+i}, v{32+i} quad_perm:[2,3,0,1] {FULL}')
    A('s_mov_b32 vcc_lo, 0xaaaaaaaa\ns_mov_b32 vcc_hi, 0xaaaaaaaa')
    for i in range(2): A(f'v_cndmask_b32 v{40+i}, v{34+i}, v{32+i}, vcc\nv_cndmask_b32 v{32+i}, v{32+i}, v{34+i}, vcc')
    for i in range(2): A(f'v_add_f32_dpp v{32+i}, v{40+i}, v{32+i} quad_perm:[1,0,3,2] {FULL}')
    r2 = 'v_cvt_pk_bf16_f32 v34, v32, v33\nv_lshlrev_b32 v32, 16, v34\nv_and_b32 v33, 0xffff0000, v34'
    if not nosr & 1: A(r2)
    A(f'v_mul_f32 v32, {SCALE:#x}, v32\nv_mul_f32 v33, {SCALE:#x}, v33')
    if not nosr & 2: A(r2)
    A('v_max_f32 v34, v32, v33')
    wred('v_max_f32', 34, 36)
    A(f'''v_sub_f32 v35, v32, v34
v_sub_f32 v36, v33, v34
v_mul_f32 v35, {LOG2E:#x}, v35
v_mul_f32 v36, {LOG2E:#x}, v36
v_exp_f32 v35, v35
v_exp_f32 v36, v36
v_add_f32 v35, v35, v36''')
    wred('v_add_f32', 35, 36)
    ST(11)
    A(f's_lshl_b32 s34, s29, 8\ns_add_u32 s34, s34, {WS_X}\nv_lshrrev_b32 v10, 2, v13\nv_add_u32 v10, s34, v10\n' + ('' if nox else 'global_load_dword v9, v10, s[26:27] sc1'))
    if noml: A('s_cmp_ge_u32 s30, 0\ns_cbranch_scc1 L_mlok')
    A(f'''v_min_u32 v34, -2, v34
v_min_u32 v35, -2, v35
v_lshl_add_u32 v37, v26, 1, v24
ds_write_b64 v37, v[34:35]
s_cmp_lg_u32 s28, 0
s_cbranch_scc1 L_mlwait''')
    ldsspin('ds_read_b128 v[40:43], v24\nds_read_b128 v[44:47], v24 offset:16',
            'v_max3_u32 v37, v40, v41, v42\nv_max3_u32 v37, v37, v43, v44\nv_max3_u32 v37, v37, v45, v46\nv_max_u32 v37, v37, v47\nv_cmp_eq_u32 vcc, -1, v37')
    ST(4)
    A(f'''s_lshl_b32 s35, s31, 8
s_add_u32 s35, s35, {WS_ML}
v_max3_f32 v48, v40, v42, v44
v_max_f32 v48, v48, v46''')
    for w in range(4): A(f'v_sub_f32 v{40+2*w}, v{40+2*w}, v48')
    for w in range(4): A(f'v_mul_f32 v{40+2*w}, {LOG2E:#x}, v{40+2*w}')
    for w in range(4): A(f'v_exp_f32 v{40+2*w}, v{40+2*w}')
    A('v_mov_b32 v49, s3\nv_mov_b32 v51, s3\nv_mul_f32 v50, v40, v41')
    for w in range(1, 4): A(f'v_fmac_f32 v50, v{40+2*w}, v{41+2*w}')
    A(f'''s_lshl4_add_u32 s34, s32, s35
v_mov_b32 v37, s34
s_mov_b64 exec, 1
global_store_dwordx4 v37, v[48:51], s[26:27] sc1
s_mov_b64 exec, -1''')
    L, Ld = lab('mg'), lab('mgd')
    A(f's_mov_b32 s62, {SPIN}\n{L}:\ns_sleep {mlsleep}\ns_load_dwordx16 s[64:79], s[26:27], s35 glc\ns_load_dwordx16 s[80:95], s[26:27], s35 offset:64 glc\ns_waitcnt lgkmcnt(0)')
    A('s_and_b32 s34, s65, s3\ns_or_b32 s47, s65, s3')
    for i in range(1, 16): A(f's_and_b32 s34, s34, s{65+2*i}\ns_or_b32 s47, s47, s{65+2*i}')
    A(f's_cmp_eq_u32 s34, s47\ns_cbranch_scc1 {Ld}\ns_sub_u32 s62, s62, 1\ns_cbranch_scc0 {L}\n{Ld}:')
    A('v_mov_b32 v34, s64')
    for c in range(1, 8): A(f'v_max_f32 v34, s{64+4*c}, v34')
    for c in range(8): A(f'v_sub_f32 v{40+c}, s{64+4*c}, v34')
    for c in range(8): A(f'v_mul_f32 v{40+c}, {LOG2E:#x}, v{40+c}')
    for c in range(8): A(f'v_exp_f32 v{40+c}, v{40+c}')
    A('v_mul_f32 v35, s66, v40')
    for c in range(1, 8): A(f'v_fmac_f32 v35, s{66+4*c}, v{40+c}')
    A(f'''v_rcp_f32 v35, v35
v_min_u32 v34, -2, v34
v_min_u32 v35, -2, v35
ds_write_b64 v24, v[34:35] offset:32
s_branch L_mlok
L_mlwait:''')
    ldsspin('ds_read_b64 v[34:35], v24 offset:32', 'v_max_u32 v37, v34, v35\nv_cmp_eq_u32 vcc, -1, v37', 1)
    A('L_mlok:')
    ST(5)
    A(f'''v_sub_f32 v32, v32, v34
v_sub_f32 v33, v33, v34
v_mul_f32 v32, {LOG2E:#x}, v32
v_mul_f32 v33, {LOG2E:#x}, v33
v_exp_f32 v32, v32
v_exp_f32 v33, v33
s_lshl_b32 s34, s28, 8
v_lshl_add_u32 v36, v0, 2, s34
v_mul_f32 v32, v32, v35
v_mul_f32 v33, v33, v35
v_cvt_pk_bf16_f32 v32, v32, v33
ds_write_b32 v36, v32 offset:{L_P}
''')
    if not cfgy: A(f'''s_cmp_lt_u32 s28, 2
s_cbranch_scc1 L_two
s_cmp_eq_u32 s28, 2
s_cselect_b32 s64, s16, s18
s_cselect_b32 s65, s17, s19
s_mov_b32 s66, {512*2752}
s_lshl_b32 s34, s30, 4
v_lshrrev_b32 v61, 2, v0
v_add_u32 v61, s34, v61
v_mul_u32_u24 v61, 2752, v61
v_and_b32 v62, 3, v0
v_lshlrev_b32 v62, 7, v62
v_min_u32 v62, 348, v62
s_mul_i32 s34, s29, 352
v_add3_u32 v61, v61, v62, s34
s_branch L_tj
L_two:
s_mov_b32 s64, s12
s_mov_b32 s65, s13
s_mov_b32 s66, {4096*1024}
s_lshl_b32 s34, s29, 5
s_add_u32 s34, s34, s30
s_lshl1_add_u32 s34, s34, s28
s_lshl_b32 s34, s34, 13
v_lshl_add_u32 v61, v0, 7, s34
L_tj:
s_mov_b32 s67, 0x20000''')
    if cfgy: A(f'''s_bitcmp1_b32 s28, 0
s_cselect_b32 s64, s18, s16
s_cselect_b32 s65, s19, s17
s_mov_b32 s66, {512*2752}
s_mov_b32 s67, 0x20000
s_and_b32 s34, s30, {31 if guall else 15}
s_lshr_b32 s35, s28, 1
s_lshl1_add_u32 s34, s34, s35
s_lshl_b32 s34, s34, {3 if guall else 4}
v_lshrrev_b32 v61, 2, v0
v_add_u32 v61, s34, v61
v_mul_u32_u24 v61, 2752, v61
v_and_b32 v62, 3, v0
v_lshlrev_b32 v62, 7, v62
v_min_u32 v62, 348, v62
s_mul_i32 s34, s29, 352
v_add3_u32 v61, v61, v62, s34''')
    def trigger(n):
        if True:
            L, Ld = lab('trig'), lab('trigd')
            A(f'''s_lshl_b32 s34, s29, 15
v_lshl_add_u32 v125, v13, 6, s34
s_mov_b32 s62, {SPIN}
{L}:
global_load_ubyte v126, v125, s[26:27] offset:{AOFF} sc1
s_and_b32 s34, s3, 0xff
s_waitcnt vmcnt(0)
v_cmp_eq_u32 vcc, s34, v126
s_bcnt1_i32_b32 s34, vcc_lo
s_cmp_ge_u32 s34, {n}
s_cbranch_scc1 {Ld}
s_sleep 2
s_sub_u32 s62, s62, 1
s_cbranch_scc0 {L}
{Ld}:''')
    def touch(when, role=None):
        if cfgy:
            if wox and when == 1 and role == 'x':
                A(f'''s_sub_u32 s34, s30, 27
s_lshl2_add_u32 s34, s34, s28
s_mul_i32 s34, s34, 52
v_add_u32 v127, s34, v0
v_min_u32 v127, 1023, v127
v_lshrrev_b32 v63, 7, v127
v_mul_u32_u24 v63, 384, v63
s_lshl_b32 s35, s29, 12
s_add_u32 s35, s35, 384
v_add3_u32 v127, v127, v63, s35
v_lshlrev_b32 v127, 7, v127
s_mov_b32 exec_hi, 0xfffff
global_load_dword v62, v127, s[12:13] {tf}
s_mov_b32 exec_hi, -1''')
            if when == wo1 and role != 'W':
                Ls = lab('nt')
                if role is None: A(f's_cmp_lt_u32 s30, 16\ns_cbranch_scc1 {Ls}')
                A(f'''s_and_b32 s34, s30, 15
s_lshl2_add_u32 s34, s34, s28
{wot}
s_mov_b32 exec_hi, 0
global_load_dword v62, v127, s[12:13] {tf}
s_mov_b32 exec_hi, -1
{Ls}:''')
            if gsplit and role is not None and role in gsr and when in (1, 2):
                m = (1 << gsplit) - 1
                m = m if when == 1 else ~m & (2**64 - 1)
                if m: A(f's_mov_b32 exec_lo, {m & 0xffffffff:#x}\ns_mov_b32 exec_hi, {m >> 32:#x}\nbuffer_load_dword v62, v61, s[64:67], 0 offen {tf}\ns_mov_b64 exec, -1')
            if when == 2 and edge and role == 'x':
                A(f'''s_mul_i32 s34, s29, 11
s_and_b32 s35, s34, 1
s_add_u32 s35, s35, 29
s_sub_u32 s48, s34, s30
s_add_u32 s48, s48, 26
s_sub_u32 s49, s30, s35
s_add_u32 s49, s49, s34
s_add_u32 s49, s49, 11
s_add_u32 s50, s34, 10
s_cmp_lt_u32 s30, s35
s_cselect_b32 s48, s48, s49
s_cselect_b32 s50, s34, s50
s_and_b32 s35, s48, 3
s_lshl2_add_u32 s35, s28, s35
s_lshl_b32 s35, s35, 5
v_and_b32 v63, 31, v0
v_add_u32 v63, s35, v63
v_mul_u32_u24 v63, 2752, v63
s_lshl_b32 s48, s48, 5
s_lshl_b32 s50, s50, 5
v_add_u32 v127, s48, v63
v_add_u32 v63, s50, v63
v_xor_b32 v127, v127, v63
v_min_u32 v63, {512*2752-4}, v63
v_cmp_gt_u32 vcc, 0x80, v127
s_mov_b32 exec_hi, 0
s_mov_b32 exec_lo, vcc_lo
global_load_dword v62, v63, s[16:17] {tf}
global_load_dword v62, v63, s[18:19] {tf}
s_mov_b64 exec, -1''')
            if guall and (when == guw if gut is None else (role is not None and when == gut['WFx'.index(role)])):
                A(f's_mov_b32 exec_hi, 0\nbuffer_load_dword v62, v61, s[64:67], 0 offen {tf}\ns_mov_b32 exec_hi, -1')
            elif not guall and when == guw and role != 'W' and not (gsplit and role in gsr):
                Ls = lab('nt')
                if role is None: A(f's_cmp_lt_u32 s30, 16\ns_cbranch_scc1 {Ls}')
                A(f'buffer_load_dword v62, v61, s[64:67], 0 offen {tf}\n{Ls}:')
            if when == dtouch and role == 'x':
                if fine == 2: A('s_waitcnt vmcnt(1)'); F2(1); A('s_waitcnt vmcnt(0)'); F2(2)
                if xbar and when == 2 and not tailtest: A('s_barrier')
                if dtrig: trigger(dtrig)
                A(f'''s_sub_u32 s34, s30, 27
s_lshl2_add_u32 s34, s34, s28
s_mul_i32 s34, s34, {71*128}
s_mul_i32 s35, s29, {176*1024}
s_add_u32 s34, s34, s35
v_lshl_add_u32 v63, v0, 7, s34
v_min_u32 v63, {1376*1024-4}, v63
global_load_dword v62, v63, s[20:21]
v_add_u32 v63, 0x2000, v63
v_min_u32 v63, {1376*1024-4}, v63
s_mov_b64 exec, 0x7f
global_load_dword v62, v63, s[20:21]
s_mov_b64 exec, -1''')
                if fine == 2: F2(3); A('s_waitcnt vmcnt(0)'); F2(4)
            return
        lo, hi = twhen[0] == when, twhen[1] == when
        if not (lo or hi): return
        Ls = lab('nt')
        if not (lo and hi): A(f's_cmp_lt_u32 s28, 2\ns_cbranch_scc{0 if lo else 1} {Ls}')
        A(f'buffer_load_dword v62, v61, s[64:67], 0 offen {tf}\n{Ls}:')
    ST(6)
    A(f'''s_getreg_b32 s34, hwreg(HW_REG_XCC_ID, 0, 4)
s_andn2_b32 s35, s3, 31
s_or_b32 s34, s34, s35
s_or_b32 s35, s34, 16
s_waitcnt vmcnt(0)
v_cmp_eq_u32 s[48:49], s34, v9
v_cmp_eq_u32 s[50:51], s35, v9
s_bcnt1_i32_b32 s48, s48
s_bcnt1_i32_b32 s50, s50
s_cmp_gt_u32 s50, s48
s_cselect_b32 s34, 0x2000, 0
v_mov_b32 v10, s34
''')
    if diag: A('s_sub_u32 s34, s50, s48\ns_add_u32 s34, s34, s98\nv_writelane_b32 v7, s34, 12')
    touch(0)
    if wo0: A(f'''s_lshl_b32 s34, s29, 5
s_add_u32 s34, s34, s30
s_lshl2_add_u32 s34, s34, s28
s_lshl_b32 s34, s34, 12
v_lshl_add_u32 v63, v0, 7, s34
s_mov_b32 exec_hi, 0
global_load_dword v62, v63, s[12:13] {tf}
s_mov_b32 exec_hi, -1''')
    tagreg(8, 5, 8)
    A(f'''v_mov_b32 v11, 0xff
s_lshl_b32 s47, s28, 13
s_add_u32 s47, s47, {L_W}            ; this wave's weight staging area
s_waitcnt lgkmcnt(0)''')
    if pol is not None: A(f's_lshr_b32 s34, s29, 2\ns_xor_b32 s34, s34, {pol}\ns_lshl_b32 s34, s34, 13\nv_mov_b32 v10, s34')
    if notail: A('s_cmp_ge_u32 s30, 0\ns_cbranch_scc1 L_norole')
    A('s_cmp_ge_u32 s30, 16\ns_cbranch_scc1 L_notw')
    def bars(early=None, role='x'):
        A('s_barrier')
        if amp: ST(20)
        if role == 'W': early()
        touch(1, role)
        if early and role != 'W': early()
        A('s_barrier' if vlast else 's_barrier\ns_barrier')
        F2(0)
        if amp: ST(21)
        if trig and role != 'W': trigger(trig)
        touch(2, role)
        ST(7)

    A(f'''s_lshl2_add_u32 s34, s29, s28
s_lshl_b32 s35, s34, 13
s_add_u32 s35, s35, {AOFF}
s_add_u32 s44, s26, s35
s_addc_u32 s45, s27, 0
s_lshl_b32 s34, s34, 17
s_lshl_b32 s35, s30, 6
s_add_u32 s34, s34, s35
s_add_u32 s40, s12, s34
s_addc_u32 s41, s13, 0
s_mov_b32 s42, {127*1024+64}
s_mov_b32 s43, 0x20000
v_lshrrev_b32 v14, 4, v0             ; g
v_bfe_u32 v15, v0, 2, 2
{'v_lshl_add_u32 v15, v15, 2, v14' if v4 else 'v_lshl_add_u32 v15, v14, 3, v15'}
v_and_b32 v32, 1, v14
{wrow if dppa else ''}
v_lshlrev_b32 v33, 1, v32
v_and_b32 v34, 3, v0
v_xor_b32 v33, v33, v34
v_lshlrev_b32 v33, 4, v33
v_lshl_add_u32 v15, v15, 10, v33
v_lshrrev_b32 v33, 2, v0
v_lshlrev_b32 v33, 6, v33
v_lshl_add_u32 v33, v34, 3, v33
v_lshl_add_u32 v33, v32, 5, v33
v_add_u32 v33, s47, v33
v_xor_b32 v34, 32, v33
v_lshrrev_b32 v35, 1, v13
v_lshl_add_u32 v35, v12, 2, v35
v_add_u32 v35, s46, v35
v_lshl_add_u32 v36, v14, 4, s46
s_lshl_b32 s34, s28, 2
s_add_u32 s34, s34, {L_RED}
v_add_u32 v37, s34, v13
s_and_b32 s34, s29, 4
s_add_u32 s34, s34, s29
s_lshl4_add_u32 s34, s34, s30
s_lshl_b32 s34, s34, 7
s_mul_i32 s35, s28, {0 if wlast else 32768}
s_add_u32 s34, s34, s35
s_add_u32 s34, s34, {WS_B}
s_add_u32 s56, s26, 0x8000
s_addc_u32 s57, s27, 0
s_add_u32 s58, s26, 0x10000
s_addc_u32 s59, s27, 0
s_add_u32 s68, s26, 0x18000
s_addc_u32 s69, s27, 0
v_lshrrev_b32 v38, 2, v13
v_lshl_add_u32 v38, v12, 13, v38
v_add_u32 v38, s34, v38''')
    if fresh:
        A(f'''v_and_b32 v50, 7, v0
v_and_b32 v51, 4, v50
v_add_u32 v50, v50, v51
v_lshl_add_u32 v50, v50, 11, v10
s_lshl_b32 s34, s30, 7
s_add_u32 s34, s34, {WS_B}
v_add_u32 v50, s34, v50              ; this slice's B line of every group''')
        tagreg(51, 50, 8)
    tagreg(9, 38, 8)
    tagmask(10, 38)
    if tlb & 1: A('s_mov_b64 exec, 1\nbuffer_load_dword v62, v15, s[40:43], 0 offen\ns_mov_b64 exec, -1')
    A('s_and_b32 s60, s30, 1\n' + f's_lshl_b32 s61, s60, {15 if dppa else 16}' + '\ns_lshl_b32 s60, s60, 12')
    def wl(a, b):
        for n in range(a, b):
            A(f's_xor_b32 s34, s60, {1024*n}\ns_add_u32 m0, s47, s34\ns_xor_b32 s34, s61, {((32*(n>>2)+(n&3) if v4 else 8*n) if dppa else 32*(n>>1)+(16 if v4 else 4)*(n&1))*1024}')
            A(f'buffer_load_dwordx4 v15, s[40:43], s34 offen {wf} lds')
    if apre:
        A('s_mov_b32 exec_lo, 0x01010101\ns_mov_b32 exec_hi, 0x01010101\ns_and_b32 s34, s30, 3\ns_lshl_b32 s34, s34, 10\nv_add_u32 v63, s34, v6\nglobal_load_dword v62, v63, s[44:45] sc1\ns_mov_b64 exec, -1')
    ws_ = wsplit if cfgy else 0
    bars(lambda: wl(0, ws_), 'W')
    wl(ws_, 8)
    touch(3, 'W')
    def whook(n):
        A(f's_waitcnt vmcnt({n})')
        ST(10)
        for t in range(4):
            for cb in range(2):
                for hf in range(2):
                    r = 128 + 8 * t + 4 * cb + 2 * hf
                    A(f'ds_read_b64_tr_b16 v[{r}:{r+1}], v{33+cb} offset:{1024*(2*t+hf)}')
    def aload(x):
        for n in range(4): A(f's_mov_b64 exec, s[{48+2*n}:{49+2*n}]\nglobal_load_dwordx4 v[{x+4*n}:{x+4*n+3}], v6, s[44:45] offset:{1024*n} sc1')
        A('s_mov_b64 exec, -1')
    for n in range(4): A(f's_mov_b64 s[{48+2*n}:{49+2*n}], -1')
    aload(96); whook(4)
    deep(aload, 4, [96], 120, 8, 39, 16, issued=True, masked=wmask, slp=wslp)
    ST(8)
    def bcast(src, dst, bank):
        return [f'v_mov_b32_dpp v{dst+i}, v{src} row_newbcast:{i} row_mask:0xf bank_mask:{bank:#x}' for i in range(16)]
    A(FS(0))
    A('v_cvt_pk_bf16_f32 v16, v16, v17')
    if dppa:
        mv = bcast(16, 64, 0xf)
        A('s_waitcnt lgkmcnt(0)')
        for o in mv[:6]: A(o)
        mv = mv[6:]
    else:
        A('ds_write_b32 v35, v16')
        for t in range(4): A(f'ds_read_b128 v[{64+4*t}:{67+4*t}], v36 offset:{64*t}')
    for t in range(4):
        if not dppa: A(f's_waitcnt lgkmcnt({3-t})')
        for cb in range(2):
            c = f'v[{40+4*cb}:{43+4*cb}]'
            A(f'v_mfma_f32_16x16x32_bf16 {c}, v[{64+4*t}:{67+4*t}], v[{128+8*t+4*cb}:{131+8*t+4*cb}], {c if t else 0}')
            if dppa:
                for o in mv[:2]: A(o)
                mv = mv[2:]
    if wlast:
        A(f'''{FS(1)}
s_mov_b64 exec, 0xffff
ds_write2_b32 v37, v40, v44 offset0:0 offset1:64
ds_write_b32 v26, v11 offset:{L_ML+96}
s_mov_b64 exec, -1
ds_read_b128 v[20:23], v24 offset:96
ds_read_b128 v[16:19], v13 offset:{L_RED}
s_waitcnt lgkmcnt(1)
{FS(2)}
v_min3_u32 v20, v20, v21, v22
v_min_u32 v20, v20, v23
v_cmp_ne_u32 vcc, 0, v20
s_waitcnt lgkmcnt(0)
v_pk_add_f32 v[16:17], v[16:17], v[18:19]
s_mov_b64 exec, vcc
v_add_f32 v16, v16, v17
v_bfi_b32 v16, v10, v9, v16
{FS(3)}
global_store_dword v38, v16, s[26:27] sc1
global_store_dword v38, v16, s[56:57] sc1
global_store_dword v38, v16, s[58:59] sc1
global_store_dword v38, v16, s[68:69] sc1
{FS(4)}''')
    else:
        A(f'''{FS(1)}
s_mov_b64 exec, 0xffff
s_cmp_lg_u32 s28, 0
ds_write2_b32 v37, v40, v44 offset0:0 offset1:64
s_mov_b64 exec, -1
{WK(2)}
s_waitcnt lgkmcnt(0)
{FS(2)}
s_barrier
{FS(3)}
{'' if rep4 else 's_cbranch_scc1 ' + ('L_wfresh' if fresh else 'L_wend')}
ds_read_b128 v[16:19], v13 offset:{L_RED}
{WK(3)}
s_waitcnt lgkmcnt(0)
{FS(4)}
v_pk_add_f32 v[16:17], v[16:17], v[18:19]
v_add_f32 v16, v16, v17
v_bfi_b32 v16, v10, v9, v16''')
        A('global_store_dword v38, v16, s[26:27] sc1')
    A(FS(5)); A(FS(6))
    if wb == 1: A('s_cmp_lg_u32 s30, 0\ns_cbranch_scc1 L_wend\nbuffer_wbl2 sc1\ns_waitcnt vmcnt(0)')
    A('L_wend:')
    def wfresh():
        A(f'L_wfresh:\ns_cmp_gt_u32 s28, {fresh}\ns_cbranch_scc1 L_wend\ns_mov_b64 exec, 0xff')
        poll([('global_load_dword v52, v50, s[26:27] sc1', 52)], 53, 51, 54)
        A('s_branch L_wend')
    if fresh: cold.append(wfresh)
    finish()

    A(f'''L_notw:
s_cmp_lt_u32 s30, 27
s_cbranch_scc1 L_rolef
s_cmp_lt_u32 s30, 28
s_cbranch_scc1 L_norole
s_cmp_lg_u32 s28, 0
s_cbranch_scc1 L_norole
s_lshl2_add_u32 s63, s29, s30
s_sub_u32 s63, s63, 28               ; reducer index
s_lshl_b32 s34, s63, 6
s_add_u32 s34, s34, {WS_C}
v_lshrrev_b32 v14, 2, v0
v_and_b32 v15, 12, v14
v_add_u32 v14, v14, v15
v_and_b32 v15, 3, v0
v_lshl_add_u32 v44, v14, 11, v10
v_lshl_add_u32 v44, v15, 4, v44
v_add_u32 v44, s34, v44''')
    for n in range(1, 6): A(f'v_add_u32 v{44+n}, {65536*n}, v44')
    A(f'''s_lshr_b32 s34, s63, 3
s_lshl_b32 s34, s34, 7
s_and_b32 s35, s63, 3
s_lshl_b32 s35, s35, 5
s_add_u32 s34, s34, s35
s_and_b32 s35, s63, 4
s_add_u32 s34, s34, s35
v_lshrrev_b32 v14, 4, v0
v_lshl_add_u32 v14, v15, 3, v14
v_add_u32 v14, s34, v14
v_lshlrev_b32 v51, 1, v14
global_load_ushort v43, v51, s[4:5]
s_lshl_b32 s34, s34, 2
s_and_b32 s35, s29, {3 if rep4 else 0}
s_lshl_b32 s35, s35, 15
s_add_u32 s34, s34, s35
s_add_u32 s34, s34, {WS_B}
v_bfe_u32 v50, v0, 2, 3
v_and_b32 v14, 4, v50
v_add_u32 v50, v50, v14
v_lshl_add_u32 v50, v50, 11, v10
v_lshl_add_u32 v50, v15, 5, v50
v_add_u32 v50, s34, v50
v_mov_b32 v52, {WS_E}
v_mov_b32 v53, s3''')
    tagreg(9, 50, 8)
    if tlb & 4: A('s_mov_b64 exec, 1\nglobal_load_ushort v62, v51, s[22:23]\ns_mov_b64 exec, -1')
    for x in (96, 128, 152, 176)[:max(rdep, 1)]: A(f'v_mov_b32 v{x+20}, v8\nv_mov_b32 v{x+21}, 0\nv_mov_b32 v{x+22}, 0\nv_mov_b32 v{x+23}, 0')
    bars()
    lds = [(f'global_load_dwordx4 v[{96+4*n}:{99+4*n}], v{44+n}, s[26:27] sc1', 96 + 4 * n) for n in range(6)]
    if cpre:
        for l in lds[:5]: A(l[0])
        A(f's_mov_b64 exec, 0xffffff\n{lds[5][0]}\ns_mov_b64 exec, -1')
    A('v_mov_b32 v36, v9\nv_mov_b32 v37, 0\nv_mov_b32 v38, 0\nv_mov_b32 v39, 0')
    poll([('s_mov_b32 exec_hi, 0\nglobal_load_dwordx4 v[36:39], v50, s[26:27] sc1\ns_mov_b32 exec_hi, -1', 36)], 40, 9, 42, slp=rb)
    ST(9)
    est = '''s_cmp_eq_u32 s63, 0
s_cselect_b32 exec_lo, 1, 0
s_mov_b32 exec_hi, 0
global_store_dword v52, v53, s[26:27] sc1
s_mov_b64 exec, -1'''
    if not eend: A(est)
    A(f'''v_permlane32_swap_b32 v40, v38
v_permlane32_swap_b32 v37, v39
v_permlane16_swap_b32 v40, v37
v_add_f32 v40, v40, v37
v_lshlrev_b32 v43, 16, v43
v_add_f32_dpp v40, v40, v40 row_ror:8 {FULL}
v_add_f32_dpp v40, v40, v40 row_ror:4 {FULL}
v_add_f32 v40, v40, v43''')
    rnd(40)
    if rslp: A(f's_sleep {rslp}')
    if rdep:
        def rload(x):
            for n in range(6): A(('s_mov_b64 exec, 0xffffff\n' if n == 5 else '') + f'global_load_dwordx4 v[{x+4*n}:{x+4*n+3}], v{44+n}, s[26:27] sc1')
            A('s_mov_b64 exec, -1')
        deep(rload, 6, [96, 128, 152, 176][:rdep], 120, 8, 42, 16, slp=cslp)
        ST(8)
    else:
        poll(lds, 120, 8, 42, part=0xffffff)
        ST(8)
        gsum(96, 120, 6, 16)
    A(f'''v_permlane16_swap_b32 v16, v17
v_add_f32 v16, v16, v17
v_add_f32_dpp v16, v16, v16 row_ror:8 {FULL}
v_add_f32_dpp v16, v16, v16 row_ror:4 {FULL}''')
    A(f'''v_add_f32 v16, v16, v40
v_cvt_pk_bf16_f32 v16, v16, v16
s_mov_b32 exec_lo, 0x000f000f
s_mov_b32 exec_hi, 0x000f000f
global_store_short v51, v16, s[22:23] {outf}
''')
    if eend: A(est)
    if dbgp:
        A('s_mov_b64 exec, 1\nv_mov_b32 v20, 0')
        for i, r in enumerate((26, 27, 6, 7, 8, 9, 12, 16, 18, 20, 22, 24, 4, 10)): A(f'v_mov_b32 v21, s{r}\nglobal_store_dword v20, v21, s[24:25] offset:{4*i}')
        A('global_store_dword v20, v10, s[24:25] offset:56')
    A('L_rend:')
    if amp:
        ckc = f'''s_sub_u32 s56, s56, s58
v_cvt_f32_u32 v20, s56
v_cvt_f32_u32 v21, s98
v_rcp_f32 v21, v21
v_mul_f32 v20, v20, v21
{'v_sub_f32 v20, 0x41f00000, v20' if ampclk == 2 else ''}
v_mul_f32 v20, 0x447a0000, v20
v_cvt_u32_f32 v20, v20
v_readfirstlane_b32 s98, v20'''
        if ampclk: A('s_memtime s[56:57]')
        ST(14)
        A(f'''s_memrealtime s[96:97]
s_waitcnt lgkmcnt(0)
s_sub_u32 s98, s100, s98
{f's_mul_i32 s98, s98, {amp[2]}' if amp[2] else 's_lshr_b32 s98, s98, 1'}
{f's_mov_b32 s98, {amp[4]}' if len(amp) > 4 else ''}
{ckc if ampclk else ''}
s_cmp_lg_u32 s29, {amp[3] if amp[3] >= 0 else 's29'}
s_cbranch_scc1 L_ampd
L_amp:
s_memrealtime s[100:101]
s_waitcnt lgkmcnt(0)
s_sub_u32 s100, s100, s96
s_cmp_lt_u32 s100, s98
s_cbranch_scc1 L_amp
L_ampd:''')
    finish(True)
    A('L_norole:')
    if ((guw == 2 or dtouch == 2 or edge) if cfgy else 2 in twhen): bars()
    else:
        A('s_barrier'); touch(1, 'x')
    if wb == 2:
        A(f'''s_cmp_lg_u32 s30, 27
s_cbranch_scc1 L_nowb
s_cmp_lg_u32 s28, 0
s_cbranch_scc1 L_nowb
v_and_b32 v50, 7, v0
v_and_b32 v14, 4, v50
v_add_u32 v50, v50, v14
v_lshl_add_u32 v50, v50, 11, v10
v_add_u32 v50, {WS_B}, v50''')
        tagreg(9, 50, 8)
        poll([('global_load_dword v36, v50, s[26:27] sc1', 36)], 40, 9, 42, slp=2)
        if wbs: A(f's_sleep {wbs}')
        A('buffer_wbl2 sc1\ns_waitcnt vmcnt(0)\nL_nowb:')
    finish(2)

    page()
    A(f'''L_rolef:
s_mul_i32 s63, s29, 11
s_add_u32 s63, s63, s30
s_sub_u32 s63, s63, 16
s_cmp_ge_u32 s63, 86
s_cbranch_scc1 L_norole
s_mul_i32 s34, s28, {128*2752}
s_lshl_b32 s35, s63, 5
s_add_u32 s34, s34, s35
s_add_u32 s36, s16, s34
s_addc_u32 s37, s17, 0
s_mov_b32 s38, {127*2752+32}
s_mov_b32 s39, 0x20000
s_add_u32 s40, s18, s34
s_addc_u32 s41, s19, 0
s_mov_b32 s42, {127*2752+32}
s_mov_b32 s43, 0x20000
s_lshl_b32 s34, s63, 14
s_lshl_b32 s35, s28, 8
s_add_u32 s34, s34, s35
s_add_u32 s20, s20, s34
s_addc_u32 s21, s21, 0
s_add_u32 s4, s4, s35
s_addc_u32 s5, s5, 0
s_lshl_b32 s35, s28, 9
s_and_b32 s34, s29, {3 if rep4 else 0}
s_lshl_b32 s34, s34, 15
s_add_u32 s34, s34, s35
s_add_u32 s34, s34, {WS_B+4096}
s_add_u32 s44, s26, s34
s_addc_u32 s45, s27, 0
v_lshl_add_u32 v6, v12, 14, v13
v_add_u32 v6, v6, v10
v_bfe_u32 v14, v0, 3, 2
v_lshlrev_b32 v14, 3, v14
v_lshl_add_u32 v14, v12, 2, v14
v_bfe_u32 v15, v0, 1, 2
v_add_u32 v14, v14, v15
{frow if dppa else ''}
v_mul_u32_u24 v14, 2752, v14
v_and_b32 v15, 1, v0
v_lshl_add_u32 v15, v15, 4, v14
v_lshl_add_u32 v33, v0, 3, s47
v_lshrrev_b32 v36, 1, v13
v_lshl_add_u32 v36, v12, 2, v36      ; byte offset of this lane's bf16 pair inside 128 columns
v_add_u32 v37, s46, v36
v_and_b32 v38, 15, v0
v_lshrrev_b32 v14, 4, v0
v_lshlrev_b32 v34, 4, v38
v_lshl_add_u32 v34, v14, 10, v34
v_add_u32 v34, 0x1000, v34
v_add_u32 v35, 0x2000, v34
v_lshl_add_u32 v56, v14, 4, s46
v_mov_b32 v57, {L_RED+256}
v_cmp_eq_u32 vcc, 1, v38
v_cndmask_b32 v56, v56, v57, vcc
s_lshl_b32 s34, s28, 2
v_lshl_add_u32 v60, v12, 4, s34
s_lshl_b32 s34, s28, 3
s_add_u32 s34, s34, {L_OP}
v_mul_u32_u24 v57, 80, v38
v_add_u32 v57, s34, v57
{'v_lshl_add_u32 v57, v14, 2, v57' if dppa else ''}
{'s_lshl_b32 s34, s28, 2' + nl + 'v_xor_b32 v60, 1, v14' + nl + 'v_lshl_add_u32 v60, v60, 4, s34' if mstat else ''}
v_and_b32 v58, 12, v0
v_add_u32 v58, v58, v14
v_mul_u32_u24 v58, 80, v58
s_andn2_b32 s34, s63, 3
s_add_u32 s34, s34, s63
s_lshl2_add_u32 s34, s34, s28
s_lshl_b32 s34, s34, 9
s_add_u32 s34, s34, {WS_C}
v_lshl_add_u32 v59, v12, 13, v13
v_add_u32 v59, s34, v59
v_mov_b32 v44, 0x3f803f80
v_lshlrev_b32 v45, 2, v0
ds_write_b32 v45, v44 offset:{L_RED+256}
v_mov_b32 v63, {L_RED}
v_mov_b32 v46, {EPS:#x}
v_and_b32 v40, 1, v0
v_lshlrev_b32 v40, 4, v40
v_mov_b32 v41, 0xffff
v_lshlrev_b32 v40, v40, v41
v_bfe_u32 v41, v0, 1, 2
s_mov_b32 s60, 1
s_mov_b32 s61, 1''')
    if dppa:
        for i in range(16): A(f'v_mov_b32 v{72+i}, v44')
    if mstat: A('s_mov_b32 s60, 0x10001\ns_mov_b32 s61, 0')
    if early: A('s_lshl_b32 s34, s28, 3\nv_lshl_add_u32 v60, v12, 2, s34\nv_and_b32 v42, 3, v0\nv_lshl_add_u32 v58, v42, 4, v58')
    for w in range(4): A(f'v_cmp_eq_u32 vcc, {w}, v41\nv_cndmask_b32 v{48+w}, 0, v40, vcc')
    if tlb & 2: A('s_mov_b64 exec, 1\nbuffer_load_dword v62, v15, s[36:39], 0 offen\nbuffer_load_dword v62, v15, s[40:43], 0 offen\nglobal_load_dword v62, v34, s[20:21]\ns_mov_b64 exec, -1')
    def dloads():
        for n in range(4): A(f'global_load_dwordx4 v[{160+4*n}:{163+4*n}], v{34+(n>>1)}, s[20:21] offset:{4096*(n&1)-4096} {"" if dtouch else "nt"}')
    dp = dpos if cfgy else ('bar1' if dearly else 'first')
    A(f's_and_b32 s68, s63, {frot}\ns_lshl_b32 s34, s68, 6\nv_xor_b32 v37, s34, v37')
    def fl(a, b):
        for jm in range(a, b):
            j, m = jm >> 1, jm & 1
            if jm in fbar and jm >= fsplit: A('s_barrier')
            A(f's_xor_b32 s34, s68, {j}\ns_mul_i32 s34, s34, {(16 if dppa else 32)*2752}\ns_add_u32 m0, s47, {4096*m+1024*j}')
            A(f'buffer_load_dwordx4 v15, s[{36+4*m}:{39+4*m}], s34 offen {wf} lds')
    A('global_load_dword v32, v36, s[4:5]')
    if bpre:
        A('s_sub_u32 s34, s30, 16\ns_lshl_b32 s34, s34, 1\ns_mov_b64 exec, 0x01010101\ns_mov_b32 exec_hi, 0x01010101')
        A('s_and_b32 s34, s30, 3\ns_lshl_b32 s34, s34, 11\nv_add_u32 v9, s34, v6\nglobal_load_dword v62, v9, s[44:45] offset:-4096 sc1\ns_mov_b64 exec, -1')
    if dp == 'mid': dloads()
    def fearly():
        if dp == 'bar1': dloads()
        fl(0, fsplit)
    bars(fearly, 'F')
    if dp == 'first': dloads()
    fl(fsplit, 8)
    F2(1)
    if fine == 2: A('s_waitcnt vmcnt(8)')
    F2(2)
    if dp == 'last': dloads()
    def fhook(n, inner=None):
        n += 4 if dp == 'last' else 0
        for t in range(4):
            A(f's_waitcnt vmcnt({n + 6 - 2 * t})')
            F2(3 + t)
            if inner and t == late - 1: n += inner()
            if t == 3:
                ST(10)
                if inner and repoll and late < 4: fload(96)
            for m in range(2):
                for hf in range(2):
                    r = 128 + 16 * m + 4 * t + 2 * hf
                    A(f'ds_read_b64_tr_b16 v[{r}:{r+1}], v33 offset:{4096*m+1024*t+512*hf}')
            if t == 0: A('v_and_b32 v41, 0xffff0000, v32\nv_lshlrev_b32 v40, 16, v32')
    def gemv(a, between=None):
        for t in range(4):
            if between: between(t)
            for m in range(2):
                c = f'v[{64+4*m}:{67+4*m}]'
                A(f'v_mfma_f32_16x16x32_bf16 {c}, v[{a(t)}:{a(t)+3}], v[{128+16*m+4*t}:{131+16*m+4*t}], {c if t else 0}')
    if fdep:
        def fload(x):
            for n in range(4): A((f's_mov_b64 exec, s[{48+2*n}:{49+2*n}]\n' if fmask else '') + f'global_load_dwordx4 v[{x+4*n}:{x+4*n+3}], v6, s[44:45] offset:{2048*n-4096} sc1')
            if fmask: A('s_mov_b64 exec, -1')
        if fmask:
            for n in range(4): A(f's_mov_b64 s[{48+2*n}:{49+2*n}], -1')
        if ftrig:
            fload(96)
            A('s_and_b32 s34, s29, 4\ns_add_u32 s34, s34, s29\ns_lshl_b32 s34, s34, 11\nv_and_b32 v9, 1, v0\nv_lshl_add_u32 v9, v9, 4, s34\nv_add_u32 v9, v9, v10')
            poll([('global_load_dword v124, v9, s[44:45] offset:-4096 sc1', 124)], 120, 8, 42, hook=lambda n: fhook(5), slp=1)
        def inner():
            if dp == 'in': dloads()
            fload(96)
            return 8 if dp == 'in' else 4
        if late: fhook(0, inner)
        elif not ftrig and not fpeel: fhook(0)
        deep(fload, 4, [96, 176, 192, 208][:fdep], 120, 8, 42, 16, hook=fhook if fpeel and not ftrig else None, issued=bool(late), masked=fmask, slp=fslp)
        ST(8)
    else:
        poll([(f'global_load_dwordx4 v[{96+4*n}:{99+4*n}], v6, s[44:45] offset:{2048*n-4096} sc1', 96 + 4 * n) for n in range(4)], 120, 8, 42, hook=fhook)
        ST(8)
        gsum(96, 120, 4, 16)
    A(f'''{FS(0)}
v_pk_add_f32 v[16:17], v[16:17], v[40:41]
v_cvt_pk_bf16_f32 v18, v16, v17
''')
    if dppa:
        mv = bcast(18, 72, 0xd)
        st = [['v_permlane32_swap_b32 v16, v17', 'v_add_f32 v16, v16, v17']] + [[f'v_add_f32_dpp v16, v16, v16 row_ror:{r} {FULL}'] for r in (8, 4, 2)]
        st += [[f'v_add_f32_dpp v16, v16, v16 row_ror:1 {FULL}', 'v_mov_b32 v17, v16'], [], ['v_permlane16_swap_b32 v16, v17', 'v_add_f32 v16, v16, v17'], []]
        if early:
            dpp = lambda r: f'v_add_f32_dpp v16, v16, v16 row_ror:{r} {FULL}'
            A('v_dot2_f32_bf16 v16, v18, v44, 0\nv_dot2_f32_bf16 v17, v18, v18, 0\ns_waitcnt lgkmcnt(0)')
            mv = mv[:2] + ['v_permlane32_swap_b32 v16, v17'] + mv[2:4] + ['v_add_f32 v16, v16, v17'] + mv[4:]
            for o in mv[:2]: A(o)
            mv = mv[2:]
            st = [[dpp(8)], [dpp(4)], [dpp(2)], [dpp(1), 'v_mov_b32 v17, v16'], ['v_permlane16_swap_b32 v16, v17', 'v_add_f32 v16, v16, v17'], [f's_mov_b64 exec, s[60:61]\nds_write_b32 v60, v16 offset:{L_RED}\ns_mov_b64 exec, -1'], [], []]
        elif mstat: A('s_waitcnt lgkmcnt(0)')
        else: A('v_dot2_f32_bf16 v16, v18, v44, 0\nv_dot2_f32_bf16 v17, v18, v18, 0\ns_waitcnt lgkmcnt(0)')
        for o in mv[:6]: A(o)
        mv = mv[6:]
        dl = [f'global_load_dwordx4 v[{160+4*n}:{163+4*n}], v{34+(n>>1)}, s[20:21] offset:{4096*(n&1)-4096}' for n in range(4)] if dp == 'post' else []
        for t in range(4):
            if mstat: A(f'v_mfma_f32_16x16x32_bf16 v[88:91], v[{72+4*t}:{75+4*t}], v[{72+4*t}:{75+4*t}], {"v[88:91]" if t else 0}')
            for m in range(2):
                c = f'v[{64+4*m}:{67+4*m}]'
                A(f'v_mfma_f32_16x16x32_bf16 {c}, v[{72+4*t}:{75+4*t}], v[{128+16*m+4*t}:{131+16*m+4*t}], {c if t else 0}')
                if dl: A(dl.pop(0))
                for o in mv[:2]: A(o)
                mv = mv[2:]
                if not mstat:
                    for o in st.pop(0): A(o)
    else:
        A('ds_write_b32 v37, v18')
        for t in range(4): A(f'ds_read_b128 v[{72+4*t}:{75+4*t}], v56 offset:{64*t}')
        if dp == 'post': dloads()
        A('v_dot2_f32_bf16 v16, v18, v44, 0\nv_dot2_f32_bf16 v17, v18, v18, 0\nv_permlane32_swap_b32 v16, v17\nv_add_f32 v16, v16, v17')
        for r in (8, 4): A(f'v_add_f32_dpp v16, v16, v16 row_ror:{r} {FULL}')
        def between(t):
            if t == 1: A(f'v_add_f32_dpp v16, v16, v16 row_ror:2 {FULL}')
            if t == 2: A(f'v_add_f32_dpp v16, v16, v16 row_ror:1 {FULL}\nv_mov_b32 v17, v16')
            if t == 3: A('v_permlane16_swap_b32 v16, v17\nv_add_f32 v16, v16, v17')
            A(f's_waitcnt lgkmcnt({3-t})')
        gemv(lambda t: 72 + 4 * t, between)
    if early:
        A(f'''{FS(1)}
s_mov_b32 exec_hi, 0
ds_write2_b32 v57, v64, v68 offset0:0 offset1:8
s_mov_b32 exec_hi, -1
s_waitcnt lgkmcnt(1)
s_barrier
ds_read_b128 v[24:27], v63
ds_read_b128 v[28:31], v63 offset:16
{WK(0)}
s_waitcnt lgkmcnt(2)
{FS(2)}
s_barrier
{FS(3)}
ds_read_b128 v[16:19], v58 offset:{L_OP}
{WK(1)}
s_waitcnt lgkmcnt(1)
v_pk_add_f32 v[24:25], v[24:25], v[26:27]
v_pk_add_f32 v[28:29], v[28:29], v[30:31]
v_pk_add_f32 v[24:25], v[24:25], v[28:29]
v_mul_f32 v24, 0xbb000000, v24       ; -mean
v_fmamk_f32 v28, v25, 0x3b000000, v46
v_fma_f32 v28, -v24, v24, v28
v_max_f32 v28, v28, v46
v_rsq_f32 v29, v28
s_waitcnt lgkmcnt(0)
{FS(4)}
v_pk_add_f32 v[16:17], v[16:17], v[18:19]
v_fmac_f32 v16, v24, v17
v_rcp_f32 v28, v28
v_mul_f32 v29, {LOG2E ^ 0x80000000:#x}, v29
v_add_f32_dpp v16, v16, v16 quad_perm:[1,0,3,2] {FULL}
v_mul_f32 v17, v16, v29
v_exp_f32 v17, v17
v_mul_f32_dpp v18, v16, v16 quad_perm:[2,3,0,1] {FULL}
v_add_f32 v17, 1.0, v17
v_rcp_f32 v17, v17
v_mul_f32 v18, v18, v28
v_mul_f32 v16, v18, v17
v_cvt_pk_bf16_f32 v16, v16, v16''')
    else:
        A(f'''{FS(1)}
s_mov_b64 exec, s[60:61]
ds_write_b32 v60, v{88 if mstat else 16} offset:{L_RED}
{'s_mov_b32 exec_lo, -1' + nl + 's_mov_b32 exec_hi, 0' + nl + 'ds_write2_b32 v57, v64, v68 offset0:0 offset1:8' if dppa else 's_mov_b64 exec, 0xffff' + nl + 'ds_write2_b64 v57, v[64:65], v[68:69] offset0:0 offset1:4'}
s_mov_b64 exec, -1
s_waitcnt lgkmcnt(0)''')
        ST(9)
        A(f'''{FS(2)}
s_barrier
{FS(3)}
ds_read_b128 v[24:27], v63
ds_read_b128 v[28:31], v63 offset:16
ds_read_b128 v[16:19], v58 offset:{L_OP}
ds_read_b128 v[20:23], v58 offset:{L_OP+16}
ds_read_b128 v[72:75], v58 offset:{L_OP+32}
ds_read_b128 v[76:79], v58 offset:{L_OP+48}
s_waitcnt lgkmcnt(4)
{FS(4)}
v_pk_add_f32 v[24:25], v[24:25], v[26:27]
v_pk_add_f32 v[28:29], v[28:29], v[30:31]
v_add_f32 v24, v24, v25
v_add_f32 v28, v28, v29
v_mul_f32 v24, 0xbb000000, v24       ; -mean
v_fmamk_f32 v28, v28, 0x3b000000, v46
v_fma_f32 v28, -v24, v24, v28
v_max_f32 v28, v28, v46
v_rsq_f32 v28, v28
s_waitcnt lgkmcnt(2)
v_pk_add_f32 v[16:17], v[16:17], v[18:19]
v_pk_add_f32 v[20:21], v[20:21], v[22:23]
v_mul_f32 v29, {LOG2E ^ 0x80000000:#x}, v28
v_pk_add_f32 v[16:17], v[16:17], v[20:21]
v_fmac_f32 v16, v24, v17
v_mul_f32 v17, v16, v29
v_exp_f32 v17, v17
s_waitcnt lgkmcnt(0)
v_pk_add_f32 v[72:73], v[72:73], v[74:75]
v_add_f32 v17, 1.0, v17
v_rcp_f32 v17, v17
v_pk_add_f32 v[76:77], v[76:77], v[78:79]
v_mul_f32 v16, v16, v28              ; gate
v_pk_add_f32 v[72:73], v[72:73], v[76:77]
v_mul_f32 v16, v16, v17              ; silu(gate)
v_fmac_f32 v72, v24, v73
v_mul_f32 v16, v16, v28
v_mul_f32 v16, v16, v72
v_cvt_pk_bf16_f32 v16, v16, v16''')
    A(FS(5))
    if dp == 'post': A('s_waitcnt vmcnt(0)')
    ops = [f'v_and_b32_dpp v{72+4*n+w}, v16, v{48+w} row_newbcast:{4*n} {FULL}' for n in range(4) for w in range(4)]
    for n in range(4):
        for o in ops[(4 * n + 2 if n else 0):4 * n + 6]: A(o)
        A(f'v_mfma_f32_16x16x32_bf16 v[64:67], v[{72+4*n}:{75+4*n}], v[{160+4*n}:{163+4*n}], {"v[64:67]" if n else 0}')
    A('v_bfi_b32 v64, v11, v8, v64\nglobal_store_dwordx4 v59, v[64:67], s[26:27] sc1')
    A(FS(6))
    finish()

    page()
    A(f'''L_vwave:
s_add_u32 s36, s8, s34
s_addc_u32 s37, s9, 0
s_lshl3_add_u32 s35, s31, s32
s_lshl_b32 s35, s35, 10
s_add_u32 s44, s26, s35
s_addc_u32 s45, s27, 0
v_mov_b32 v56, {L_ML}
s_lshr_b32 s56, s2, 6
s_lshl_b32 s56, s56, 7
s_and_b32 s35, s2, 63
s_add_u32 s56, s56, s35
s_lshl_b32 s56, s56, 7
s_add_u32 s56, s56, {WS_PR}
s_cmp_lg_u32 s28, {99 if nox else 5}
s_cbranch_scc1 L_nowarm
s_load_dword s54, s[26:27], s56 glc
s_load_dword s55, s[26:27], s56 offset:0x2000 glc
L_nowarm:''')
    ST(7)
    selectors(40, 28)
    A(f'''s_lshl_b32 s34, s63, 10
s_add_u32 s34, s34, {L_OP}
v_lshrrev_b32 v12, 5, v0
v_lshl_add_u32 v12, v12, 9, s34
v_lshl_add_u32 v12, v4, 2, v12
v_bfe_u32 v13, v0, 4, 1
v_lshl_add_u32 v12, v13, 5, v12
v_lshlrev_b32 v14, 3, v0
s_lshl_b32 s34, s32, 5
s_add_u32 s34, s34, s63
s_lshl_b32 s34, s34, 2
v_lshl_add_u32 v6, v3, 4, s34
v_mov_b32 v57, 1
s_waitcnt vmcnt(4)''')
    ST(1)
    layernorm(24, 28, 24)
    A(f'ds_write_b128 v5, v[24:27] offset:{L_H}\ns_waitcnt lgkmcnt(0)\nds_read_b32 v48, v6 offset:{L_H}\ns_add_u32 s3, s3, {EPOCH_STEP:#x}')
    tagreg(8, 14, 4)
    A('s_waitcnt lgkmcnt(0)')
    for n in range(2): afrag(24 + 4 * n, 48, n, 40)
    A('s_waitcnt vmcnt(0)')
    for n in range(2):
        for hf in range(2):
            c = f'v[{16+4*hf}:{19+4*hf}]'
            A(f'v_mfma_f32_16x16x32_bf16 {c}, v[{24+4*n}:{27+4*n}], v[{64+8*n+4*hf}:{67+8*n+4*hf}], {c if n else 0}')
    def part_write():
        A(f'''s_mov_b32 exec_lo, 0x00ff00ff
s_mov_b32 exec_hi, 0xff00ff00
ds_write2_b64 v12, v[16:17], v[20:21] offset0:0 offset1:1
ds_write2_b64 v12, v[18:19], v[22:23] offset0:2 offset1:3''')
    def part_sum(off):
        for n in range(4): A(f'ds_read_b128 v[{16+4*n}:{19+4*n}], v5 offset:{L_OP+1024*n}')
        A('s_waitcnt lgkmcnt(0)')
        sum8(16)
    part_write()
    A(f'''s_mov_b64 exec, 1
s_waitcnt lgkmcnt(0)
ds_add_u32 v56, v57 offset:48
s_mov_b64 exec, -1
s_cmp_lg_u32 s28, {99 if noq else 4}
s_cbranch_scc1 L_vstream
''')
    ldsspin('ds_read_b32 v15, v56 offset:48', 'v_cmp_ne_u32 vcc, 4, v15')
    part_sum(0)
    A('v_and_or_b32 v16, v16, -16, v8\nv_and_or_b32 v17, v17, -16, v8\nglobal_store_dwordx2 v14, v[16:17], s[44:45] ' + qst)
    ST(2)
    A(f'''L_vstream:
{'s_mov_b64 exec, 1' + nl + 'buffer_load_dword v29, v2, s[36:39], s33 offen nt' + nl + 's_mov_b64 exec, -1' if tlb & 8 else ''}
s_setprio 0
s_cmp_lg_u32 s28, {99 if nox else 5}
s_cbranch_scc1 L_noprobe
s_mov_b32 s54, {0 if psum else -1}
s_mov_b32 s55, {0 if psum else -1}
s_waitcnt lgkmcnt(0)''')
    for i in range(2 * nprobe):
        A(f's_memtime s[50:51]\ns_load_dword s35, s[26:27], s56 offset:{0x2000 * (i & 1)} glc\ns_waitcnt lgkmcnt(0)\ns_memtime s[52:53]\ns_waitcnt lgkmcnt(0)\ns_sub_u32 s35, s52, s50\n{"s_add_u32" if psum else "s_min_u32"} s{54 + (i & 1)}, s{54 + (i & 1)}, s35')
    A(f'''s_getreg_b32 s34, hwreg(HW_REG_XCC_ID, 0, 4)
s_andn2_b32 s35, s3, 31
s_or_b32 s34, s34, s35
s_cmp_lt_u32 s55, s54
s_cselect_b32 s35, 16, 0
s_or_b32 s34, s34, s35
v_mov_b32 v31, s34
s_lshl_b32 s34, s29, 6
s_add_u32 s34, s34, s30
s_lshl_b32 s34, s34, 2
s_add_u32 s34, s34, {WS_X}
v_mov_b32 v30, s34
s_mov_b64 exec, 1
global_store_dword v30, v31, s[26:27] {xst}
s_mov_b64 exec, -1
L_noprobe:
s_lshl_b32 s34, s63, 2
v_mov_b32 v28, s34''')
    ST(8)
    ldsspin(f'ds_read_b32 v15, v28 offset:{L_ML+64}', 'v_cmp_eq_u32 vcc, 0, v15', 1)
    A(f'''s_lshl_b32 s34, s29, 8
s_add_u32 s34, s34, {WS_X}
v_and_b32 v30, 31, v0
v_lshl_add_u32 v30, v30, 2, s34
s_getreg_b32 s34, hwreg(HW_REG_XCC_ID, 0, 4)
s_andn2_b32 s46, s3, 31
s_or_b32 s46, s46, s34''')
    tv = thrv or thr
    stream({xpos: 'global_load_dword v31, v30, s[26:27] sc1',
            xpos + tv: f'''v_and_b32 v31, -17, v31
v_cmp_ne_u32 s[48:49], s46, v31
s_cmp_eq_u64 s[48:49], {"s[48:49]" if nox else (1 if slowall else 0)}
s_cselect_b64 s[50:51], -1, 0
s_cselect_b64 s[52:53], 0, -1
s_cbranch_scc0 L_requeue
L_requeued:'''}, tv, extra_at=xpos, slow=slowv)
    cold.append(lambda: A('''L_requeue:
s_cmp_lg_u32 s28, 4
s_cbranch_scc1 L_requeued
global_store_dwordx2 v14, v[16:17], s[44:45] sc1
s_waitcnt vmcnt(0)
s_branch L_requeued'''))
    A('v_mov_b32 v11, 0xff')
    if vprio == 0: A('s_setprio 3')
    if sq: A(f'''s_lshl2_add_u32 s54, s30, s63
s_andn2_b32 s55, s54, 15
s_mul_i32 s55, s55, 3
s_add_u32 s54, s54, s55
s_mul_i32 s54, s54, 2752
s_mul_i32 s55, s29, 352
s_andn2_b32 s55, s55, 63
s_min_u32 s55, s55, {2752-384}
s_add_u32 s54, s54, s55''')
    if v4:
        A(f'''s_mul_i32 s34, s63, {2*528}
s_add_u32 s34, s34, {L_OP}
v_lshrrev_b32 v12, 5, v0
v_mul_u32_u24 v12, 528, v12
v_lshl_add_u32 v12, v4, 1, v12
v_bfe_u32 v13, v0, 4, 1
v_lshl_add_u32 v12, v13, 4, v12
v_add_u32 v12, s34, v12
s_lshl_b32 s34, s63, 7
v_mul_u32_u24 v13, 528, v3
v_add3_u32 v13, v13, v4, s34
v_add_u32 v13, {L_OP}, v13
v_lshrrev_b32 v14, 4, v0
v_lshlrev_b32 v14, 5, v14
v_lshrrev_b32 v15, 2, v4
v_add3_u32 v14, v14, v15, s34        ; position inside the A record
s_and_b32 s50, s50, 0x00ff00ff
s_and_b32 s51, s51, 0x00ff00ff
s_and_b32 s52, s52, 0x00ff00ff
s_and_b32 s53, s53, 0x00ff00ff''')
    tagreg(8, 14, 8)
    tagmask(10, 14)
    ST(3)
    A(f'''s_lshl_b32 s34, s63, 8
v_lshl_add_u32 v6, v3, 5, s34
s_barrier''')
    ST(4)
    A(f'ds_read_b128 v[48:51], v6 offset:{L_P}\nds_read_b128 v[52:55], v6 offset:{L_P+16}\ns_waitcnt lgkmcnt(0)')
    for i in range(16): afrag(64 + 4 * i, 48 + i // 2, i & 1, 40)
    for i in range(16):
        for hf in range(2):
            if vprio == 1 and (i, hf) == (12, 0): A('s_setprio 3')
            if vfill and i >= 13 and hf == 0:
                Lw = lab('busy')
                A(f'{Lw}:\nv_mov_b32 v1, v1\ns_getreg_b32 s34, hwreg(HW_REG_IB_STS, 0, 4)\ns_cmp_gt_u32 s34, {31-2*i}\ns_cbranch_scc1 {Lw}')
            if hf == 0 or i >= 12: A(f's_waitcnt vmcnt({31-2*i-hf if i >= 12 else 30-2*i})')
            c = f'v[{16+4*hf}:{19+4*hf}]'
            A(f'v_mfma_f32_16x16x32_bf16 {c}, v[{64+4*i}:{67+4*i}], v[{128+8*i+4*hf}:{131+8*i+4*hf}], {c if i else 0}')
    def stouch():
        for t in sq:
            for m in range(2):
                for j in range(6): A(f's_load_dword s35, s[{16+2*m}:{17+2*m}], s54 offset:{16*t*2752+64*j}')
    def ttwait():
        stouch()
        A(f'''s_barrier
L_tt:
s_memrealtime s[96:97]
s_waitcnt lgkmcnt(0)
s_sub_u32 s96, s96, s98
s_cmp_lt_u32 s96, {tailtest}
s_cbranch_scc1 L_tt''')
    if vlast:
        if tailtest: ttwait()
        part_write()
        A(f'ds_write_b32 v28, v11 offset:{L_ML+80}\ns_mov_b64 exec, -1\nds_read_b128 v[32:35], v56 offset:80')
        for n in range(4): A(f'ds_read_b128 v[{64+4*n}:{67+4*n}], v5 offset:{L_OP+1024*n}')
        A(f'''s_waitcnt lgkmcnt(4)
v_min3_u32 v32, v32, v33, v34
v_min_u32 v32, v32, v35
v_cmp_ne_u32 vcc, 0, v32
s_waitcnt lgkmcnt(2)
v_pk_add_f32 v[64:65], v[64:65], v[68:69]
v_pk_add_f32 v[66:67], v[66:67], v[70:71]
s_and_b64 s[50:51], s[50:51], vcc
s_and_b64 s[52:53], s[52:53], vcc
s_waitcnt lgkmcnt(0)
v_pk_add_f32 v[72:73], v[72:73], v[76:77]
v_pk_add_f32 v[74:75], v[74:75], v[78:79]
v_pk_add_f32 v[64:65], v[64:65], v[72:73]
v_pk_add_f32 v[66:67], v[66:67], v[74:75]
v_permlane32_swap_b32 v64, v66
v_permlane32_swap_b32 v65, v67
v_pk_add_f32 v[64:65], v[64:65], v[66:67]
v_bfi_b32 v64, v10, v8, v64
s_mov_b64 exec, s[50:51]
global_store_dwordx2 v14, v[64:65], s[44:45] offset:{AOFF}
s_mov_b64 exec, s[52:53]
global_store_dwordx2 v14, v[64:65], s[44:45] offset:{AOFF} sc1''')
    elif v4:
        A(f'''s_mov_b32 exec_lo, 0x00ff00ff
s_mov_b32 exec_hi, 0xff00ff00
ds_write_b128 v12, v[16:19]
ds_write_b128 v12, v[20:23] offset:256
s_mov_b64 exec, -1
{WK(4)}
s_waitcnt lgkmcnt(0)''')
        ST(5)
        A('s_barrier')
    else:
        part_write()
        A('s_mov_b64 exec, -1\ns_waitcnt lgkmcnt(0)')
        ST(5)
        A('s_barrier\ns_cmp_lg_u32 s28, 4\ns_cbranch_scc1 L_vend')
    if tailtest and not vlast: ttwait()
    if v4:
        A(f'''ds_read_b128 v[16:19], v13
{WK(5)}
s_waitcnt lgkmcnt(0)
v_permlane32_swap_b32 v16, v18
v_permlane32_swap_b32 v17, v19
v_pk_add_f32 v[16:17], v[16:17], v[18:19]
v_permlane16_swap_b32 v16, v17
v_add_f32 v16, v16, v17
v_add_f32_dpp v16, v16, v16 row_ror:8 {FULL}
s_mov_b64 exec, s[50:51]
v_bfi_b32 v17, v10, v8, v16
global_store_dword v14, v17, s[44:45] offset:{AOFF}
s_mov_b64 exec, s[52:53]
v_bfi_b32 v16, v10, v8, v16
global_store_dword v14, v16, s[44:45] offset:{AOFF} sc1''')
    elif not vlast:
        part_sum(512)
        A('v_bfi_b32 v16, v10, v8, v16')
        A(f's_mov_b64 exec, s[50:51]\nglobal_store_dwordx2 v14, v[16:17], s[44:45] offset:{AOFF}\ns_mov_b64 exec, s[52:53]')
        A(f'global_store_dwordx2 v14, v[16:17], s[44:45] offset:{AOFF} sc1')
    ST(6)
    A(('' if tailtest else 's_barrier\n') + 'L_vend:')
    if not tailtest: stouch()
    finish()
    A(f'L_exit:\ns_endpgm\nL_code_end:\n.fill (L_pc+{33*(1024 if pf == 3 else 512)}-L_code_end)/4, 4, 0xbf810000')
    A.raw(f'''.section .rodata,"a"
.p2align 6
.amdhsa_kernel {NAME}_kernel
  .amdhsa_next_free_vgpr 256
  .amdhsa_next_free_sgpr 102
  .amdhsa_accum_offset 256
  .amdhsa_group_segment_fixed_size 0
  .amdhsa_kernarg_size 96
  .amdhsa_user_sgpr_count 2
  .amdhsa_user_sgpr_kernarg_segment_ptr 1
  .amdhsa_system_sgpr_workgroup_id_x 1
  .amdhsa_float_denorm_mode_32 3
.end_amdhsa_kernel''')
    return A.text()

def STAMPS(al, roles, KW, VW):
    import numpy as np
    return [('start', al, KW + VW, 0), ('V at vwave', al, VW, 7), ('Q: x landed', al, VW, 1), ('Q: stored', al, [4], 2), ('V probed', al, VW, 8), ('probe/100 lo', np.arange(256) % 8 < 4, KW, 12), ('probe/100 hi', np.arange(256) % 8 >= 4, KW, 12), ('K issued', al, KW, 1), ('K go', al, KW, 2),
            ('K q gathered', al, KW, 3), ('K qk done', al, KW, 11), ('K ml lds', al, [0], 4), ('K ml gathered', al, KW, 5), ('K p written', al, KW, 6),
            ('V issued', al, VW, 3), ('V bar1', al, VW, 4), ('V pv done', al, VW, 5), ('A stored', al, VW, 6), ('K bar3', al, KW, 7),
            ('W wts landed', roles == 'W', KW, 10), ('F wts landed', roles == 'F', KW, 10),
            ('W gathered', roles == 'W', KW, 8), ('W end', roles == 'W', KW, 15), ('F gathered', roles == 'F', KW, 8), ('F gemv done', roles == 'F', KW, 9),
            ('F end', roles == 'F', KW, 15), ('R h seen', roles == 'R', [0], 9), ('R gathered', roles == 'R', [0], 8), ('R end', roles == 'R', [0], 15)]

if __name__ == '__main__':
    out = sys.argv[1] if len(sys.argv) > 1 else f'cdna_kernels/{NAME}.s'
    kw = eval('dict(' + (sys.argv[2] if len(sys.argv) > 2 else '') + ')')
    open(out, 'w').write(gen(**kw))
```

```python
import sys
from asmlib import Asm

NAME = 'sequential_preLN__sliding_block_cached__swiglu_ffn__decode'
WS_QA, WS_B, WS_PR, WS_ML, WS_X, WS_E, WS_C, WS_ST = 0x0, 0x40000, 0x60000, 0x70000, 0x72000, 0x73000, 0x80000, 0x100000
EPOCH_STEP = 0x5bd1e3c7
L_P, L_OP, L_SCR, L_H, L_RED, L_ML, L_Q, L_W = 0x0, 0x400, 0x1600, 0x1a00, 0x1e00, 0x2000, 0x2100, 0x2400
LDS_BYTES = L_W + 0x8000
SPIN = 0x40000
LOG2E = 0x3fb8aa3b
SCALE = 0x3db504f3
EPS = 0x3727c5ac
FULL = 'row_mask:0xf bank_mask:0xf'
nl = '\n'

def gen(diag=False, span=False, lite=False, amp=None, mlsleep=2, kvf='nt', kpre=3, twhen=(1, 1), tf='', wf='', thr=8, gow=4, qpos=24,
        dearly=True, thrv=None, notail=False, noml=False, noq=False, tailtest=0, psleep=0, nosr=0, afast=True, pages=True, pf=2, fdep=1, rdep=1, ftrig=False, pol=None, nprobe=2, psum=False, cfgy=True, guw=2, wsplit=2, dpos='post', wo0=False, trig=0, tlb=0, outf='', slowk=(), slowv=(), slowif='ge', fsplit=0, dtouch=2, frot=0, fpeel=False, bpre=False, apre=False, nox=False, qst='', xst='', xpos=12, wo1=1, late=4, fbar=(), xbar=True, guall=False, edge=False, repoll=False, gut=None, dbgp=False, rot=0x9e3779b1, v4=True, wqm=0, cpre=True, rslp=0, eend=False, vprio=0, rb=1, fmask=0, wmask=2, wb=0, slowall=False, share=True, wbs=0, dtrig=0, wox=False, gsplit=0, fresh=0, rep4=True, wslp=0, fslp=0, cslp=0, dppa=True, mstat=False, fine=False, early=True, fill=0, vfill=0, wk=(0, 0, 0, 0, 0, 0), wlast=True, vlast=True, fspin=0, gsr='F', sq=(), stlb=0, clk=False, ampclk=0, ampv=0):
    WK = lambda i: nl.join(['v_mov_b32 v1, v1'] * wk[i])
    if isinstance(rot, int): rotcode = f's_mul_i32 s33, s2, {rot:#x}\ns_lshr_b32 s33, s33, 26'
    elif rot == (0, 4, 1): rotcode = 's_lshl2_add_u32 s33, s31, s32'
    else: rotcode = f's_mul_i32 s33, s29, {rot[0]}\ns_mul_i32 s34, s31, {rot[1]}\ns_add_u32 s33, s33, s34\ns_mul_i32 s34, s32, {rot[2]}\ns_add_u32 s33, s33, s34'
    AOFF = 0 if share else 512
    if vlast: v4 = False
    assert v4 or vlast or not dppa
    wot = '''s_lshl_b32 s35, s29, 6
s_add_u32 s34, s34, s35
s_lshl_b32 s34, s34, 13
s_add_u32 s34, s34, 2048
v_and_b32 v127, 16, v0
v_add_u32 v127, v127, v0
v_lshl_add_u32 v127, v127, 7, s34''' if dppa and v4 else '''s_andn2_b32 s35, s34, 3
s_add_u32 s34, s34, s35
s_add_u32 s34, s34, 4
s_lshl_b32 s35, s29, 7
s_add_u32 s34, s34, s35
s_lshl_b32 s34, s34, 12
v_lshl_add_u32 v127, v0, 7, s34''' if dppa else '''s_andn2_b32 s35, s34, 7
s_add_u32 s34, s34, s35
s_add_u32 s34, s34, 8
s_lshl_b32 s35, s29, 7
s_add_u32 s34, s34, s35
s_lshl_b32 s34, s34, 12
v_lshl_add_u32 v127, v0, 7, s34'''
    frow = '''v_bfe_u32 v14, v0, 3, 1
v_lshl_add_u32 v14, v14, 3, v12
v_bfe_u32 v15, v0, 2, 1
v_lshl_add_u32 v14, v14, 1, v15
v_bfe_u32 v15, v0, 4, 1
v_lshl_add_u32 v14, v14, 1, v15
v_bfe_u32 v15, v0, 1, 1
v_lshl_add_u32 v14, v14, 1, v15'''
    wrow = '''v_bfe_u32 v15, v0, 3, 1
v_lshl_add_u32 v15, v32, 2, v15
v_lshl_add_u32 v15, v15, 1, v12
v_bfe_u32 v33, v0, 2, 1
v_lshl_add_u32 v15, v15, 1, v33
v_lshlrev_b32 v15, 2, v15''' if v4 else '''v_bfe_u32 v15, v0, 3, 1
v_lshl_add_u32 v15, v32, 4, v15
v_lshl_add_u32 v15, v15, 1, v12
v_bfe_u32 v33, v0, 2, 1
v_lshl_add_u32 v15, v15, 1, v33'''
    A = Asm()
    cold = []
    uid = [0]
    def lab(s):
        uid[0] += 1
        return f'L_{s}_{uid[0]}'
    def ST(n):
        if amp and n == amp[0]: A(f's_mem{"" if amp[2] == 0 else "real"}time s[98:99]')
        if amp and n == amp[1]: A(f's_mem{"" if amp[2] == 0 else "real"}time s[100:101]')
        if diag: A(f's_memrealtime s[96:97]\ns_waitcnt lgkmcnt(0)\nv_writelane_b32 v7, s96, {n}')
        if lite and n in (8, 10): A(f's_memrealtime s[{(90, 92)[n == 10]}:{(91, 93)[n == 10]}]')
    def FS(n):
        return f's_memtime s[{70+2*n}:{71+2*n}]' if fine == 1 else ''
    def F2(n):
        if fine == 2: A(f's_memrealtime s[{70+2*n}:{71+2*n}]')
    def flush_cold():
        for f in cold: f()
        cold.clear()
    def finish(last=False):
        if diag or lite or (span and last == span):
            if clk: A('s_memtime s[94:95]\ns_waitcnt lgkmcnt(0)\ns_sub_u32 s94, s94, s92\nv_writelane_b32 v7, s94, 14')
            A(f'''s_memrealtime s[96:97]
s_waitcnt lgkmcnt(0)
v_writelane_b32 v7, s96, 15
v_writelane_b32 v7, s98, 0
{nl.join(f'v_writelane_b32 v7, s{70+2*i}, {1+i}' for i in range(7)) if fine else ''}
{'v_writelane_b32 v7, s90, 8' + nl + 'v_writelane_b32 v7, s92, 10' if lite else ''}
s_mov_b64 exec, 0xffff
s_lshl_b32 s34, s2, 3
s_add_u32 s34, s34, s28
s_lshl_b32 s34, s34, 6
s_add_u32 s34, s34, {WS_ST}
v_lshl_add_u32 v1, v0, 2, s34
global_store_dword v1, v7, s[26:27]''')
        A('s_endpgm')
        flush_cold()
    def wred(op, v, t):
        for r in (8, 4, 2, 1): A(f'{op}_dpp v{v}, v{v}, v{v} row_ror:{r} {FULL}')
        for sw in (16, 32): A(f'v_mov_b32 v{t}, v{v}\nv_permlane{sw}_swap_b32 v{v}, v{t}\n{op} v{v}, v{v}, v{t}')
    def rnd(v):
        A(f'v_cvt_pk_bf16_f32 v{v}, v{v}, v{v}\nv_lshlrev_b32 v{v}, 16, v{v}')
    def layernorm(x, u, o):
        s, t, mb, dl = u + 8, u + 9, u + 10, u + 11
        for i in range(4): A(f'v_lshlrev_b32 v{u+2*i}, 16, v{x+i}\nv_and_b32 v{u+2*i+1}, 0xffff0000, v{x+i}')
        A(f'v_add_f32 v{s}, v{u}, v{u+1}\nv_add_f32 v{t}, v{u+2}, v{u+3}\nv_add_f32 v{mb}, v{u+4}, v{u+5}\nv_add_f32 v{dl}, v{u+6}, v{u+7}')
        A(f'v_add_f32 v{s}, v{s}, v{t}\nv_add_f32 v{mb}, v{mb}, v{dl}\nv_add_f32 v{s}, v{s}, v{mb}')
        wred('v_add_f32', s, t)
        A(f'v_mul_f32 v{dl}, 0x3b000000, v{s}')
        A(f'v_cvt_pk_bf16_f32 v{mb}, v{dl}, v{dl}\nv_lshlrev_b32 v{mb}, 16, v{mb}')
        for i in range(8): A(f'v_sub_f32 v{u+i}, v{u+i}, v{mb}')
        A(f'v_sub_f32 v{dl}, v{dl}, v{mb}')
        A(f'v_mul_f32 v{s}, v{u}, v{u}\nv_mul_f32 v{t}, v{u+1}, v{u+1}')
        for i in range(2, 8, 2): A(f'v_fmac_f32 v{s}, v{u+i}, v{u+i}\nv_fmac_f32 v{t}, v{u+i+1}, v{u+i+1}')
        A(f'v_add_f32 v{s}, v{s}, v{t}')
        fill = [f'v_cvt_pk_bf16_f32 v{o+i}, v{u+2*i}, v{u+2*i+1}' for i in range(4)]
        for i in range(4): fill += [f'v_lshlrev_b32 v{u+2*i}, 16, v{o+i}', f'v_and_b32 v{u+2*i+1}, 0xffff0000, v{o+i}']
        fill.append(f'v_mul_f32 v{dl}, v{dl}, v{dl}')
        for r in (8, 4, 2, 1):
            A(fill.pop(0)); A(fill.pop(0))
            A(f'v_add_f32_dpp v{s}, v{s}, v{s} row_ror:{r} {FULL}')
        for sw in (16, 32):
            A(f'v_mov_b32 v{t}, v{s}'); A(fill.pop(0)); A(fill.pop(0))
            A(f'v_permlane{sw}_swap_b32 v{s}, v{t}\nv_add_f32 v{s}, v{s}, v{t}')
        A(fill.pop(0))
        A(f'v_mul_f32 v{s}, 0x3b000000, v{s}\nv_sub_f32 v{s}, v{s}, v{dl}\nv_max_f32 v{s}, 0, v{s}')
        rnd(s)
        A(f'v_add_f32 v{s}, {EPS:#x}, v{s}'); rnd(s)
        A(f'v_sqrt_f32 v{s}, v{s}'); rnd(s)
        A(f'v_rcp_f32 v{s}, v{s}')
        for i in range(8): A(f'v_mul_f32 v{u+i}, v{u+i}, v{s}')
        for i in range(4): A(f'v_cvt_pk_bf16_f32 v{o+i}, v{u+2*i}, v{u+2*i+1}')
    def selectors(sel, t):
        A(f'''v_and_b32 v{t}, 1, v0
v_cmp_eq_u32 vcc, 1, v{t}
v_mov_b32 v{t+1}, 0x0c0c0100
v_mov_b32 v{t+2}, 0x01000c0c
v_cndmask_b32 v{t+1}, v{t+1}, v{t+2}, vcc
v_mov_b32 v{t+2}, 0x0c0c0302
v_mov_b32 v{t+3}, 0x03020c0c
v_cndmask_b32 v{t+2}, v{t+2}, v{t+3}, vcc
v_mov_b32 v{t+3}, 0x0c0c0c0c
v_bfe_u32 v{t}, v0, 1, 2''')
        for w in range(4):
            A(f'v_cmp_eq_u32 vcc, {w}, v{t}\nv_cndmask_b32 v{sel+w}, v{t+3}, v{t+1}, vcc\nv_cndmask_b32 v{sel+4+w}, v{t+3}, v{t+2}, vcc')
    def afrag(dst, src, par, sel):
        for w in range(4): A(f'v_perm_b32 v{dst+w}, v{src}, v{src}, v{sel+4*par+w}')
    def tagreg(dst, addr, bits):
        A(f'v_bfe_u32 v{dst}, v{addr}, 4, 1\nv_lshlrev_b32 v{dst}, {bits-1}, v{dst}\nv_xor_b32 v{dst}, s3, v{dst}\nv_and_b32 v{dst}, {(1 << bits) - 1}, v{dst}')
        if bits == 4: A(f'v_xor_b32 v{dst}, 4, v{dst}')
    def tagmask(dst, addr):
        A(f'v_and_b32 v{dst}, 15, v{addr}\nv_cmp_eq_u32 vcc, 0, v{dst}\nv_mov_b32 v{dst}, 0\nv_cndmask_b32 v{dst}, v{dst}, v11, vcc')
    def poll(loads, y, T, t, hook=None, slp=0, part=None):
        n = len(loads)
        L, Lc, Ld = lab('again'), lab('chk'), lab('ok')
        full = lambda i: part if (part and i == n - 1) else -1
        def issue():
            for i, l in enumerate(loads): A((f's_mov_b64 exec, s[{48+2*i}:{49+2*i}]\n' if n > 1 else '') + l[0])
            if n > 1: A('s_mov_b64 exec, -1')
        if n > 1:
            for i in range(n): A(f's_mov_b64 s[{48+2*i}:{49+2*i}], {full(i)}')
        A(f's_mov_b32 s62, {SPIN}')
        issue()
        if hook: hook(n)
        A(f's_branch {Lc}\n{L}:')
        if slp or psleep: A(f's_sleep {slp or psleep}')
        issue()
        if n > 1:
            for i in range(n):
                A(f'v_and_b32 v{t}, v11, v{y+i}\nv_cmp_ne_u32 vcc, 0, v{t}\ns_cmp_lg_u64 vcc, 0\ns_cselect_b64 s[{48+2*i}:{49+2*i}], {full(i)}, 0')
        A(f's_sub_u32 s62, s62, 1\ns_cbranch_scc1 {Ld}\n{Lc}:\ns_waitcnt vmcnt(0)')
        for i, l in enumerate(loads): A(f'v_xor_b32 v{y+i}, v{l[1]}, v{T}')
        if n == 1: A(f'v_and_b32 v{t}, v11, v{y}')
        else:
            A(f'v_or3_b32 v{t}, v{y}, v{y+1}, v{y+2}')
            for i in range(3, n - 1, 2): A(f'v_or3_b32 v{t}, v{t}, v{y+i}, v{y+i+1}')
            A(f'v_bitop3_b32 v{t}, v{t}, v{y+n-1}, v11 bitop3:0xa8')
        A(f'v_cmp_ne_u32 vcc, 0, v{t}\ns_cbranch_vccnz {L}\n{Ld}:')
    def gsum(x, y, n, d):
        src = lambda i, r: f'v{y+i}' if r == 0 else f'v{x+4*i+r}'
        for i in range(0, n, 2):
            dd = d + 2 * i
            A(f'v_pk_add_f32 v[{dd+2}:{dd+3}], v[{x+4*i+2}:{x+4*i+3}], v[{x+4*i+6}:{x+4*i+7}]')
            for r in range(2): A(f'v_add_f32 v{dd+r}, {src(i, r)}, {src(i+1, r)}')
        for i in range(2, n, 2):
            for r in (2, 0): A(f'v_pk_add_f32 v[{d+r}:{d+r+1}], v[{d+r}:{d+r+1}], v[{d+2*i+r}:{d+2*i+r+1}]')
        A(f'v_permlane32_swap_b32 v{d}, v{d+2}\nv_permlane32_swap_b32 v{d+1}, v{d+3}')
        A(f'v_pk_add_f32 v[{d}:{d+1}], v[{d}:{d+1}], v[{d+2}:{d+3}]')
    def deep(load, n, sets, y, T, t, d, hook=None, issued=False, masked=False, slp=0):
        x = sets[0]
        L, Lc, Lo = lab('again'), lab('chk'), lab('ok')
        A(f's_mov_b32 s62, {SPIN}')
        if issued: A(f's_branch {Lc}')
        A(f'{L}:')
        if slp: A(f's_sleep {slp}')
        load(x)
        if masked:
            for i in range(n):
                A(f'v_and_b32 v{t}, v11, v{y+i}\nv_cmp_ne_u32 vcc, 0, v{t}')
                if masked == 1: A(f's_cmp_lg_u64 vcc, 0\ns_cselect_b64 s[{48+2*i}:{49+2*i}], -1, 0')
                else: A(f's_cmp_lg_u32 vcc_lo, 0\ns_cselect_b32 s{48+2*i}, -1, 0\ns_cmp_lg_u32 vcc_hi, 0\ns_cselect_b32 s{49+2*i}, -1, 0')
        for i in range(fill): A('v_mov_b32 v1, v1')
        A(f's_sub_u32 s62, s62, 1\ns_cbranch_scc1 {Lo}\n{Lc}:')
        for i in range(n):
            if i % 2 == 0: A(f's_waitcnt vmcnt({n-2-i})')
            A(f'v_xor_b32 v{y+i}, v{x+4*i}, v{T}')
            if i % 2 == 1:
                dd = d + 2 * (i - 1)
                if i == 1: A(f'v_or_b32 v{t}, v{y}, v{y+1}')
                elif i < n - 1: A(f'v_or3_b32 v{t}, v{t}, v{y+i-1}, v{y+i}')
                else: A(f'v_or_b32 v{t}, v{t}, v{y+i-1}\nv_bitop3_b32 v{t}, v{t}, v{y+i}, v11 bitop3:0xa8\nv_cmp_ne_u32 vcc, 0, v{t}')
                A(f'v_pk_add_f32 v[{dd+2}:{dd+3}], v[{x+4*i-2}:{x+4*i-1}], v[{x+4*i+2}:{x+4*i+3}]')
                if i == n - 1: A(f's_cbranch_vccnz {L}\n{Lo}:')
                A(f'v_add_f32 v{dd}, v{y+i-1}, v{y+i}\nv_add_f32 v{dd+1}, v{x+4*i-3}, v{x+4*i+1}')
                if i > 1:
                    for r in (2, 0): A(f'v_pk_add_f32 v[{d+r}:{d+r+1}], v[{d+r}:{d+r+1}], v[{dd+r}:{dd+r+1}]')
        A(f'v_permlane32_swap_b32 v{d}, v{d+2}\nv_permlane32_swap_b32 v{d+1}, v{d+3}')
        A(f'v_pk_add_f32 v[{d}:{d+1}], v[{d}:{d+1}], v[{d+2}:{d+3}]')
    def page():
        if pages: A('.p2align 12')
    def sum8(g):
        for i in (0, 2, 8, 10): A(f'v_pk_add_f32 v[{g+i}:{g+i+1}], v[{g+i}:{g+i+1}], v[{g+i+4}:{g+i+5}]')
        for i in (0, 2): A(f'v_pk_add_f32 v[{g+i}:{g+i+1}], v[{g+i}:{g+i+1}], v[{g+i+8}:{g+i+9}]')
        A(f'v_permlane32_swap_b32 v{g}, v{g+2}\nv_permlane32_swap_b32 v{g+1}, v{g+3}')
        A(f'v_pk_add_f32 v[{g}:{g+1}], v[{g}:{g+1}], v[{g+2}:{g+3}]')
    def ldsspin(reads, test, slp=0):
        L, Ld = lab('spin'), lab('spun')
        A(f's_mov_b32 s62, {SPIN}\n{L}:')
        if slp: A(f's_sleep {slp}')
        A(f'{reads}\ns_waitcnt lgkmcnt(0)\n{test}\ns_cbranch_vccz {Ld}\ns_sub_u32 s62, s62, 1\ns_cbranch_scc0 {L}\n{Ld}:')
    def stream(hooks, th, extra_at=None, slow=()):
        if slow: A(f's_cmp_{slowif}_u32 s30, 16\ns_cselect_b64 vcc, -1, 0')
        for i in range(16):
            if i: A('s_addk_i32 s33, 0x2000\ns_bitset0_b32 s33, 17')
            if th and 2 * i >= th:
                ex = 1 if extra_at is not None and 2 * i - (th - 2) < extra_at <= 2 * i else 0
                A(f's_waitcnt vmcnt({th-2+ex})')
            if i in slow:
                Ls = lab('fast')
                A(f's_cbranch_vccz {Ls}\ns_waitcnt vmcnt({th-4})\n{Ls}:')
            for hf in range(2):
                A(f'buffer_load_dwordx4 v[{128+8*i+4*hf}:{131+8*i+4*hf}], v2, s[36:39], s33 offen offset:{128*hf} {kvf}')
                if 2 * i + hf + 1 in hooks: A(hooks[2 * i + hf + 1])

    hdr = open('cdna_kernels/' + NAME + '.s.ref').read().split('\n')
    for ln in hdr:
        if ln.startswith('; @launch'): A.raw(f'; @launch grid=(256,1,1) block=(512,1,1) lds={LDS_BYTES}'); break
        A.raw(ln)
    A.raw(f'.amdgcn_target "amdgcn-amd-amdhsa--gfx950"\n.text\n.globl {NAME}_kernel\n.p2align {12 if pages else 8}\n.p2align 8\n.type {NAME}_kernel,@function\n{NAME}_kernel:')

    if amp: ST(13)
    if ampclk: A('s_memtime s[58:59]')
    if span or diag: A('s_memrealtime s[98:99]')
    if clk: A('s_memtime s[92:93]')
    A(f'''s_load_dwordx16 s[4:19], s[0:1], 0
s_load_dwordx8 s[20:27], s[0:1], 64
s_getpc_b64 s[40:41]
L_pc:
v_lshrrev_b32 v1, 6, v0
s_lshr_b32 s30, s2, 3                ; index inside the head group
v_readfirstlane_b32 s28, v1
v_and_b32 v0, 63, v0
s_lshl3_add_u32 s43, s30, s28
s_lshl_b32 s43, s43, 6
{'s_load_dword s42, s[40:41], s43' if pf == 1 else ''}
{'s_lshl_b32 s42, s43, 1' + nl + 'v_mov_b32 v1, s42' + nl + 'global_load_dword v1, v1, s[40:41]' if pf == 3 else ''}
s_cmp_ge_u32 s2, 256
s_cbranch_scc1 L_exit
s_and_b32 s29, s2, 7
s_and_b32 s31, s30, 3
s_lshl2_add_u32 s31, s29, s31        ; head
s_lshr_b32 s32, s30, 2
v_lshrrev_b32 v3, 3, v0              ; lane >> 3
v_and_b32 v4, 7, v0
v_lshlrev_b32 v4, 4, v4              ; (lane & 7) * 16
v_lshl_add_u32 v2, v3, 8, v4
v_lshlrev_b32 v5, 4, v0              ; lane * 16
s_and_b32 s63, s28, 3
{rotcode}
s_add_u32 s33, s33, s63
s_and_b32 s33, s33, 63
s_lshl_b32 s33, s33, 11              ; first tile of this wave
s_lshl_b32 s34, s31, 6
s_add_u32 s34, s34, s32
s_add_u32 s34, s34, 56
s_lshl_b32 s34, s34, 17              ; byte offset of this chunk of the window
s_mov_b32 s38, 0x20000
s_mov_b32 s39, 0x20000''')
    if diag: A('v_mov_b32 v7, 0')
    A(f'''s_cmp_lt_u32 s28, 4
s_cbranch_scc1 L_kwave
s_setprio 3
s_lshl_b32 s35, s32, 5
s_add_u32 s35, s35, s63
s_lshl_b32 s35, s35, 6
s_add_u32 s35, s35, s31
s_lshl_b32 s35, s35, 8
v_lshl_add_u32 v6, v3, 16, v4
v_add_u32 v12, 0x2000, v6
{'s_lshl2_add_u32 s35, s2, s63' + nl + 's_lshl_b32 s35, s35, 12' + nl + 'v_mov_b32 v6, v2' + nl + 'v_add_u32 v12, 0x800, v6' if wqm == 1 else ''}
{'s_mov_b32 s35, 0' + nl + 'v_mov_b32 v6, v4' + nl + 'v_mov_b32 v12, v4' if wqm == 2 else ''}
v_subrev_u32 v13, 12, v0
v_ashrrev_i32 v13, 31, v13
v_lshlrev_b32 v14, 2, v0
ds_write_b32 v14, v13 offset:{L_ML}
s_waitcnt lgkmcnt(0)
global_load_dwordx4 v[24:27], v5, s[4:5]
{'s_load_dword s42, s[40:41], s43' if pf == 2 else ''}
s_load_dword s3, s[26:27], {WS_E:#x}
s_add_u32 s10, s10, s35
s_addc_u32 s11, s11, 0''')
    for n in range(2):
        for hf in range(2): A(f'global_load_dwordx4 v[{64+8*n+4*hf}:{67+8*n+4*hf}], v{(6, 12)[n]}, s[10:11] offset:{128*hf} nt')
    A('s_barrier\ns_branch L_vwave')

    A(f'''L_kwave:
s_setprio 2
s_lshl_b32 s35, s32, 19
s_lshl_b32 s44, s29, 19
s_waitcnt lgkmcnt(0)
s_add_u32 s36, s6, s34
s_addc_u32 s37, s7, 0''')
    pages = ['s[10:11], s35', 's[4:5], 0', 's[8:9], s34', 's[12:13], s44', 's[16:17], 0', 's[18:19], 0', 's[20:21], 0', 's[22:23], 0']
    tl = nl.join(f's_load_dword s45, {p}' for i, p in enumerate(pages) if stlb >> i & 1)
    qload = 'global_load_dwordx4 v[16:19], v6, s[44:45] sc1'
    stream({1: tl + nl + ('s_load_dword s42, s[40:41], s43' if pf == 2 else ''), kpre: f's_load_dword s3, s[26:27], {WS_E:#x}\ns_barrier' + ('\ns_memrealtime s[100:101]' if amp and amp[1] == 22 else ''), 10: 's_memrealtime s[100:101]' if amp and amp[1] == 23 else '',
            12: f'''s_waitcnt lgkmcnt(0)
s_lshl_b32 s34, s31, 6
s_add_u32 s34, s34, s28
s_lshl_b32 s34, s34, 7
s_add_u32 s44, s26, s34
s_addc_u32 s45, s27, 0
v_lshl_add_u32 v6, v3, 10, v4''',
            qpos: '' if noq else qload}, thr, extra_at=None if noq else qpos, slow=slowk)
    ST(1)
    A(f'''v_lshrrev_b32 v12, 5, v0             ; lane >> 5
v_and_b32 v13, 31, v0
v_lshlrev_b32 v13, 4, v13            ; (lane & 31) * 16
s_lshl_b32 s46, s28, 8
s_add_u32 s46, s46, {L_SCR}
s_lshl_b32 s34, s28, 6
v_lshrrev_b32 v14, 4, v0
v_lshlrev_b32 v14, 1, v14
v_lshrrev_b32 v15, 1, v4
v_add3_u32 v14, v14, v15, s34
v_mov_b32 v24, {L_ML}
v_mov_b32 v25, 1
s_lshl_b32 s34, s28, 2
v_mov_b32 v26, s34
s_waitcnt lgkmcnt(0)
s_add_u32 s3, s3, {EPOCH_STEP:#x}''')
    tagreg(8, 5, 4)
    A(f's_waitcnt vmcnt({min(gow, 32-qpos)})\nds_write_b32 v26, v25 offset:{L_ML+64}')
    ST(2)
    A(f's_mov_b32 s62, {SPIN}\nL_qchk:')
    for i in range(4): A(f'v_xor_b32 v{20+i}, v{16+i}, v8')
    A('v_or3_b32 v15, v20, v21, v22\nv_bitop3_b32 v15, v15, v23, 15 bitop3:0xa8\nv_cmp_ne_u32 vcc, 0, v15')
    A(('' if noq else 's_cbranch_vccnz L_qagain\n') + 'L_qok:')
    cold.append(lambda: A(f'L_qagain:\n{qload}\ns_sub_u32 s62, s62, 1\ns_waitcnt vmcnt(0)\ns_cbranch_scc0 L_qchk\ns_branch L_qok'))
    ST(3)
    A(f'''v_permlane32_swap_b32 v20, v22
v_permlane32_swap_b32 v21, v23
v_add_f32 v20, v20, v22
v_add_f32 v21, v21, v23
v_permlane16_swap_b32 v20, v21
v_add_f32 v20, v20, v21
v_add_f32_dpp v20, v20, v20 row_ror:8 {FULL}
v_cvt_pk_bf16_f32 v20, v20, v20
v_lshl_add_u32 v6, v12, 12, v13
ds_write_b16 v14, v20 offset:{L_Q}
s_mov_b64 exec, 1
s_waitcnt lgkmcnt(0)
ds_add_u32 v24, v25 offset:52
s_mov_b64 exec, -1''')
    ldsspin('ds_read_b32 v15, v24 offset:52', 'v_cmp_ne_u32 vcc, 4, v15')
    A(f'ds_read_b128 v[16:19], v4 offset:{L_Q}\nds_read_b128 v[20:23], v4 offset:{L_Q+128}\ns_waitcnt lgkmcnt(0)')
    for i0 in range(0, 16, 4):
        A(f's_waitcnt vmcnt({24-2*i0})')
        for e in range(8):
            for i in range(i0, i0 + 4):
                A(f'v_dot2_f32_bf16 v{32+i}, v{128+8*i+e}, v{16+e}, {"v%d" % (32+i) if e else 0}')
    for i in range(8):
        A(f'v_add_f32_dpp v{32+i}, v{32+i}, v{32+i} row_half_mirror row_mask:0xf bank_mask:0x5')
    for i in range(8):
        A(f'v_add_f32_dpp v{32+i}, v{40+i}, v{40+i} row_half_mirror row_mask:0xf bank_mask:0xa')
    A('s_mov_b32 vcc_lo, 0xcccccccc\ns_mov_b32 vcc_hi, 0xcccccccc')
    for i in range(4): A(f'v_cndmask_b32 v{40+i}, v{36+i}, v{32+i}, vcc\nv_cndmask_b32 v{32+i}, v{32+i}, v{36+i}, vcc')
    for i in range(4): A(f'v_add_f32_dpp v{32+i}, v{40+i}, v{32+i} quad_perm:[2,3,0,1] {FULL}')
    A('s_mov_b32 vcc_lo, 0xaaaaaaaa\ns_mov_b32 vcc_hi, 0xaaaaaaaa')
    for i in range(2): A(f'v_cndmask_b32 v{40+i}, v{34+i}, v{32+i}, vcc\nv_cndmask_b32 v{32+i}, v{32+i}, v{34+i}, vcc')
    for i in range(2): A(f'v_add_f32_dpp v{32+i}, v{40+i}, v{32+i} quad_perm:[1,0,3,2] {FULL}')
    r2 = 'v_cvt_pk_bf16_f32 v34, v32, v33\nv_lshlrev_b32 v32, 16, v34\nv_and_b32 v33, 0xffff0000, v34'
    if not nosr & 1: A(r2)
    A(f'v_mul_f32 v32, {SCALE:#x}, v32\nv_mul_f32 v33, {SCALE:#x}, v33')
    if not nosr & 2: A(r2)
    A('v_max_f32 v34, v32, v33')
    wred('v_max_f32', 34, 36)
    A(f'''v_sub_f32 v35, v32, v34
v_sub_f32 v36, v33, v34
v_mul_f32 v35, {LOG2E:#x}, v35
v_mul_f32 v36, {LOG2E:#x}, v36
v_exp_f32 v35, v35
v_exp_f32 v36, v36
v_add_f32 v35, v35, v36''')
    wred('v_add_f32', 35, 36)
    ST(11)
    A(f's_lshl_b32 s34, s29, 8\ns_add_u32 s34, s34, {WS_X}\nv_lshrrev_b32 v10, 2, v13\nv_add_u32 v10, s34, v10\n' + ('' if nox else 'global_load_dword v9, v10, s[26:27] sc1'))
    if noml: A('s_cmp_ge_u32 s30, 0\ns_cbranch_scc1 L_mlok')
    A(f'''v_min_u32 v34, -2, v34
v_min_u32 v35, -2, v35
v_lshl_add_u32 v37, v26, 1, v24
ds_write_b64 v37, v[34:35]
s_cmp_lg_u32 s28, 0
s_cbranch_scc1 L_mlwait''')
    ldsspin('ds_read_b128 v[40:43], v24\nds_read_b128 v[44:47], v24 offset:16',
            'v_max3_u32 v37, v40, v41, v42\nv_max3_u32 v37, v37, v43, v44\nv_max3_u32 v37, v37, v45, v46\nv_max_u32 v37, v37, v47\nv_cmp_eq_u32 vcc, -1, v37')
    ST(4)
    A(f'''s_lshl_b32 s35, s31, 8
s_add_u32 s35, s35, {WS_ML}
v_max3_f32 v48, v40, v42, v44
v_max_f32 v48, v48, v46''')
    for w in range(4): A(f'v_sub_f32 v{40+2*w}, v{40+2*w}, v48')
    for w in range(4): A(f'v_mul_f32 v{40+2*w}, {LOG2E:#x}, v{40+2*w}')
    for w in range(4): A(f'v_exp_f32 v{40+2*w}, v{40+2*w}')
    A('v_mov_b32 v49, s3\nv_mov_b32 v51, s3\nv_mul_f32 v50, v40, v41')
    for w in range(1, 4): A(f'v_fmac_f32 v50, v{40+2*w}, v{41+2*w}')
    A(f'''s_lshl4_add_u32 s34, s32, s35
v_mov_b32 v37, s34
s_mov_b64 exec, 1
global_store_dwordx4 v37, v[48:51], s[26:27] sc1
s_mov_b64 exec, -1''')
    L, Ld = lab('mg'), lab('mgd')
    A(f's_mov_b32 s62, {SPIN}\n{L}:\ns_sleep {mlsleep}\ns_load_dwordx16 s[64:79], s[26:27], s35 glc\ns_load_dwordx16 s[80:95], s[26:27], s35 offset:64 glc\ns_waitcnt lgkmcnt(0)')
    A('s_and_b32 s34, s65, s3\ns_or_b32 s47, s65, s3')
    for i in range(1, 16): A(f's_and_b32 s34, s34, s{65+2*i}\ns_or_b32 s47, s47, s{65+2*i}')
    A(f's_cmp_eq_u32 s34, s47\ns_cbranch_scc1 {Ld}\ns_sub_u32 s62, s62, 1\ns_cbranch_scc0 {L}\n{Ld}:')
    A('v_mov_b32 v34, s64')
    for c in range(1, 8): A(f'v_max_f32 v34, s{64+4*c}, v34')
    for c in range(8): A(f'v_sub_f32 v{40+c}, s{64+4*c}, v34')
    for c in range(8): A(f'v_mul_f32 v{40+c}, {LOG2E:#x}, v{40+c}')
    for c in range(8): A(f'v_exp_f32 v{40+c}, v{40+c}')
    A('v_mul_f32 v35, s66, v40')
    for c in range(1, 8): A(f'v_fmac_f32 v35, s{66+4*c}, v{40+c}')
    A(f'''v_rcp_f32 v35, v35
v_min_u32 v34, -2, v34
v_min_u32 v35, -2, v35
ds_write_b64 v24, v[34:35] offset:32
s_branch L_mlok
L_mlwait:''')
    ldsspin('ds_read_b64 v[34:35], v24 offset:32', 'v_max_u32 v37, v34, v35\nv_cmp_eq_u32 vcc, -1, v37', 1)
    A('L_mlok:')
    ST(5)
    A(f'''v_sub_f32 v32, v32, v34
v_sub_f32 v33, v33, v34
v_mul_f32 v32, {LOG2E:#x}, v32
v_mul_f32 v33, {LOG2E:#x}, v33
v_exp_f32 v32, v32
v_exp_f32 v33, v33
s_lshl_b32 s34, s28, 8
v_lshl_add_u32 v36, v0, 2, s34
v_mul_f32 v32, v32, v35
v_mul_f32 v33, v33, v35
v_cvt_pk_bf16_f32 v32, v32, v33
ds_write_b32 v36, v32 offset:{L_P}
''')
    if not cfgy: A(f'''s_cmp_lt_u32 s28, 2
s_cbranch_scc1 L_two
s_cmp_eq_u32 s28, 2
s_cselect_b32 s64, s16, s18
s_cselect_b32 s65, s17, s19
s_mov_b32 s66, {512*2752}
s_lshl_b32 s34, s30, 4
v_lshrrev_b32 v61, 2, v0
v_add_u32 v61, s34, v61
v_mul_u32_u24 v61, 2752, v61
v_and_b32 v62, 3, v0
v_lshlrev_b32 v62, 7, v62
v_min_u32 v62, 348, v62
s_mul_i32 s34, s29, 352
v_add3_u32 v61, v61, v62, s34
s_branch L_tj
L_two:
s_mov_b32 s64, s12
s_mov_b32 s65, s13
s_mov_b32 s66, {4096*1024}
s_lshl_b32 s34, s29, 5
s_add_u32 s34, s34, s30
s_lshl1_add_u32 s34, s34, s28
s_lshl_b32 s34, s34, 13
v_lshl_add_u32 v61, v0, 7, s34
L_tj:
s_mov_b32 s67, 0x20000''')
    if cfgy: A(f'''s_bitcmp1_b32 s28, 0
s_cselect_b32 s64, s18, s16
s_cselect_b32 s65, s19, s17
s_mov_b32 s66, {512*2752}
s_mov_b32 s67, 0x20000
s_and_b32 s34, s30, {31 if guall else 15}
s_lshr_b32 s35, s28, 1
s_lshl1_add_u32 s34, s34, s35
s_lshl_b32 s34, s34, {3 if guall else 4}
v_lshrrev_b32 v61, 2, v0
v_add_u32 v61, s34, v61
v_mul_u32_u24 v61, 2752, v61
v_and_b32 v62, 3, v0
v_lshlrev_b32 v62, 7, v62
v_min_u32 v62, 348, v62
s_mul_i32 s34, s29, 352
v_add3_u32 v61, v61, v62, s34''')
    def trigger(n):
        if True:
            L, Ld = lab('trig'), lab('trigd')
            A(f'''s_lshl_b32 s34, s29, 15
v_lshl_add_u32 v125, v13, 6, s34
s_mov_b32 s62, {SPIN}
{L}:
global_load_ubyte v126, v125, s[26:27] offset:{AOFF} sc1
s_and_b32 s34, s3, 0xff
s_waitcnt vmcnt(0)
v_cmp_eq_u32 vcc, s34, v126
s_bcnt1_i32_b32 s34, vcc_lo
s_cmp_ge_u32 s34, {n}
s_cbranch_scc1 {Ld}
s_sleep 2
s_sub_u32 s62, s62, 1
s_cbranch_scc0 {L}
{Ld}:''')
    def touch(when, role=None):
        if cfgy:
            if wox and when == 1 and role == 'x':
                A(f'''s_sub_u32 s34, s30, 27
s_lshl2_add_u32 s34, s34, s28
s_mul_i32 s34, s34, 52
v_add_u32 v127, s34, v0
v_min_u32 v127, 1023, v127
v_lshrrev_b32 v63, 7, v127
v_mul_u32_u24 v63, 384, v63
s_lshl_b32 s35, s29, 12
s_add_u32 s35, s35, 384
v_add3_u32 v127, v127, v63, s35
v_lshlrev_b32 v127, 7, v127
s_mov_b32 exec_hi, 0xfffff
global_load_dword v62, v127, s[12:13] {tf}
s_mov_b32 exec_hi, -1''')
            if when == wo1 and role != 'W':
                Ls = lab('nt')
                if role is None: A(f's_cmp_lt_u32 s30, 16\ns_cbranch_scc1 {Ls}')
                A(f'''s_and_b32 s34, s30, 15
s_lshl2_add_u32 s34, s34, s28
{wot}
s_mov_b32 exec_hi, 0
global_load_dword v62, v127, s[12:13] {tf}
s_mov_b32 exec_hi, -1
{Ls}:''')
            if gsplit and role is not None and role in gsr and when in (1, 2):
                m = (1 << gsplit) - 1
                m = m if when == 1 else ~m & (2**64 - 1)
                if m: A(f's_mov_b32 exec_lo, {m & 0xffffffff:#x}\ns_mov_b32 exec_hi, {m >> 32:#x}\nbuffer_load_dword v62, v61, s[64:67], 0 offen {tf}\ns_mov_b64 exec, -1')
            if when == 2 and edge and role == 'x':
                A(f'''s_mul_i32 s34, s29, 11
s_and_b32 s35, s34, 1
s_add_u32 s35, s35, 29
s_sub_u32 s48, s34, s30
s_add_u32 s48, s48, 26
s_sub_u32 s49, s30, s35
s_add_u32 s49, s49, s34
s_add_u32 s49, s49, 11
s_add_u32 s50, s34, 10
s_cmp_lt_u32 s30, s35
s_cselect_b32 s48, s48, s49
s_cselect_b32 s50, s34, s50
s_and_b32 s35, s48, 3
s_lshl2_add_u32 s35, s28, s35
s_lshl_b32 s35, s35, 5
v_and_b32 v63, 31, v0
v_add_u32 v63, s35, v63
v_mul_u32_u24 v63, 2752, v63
s_lshl_b32 s48, s48, 5
s_lshl_b32 s50, s50, 5
v_add_u32 v127, s48, v63
v_add_u32 v63, s50, v63
v_xor_b32 v127, v127, v63
v_min_u32 v63, {512*2752-4}, v63
v_cmp_gt_u32 vcc, 0x80, v127
s_mov_b32 exec_hi, 0
s_mov_b32 exec_lo, vcc_lo
global_load_dword v62, v63, s[16:17] {tf}
global_load_dword v62, v63, s[18:19] {tf}
s_mov_b64 exec, -1''')
            if guall and (when == guw if gut is None else (role is not None and when == gut['WFx'.index(role)])):
                A(f's_mov_b32 exec_hi, 0\nbuffer_load_dword v62, v61, s[64:67], 0 offen {tf}\ns_mov_b32 exec_hi, -1')
            elif not guall and when == guw and role != 'W' and not (gsplit and role in gsr):
                Ls = lab('nt')
                if role is None: A(f's_cmp_lt_u32 s30, 16\ns_cbranch_scc1 {Ls}')
                A(f'buffer_load_dword v62, v61, s[64:67], 0 offen {tf}\n{Ls}:')
            if when == dtouch and role == 'x':
                if fine == 2: A('s_waitcnt vmcnt(1)'); F2(1); A('s_waitcnt vmcnt(0)'); F2(2)
                if xbar and when == 2 and not tailtest: A('s_barrier')
                if dtrig: trigger(dtrig)
                A(f'''s_sub_u32 s34, s30, 27
s_lshl2_add_u32 s34, s34, s28
s_mul_i32 s34, s34, {71*128}
s_mul_i32 s35, s29, {176*1024}
s_add_u32 s34, s34, s35
v_lshl_add_u32 v63, v0, 7, s34
v_min_u32 v63, {1376*1024-4}, v63
global_load_dword v62, v63, s[20:21]
v_add_u32 v63, 0x2000, v63
v_min_u32 v63, {1376*1024-4}, v63
s_mov_b64 exec, 0x7f
global_load_dword v62, v63, s[20:21]
s_mov_b64 exec, -1''')
                if fine == 2: F2(3); A('s_waitcnt vmcnt(0)'); F2(4)
            return
        lo, hi = twhen[0] == when, twhen[1] == when
        if not (lo or hi): return
        Ls = lab('nt')
        if not (lo and hi): A(f's_cmp_lt_u32 s28, 2\ns_cbranch_scc{0 if lo else 1} {Ls}')
        A(f'buffer_load_dword v62, v61, s[64:67], 0 offen {tf}\n{Ls}:')
    ST(6)
    A(f'''s_getreg_b32 s34, hwreg(HW_REG_XCC_ID, 0, 4)
s_andn2_b32 s35, s3, 31
s_or_b32 s34, s34, s35
s_or_b32 s35, s34, 16
s_waitcnt vmcnt(0)
v_cmp_eq_u32 s[48:49], s34, v9
v_cmp_eq_u32 s[50:51], s35, v9
s_bcnt1_i32_b32 s48, s48
s_bcnt1_i32_b32 s50, s50
s_cmp_gt_u32 s50, s48
s_cselect_b32 s34, 0x2000, 0
v_mov_b32 v10, s34
''')
    if ampv == 1: A('s_min_u32 s59, s48, s50')
    if ampv == 2: A('s_add_u32 s59, s48, s50\ns_sub_u32 s59, 32, s59')
    if ampv == 3: A('s_getreg_b32 s59, hwreg(HW_REG_XCC_ID, 0, 4)\ns_sub_u32 s59, s59, s29\ns_and_b32 s59, s59, 7')
    if diag: A('s_sub_u32 s34, s50, s48\ns_add_u32 s34, s34, s98\nv_writelane_b32 v7, s34, 12')
    touch(0)
    if wo0: A(f'''s_lshl_b32 s34, s29, 5
s_add_u32 s34, s34, s30
s_lshl2_add_u32 s34, s34, s28
s_lshl_b32 s34, s34, 12
v_lshl_add_u32 v63, v0, 7, s34
s_mov_b32 exec_hi, 0
global_load_dword v62, v63, s[12:13] {tf}
s_mov_b32 exec_hi, -1''')
    tagreg(8, 5, 8)
    A(f'''v_mov_b32 v11, 0xff
s_lshl_b32 s47, s28, 13
s_add_u32 s47, s47, {L_W}            ; this wave's weight staging area
s_waitcnt lgkmcnt(0)''')
    if pol is not None: A(f's_lshr_b32 s34, s29, 2\ns_xor_b32 s34, s34, {pol}\ns_lshl_b32 s34, s34, 13\nv_mov_b32 v10, s34')
    if notail: A('s_cmp_ge_u32 s30, 0\ns_cbranch_scc1 L_norole')
    A('s_cmp_ge_u32 s30, 16\ns_cbranch_scc1 L_notw')
    def bars(early=None, role='x'):
        A('s_barrier')
        if amp: ST(20)
        if role == 'W': early()
        touch(1, role)
        if early and role != 'W': early()
        A('s_barrier' if vlast else 's_barrier\ns_barrier')
        F2(0)
        if amp: ST(21)
        if trig and role != 'W': trigger(trig)
        touch(2, role)
        ST(7)

    A(f'''s_lshl2_add_u32 s34, s29, s28
s_lshl_b32 s35, s34, 13
s_add_u32 s35, s35, {AOFF}
s_add_u32 s44, s26, s35
s_addc_u32 s45, s27, 0
s_lshl_b32 s34, s34, 17
s_lshl_b32 s35, s30, 6
s_add_u32 s34, s34, s35
s_add_u32 s40, s12, s34
s_addc_u32 s41, s13, 0
s_mov_b32 s42, {127*1024+64}
s_mov_b32 s43, 0x20000
v_lshrrev_b32 v14, 4, v0             ; g
v_bfe_u32 v15, v0, 2, 2
{'v_lshl_add_u32 v15, v15, 2, v14' if v4 else 'v_lshl_add_u32 v15, v14, 3, v15'}
v_and_b32 v32, 1, v14
{wrow if dppa else ''}
v_lshlrev_b32 v33, 1, v32
v_and_b32 v34, 3, v0
v_xor_b32 v33, v33, v34
v_lshlrev_b32 v33, 4, v33
v_lshl_add_u32 v15, v15, 10, v33
v_lshrrev_b32 v33, 2, v0
v_lshlrev_b32 v33, 6, v33
v_lshl_add_u32 v33, v34, 3, v33
v_lshl_add_u32 v33, v32, 5, v33
v_add_u32 v33, s47, v33
v_xor_b32 v34, 32, v33
v_lshrrev_b32 v35, 1, v13
v_lshl_add_u32 v35, v12, 2, v35
v_add_u32 v35, s46, v35
v_lshl_add_u32 v36, v14, 4, s46
s_lshl_b32 s34, s28, 2
s_add_u32 s34, s34, {L_RED}
v_add_u32 v37, s34, v13
s_and_b32 s34, s29, 4
s_add_u32 s34, s34, s29
s_lshl4_add_u32 s34, s34, s30
s_lshl_b32 s34, s34, 7
s_mul_i32 s35, s28, {0 if wlast else 32768}
s_add_u32 s34, s34, s35
s_add_u32 s34, s34, {WS_B}
s_add_u32 s56, s26, 0x8000
s_addc_u32 s57, s27, 0
s_add_u32 s58, s26, 0x10000
s_addc_u32 s59, s27, 0
s_add_u32 s68, s26, 0x18000
s_addc_u32 s69, s27, 0
v_lshrrev_b32 v38, 2, v13
v_lshl_add_u32 v38, v12, 13, v38
v_add_u32 v38, s34, v38''')
    if fresh:
        A(f'''v_and_b32 v50, 7, v0
v_and_b32 v51, 4, v50
v_add_u32 v50, v50, v51
v_lshl_add_u32 v50, v50, 11, v10
s_lshl_b32 s34, s30, 7
s_add_u32 s34, s34, {WS_B}
v_add_u32 v50, s34, v50              ; this slice's B line of every group''')
        tagreg(51, 50, 8)
    tagreg(9, 38, 8)
    tagmask(10, 38)
    if tlb & 1: A('s_mov_b64 exec, 1\nbuffer_load_dword v62, v15, s[40:43], 0 offen\ns_mov_b64 exec, -1')
    A('s_and_b32 s60, s30, 1\n' + f's_lshl_b32 s61, s60, {15 if dppa else 16}' + '\ns_lshl_b32 s60, s60, 12')
    def wl(a, b):
        for n in range(a, b):
            A(f's_xor_b32 s34, s60, {1024*n}\ns_add_u32 m0, s47, s34\ns_xor_b32 s34, s61, {((32*(n>>2)+(n&3) if v4 else 8*n) if dppa else 32*(n>>1)+(16 if v4 else 4)*(n&1))*1024}')
            A(f'buffer_load_dwordx4 v15, s[40:43], s34 offen {wf} lds')
    if apre:
        A('s_mov_b32 exec_lo, 0x01010101\ns_mov_b32 exec_hi, 0x01010101\ns_and_b32 s34, s30, 3\ns_lshl_b32 s34, s34, 10\nv_add_u32 v63, s34, v6\nglobal_load_dword v62, v63, s[44:45] sc1\ns_mov_b64 exec, -1')
    ws_ = wsplit if cfgy else 0
    bars(lambda: wl(0, ws_), 'W')
    wl(ws_, 8)
    touch(3, 'W')
    def whook(n):
        A(f's_waitcnt vmcnt({n})')
        ST(10)
        for t in range(4):
            for cb in range(2):
                for hf in range(2):
                    r = 128 + 8 * t + 4 * cb + 2 * hf
                    A(f'ds_read_b64_tr_b16 v[{r}:{r+1}], v{33+cb} offset:{1024*(2*t+hf)}')
    def aload(x):
        for n in range(4): A(f's_mov_b64 exec, s[{48+2*n}:{49+2*n}]\nglobal_load_dwordx4 v[{x+4*n}:{x+4*n+3}], v6, s[44:45] offset:{1024*n} sc1')
        A('s_mov_b64 exec, -1')
    for n in range(4): A(f's_mov_b64 s[{48+2*n}:{49+2*n}], -1')
    aload(96); whook(4)
    deep(aload, 4, [96], 120, 8, 39, 16, issued=True, masked=wmask, slp=wslp)
    ST(8)
    def bcast(src, dst, bank):
        return [f'v_mov_b32_dpp v{dst+i}, v{src} row_newbcast:{i} row_mask:0xf bank_mask:{bank:#x}' for i in range(16)]
    A(FS(0))
    A('v_cvt_pk_bf16_f32 v16, v16, v17')
    if dppa:
        mv = bcast(16, 64, 0xf)
        A('s_waitcnt lgkmcnt(0)')
        for o in mv[:6]: A(o)
        mv = mv[6:]
    else:
        A('ds_write_b32 v35, v16')
        for t in range(4): A(f'ds_read_b128 v[{64+4*t}:{67+4*t}], v36 offset:{64*t}')
    for t in range(4):
        if not dppa: A(f's_waitcnt lgkmcnt({3-t})')
        for cb in range(2):
            c = f'v[{40+4*cb}:{43+4*cb}]'
            A(f'v_mfma_f32_16x16x32_bf16 {c}, v[{64+4*t}:{67+4*t}], v[{128+8*t+4*cb}:{131+8*t+4*cb}], {c if t else 0}')
            if dppa:
                for o in mv[:2]: A(o)
                mv = mv[2:]
    if wlast:
        A(f'''{FS(1)}
s_mov_b64 exec, 0xffff
ds_write2_b32 v37, v40, v44 offset0:0 offset1:64
ds_write_b32 v26, v11 offset:{L_ML+96}
s_mov_b64 exec, -1
ds_read_b128 v[20:23], v24 offset:96
ds_read_b128 v[16:19], v13 offset:{L_RED}
s_waitcnt lgkmcnt(1)
{FS(2)}
v_min3_u32 v20, v20, v21, v22
v_min_u32 v20, v20, v23
v_cmp_ne_u32 vcc, 0, v20
s_waitcnt lgkmcnt(0)
v_pk_add_f32 v[16:17], v[16:17], v[18:19]
s_mov_b64 exec, vcc
v_add_f32 v16, v16, v17
v_bfi_b32 v16, v10, v9, v16
{FS(3)}
global_store_dword v38, v16, s[26:27] sc1
global_store_dword v38, v16, s[56:57] sc1
global_store_dword v38, v16, s[58:59] sc1
global_store_dword v38, v16, s[68:69] sc1
{FS(4)}''')
    else:
        A(f'''{FS(1)}
s_mov_b64 exec, 0xffff
s_cmp_lg_u32 s28, 0
ds_write2_b32 v37, v40, v44 offset0:0 offset1:64
s_mov_b64 exec, -1
{WK(2)}
s_waitcnt lgkmcnt(0)
{FS(2)}
s_barrier
{FS(3)}
{'' if rep4 else 's_cbranch_scc1 ' + ('L_wfresh' if fresh else 'L_wend')}
ds_read_b128 v[16:19], v13 offset:{L_RED}
{WK(3)}
s_waitcnt lgkmcnt(0)
{FS(4)}
v_pk_add_f32 v[16:17], v[16:17], v[18:19]
v_add_f32 v16, v16, v17
v_bfi_b32 v16, v10, v9, v16''')
        A('global_store_dword v38, v16, s[26:27] sc1')
    A(FS(5)); A(FS(6))
    if wb == 1: A('s_cmp_lg_u32 s30, 0\ns_cbranch_scc1 L_wend\nbuffer_wbl2 sc1\ns_waitcnt vmcnt(0)')
    A('L_wend:')
    def wfresh():
        A(f'L_wfresh:\ns_cmp_gt_u32 s28, {fresh}\ns_cbranch_scc1 L_wend\ns_mov_b64 exec, 0xff')
        poll([('global_load_dword v52, v50, s[26:27] sc1', 52)], 53, 51, 54)
        A('s_branch L_wend')
    if fresh: cold.append(wfresh)
    finish()

    A(f'''L_notw:
s_cmp_lt_u32 s30, 27
s_cbranch_scc1 L_rolef
s_cmp_lt_u32 s30, 28
s_cbranch_scc1 L_norole
s_cmp_lg_u32 s28, 0
s_cbranch_scc1 L_norole
s_lshl2_add_u32 s63, s29, s30
s_sub_u32 s63, s63, 28               ; reducer index
s_lshl_b32 s34, s63, 6
s_add_u32 s34, s34, {WS_C}
v_lshrrev_b32 v14, 2, v0
v_and_b32 v15, 12, v14
v_add_u32 v14, v14, v15
v_and_b32 v15, 3, v0
v_lshl_add_u32 v44, v14, 11, v10
v_lshl_add_u32 v44, v15, 4, v44
v_add_u32 v44, s34, v44''')
    for n in range(1, 6): A(f'v_add_u32 v{44+n}, {65536*n}, v44')
    A(f'''s_lshr_b32 s34, s63, 3
s_lshl_b32 s34, s34, 7
s_and_b32 s35, s63, 3
s_lshl_b32 s35, s35, 5
s_add_u32 s34, s34, s35
s_and_b32 s35, s63, 4
s_add_u32 s34, s34, s35
v_lshrrev_b32 v14, 4, v0
v_lshl_add_u32 v14, v15, 3, v14
v_add_u32 v14, s34, v14
v_lshlrev_b32 v51, 1, v14
global_load_ushort v43, v51, s[4:5]
s_lshl_b32 s34, s34, 2
s_and_b32 s35, s29, {3 if rep4 else 0}
s_lshl_b32 s35, s35, 15
s_add_u32 s34, s34, s35
s_add_u32 s34, s34, {WS_B}
v_bfe_u32 v50, v0, 2, 3
v_and_b32 v14, 4, v50
v_add_u32 v50, v50, v14
v_lshl_add_u32 v50, v50, 11, v10
v_lshl_add_u32 v50, v15, 5, v50
v_add_u32 v50, s34, v50
v_mov_b32 v52, {WS_E}
v_mov_b32 v53, s3''')
    tagreg(9, 50, 8)
    if tlb & 4: A('s_mov_b64 exec, 1\nglobal_load_ushort v62, v51, s[22:23]\ns_mov_b64 exec, -1')
    for x in (96, 128, 152, 176)[:max(rdep, 1)]: A(f'v_mov_b32 v{x+20}, v8\nv_mov_b32 v{x+21}, 0\nv_mov_b32 v{x+22}, 0\nv_mov_b32 v{x+23}, 0')
    bars()
    lds = [(f'global_load_dwordx4 v[{96+4*n}:{99+4*n}], v{44+n}, s[26:27] sc1', 96 + 4 * n) for n in range(6)]
    if cpre:
        for l in lds[:5]: A(l[0])
        A(f's_mov_b64 exec, 0xffffff\n{lds[5][0]}\ns_mov_b64 exec, -1')
    A('v_mov_b32 v36, v9\nv_mov_b32 v37, 0\nv_mov_b32 v38, 0\nv_mov_b32 v39, 0')
    poll([('s_mov_b32 exec_hi, 0\nglobal_load_dwordx4 v[36:39], v50, s[26:27] sc1\ns_mov_b32 exec_hi, -1', 36)], 40, 9, 42, slp=rb)
    ST(9)
    est = '''s_cmp_eq_u32 s63, 0
s_cselect_b32 exec_lo, 1, 0
s_mov_b32 exec_hi, 0
global_store_dword v52, v53, s[26:27] sc1
s_mov_b64 exec, -1'''
    if not eend: A(est)
    A(f'''v_permlane32_swap_b32 v40, v38
v_permlane32_swap_b32 v37, v39
v_permlane16_swap_b32 v40, v37
v_add_f32 v40, v40, v37
v_lshlrev_b32 v43, 16, v43
v_add_f32_dpp v40, v40, v40 row_ror:8 {FULL}
v_add_f32_dpp v40, v40, v40 row_ror:4 {FULL}
v_add_f32 v40, v40, v43''')
    rnd(40)
    if rslp: A(f's_sleep {rslp}')
    if rdep:
        def rload(x):
            for n in range(6): A(('s_mov_b64 exec, 0xffffff\n' if n == 5 else '') + f'global_load_dwordx4 v[{x+4*n}:{x+4*n+3}], v{44+n}, s[26:27] sc1')
            A('s_mov_b64 exec, -1')
        deep(rload, 6, [96, 128, 152, 176][:rdep], 120, 8, 42, 16, slp=cslp)
        ST(8)
    else:
        poll(lds, 120, 8, 42, part=0xffffff)
        ST(8)
        gsum(96, 120, 6, 16)
    A(f'''v_permlane16_swap_b32 v16, v17
v_add_f32 v16, v16, v17
v_add_f32_dpp v16, v16, v16 row_ror:8 {FULL}
v_add_f32_dpp v16, v16, v16 row_ror:4 {FULL}''')
    A(f'''v_add_f32 v16, v16, v40
v_cvt_pk_bf16_f32 v16, v16, v16
s_mov_b32 exec_lo, 0x000f000f
s_mov_b32 exec_hi, 0x000f000f
global_store_short v51, v16, s[22:23] {outf}
''')
    if eend: A(est)
    if dbgp:
        A('s_mov_b64 exec, 1\nv_mov_b32 v20, 0')
        for i, r in enumerate((26, 27, 6, 7, 8, 9, 12, 16, 18, 20, 22, 24, 4, 10)): A(f'v_mov_b32 v21, s{r}\nglobal_store_dword v20, v21, s[24:25] offset:{4*i}')
        A('global_store_dword v20, v10, s[24:25] offset:56')
    A('L_rend:')
    if amp:
        ckc = f'''s_sub_u32 s56, s56, s58
v_cvt_f32_u32 v20, s56
v_cvt_f32_u32 v21, s98
v_rcp_f32 v21, v21
v_mul_f32 v20, v20, v21
{'v_sub_f32 v20, 0x41f00000, v20' if ampclk == 2 else ''}
v_mul_f32 v20, 0x447a0000, v20
v_cvt_u32_f32 v20, v20
v_readfirstlane_b32 s98, v20'''
        if ampclk: A('s_memtime s[56:57]')
        ST(14)
        A(f'''s_memrealtime s[96:97]
s_waitcnt lgkmcnt(0)
s_sub_u32 s98, s100, s98
{f's_mul_i32 s98, s98, {amp[2]}' if amp[2] else 's_lshr_b32 s98, s98, 1'}
{f's_mov_b32 s98, {amp[4]}' if len(amp) > 4 else ''}
{ckc if ampclk else ''}
{'s_mul_i32 s98, s59, 1000' if ampv else ''}
s_cmp_lg_u32 s29, {amp[3] if amp[3] >= 0 else 's29'}
s_cbranch_scc1 L_ampd
L_amp:
s_memrealtime s[100:101]
s_waitcnt lgkmcnt(0)
s_sub_u32 s100, s100, s96
s_cmp_lt_u32 s100, s98
s_cbranch_scc1 L_amp
L_ampd:''')
    finish(True)
    A('L_norole:')
    if ((guw == 2 or dtouch == 2 or edge) if cfgy else 2 in twhen): bars()
    else:
        A('s_barrier'); touch(1, 'x')
    if wb == 2:
        A(f'''s_cmp_lg_u32 s30, 27
s_cbranch_scc1 L_nowb
s_cmp_lg_u32 s28, 0
s_cbranch_scc1 L_nowb
v_and_b32 v50, 7, v0
v_and_b32 v14, 4, v50
v_add_u32 v50, v50, v14
v_lshl_add_u32 v50, v50, 11, v10
v_add_u32 v50, {WS_B}, v50''')
        tagreg(9, 50, 8)
        poll([('global_load_dword v36, v50, s[26:27] sc1', 36)], 40, 9, 42, slp=2)
        if wbs: A(f's_sleep {wbs}')
        A('buffer_wbl2 sc1\ns_waitcnt vmcnt(0)\nL_nowb:')
    finish(2)

    page()
    A(f'''L_rolef:
s_mul_i32 s63, s29, 11
s_add_u32 s63, s63, s30
s_sub_u32 s63, s63, 16
s_cmp_ge_u32 s63, 86
s_cbranch_scc1 L_norole
s_mul_i32 s34, s28, {128*2752}
s_lshl_b32 s35, s63, 5
s_add_u32 s34, s34, s35
s_add_u32 s36, s16, s34
s_addc_u32 s37, s17, 0
s_mov_b32 s38, {127*2752+32}
s_mov_b32 s39, 0x20000
s_add_u32 s40, s18, s34
s_addc_u32 s41, s19, 0
s_mov_b32 s42, {127*2752+32}
s_mov_b32 s43, 0x20000
s_lshl_b32 s34, s63, 14
s_lshl_b32 s35, s28, 8
s_add_u32 s34, s34, s35
s_add_u32 s20, s20, s34
s_addc_u32 s21, s21, 0
s_add_u32 s4, s4, s35
s_addc_u32 s5, s5, 0
s_lshl_b32 s35, s28, 9
s_and_b32 s34, s29, {3 if rep4 else 0}
s_lshl_b32 s34, s34, 15
s_add_u32 s34, s34, s35
s_add_u32 s34, s34, {WS_B+4096}
s_add_u32 s44, s26, s34
s_addc_u32 s45, s27, 0
v_lshl_add_u32 v6, v12, 14, v13
v_add_u32 v6, v6, v10
v_bfe_u32 v14, v0, 3, 2
v_lshlrev_b32 v14, 3, v14
v_lshl_add_u32 v14, v12, 2, v14
v_bfe_u32 v15, v0, 1, 2
v_add_u32 v14, v14, v15
{frow if dppa else ''}
v_mul_u32_u24 v14, 2752, v14
v_and_b32 v15, 1, v0
v_lshl_add_u32 v15, v15, 4, v14
v_lshl_add_u32 v33, v0, 3, s47
v_lshrrev_b32 v36, 1, v13
v_lshl_add_u32 v36, v12, 2, v36      ; byte offset of this lane's bf16 pair inside 128 columns
v_add_u32 v37, s46, v36
v_and_b32 v38, 15, v0
v_lshrrev_b32 v14, 4, v0
v_lshlrev_b32 v34, 4, v38
v_lshl_add_u32 v34, v14, 10, v34
v_add_u32 v34, 0x1000, v34
v_add_u32 v35, 0x2000, v34
v_lshl_add_u32 v56, v14, 4, s46
v_mov_b32 v57, {L_RED+256}
v_cmp_eq_u32 vcc, 1, v38
v_cndmask_b32 v56, v56, v57, vcc
s_lshl_b32 s34, s28, 2
v_lshl_add_u32 v60, v12, 4, s34
s_lshl_b32 s34, s28, 3
s_add_u32 s34, s34, {L_OP}
v_mul_u32_u24 v57, 80, v38
v_add_u32 v57, s34, v57
{'v_lshl_add_u32 v57, v14, 2, v57' if dppa else ''}
{'s_lshl_b32 s34, s28, 2' + nl + 'v_xor_b32 v60, 1, v14' + nl + 'v_lshl_add_u32 v60, v60, 4, s34' if mstat else ''}
v_and_b32 v58, 12, v0
v_add_u32 v58, v58, v14
v_mul_u32_u24 v58, 80, v58
s_andn2_b32 s34, s63, 3
s_add_u32 s34, s34, s63
s_lshl2_add_u32 s34, s34, s28
s_lshl_b32 s34, s34, 9
s_add_u32 s34, s34, {WS_C}
v_lshl_add_u32 v59, v12, 13, v13
v_add_u32 v59, s34, v59
v_mov_b32 v44, 0x3f803f80
v_lshlrev_b32 v45, 2, v0
ds_write_b32 v45, v44 offset:{L_RED+256}
v_mov_b32 v63, {L_RED}
v_mov_b32 v46, {EPS:#x}
v_and_b32 v40, 1, v0
v_lshlrev_b32 v40, 4, v40
v_mov_b32 v41, 0xffff
v_lshlrev_b32 v40, v40, v41
v_bfe_u32 v41, v0, 1, 2
s_mov_b32 s60, 1
s_mov_b32 s61, 1''')
    if dppa:
        for i in range(16): A(f'v_mov_b32 v{72+i}, v44')
    if mstat: A('s_mov_b32 s60, 0x10001\ns_mov_b32 s61, 0')
    if early: A('s_lshl_b32 s34, s28, 3\nv_lshl_add_u32 v60, v12, 2, s34\nv_and_b32 v42, 3, v0\nv_lshl_add_u32 v58, v42, 4, v58')
    for w in range(4): A(f'v_cmp_eq_u32 vcc, {w}, v41\nv_cndmask_b32 v{48+w}, 0, v40, vcc')
    if tlb & 2: A('s_mov_b64 exec, 1\nbuffer_load_dword v62, v15, s[36:39], 0 offen\nbuffer_load_dword v62, v15, s[40:43], 0 offen\nglobal_load_dword v62, v34, s[20:21]\ns_mov_b64 exec, -1')
    def dloads():
        for n in range(4): A(f'global_load_dwordx4 v[{160+4*n}:{163+4*n}], v{34+(n>>1)}, s[20:21] offset:{4096*(n&1)-4096} {"" if dtouch else "nt"}')
    dp = dpos if cfgy else ('bar1' if dearly else 'first')
    A(f's_and_b32 s68, s63, {frot}\ns_lshl_b32 s34, s68, 6\nv_xor_b32 v37, s34, v37')
    def fl(a, b):
        for jm in range(a, b):
            j, m = jm >> 1, jm & 1
            if jm in fbar and jm >= fsplit: A('s_barrier')
            A(f's_xor_b32 s34, s68, {j}\ns_mul_i32 s34, s34, {(16 if dppa else 32)*2752}\ns_add_u32 m0, s47, {4096*m+1024*j}')
            A(f'buffer_load_dwordx4 v15, s[{36+4*m}:{39+4*m}], s34 offen {wf} lds')
    A('global_load_dword v32, v36, s[4:5]')
    if bpre:
        A('s_sub_u32 s34, s30, 16\ns_lshl_b32 s34, s34, 1\ns_mov_b64 exec, 0x01010101\ns_mov_b32 exec_hi, 0x01010101')
        A('s_and_b32 s34, s30, 3\ns_lshl_b32 s34, s34, 11\nv_add_u32 v9, s34, v6\nglobal_load_dword v62, v9, s[44:45] offset:-4096 sc1\ns_mov_b64 exec, -1')
    if dp == 'mid': dloads()
    def fearly():
        if dp == 'bar1': dloads()
        fl(0, fsplit)
    bars(fearly, 'F')
    if dp == 'first': dloads()
    fl(fsplit, 8)
    F2(1)
    if fine == 2: A('s_waitcnt vmcnt(8)')
    F2(2)
    if dp == 'last': dloads()
    def fhook(n, inner=None):
        n += 4 if dp == 'last' else 0
        for t in range(4):
            A(f's_waitcnt vmcnt({n + 6 - 2 * t})')
            F2(3 + t)
            if inner and t == late - 1: n += inner()
            if t == 3:
                ST(10)
                if inner and repoll and late < 4: fload(96)
            for m in range(2):
                for hf in range(2):
                    r = 128 + 16 * m + 4 * t + 2 * hf
                    A(f'ds_read_b64_tr_b16 v[{r}:{r+1}], v33 offset:{4096*m+1024*t+512*hf}')
            if t == 0: A('v_and_b32 v41, 0xffff0000, v32\nv_lshlrev_b32 v40, 16, v32')
    def gemv(a, between=None):
        for t in range(4):
            if between: between(t)
            for m in range(2):
                c = f'v[{64+4*m}:{67+4*m}]'
                A(f'v_mfma_f32_16x16x32_bf16 {c}, v[{a(t)}:{a(t)+3}], v[{128+16*m+4*t}:{131+16*m+4*t}], {c if t else 0}')
    if fdep:
        def fload(x):
            for n in range(4): A((f's_mov_b64 exec, s[{48+2*n}:{49+2*n}]\n' if fmask else '') + f'global_load_dwordx4 v[{x+4*n}:{x+4*n+3}], v6, s[44:45] offset:{2048*n-4096} sc1')
            if fmask: A('s_mov_b64 exec, -1')
        if fmask:
            for n in range(4): A(f's_mov_b64 s[{48+2*n}:{49+2*n}], -1')
        if ftrig:
            fload(96)
            A('s_and_b32 s34, s29, 4\ns_add_u32 s34, s34, s29\ns_lshl_b32 s34, s34, 11\nv_and_b32 v9, 1, v0\nv_lshl_add_u32 v9, v9, 4, s34\nv_add_u32 v9, v9, v10')
            poll([('global_load_dword v124, v9, s[44:45] offset:-4096 sc1', 124)], 120, 8, 42, hook=lambda n: fhook(5), slp=1)
        def inner():
            if dp == 'in': dloads()
            fload(96)
            return 8 if dp == 'in' else 4
        if late: fhook(0, inner)
        elif not ftrig and not fpeel: fhook(0)
        deep(fload, 4, [96, 176, 192, 208][:fdep], 120, 8, 42, 16, hook=fhook if fpeel and not ftrig else None, issued=bool(late), masked=fmask, slp=fslp)
        ST(8)
    else:
        poll([(f'global_load_dwordx4 v[{96+4*n}:{99+4*n}], v6, s[44:45] offset:{2048*n-4096} sc1', 96 + 4 * n) for n in range(4)], 120, 8, 42, hook=fhook)
        ST(8)
        gsum(96, 120, 4, 16)
    A(f'''{FS(0)}
v_pk_add_f32 v[16:17], v[16:17], v[40:41]
v_cvt_pk_bf16_f32 v18, v16, v17
''')
    if dppa:
        mv = bcast(18, 72, 0xd)
        st = [['v_permlane32_swap_b32 v16, v17', 'v_add_f32 v16, v16, v17']] + [[f'v_add_f32_dpp v16, v16, v16 row_ror:{r} {FULL}'] for r in (8, 4, 2)]
        st += [[f'v_add_f32_dpp v16, v16, v16 row_ror:1 {FULL}', 'v_mov_b32 v17, v16'], [], ['v_permlane16_swap_b32 v16, v17', 'v_add_f32 v16, v16, v17'], []]
        if early:
            dpp = lambda r: f'v_add_f32_dpp v16, v16, v16 row_ror:{r} {FULL}'
            A('v_dot2_f32_bf16 v16, v18, v44, 0\nv_dot2_f32_bf16 v17, v18, v18, 0\ns_waitcnt lgkmcnt(0)')
            mv = mv[:2] + ['v_permlane32_swap_b32 v16, v17'] + mv[2:4] + ['v_add_f32 v16, v16, v17'] + mv[4:]
            for o in mv[:2]: A(o)
            mv = mv[2:]
            st = [[dpp(8)], [dpp(4)], [dpp(2)], [dpp(1), 'v_mov_b32 v17, v16'], ['v_permlane16_swap_b32 v16, v17', 'v_add_f32 v16, v16, v17'], [f's_mov_b64 exec, s[60:61]\nds_write_b32 v60, v16 offset:{L_RED}\ns_mov_b64 exec, -1'], [], []]
        elif mstat: A('s_waitcnt lgkmcnt(0)')
        else: A('v_dot2_f32_bf16 v16, v18, v44, 0\nv_dot2_f32_bf16 v17, v18, v18, 0\ns_waitcnt lgkmcnt(0)')
        for o in mv[:6]: A(o)
        mv = mv[6:]
        dl = [f'global_load_dwordx4 v[{160+4*n}:{163+4*n}], v{34+(n>>1)}, s[20:21] offset:{4096*(n&1)-4096}' for n in range(4)] if dp == 'post' else []
        for t in range(4):
            if mstat: A(f'v_mfma_f32_16x16x32_bf16 v[88:91], v[{72+4*t}:{75+4*t}], v[{72+4*t}:{75+4*t}], {"v[88:91]" if t else 0}')
            for m in range(2):
                c = f'v[{64+4*m}:{67+4*m}]'
                A(f'v_mfma_f32_16x16x32_bf16 {c}, v[{72+4*t}:{75+4*t}], v[{128+16*m+4*t}:{131+16*m+4*t}], {c if t else 0}')
                if dl: A(dl.pop(0))
                for o in mv[:2]: A(o)
                mv = mv[2:]
                if not mstat:
                    for o in st.pop(0): A(o)
    else:
        A('ds_write_b32 v37, v18')
        for t in range(4): A(f'ds_read_b128 v[{72+4*t}:{75+4*t}], v56 offset:{64*t}')
        if dp == 'post': dloads()
        A('v_dot2_f32_bf16 v16, v18, v44, 0\nv_dot2_f32_bf16 v17, v18, v18, 0\nv_permlane32_swap_b32 v16, v17\nv_add_f32 v16, v16, v17')
        for r in (8, 4): A(f'v_add_f32_dpp v16, v16, v16 row_ror:{r} {FULL}')
        def between(t):
            if t == 1: A(f'v_add_f32_dpp v16, v16, v16 row_ror:2 {FULL}')
            if t == 2: A(f'v_add_f32_dpp v16, v16, v16 row_ror:1 {FULL}\nv_mov_b32 v17, v16')
            if t == 3: A('v_permlane16_swap_b32 v16, v17\nv_add_f32 v16, v16, v17')
            A(f's_waitcnt lgkmcnt({3-t})')
        gemv(lambda t: 72 + 4 * t, between)
    if early:
        A(f'''{FS(1)}
s_mov_b32 exec_hi, 0
ds_write2_b32 v57, v64, v68 offset0:0 offset1:8
s_mov_b32 exec_hi, -1
s_waitcnt lgkmcnt(1)
s_barrier
ds_read_b128 v[24:27], v63
ds_read_b128 v[28:31], v63 offset:16
{WK(0)}
s_waitcnt lgkmcnt(2)
{FS(2)}
s_barrier
{FS(3)}
ds_read_b128 v[16:19], v58 offset:{L_OP}
{WK(1)}
s_waitcnt lgkmcnt(1)
v_pk_add_f32 v[24:25], v[24:25], v[26:27]
v_pk_add_f32 v[28:29], v[28:29], v[30:31]
v_pk_add_f32 v[24:25], v[24:25], v[28:29]
v_mul_f32 v24, 0xbb000000, v24       ; -mean
v_fmamk_f32 v28, v25, 0x3b000000, v46
v_fma_f32 v28, -v24, v24, v28
v_max_f32 v28, v28, v46
v_rsq_f32 v29, v28
s_waitcnt lgkmcnt(0)
{FS(4)}
v_pk_add_f32 v[16:17], v[16:17], v[18:19]
v_fmac_f32 v16, v24, v17
v_rcp_f32 v28, v28
v_mul_f32 v29, {LOG2E ^ 0x80000000:#x}, v29
v_add_f32_dpp v16, v16, v16 quad_perm:[1,0,3,2] {FULL}
v_mul_f32 v17, v16, v29
v_exp_f32 v17, v17
v_mul_f32_dpp v18, v16, v16 quad_perm:[2,3,0,1] {FULL}
v_add_f32 v17, 1.0, v17
v_rcp_f32 v17, v17
v_mul_f32 v18, v18, v28
v_mul_f32 v16, v18, v17
v_cvt_pk_bf16_f32 v16, v16, v16''')
    else:
        A(f'''{FS(1)}
s_mov_b64 exec, s[60:61]
ds_write_b32 v60, v{88 if mstat else 16} offset:{L_RED}
{'s_mov_b32 exec_lo, -1' + nl + 's_mov_b32 exec_hi, 0' + nl + 'ds_write2_b32 v57, v64, v68 offset0:0 offset1:8' if dppa else 's_mov_b64 exec, 0xffff' + nl + 'ds_write2_b64 v57, v[64:65], v[68:69] offset0:0 offset1:4'}
s_mov_b64 exec, -1
s_waitcnt lgkmcnt(0)''')
        ST(9)
        A(f'''{FS(2)}
s_barrier
{FS(3)}
ds_read_b128 v[24:27], v63
ds_read_b128 v[28:31], v63 offset:16
ds_read_b128 v[16:19], v58 offset:{L_OP}
ds_read_b128 v[20:23], v58 offset:{L_OP+16}
ds_read_b128 v[72:75], v58 offset:{L_OP+32}
ds_read_b128 v[76:79], v58 offset:{L_OP+48}
s_waitcnt lgkmcnt(4)
{FS(4)}
v_pk_add_f32 v[24:25], v[24:25], v[26:27]
v_pk_add_f32 v[28:29], v[28:29], v[30:31]
v_add_f32 v24, v24, v25
v_add_f32 v28, v28, v29
v_mul_f32 v24, 0xbb000000, v24       ; -mean
v_fmamk_f32 v28, v28, 0x3b000000, v46
v_fma_f32 v28, -v24, v24, v28
v_max_f32 v28, v28, v46
v_rsq_f32 v28, v28
s_waitcnt lgkmcnt(2)
v_pk_add_f32 v[16:17], v[16:17], v[18:19]
v_pk_add_f32 v[20:21], v[20:21], v[22:23]
v_mul_f32 v29, {LOG2E ^ 0x80000000:#x}, v28
v_pk_add_f32 v[16:17], v[16:17], v[20:21]
v_fmac_f32 v16, v24, v17
v_mul_f32 v17, v16, v29
v_exp_f32 v17, v17
s_waitcnt lgkmcnt(0)
v_pk_add_f32 v[72:73], v[72:73], v[74:75]
v_add_f32 v17, 1.0, v17
v_rcp_f32 v17, v17
v_pk_add_f32 v[76:77], v[76:77], v[78:79]
v_mul_f32 v16, v16, v28              ; gate
v_pk_add_f32 v[72:73], v[72:73], v[76:77]
v_mul_f32 v16, v16, v17              ; silu(gate)
v_fmac_f32 v72, v24, v73
v_mul_f32 v16, v16, v28
v_mul_f32 v16, v16, v72
v_cvt_pk_bf16_f32 v16, v16, v16''')
    A(FS(5))
    if dp == 'post': A('s_waitcnt vmcnt(0)')
    ops = [f'v_and_b32_dpp v{72+4*n+w}, v16, v{48+w} row_newbcast:{4*n} {FULL}' for n in range(4) for w in range(4)]
    for n in range(4):
        for o in ops[(4 * n + 2 if n else 0):4 * n + 6]: A(o)
        A(f'v_mfma_f32_16x16x32_bf16 v[64:67], v[{72+4*n}:{75+4*n}], v[{160+4*n}:{163+4*n}], {"v[64:67]" if n else 0}')
    A('v_bfi_b32 v64, v11, v8, v64\nglobal_store_dwordx4 v59, v[64:67], s[26:27] sc1')
    A(FS(6))
    finish()

    page()
    A(f'''L_vwave:
s_add_u32 s36, s8, s34
s_addc_u32 s37, s9, 0
s_lshl3_add_u32 s35, s31, s32
s_lshl_b32 s35, s35, 10
s_add_u32 s44, s26, s35
s_addc_u32 s45, s27, 0
v_mov_b32 v56, {L_ML}
s_lshr_b32 s56, s2, 6
s_lshl_b32 s56, s56, 7
s_and_b32 s35, s2, 63
s_add_u32 s56, s56, s35
s_lshl_b32 s56, s56, 7
s_add_u32 s56, s56, {WS_PR}
s_cmp_lg_u32 s28, {99 if nox else 5}
s_cbranch_scc1 L_nowarm
s_load_dword s54, s[26:27], s56 glc
s_load_dword s55, s[26:27], s56 offset:0x2000 glc
L_nowarm:''')
    ST(7)
    selectors(40, 28)
    A(f'''s_lshl_b32 s34, s63, 10
s_add_u32 s34, s34, {L_OP}
v_lshrrev_b32 v12, 5, v0
v_lshl_add_u32 v12, v12, 9, s34
v_lshl_add_u32 v12, v4, 2, v12
v_bfe_u32 v13, v0, 4, 1
v_lshl_add_u32 v12, v13, 5, v12
v_lshlrev_b32 v14, 3, v0
s_lshl_b32 s34, s32, 5
s_add_u32 s34, s34, s63
s_lshl_b32 s34, s34, 2
v_lshl_add_u32 v6, v3, 4, s34
v_mov_b32 v57, 1
s_waitcnt vmcnt(4)''')
    ST(1)
    layernorm(24, 28, 24)
    A(f'ds_write_b128 v5, v[24:27] offset:{L_H}\ns_waitcnt lgkmcnt(0)\nds_read_b32 v48, v6 offset:{L_H}\ns_add_u32 s3, s3, {EPOCH_STEP:#x}')
    tagreg(8, 14, 4)
    A('s_waitcnt lgkmcnt(0)')
    for n in range(2): afrag(24 + 4 * n, 48, n, 40)
    A('s_waitcnt vmcnt(0)')
    for n in range(2):
        for hf in range(2):
            c = f'v[{16+4*hf}:{19+4*hf}]'
            A(f'v_mfma_f32_16x16x32_bf16 {c}, v[{24+4*n}:{27+4*n}], v[{64+8*n+4*hf}:{67+8*n+4*hf}], {c if n else 0}')
    def part_write():
        A(f'''s_mov_b32 exec_lo, 0x00ff00ff
s_mov_b32 exec_hi, 0xff00ff00
ds_write2_b64 v12, v[16:17], v[20:21] offset0:0 offset1:1
ds_write2_b64 v12, v[18:19], v[22:23] offset0:2 offset1:3''')
    def part_sum(off):
        for n in range(4): A(f'ds_read_b128 v[{16+4*n}:{19+4*n}], v5 offset:{L_OP+1024*n}')
        A('s_waitcnt lgkmcnt(0)')
        sum8(16)
    part_write()
    A(f'''s_mov_b64 exec, 1
s_waitcnt lgkmcnt(0)
ds_add_u32 v56, v57 offset:48
s_mov_b64 exec, -1
s_cmp_lg_u32 s28, {99 if noq else 4}
s_cbranch_scc1 L_vstream
''')
    ldsspin('ds_read_b32 v15, v56 offset:48', 'v_cmp_ne_u32 vcc, 4, v15')
    part_sum(0)
    A('v_and_or_b32 v16, v16, -16, v8\nv_and_or_b32 v17, v17, -16, v8\nglobal_store_dwordx2 v14, v[16:17], s[44:45] ' + qst)
    ST(2)
    A(f'''L_vstream:
{'s_mov_b64 exec, 1' + nl + 'buffer_load_dword v29, v2, s[36:39], s33 offen nt' + nl + 's_mov_b64 exec, -1' if tlb & 8 else ''}
s_setprio 0
s_cmp_lg_u32 s28, {99 if nox else 5}
s_cbranch_scc1 L_noprobe
s_mov_b32 s54, {0 if psum else -1}
s_mov_b32 s55, {0 if psum else -1}
s_waitcnt lgkmcnt(0)''')
    for i in range(2 * nprobe):
        A(f's_memtime s[50:51]\ns_load_dword s35, s[26:27], s56 offset:{0x2000 * (i & 1)} glc\ns_waitcnt lgkmcnt(0)\ns_memtime s[52:53]\ns_waitcnt lgkmcnt(0)\ns_sub_u32 s35, s52, s50\n{"s_add_u32" if psum else "s_min_u32"} s{54 + (i & 1)}, s{54 + (i & 1)}, s35')
    A(f'''s_getreg_b32 s34, hwreg(HW_REG_XCC_ID, 0, 4)
s_andn2_b32 s35, s3, 31
s_or_b32 s34, s34, s35
s_cmp_lt_u32 s55, s54
s_cselect_b32 s35, 16, 0
s_or_b32 s34, s34, s35
v_mov_b32 v31, s34
s_lshl_b32 s34, s29, 6
s_add_u32 s34, s34, s30
s_lshl_b32 s34, s34, 2
s_add_u32 s34, s34, {WS_X}
v_mov_b32 v30, s34
s_mov_b64 exec, 1
global_store_dword v30, v31, s[26:27] {xst}
s_mov_b64 exec, -1
L_noprobe:
s_lshl_b32 s34, s63, 2
v_mov_b32 v28, s34''')
    ST(8)
    ldsspin(f'ds_read_b32 v15, v28 offset:{L_ML+64}', 'v_cmp_eq_u32 vcc, 0, v15', 1)
    A(f'''s_lshl_b32 s34, s29, 8
s_add_u32 s34, s34, {WS_X}
v_and_b32 v30, 31, v0
v_lshl_add_u32 v30, v30, 2, s34
s_getreg_b32 s34, hwreg(HW_REG_XCC_ID, 0, 4)
s_andn2_b32 s46, s3, 31
s_or_b32 s46, s46, s34''')
    tv = thrv or thr
    stream({xpos: 'global_load_dword v31, v30, s[26:27] sc1',
            xpos + tv: f'''v_and_b32 v31, -17, v31
v_cmp_ne_u32 s[48:49], s46, v31
s_cmp_eq_u64 s[48:49], {"s[48:49]" if nox else (1 if slowall else 0)}
s_cselect_b64 s[50:51], -1, 0
s_cselect_b64 s[52:53], 0, -1
s_cbranch_scc0 L_requeue
L_requeued:'''}, tv, extra_at=xpos, slow=slowv)
    cold.append(lambda: A('''L_requeue:
s_cmp_lg_u32 s28, 4
s_cbranch_scc1 L_requeued
global_store_dwordx2 v14, v[16:17], s[44:45] sc1
s_waitcnt vmcnt(0)
s_branch L_requeued'''))
    A('v_mov_b32 v11, 0xff')
    if vprio == 0: A('s_setprio 3')
    if sq: A(f'''s_lshl2_add_u32 s54, s30, s63
s_andn2_b32 s55, s54, 15
s_mul_i32 s55, s55, 3
s_add_u32 s54, s54, s55
s_mul_i32 s54, s54, 2752
s_mul_i32 s55, s29, 352
s_andn2_b32 s55, s55, 63
s_min_u32 s55, s55, {2752-384}
s_add_u32 s54, s54, s55''')
    if v4:
        A(f'''s_mul_i32 s34, s63, {2*528}
s_add_u32 s34, s34, {L_OP}
v_lshrrev_b32 v12, 5, v0
v_mul_u32_u24 v12, 528, v12
v_lshl_add_u32 v12, v4, 1, v12
v_bfe_u32 v13, v0, 4, 1
v_lshl_add_u32 v12, v13, 4, v12
v_add_u32 v12, s34, v12
s_lshl_b32 s34, s63, 7
v_mul_u32_u24 v13, 528, v3
v_add3_u32 v13, v13, v4, s34
v_add_u32 v13, {L_OP}, v13
v_lshrrev_b32 v14, 4, v0
v_lshlrev_b32 v14, 5, v14
v_lshrrev_b32 v15, 2, v4
v_add3_u32 v14, v14, v15, s34        ; position inside the A record
s_and_b32 s50, s50, 0x00ff00ff
s_and_b32 s51, s51, 0x00ff00ff
s_and_b32 s52, s52, 0x00ff00ff
s_and_b32 s53, s53, 0x00ff00ff''')
    tagreg(8, 14, 8)
    tagmask(10, 14)
    ST(3)
    A(f'''s_lshl_b32 s34, s63, 8
v_lshl_add_u32 v6, v3, 5, s34
s_barrier''')
    ST(4)
    A(f'ds_read_b128 v[48:51], v6 offset:{L_P}\nds_read_b128 v[52:55], v6 offset:{L_P+16}\ns_waitcnt lgkmcnt(0)')
    for i in range(16): afrag(64 + 4 * i, 48 + i // 2, i & 1, 40)
    for i in range(16):
        for hf in range(2):
            if vprio == 1 and (i, hf) == (12, 0): A('s_setprio 3')
            if vfill and i >= 13 and hf == 0:
                Lw = lab('busy')
                A(f'{Lw}:\nv_mov_b32 v1, v1\ns_getreg_b32 s34, hwreg(HW_REG_IB_STS, 0, 4)\ns_cmp_gt_u32 s34, {31-2*i}\ns_cbranch_scc1 {Lw}')
            if hf == 0 or i >= 12: A(f's_waitcnt vmcnt({31-2*i-hf if i >= 12 else 30-2*i})')
            c = f'v[{16+4*hf}:{19+4*hf}]'
            A(f'v_mfma_f32_16x16x32_bf16 {c}, v[{64+4*i}:{67+4*i}], v[{128+8*i+4*hf}:{131+8*i+4*hf}], {c if i else 0}')
    def stouch():
        for t in sq:
            for m in range(2):
                for j in range(6): A(f's_load_dword s35, s[{16+2*m}:{17+2*m}], s54 offset:{16*t*2752+64*j}')
    def ttwait():
        stouch()
        A(f'''s_barrier
L_tt:
s_memrealtime s[96:97]
s_waitcnt lgkmcnt(0)
s_sub_u32 s96, s96, s98
s_cmp_lt_u32 s96, {tailtest}
s_cbranch_scc1 L_tt''')
    if vlast:
        if tailtest: ttwait()
        part_write()
        A(f'ds_write_b32 v28, v11 offset:{L_ML+80}\ns_mov_b64 exec, -1\nds_read_b128 v[32:35], v56 offset:80')
        for n in range(4): A(f'ds_read_b128 v[{64+4*n}:{67+4*n}], v5 offset:{L_OP+1024*n}')
        A(f'''s_waitcnt lgkmcnt(4)
v_min3_u32 v32, v32, v33, v34
v_min_u32 v32, v32, v35
v_cmp_ne_u32 vcc, 0, v32
s_waitcnt lgkmcnt(2)
v_pk_add_f32 v[64:65], v[64:65], v[68:69]
v_pk_add_f32 v[66:67], v[66:67], v[70:71]
s_and_b64 s[50:51], s[50:51], vcc
s_and_b64 s[52:53], s[52:53], vcc
s_waitcnt lgkmcnt(0)
v_pk_add_f32 v[72:73], v[72:73], v[76:77]
v_pk_add_f32 v[74:75], v[74:75], v[78:79]
v_pk_add_f32 v[64:65], v[64:65], v[72:73]
v_pk_add_f32 v[66:67], v[66:67], v[74:75]
v_permlane32_swap_b32 v64, v66
v_permlane32_swap_b32 v65, v67
v_pk_add_f32 v[64:65], v[64:65], v[66:67]
v_bfi_b32 v64, v10, v8, v64
s_mov_b64 exec, s[50:51]
global_store_dwordx2 v14, v[64:65], s[44:45] offset:{AOFF}
s_mov_b64 exec, s[52:53]
global_store_dwordx2 v14, v[64:65], s[44:45] offset:{AOFF} sc1''')
    elif v4:
        A(f'''s_mov_b32 exec_lo, 0x00ff00ff
s_mov_b32 exec_hi, 0xff00ff00
ds_write_b128 v12, v[16:19]
ds_write_b128 v12, v[20:23] offset:256
s_mov_b64 exec, -1
{WK(4)}
s_waitcnt lgkmcnt(0)''')
        ST(5)
        A('s_barrier')
    else:
        part_write()
        A('s_mov_b64 exec, -1\ns_waitcnt lgkmcnt(0)')
        ST(5)
        A('s_barrier\ns_cmp_lg_u32 s28, 4\ns_cbranch_scc1 L_vend')
    if tailtest and not vlast: ttwait()
    if v4:
        A(f'''ds_read_b128 v[16:19], v13
{WK(5)}
s_waitcnt lgkmcnt(0)
v_permlane32_swap_b32 v16, v18
v_permlane32_swap_b32 v17, v19
v_pk_add_f32 v[16:17], v[16:17], v[18:19]
v_permlane16_swap_b32 v16, v17
v_add_f32 v16, v16, v17
v_add_f32_dpp v16, v16, v16 row_ror:8 {FULL}
s_mov_b64 exec, s[50:51]
v_bfi_b32 v17, v10, v8, v16
global_store_dword v14, v17, s[44:45] offset:{AOFF}
s_mov_b64 exec, s[52:53]
v_bfi_b32 v16, v10, v8, v16
global_store_dword v14, v16, s[44:45] offset:{AOFF} sc1''')
    elif not vlast:
        part_sum(512)
        A('v_bfi_b32 v16, v10, v8, v16')
        A(f's_mov_b64 exec, s[50:51]\nglobal_store_dwordx2 v14, v[16:17], s[44:45] offset:{AOFF}\ns_mov_b64 exec, s[52:53]')
        A(f'global_store_dwordx2 v14, v[16:17], s[44:45] offset:{AOFF} sc1')
    ST(6)
    A(('' if tailtest else 's_barrier\n') + 'L_vend:')
    if not tailtest: stouch()
    finish()
    A(f'L_exit:\ns_endpgm\nL_code_end:\n.fill (L_pc+{33*(1024 if pf == 3 else 512)}-L_code_end)/4, 4, 0xbf810000')
    A.raw(f'''.section .rodata,"a"
.p2align 6
.amdhsa_kernel {NAME}_kernel
  .amdhsa_next_free_vgpr 256
  .amdhsa_next_free_sgpr 102
  .amdhsa_accum_offset 256
  .amdhsa_group_segment_fixed_size 0
  .amdhsa_kernarg_size 96
  .amdhsa_user_sgpr_count 2
  .amdhsa_user_sgpr_kernarg_segment_ptr 1
  .amdhsa_system_sgpr_workgroup_id_x 1
  .amdhsa_float_denorm_mode_32 3
.end_amdhsa_kernel''')
    return A.text()

def STAMPS(al, roles, KW, VW):
    import numpy as np
    return [('start', al, KW + VW, 0), ('V at vwave', al, VW, 7), ('Q: x landed', al, VW, 1), ('Q: stored', al, [4], 2), ('V probed', al, VW, 8), ('probe/100 lo', np.arange(256) % 8 < 4, KW, 12), ('probe/100 hi', np.arange(256) % 8 >= 4, KW, 12), ('K issued', al, KW, 1), ('K go', al, KW, 2),
            ('K q gathered', al, KW, 3), ('K qk done', al, KW, 11), ('K ml lds', al, [0], 4), ('K ml gathered', al, KW, 5), ('K p written', al, KW, 6),
            ('V issued', al, VW, 3), ('V bar1', al, VW, 4), ('V pv done', al, VW, 5), ('A stored', al, VW, 6), ('K bar3', al, KW, 7),
            ('W wts landed', roles == 'W', KW, 10), ('F wts landed', roles == 'F', KW, 10),
            ('W gathered', roles == 'W', KW, 8), ('W end', roles == 'W', KW, 15), ('F gathered', roles == 'F', KW, 8), ('F gemv done', roles == 'F', KW, 9),
            ('F end', roles == 'F', KW, 15), ('R h seen', roles == 'R', [0], 9), ('R gathered', roles == 'R', [0], 8), ('R end', roles == 'R', [0], 15)]

if __name__ == '__main__':
    out = sys.argv[1] if len(sys.argv) > 1 else f'cdna_kernels/{NAME}.s'
    kw = eval('dict(' + (sys.argv[2] if len(sys.argv) > 2 else '') + ')')
    open(out, 'w').write(gen(**kw))
```

```python
import sys
from asmlib import Asm

NAME = 'sequential_preLN__sliding_block_cached__swiglu_ffn__decode'
WS_QA, WS_B, WS_PR, WS_ML, WS_X, WS_E, WS_C, WS_ST = 0x0, 0x40000, 0x60000, 0x70000, 0x72000, 0x73000, 0x80000, 0x100000
EPOCH_STEP = 0x5bd1e3c7
L_P, L_OP, L_H, L_RED, L_SY, L_Q, L_W = 0x0, 0x400, 0x1400, 0x1800, 0x1a00, 0x1b00, 0x1c00
LDS_BYTES = L_W + 0x8000
SPIN = 0x40000
LOG2E, SCALE, EPS = 0x3fb8aa3b, 0x3db504f3, 0x3727c5ac
FULL = 'row_mask:0xf bank_mask:0xf'
THR, KPRE, QPOS, XPOS, GOW = 8, 3, 24, 12, 4

DOC = '''\
;   found nearer. Either copy holds the same data.'''

def gen(span=0):
    A = Asm()
    cold = []
    uid = [0]
    def lab(s):
        uid[0] += 1
        return f'L_{s}_{uid[0]}'
    def finish(last=0):
        if span and last == span:
            A(f'''s_memrealtime s[96:97]
s_waitcnt lgkmcnt(0)
v_writelane_b32 v7, s96, 15
v_writelane_b32 v7, s98, 0
s_mov_b64 exec, 0xffff
s_lshl3_add_u32 s34, s2, s28
s_lshl_b32 s34, s34, 6
s_add_u32 s34, s34, {WS_ST}
v_lshl_add_u32 v1, v0, 2, s34
global_store_dword v1, v7, s[26:27]''')
        A('s_endpgm')
        for f in cold: f()
        cold.clear()
    def wred(op, v, t):
        for r in (8, 4, 2, 1): A(f'{op}_dpp v{v}, v{v}, v{v} row_ror:{r} {FULL}')
        for sw in (16, 32): A(f'v_mov_b32 v{t}, v{v}\nv_permlane{sw}_swap_b32 v{v}, v{t}\n{op} v{v}, v{v}, v{t}')
    def rnd(v):
        A(f'v_cvt_pk_bf16_f32 v{v}, v{v}, v{v}\nv_lshlrev_b32 v{v}, 16, v{v}')
    def layernorm(x, u):
        s, t, mb, dl = u + 8, u + 9, u + 10, u + 11
        for i in range(4): A(f'v_lshlrev_b32 v{u+2*i}, 16, v{x+i}\nv_and_b32 v{u+2*i+1}, 0xffff0000, v{x+i}')
        A(f'v_add_f32 v{s}, v{u}, v{u+1}\nv_add_f32 v{t}, v{u+2}, v{u+3}\nv_add_f32 v{mb}, v{u+4}, v{u+5}\nv_add_f32 v{dl}, v{u+6}, v{u+7}')
        A(f'v_add_f32 v{s}, v{s}, v{t}\nv_add_f32 v{mb}, v{mb}, v{dl}\nv_add_f32 v{s}, v{s}, v{mb}')
        wred('v_add_f32', s, t)
        A(f'v_mul_f32 v{dl}, 0x3b000000, v{s}')
        A(f'v_cvt_pk_bf16_f32 v{mb}, v{dl}, v{dl}\nv_lshlrev_b32 v{mb}, 16, v{mb}')
        for i in range(8): A(f'v_sub_f32 v{u+i}, v{u+i}, v{mb}')
        A(f'v_sub_f32 v{dl}, v{dl}, v{mb}')
        A(f'v_mul_f32 v{s}, v{u}, v{u}\nv_mul_f32 v{t}, v{u+1}, v{u+1}')
        for i in range(2, 8, 2): A(f'v_fmac_f32 v{s}, v{u+i}, v{u+i}\nv_fmac_f32 v{t}, v{u+i+1}, v{u+i+1}')
        A(f'v_add_f32 v{s}, v{s}, v{t}')
        fill = [f'v_cvt_pk_bf16_f32 v{x+i}, v{u+2*i}, v{u+2*i+1}' for i in range(4)]
        for i in range(4): fill += [f'v_lshlrev_b32 v{u+2*i}, 16, v{x+i}', f'v_and_b32 v{u+2*i+1}, 0xffff0000, v{x+i}']
        fill.append(f'v_mul_f32 v{dl}, v{dl}, v{dl}')
        for r in (8, 4, 2, 1):
            A(fill.pop(0)); A(fill.pop(0))
            A(f'v_add_f32_dpp v{s}, v{s}, v{s} row_ror:{r} {FULL}')
        for sw in (16, 32):
            A(f'v_mov_b32 v{t}, v{s}'); A(fill.pop(0)); A(fill.pop(0))
            A(f'v_permlane{sw}_swap_b32 v{s}, v{t}\nv_add_f32 v{s}, v{s}, v{t}')
        A(fill.pop(0))
        A(f'v_mul_f32 v{s}, 0x3b000000, v{s}\nv_sub_f32 v{s}, v{s}, v{dl}\nv_max_f32 v{s}, 0, v{s}')
        rnd(s)
        A(f'v_add_f32 v{s}, {EPS:#x}, v{s}'); rnd(s)
        A(f'v_sqrt_f32 v{s}, v{s}'); rnd(s)
        A(f'v_rcp_f32 v{s}, v{s}')
        for i in range(8): A(f'v_mul_f32 v{u+i}, v{u+i}, v{s}')
        for i in range(4): A(f'v_cvt_pk_bf16_f32 v{x+i}, v{u+2*i}, v{u+2*i+1}')
    def afrag(dst, src, par):
        for w in range(4): A(f'v_perm_b32 v{dst+w}, v{src}, v{src}, v{40+4*par+w}')
    def bcast(src, dst, bank):
        return [f'v_mov_b32_dpp v{dst+i}, v{src} row_newbcast:{i} row_mask:0xf bank_mask:{bank:#x}' for i in range(16)]
    def tagreg(dst, addr, bits):
        A(f'v_lshrrev_b32 v{dst}, 1, v{addr}\nv_xor_b32 v{dst}, v{dst}, v{addr}\nv_bfe_u32 v{dst}, v{dst}, 4, 1\nv_lshlrev_b32 v{dst}, {bits-1}, v{dst}\nv_xor_b32 v{dst}, s3, v{dst}')
        if bits == 4: A(f'v_xor_b32 v{dst}, 4, v{dst}')
        A(f'v_and_b32 v{dst}, {(1 << bits) - 1}, v{dst}')
    def tagmask(dst, addr):
        A(f'v_and_b32 v{dst}, 15, v{addr}\nv_cmp_eq_u32 vcc, 0, v{dst}\nv_cndmask_b32 v{dst}, 0, v11, vcc')
    def gather(load, n, t, issued=False, masked=False):
        x, y, T, d = 96, 120, 8, 16
        L, Lc, Lo = lab('again'), lab('chk'), lab('ok')
        A(f'; repeat the round until word 0 of every granule carries the tag, then sum the partials\ns_mov_b32 s62, {SPIN}')
        if issued: A(f's_branch {Lc}')
        A(f'{L}:')
        load()
        if masked:
            for i in range(n):
                A(f'v_and_b32 v{t}, v11, v{y+i}\nv_cmp_ne_u32 vcc, 0, v{t}')
                A(f's_cmp_lg_u32 vcc_lo, 0\ns_cselect_b32 s{48+2*i}, -1, 0\ns_cmp_lg_u32 vcc_hi, 0\ns_cselect_b32 s{49+2*i}, -1, 0')
        A(f's_sub_u32 s62, s62, 1\ns_cbranch_scc1 {Lo}\n{Lc}:')
        for i in range(n):
            if i % 2 == 0: A(f's_waitcnt vmcnt({n-2-i})')
            A(f'v_xor_b32 v{y+i}, v{x+4*i}, v{T}')
            if i % 2 == 1:
                dd = d + 2 * (i - 1)
                if i == 1: A(f'v_or_b32 v{t}, v{y}, v{y+1}')
                elif i < n - 1: A(f'v_or3_b32 v{t}, v{t}, v{y+i-1}, v{y+i}')
                else: A(f'v_or_b32 v{t}, v{t}, v{y+i-1}\nv_bitop3_b32 v{t}, v{t}, v{y+i}, v11 bitop3:0xa8\nv_cmp_ne_u32 vcc, 0, v{t}')
                A(f'v_pk_add_f32 v[{dd+2}:{dd+3}], v[{x+4*i-2}:{x+4*i-1}], v[{x+4*i+2}:{x+4*i+3}]')
                if i == n - 1: A(f's_cbranch_vccnz {L}\n{Lo}:')
                A(f'v_add_f32 v{dd}, v{y+i-1}, v{y+i}\nv_add_f32 v{dd+1}, v{x+4*i-3}, v{x+4*i+1}')
                if i > 1:
                    for r in (2, 0): A(f'v_pk_add_f32 v[{d+r}:{d+r+1}], v[{d+r}:{d+r+1}], v[{dd+r}:{dd+r+1}]')
        A(f'v_permlane32_swap_b32 v{d}, v{d+2}\nv_permlane32_swap_b32 v{d+1}, v{d+3}')
        A(f'v_pk_add_f32 v[{d}:{d+1}], v[{d}:{d+1}], v[{d+2}:{d+3}]')
    def ldsspin(reads, test, slp=0):
        L, Ld = lab('spin'), lab('spun')
        A(f's_mov_b32 s62, {SPIN}\n{L}:')
        if slp: A(f's_sleep {slp}')
        A(f'{reads}\ns_waitcnt lgkmcnt(0)\n{test}\ns_cbranch_vccz {Ld}\ns_sub_u32 s62, s62, 1\ns_cbranch_scc0 {L}\n{Ld}:')
    def stream(hooks, extra_at):
        A(f'; 16 tiles of 8 keys x 256 B, at most {THR} loads in flight per wave')
        for i in range(16):
            if i: A('s_addk_i32 s33, 0x800\ns_bitset0_b32 s33, 15')
            if 2 * i >= THR:
                A(f's_waitcnt vmcnt({THR - 2 + (1 if 2 * i - (THR - 2) < extra_at <= 2 * i else 0)})')
            for hf in range(2):
                A(f'buffer_load_dwordx4 v[{128+8*i+4*hf}:{131+8*i+4*hf}], v2, s[36:39], s33 offen offset:{128*hf} nt')
                if 2 * i + hf + 1 in hooks: A(hooks[2 * i + hf + 1])

    for ln in open('cdna_kernels/' + NAME + '.s.ref').read().split('\n'):
        if ln.startswith('; @launch'): A.raw(f'; @launch grid=(256,1,1) block=(512,1,1) lds={LDS_BYTES}'); break
        A.raw(ln)
    A.raw(DOC)
    A.raw(f'.amdgcn_target "amdgcn-amd-amdhsa--gfx950"\n.text\n.globl {NAME}_kernel\n.p2align 12\n.p2align 8\n.type {NAME}_kernel,@function\n{NAME}_kernel:')

    if span: A('s_memrealtime s[98:99]')
    A(f'''s_load_dwordx16 s[4:19], s[0:1], 0
s_load_dwordx8 s[20:27], s[0:1], 64
s_getpc_b64 s[40:41]
L_pc:
v_lshrrev_b32 v1, 6, v0
s_lshr_b32 s30, s2, 3                ; k
v_readfirstlane_b32 s28, v1          ; wave
v_and_b32 v0, 63, v0                 ; lane
s_cmp_ge_u32 s2, 256
s_cbranch_scc1 L_exit
s_lshl3_add_u32 s43, s30, s28
s_lshl_b32 s43, s43, 6
s_and_b32 s29, s2, 7                 ; g
s_and_b32 s31, s30, 3
s_lshl2_add_u32 s31, s29, s31        ; head
s_lshr_b32 s32, s30, 2
v_lshrrev_b32 v3, 3, v0              ; lane >> 3
v_and_b32 v4, 7, v0
v_lshlrev_b32 v4, 4, v4              ; (lane & 7) * 16
v_lshl_add_u32 v2, v3, 8, v4
v_lshlrev_b32 v5, 4, v0              ; lane * 16
s_and_b32 s63, s28, 3
s_lshl2_add_u32 s33, s31, s32
s_lshl1_add_u32 s33, s63, s33
s_and_b32 s33, s33, 15
s_lshl_b32 s33, s33, 11
s_lshl_b32 s34, s31, 6
s_add_u32 s34, s34, s32
s_add_u32 s34, s34, 56
s_lshl2_add_u32 s34, s34, s63
s_lshl_b32 s34, s34, 15
s_mov_b32 s38, 0x8000
s_mov_b32 s39, 0x20000
s_cmp_lt_u32 s28, 4
s_cbranch_scc1 L_kwave
s_setprio 3
s_lshl_b32 s35, s32, 5
s_add_u32 s35, s35, s63
s_lshl_b32 s35, s35, 6
s_add_u32 s35, s35, s31
s_lshl_b32 s35, s35, 8
v_lshl_add_u32 v6, v3, 16, v4
v_add_u32 v12, 0x2000, v6
v_subrev_u32 v13, 12, v0
v_ashrrev_i32 v13, 31, v13
v_lshlrev_b32 v14, 2, v0
ds_write_b32 v14, v13 offset:{L_SY}
s_waitcnt lgkmcnt(0)
global_load_dwordx4 v[24:27], v5, s[4:5]
s_load_dword s42, s[40:41], s43
s_load_dword s3, s[26:27], {WS_E:#x}
s_add_u32 s10, s10, s35
s_addc_u32 s11, s11, 0''')
    for n in range(2):
        for hf in range(2): A(f'global_load_dwordx4 v[{64+8*n+4*hf}:{67+8*n+4*hf}], v{(6, 12)[n]}, s[10:11] offset:{128*hf} nt')
    A('s_barrier\ns_branch L_vwave')

    A('''L_kwave:
s_setprio 2
s_waitcnt lgkmcnt(0)
s_add_u32 s36, s6, s34
s_addc_u32 s37, s7, 0''')
    qload = 'global_load_dwordx4 v[16:19], v6, s[44:45] sc1'
    stream({1: 's_load_dword s42, s[40:41], s43',
            KPRE: f's_load_dword s3, s[26:27], {WS_E:#x}\ns_barrier',
            8: '''s_lshl_b32 s34, s31, 6
s_add_u32 s34, s34, s28
s_lshl_b32 s34, s34, 7
s_add_u32 s44, s26, s34
s_addc_u32 s45, s27, 0
v_lshl_add_u32 v6, v3, 10, v4''',
            QPOS: qload + '   ; 32 columns of the 8 partial q records'}, QPOS)
    A(f'''v_lshrrev_b32 v12, 5, v0             ; lane >> 5
v_and_b32 v13, 31, v0
v_lshlrev_b32 v13, 4, v13            ; (lane & 31) * 16
s_lshl_b32 s34, s28, 6
v_lshrrev_b32 v14, 4, v0
v_lshlrev_b32 v14, 1, v14
v_lshrrev_b32 v15, 1, v4
v_add3_u32 v14, v14, v15, s34
v_mov_b32 v24, {L_SY}
v_mov_b32 v25, 1
s_lshl_b32 s34, s28, 2
v_mov_b32 v26, s34
s_waitcnt lgkmcnt(0)
s_add_u32 s3, s3, {EPOCH_STEP:#x}''')
    tagreg(8, 5, 4)
    A(f's_waitcnt vmcnt({GOW})\nds_write_b32 v26, v25 offset:{L_SY+64}')
    A(f's_mov_b32 s62, {SPIN}\nL_qchk:')
    for i in range(4): A(f'v_xor_b32 v{20+i}, v{16+i}, v8')
    A('v_or3_b32 v15, v20, v21, v22\nv_bitop3_b32 v15, v15, v23, 15 bitop3:0xa8\nv_cmp_ne_u32 vcc, 0, v15\ns_cbranch_vccnz L_qagain\nL_qok:')
    cold.append(lambda: A(f'L_qagain:\n{qload}\ns_sub_u32 s62, s62, 1\ns_waitcnt vmcnt(0)\ns_cbranch_scc0 L_qchk\ns_branch L_qok'))
    A(f'''v_permlane32_swap_b32 v20, v22
v_permlane32_swap_b32 v21, v23
v_add_f32 v20, v20, v22
v_add_f32 v21, v21, v23
v_permlane16_swap_b32 v20, v21
v_add_f32 v20, v20, v21
v_add_f32_dpp v20, v20, v20 row_ror:8 {FULL}
v_cvt_pk_bf16_f32 v20, v20, v20
ds_write_b16 v14, v20 offset:{L_Q}
s_mov_b64 exec, 1
s_waitcnt lgkmcnt(0)
ds_add_u32 v24, v25 offset:52
s_mov_b64 exec, -1''')
    ldsspin('ds_read_b32 v15, v24 offset:52', 'v_cmp_ne_u32 vcc, 4, v15')
    A(f'ds_read_b128 v[16:19], v4 offset:{L_Q}\nds_read_b128 v[20:23], v4 offset:{L_Q+128}\ns_waitcnt lgkmcnt(0)')
    for i0 in range(0, 16, 4):
        if i0 == 12: A('s_waitcnt vmcnt(0)')
        for e in range(8):
            for i in range(i0, i0 + 4):
                A(f'v_dot2_f32_bf16 v{32+i}, v{128+8*i+e}, v{16+e}, {"v%d" % (32+i) if e else 0}')
    for i in range(8): A(f'v_add_f32_dpp v{32+i}, v{32+i}, v{32+i} row_half_mirror row_mask:0xf bank_mask:0x5')
    for i in range(8): A(f'v_add_f32_dpp v{32+i}, v{40+i}, v{40+i} row_half_mirror row_mask:0xf bank_mask:0xa')
    A('s_mov_b32 vcc_lo, 0xcccccccc\ns_mov_b32 vcc_hi, 0xcccccccc')
    for i in range(4): A(f'v_cndmask_b32 v{40+i}, v{36+i}, v{32+i}, vcc\nv_cndmask_b32 v{32+i}, v{32+i}, v{36+i}, vcc')
    for i in range(4): A(f'v_add_f32_dpp v{32+i}, v{40+i}, v{32+i} quad_perm:[2,3,0,1] {FULL}')
    A('s_mov_b32 vcc_lo, 0xaaaaaaaa\ns_mov_b32 vcc_hi, 0xaaaaaaaa')
    for i in range(2): A(f'v_cndmask_b32 v{40+i}, v{34+i}, v{32+i}, vcc\nv_cndmask_b32 v{32+i}, v{32+i}, v{34+i}, vcc')
    for i in range(2): A(f'v_add_f32_dpp v{32+i}, v{40+i}, v{32+i} quad_perm:[1,0,3,2] {FULL}')
    r2 = 'v_cvt_pk_bf16_f32 v34, v32, v33\nv_lshlrev_b32 v32, 16, v34\nv_and_b32 v33, 0xffff0000, v34'
    A(f'{r2}\nv_mul_f32 v32, {SCALE:#x}, v32\nv_mul_f32 v33, {SCALE:#x}, v33\n{r2}       ; v32, v33 = two scores per lane')
    A('v_max_f32 v34, v32, v33')
    wred('v_max_f32', 34, 36)
    A(f'''v_sub_f32 v35, v32, v34
v_sub_f32 v36, v33, v34
v_mul_f32 v35, {LOG2E:#x}, v35
v_mul_f32 v36, {LOG2E:#x}, v36
v_exp_f32 v35, v35
v_exp_f32 v36, v36
v_add_f32 v35, v35, v36''')
    wred('v_add_f32', 35, 36)
    A(f'''s_lshl_b32 s34, s29, 8
s_add_u32 s34, s34, {WS_X}
v_lshrrev_b32 v10, 2, v13
v_add_u32 v10, s34, v10
global_load_dword v9, v10, s[26:27] sc1
v_min_u32 v34, -2, v34
v_min_u32 v35, -2, v35
v_lshl_add_u32 v37, v26, 1, v24
ds_write_b64 v37, v[34:35]
s_cmp_lg_u32 s28, 0
s_cbranch_scc1 L_mlwait''')
    ldsspin('ds_read_b128 v[40:43], v24\nds_read_b128 v[44:47], v24 offset:16',
            'v_max3_u32 v37, v40, v41, v42\nv_max3_u32 v37, v37, v43, v44\nv_max3_u32 v37, v37, v45, v46\nv_max_u32 v37, v37, v47\nv_cmp_eq_u32 vcc, -1, v37')
    A(f'''s_lshl_b32 s35, s31, 8
s_add_u32 s35, s35, {WS_ML}
v_max3_f32 v48, v40, v42, v44
v_max_f32 v48, v48, v46''')
    for w in range(4): A(f'v_sub_f32 v{40+2*w}, v{40+2*w}, v48')
    for w in range(4): A(f'v_mul_f32 v{40+2*w}, {LOG2E:#x}, v{40+2*w}')
    for w in range(4): A(f'v_exp_f32 v{40+2*w}, v{40+2*w}')
    A('v_mov_b32 v49, s3\nv_mov_b32 v51, s3\nv_mul_f32 v50, v40, v41')
    for w in range(1, 4): A(f'v_fmac_f32 v50, v{40+2*w}, v{41+2*w}')
    A(f'''s_lshl4_add_u32 s34, s32, s35
v_mov_b32 v37, s34
s_mov_b64 exec, 1
global_store_dwordx4 v37, v[48:51], s[26:27] sc1
s_mov_b64 exec, -1
s_mov_b32 s62, {SPIN}
L_ml:
s_sleep 2
s_load_dwordx16 s[64:79], s[26:27], s35 glc
s_load_dwordx16 s[80:95], s[26:27], s35 offset:64 glc
s_waitcnt lgkmcnt(0)
s_and_b32 s34, s65, s3
s_or_b32 s47, s65, s3''')
    for i in range(1, 16): A(f's_and_b32 s34, s34, s{65+2*i}\ns_or_b32 s47, s47, s{65+2*i}')
    A('s_cmp_eq_u32 s34, s47\ns_cbranch_scc1 L_mlgot\ns_sub_u32 s62, s62, 1\ns_cbranch_scc0 L_ml\nL_mlgot:\nv_mov_b32 v34, s64')
    for c in range(1, 8): A(f'v_max_f32 v34, s{64+4*c}, v34')
    for c in range(8): A(f'v_sub_f32 v{40+c}, s{64+4*c}, v34')
    for c in range(8): A(f'v_mul_f32 v{40+c}, {LOG2E:#x}, v{40+c}')
    for c in range(8): A(f'v_exp_f32 v{40+c}, v{40+c}')
    A('v_mul_f32 v35, s66, v40')
    for c in range(1, 8): A(f'v_fmac_f32 v35, s{66+4*c}, v{40+c}')
    A('''v_rcp_f32 v35, v35
v_min_u32 v34, -2, v34
v_min_u32 v35, -2, v35
ds_write_b64 v24, v[34:35] offset:32
s_branch L_mlok
L_mlwait:''')
    ldsspin('ds_read_b64 v[34:35], v24 offset:32', 'v_max_u32 v37, v34, v35\nv_cmp_eq_u32 vcc, -1, v37', 1)
    A(f'''L_mlok:
v_sub_f32 v32, v32, v34
v_sub_f32 v33, v33, v34
v_mul_f32 v32, {LOG2E:#x}, v32
v_mul_f32 v33, {LOG2E:#x}, v33
v_exp_f32 v32, v32
v_exp_f32 v33, v33
s_lshl_b32 s34, s28, 8
v_lshl_add_u32 v36, v0, 2, s34
v_mul_f32 v32, v32, v35
v_mul_f32 v33, v33, v35
v_cvt_pk_bf16_f32 v32, v32, v33
ds_write_b32 v36, v32 offset:{L_P}
s_getreg_b32 s34, hwreg(HW_REG_XCC_ID, 0, 4)
s_andn2_b32 s35, s3, 31
s_or_b32 s34, s34, s35
s_or_b32 s35, s34, 16
s_waitcnt vmcnt(0)
v_cmp_eq_u32 s[48:49], s34, v9
v_cmp_eq_u32 s[50:51], s35, v9
s_bcnt1_i32_b32 s48, s48
s_bcnt1_i32_b32 s50, s50
s_cmp_gt_u32 s50, s48
s_cselect_b32 s34, 0x2000, 0
v_mov_b32 v10, s34''')
    tagreg(8, 5, 8)
    A(f'''v_mov_b32 v11, 0xff
s_lshl_b32 s47, s28, 13
s_add_u32 s47, s47, {L_W}
v_lshrrev_b32 v14, 4, v0             ; lane >> 4
s_waitcnt lgkmcnt(0)
s_cmp_ge_u32 s30, 16
s_cbranch_scc1 L_notw''')

    A(f'''; role W: wave w owns head 4g + w, columns 32k .. 32k + 31 of wo
s_lshl2_add_u32 s34, s29, s28
s_lshl_b32 s35, s34, 13
s_add_u32 s44, s26, s35
s_addc_u32 s45, s27, 0
v_lshl_add_u32 v6, v12, 12, v13
s_lshl_b32 s34, s34, 17
s_lshl_b32 s35, s30, 6
s_add_u32 s34, s34, s35
s_add_u32 s40, s12, s34
s_addc_u32 s41, s13, 0
s_mov_b32 s42, {127*1024+64}
s_mov_b32 s43, 0x20000
v_and_b32 v32, 1, v14
v_bfe_u32 v15, v0, 3, 1
v_lshl_add_u32 v15, v32, 4, v15
v_lshl_add_u32 v15, v15, 1, v12
v_bfe_u32 v33, v0, 2, 1
v_lshl_add_u32 v15, v15, 1, v33
v_lshlrev_b32 v33, 1, v32
v_and_b32 v34, 3, v0
v_xor_b32 v33, v33, v34
v_lshlrev_b32 v33, 4, v33
v_lshl_add_u32 v15, v15, 10, v33
v_lshrrev_b32 v33, 2, v0
v_lshlrev_b32 v33, 6, v33
v_lshl_add_u32 v33, v34, 3, v33
v_lshl_add_u32 v33, v32, 5, v33
v_add_u32 v33, s47, v33
v_xor_b32 v34, 32, v33
v_add_u32 v37, v26, v13
v_add_u32 v37, {L_RED}, v37
s_and_b32 s34, s29, 4
s_add_u32 s34, s34, s29
s_lshl4_add_u32 s34, s34, s30
s_lshl_b32 s34, s34, 7
s_add_u32 s34, s34, {WS_B}
s_add_u32 s56, s26, 0x8000
s_addc_u32 s57, s27, 0
s_add_u32 s58, s26, 0x10000
s_addc_u32 s59, s27, 0
s_add_u32 s68, s26, 0x18000
s_addc_u32 s69, s27, 0
v_lshrrev_b32 v38, 2, v13
v_lshl_add_u32 v38, v12, 13, v38
v_add_u32 v38, s34, v38''')
    tagreg(9, 38, 8)
    tagmask(10, 38)
    A('s_and_b32 s60, s30, 1\ns_lshl_b32 s61, s60, 15\ns_lshl_b32 s60, s60, 12')
    for n in range(4): A(f's_mov_b64 s[{48+2*n}:{49+2*n}], -1')
    for n in range(8):
        if n == 0: A('s_barrier')
        if n == 2: A('s_barrier')
        A(f's_xor_b32 s34, s60, {1024*n}\ns_add_u32 m0, s47, s34\ns_xor_b32 s34, s61, {8192*n}')
        A('buffer_load_dwordx4 v15, s[40:43], s34 offen lds')
    def aload():
        for n in range(4): A(f's_mov_b64 exec, s[{48+2*n}:{49+2*n}]\nglobal_load_dwordx4 v[{96+4*n}:{99+4*n}], v6, s[44:45] offset:{1024*n} sc1')
        A('s_mov_b64 exec, -1')
    aload()
    A('s_waitcnt vmcnt(4)')
    for t in range(4):
        for cb in range(2):
            for hf in range(2):
                r = 128 + 8 * t + 4 * cb + 2 * hf
                A(f'ds_read_b64_tr_b16 v[{r}:{r+1}], v{33+cb} offset:{1024*(2*t+hf)}')
    gather(aload, 4, 39, issued=True, masked=True)
    A('v_cvt_pk_bf16_f32 v16, v16, v17\ns_waitcnt lgkmcnt(0)')
    mv = bcast(16, 64, 0xf)
    for o in mv[:6]: A(o)
    mv = mv[6:]
    for t in range(4):
        for cb in range(2):
            c = f'v[{40+4*cb}:{43+4*cb}]'
            A(f'v_mfma_f32_16x16x32_bf16 {c}, v[{64+4*t}:{67+4*t}], v[{128+8*t+4*cb}:{131+8*t+4*cb}], {c if t else 0}')
            for o in mv[:2]: A(o)
            mv = mv[2:]
    A(f'''; the wave that finds all four partials published sums them and stores the record
s_mov_b64 exec, 0xffff
ds_write2_b32 v37, v40, v44 offset0:0 offset1:64
ds_write_b32 v26, v11 offset:{L_SY+96}
s_mov_b64 exec, -1
ds_read_b128 v[20:23], v24 offset:96
ds_read_b128 v[16:19], v13 offset:{L_RED}
s_waitcnt lgkmcnt(1)
v_min3_u32 v20, v20, v21, v22
v_min_u32 v20, v20, v23
v_cmp_ne_u32 vcc, 0, v20
s_waitcnt lgkmcnt(0)
v_pk_add_f32 v[16:17], v[16:17], v[18:19]
s_mov_b64 exec, vcc
v_add_f32 v16, v16, v17
v_bfi_b32 v16, v10, v9, v16
global_store_dword v38, v16, s[26:27] sc1
global_store_dword v38, v16, s[56:57] sc1
global_store_dword v38, v16, s[58:59] sc1
global_store_dword v38, v16, s[68:69] sc1''')
    finish()

    A(f'''L_notw:
s_and_b32 s34, s30, 15
s_lshl2_add_u32 s34, s34, s28
s_andn2_b32 s35, s34, 3
s_add_u32 s35, s35, s34
s_add_u32 s35, s35, 4
s_lshl_b32 s64, s29, 7
s_add_u32 s35, s35, s64
s_lshl_b32 s35, s35, 12
v_lshl_add_u32 v127, v0, 7, s35
s_lshr_b32 s34, s34, 1
s_lshl_b32 s34, s34, 4
v_lshrrev_b32 v61, 2, v0
v_add_u32 v61, s34, v61
v_mul_u32_u24 v61, 2752, v61
v_and_b32 v15, 3, v0
v_lshlrev_b32 v62, 7, v15
v_min_u32 v62, 348, v62
s_mul_i32 s34, s29, 352
v_add3_u32 v61, v61, v62, s34
s_bitcmp1_b32 s28, 0
s_cselect_b32 s64, s18, s16
s_cselect_b32 s65, s19, s17
s_mov_b32 s66, {512*2752}
s_mov_b32 s67, 0x20000
s_cmp_lt_u32 s30, 27
s_cbranch_scc1 L_rolef''')
    def bars(down):
        A('''s_barrier
s_mov_b32 exec_hi, 0
global_load_dword v62, v127, s[12:13]
s_mov_b32 exec_hi, -1
s_barrier
buffer_load_dword v62, v61, s[64:67], 0 offen''')
        if down:
            A(f'''s_barrier
s_sub_u32 s34, s30, 27
s_lshl2_add_u32 s34, s34, s28
s_mul_i32 s34, s34, {71*128}
s_mul_i32 s35, s29, {176*1024}
s_add_u32 s34, s34, s35
v_lshl_add_u32 v63, v0, 7, s34
v_min_u32 v63, {1376*1024-4}, v63
global_load_dword v62, v63, s[20:21]
v_add_u32 v63, 0x2000, v63
v_min_u32 v63, {1376*1024-4}, v63
s_mov_b64 exec, 0x7f
global_load_dword v62, v63, s[20:21]
s_mov_b64 exec, -1''')

    A(f'''s_cmp_lt_u32 s30, 28
s_cbranch_scc1 L_norole
s_cmp_lg_u32 s28, 0
s_cbranch_scc1 L_norole
s_lshl2_add_u32 s63, s29, s30
s_sub_u32 s63, s63, 28
s_lshr_b32 s34, s63, 1
s_xor_b32 s34, s34, s63
s_and_b32 s34, s34, 2
s_mul_i32 s34, s34, 3
s_xor_b32 s63, s63, s34
s_lshl_b32 s34, s63, 6
s_add_u32 s34, s34, {WS_C}
v_lshrrev_b32 v44, 2, v0
v_and_b32 v45, 12, v44
v_add_u32 v44, v44, v45
v_lshl_add_u32 v44, v44, 11, v10
v_lshl_add_u32 v44, v15, 4, v44
v_add_u32 v44, s34, v44''')
    for n in range(1, 6): A(f'v_add_u32 v{44+n}, {65536*n}, v44')
    A(f'''s_lshr_b32 s34, s63, 3
s_lshl_b32 s34, s34, 7
s_and_b32 s35, s63, 3
s_lshl_b32 s35, s35, 5
s_add_u32 s34, s34, s35
s_and_b32 s35, s63, 4
s_add_u32 s34, s34, s35
v_lshl_add_u32 v51, v15, 3, v14
v_add_lshl_u32 v51, v51, s34, 1
global_load_ushort v43, v51, s[4:5]
s_lshl_b32 s34, s34, 2
s_and_b32 s35, s29, 3
s_lshl_b32 s35, s35, 15
s_add_u32 s34, s34, s35
s_add_u32 s34, s34, {WS_B}
v_bfe_u32 v50, v0, 2, 3
v_and_b32 v52, 4, v50
v_add_u32 v50, v50, v52
v_lshl_add_u32 v50, v50, 11, v10
v_lshl_add_u32 v50, v15, 5, v50
v_add_u32 v50, s34, v50
v_mov_b32 v52, {WS_E}
v_mov_b32 v53, s3''')
    tagreg(9, 50, 8)
    A('v_mov_b32 v116, v8\nv_mov_b32 v117, 0\nv_mov_b32 v118, 0\nv_mov_b32 v119, 0')
    A('v_mov_b32 v36, v9\nv_mov_b32 v37, 0\nv_mov_b32 v38, 0\nv_mov_b32 v39, 0')
    bars(True)
    def cload():
        for n in range(6): A(('s_mov_b64 exec, 0xffffff\n' if n == 5 else '') + f'global_load_dwordx4 v[{96+4*n}:{99+4*n}], v{44+n}, s[26:27] sc1')
        A('s_mov_b64 exec, -1')
    cload()
    A(f'''; h = x + o @ wo for these columns
s_mov_b32 s62, {SPIN}
L_rb:
s_sleep 1
s_mov_b32 exec_hi, 0
global_load_dwordx4 v[36:39], v50, s[26:27] sc1
s_mov_b32 exec_hi, -1
s_sub_u32 s62, s62, 1
s_cbranch_scc1 L_rbok
s_waitcnt vmcnt(0)
v_xor_b32 v40, v36, v9
v_and_b32 v42, v11, v40
v_cmp_ne_u32 vcc, 0, v42
s_cbranch_vccnz L_rb
L_rbok:
s_cmp_eq_u32 s63, 0
s_cselect_b32 exec_lo, 1, 0
s_mov_b32 exec_hi, 0
global_store_dword v52, v53, s[26:27] sc1
s_mov_b64 exec, -1
v_permlane32_swap_b32 v40, v38
v_permlane32_swap_b32 v37, v39
v_permlane16_swap_b32 v40, v37
v_add_f32 v40, v40, v37
v_lshlrev_b32 v43, 16, v43
v_add_f32_dpp v40, v40, v40 row_ror:8 {FULL}
v_add_f32_dpp v40, v40, v40 row_ror:4 {FULL}
v_add_f32 v40, v40, v43''')
    rnd(40)
    gather(cload, 6, 42)
    A(f'''v_permlane16_swap_b32 v16, v17
v_add_f32 v16, v16, v17
v_add_f32_dpp v16, v16, v16 row_ror:8 {FULL}
v_add_f32_dpp v16, v16, v16 row_ror:4 {FULL}
s_mov_b32 exec_lo, 0x000f000f
v_add_f32 v16, v16, v40
s_mov_b32 exec_hi, 0x000f000f
v_cvt_pk_bf16_f32 v16, v16, v16
global_store_short v51, v16, s[22:23]''')
    finish(1)
    A('L_norole:')
    bars(True)
    finish(2)

    A(f'''.p2align 12
L_rolef:
s_mul_i32 s63, s29, 11
s_add_u32 s63, s63, s30
s_sub_u32 s63, s63, 16
s_cmp_ge_u32 s63, 86
s_cbranch_scc1 L_norole
s_mul_i32 s34, s28, {128*2752}
s_lshl_b32 s35, s63, 5
s_add_u32 s34, s34, s35
s_add_u32 s36, s16, s34
s_addc_u32 s37, s17, 0
s_mov_b32 s38, {127*2752+32}
s_mov_b32 s39, 0x20000
s_add_u32 s40, s18, s34
s_addc_u32 s41, s19, 0
s_mov_b32 s42, {127*2752+32}
s_mov_b32 s43, 0x20000
s_lshl_b32 s34, s63, 14
s_lshl_b32 s35, s28, 8
s_add_u32 s34, s34, s35
s_add_u32 s20, s20, s34
s_addc_u32 s21, s21, 0
s_add_u32 s4, s4, s35
s_addc_u32 s5, s5, 0
s_and_b32 s34, s29, 3
s_lshl_b32 s34, s34, 15
s_lshl1_add_u32 s34, s35, s34
s_add_u32 s34, s34, {WS_B+4096}
s_add_u32 s44, s26, s34
s_addc_u32 s45, s27, 0
v_lshl_add_u32 v6, v12, 14, v13
v_add_u32 v6, v6, v10
v_and_b32 v58, 12, v0
v_add_u32 v58, v58, v14
v_mul_u32_u24 v58, 80, v58
v_lshl_add_u32 v58, v15, 4, v58
v_bfe_u32 v15, v0, 3, 1
v_lshl_add_u32 v15, v15, 3, v12
v_bfe_u32 v33, v0, 2, 1
v_lshl_add_u32 v15, v15, 1, v33
v_bfe_u32 v33, v0, 4, 1
v_lshl_add_u32 v15, v15, 1, v33
v_bfe_u32 v33, v0, 1, 1
v_lshl_add_u32 v15, v15, 1, v33
v_mul_u32_u24 v15, 2752, v15
v_and_b32 v40, 1, v0
v_lshlrev_b32 v40, 4, v40
v_add_u32 v15, v15, v40
v_lshl_add_u32 v33, v0, 3, s47
v_lshrrev_b32 v36, 1, v13
v_lshl_add_u32 v36, v12, 2, v36
global_load_dword v32, v36, s[4:5]
v_and_b32 v38, 15, v0
v_lshlrev_b32 v34, 4, v38
v_lshl_add_u32 v34, v14, 10, v34
v_add_u32 v34, 0x1000, v34
v_add_u32 v35, 0x2000, v34
s_lshl_b32 s34, s28, 3
v_lshl_add_u32 v60, v12, 2, s34
s_add_u32 s34, s34, {L_OP}
v_mul_u32_u24 v57, 80, v38
v_add_u32 v57, s34, v57
v_lshl_add_u32 v57, v14, 2, v57
s_andn2_b32 s34, s63, 3
s_add_u32 s34, s34, s63
s_lshl2_add_u32 s34, s34, s28
s_lshl_b32 s34, s34, 9
s_add_u32 s34, s34, {WS_C}
v_lshl_add_u32 v59, v12, 13, v13
v_add_u32 v59, s34, v59
v_mov_b32 v44, 0x3f803f80
v_mov_b32 v63, {L_RED}
v_mov_b32 v46, {EPS:#x}
v_mov_b32 v41, 0xffff
v_lshlrev_b32 v40, v40, v41
v_bfe_u32 v41, v0, 1, 2
s_mov_b32 s60, 1
s_mov_b32 s61, 1''')
    for i in range(16): A(f'v_mov_b32 v{72+i}, v44')
    for w in range(4): A(f'v_cmp_eq_u32 vcc, {w}, v41\nv_cndmask_b32 v{48+w}, 0, v40, vcc')
    bars(False)
    for t in range(4):
        for m in range(2):
            A(f's_add_u32 m0, s47, {4096*m+1024*t}\ns_mov_b32 s34, {16*t*2752}')
            A(f'buffer_load_dwordx4 v15, s[{36+4*m}:{39+4*m}], s34 offen lds')
    def bload():
        for n in range(4): A(f'global_load_dwordx4 v[{96+4*n}:{99+4*n}], v6, s[44:45] offset:{2048*n-4096} sc1')
    for t in range(4):
        A(f's_waitcnt vmcnt({6-2*t})')
        if t == 3: bload()
        for m in range(2):
            for hf in range(2):
                r = 128 + 16 * m + 4 * t + 2 * hf
                A(f'ds_read_b64_tr_b16 v[{r}:{r+1}], v33 offset:{4096*m+1024*t+512*hf}')
        if t == 0: A('v_and_b32 v41, 0xffff0000, v32\nv_lshlrev_b32 v40, 16, v32')
    gather(bload, 4, 42, issued=True)
    A('''; h @ W with LN folded in: A rows 4-7 stay all ones and yield the column sums; moments of h on the side
v_pk_add_f32 v[16:17], v[16:17], v[40:41]
v_cvt_pk_bf16_f32 v18, v16, v17
v_dot2_f32_bf16 v16, v18, v44, 0
v_dot2_f32_bf16 v17, v18, v18, 0
s_waitcnt lgkmcnt(0)''')
    mv = bcast(18, 72, 0xd)
    mv = mv[:2] + ['v_permlane32_swap_b32 v16, v17'] + mv[2:4] + ['v_add_f32 v16, v16, v17'] + mv[4:]
    for o in mv[:8]: A(o)
    mv = mv[8:]
    dpp = lambda r: f'v_add_f32_dpp v16, v16, v16 row_ror:{r} {FULL}'
    st = [dpp(8), dpp(4), dpp(2), dpp(1) + '\nv_mov_b32 v17, v16', 'v_permlane16_swap_b32 v16, v17\nv_add_f32 v16, v16, v17',
          f's_mov_b64 exec, s[60:61]\nds_write_b32 v60, v16 offset:{L_RED}\ns_mov_b64 exec, -1', '', '']
    for n in range(8):
        t, m = n >> 1, n & 1
        c = f'v[{64+4*m}:{67+4*m}]'
        A(f'v_mfma_f32_16x16x32_bf16 {c}, v[{72+4*t}:{75+4*t}], v[{128+16*m+4*t}:{131+16*m+4*t}], {c if t else 0}')
        if n < 4: A(f'global_load_dwordx4 v[{160+4*n}:{163+4*n}], v{34+(n>>1)}, s[20:21] offset:{4096*(n&1)-4096}')
        for o in mv[:2]: A(o)
        mv = mv[2:]
        A(st[n])
    A(f'''s_mov_b32 exec_hi, 0
ds_write2_b32 v57, v64, v68 offset0:0 offset1:8
s_mov_b32 exec_hi, -1
s_waitcnt lgkmcnt(1)
s_barrier
ds_read_b128 v[24:27], v63
ds_read_b128 v[28:31], v63 offset:16
s_waitcnt lgkmcnt(2)
s_barrier
ds_read_b128 v[16:19], v58 offset:{L_OP}
s_waitcnt lgkmcnt(1)
v_pk_add_f32 v[24:25], v[24:25], v[26:27]
v_pk_add_f32 v[28:29], v[28:29], v[30:31]
v_pk_add_f32 v[24:25], v[24:25], v[28:29]
v_mul_f32 v24, 0xbb000000, v24       ; -mean
v_fmamk_f32 v28, v25, 0x3b000000, v46
v_fma_f32 v28, -v24, v24, v28
v_max_f32 v28, v28, v46
v_rsq_f32 v29, v28
s_waitcnt lgkmcnt(0)
v_pk_add_f32 v[16:17], v[16:17], v[18:19]
v_fmac_f32 v16, v24, v17
v_rcp_f32 v28, v28
v_mul_f32 v29, {LOG2E ^ 0x80000000:#x}, v29
v_add_f32_dpp v16, v16, v16 quad_perm:[1,0,3,2] {FULL}
v_mul_f32 v17, v16, v29
v_exp_f32 v17, v17
v_mul_f32_dpp v18, v16, v16 quad_perm:[2,3,0,1] {FULL}
v_add_f32 v17, 1.0, v17
v_rcp_f32 v17, v17
v_mul_f32 v18, v18, v28
v_mul_f32 v16, v18, v17
v_cvt_pk_bf16_f32 v16, v16, v16
s_waitcnt vmcnt(0)
; act @ w_down on row-major weights: A holds act on a diagonal''')
    ops = [f'v_and_b32_dpp v{72+4*n+w}, v16, v{48+w} row_newbcast:{4*n} {FULL}' for n in range(4) for w in range(4)]
    for n in range(4):
        for o in ops[(4 * n + 2 if n else 0):4 * n + 6]: A(o)
        A(f'v_mfma_f32_16x16x32_bf16 v[64:67], v[{72+4*n}:{75+4*n}], v[{160+4*n}:{163+4*n}], {"v[64:67]" if n else 0}')
    A('v_bfi_b32 v64, v11, v8, v64\nglobal_store_dwordx4 v59, v[64:67], s[26:27] sc1')
    finish()

    A(f'''.p2align 12
L_vwave:
s_add_u32 s36, s8, s34
s_addc_u32 s37, s9, 0
s_lshl3_add_u32 s35, s31, s32
s_lshl_b32 s35, s35, 10
s_add_u32 s44, s26, s35
s_addc_u32 s45, s27, 0
v_mov_b32 v56, {L_SY}
s_lshr_b32 s56, s2, 6
s_lshl_b32 s56, s56, 7
s_and_b32 s35, s2, 63
s_add_u32 s56, s56, s35
s_lshl_b32 s56, s56, 7
s_add_u32 s56, s56, {WS_PR}
s_cmp_lg_u32 s28, 5
s_cbranch_scc1 L_nowarm
s_load_dword s54, s[26:27], s56 glc
s_load_dword s55, s[26:27], s56 offset:0x2000 glc
L_nowarm:
v_and_b32 v28, 1, v0
v_cmp_eq_u32 vcc, 1, v28
v_mov_b32 v29, 0x0c0c0100
v_mov_b32 v30, 0x01000c0c
v_cndmask_b32 v29, v29, v30, vcc
v_mov_b32 v30, 0x0c0c0302
v_mov_b32 v31, 0x03020c0c
v_cndmask_b32 v30, v30, v31, vcc
v_mov_b32 v31, 0x0c0c0c0c
v_bfe_u32 v28, v0, 1, 2''')
    for w in range(4): A(f'v_cmp_eq_u32 vcc, {w}, v28\nv_cndmask_b32 v{40+w}, v31, v29, vcc\nv_cndmask_b32 v{44+w}, v31, v30, vcc')
    A(f'''s_lshl_b32 s34, s63, 10
s_add_u32 s34, s34, {L_OP}
v_lshrrev_b32 v12, 5, v0
v_lshl_add_u32 v12, v12, 9, s34
v_lshl_add_u32 v12, v4, 2, v12
v_bfe_u32 v13, v0, 4, 1
v_lshl_add_u32 v12, v13, 5, v12
v_lshlrev_b32 v14, 3, v0
s_lshl_b32 s34, s32, 5
s_add_u32 s34, s34, s63
s_lshl_b32 s34, s34, 2
v_lshl_add_u32 v6, v3, 4, s34
v_mov_b32 v57, 1
s_waitcnt vmcnt(4)''')
    layernorm(24, 28)
    A(f'ds_write_b128 v5, v[24:27] offset:{L_H}\ns_waitcnt lgkmcnt(0)\nds_read_b32 v48, v6 offset:{L_H}\ns_add_u32 s3, s3, {EPOCH_STEP:#x}')
    tagreg(8, 14, 4)
    A('s_waitcnt lgkmcnt(0)')
    for n in range(2): afrag(24 + 4 * n, 48, n)
    A('s_waitcnt vmcnt(0)')
    for n in range(2):
        for hf in range(2):
            c = f'v[{16+4*hf}:{19+4*hf}]'
            A(f'v_mfma_f32_16x16x32_bf16 {c}, v[{24+4*n}:{27+4*n}], v[{64+8*n+4*hf}:{67+8*n+4*hf}], {c if n else 0}')
    part_write = '''s_mov_b32 exec_lo, 0x00ff00ff
s_mov_b32 exec_hi, 0xff00ff00
ds_write2_b64 v12, v[16:17], v[20:21] offset0:0 offset1:1
ds_write2_b64 v12, v[18:19], v[22:23] offset0:2 offset1:3'''
    A(f'''{part_write}
s_mov_b64 exec, 1
s_waitcnt lgkmcnt(0)
ds_add_u32 v56, v57 offset:48
s_mov_b64 exec, -1
s_cmp_lg_u32 s28, 4
s_cbranch_scc1 L_vstream''')
    ldsspin('ds_read_b32 v15, v56 offset:48', 'v_cmp_ne_u32 vcc, 4, v15')
    for n in range(4): A(f'ds_read_b128 v[{16+4*n}:{19+4*n}], v5 offset:{L_OP+1024*n}')
    A('s_waitcnt lgkmcnt(0)')
    for i in (0, 2, 8, 10): A(f'v_pk_add_f32 v[{16+i}:{17+i}], v[{16+i}:{17+i}], v[{20+i}:{21+i}]')
    for i in (0, 2): A(f'v_pk_add_f32 v[{16+i}:{17+i}], v[{16+i}:{17+i}], v[{24+i}:{25+i}]')
    A(f'''v_permlane32_swap_b32 v16, v18
v_permlane32_swap_b32 v17, v19
v_pk_add_f32 v[16:17], v[16:17], v[18:19]
v_and_or_b32 v16, v16, -16, v8
v_and_or_b32 v17, v17, -16, v8
global_store_dwordx2 v14, v[16:17], s[44:45]
L_vstream:
s_setprio 0
s_getreg_b32 s34, hwreg(HW_REG_XCC_ID, 0, 4)
s_andn2_b32 s46, s3, 31
s_or_b32 s46, s46, s34
s_lshl_b32 s47, s29, 8
s_add_u32 s47, s47, {WS_X}
s_cmp_lg_u32 s28, 5
s_cbranch_scc1 L_noprobe
s_mov_b32 s54, -1
s_mov_b32 s55, -1
s_waitcnt lgkmcnt(0)''')
    for i in range(4):
        A(f's_memtime s[50:51]\ns_load_dword s35, s[26:27], s56 offset:{0x2000 * (i & 1)} glc\ns_waitcnt lgkmcnt(0)\ns_memtime s[52:53]\ns_waitcnt lgkmcnt(0)\ns_sub_u32 s35, s52, s50\ns_min_u32 s{54 + (i & 1)}, s{54 + (i & 1)}, s35')
    A(f'''s_cmp_lt_u32 s55, s54
s_cselect_b32 s35, 16, 0
s_or_b32 s34, s46, s35
v_mov_b32 v31, s34
s_lshl2_add_u32 s34, s30, s47
v_mov_b32 v30, s34
s_mov_b64 exec, 1
global_store_dword v30, v31, s[26:27]
s_mov_b64 exec, -1
L_noprobe:
s_lshl_b32 s34, s63, 2
v_mov_b32 v28, s34
v_and_b32 v30, 31, v0
v_lshl_add_u32 v30, v30, 2, s47''')
    ldsspin(f'ds_read_b32 v15, v28 offset:{L_SY+64}', 'v_cmp_eq_u32 vcc, 0, v15', 1)
    stream({XPOS: 'global_load_dword v29, v30, s[26:27] sc1',
            XPOS + THR: '''v_and_b32 v29, -17, v29
v_cmp_ne_u32 s[48:49], s46, v29
s_cmp_eq_u64 s[48:49], 0
s_cselect_b64 s[50:51], -1, 0
s_cselect_b64 s[52:53], 0, -1
s_cbranch_scc0 L_requeue
L_requeued:'''}, XPOS)
    cold.append(lambda: A('''L_requeue:
s_cmp_lg_u32 s28, 4
s_cbranch_scc1 L_requeued
global_store_dwordx2 v14, v[16:17], s[44:45] sc1
s_waitcnt vmcnt(0)
s_branch L_requeued'''))
    A('v_mov_b32 v11, 0xff\ns_setprio 3')
    tagreg(8, 14, 8)
    tagmask(10, 14)
    A(f'''s_lshl_b32 s34, s63, 8
v_lshl_add_u32 v6, v3, 5, s34
s_barrier
ds_read_b128 v[48:51], v6 offset:{L_P}
ds_read_b128 v[52:55], v6 offset:{L_P+16}
s_waitcnt lgkmcnt(0)''')
    for i in range(16): afrag(64 + 4 * i, 48 + i // 2, i & 1)
    for i in range(16):
        for hf in range(2):
            if i >= 12: A(f's_waitcnt vmcnt({31-2*i-hf})')
            c = f'v[{16+4*hf}:{19+4*hf}]'
            A(f'v_mfma_f32_16x16x32_bf16 {c}, v[{64+4*i}:{67+4*i}], v[{128+8*i+4*hf}:{131+8*i+4*hf}], {c if i else 0}')
    A(f'''; the wave that finds all four partials published sums them and stores the record
{part_write}
ds_write_b32 v28, v11 offset:{L_SY+80}
s_mov_b64 exec, -1
ds_read_b128 v[32:35], v56 offset:80''')
    for n in range(4): A(f'ds_read_b128 v[{64+4*n}:{67+4*n}], v5 offset:{L_OP+1024*n}')
    A('''s_waitcnt lgkmcnt(4)
v_min3_u32 v32, v32, v33, v34
v_min_u32 v32, v32, v35
v_cmp_ne_u32 vcc, 0, v32
s_waitcnt lgkmcnt(2)
v_pk_add_f32 v[64:65], v[64:65], v[68:69]
v_pk_add_f32 v[66:67], v[66:67], v[70:71]
s_and_b64 s[50:51], s[50:51], vcc
s_and_b64 s[52:53], s[52:53], vcc
s_waitcnt lgkmcnt(0)
v_pk_add_f32 v[72:73], v[72:73], v[76:77]
v_pk_add_f32 v[74:75], v[74:75], v[78:79]
v_pk_add_f32 v[64:65], v[64:65], v[72:73]
v_pk_add_f32 v[66:67], v[66:67], v[74:75]
v_permlane32_swap_b32 v64, v66
v_permlane32_swap_b32 v65, v67
v_pk_add_f32 v[64:65], v[64:65], v[66:67]
v_bfi_b32 v64, v10, v8, v64
s_mov_b64 exec, s[50:51]
global_store_dwordx2 v14, v[64:65], s[44:45]
s_mov_b64 exec, s[52:53]
global_store_dwordx2 v14, v[64:65], s[44:45] sc1
s_barrier''')
    finish()
    A('L_exit:\ns_endpgm\nL_code_end:\n.fill (L_pc+16384-L_code_end)/4, 4, 0xbf810000')
    A.raw(f'''.section .rodata,"a"
.p2align 6
.amdhsa_kernel {NAME}_kernel
  .amdhsa_next_free_vgpr 256
  .amdhsa_next_free_sgpr 102
  .amdhsa_accum_offset 256
  .amdhsa_group_segment_fixed_size 0
  .amdhsa_kernarg_size 96
  .amdhsa_user_sgpr_count 2
  .amdhsa_user_sgpr_kernarg_segment_ptr 1
  .amdhsa_system_sgpr_workgroup_id_x 1
  .amdhsa_float_denorm_mode_32 3
.end_amdhsa_kernel''')
    return A.text()

if __name__ == '__main__':
    out = sys.argv[1] if len(sys.argv) > 1 else f'cdna_kernels/{NAME}.s'
    open(out, 'w').write(gen(**eval('dict(' + (sys.argv[2] if len(sys.argv) > 2 else '') + ')')))
```

```python
import sys
from asmlib import Asm

NAME = 'sequential_preLN__sliding_block_cached__swiglu_ffn__decode'
WS_QA, WS_B, WS_PR, WS_ML, WS_X, WS_E, WS_C, WS_ST = 0x0, 0x40000, 0x60000, 0x70000, 0x72000, 0x73000, 0x80000, 0x100000
EPOCH_STEP = 0x5bd1e3c7
L_P, L_OP, L_H, L_RED, L_SY, L_Q, L_W = 0x0, 0x400, 0x1400, 0x1800, 0x1a00, 0x1b00, 0x1c00
LDS_BYTES = L_W + 0x8000
SPIN = 0x40000
LOG2E, SCALE, EPS = 0x3fb8aa3b, 0x3db504f3, 0x3727c5ac
FULL = 'row_mask:0xf bank_mask:0xf'
THR, KPRE, QPOS, XPOS, GOW = 8, 2, 24, 16, 8

DOC = '''\
;   found nearer. Either copy holds the same data.'''

def gen(span=0, pfs=6, woall=0, wst=0):
    wstc = '''v_bfe_u32 v62, v127, 9, 3
v_bfe_u32 v63, v127, 12, 3
v_xor_b32 v62, v62, v63
v_mul_u32_u24 v62, 0x1200, v62
v_xor_b32 v127, v127, v62'''
    A = Asm()
    cold = []
    uid = [0]
    def lab(s):
        uid[0] += 1
        return f'L_{s}_{uid[0]}'
    def finish(last=0):
        if span and last == span:
            A(f'''s_memrealtime s[96:97]
s_waitcnt lgkmcnt(0)
v_writelane_b32 v7, s96, 15
v_writelane_b32 v7, s98, 0
s_mov_b64 exec, 0xffff
s_lshl3_add_u32 s34, s2, s28
s_lshl_b32 s34, s34, 6
s_add_u32 s34, s34, {WS_ST}
v_lshl_add_u32 v1, v0, 2, s34
global_store_dword v1, v7, s[26:27]''')
        A('s_endpgm')
        for f in cold: f()
        cold.clear()
    def wred(op, v, t):
        for r in (8, 4, 2, 1): A(f'{op}_dpp v{v}, v{v}, v{v} row_ror:{r} {FULL}')
        for sw in (16, 32): A(f'v_mov_b32 v{t}, v{v}\nv_permlane{sw}_swap_b32 v{v}, v{t}\n{op} v{v}, v{v}, v{t}')
    def rnd(v):
        A(f'v_cvt_pk_bf16_f32 v{v}, v{v}, v{v}\nv_lshlrev_b32 v{v}, 16, v{v}')
    def layernorm(x, u):
        s, t, mb, dl = u + 8, u + 9, u + 10, u + 11
        for i in range(4): A(f'v_lshlrev_b32 v{u+2*i}, 16, v{x+i}\nv_and_b32 v{u+2*i+1}, 0xffff0000, v{x+i}')
        A(f'v_add_f32 v{s}, v{u}, v{u+1}\nv_add_f32 v{t}, v{u+2}, v{u+3}\nv_add_f32 v{mb}, v{u+4}, v{u+5}\nv_add_f32 v{dl}, v{u+6}, v{u+7}')
        A(f'v_add_f32 v{s}, v{s}, v{t}\nv_add_f32 v{mb}, v{mb}, v{dl}\nv_add_f32 v{s}, v{s}, v{mb}')
        wred('v_add_f32', s, t)
        A(f'v_mul_f32 v{dl}, 0x3b000000, v{s}')
        A(f'v_cvt_pk_bf16_f32 v{mb}, v{dl}, v{dl}\nv_lshlrev_b32 v{mb}, 16, v{mb}')
        for i in range(8): A(f'v_sub_f32 v{u+i}, v{u+i}, v{mb}')
        A(f'v_sub_f32 v{dl}, v{dl}, v{mb}')
        A(f'v_mul_f32 v{s}, v{u}, v{u}\nv_mul_f32 v{t}, v{u+1}, v{u+1}')
        for i in range(2, 8, 2): A(f'v_fmac_f32 v{s}, v{u+i}, v{u+i}\nv_fmac_f32 v{t}, v{u+i+1}, v{u+i+1}')
        A(f'v_add_f32 v{s}, v{s}, v{t}')
        fill = [f'v_cvt_pk_bf16_f32 v{x+i}, v{u+2*i}, v{u+2*i+1}' for i in range(4)]
        for i in range(4): fill += [f'v_lshlrev_b32 v{u+2*i}, 16, v{x+i}', f'v_and_b32 v{u+2*i+1}, 0xffff0000, v{x+i}']
        fill.append(f'v_mul_f32 v{dl}, v{dl}, v{dl}')
        for r in (8, 4, 2, 1):
            A(fill.pop(0)); A(fill.pop(0))
            A(f'v_add_f32_dpp v{s}, v{s}, v{s} row_ror:{r} {FULL}')
        for sw in (16, 32):
            A(f'v_mov_b32 v{t}, v{s}'); A(fill.pop(0)); A(fill.pop(0))
            A(f'v_permlane{sw}_swap_b32 v{s}, v{t}\nv_add_f32 v{s}, v{s}, v{t}')
        A(fill.pop(0))
        A(f'v_mul_f32 v{s}, 0x3b000000, v{s}\nv_sub_f32 v{s}, v{s}, v{dl}\nv_max_f32 v{s}, 0, v{s}')
        rnd(s)
        A(f'v_add_f32 v{s}, {EPS:#x}, v{s}'); rnd(s)
        A(f'v_sqrt_f32 v{s}, v{s}'); rnd(s)
        A(f'v_rcp_f32 v{s}, v{s}')
        for i in range(8): A(f'v_mul_f32 v{u+i}, v{u+i}, v{s}')
        for i in range(4): A(f'v_cvt_pk_bf16_f32 v{x+i}, v{u+2*i}, v{u+2*i+1}')
    def afrag(dst, src, par):
        for w in range(4): A(f'v_perm_b32 v{dst+w}, v{src}, v{src}, v{40+4*par+w}')
    def bcast(src, dst, bank):
        return [f'v_mov_b32_dpp v{dst+i}, v{src} row_newbcast:{i} row_mask:0xf bank_mask:{bank:#x}' for i in range(16)]
    def tagreg(dst, addr, bits):
        A(f'v_lshrrev_b32 v{dst}, 1, v{addr}\nv_xor_b32 v{dst}, v{dst}, v{addr}\nv_bfe_u32 v{dst}, v{dst}, 4, 1\nv_lshlrev_b32 v{dst}, {bits-1}, v{dst}\nv_xor_b32 v{dst}, s3, v{dst}')
        if bits == 4: A(f'v_xor_b32 v{dst}, 4, v{dst}')
        A(f'v_and_b32 v{dst}, {(1 << bits) - 1}, v{dst}')
    def tagmask(dst, addr):
        A(f'v_and_b32 v{dst}, 15, v{addr}\nv_cmp_eq_u32 vcc, 0, v{dst}\nv_cndmask_b32 v{dst}, 0, v11, vcc')
    def gather(load, n, t, issued=False):
        x, y, T, d = 96, 120, 8, 16
        L, Lc, Lo = lab('again'), lab('chk'), lab('ok')
        A(f'; repeat the round until word 0 of every granule carries the tag, then sum the partials\ns_mov_b32 s62, {SPIN}')
        if issued: A(f's_branch {Lc}')
        A(f'{L}:')
        load()
        A(f's_sub_u32 s62, s62, 1\ns_cbranch_scc1 {Lo}\n{Lc}:')
        for i in range(n):
            if i % 2 == 0: A(f's_waitcnt vmcnt({n-2-i})')
            A(f'v_xor_b32 v{y+i}, v{x+4*i}, v{T}')
            if i % 2 == 1:
                dd = d + 2 * (i - 1)
                if i == 1: A(f'v_or_b32 v{t}, v{y}, v{y+1}')
                elif i < n - 1: A(f'v_or3_b32 v{t}, v{t}, v{y+i-1}, v{y+i}')
                else: A(f'v_or_b32 v{t}, v{t}, v{y+i-1}\nv_bitop3_b32 v{t}, v{t}, v{y+i}, v11 bitop3:0xa8\nv_cmp_ne_u32 vcc, 0, v{t}')
                A(f'v_pk_add_f32 v[{dd+2}:{dd+3}], v[{x+4*i-2}:{x+4*i-1}], v[{x+4*i+2}:{x+4*i+3}]')
                if i == n - 1: A(f's_cbranch_vccnz {L}\n{Lo}:')
                A(f'v_add_f32 v{dd}, v{y+i-1}, v{y+i}\nv_add_f32 v{dd+1}, v{x+4*i-3}, v{x+4*i+1}')
                if i > 1:
                    for r in (2, 0): A(f'v_pk_add_f32 v[{d+r}:{d+r+1}], v[{d+r}:{d+r+1}], v[{dd+r}:{dd+r+1}]')
        A(f'v_permlane32_swap_b32 v{d}, v{d+2}\nv_permlane32_swap_b32 v{d+1}, v{d+3}')
        A(f'v_pk_add_f32 v[{d}:{d+1}], v[{d}:{d+1}], v[{d+2}:{d+3}]')
    def ldsspin(reads, test, slp=0):
        L, Ld = lab('spin'), lab('spun')
        A(f's_mov_b32 s62, {SPIN}\n{L}:')
        if slp: A(f's_sleep {slp}')
        A(f'{reads}\ns_waitcnt lgkmcnt(0)\n{test}\ns_cbranch_vccz {Ld}\ns_sub_u32 s62, s62, 1\ns_cbranch_scc0 {L}\n{Ld}:')
    def stream(hooks, extra_at):
        A(f'; 16 tiles of 8 keys x 256 B, at most {THR} loads in flight per wave')
        for i in range(16):
            if i: A('s_addk_i32 s33, 0x100\ns_bitset0_b32 s33, 12')
            if 2 * i >= THR:
                A(f's_waitcnt vmcnt({THR - 2 + (1 if 2 * i - (THR - 2) < extra_at <= 2 * i else 0)})')
            for hf in range(2):
                A(f'buffer_load_dwordx4 v[{128+8*i+4*hf}:{131+8*i+4*hf}], v2, s[36:39], s33 offen offset:{128*hf} nt')
                if 2 * i + hf + 1 in hooks: A(hooks[2 * i + hf + 1])

    for ln in open('cdna_kernels/' + NAME + '.s.ref').read().split('\n'):
        if ln.startswith('; @launch'): A.raw(f'; @launch grid=(256,1,1) block=(512,1,1) lds={LDS_BYTES}'); break
        A.raw(ln)
    A.raw(DOC)
    A.raw(f'.amdgcn_target "amdgcn-amd-amdhsa--gfx950"\n.text\n.globl {NAME}_kernel\n.p2align 12\n.p2align 8\n.type {NAME}_kernel,@function\n{NAME}_kernel:')

    if span: A('s_memrealtime s[98:99]')
    A(f'''s_load_dwordx16 s[4:19], s[0:1], 0
s_load_dwordx8 s[20:27], s[0:1], 64
s_getpc_b64 s[40:41]
L_pc:
v_lshrrev_b32 v1, 6, v0
s_lshr_b32 s30, s2, 3                ; k
v_readfirstlane_b32 s28, v1          ; wave
v_and_b32 v0, 63, v0                 ; lane
s_cmp_ge_u32 s2, 256
s_cbranch_scc1 L_exit
s_lshl3_add_u32 s43, s30, s28
s_lshl_b32 s43, s43, {pfs}
v_mov_b32 v1, s43
global_load_dword v1, v1, s[40:41]
s_and_b32 s29, s2, 7                 ; g
s_and_b32 s31, s30, 3
s_lshl2_add_u32 s31, s29, s31        ; head
s_lshr_b32 s32, s30, 2
v_lshrrev_b32 v3, 3, v0              ; lane >> 3
v_and_b32 v4, 7, v0
v_lshlrev_b32 v4, 4, v4              ; (lane & 7) * 16
v_lshl_add_u32 v2, v3, 12, v4
v_lshlrev_b32 v5, 4, v0              ; lane * 16
s_and_b32 s63, s28, 3
s_lshl2_add_u32 s33, s31, s32
s_add_u32 s33, s33, s29
s_and_b32 s33, s33, 15
s_lshl_b32 s33, s33, 8
s_lshl_b32 s34, s31, 6
s_add_u32 s34, s34, s32
s_add_u32 s34, s34, 56
s_lshl2_add_u32 s34, s34, s63
s_lshl_b32 s34, s34, 15
s_mov_b32 s38, 0x8000
s_mov_b32 s39, 0x20000
s_cmp_lt_u32 s28, 4
s_cbranch_scc1 L_kwave
s_setprio 3
s_lshl_b32 s35, s32, 5
s_add_u32 s35, s35, s63
s_lshl_b32 s35, s35, 6
s_add_u32 s35, s35, s31
s_lshl_b32 s35, s35, 8
v_lshl_add_u32 v6, v3, 16, v4
v_add_u32 v12, 0x2000, v6
v_subrev_u32 v13, 12, v0
v_ashrrev_i32 v13, 31, v13
v_lshlrev_b32 v14, 2, v0
ds_write_b32 v14, v13 offset:{L_SY}
s_waitcnt lgkmcnt(0)
global_load_dwordx4 v[24:27], v5, s[4:5]
s_load_dword s3, s[26:27], {WS_E:#x}
s_add_u32 s10, s10, s35
s_addc_u32 s11, s11, 0''')
    for n in range(2):
        for hf in range(2): A(f'global_load_dwordx4 v[{64+8*n+4*hf}:{67+8*n+4*hf}], v{(6, 12)[n]}, s[10:11] offset:{128*hf} nt')
    A('s_barrier\ns_branch L_vwave')

    A('''L_kwave:
s_setprio 2
s_waitcnt lgkmcnt(0)
s_add_u32 s36, s6, s34
s_addc_u32 s37, s7, 0''')
    qload = 'global_load_dwordx4 v[16:19], v6, s[44:45] sc1'
    stream({KPRE: f's_load_dword s3, s[26:27], {WS_E:#x}\ns_barrier',
            8: '''s_lshl_b32 s34, s31, 6
s_add_u32 s34, s34, s28
s_lshl_b32 s34, s34, 7
s_add_u32 s44, s26, s34
s_addc_u32 s45, s27, 0
v_lshl_add_u32 v6, v3, 10, v4''',
            QPOS: qload + '   ; 32 columns of the 8 partial q records'}, QPOS)
    A(f'''v_lshrrev_b32 v12, 5, v0             ; lane >> 5
v_and_b32 v13, 31, v0
v_lshlrev_b32 v13, 4, v13            ; (lane & 31) * 16
s_and_b32 s34, s28, 1
s_lshl_b32 s34, s34, 7
s_and_b32 s35, s28, 2
s_lshl1_add_u32 s34, s35, s34
v_bfe_u32 v14, v0, 4, 1
v_lshl_add_u32 v14, v12, 2, v14
v_lshlrev_b32 v14, 1, v14
v_add3_u32 v14, v14, v4, s34
v_mov_b32 v24, {L_SY}
v_mov_b32 v25, 1
s_lshl_b32 s34, s28, 2
v_mov_b32 v26, s34
s_waitcnt lgkmcnt(0)
s_add_u32 s3, s3, {EPOCH_STEP:#x}''')
    tagreg(8, 5, 4)
    A(f's_waitcnt vmcnt({GOW})\nds_write_b32 v26, v25 offset:{L_SY+64}')
    A(f's_mov_b32 s62, {SPIN}\nL_qchk:')
    for i in range(4): A(f'v_xor_b32 v{20+i}, v{16+i}, v8')
    A('v_or3_b32 v15, v20, v21, v22\nv_bitop3_b32 v15, v15, v23, 15 bitop3:0xa8\nv_cmp_ne_u32 vcc, 0, v15\ns_cbranch_vccnz L_qagain\nL_qok:')
    cold.append(lambda: A(f'L_qagain:\n{qload}\ns_sub_u32 s62, s62, 1\ns_waitcnt vmcnt(0)\ns_cbranch_scc0 L_qchk\ns_branch L_qok'))
    A(f'''v_permlane32_swap_b32 v20, v22
v_permlane32_swap_b32 v21, v23
v_add_f32 v20, v20, v22
v_add_f32 v21, v21, v23
v_permlane16_swap_b32 v20, v21
v_add_f32 v20, v20, v21
v_add_f32_dpp v20, v20, v20 row_ror:8 {FULL}
v_cvt_pk_bf16_f32 v20, v20, v20
ds_write_b16 v14, v20 offset:{L_Q}
s_mov_b64 exec, 1
s_waitcnt lgkmcnt(0)
ds_add_u32 v24, v25 offset:52
s_mov_b64 exec, -1''')
    ldsspin('ds_read_b32 v15, v24 offset:52', 'v_cmp_ne_u32 vcc, 4, v15')
    A(f'ds_read_b128 v[16:19], v4 offset:{L_Q}\nds_read_b128 v[20:23], v4 offset:{L_Q+128}\ns_waitcnt lgkmcnt(0)')
    for i0 in range(0, 16, 4):
        if i0 == 12: A('s_waitcnt vmcnt(0)')
        for e in range(8):
            for i in range(i0, i0 + 4):
                A(f'v_dot2_f32_bf16 v{32+i}, v{128+8*i+e}, v{16+e}, {"v%d" % (32+i) if e else 0}')
    for i in range(8): A(f'v_add_f32_dpp v{32+i}, v{32+i}, v{32+i} row_half_mirror row_mask:0xf bank_mask:0x5')
    for i in range(8): A(f'v_add_f32_dpp v{32+i}, v{40+i}, v{40+i} row_half_mirror row_mask:0xf bank_mask:0xa')
    A('s_mov_b32 vcc_lo, 0xcccccccc\ns_mov_b32 vcc_hi, 0xcccccccc')
    for i in range(4): A(f'v_cndmask_b32 v{40+i}, v{36+i}, v{32+i}, vcc\nv_cndmask_b32 v{32+i}, v{32+i}, v{36+i}, vcc')
    for i in range(4): A(f'v_add_f32_dpp v{32+i}, v{40+i}, v{32+i} quad_perm:[2,3,0,1] {FULL}')
    A('s_mov_b32 vcc_lo, 0xaaaaaaaa\ns_mov_b32 vcc_hi, 0xaaaaaaaa')
    for i in range(2): A(f'v_cndmask_b32 v{40+i}, v{34+i}, v{32+i}, vcc\nv_cndmask_b32 v{32+i}, v{32+i}, v{34+i}, vcc')
    for i in range(2): A(f'v_add_f32_dpp v{32+i}, v{40+i}, v{32+i} quad_perm:[1,0,3,2] {FULL}')
    r2 = 'v_cvt_pk_bf16_f32 v34, v32, v33\nv_lshlrev_b32 v32, 16, v34\nv_and_b32 v33, 0xffff0000, v34'
    A(f'{r2}\nv_mul_f32 v32, {SCALE:#x}, v32\nv_mul_f32 v33, {SCALE:#x}, v33\n{r2}       ; v32, v33 = two scores per lane')
    A('v_max_f32 v34, v32, v33')
    wred('v_max_f32', 34, 36)
    A(f'''v_sub_f32 v35, v32, v34
v_sub_f32 v36, v33, v34
v_mul_f32 v35, {LOG2E:#x}, v35
v_mul_f32 v36, {LOG2E:#x}, v36
v_exp_f32 v35, v35
v_exp_f32 v36, v36
v_add_f32 v35, v35, v36''')
    wred('v_add_f32', 35, 36)
    A(f'''s_lshl_b32 s34, s29, 8
s_add_u32 s34, s34, {WS_X}
v_lshrrev_b32 v10, 2, v13
v_add_u32 v10, s34, v10
global_load_dword v9, v10, s[26:27] sc1
v_min_u32 v34, -2, v34
v_min_u32 v35, -2, v35
v_lshl_add_u32 v37, v26, 1, v24
ds_write_b64 v37, v[34:35]
s_cmp_lg_u32 s28, 0
s_cbranch_scc1 L_mlwait''')
    ldsspin('ds_read_b128 v[40:43], v24\nds_read_b128 v[44:47], v24 offset:16',
            'v_max3_u32 v37, v40, v41, v42\nv_max3_u32 v37, v37, v43, v44\nv_max3_u32 v37, v37, v45, v46\nv_max_u32 v37, v37, v47\nv_cmp_eq_u32 vcc, -1, v37')
    A(f'''s_lshl_b32 s35, s31, 8
s_add_u32 s35, s35, {WS_ML}
v_max3_f32 v48, v40, v42, v44
v_max_f32 v48, v48, v46''')
    for w in range(4): A(f'v_sub_f32 v{40+2*w}, v{40+2*w}, v48')
    for w in range(4): A(f'v_mul_f32 v{40+2*w}, {LOG2E:#x}, v{40+2*w}')
    for w in range(4): A(f'v_exp_f32 v{40+2*w}, v{40+2*w}')
    A('v_mov_b32 v49, s3\nv_mov_b32 v51, s3\nv_mul_f32 v50, v40, v41')
    for w in range(1, 4): A(f'v_fmac_f32 v50, v{40+2*w}, v{41+2*w}')
    A(f'''s_lshl4_add_u32 s34, s32, s35
v_mov_b32 v37, s34
s_mov_b64 exec, 1
global_store_dwordx4 v37, v[48:51], s[26:27] sc1
s_mov_b64 exec, -1
s_mov_b32 s62, {SPIN}
L_ml:
s_sleep 2
s_load_dwordx16 s[64:79], s[26:27], s35 glc
s_load_dwordx16 s[80:95], s[26:27], s35 offset:64 glc
s_waitcnt lgkmcnt(0)
s_and_b32 s34, s65, s3
s_or_b32 s47, s65, s3''')
    for i in range(1, 16): A(f's_and_b32 s34, s34, s{65+2*i}\ns_or_b32 s47, s47, s{65+2*i}')
    A('s_cmp_eq_u32 s34, s47\ns_cbranch_scc1 L_mlgot\ns_sub_u32 s62, s62, 1\ns_cbranch_scc0 L_ml\nL_mlgot:\nv_mov_b32 v34, s64')
    for c in range(1, 8): A(f'v_max_f32 v34, s{64+4*c}, v34')
    for c in range(8): A(f'v_sub_f32 v{40+c}, s{64+4*c}, v34')
    for c in range(8): A(f'v_mul_f32 v{40+c}, {LOG2E:#x}, v{40+c}')
    for c in range(8): A(f'v_exp_f32 v{40+c}, v{40+c}')
    A('v_mul_f32 v35, s66, v40')
    for c in range(1, 8): A(f'v_fmac_f32 v35, s{66+4*c}, v{40+c}')
    A('''v_rcp_f32 v35, v35
v_min_u32 v34, -2, v34
v_min_u32 v35, -2, v35
ds_write_b64 v24, v[34:35] offset:32
s_branch L_mlok
L_mlwait:''')
    ldsspin('ds_read_b64 v[34:35], v24 offset:32', 'v_max_u32 v37, v34, v35\nv_cmp_eq_u32 vcc, -1, v37', 1)
    A(f'''L_mlok:
v_sub_f32 v32, v32, v34
v_sub_f32 v33, v33, v34
v_mul_f32 v32, {LOG2E:#x}, v32
v_mul_f32 v33, {LOG2E:#x}, v33
v_exp_f32 v32, v32
v_exp_f32 v33, v33
s_lshl_b32 s34, s28, 8
v_lshl_add_u32 v36, v0, 2, s34
v_mul_f32 v32, v32, v35
v_mul_f32 v33, v33, v35
v_cvt_pk_bf16_f32 v32, v32, v33
ds_write_b32 v36, v32 offset:{L_P}
s_getreg_b32 s34, hwreg(HW_REG_XCC_ID, 0, 4)
s_andn2_b32 s35, s3, 31
s_or_b32 s34, s34, s35
s_or_b32 s35, s34, 16
s_waitcnt vmcnt(0)
v_cmp_eq_u32 s[48:49], s34, v9
v_cmp_eq_u32 s[50:51], s35, v9
s_bcnt1_i32_b32 s48, s48
s_bcnt1_i32_b32 s50, s50
s_cmp_gt_u32 s50, s48
s_cselect_b32 s34, 0x2000, 0
v_mov_b32 v10, s34''')
    tagreg(8, 5, 8)
    A(f'''v_mov_b32 v11, 0xff
s_lshl_b32 s47, s28, 13
s_add_u32 s47, s47, {L_W}
v_lshrrev_b32 v14, 4, v0             ; lane >> 4
s_lshr_b32 s34, s30, 1
s_and_b32 s35, s30, 1
s_lshl4_add_u32 s30, s35, s34        ; r
s_waitcnt lgkmcnt(0)
s_cmp_ge_u32 s30, 16
s_cbranch_scc1 L_notw''')

    A(f'''; role W: wave w owns head 4g + w, columns 32r .. 32r + 31 of wo
s_lshl2_add_u32 s34, s29, s28
s_lshl_b32 s35, s34, 13
s_add_u32 s44, s26, s35
s_addc_u32 s45, s27, 0
v_lshl_add_u32 v6, v12, 12, v13
s_lshl_b32 s34, s34, 17
s_lshl_b32 s35, s30, 6
s_add_u32 s34, s34, s35
s_add_u32 s40, s12, s34
s_addc_u32 s41, s13, 0
s_mov_b32 s42, {127*1024+64}
s_mov_b32 s43, 0x20000
v_and_b32 v32, 1, v14
v_bfe_u32 v15, v0, 3, 1
v_lshl_add_u32 v15, v15, 2, v14
v_bfe_u32 v33, v0, 2, 1
v_lshl_add_u32 v15, v15, 1, v33
v_lshlrev_b32 v33, 1, v32
v_and_b32 v34, 3, v0
v_xor_b32 v33, v33, v34
v_lshlrev_b32 v33, 4, v33
v_lshl_add_u32 v15, v15, 10, v33
v_lshrrev_b32 v33, 2, v0
v_lshlrev_b32 v33, 6, v33
v_lshl_add_u32 v33, v34, 3, v33
v_lshl_add_u32 v33, v32, 5, v33
v_add_u32 v33, s47, v33
v_xor_b32 v34, 32, v33
v_add_u32 v37, v26, v13
v_add_u32 v37, {L_RED}, v37
s_and_b32 s34, s29, 4
s_add_u32 s34, s34, s29
s_lshl4_add_u32 s34, s34, s30
s_lshl_b32 s34, s34, 7
s_add_u32 s34, s34, {WS_B}
s_add_u32 s56, s26, 0x8000
s_addc_u32 s57, s27, 0
s_add_u32 s58, s26, 0x10000
s_addc_u32 s59, s27, 0
s_add_u32 s68, s26, 0x18000
s_addc_u32 s69, s27, 0
v_lshrrev_b32 v38, 2, v13
v_lshl_add_u32 v38, v12, 13, v38
v_add_u32 v38, s34, v38''')
    tagreg(9, 38, 8)
    tagmask(10, 38)
    A('s_and_b32 s60, s30, 1\ns_lshl_b32 s61, s60, 16\ns_lshl_b32 s60, s60, 7\nv_xor_b32 v6, s60, v6')
    A(f'''s_mul_i32 s34, s30, {88*128}
s_mul_i32 s35, s29, {176*1024}
s_add_u32 s34, s34, s35
v_lshl_add_u32 v35, v0, 7, s34
v_add_u32 v36, 0x2000, v35
v_min_u32 v35, {1376*1024-4}, v35
v_min_u32 v36, {1376*1024-4}, v36''')
    for n in range(8):
        if n == 0:
            if woall: A('''s_lshl2_add_u32 s34, s30, s28
s_andn2_b32 s35, s34, 7
s_add_u32 s35, s35, s34
s_lshl_b32 s34, s29, 7
s_add_u32 s35, s35, s34
s_lshl_b32 s35, s35, 12
v_lshl_add_u32 v127, v0, 7, s35''')
            if wst: A(wstc)
            A('s_barrier')
            if woall: A('s_mov_b32 exec_hi, 0\nglobal_load_dword v62, v127, s[12:13]\ns_mov_b32 exec_hi, -1')
        if n == (woall - 1 if woall else 2): A('s_barrier')
        A(f's_add_u32 m0, s47, {1024*n}\ns_xor_b32 s34, s61, {16384*n}')
        A('buffer_load_dwordx4 v15, s[40:43], s34 offen lds')
    def aload():
        for n in range(4): A(f'global_load_dwordx4 v[{96+4*n}:{99+4*n}], v6, s[44:45] offset:{1024*n} sc1')
    aload()
    for t in range(4):
        A(f's_waitcnt vmcnt({10-2*t})')
        for cb in range(2):
            for hf in range(2):
                r = 128 + 8 * t + 4 * cb + 2 * hf
                A(f'ds_read_b64_tr_b16 v[{r}:{r+1}], v{33+cb} offset:{1024*(2*t+hf)}')
    gather(aload, 4, 39, issued=True)
    A('v_cvt_pk_bf16_f32 v16, v16, v17\ns_waitcnt lgkmcnt(0)')
    mv = bcast(16, 64, 0xf)
    for o in mv[:6]: A(o)
    mv = mv[6:]
    for t in range(4):
        for cb in range(2):
            c = f'v[{40+4*cb}:{43+4*cb}]'
            A(f'v_mfma_f32_16x16x32_bf16 {c}, v[{64+4*t}:{67+4*t}], v[{128+8*t+4*cb}:{131+8*t+4*cb}], {c if t else 0}')
            for o in mv[:2]: A(o)
            mv = mv[2:]
    A(f'''; the wave that finds all four partials published sums them and stores the record
s_mov_b64 exec, 0xffff
ds_write2_b32 v37, v40, v44 offset0:0 offset1:64
ds_write_b32 v26, v11 offset:{L_SY+96}
s_mov_b64 exec, -1
ds_read_b128 v[20:23], v24 offset:96
ds_read_b128 v[16:19], v13 offset:{L_RED}
s_waitcnt lgkmcnt(1)
v_min3_u32 v20, v20, v21, v22
v_min_u32 v20, v20, v23
v_cmp_ne_u32 vcc, 0, v20
s_waitcnt lgkmcnt(0)
v_pk_add_f32 v[16:17], v[16:17], v[18:19]
s_mov_b64 exec, vcc
v_add_f32 v16, v16, v17
v_bfi_b32 v16, v10, v9, v16
global_store_dword v38, v16, s[26:27] sc1
global_store_dword v38, v16, s[56:57] sc1
global_store_dword v38, v16, s[58:59] sc1
global_store_dword v38, v16, s[68:69] sc1
global_load_dword v62, v35, s[20:21]
s_and_b32 exec_lo, exec_lo, 0xffffff
s_mov_b32 exec_hi, 0
global_load_dword v62, v36, s[20:21]''')
    finish()

    A(f'''L_notw:
s_and_b32 s34, s30, 15
s_lshl2_add_u32 s34, s34, s28
s_andn2_b32 s35, s34, 7
s_add_u32 s35, s35, s34
s_add_u32 s35, s35, 8
s_lshl_b32 s64, s29, 7
s_add_u32 s35, s35, s64
s_lshl_b32 s35, s35, 12
v_lshl_add_u32 v127, v0, 7, s35
{wstc if wst else ''}
s_lshr_b32 s34, s34, 1
s_lshl_b32 s34, s34, 4
v_lshrrev_b32 v61, 2, v0
v_add_u32 v61, s34, v61
v_mul_u32_u24 v61, 2752, v61
v_and_b32 v15, 3, v0
v_lshlrev_b32 v62, 7, v15
v_min_u32 v62, 348, v62
s_mul_i32 s34, s29, 352
v_add3_u32 v61, v61, v62, s34
s_bitcmp1_b32 s28, 0
s_cselect_b32 s64, s18, s16
s_cselect_b32 s65, s19, s17
s_mov_b32 s66, {512*2752}
s_mov_b32 s67, 0x20000
s_cmp_lt_u32 s30, 27
s_cbranch_scc1 L_rolef''')
    def bars(split):
        gu = 'buffer_load_dword v62, v61, s[64:67], 0 offen'
        A('s_barrier\ns_mov_b32 exec_hi, 0\nglobal_load_dword v62, v127, s[12:13]')
        if split: A(f's_mov_b32 exec_lo, 0xffff\n{gu}\ns_mov_b32 exec_lo, 0xffff0000')
        A(f's_mov_b32 exec_hi, -1\ns_barrier\n{gu}')
        if split: A('s_mov_b32 exec_lo, -1')

    A(f'''s_cmp_lt_u32 s30, 28
s_cbranch_scc1 L_norole
s_cmp_lg_u32 s28, 0
s_cbranch_scc1 L_norole
s_lshl2_add_u32 s63, s29, s30
s_sub_u32 s63, s63, 28
s_lshr_b32 s34, s63, 1
s_xor_b32 s34, s34, s63
s_and_b32 s34, s34, 2
s_mul_i32 s34, s34, 3
s_xor_b32 s63, s63, s34
s_lshl_b32 s34, s63, 6
s_add_u32 s34, s34, {WS_C}
v_lshrrev_b32 v44, 2, v0
v_and_b32 v45, 12, v44
v_add_u32 v44, v44, v45
v_lshl_add_u32 v44, v44, 11, v10
v_lshl_add_u32 v44, v15, 4, v44
v_add_u32 v44, s34, v44''')
    for n in range(1, 6): A(f'v_add_u32 v{44+n}, {65536*n}, v44')
    A(f'''s_lshr_b32 s34, s63, 3
s_lshl_b32 s34, s34, 7
s_and_b32 s35, s63, 3
s_lshl_b32 s35, s35, 5
s_add_u32 s34, s34, s35
s_and_b32 s35, s63, 4
s_add_u32 s34, s34, s35
v_lshl_add_u32 v51, v15, 3, v14
v_add_lshl_u32 v51, v51, s34, 1
global_load_ushort v43, v51, s[4:5]
s_lshl_b32 s34, s34, 2
s_and_b32 s35, s29, 3
s_lshl_b32 s35, s35, 15
s_add_u32 s34, s34, s35
s_add_u32 s34, s34, {WS_B}
v_bfe_u32 v50, v0, 2, 3
v_and_b32 v52, 4, v50
v_add_u32 v50, v50, v52
v_lshl_add_u32 v50, v50, 11, v10
v_lshl_add_u32 v50, v15, 5, v50
v_add_u32 v50, s34, v50
v_mov_b32 v52, {WS_E}
v_mov_b32 v53, s3''')
    tagreg(9, 50, 8)
    A('v_mov_b32 v116, v8\nv_mov_b32 v117, 0\nv_mov_b32 v118, 0\nv_mov_b32 v119, 0')
    A('v_mov_b32 v36, v9\nv_mov_b32 v37, 0\nv_mov_b32 v38, 0\nv_mov_b32 v39, 0')
    bars(False)
    def cload():
        for n in range(6): A(('s_mov_b64 exec, 0xffffff\n' if n == 5 else '') + f'global_load_dwordx4 v[{96+4*n}:{99+4*n}], v{44+n}, s[26:27] sc1')
        A('s_mov_b64 exec, -1')
    cload()
    A(f'''; h = x + o @ wo for these columns
s_mov_b32 s62, {SPIN}
L_rb:
s_sleep 1
s_mov_b32 exec_hi, 0
global_load_dwordx4 v[36:39], v50, s[26:27] sc1
s_mov_b32 exec_hi, -1
s_sub_u32 s62, s62, 1
s_cbranch_scc1 L_rbok
s_waitcnt vmcnt(0)
v_xor_b32 v40, v36, v9
v_and_b32 v42, v11, v40
v_cmp_ne_u32 vcc, 0, v42
s_cbranch_vccnz L_rb
L_rbok:
s_cmp_eq_u32 s63, 0
s_cselect_b32 exec_lo, 1, 0
s_mov_b32 exec_hi, 0
global_store_dword v52, v53, s[26:27] sc1
s_mov_b64 exec, -1
v_permlane32_swap_b32 v40, v38
v_permlane32_swap_b32 v37, v39
v_permlane16_swap_b32 v40, v37
v_add_f32 v40, v40, v37
v_lshlrev_b32 v43, 16, v43
v_add_f32_dpp v40, v40, v40 row_ror:8 {FULL}
v_add_f32_dpp v40, v40, v40 row_ror:4 {FULL}
v_add_f32 v40, v40, v43''')
    rnd(40)
    gather(cload, 6, 42)
    A(f'''v_permlane16_swap_b32 v16, v17
v_add_f32 v16, v16, v17
v_add_f32_dpp v16, v16, v16 row_ror:8 {FULL}
v_add_f32_dpp v16, v16, v16 row_ror:4 {FULL}
s_mov_b32 exec_lo, 0x000f000f
v_add_f32 v16, v16, v40
s_mov_b32 exec_hi, 0x000f000f
v_cvt_pk_bf16_f32 v16, v16, v16
global_store_short v51, v16, s[22:23]''')
    finish(1)
    A('L_norole:')
    bars(False)
    finish()

    A(f'''.p2align 12
L_rolef:
s_mul_i32 s63, s29, 11
s_add_u32 s63, s63, s30
s_sub_u32 s63, s63, 16
s_cmp_ge_u32 s63, 86
s_cbranch_scc1 L_norole
s_mul_i32 s34, s28, {128*2752}
s_lshl_b32 s35, s63, 5
s_add_u32 s34, s34, s35
s_add_u32 s36, s16, s34
s_addc_u32 s37, s17, 0
s_mov_b32 s38, {127*2752+32}
s_mov_b32 s39, 0x20000
s_add_u32 s40, s18, s34
s_addc_u32 s41, s19, 0
s_mov_b32 s42, {127*2752+32}
s_mov_b32 s43, 0x20000
s_lshl_b32 s34, s63, 14
s_lshl_b32 s35, s28, 8
s_add_u32 s34, s34, s35
s_add_u32 s20, s20, s34
s_addc_u32 s21, s21, 0
s_add_u32 s4, s4, s35
s_addc_u32 s5, s5, 0
s_and_b32 s34, s29, 3
s_lshl_b32 s34, s34, 15
s_lshl1_add_u32 s34, s35, s34
s_add_u32 s34, s34, {WS_B+4096}
s_add_u32 s44, s26, s34
s_addc_u32 s45, s27, 0
v_lshl_add_u32 v6, v12, 14, v13
v_add_u32 v6, v6, v10
v_and_b32 v58, 12, v0
v_add_u32 v58, v58, v14
v_mul_u32_u24 v58, 80, v58
v_lshl_add_u32 v58, v15, 4, v58
v_bfe_u32 v15, v0, 3, 1
v_lshl_add_u32 v15, v15, 3, v12
v_bfe_u32 v33, v0, 2, 1
v_lshl_add_u32 v15, v15, 1, v33
v_bfe_u32 v33, v0, 4, 1
v_lshl_add_u32 v15, v15, 1, v33
v_bfe_u32 v33, v0, 1, 1
v_lshl_add_u32 v15, v15, 1, v33
v_mul_u32_u24 v15, 2752, v15
v_and_b32 v40, 1, v0
v_lshlrev_b32 v40, 4, v40
v_add_u32 v15, v15, v40
v_lshl_add_u32 v33, v0, 3, s47
v_lshrrev_b32 v36, 1, v13
v_lshl_add_u32 v36, v12, 2, v36
global_load_dword v32, v36, s[4:5]
v_and_b32 v38, 15, v0
v_lshlrev_b32 v34, 4, v38
v_lshl_add_u32 v34, v14, 10, v34
v_add_u32 v34, 0x1000, v34
v_add_u32 v35, 0x2000, v34
s_lshl_b32 s34, s28, 3
v_lshl_add_u32 v60, v12, 2, s34
s_add_u32 s34, s34, {L_OP}
v_mul_u32_u24 v57, 80, v38
v_add_u32 v57, s34, v57
v_lshl_add_u32 v57, v14, 2, v57
s_andn2_b32 s34, s63, 3
s_add_u32 s34, s34, s63
s_lshl2_add_u32 s34, s34, s28
s_lshl_b32 s34, s34, 9
s_add_u32 s34, s34, {WS_C}
v_lshl_add_u32 v59, v12, 13, v13
v_add_u32 v59, s34, v59
v_mov_b32 v44, 0x3f803f80
v_mov_b32 v63, {L_RED}
v_mov_b32 v46, {EPS:#x}
v_mov_b32 v41, 0xffff
v_lshlrev_b32 v40, v40, v41
v_bfe_u32 v41, v0, 1, 2
s_mov_b32 s60, 1
s_mov_b32 s61, 1''')
    for i in range(16): A(f'v_mov_b32 v{72+i}, v44')
    for w in range(4): A(f'v_cmp_eq_u32 vcc, {w}, v41\nv_cndmask_b32 v{48+w}, 0, v40, vcc')
    bars('F')
    for t in range(4):
        for m in range(2):
            A(f's_add_u32 m0, s47, {4096*m+1024*t}\ns_mov_b32 s34, {16*t*2752}')
            A(f'buffer_load_dwordx4 v15, s[{36+4*m}:{39+4*m}], s34 offen lds')
    def bload():
        for n in range(4): A(f'global_load_dwordx4 v[{96+4*n}:{99+4*n}], v6, s[44:45] offset:{2048*n-4096} sc1')
    for t in range(4):
        A(f's_waitcnt vmcnt({6-2*t})')
        if t == 3: bload()
        for m in range(2):
            for hf in range(2):
                r = 128 + 16 * m + 4 * t + 2 * hf
                A(f'ds_read_b64_tr_b16 v[{r}:{r+1}], v33 offset:{4096*m+1024*t+512*hf}')
        if t == 0: A('v_and_b32 v41, 0xffff0000, v32\nv_lshlrev_b32 v40, 16, v32')
    gather(bload, 4, 42, issued=True)
    A('''; h @ W with LN folded in: A rows 4-7 stay all ones and yield the column sums; moments of h on the side
v_pk_add_f32 v[16:17], v[16:17], v[40:41]
v_cvt_pk_bf16_f32 v18, v16, v17
v_dot2_f32_bf16 v16, v18, v44, 0
v_dot2_f32_bf16 v17, v18, v18, 0
s_waitcnt lgkmcnt(0)''')
    op = {f'm{i}': o for i, o in enumerate(bcast(18, 72, 0xd))}
    op.update({f'd{r}': f'v_add_f32_dpp v16, v16, v16 row_ror:{r} {FULL}' for r in (8, 4, 2, 1)})
    op.update({f'L{n}': f'global_load_dwordx4 v[{160+4*n}:{163+4*n}], v{34+(n>>1)}, s[20:21] offset:{4096*(n&1)-4096}' for n in range(4)})
    for n in range(8):
        t, m = n >> 1, n & 1
        c = f'v[{64+4*m}:{67+4*m}]'
        op[f'M{n}'] = f'v_mfma_f32_16x16x32_bf16 {c}, v[{72+4*t}:{75+4*t}], v[{128+16*m+4*t}:{131+16*m+4*t}], {c if t else 0}'
    op.update(S32='v_permlane32_swap_b32 v16, v17', S16='v_permlane16_swap_b32 v16, v17', A='v_add_f32 v16, v16, v17', mv='v_mov_b32 v17, v16',
              wr=f's_mov_b64 exec, s[60:61]\nds_write_b32 v60, v16 offset:{L_RED}\ns_mov_b64 exec, -1', bar='s_waitcnt lgkmcnt(0)\ns_barrier',
              rd='ds_read_b128 v[24:27], v63\nds_read_b128 v[28:31], v63 offset:16')
    for o in 'm0 m1 S32 m2 A m3 m4 d8 M0 m5 d4 m6 M1 d2 m7 m8 d1 mv M2 m9 S16 A wr M3 m10 m11 L0 L1 M4 m12 m13 m14 m15 M5 L2 L3 bar M6 rd M7'.split(): A(op[o])
    A(f'''s_mov_b32 exec_hi, 0
ds_write2_b32 v57, v64, v68 offset0:0 offset1:8
s_mov_b32 exec_hi, -1
s_waitcnt lgkmcnt(1)
v_pk_add_f32 v[24:25], v[24:25], v[26:27]
v_pk_add_f32 v[28:29], v[28:29], v[30:31]
v_pk_add_f32 v[24:25], v[24:25], v[28:29]
s_waitcnt lgkmcnt(0)
s_barrier
ds_read_b128 v[16:19], v58 offset:{L_OP}
v_mul_f32 v24, 0xbb000000, v24       ; -mean
v_fmamk_f32 v28, v25, 0x3b000000, v46
v_fma_f32 v28, -v24, v24, v28
v_max_f32 v28, v28, v46
v_rsq_f32 v29, v28
s_waitcnt lgkmcnt(0)
v_pk_add_f32 v[16:17], v[16:17], v[18:19]
v_fmac_f32 v16, v24, v17
v_rcp_f32 v28, v28
v_mul_f32 v29, {LOG2E ^ 0x80000000:#x}, v29
v_add_f32_dpp v16, v16, v16 quad_perm:[1,0,3,2] {FULL}
v_mul_f32 v17, v16, v29
v_exp_f32 v17, v17
v_mul_f32_dpp v18, v16, v16 quad_perm:[2,3,0,1] {FULL}
v_add_f32 v17, 1.0, v17
v_rcp_f32 v17, v17
v_mul_f32 v18, v18, v28
v_mul_f32 v16, v18, v17
v_cvt_pk_bf16_f32 v16, v16, v16
s_waitcnt vmcnt(0)
; act @ w_down on row-major weights: A holds act on a diagonal''')
    ops = [f'v_and_b32_dpp v{72+4*n+w}, v16, v{48+w} row_newbcast:{4*n} {FULL}' for n in range(4) for w in range(4)]
    for n in range(4):
        for o in ops[(4 * n + 2 if n else 0):4 * n + 6]: A(o)
        A(f'v_mfma_f32_16x16x32_bf16 v[64:67], v[{72+4*n}:{75+4*n}], v[{160+4*n}:{163+4*n}], {"v[64:67]" if n else 0}')
    A('v_bfi_b32 v64, v11, v8, v64\nglobal_store_dwordx4 v59, v[64:67], s[26:27] sc1')
    finish()

    A(f'''.p2align 12
L_vwave:
s_add_u32 s36, s8, s34
s_addc_u32 s37, s9, 0
s_lshl3_add_u32 s35, s31, s32
s_lshl_b32 s35, s35, 10
s_add_u32 s44, s26, s35
s_addc_u32 s45, s27, 0
v_mov_b32 v56, {L_SY}
s_lshr_b32 s56, s2, 6
s_lshl_b32 s56, s56, 7
s_and_b32 s35, s2, 63
s_add_u32 s56, s56, s35
s_lshl_b32 s56, s56, 7
s_add_u32 s56, s56, {WS_PR}
s_cmp_lg_u32 s28, 5
s_cbranch_scc1 L_nowarm
s_load_dword s54, s[26:27], s56 glc
s_load_dword s55, s[26:27], s56 offset:0x2000 glc
L_nowarm:
v_and_b32 v28, 1, v0
v_cmp_eq_u32 vcc, 1, v28
v_mov_b32 v29, 0x0c0c0100
v_mov_b32 v30, 0x01000c0c
v_cndmask_b32 v29, v29, v30, vcc
v_mov_b32 v30, 0x0c0c0302
v_mov_b32 v31, 0x03020c0c
v_cndmask_b32 v30, v30, v31, vcc
v_mov_b32 v31, 0x0c0c0c0c
v_bfe_u32 v28, v0, 1, 2''')
    for w in range(4): A(f'v_cmp_eq_u32 vcc, {w}, v28\nv_cndmask_b32 v{40+w}, v31, v29, vcc\nv_cndmask_b32 v{44+w}, v31, v30, vcc')
    A(f'''s_lshl_b32 s34, s63, 10
s_add_u32 s34, s34, {L_OP}
v_lshrrev_b32 v12, 5, v0
v_lshl_add_u32 v12, v12, 9, s34
v_lshl_add_u32 v12, v4, 1, v12
v_bfe_u32 v13, v0, 4, 1
v_lshl_add_u32 v12, v13, 4, v12
v_lshlrev_b32 v14, 3, v0
s_lshl_b32 s34, s32, 5
s_add_u32 s34, s34, s63
s_lshl_b32 s34, s34, 2
v_lshl_add_u32 v6, v3, 4, s34
v_mov_b32 v57, 1
s_waitcnt vmcnt(4)''')
    layernorm(24, 28)
    A(f'ds_write_b128 v5, v[24:27] offset:{L_H}\ns_waitcnt lgkmcnt(0)\nds_read_b32 v48, v6 offset:{L_H}\ns_add_u32 s3, s3, {EPOCH_STEP:#x}')
    tagreg(8, 14, 4)
    A('s_waitcnt lgkmcnt(0)')
    for n in range(2): afrag(24 + 4 * n, 48, n)
    A('s_waitcnt vmcnt(0)')
    for n in range(2):
        for hf in range(2):
            c = f'v[{16+4*hf}:{19+4*hf}]'
            A(f'v_mfma_f32_16x16x32_bf16 {c}, v[{24+4*n}:{27+4*n}], v[{64+8*n+4*hf}:{67+8*n+4*hf}], {c if n else 0}')
    part_write = '''s_mov_b32 exec_lo, 0x00ff00ff
s_mov_b32 exec_hi, 0xff00ff00
ds_write_b128 v12, v[16:19]
ds_write_b128 v12, v[20:23] offset:256'''
    A(f'''{part_write}
s_mov_b64 exec, 1
s_waitcnt lgkmcnt(0)
ds_add_u32 v56, v57 offset:48
s_mov_b64 exec, -1
s_cmp_lg_u32 s28, 4
s_cbranch_scc1 L_vstream''')
    ldsspin('ds_read_b32 v15, v56 offset:48', 'v_cmp_ne_u32 vcc, 4, v15')
    for n in range(4): A(f'ds_read_b128 v[{16+4*n}:{19+4*n}], v5 offset:{L_OP+1024*n}')
    A('s_waitcnt lgkmcnt(0)')
    for i in (0, 2, 8, 10): A(f'v_pk_add_f32 v[{16+i}:{17+i}], v[{16+i}:{17+i}], v[{20+i}:{21+i}]')
    for i in (0, 2): A(f'v_pk_add_f32 v[{16+i}:{17+i}], v[{16+i}:{17+i}], v[{24+i}:{25+i}]')
    A(f'''v_permlane32_swap_b32 v16, v18
v_permlane32_swap_b32 v17, v19
v_pk_add_f32 v[16:17], v[16:17], v[18:19]
v_and_or_b32 v16, v16, -16, v8
v_and_or_b32 v17, v17, -16, v8
global_store_dwordx2 v14, v[16:17], s[44:45]
L_vstream:
s_setprio 0
s_getreg_b32 s34, hwreg(HW_REG_XCC_ID, 0, 4)
s_andn2_b32 s46, s3, 31
s_or_b32 s46, s46, s34
s_lshl_b32 s47, s29, 8
s_add_u32 s47, s47, {WS_X}
s_cmp_lg_u32 s28, 5
s_cbranch_scc1 L_noprobe
s_mov_b32 s54, -1
s_mov_b32 s55, -1
s_waitcnt lgkmcnt(0)''')
    for i in range(4):
        A(f's_memtime s[50:51]\ns_load_dword s35, s[26:27], s56 offset:{0x2000 * (i & 1)} glc\ns_waitcnt lgkmcnt(0)\ns_memtime s[52:53]\ns_waitcnt lgkmcnt(0)\ns_sub_u32 s35, s52, s50\ns_min_u32 s{54 + (i & 1)}, s{54 + (i & 1)}, s35')
    A(f'''s_cmp_lt_u32 s55, s54
s_cselect_b32 s35, 16, 0
s_or_b32 s34, s46, s35
v_mov_b32 v31, s34
s_lshl2_add_u32 s34, s30, s47
v_mov_b32 v30, s34
s_mov_b64 exec, 1
global_store_dword v30, v31, s[26:27]
s_mov_b64 exec, -1
L_noprobe:
s_lshl_b32 s34, s63, 2
v_mov_b32 v28, s34
v_and_b32 v30, 31, v0
v_lshl_add_u32 v30, v30, 2, s47''')
    ldsspin(f'ds_read_b32 v15, v28 offset:{L_SY+64}', 'v_cmp_eq_u32 vcc, 0, v15', 1)
    stream({XPOS: 'global_load_dword v29, v30, s[26:27] sc1',
            XPOS + THR: '''v_and_b32 v29, -17, v29
v_cmp_ne_u32 s[48:49], s46, v29
s_cmp_eq_u64 s[48:49], 0
s_cselect_b64 s[50:51], -1, 0
s_cselect_b64 s[52:53], 0, -1
s_cbranch_scc0 L_requeue
L_requeued:'''}, XPOS)
    cold.append(lambda: A('''L_requeue:
s_cmp_lg_u32 s28, 4
s_cbranch_scc1 L_requeued
global_store_dwordx2 v14, v[16:17], s[44:45] sc1
s_waitcnt vmcnt(0)
s_branch L_requeued'''))
    A('v_mov_b32 v11, 0xff')
    tagreg(8, 14, 8)
    tagmask(10, 14)
    A(f'''s_lshl_b32 s34, s63, 8
v_lshl_add_u32 v6, v3, 5, s34
s_barrier
ds_read_b128 v[48:51], v6 offset:{L_P}
ds_read_b128 v[52:55], v6 offset:{L_P+16}
s_waitcnt lgkmcnt(0)''')
    for i in range(16): afrag(64 + 4 * i, 48 + i // 2, i & 1)
    for i in range(16):
        for hf in range(2):
            if (i, hf) == (12, 0): A('s_setprio 3')
            if i >= 12: A(f's_waitcnt vmcnt({31-2*i-hf})')
            c = f'v[{16+4*hf}:{19+4*hf}]'
            A(f'v_mfma_f32_16x16x32_bf16 {c}, v[{64+4*i}:{67+4*i}], v[{128+8*i+4*hf}:{131+8*i+4*hf}], {c if i else 0}')
    A(f'''; the wave that finds all four partials published sums them and stores the record
{part_write}
ds_write_b32 v28, v11 offset:{L_SY+80}
s_mov_b64 exec, -1
ds_read_b128 v[32:35], v56 offset:80''')
    for n in range(4): A(f'ds_read_b128 v[{64+4*n}:{67+4*n}], v5 offset:{L_OP+1024*n}')
    A('''s_waitcnt lgkmcnt(4)
v_min3_u32 v32, v32, v33, v34
v_min_u32 v32, v32, v35
v_cmp_ne_u32 vcc, 0, v32
s_waitcnt lgkmcnt(2)
v_pk_add_f32 v[64:65], v[64:65], v[68:69]
v_pk_add_f32 v[66:67], v[66:67], v[70:71]
s_and_b64 s[50:51], s[50:51], vcc
s_and_b64 s[52:53], s[52:53], vcc
s_waitcnt lgkmcnt(0)
v_pk_add_f32 v[72:73], v[72:73], v[76:77]
v_pk_add_f32 v[74:75], v[74:75], v[78:79]
v_pk_add_f32 v[64:65], v[64:65], v[72:73]
v_pk_add_f32 v[66:67], v[66:67], v[74:75]
v_permlane32_swap_b32 v64, v66
v_permlane32_swap_b32 v65, v67
v_pk_add_f32 v[64:65], v[64:65], v[66:67]
v_bfi_b32 v64, v10, v8, v64
s_mov_b64 exec, s[50:51]
global_store_dwordx2 v14, v[64:65], s[44:45]
s_mov_b64 exec, s[52:53]
global_store_dwordx2 v14, v[64:65], s[44:45] sc1
s_barrier''')
    if span == 2: A('s_cmp_lg_u32 s30, 31\ns_cbranch_scc1 L_exit\ns_cmp_lg_u32 s28, 5\ns_cbranch_scc1 L_exit\ns_mov_b32 s28, 1')
    finish(2)
    A(f'L_exit:\ns_endpgm\nL_code_end:\n.fill (L_pc+{256 << pfs}-L_code_end)/4, 4, 0xbf810000')
    A.raw(f'''.section .rodata,"a"
.p2align 6
.amdhsa_kernel {NAME}_kernel
  .amdhsa_next_free_vgpr 256
  .amdhsa_next_free_sgpr 102
  .amdhsa_accum_offset 256
  .amdhsa_group_segment_fixed_size 0
  .amdhsa_kernarg_size 96
  .amdhsa_user_sgpr_count 2
  .amdhsa_user_sgpr_kernarg_segment_ptr 1
  .amdhsa_system_sgpr_workgroup_id_x 1
  .amdhsa_float_denorm_mode_32 3
.end_amdhsa_kernel''')
    return A.text()

if __name__ == '__main__':
    out = sys.argv[1] if len(sys.argv) > 1 else f'cdna_kernels/{NAME}.s'
    open(out, 'w').write(gen(**eval('dict(' + (sys.argv[2] if len(sys.argv) > 2 else '') + ')')))
```

```python
import sys
from asmlib import Asm

NAME = 'sequential_preLN__sliding_block_cached__swiglu_ffn__decode'
WS_QA, WS_B, WS_PR, WS_ML, WS_X, WS_E, WS_C, WS_ST = 0x0, 0x40000, 0x60000, 0x70000, 0x72000, 0x73000, 0x80000, 0x100000
EPOCH_STEP = 0x5bd1e3c7
L_P, L_OP, L_H, L_RED, L_SY, L_Q, L_W = 0x0, 0x400, 0x1400, 0x1800, 0x1a00, 0x1b00, 0x1c00
LDS_BYTES = L_W + 0x8000
SPIN = 0x40000
LOG2E, SCALE, EPS = 0x3fb8aa3b, 0x3db504f3, 0x3727c5ac
FULL = 'row_mask:0xf bank_mask:0xf'
THR, KPRE, QPOS, XPOS, GOW = 8, 2, 24, 16, 8

BAR12 = 's_barrier\ns_barrier'
BAR3 = 's_barrier'

DOC = '''\
;   found nearer. Either copy holds the same data.'''

def gen(span=0):
    A = Asm()
    cold = []
    uid = [0]
    def lab(s):
        uid[0] += 1
        return f'L_{s}_{uid[0]}'
    def finish(last=0):
        if span and last == span:
            A(f'''s_memrealtime s[96:97]
s_waitcnt lgkmcnt(0)
v_writelane_b32 v7, s96, 15
v_writelane_b32 v7, s98, 0
s_mov_b64 exec, 0xffff
s_lshl3_add_u32 s34, s2, s28
s_lshl_b32 s34, s34, 6
s_add_u32 s34, s34, {WS_ST}
v_lshl_add_u32 v1, v0, 2, s34
global_store_dword v1, v7, s[26:27]''')
        A('s_endpgm')
        for f in cold: f()
        cold.clear()
    def wred(op, v, t):
        for r in (8, 4, 2, 1): A(f'{op}_dpp v{v}, v{v}, v{v} row_ror:{r} {FULL}')
        for sw in (16, 32): A(f'v_mov_b32 v{t}, v{v}\nv_permlane{sw}_swap_b32 v{v}, v{t}\n{op} v{v}, v{v}, v{t}')
    def rnd(v):
        A(f'v_cvt_pk_bf16_f32 v{v}, v{v}, v{v}\nv_lshlrev_b32 v{v}, 16, v{v}')
    def layernorm(x, u):
        s, t, mb, dl = u + 8, u + 9, u + 10, u + 11
        for i in range(4): A(f'v_lshlrev_b32 v{u+2*i}, 16, v{x+i}\nv_and_b32 v{u+2*i+1}, 0xffff0000, v{x+i}')
        A(f'v_add_f32 v{s}, v{u}, v{u+1}\nv_add_f32 v{t}, v{u+2}, v{u+3}\nv_add_f32 v{mb}, v{u+4}, v{u+5}\nv_add_f32 v{dl}, v{u+6}, v{u+7}')
        A(f'v_add_f32 v{s}, v{s}, v{t}\nv_add_f32 v{mb}, v{mb}, v{dl}\nv_add_f32 v{s}, v{s}, v{mb}')
        wred('v_add_f32', s, t)
        A(f'v_mul_f32 v{dl}, 0x3b000000, v{s}')
        A(f'v_cvt_pk_bf16_f32 v{mb}, v{dl}, v{dl}\nv_lshlrev_b32 v{mb}, 16, v{mb}')
        for i in range(8): A(f'v_sub_f32 v{u+i}, v{u+i}, v{mb}')
        A(f'v_sub_f32 v{dl}, v{dl}, v{mb}')
        A(f'v_mul_f32 v{s}, v{u}, v{u}\nv_mul_f32 v{t}, v{u+1}, v{u+1}')
        for i in range(2, 8, 2): A(f'v_fmac_f32 v{s}, v{u+i}, v{u+i}\nv_fmac_f32 v{t}, v{u+i+1}, v{u+i+1}')
        A(f'v_add_f32 v{s}, v{s}, v{t}')
        fill = [f'v_cvt_pk_bf16_f32 v{x+i}, v{u+2*i}, v{u+2*i+1}' for i in range(4)]
        for i in range(4): fill += [f'v_lshlrev_b32 v{u+2*i}, 16, v{x+i}', f'v_and_b32 v{u+2*i+1}, 0xffff0000, v{x+i}']
        fill.append(f'v_mul_f32 v{dl}, v{dl}, v{dl}')
        for r in (8, 4, 2, 1):
            A(fill.pop(0)); A(fill.pop(0))
            A(f'v_add_f32_dpp v{s}, v{s}, v{s} row_ror:{r} {FULL}')
        for sw in (16, 32):
            A(f'v_mov_b32 v{t}, v{s}'); A(fill.pop(0)); A(fill.pop(0))
            A(f'v_permlane{sw}_swap_b32 v{s}, v{t}\nv_add_f32 v{s}, v{s}, v{t}')
        A(fill.pop(0))
        A(f'v_mul_f32 v{s}, 0x3b000000, v{s}\nv_sub_f32 v{s}, v{s}, v{dl}\nv_max_f32 v{s}, 0, v{s}')
        rnd(s)
        A(f'v_add_f32 v{s}, {EPS:#x}, v{s}'); rnd(s)
        A(f'v_sqrt_f32 v{s}, v{s}'); rnd(s)
        A(f'v_rcp_f32 v{s}, v{s}')
        for i in range(8): A(f'v_mul_f32 v{u+i}, v{u+i}, v{s}')
        for i in range(4): A(f'v_cvt_pk_bf16_f32 v{x+i}, v{u+2*i}, v{u+2*i+1}')
    def afrag(dst, src, par):
        for w in range(4): A(f'v_perm_b32 v{dst+w}, v{src}, v{src}, v{40+4*par+w}')
    def bcast(src, dst, bank):
        return [f'v_mov_b32_dpp v{dst+i}, v{src} row_newbcast:{i} row_mask:0xf bank_mask:{bank:#x}' for i in range(16)]
    def tagreg(dst, addr, bits):
        A(f'v_lshrrev_b32 v{dst}, 1, v{addr}\nv_xor_b32 v{dst}, v{dst}, v{addr}\nv_bfe_u32 v{dst}, v{dst}, 4, 1\nv_lshlrev_b32 v{dst}, {bits-1}, v{dst}\nv_xor_b32 v{dst}, s3, v{dst}')
        if bits == 4: A(f'v_xor_b32 v{dst}, 4, v{dst}')
        A(f'v_and_b32 v{dst}, {(1 << bits) - 1}, v{dst}')
    def tagmask(dst, addr):
        A(f'v_and_b32 v{dst}, 15, v{addr}\nv_cmp_eq_u32 vcc, 0, v{dst}\nv_cndmask_b32 v{dst}, 0, v11, vcc')
    def gather(load, n, t, issued=False):
        x, y, T, d = 96, 120, 8, 16
        L, Lc, Lo = lab('again'), lab('chk'), lab('ok')
        A(f'; repeat the round until word 0 of every granule carries the tag, then sum the partials\ns_mov_b32 s62, {SPIN}')
        if issued: A(f's_branch {Lc}')
        A(f'{L}:')
        load()
        A(f's_sub_u32 s62, s62, 1\ns_cbranch_scc1 {Lo}\n{Lc}:')
        for i in range(n):
            if i % 2 == 0: A(f's_waitcnt vmcnt({n-2-i})')
            A(f'v_xor_b32 v{y+i}, v{x+4*i}, v{T}')
            if i % 2 == 1:
                dd = d + 2 * (i - 1)
                if i == 1: A(f'v_or_b32 v{t}, v{y}, v{y+1}')
                elif i < n - 1: A(f'v_or3_b32 v{t}, v{t}, v{y+i-1}, v{y+i}')
                else: A(f'v_or_b32 v{t}, v{t}, v{y+i-1}\nv_bitop3_b32 v{t}, v{t}, v{y+i}, v11 bitop3:0xa8\nv_cmp_ne_u32 vcc, 0, v{t}')
                A(f'v_pk_add_f32 v[{dd+2}:{dd+3}], v[{x+4*i-2}:{x+4*i-1}], v[{x+4*i+2}:{x+4*i+3}]')
                if i == n - 1: A(f's_cbranch_vccnz {L}\n{Lo}:')
                A(f'v_add_f32 v{dd}, v{y+i-1}, v{y+i}\nv_add_f32 v{dd+1}, v{x+4*i-3}, v{x+4*i+1}')
                if i > 1:
                    for r in (2, 0): A(f'v_pk_add_f32 v[{d+r}:{d+r+1}], v[{d+r}:{d+r+1}], v[{dd+r}:{dd+r+1}]')
        A(f'v_permlane32_swap_b32 v{d}, v{d+2}\nv_permlane32_swap_b32 v{d+1}, v{d+3}')
        A(f'v_pk_add_f32 v[{d}:{d+1}], v[{d}:{d+1}], v[{d+2}:{d+3}]')
    def ldsspin(reads, test, slp=0):
        L, Ld = lab('spin'), lab('spun')
        A(f's_mov_b32 s62, {SPIN}\n{L}:')
        if slp: A(f's_sleep {slp}')
        A(f'{reads}\ns_waitcnt lgkmcnt(0)\n{test}\ns_cbranch_vccz {Ld}\ns_sub_u32 s62, s62, 1\ns_cbranch_scc0 {L}\n{Ld}:')
    def stream(hooks, extra_at):
        A(f'; 16 tiles of 8 keys x 256 B, at most {THR} loads in flight per wave')
        for i in range(16):
            if i: A('s_addk_i32 s33, 0x100\ns_bitset0_b32 s33, 12')
            if 2 * i >= THR:
                A(f's_waitcnt vmcnt({THR - 2 + (1 if 2 * i - (THR - 2) < extra_at <= 2 * i else 0)})')
            for hf in range(2):
                A(f'buffer_load_dwordx4 v[{128+8*i+4*hf}:{131+8*i+4*hf}], v2, s[36:39], s33 offen offset:{128*hf} nt')
                if 2 * i + hf + 1 in hooks: A(hooks[2 * i + hf + 1])

    for ln in open('cdna_kernels/' + NAME + '.s.ref').read().split('\n'):
        if ln.startswith('; @launch'): A.raw(f'; @launch grid=(256,1,1) block=(512,1,1) lds={LDS_BYTES}'); break
        A.raw(ln)
    A.raw(DOC)
    A.raw(f'.amdgcn_target "amdgcn-amd-amdhsa--gfx950"\n.text\n.globl {NAME}_kernel\n.p2align 12\n.p2align 8\n.type {NAME}_kernel,@function\n{NAME}_kernel:')

    if span: A('s_memrealtime s[98:99]')
    A(f'''s_load_dwordx16 s[4:19], s[0:1], 0
s_load_dwordx8 s[20:27], s[0:1], 64
s_getpc_b64 s[40:41]
L_pc:
v_lshrrev_b32 v1, 6, v0
s_lshr_b32 s30, s2, 3                ; k
v_readfirstlane_b32 s28, v1          ; wave
v_and_b32 v0, 63, v0                 ; lane
s_cmp_ge_u32 s2, 256
s_cbranch_scc1 L_exit
s_lshl3_add_u32 s43, s30, s28
s_lshl_b32 s43, s43, 6
v_mov_b32 v1, s43
global_load_dword v1, v1, s[40:41]
s_and_b32 s29, s2, 7                 ; g
s_and_b32 s31, s30, 3
s_lshl2_add_u32 s31, s29, s31        ; head
s_lshr_b32 s32, s30, 2
v_lshrrev_b32 v3, 3, v0              ; lane >> 3
v_and_b32 v4, 7, v0
v_lshlrev_b32 v4, 4, v4              ; (lane & 7) * 16
v_lshl_add_u32 v2, v3, 12, v4
v_lshlrev_b32 v5, 4, v0              ; lane * 16
s_and_b32 s63, s28, 3
s_lshl2_add_u32 s33, s31, s32
s_add_u32 s33, s33, s29
s_and_b32 s33, s33, 15
s_lshl_b32 s33, s33, 8
s_lshl_b32 s34, s31, 6
s_add_u32 s34, s34, s32
s_add_u32 s34, s34, 56
s_lshl2_add_u32 s34, s34, s63
s_lshl_b32 s34, s34, 15
s_mov_b32 s38, 0x8000
s_mov_b32 s39, 0x20000
s_cmp_lt_u32 s28, 4
s_cbranch_scc1 L_kwave
s_setprio 3
s_lshl_b32 s35, s32, 5
s_add_u32 s35, s35, s63
s_lshl_b32 s35, s35, 6
s_add_u32 s35, s35, s31
s_lshl_b32 s35, s35, 8
v_lshl_add_u32 v6, v3, 16, v4
v_add_u32 v12, 0x2000, v6
v_subrev_u32 v13, 12, v0
v_ashrrev_i32 v13, 31, v13
v_lshlrev_b32 v14, 2, v0
ds_write_b32 v14, v13 offset:{L_SY}
s_waitcnt lgkmcnt(0)
global_load_dwordx4 v[24:27], v5, s[4:5]
s_load_dword s3, s[26:27], {WS_E:#x}
s_add_u32 s10, s10, s35
s_addc_u32 s11, s11, 0''')
    for n in range(2):
        for hf in range(2): A(f'global_load_dwordx4 v[{64+8*n+4*hf}:{67+8*n+4*hf}], v{(6, 12)[n]}, s[10:11] offset:{128*hf} nt')
    A('s_barrier\ns_branch L_vwave')

    A('''L_kwave:
s_setprio 2
s_waitcnt lgkmcnt(0)
s_add_u32 s36, s6, s34
s_addc_u32 s37, s7, 0''')
    qload = 'global_load_dwordx4 v[16:19], v6, s[44:45] sc1'
    stream({KPRE: f's_load_dword s3, s[26:27], {WS_E:#x}\ns_barrier',
            8: '''s_lshl_b32 s34, s31, 6
s_add_u32 s34, s34, s28
s_lshl_b32 s34, s34, 7
s_add_u32 s44, s26, s34
s_addc_u32 s45, s27, 0
v_lshl_add_u32 v6, v3, 10, v4''',
            QPOS: qload + '   ; 32 columns of the 8 partial q records'}, QPOS)
    A(f'''v_lshrrev_b32 v12, 5, v0             ; lane >> 5
v_and_b32 v13, 31, v0
v_lshlrev_b32 v13, 4, v13            ; (lane & 31) * 16
s_and_b32 s34, s28, 1
s_lshl_b32 s34, s34, 7
s_and_b32 s35, s28, 2
s_lshl1_add_u32 s34, s35, s34
v_bfe_u32 v14, v0, 4, 1
v_lshl_add_u32 v14, v12, 2, v14
v_lshlrev_b32 v14, 1, v14
v_add3_u32 v14, v14, v4, s34
v_mov_b32 v24, {L_SY}
v_mov_b32 v25, 1
s_lshl_b32 s34, s28, 2
v_mov_b32 v26, s34
s_waitcnt lgkmcnt(0)
s_add_u32 s3, s3, {EPOCH_STEP:#x}''')
    tagreg(8, 5, 4)
    A(f's_waitcnt vmcnt({GOW})\nds_write_b32 v26, v25 offset:{L_SY+64}')
    A(f's_mov_b32 s62, {SPIN}\nL_qchk:')
    for i in range(4): A(f'v_xor_b32 v{20+i}, v{16+i}, v8')
    A('v_or3_b32 v15, v20, v21, v22\nv_bitop3_b32 v15, v15, v23, 15 bitop3:0xa8\nv_cmp_ne_u32 vcc, 0, v15\ns_cbranch_vccnz L_qagain\nL_qok:')
    cold.append(lambda: A(f'L_qagain:\n{qload}\ns_sub_u32 s62, s62, 1\ns_waitcnt vmcnt(0)\ns_cbranch_scc0 L_qchk\ns_branch L_qok'))
    A(f'''v_permlane32_swap_b32 v20, v22
v_permlane32_swap_b32 v21, v23
v_add_f32 v20, v20, v22
v_add_f32 v21, v21, v23
v_permlane16_swap_b32 v20, v21
v_add_f32 v20, v20, v21
v_add_f32_dpp v20, v20, v20 row_ror:8 {FULL}
v_cvt_pk_bf16_f32 v20, v20, v20
ds_write_b16 v14, v20 offset:{L_Q}
s_mov_b64 exec, 1
s_waitcnt lgkmcnt(0)
ds_add_u32 v24, v25 offset:52
s_mov_b64 exec, -1''')
    ldsspin('ds_read_b32 v15, v24 offset:52', 'v_cmp_ne_u32 vcc, 4, v15')
    A(f'ds_read_b128 v[16:19], v4 offset:{L_Q}\nds_read_b128 v[20:23], v4 offset:{L_Q+128}\ns_waitcnt lgkmcnt(0)')
    for i0 in range(0, 16, 4):
        if i0 == 12: A('s_waitcnt vmcnt(0)')
        for e in range(8):
            for i in range(i0, i0 + 4):
                A(f'v_dot2_f32_bf16 v{32+i}, v{128+8*i+e}, v{16+e}, {"v%d" % (32+i) if e else 0}')
    for i in range(8): A(f'v_add_f32_dpp v{32+i}, v{32+i}, v{32+i} row_half_mirror row_mask:0xf bank_mask:0x5')
    for i in range(8): A(f'v_add_f32_dpp v{32+i}, v{40+i}, v{40+i} row_half_mirror row_mask:0xf bank_mask:0xa')
    A('s_mov_b32 vcc_lo, 0xcccccccc\ns_mov_b32 vcc_hi, 0xcccccccc')
    for i in range(4): A(f'v_cndmask_b32 v{40+i}, v{36+i}, v{32+i}, vcc\nv_cndmask_b32 v{32+i}, v{32+i}, v{36+i}, vcc')
    for i in range(4): A(f'v_add_f32_dpp v{32+i}, v{40+i}, v{32+i} quad_perm:[2,3,0,1] {FULL}')
    A('s_mov_b32 vcc_lo, 0xaaaaaaaa\ns_mov_b32 vcc_hi, 0xaaaaaaaa')
    for i in range(2): A(f'v_cndmask_b32 v{40+i}, v{34+i}, v{32+i}, vcc\nv_cndmask_b32 v{32+i}, v{32+i}, v{34+i}, vcc')
    for i in range(2): A(f'v_add_f32_dpp v{32+i}, v{40+i}, v{32+i} quad_perm:[1,0,3,2] {FULL}')
    r2 = 'v_cvt_pk_bf16_f32 v34, v32, v33\nv_lshlrev_b32 v32, 16, v34\nv_and_b32 v33, 0xffff0000, v34'
    A(f'{r2}\nv_mul_f32 v32, {SCALE:#x}, v32\nv_mul_f32 v33, {SCALE:#x}, v33\n{r2}       ; v32, v33 = two scores per lane')
    A('v_max_f32 v34, v32, v33')
    wred('v_max_f32', 34, 36)
    A(f'''v_sub_f32 v35, v32, v34
v_sub_f32 v36, v33, v34
v_mul_f32 v35, {LOG2E:#x}, v35
v_mul_f32 v36, {LOG2E:#x}, v36
v_exp_f32 v35, v35
v_exp_f32 v36, v36
v_add_f32 v35, v35, v36''')
    wred('v_add_f32', 35, 36)
    A(f'''s_lshl_b32 s34, s29, 8
s_add_u32 s34, s34, {WS_X}
v_lshrrev_b32 v10, 2, v13
v_add_u32 v10, s34, v10
global_load_dword v9, v10, s[26:27] sc1
v_min_u32 v34, -2, v34
v_min_u32 v35, -2, v35
v_lshl_add_u32 v37, v26, 1, v24
ds_write_b64 v37, v[34:35]
s_cmp_lg_u32 s28, 0
s_cbranch_scc1 L_mlwait''')
    ldsspin('ds_read_b128 v[40:43], v24\nds_read_b128 v[44:47], v24 offset:16',
            'v_max3_u32 v37, v40, v41, v42\nv_max3_u32 v37, v37, v43, v44\nv_max3_u32 v37, v37, v45, v46\nv_max_u32 v37, v37, v47\nv_cmp_eq_u32 vcc, -1, v37')
    A(f'''s_lshl_b32 s35, s31, 8
s_add_u32 s35, s35, {WS_ML}
v_max3_f32 v48, v40, v42, v44
v_max_f32 v48, v48, v46''')
    for w in range(4): A(f'v_sub_f32 v{40+2*w}, v{40+2*w}, v48')
    for w in range(4): A(f'v_mul_f32 v{40+2*w}, {LOG2E:#x}, v{40+2*w}')
    for w in range(4): A(f'v_exp_f32 v{40+2*w}, v{40+2*w}')
    A('v_mov_b32 v49, s3\nv_mov_b32 v51, s3\nv_mul_f32 v50, v40, v41')
    for w in range(1, 4): A(f'v_fmac_f32 v50, v{40+2*w}, v{41+2*w}')
    A(f'''s_lshl4_add_u32 s34, s32, s35
v_mov_b32 v37, s34
s_mov_b64 exec, 1
global_store_dwordx4 v37, v[48:51], s[26:27] sc1
s_mov_b64 exec, -1
s_mov_b32 s62, {SPIN}
L_ml:
s_sleep 2
s_load_dwordx16 s[64:79], s[26:27], s35 glc
s_load_dwordx16 s[80:95], s[26:27], s35 offset:64 glc
s_waitcnt lgkmcnt(0)
s_and_b32 s34, s65, s3
s_or_b32 s47, s65, s3''')
    for i in range(1, 16): A(f's_and_b32 s34, s34, s{65+2*i}\ns_or_b32 s47, s47, s{65+2*i}')
    A('s_cmp_eq_u32 s34, s47\ns_cbranch_scc1 L_mlgot\ns_sub_u32 s62, s62, 1\ns_cbranch_scc0 L_ml\nL_mlgot:\nv_mov_b32 v34, s64')
    for c in range(1, 8): A(f'v_max_f32 v34, s{64+4*c}, v34')
    for c in range(8): A(f'v_sub_f32 v{40+c}, s{64+4*c}, v34')
    for c in range(8): A(f'v_mul_f32 v{40+c}, {LOG2E:#x}, v{40+c}')
    for c in range(8): A(f'v_exp_f32 v{40+c}, v{40+c}')
    A('v_mul_f32 v35, s66, v40')
    for c in range(1, 8): A(f'v_fmac_f32 v35, s{66+4*c}, v{40+c}')
    A('''v_rcp_f32 v35, v35
v_min_u32 v34, -2, v34
v_min_u32 v35, -2, v35
ds_write_b64 v24, v[34:35] offset:32
s_branch L_mlok
L_mlwait:''')
    ldsspin('ds_read_b64 v[34:35], v24 offset:32', 'v_max_u32 v37, v34, v35\nv_cmp_eq_u32 vcc, -1, v37', 1)
    A(f'''L_mlok:
v_sub_f32 v32, v32, v34
v_sub_f32 v33, v33, v34
v_mul_f32 v32, {LOG2E:#x}, v32
v_mul_f32 v33, {LOG2E:#x}, v33
v_exp_f32 v32, v32
v_exp_f32 v33, v33
s_lshl_b32 s34, s28, 8
v_lshl_add_u32 v36, v0, 2, s34
v_mul_f32 v32, v32, v35
v_mul_f32 v33, v33, v35
v_cvt_pk_bf16_f32 v32, v32, v33
ds_write_b32 v36, v32 offset:{L_P}
s_getreg_b32 s34, hwreg(HW_REG_XCC_ID, 0, 4)
s_andn2_b32 s35, s3, 31
s_or_b32 s34, s34, s35
s_or_b32 s35, s34, 16
s_waitcnt vmcnt(0)
v_cmp_eq_u32 s[48:49], s34, v9
v_cmp_eq_u32 s[50:51], s35, v9
s_bcnt1_i32_b32 s48, s48
s_bcnt1_i32_b32 s50, s50
s_cmp_gt_u32 s50, s48
s_cselect_b32 s34, 0x2000, 0
v_mov_b32 v10, s34''')
    tagreg(8, 5, 8)
    A(f'''v_mov_b32 v11, 0xff
s_lshl_b32 s47, s28, 13
s_add_u32 s47, s47, {L_W}
v_lshrrev_b32 v14, 4, v0             ; lane >> 4
s_lshr_b32 s34, s30, 1
s_and_b32 s35, s30, 1
s_lshl4_add_u32 s30, s35, s34        ; r
s_waitcnt lgkmcnt(0)
s_cmp_ge_u32 s30, 16
s_cbranch_scc1 L_notw''')

    A(f'''; role W: wave w owns head 4g + w, columns 32r .. 32r + 31 of wo
s_lshl2_add_u32 s34, s29, s28
s_lshl_b32 s35, s34, 13
s_add_u32 s44, s26, s35
s_addc_u32 s45, s27, 0
v_lshl_add_u32 v6, v12, 12, v13
s_lshl_b32 s34, s34, 17
s_lshl_b32 s35, s30, 6
s_add_u32 s34, s34, s35
s_add_u32 s40, s12, s34
s_addc_u32 s41, s13, 0
s_mov_b32 s42, {127*1024+64}
s_mov_b32 s43, 0x20000
v_and_b32 v32, 1, v14
v_bfe_u32 v15, v0, 3, 1
v_lshl_add_u32 v15, v15, 2, v14
v_bfe_u32 v33, v0, 2, 1
v_lshl_add_u32 v15, v15, 1, v33
v_lshlrev_b32 v33, 1, v32
v_and_b32 v34, 3, v0
v_xor_b32 v33, v33, v34
v_lshlrev_b32 v33, 4, v33
v_lshl_add_u32 v15, v15, 10, v33
v_lshrrev_b32 v33, 2, v0
v_lshlrev_b32 v33, 6, v33
v_lshl_add_u32 v33, v34, 3, v33
v_lshl_add_u32 v33, v32, 5, v33
v_add_u32 v33, s47, v33
v_xor_b32 v34, 32, v33
v_add_u32 v37, v26, v13
v_add_u32 v37, {L_RED}, v37
s_and_b32 s34, s29, 4
s_add_u32 s34, s34, s29
s_lshl4_add_u32 s34, s34, s30
s_lshl_b32 s34, s34, 7
s_add_u32 s34, s34, {WS_B}
s_add_u32 s56, s26, 0x8000
s_addc_u32 s57, s27, 0
s_add_u32 s58, s26, 0x10000
s_addc_u32 s59, s27, 0
s_add_u32 s68, s26, 0x18000
s_addc_u32 s69, s27, 0
v_lshrrev_b32 v38, 2, v13
v_lshl_add_u32 v38, v12, 13, v38
v_add_u32 v38, s34, v38''')
    tagreg(9, 38, 8)
    tagmask(10, 38)
    A('s_and_b32 s60, s30, 1\ns_lshl_b32 s61, s60, 16\ns_lshl_b32 s60, s60, 7\nv_xor_b32 v6, s60, v6')
    A(f'''s_mul_i32 s34, s30, {88*128}
s_mul_i32 s35, s29, {176*1024}
s_add_u32 s34, s34, s35
v_lshl_add_u32 v35, v0, 7, s34
v_add_u32 v36, 0x2000, v35
v_min_u32 v35, {1376*1024-4}, v35
v_min_u32 v36, {1376*1024-4}, v36''')
    for n in range(8):
        if n == 0: A(BAR12)
        if n == 2: A(BAR3)
        A(f's_add_u32 m0, s47, {1024*n}\ns_xor_b32 s34, s61, {16384*n}')
        A('buffer_load_dwordx4 v15, s[40:43], s34 offen lds')
    def aload():
        for n in range(4): A(f'global_load_dwordx4 v[{96+4*n}:{99+4*n}], v6, s[44:45] offset:{1024*n} sc1')
    aload()
    for t in range(4):
        A(f's_waitcnt vmcnt({10-2*t})')
        for cb in range(2):
            for hf in range(2):
                r = 128 + 8 * t + 4 * cb + 2 * hf
                A(f'ds_read_b64_tr_b16 v[{r}:{r+1}], v{33+cb} offset:{1024*(2*t+hf)}')
    gather(aload, 4, 39, issued=True)
    A('v_cvt_pk_bf16_f32 v16, v16, v17\ns_waitcnt lgkmcnt(0)')
    mv = bcast(16, 64, 0xf)
    for o in mv[:6]: A(o)
    mv = mv[6:]
    for t in range(4):
        for cb in range(2):
            c = f'v[{40+4*cb}:{43+4*cb}]'
            A(f'v_mfma_f32_16x16x32_bf16 {c}, v[{64+4*t}:{67+4*t}], v[{128+8*t+4*cb}:{131+8*t+4*cb}], {c if t else 0}')
            for o in mv[:2]: A(o)
            mv = mv[2:]
    A(f'''; the wave that finds all four partials published sums them and stores the record
s_mov_b64 exec, 0xffff
ds_write2_b32 v37, v40, v44 offset0:0 offset1:64
ds_write_b32 v26, v11 offset:{L_SY+96}
s_mov_b64 exec, -1
ds_read_b128 v[20:23], v24 offset:96
ds_read_b128 v[16:19], v13 offset:{L_RED}
s_waitcnt lgkmcnt(1)
v_min3_u32 v20, v20, v21, v22
v_min_u32 v20, v20, v23
v_cmp_ne_u32 vcc, 0, v20
s_waitcnt lgkmcnt(0)
v_pk_add_f32 v[16:17], v[16:17], v[18:19]
s_mov_b64 exec, vcc
v_add_f32 v16, v16, v17
v_bfi_b32 v16, v10, v9, v16
global_store_dword v38, v16, s[26:27] sc1
global_store_dword v38, v16, s[56:57] sc1
global_store_dword v38, v16, s[58:59] sc1
global_store_dword v38, v16, s[68:69] sc1
global_load_dword v62, v35, s[20:21]
s_and_b32 exec_lo, exec_lo, 0xffffff
s_mov_b32 exec_hi, 0
global_load_dword v62, v36, s[20:21]''')
    finish()

    A(f'''L_notw:
s_and_b32 s34, s30, 15
s_lshl2_add_u32 s34, s34, s28
s_andn2_b32 s35, s34, 7
s_add_u32 s35, s35, s34
s_add_u32 s35, s35, 8
s_lshl_b32 s64, s29, 7
s_add_u32 s35, s35, s64
s_lshl_b32 s35, s35, 12
v_lshl_add_u32 v127, v0, 7, s35
s_lshr_b32 s34, s34, 1
s_lshl_b32 s34, s34, 4
v_lshrrev_b32 v61, 2, v0
v_add_u32 v61, s34, v61
v_mul_u32_u24 v61, 2752, v61
v_and_b32 v15, 3, v0
v_lshlrev_b32 v62, 7, v15
v_min_u32 v62, 348, v62
s_mul_i32 s34, s29, 352
v_add3_u32 v61, v61, v62, s34
s_bitcmp1_b32 s28, 0
s_cselect_b32 s64, s18, s16
s_cselect_b32 s65, s19, s17
s_mov_b32 s66, {512*2752}
s_mov_b32 s67, 0x20000
s_cmp_lt_u32 s30, 27
s_cbranch_scc1 L_rolef''')
    def bars():
        A(f'''{BAR12}
s_mov_b32 exec_hi, 0
global_load_dword v62, v127, s[12:13]
s_mov_b32 exec_hi, -1
{BAR3}
buffer_load_dword v62, v61, s[64:67], 0 offen''')

    A(f'''s_cmp_lt_u32 s30, 28
s_cbranch_scc1 L_norole
s_cmp_lg_u32 s28, 0
s_cbranch_scc1 L_norole
s_lshl2_add_u32 s63, s29, s30
s_sub_u32 s63, s63, 28
s_lshr_b32 s34, s63, 1
s_xor_b32 s34, s34, s63
s_and_b32 s34, s34, 2
s_mul_i32 s34, s34, 3
s_xor_b32 s63, s63, s34
s_lshl_b32 s34, s63, 6
s_add_u32 s34, s34, {WS_C}
v_lshrrev_b32 v44, 2, v0
v_and_b32 v45, 12, v44
v_add_u32 v44, v44, v45
v_lshl_add_u32 v44, v44, 11, v10
v_lshl_add_u32 v44, v15, 4, v44
v_add_u32 v44, s34, v44''')
    for n in range(1, 6): A(f'v_add_u32 v{44+n}, {65536*n}, v44')
    A(f'''s_lshr_b32 s34, s63, 3
s_lshl_b32 s34, s34, 7
s_and_b32 s35, s63, 3
s_lshl_b32 s35, s35, 5
s_add_u32 s34, s34, s35
s_and_b32 s35, s63, 4
s_add_u32 s34, s34, s35
v_lshl_add_u32 v51, v15, 3, v14
v_add_lshl_u32 v51, v51, s34, 1
global_load_ushort v43, v51, s[4:5]
s_lshl_b32 s34, s34, 2
s_and_b32 s35, s29, 3
s_lshl_b32 s35, s35, 15
s_add_u32 s34, s34, s35
s_add_u32 s34, s34, {WS_B}
v_bfe_u32 v50, v0, 2, 3
v_and_b32 v52, 4, v50
v_add_u32 v50, v50, v52
v_lshl_add_u32 v50, v50, 11, v10
v_lshl_add_u32 v50, v15, 5, v50
v_add_u32 v50, s34, v50
v_mov_b32 v52, {WS_E}
v_mov_b32 v53, s3''')
    tagreg(9, 50, 8)
    A('v_mov_b32 v116, v8\nv_mov_b32 v117, 0\nv_mov_b32 v118, 0\nv_mov_b32 v119, 0')
    A('v_mov_b32 v36, v9\nv_mov_b32 v37, 0\nv_mov_b32 v38, 0\nv_mov_b32 v39, 0')
    bars()
    def cload():
        for n in range(6): A(('s_mov_b64 exec, 0xffffff\n' if n == 5 else '') + f'global_load_dwordx4 v[{96+4*n}:{99+4*n}], v{44+n}, s[26:27] sc1')
        A('s_mov_b64 exec, -1')
    cload()
    A(f'''; h = x + o @ wo for these columns
s_mov_b32 s62, {SPIN}
L_rb:
s_sleep 1
s_mov_b32 exec_hi, 0
global_load_dwordx4 v[36:39], v50, s[26:27] sc1
s_mov_b32 exec_hi, -1
s_sub_u32 s62, s62, 1
s_cbranch_scc1 L_rbok
s_waitcnt vmcnt(0)
v_xor_b32 v40, v36, v9
v_and_b32 v42, v11, v40
v_cmp_ne_u32 vcc, 0, v42
s_cbranch_vccnz L_rb
L_rbok:
s_cmp_eq_u32 s63, 0
s_cselect_b32 exec_lo, 1, 0
s_mov_b32 exec_hi, 0
global_store_dword v52, v53, s[26:27] sc1
s_mov_b64 exec, -1
v_permlane32_swap_b32 v40, v38
v_permlane32_swap_b32 v37, v39
v_permlane16_swap_b32 v40, v37
v_add_f32 v40, v40, v37
v_lshlrev_b32 v43, 16, v43
v_add_f32_dpp v40, v40, v40 row_ror:8 {FULL}
v_add_f32_dpp v40, v40, v40 row_ror:4 {FULL}
v_add_f32 v40, v40, v43''')
    rnd(40)
    gather(cload, 6, 42)
    A(f'''v_permlane16_swap_b32 v16, v17
v_add_f32 v16, v16, v17
v_add_f32_dpp v16, v16, v16 row_ror:8 {FULL}
v_add_f32_dpp v16, v16, v16 row_ror:4 {FULL}
s_mov_b32 exec_lo, 0x000f000f
v_add_f32 v16, v16, v40
s_mov_b32 exec_hi, 0x000f000f
v_cvt_pk_bf16_f32 v16, v16, v16
global_store_short v51, v16, s[22:23]''')
    finish(1)
    A('L_norole:')
    bars()
    finish()

    A(f'''.p2align 12
L_rolef:
s_mul_i32 s63, s29, 11
s_add_u32 s63, s63, s30
s_sub_u32 s63, s63, 16
s_cmp_ge_u32 s63, 86
s_cbranch_scc1 L_norole
s_mul_i32 s34, s28, {128*2752}
s_lshl_b32 s35, s63, 5
s_add_u32 s34, s34, s35
s_add_u32 s36, s16, s34
s_addc_u32 s37, s17, 0
s_mov_b32 s38, {127*2752+32}
s_mov_b32 s39, 0x20000
s_add_u32 s40, s18, s34
s_addc_u32 s41, s19, 0
s_mov_b32 s42, {127*2752+32}
s_mov_b32 s43, 0x20000
s_lshl_b32 s34, s63, 14
s_lshl_b32 s35, s28, 8
s_add_u32 s34, s34, s35
s_add_u32 s20, s20, s34
s_addc_u32 s21, s21, 0
s_add_u32 s4, s4, s35
s_addc_u32 s5, s5, 0
s_and_b32 s34, s29, 3
s_lshl_b32 s34, s34, 15
s_lshl1_add_u32 s34, s35, s34
s_add_u32 s34, s34, {WS_B+4096}
s_add_u32 s44, s26, s34
s_addc_u32 s45, s27, 0
v_lshl_add_u32 v6, v12, 14, v13
v_add_u32 v6, v6, v10
v_and_b32 v58, 12, v0
v_add_u32 v58, v58, v14
v_mul_u32_u24 v58, 80, v58
v_lshl_add_u32 v58, v15, 4, v58
v_bfe_u32 v15, v0, 3, 1
v_lshl_add_u32 v15, v15, 3, v12
v_bfe_u32 v33, v0, 2, 1
v_lshl_add_u32 v15, v15, 1, v33
v_bfe_u32 v33, v0, 4, 1
v_lshl_add_u32 v15, v15, 1, v33
v_bfe_u32 v33, v0, 1, 1
v_lshl_add_u32 v15, v15, 1, v33
v_mul_u32_u24 v15, 2752, v15
v_and_b32 v40, 1, v0
v_lshlrev_b32 v40, 4, v40
v_add_u32 v15, v15, v40
v_lshl_add_u32 v33, v0, 3, s47
v_lshrrev_b32 v36, 1, v13
v_lshl_add_u32 v36, v12, 2, v36
global_load_dword v32, v36, s[4:5]
v_and_b32 v38, 15, v0
v_lshlrev_b32 v34, 4, v38
v_lshl_add_u32 v34, v14, 10, v34
v_add_u32 v34, 0x1000, v34
v_add_u32 v35, 0x2000, v34
s_lshl_b32 s34, s28, 3
v_lshl_add_u32 v60, v12, 2, s34
s_add_u32 s34, s34, {L_OP}
v_mul_u32_u24 v57, 80, v38
v_add_u32 v57, s34, v57
v_lshl_add_u32 v57, v14, 2, v57
s_andn2_b32 s34, s63, 3
s_add_u32 s34, s34, s63
s_lshl2_add_u32 s34, s34, s28
s_lshl_b32 s34, s34, 9
s_add_u32 s34, s34, {WS_C}
v_lshl_add_u32 v59, v12, 13, v13
v_add_u32 v59, s34, v59
v_mov_b32 v44, 0x3f803f80
v_mov_b32 v63, {L_RED}
v_mov_b32 v46, {EPS:#x}
v_mov_b32 v41, 0xffff
v_lshlrev_b32 v40, v40, v41
v_bfe_u32 v41, v0, 1, 2
s_mov_b32 s60, 1
s_mov_b32 s61, 1''')
    for i in range(16): A(f'v_mov_b32 v{72+i}, v44')
    for w in range(4): A(f'v_cmp_eq_u32 vcc, {w}, v41\nv_cndmask_b32 v{48+w}, 0, v40, vcc')
    bars()
    for t in range(4):
        for m in range(2):
            A(f's_add_u32 m0, s47, {4096*m+1024*t}\ns_mov_b32 s34, {16*t*2752}')
            A(f'buffer_load_dwordx4 v15, s[{36+4*m}:{39+4*m}], s34 offen lds')
    def bload():
        for n in range(4): A(f'global_load_dwordx4 v[{96+4*n}:{99+4*n}], v6, s[44:45] offset:{2048*n-4096} sc1')
    for t in range(4):
        A(f's_waitcnt vmcnt({6-2*t})')
        if t == 3: bload()
        for m in range(2):
            for hf in range(2):
                r = 128 + 16 * m + 4 * t + 2 * hf
                A(f'ds_read_b64_tr_b16 v[{r}:{r+1}], v33 offset:{4096*m+1024*t+512*hf}')
        if t == 0: A('v_and_b32 v41, 0xffff0000, v32\nv_lshlrev_b32 v40, 16, v32')
    gather(bload, 4, 42, issued=True)
    A('''; h @ W with LN folded in: A rows 4-7 stay all ones and yield the column sums; moments of h on the side
v_pk_add_f32 v[16:17], v[16:17], v[40:41]
v_cvt_pk_bf16_f32 v18, v16, v17
v_dot2_f32_bf16 v16, v18, v44, 0
v_dot2_f32_bf16 v17, v18, v18, 0
s_waitcnt lgkmcnt(0)''')
    op = {f'm{i}': o for i, o in enumerate(bcast(18, 72, 0xd))}
    op.update({f'd{r}': f'v_add_f32_dpp v16, v16, v16 row_ror:{r} {FULL}' for r in (8, 4, 2, 1)})
    op.update({f'L{n}': f'global_load_dwordx4 v[{160+4*n}:{163+4*n}], v{34+(n>>1)}, s[20:21] offset:{4096*(n&1)-4096}' for n in range(4)})
    for n in range(8):
        t, m = n >> 1, n & 1
        c = f'v[{64+4*m}:{67+4*m}]'
        op[f'M{n}'] = f'v_mfma_f32_16x16x32_bf16 {c}, v[{72+4*t}:{75+4*t}], v[{128+16*m+4*t}:{131+16*m+4*t}], {c if t else 0}'
    op.update(S32='v_permlane32_swap_b32 v16, v17', S16='v_permlane16_swap_b32 v16, v17', A='v_add_f32 v16, v16, v17', mv='v_mov_b32 v17, v16',
              wr=f's_mov_b64 exec, s[60:61]\nds_write_b32 v60, v16 offset:{L_RED}\ns_mov_b64 exec, -1', bar='s_waitcnt lgkmcnt(0)\ns_barrier',
              rd='ds_read_b128 v[24:27], v63\nds_read_b128 v[28:31], v63 offset:16')
    for o in 'm0 m1 S32 m2 A m3 m4 d8 M0 m5 d4 m6 M1 d2 m7 m8 d1 mv M2 m9 S16 A wr M3 m10 m11 L0 L1 M4 m12 m13 m14 m15 M5 L2 L3 bar M6 rd M7'.split(): A(op[o])
    A(f'''s_mov_b32 exec_hi, 0
ds_write2_b32 v57, v64, v68 offset0:0 offset1:8
s_mov_b32 exec_hi, -1
s_waitcnt lgkmcnt(1)
v_pk_add_f32 v[24:25], v[24:25], v[26:27]
v_pk_add_f32 v[28:29], v[28:29], v[30:31]
v_pk_add_f32 v[24:25], v[24:25], v[28:29]
s_waitcnt lgkmcnt(0)
s_barrier
ds_read_b128 v[16:19], v58 offset:{L_OP}
v_mul_f32 v24, 0xbb000000, v24       ; -mean
v_fmamk_f32 v28, v25, 0x3b000000, v46
v_fma_f32 v28, -v24, v24, v28
v_max_f32 v28, v28, v46
v_rsq_f32 v29, v28
s_waitcnt lgkmcnt(0)
v_pk_add_f32 v[16:17], v[16:17], v[18:19]
v_fmac_f32 v16, v24, v17
v_rcp_f32 v28, v28
v_mul_f32 v29, {LOG2E ^ 0x80000000:#x}, v29
v_add_f32_dpp v16, v16, v16 quad_perm:[1,0,3,2] {FULL}
v_mul_f32 v17, v16, v29
v_exp_f32 v17, v17
v_mul_f32_dpp v18, v16, v16 quad_perm:[2,3,0,1] {FULL}
v_add_f32 v17, 1.0, v17
v_rcp_f32 v17, v17
v_mul_f32 v18, v18, v28
v_mul_f32 v16, v18, v17
v_cvt_pk_bf16_f32 v16, v16, v16
s_waitcnt vmcnt(0)
; act @ w_down on row-major weights: A holds act on a diagonal''')
    ops = [f'v_and_b32_dpp v{72+4*n+w}, v16, v{48+w} row_newbcast:{4*n} {FULL}' for n in range(4) for w in range(4)]
    for n in range(4):
        for o in ops[(4 * n + 2 if n else 0):4 * n + 6]: A(o)
        A(f'v_mfma_f32_16x16x32_bf16 v[64:67], v[{72+4*n}:{75+4*n}], v[{160+4*n}:{163+4*n}], {"v[64:67]" if n else 0}')
    A('v_bfi_b32 v64, v11, v8, v64\nglobal_store_dwordx4 v59, v[64:67], s[26:27] sc1')
    finish()

    A(f'''.p2align 12
L_vwave:
s_add_u32 s36, s8, s34
s_addc_u32 s37, s9, 0
s_lshl3_add_u32 s35, s31, s32
s_lshl_b32 s35, s35, 10
s_add_u32 s44, s26, s35
s_addc_u32 s45, s27, 0
v_mov_b32 v56, {L_SY}
s_lshr_b32 s56, s2, 6
s_lshl_b32 s56, s56, 7
s_and_b32 s35, s2, 63
s_add_u32 s56, s56, s35
s_lshl_b32 s56, s56, 7
s_add_u32 s56, s56, {WS_PR}
s_cmp_lg_u32 s28, 5
s_cbranch_scc1 L_nowarm
s_load_dword s54, s[26:27], s56 glc
s_load_dword s55, s[26:27], s56 offset:0x2000 glc
L_nowarm:
v_and_b32 v28, 1, v0
v_cmp_eq_u32 vcc, 1, v28
v_mov_b32 v29, 0x0c0c0100
v_mov_b32 v30, 0x01000c0c
v_cndmask_b32 v29, v29, v30, vcc
v_mov_b32 v30, 0x0c0c0302
v_mov_b32 v31, 0x03020c0c
v_cndmask_b32 v30, v30, v31, vcc
v_mov_b32 v31, 0x0c0c0c0c
v_bfe_u32 v28, v0, 1, 2''')
    for w in range(4): A(f'v_cmp_eq_u32 vcc, {w}, v28\nv_cndmask_b32 v{40+w}, v31, v29, vcc\nv_cndmask_b32 v{44+w}, v31, v30, vcc')
    A(f'''s_lshl_b32 s34, s63, 10
s_add_u32 s34, s34, {L_OP}
v_lshrrev_b32 v12, 5, v0
v_lshl_add_u32 v12, v12, 9, s34
v_lshl_add_u32 v12, v4, 1, v12
v_bfe_u32 v13, v0, 4, 1
v_lshl_add_u32 v12, v13, 4, v12
v_lshlrev_b32 v14, 3, v0
s_lshl_b32 s34, s32, 5
s_add_u32 s34, s34, s63
s_lshl_b32 s34, s34, 2
v_lshl_add_u32 v6, v3, 4, s34
v_mov_b32 v57, 1
s_waitcnt vmcnt(4)''')
    layernorm(24, 28)
    A(f'ds_write_b128 v5, v[24:27] offset:{L_H}\ns_waitcnt lgkmcnt(0)\nds_read_b32 v48, v6 offset:{L_H}\ns_add_u32 s3, s3, {EPOCH_STEP:#x}')
    tagreg(8, 14, 4)
    A('s_waitcnt lgkmcnt(0)')
    for n in range(2): afrag(24 + 4 * n, 48, n)
    A('s_waitcnt vmcnt(0)')
    for n in range(2):
        for hf in range(2):
            c = f'v[{16+4*hf}:{19+4*hf}]'
            A(f'v_mfma_f32_16x16x32_bf16 {c}, v[{24+4*n}:{27+4*n}], v[{64+8*n+4*hf}:{67+8*n+4*hf}], {c if n else 0}')
    part_write = '''s_mov_b32 exec_lo, 0x00ff00ff
s_mov_b32 exec_hi, 0xff00ff00
ds_write_b128 v12, v[16:19]
ds_write_b128 v12, v[20:23] offset:256'''
    A(f'''{part_write}
s_mov_b64 exec, 1
s_waitcnt lgkmcnt(0)
ds_add_u32 v56, v57 offset:48
s_mov_b64 exec, -1
s_cmp_lg_u32 s28, 4
s_cbranch_scc1 L_vstream''')
    ldsspin('ds_read_b32 v15, v56 offset:48', 'v_cmp_ne_u32 vcc, 4, v15')
    for n in range(4): A(f'ds_read_b128 v[{16+4*n}:{19+4*n}], v5 offset:{L_OP+1024*n}')
    A('s_waitcnt lgkmcnt(0)')
    for i in (0, 2, 8, 10): A(f'v_pk_add_f32 v[{16+i}:{17+i}], v[{16+i}:{17+i}], v[{20+i}:{21+i}]')
    for i in (0, 2): A(f'v_pk_add_f32 v[{16+i}:{17+i}], v[{16+i}:{17+i}], v[{24+i}:{25+i}]')
    A(f'''v_permlane32_swap_b32 v16, v18
v_permlane32_swap_b32 v17, v19
v_pk_add_f32 v[16:17], v[16:17], v[18:19]
v_and_or_b32 v16, v16, -16, v8
v_and_or_b32 v17, v17, -16, v8
global_store_dwordx2 v14, v[16:17], s[44:45]
L_vstream:
s_setprio 0
s_getreg_b32 s34, hwreg(HW_REG_XCC_ID, 0, 4)
s_andn2_b32 s46, s3, 31
s_or_b32 s46, s46, s34
s_lshl_b32 s47, s29, 8
s_add_u32 s47, s47, {WS_X}
s_cmp_lg_u32 s28, 5
s_cbranch_scc1 L_noprobe
s_mov_b32 s54, -1
s_mov_b32 s55, -1
s_waitcnt lgkmcnt(0)''')
    for i in range(4):
        A(f's_memtime s[50:51]\ns_load_dword s35, s[26:27], s56 offset:{0x2000 * (i & 1)} glc\ns_waitcnt lgkmcnt(0)\ns_memtime s[52:53]\ns_waitcnt lgkmcnt(0)\ns_sub_u32 s35, s52, s50\ns_min_u32 s{54 + (i & 1)}, s{54 + (i & 1)}, s35')
    A(f'''s_cmp_lt_u32 s55, s54
s_cselect_b32 s35, 16, 0
s_or_b32 s34, s46, s35
v_mov_b32 v31, s34
s_lshl2_add_u32 s34, s30, s47
v_mov_b32 v30, s34
s_mov_b64 exec, 1
global_store_dword v30, v31, s[26:27]
s_mov_b64 exec, -1
L_noprobe:
s_lshl_b32 s34, s63, 2
v_mov_b32 v28, s34
v_and_b32 v30, 31, v0
v_lshl_add_u32 v30, v30, 2, s47''')
    ldsspin(f'ds_read_b32 v15, v28 offset:{L_SY+64}', 'v_cmp_eq_u32 vcc, 0, v15', 1)
    stream({XPOS: 'global_load_dword v29, v30, s[26:27] sc1',
            XPOS + THR: '''v_and_b32 v29, -17, v29
v_cmp_ne_u32 s[48:49], s46, v29
s_cmp_eq_u64 s[48:49], 0
s_cselect_b64 s[50:51], -1, 0
s_cselect_b64 s[52:53], 0, -1
s_cbranch_scc0 L_requeue
L_requeued:'''}, XPOS)
    cold.append(lambda: A('''L_requeue:
s_cmp_lg_u32 s28, 4
s_cbranch_scc1 L_requeued
global_store_dwordx2 v14, v[16:17], s[44:45] sc1
s_waitcnt vmcnt(0)
s_branch L_requeued'''))
    A('v_mov_b32 v11, 0xff')
    tagreg(8, 14, 8)
    tagmask(10, 14)
    A(f'''s_lshl_b32 s34, s63, 8
v_lshl_add_u32 v6, v3, 5, s34
s_barrier
ds_read_b128 v[48:51], v6 offset:{L_P}
ds_read_b128 v[52:55], v6 offset:{L_P+16}
s_waitcnt lgkmcnt(0)''')
    for i in range(16): afrag(64 + 4 * i, 48 + i // 2, i & 1)
    for i in range(16):
        for hf in range(2):
            if (i, hf) == (12, 0): A('s_setprio 3')
            if i >= 12: A(f's_waitcnt vmcnt({31-2*i-hf})')
            if (i, hf) == (12, 0): A('s_barrier')
            c = f'v[{16+4*hf}:{19+4*hf}]'
            A(f'v_mfma_f32_16x16x32_bf16 {c}, v[{64+4*i}:{67+4*i}], v[{128+8*i+4*hf}:{131+8*i+4*hf}], {c if i else 0}')
    A(f'''; the wave that finds all four partials published sums them and stores the record
{part_write}
ds_write_b32 v28, v11 offset:{L_SY+80}
s_mov_b64 exec, -1
ds_read_b128 v[32:35], v56 offset:80''')
    for n in range(4): A(f'ds_read_b128 v[{64+4*n}:{67+4*n}], v5 offset:{L_OP+1024*n}')
    A('''s_waitcnt lgkmcnt(4)
v_min3_u32 v32, v32, v33, v34
v_min_u32 v32, v32, v35
v_cmp_ne_u32 vcc, 0, v32
s_waitcnt lgkmcnt(2)
v_pk_add_f32 v[64:65], v[64:65], v[68:69]
v_pk_add_f32 v[66:67], v[66:67], v[70:71]
s_and_b64 s[50:51], s[50:51], vcc
s_and_b64 s[52:53], s[52:53], vcc
s_waitcnt lgkmcnt(0)
v_pk_add_f32 v[72:73], v[72:73], v[76:77]
v_pk_add_f32 v[74:75], v[74:75], v[78:79]
v_pk_add_f32 v[64:65], v[64:65], v[72:73]
v_pk_add_f32 v[66:67], v[66:67], v[74:75]
v_permlane32_swap_b32 v64, v66
v_permlane32_swap_b32 v65, v67
v_pk_add_f32 v[64:65], v[64:65], v[66:67]
v_bfi_b32 v64, v10, v8, v64
s_mov_b64 exec, s[50:51]
global_store_dwordx2 v14, v[64:65], s[44:45]
s_mov_b64 exec, s[52:53]
global_store_dwordx2 v14, v[64:65], s[44:45] sc1
s_barrier''')
    if span == 2: A('s_cmp_lg_u32 s30, 31\ns_cbranch_scc1 L_exit\ns_cmp_lg_u32 s28, 5\ns_cbranch_scc1 L_exit\ns_mov_b32 s28, 1')
    finish(2)
    A(f'L_exit:\ns_endpgm\nL_code_end:\n.fill (L_pc+16384-L_code_end)/4, 4, 0xbf810000')
    A.raw(f'''.section .rodata,"a"
.p2align 6
.amdhsa_kernel {NAME}_kernel
  .amdhsa_next_free_vgpr 256
  .amdhsa_next_free_sgpr 102
  .amdhsa_accum_offset 256
  .amdhsa_group_segment_fixed_size 0
  .amdhsa_kernarg_size 96
  .amdhsa_user_sgpr_count 2
  .amdhsa_user_sgpr_kernarg_segment_ptr 1
  .amdhsa_system_sgpr_workgroup_id_x 1
  .amdhsa_float_denorm_mode_32 3
.end_amdhsa_kernel''')
    return A.text()

if __name__ == '__main__':
    out = sys.argv[1] if len(sys.argv) > 1 else f'cdna_kernels/{NAME}.s'
    open(out, 'w').write(gen(**eval('dict(' + (sys.argv[2] if len(sys.argv) > 2 else '') + ')')))
```

```python
import sys
from asmlib import Asm

NAME = 'sequential_preLN__sliding_block_cached__swiglu_ffn__decode'
WS_QA, WS_B, WS_PR, WS_ML, WS_X, WS_E, WS_C, WS_ST = 0x0, 0x40000, 0x60000, 0x70000, 0x72000, 0x73000, 0x80000, 0x100000
EPOCH_STEP = 0x5bd1e3c7
L_P, L_OP, L_H, L_RED, L_SY, L_Q, L_W = 0x0, 0x400, 0x1400, 0x1800, 0x1a00, 0x1b00, 0x1c00
LDS_BYTES = L_W + 0x8000
SPIN = 0x40000
LOG2E, SCALE, EPS = 0x3fb8aa3b, 0x3db504f3, 0x3727c5ac
FULL = 'row_mask:0xf bank_mask:0xf'
THR, KPRE, QPOS, XPOS, GOW = 8, 2, 24, 16, 8

BAR12 = 's_barrier\ns_barrier'
BAR3 = 's_barrier'

DOC = '''\
;   found nearer. Either copy holds the same data.'''

def gen(span=0, amp=None):
    def P(n):
        return ('s_memrealtime s[96:97]\n' if amp and amp[0] == n else '') + ('s_memrealtime s[100:101]\n' if amp and amp[1] == n else '')
    global BAR12, BAR3
    BAR12 = 's_barrier\n' + P(3) + 's_barrier'
    BAR3 = 's_barrier\n' + P(4)
    A = Asm()
    cold = []
    uid = [0]
    def lab(s):
        uid[0] += 1
        return f'L_{s}_{uid[0]}'
    def finish(last=0):
        if span and last == span:
            A(f'''s_memrealtime s[96:97]
s_waitcnt lgkmcnt(0)
v_writelane_b32 v7, s96, 15
v_writelane_b32 v7, s98, 0
s_mov_b64 exec, 0xffff
s_lshl3_add_u32 s34, s2, s28
s_lshl_b32 s34, s34, 6
s_add_u32 s34, s34, {WS_ST}
v_lshl_add_u32 v1, v0, 2, s34
global_store_dword v1, v7, s[26:27]''')
        A('s_endpgm')
        for f in cold: f()
        cold.clear()
    def wred(op, v, t):
        for r in (8, 4, 2, 1): A(f'{op}_dpp v{v}, v{v}, v{v} row_ror:{r} {FULL}')
        for sw in (16, 32): A(f'v_mov_b32 v{t}, v{v}\nv_permlane{sw}_swap_b32 v{v}, v{t}\n{op} v{v}, v{v}, v{t}')
    def rnd(v):
        A(f'v_cvt_pk_bf16_f32 v{v}, v{v}, v{v}\nv_lshlrev_b32 v{v}, 16, v{v}')
    def layernorm(x, u):
        s, t, mb, dl = u + 8, u + 9, u + 10, u + 11
        for i in range(4): A(f'v_lshlrev_b32 v{u+2*i}, 16, v{x+i}\nv_and_b32 v{u+2*i+1}, 0xffff0000, v{x+i}')
        A(f'v_add_f32 v{s}, v{u}, v{u+1}\nv_add_f32 v{t}, v{u+2}, v{u+3}\nv_add_f32 v{mb}, v{u+4}, v{u+5}\nv_add_f32 v{dl}, v{u+6}, v{u+7}')
        A(f'v_add_f32 v{s}, v{s}, v{t}\nv_add_f32 v{mb}, v{mb}, v{dl}\nv_add_f32 v{s}, v{s}, v{mb}')
        wred('v_add_f32', s, t)
        A(f'v_mul_f32 v{dl}, 0x3b000000, v{s}')
        A(f'v_cvt_pk_bf16_f32 v{mb}, v{dl}, v{dl}\nv_lshlrev_b32 v{mb}, 16, v{mb}')
        for i in range(8): A(f'v_sub_f32 v{u+i}, v{u+i}, v{mb}')
        A(f'v_sub_f32 v{dl}, v{dl}, v{mb}')
        A(f'v_mul_f32 v{s}, v{u}, v{u}\nv_mul_f32 v{t}, v{u+1}, v{u+1}')
        for i in range(2, 8, 2): A(f'v_fmac_f32 v{s}, v{u+i}, v{u+i}\nv_fmac_f32 v{t}, v{u+i+1}, v{u+i+1}')
        A(f'v_add_f32 v{s}, v{s}, v{t}')
        fill = [f'v_cvt_pk_bf16_f32 v{x+i}, v{u+2*i}, v{u+2*i+1}' for i in range(4)]
        for i in range(4): fill += [f'v_lshlrev_b32 v{u+2*i}, 16, v{x+i}', f'v_and_b32 v{u+2*i+1}, 0xffff0000, v{x+i}']
        fill.append(f'v_mul_f32 v{dl}, v{dl}, v{dl}')
        for r in (8, 4, 2, 1):
            A(fill.pop(0)); A(fill.pop(0))
            A(f'v_add_f32_dpp v{s}, v{s}, v{s} row_ror:{r} {FULL}')
        for sw in (16, 32):
            A(f'v_mov_b32 v{t}, v{s}'); A(fill.pop(0)); A(fill.pop(0))
            A(f'v_permlane{sw}_swap_b32 v{s}, v{t}\nv_add_f32 v{s}, v{s}, v{t}')
        A(fill.pop(0))
        A(f'v_mul_f32 v{s}, 0x3b000000, v{s}\nv_sub_f32 v{s}, v{s}, v{dl}\nv_max_f32 v{s}, 0, v{s}')
        rnd(s)
        A(f'v_add_f32 v{s}, {EPS:#x}, v{s}'); rnd(s)
        A(f'v_sqrt_f32 v{s}, v{s}'); rnd(s)
        A(f'v_rcp_f32 v{s}, v{s}')
        for i in range(8): A(f'v_mul_f32 v{u+i}, v{u+i}, v{s}')
        for i in range(4): A(f'v_cvt_pk_bf16_f32 v{x+i}, v{u+2*i}, v{u+2*i+1}')
    def afrag(dst, src, par):
        for w in range(4): A(f'v_perm_b32 v{dst+w}, v{src}, v{src}, v{40+4*par+w}')
    def bcast(src, dst, bank):
        return [f'v_mov_b32_dpp v{dst+i}, v{src} row_newbcast:{i} row_mask:0xf bank_mask:{bank:#x}' for i in range(16)]
    def tagreg(dst, addr, bits):
        A(f'v_lshrrev_b32 v{dst}, 1, v{addr}\nv_xor_b32 v{dst}, v{dst}, v{addr}\nv_bfe_u32 v{dst}, v{dst}, 4, 1\nv_lshlrev_b32 v{dst}, {bits-1}, v{dst}\nv_xor_b32 v{dst}, s3, v{dst}')
        if bits == 4: A(f'v_xor_b32 v{dst}, 4, v{dst}')
        A(f'v_and_b32 v{dst}, {(1 << bits) - 1}, v{dst}')
    def tagmask(dst, addr):
        A(f'v_and_b32 v{dst}, 15, v{addr}\nv_cmp_eq_u32 vcc, 0, v{dst}\nv_cndmask_b32 v{dst}, 0, v11, vcc')
    def gather(load, n, t, issued=False):
        x, y, T, d = 96, 120, 8, 16
        L, Lc, Lo = lab('again'), lab('chk'), lab('ok')
        A(f'; repeat the round until word 0 of every granule carries the tag, then sum the partials\ns_mov_b32 s62, {SPIN}')
        if issued: A(f's_branch {Lc}')
        A(f'{L}:')
        load()
        A(f's_sub_u32 s62, s62, 1\ns_cbranch_scc1 {Lo}\n{Lc}:')
        for i in range(n):
            if i % 2 == 0: A(f's_waitcnt vmcnt({n-2-i})')
            A(f'v_xor_b32 v{y+i}, v{x+4*i}, v{T}')
            if i % 2 == 1:
                dd = d + 2 * (i - 1)
                if i == 1: A(f'v_or_b32 v{t}, v{y}, v{y+1}')
                elif i < n - 1: A(f'v_or3_b32 v{t}, v{t}, v{y+i-1}, v{y+i}')
                else: A(f'v_or_b32 v{t}, v{t}, v{y+i-1}\nv_bitop3_b32 v{t}, v{t}, v{y+i}, v11 bitop3:0xa8\nv_cmp_ne_u32 vcc, 0, v{t}')
                A(f'v_pk_add_f32 v[{dd+2}:{dd+3}], v[{x+4*i-2}:{x+4*i-1}], v[{x+4*i+2}:{x+4*i+3}]')
                if i == n - 1: A(f's_cbranch_vccnz {L}\n{Lo}:')
                A(f'v_add_f32 v{dd}, v{y+i-1}, v{y+i}\nv_add_f32 v{dd+1}, v{x+4*i-3}, v{x+4*i+1}')
                if i > 1:
                    for r in (2, 0): A(f'v_pk_add_f32 v[{d+r}:{d+r+1}], v[{d+r}:{d+r+1}], v[{dd+r}:{dd+r+1}]')
        A(f'v_permlane32_swap_b32 v{d}, v{d+2}\nv_permlane32_swap_b32 v{d+1}, v{d+3}')
        A(f'v_pk_add_f32 v[{d}:{d+1}], v[{d}:{d+1}], v[{d+2}:{d+3}]')
    def ldsspin(reads, test, slp=0):
        L, Ld = lab('spin'), lab('spun')
        A(f's_mov_b32 s62, {SPIN}\n{L}:')
        if slp: A(f's_sleep {slp}')
        A(f'{reads}\ns_waitcnt lgkmcnt(0)\n{test}\ns_cbranch_vccz {Ld}\ns_sub_u32 s62, s62, 1\ns_cbranch_scc0 {L}\n{Ld}:')
    def stream(hooks, extra_at):
        A(f'; 16 tiles of 8 keys x 256 B, at most {THR} loads in flight per wave')
        for i in range(16):
            if i: A('s_addk_i32 s33, 0x100\ns_bitset0_b32 s33, 12')
            if 2 * i >= THR:
                A(f's_waitcnt vmcnt({THR - 2 + (1 if 2 * i - (THR - 2) < extra_at <= 2 * i else 0)})')
            for hf in range(2):
                A(f'buffer_load_dwordx4 v[{128+8*i+4*hf}:{131+8*i+4*hf}], v2, s[36:39], s33 offen offset:{128*hf} nt')
                if 2 * i + hf + 1 in hooks: A(hooks[2 * i + hf + 1])

    for ln in open('cdna_kernels/' + NAME + '.s.ref').read().split('\n'):
        if ln.startswith('; @launch'): A.raw(f'; @launch grid=(256,1,1) block=(512,1,1) lds={LDS_BYTES}'); break
        A.raw(ln)
    A.raw(DOC)
    A.raw(f'.amdgcn_target "amdgcn-amd-amdhsa--gfx950"\n.text\n.globl {NAME}_kernel\n.p2align 12\n.p2align 8\n.type {NAME}_kernel,@function\n{NAME}_kernel:')

    if span: A('s_memrealtime s[98:99]')
    A(P(0))
    A(f'''s_load_dwordx16 s[4:19], s[0:1], 0
s_load_dwordx8 s[20:27], s[0:1], 64
s_getpc_b64 s[40:41]
L_pc:
v_lshrrev_b32 v1, 6, v0
s_lshr_b32 s30, s2, 3                ; k
v_readfirstlane_b32 s28, v1          ; wave
v_and_b32 v0, 63, v0                 ; lane
s_cmp_ge_u32 s2, 256
s_cbranch_scc1 L_exit
s_lshl3_add_u32 s43, s30, s28
s_lshl_b32 s43, s43, 6
v_mov_b32 v1, s43
global_load_dword v1, v1, s[40:41]
s_and_b32 s29, s2, 7                 ; g
s_and_b32 s31, s30, 3
s_lshl2_add_u32 s31, s29, s31        ; head
s_lshr_b32 s32, s30, 2
v_lshrrev_b32 v3, 3, v0              ; lane >> 3
v_and_b32 v4, 7, v0
v_lshlrev_b32 v4, 4, v4              ; (lane & 7) * 16
v_lshl_add_u32 v2, v3, 12, v4
v_lshlrev_b32 v5, 4, v0              ; lane * 16
s_and_b32 s63, s28, 3
s_lshl2_add_u32 s33, s31, s32
s_add_u32 s33, s33, s29
s_and_b32 s33, s33, 15
s_lshl_b32 s33, s33, 8
s_lshl_b32 s34, s31, 6
s_add_u32 s34, s34, s32
s_add_u32 s34, s34, 56
s_lshl2_add_u32 s34, s34, s63
s_lshl_b32 s34, s34, 15
s_mov_b32 s38, 0x8000
s_mov_b32 s39, 0x20000
s_cmp_lt_u32 s28, 4
s_cbranch_scc1 L_kwave
s_setprio 3
s_lshl_b32 s35, s32, 5
s_add_u32 s35, s35, s63
s_lshl_b32 s35, s35, 6
s_add_u32 s35, s35, s31
s_lshl_b32 s35, s35, 8
v_lshl_add_u32 v6, v3, 16, v4
v_add_u32 v12, 0x2000, v6
v_subrev_u32 v13, 12, v0
v_ashrrev_i32 v13, 31, v13
v_lshlrev_b32 v14, 2, v0
ds_write_b32 v14, v13 offset:{L_SY}
s_waitcnt lgkmcnt(0)
global_load_dwordx4 v[24:27], v5, s[4:5]
s_load_dword s3, s[26:27], {WS_E:#x}
s_add_u32 s10, s10, s35
s_addc_u32 s11, s11, 0''')
    for n in range(2):
        for hf in range(2): A(f'global_load_dwordx4 v[{64+8*n+4*hf}:{67+8*n+4*hf}], v{(6, 12)[n]}, s[10:11] offset:{128*hf} nt')
    A('s_barrier\ns_branch L_vwave')

    A('''L_kwave:
s_setprio 2
s_waitcnt lgkmcnt(0)
s_add_u32 s36, s6, s34
s_addc_u32 s37, s7, 0''')
    qload = 'global_load_dwordx4 v[16:19], v6, s[44:45] sc1'
    stream({KPRE: f's_load_dword s3, s[26:27], {WS_E:#x}\ns_barrier',
            8: '''s_lshl_b32 s34, s31, 6
s_add_u32 s34, s34, s28
s_lshl_b32 s34, s34, 7
s_add_u32 s44, s26, s34
s_addc_u32 s45, s27, 0
v_lshl_add_u32 v6, v3, 10, v4''',
            10: P(1), 32: P(2), QPOS: qload + '   ; 32 columns of the 8 partial q records'}, QPOS)
    A(f'''v_lshrrev_b32 v12, 5, v0             ; lane >> 5
v_and_b32 v13, 31, v0
v_lshlrev_b32 v13, 4, v13            ; (lane & 31) * 16
s_and_b32 s34, s28, 1
s_lshl_b32 s34, s34, 7
s_and_b32 s35, s28, 2
s_lshl1_add_u32 s34, s35, s34
v_bfe_u32 v14, v0, 4, 1
v_lshl_add_u32 v14, v12, 2, v14
v_lshlrev_b32 v14, 1, v14
v_add3_u32 v14, v14, v4, s34
v_mov_b32 v24, {L_SY}
v_mov_b32 v25, 1
s_lshl_b32 s34, s28, 2
v_mov_b32 v26, s34
s_waitcnt lgkmcnt(0)
s_add_u32 s3, s3, {EPOCH_STEP:#x}''')
    tagreg(8, 5, 4)
    A(f's_waitcnt vmcnt({GOW})\nds_write_b32 v26, v25 offset:{L_SY+64}')
    A(f's_mov_b32 s62, {SPIN}\nL_qchk:')
    for i in range(4): A(f'v_xor_b32 v{20+i}, v{16+i}, v8')
    A('v_or3_b32 v15, v20, v21, v22\nv_bitop3_b32 v15, v15, v23, 15 bitop3:0xa8\nv_cmp_ne_u32 vcc, 0, v15\ns_cbranch_vccnz L_qagain\nL_qok:')
    cold.append(lambda: A(f'L_qagain:\n{qload}\ns_sub_u32 s62, s62, 1\ns_waitcnt vmcnt(0)\ns_cbranch_scc0 L_qchk\ns_branch L_qok'))
    A(f'''v_permlane32_swap_b32 v20, v22
v_permlane32_swap_b32 v21, v23
v_add_f32 v20, v20, v22
v_add_f32 v21, v21, v23
v_permlane16_swap_b32 v20, v21
v_add_f32 v20, v20, v21
v_add_f32_dpp v20, v20, v20 row_ror:8 {FULL}
v_cvt_pk_bf16_f32 v20, v20, v20
ds_write_b16 v14, v20 offset:{L_Q}
s_mov_b64 exec, 1
s_waitcnt lgkmcnt(0)
ds_add_u32 v24, v25 offset:52
s_mov_b64 exec, -1''')
    ldsspin('ds_read_b32 v15, v24 offset:52', 'v_cmp_ne_u32 vcc, 4, v15')
    A(f'ds_read_b128 v[16:19], v4 offset:{L_Q}\nds_read_b128 v[20:23], v4 offset:{L_Q+128}\ns_waitcnt lgkmcnt(0)')
    for i0 in range(0, 16, 4):
        if i0 == 12: A('s_waitcnt vmcnt(0)')
        for e in range(8):
            for i in range(i0, i0 + 4):
                A(f'v_dot2_f32_bf16 v{32+i}, v{128+8*i+e}, v{16+e}, {"v%d" % (32+i) if e else 0}')
    for i in range(8): A(f'v_add_f32_dpp v{32+i}, v{32+i}, v{32+i} row_half_mirror row_mask:0xf bank_mask:0x5')
    for i in range(8): A(f'v_add_f32_dpp v{32+i}, v{40+i}, v{40+i} row_half_mirror row_mask:0xf bank_mask:0xa')
    A('s_mov_b32 vcc_lo, 0xcccccccc\ns_mov_b32 vcc_hi, 0xcccccccc')
    for i in range(4): A(f'v_cndmask_b32 v{40+i}, v{36+i}, v{32+i}, vcc\nv_cndmask_b32 v{32+i}, v{32+i}, v{36+i}, vcc')
    for i in range(4): A(f'v_add_f32_dpp v{32+i}, v{40+i}, v{32+i} quad_perm:[2,3,0,1] {FULL}')
    A('s_mov_b32 vcc_lo, 0xaaaaaaaa\ns_mov_b32 vcc_hi, 0xaaaaaaaa')
    for i in range(2): A(f'v_cndmask_b32 v{40+i}, v{34+i}, v{32+i}, vcc\nv_cndmask_b32 v{32+i}, v{32+i}, v{34+i}, vcc')
    for i in range(2): A(f'v_add_f32_dpp v{32+i}, v{40+i}, v{32+i} quad_perm:[1,0,3,2] {FULL}')
    r2 = 'v_cvt_pk_bf16_f32 v34, v32, v33\nv_lshlrev_b32 v32, 16, v34\nv_and_b32 v33, 0xffff0000, v34'
    A(f'{r2}\nv_mul_f32 v32, {SCALE:#x}, v32\nv_mul_f32 v33, {SCALE:#x}, v33\n{r2}       ; v32, v33 = two scores per lane')
    A('v_max_f32 v34, v32, v33')
    wred('v_max_f32', 34, 36)
    A(f'''v_sub_f32 v35, v32, v34
v_sub_f32 v36, v33, v34
v_mul_f32 v35, {LOG2E:#x}, v35
v_mul_f32 v36, {LOG2E:#x}, v36
v_exp_f32 v35, v35
v_exp_f32 v36, v36
v_add_f32 v35, v35, v36''')
    wred('v_add_f32', 35, 36)
    A(f'''s_lshl_b32 s34, s29, 8
s_add_u32 s34, s34, {WS_X}
v_lshrrev_b32 v10, 2, v13
v_add_u32 v10, s34, v10
global_load_dword v9, v10, s[26:27] sc1
v_min_u32 v34, -2, v34
v_min_u32 v35, -2, v35
v_lshl_add_u32 v37, v26, 1, v24
ds_write_b64 v37, v[34:35]
s_cmp_lg_u32 s28, 0
s_cbranch_scc1 L_mlwait''')
    ldsspin('ds_read_b128 v[40:43], v24\nds_read_b128 v[44:47], v24 offset:16',
            'v_max3_u32 v37, v40, v41, v42\nv_max3_u32 v37, v37, v43, v44\nv_max3_u32 v37, v37, v45, v46\nv_max_u32 v37, v37, v47\nv_cmp_eq_u32 vcc, -1, v37')
    A(f'''s_lshl_b32 s35, s31, 8
s_add_u32 s35, s35, {WS_ML}
v_max3_f32 v48, v40, v42, v44
v_max_f32 v48, v48, v46''')
    for w in range(4): A(f'v_sub_f32 v{40+2*w}, v{40+2*w}, v48')
    for w in range(4): A(f'v_mul_f32 v{40+2*w}, {LOG2E:#x}, v{40+2*w}')
    for w in range(4): A(f'v_exp_f32 v{40+2*w}, v{40+2*w}')
    A('v_mov_b32 v49, s3\nv_mov_b32 v51, s3\nv_mul_f32 v50, v40, v41')
    for w in range(1, 4): A(f'v_fmac_f32 v50, v{40+2*w}, v{41+2*w}')
    A(f'''s_lshl4_add_u32 s34, s32, s35
v_mov_b32 v37, s34
s_mov_b64 exec, 1
global_store_dwordx4 v37, v[48:51], s[26:27] sc1
s_mov_b64 exec, -1
s_mov_b32 s62, {SPIN}
L_ml:
s_sleep 2
s_load_dwordx16 s[64:79], s[26:27], s35 glc
s_load_dwordx16 s[80:95], s[26:27], s35 offset:64 glc
s_waitcnt lgkmcnt(0)
s_and_b32 s34, s65, s3
s_or_b32 s47, s65, s3''')
    for i in range(1, 16): A(f's_and_b32 s34, s34, s{65+2*i}\ns_or_b32 s47, s47, s{65+2*i}')
    A('s_cmp_eq_u32 s34, s47\ns_cbranch_scc1 L_mlgot\ns_sub_u32 s62, s62, 1\ns_cbranch_scc0 L_ml\nL_mlgot:\nv_mov_b32 v34, s64')
    for c in range(1, 8): A(f'v_max_f32 v34, s{64+4*c}, v34')
    for c in range(8): A(f'v_sub_f32 v{40+c}, s{64+4*c}, v34')
    for c in range(8): A(f'v_mul_f32 v{40+c}, {LOG2E:#x}, v{40+c}')
    for c in range(8): A(f'v_exp_f32 v{40+c}, v{40+c}')
    A('v_mul_f32 v35, s66, v40')
    for c in range(1, 8): A(f'v_fmac_f32 v35, s{66+4*c}, v{40+c}')
    A('''v_rcp_f32 v35, v35
v_min_u32 v34, -2, v34
v_min_u32 v35, -2, v35
ds_write_b64 v24, v[34:35] offset:32
s_branch L_mlok
L_mlwait:''')
    ldsspin('ds_read_b64 v[34:35], v24 offset:32', 'v_max_u32 v37, v34, v35\nv_cmp_eq_u32 vcc, -1, v37', 1)
    A(f'''L_mlok:
v_sub_f32 v32, v32, v34
v_sub_f32 v33, v33, v34
v_mul_f32 v32, {LOG2E:#x}, v32
v_mul_f32 v33, {LOG2E:#x}, v33
v_exp_f32 v32, v32
v_exp_f32 v33, v33
s_lshl_b32 s34, s28, 8
v_lshl_add_u32 v36, v0, 2, s34
v_mul_f32 v32, v32, v35
v_mul_f32 v33, v33, v35
v_cvt_pk_bf16_f32 v32, v32, v33
ds_write_b32 v36, v32 offset:{L_P}
s_getreg_b32 s34, hwreg(HW_REG_XCC_ID, 0, 4)
s_andn2_b32 s35, s3, 31
s_or_b32 s34, s34, s35
s_or_b32 s35, s34, 16
s_waitcnt vmcnt(0)
v_cmp_eq_u32 s[48:49], s34, v9
v_cmp_eq_u32 s[50:51], s35, v9
s_bcnt1_i32_b32 s48, s48
s_bcnt1_i32_b32 s50, s50
s_cmp_gt_u32 s50, s48
s_cselect_b32 s34, 0x2000, 0
v_mov_b32 v10, s34''')
    tagreg(8, 5, 8)
    A(f'''v_mov_b32 v11, 0xff
s_lshl_b32 s47, s28, 13
s_add_u32 s47, s47, {L_W}
v_lshrrev_b32 v14, 4, v0             ; lane >> 4
s_lshr_b32 s34, s30, 1
s_and_b32 s35, s30, 1
s_lshl4_add_u32 s30, s35, s34        ; r
s_waitcnt lgkmcnt(0)
s_cmp_ge_u32 s30, 16
s_cbranch_scc1 L_notw''')

    A(f'''; role W: wave w owns head 4g + w, columns 32r .. 32r + 31 of wo
s_lshl2_add_u32 s34, s29, s28
s_lshl_b32 s35, s34, 13
s_add_u32 s44, s26, s35
s_addc_u32 s45, s27, 0
v_lshl_add_u32 v6, v12, 12, v13
s_lshl_b32 s34, s34, 17
s_lshl_b32 s35, s30, 6
s_add_u32 s34, s34, s35
s_add_u32 s40, s12, s34
s_addc_u32 s41, s13, 0
s_mov_b32 s42, {127*1024+64}
s_mov_b32 s43, 0x20000
v_and_b32 v32, 1, v14
v_bfe_u32 v15, v0, 3, 1
v_lshl_add_u32 v15, v15, 2, v14
v_bfe_u32 v33, v0, 2, 1
v_lshl_add_u32 v15, v15, 1, v33
v_lshlrev_b32 v33, 1, v32
v_and_b32 v34, 3, v0
v_xor_b32 v33, v33, v34
v_lshlrev_b32 v33, 4, v33
v_lshl_add_u32 v15, v15, 10, v33
v_lshrrev_b32 v33, 2, v0
v_lshlrev_b32 v33, 6, v33
v_lshl_add_u32 v33, v34, 3, v33
v_lshl_add_u32 v33, v32, 5, v33
v_add_u32 v33, s47, v33
v_xor_b32 v34, 32, v33
v_add_u32 v37, v26, v13
v_add_u32 v37, {L_RED}, v37
s_and_b32 s34, s29, 4
s_add_u32 s34, s34, s29
s_lshl4_add_u32 s34, s34, s30
s_lshl_b32 s34, s34, 7
s_add_u32 s34, s34, {WS_B}
s_add_u32 s56, s26, 0x8000
s_addc_u32 s57, s27, 0
s_add_u32 s58, s26, 0x10000
s_addc_u32 s59, s27, 0
s_add_u32 s68, s26, 0x18000
s_addc_u32 s69, s27, 0
v_lshrrev_b32 v38, 2, v13
v_lshl_add_u32 v38, v12, 13, v38
v_add_u32 v38, s34, v38''')
    tagreg(9, 38, 8)
    tagmask(10, 38)
    A('s_and_b32 s60, s30, 1\ns_lshl_b32 s61, s60, 16\ns_lshl_b32 s60, s60, 7\nv_xor_b32 v6, s60, v6')
    A(f'''s_mul_i32 s34, s30, {88*128}
s_mul_i32 s35, s29, {176*1024}
s_add_u32 s34, s34, s35
v_lshl_add_u32 v35, v0, 7, s34
v_add_u32 v36, 0x2000, v35
v_min_u32 v35, {1376*1024-4}, v35
v_min_u32 v36, {1376*1024-4}, v36''')
    for n in range(8):
        if n == 0: A(BAR12)
        if n == 2: A(BAR3)
        A(f's_add_u32 m0, s47, {1024*n}\ns_xor_b32 s34, s61, {16384*n}')
        A('buffer_load_dwordx4 v15, s[40:43], s34 offen lds')
    def aload():
        for n in range(4): A(f'global_load_dwordx4 v[{96+4*n}:{99+4*n}], v6, s[44:45] offset:{1024*n} sc1')
    aload()
    for t in range(4):
        A(f's_waitcnt vmcnt({10-2*t})')
        for cb in range(2):
            for hf in range(2):
                r = 128 + 8 * t + 4 * cb + 2 * hf
                A(f'ds_read_b64_tr_b16 v[{r}:{r+1}], v{33+cb} offset:{1024*(2*t+hf)}')
    gather(aload, 4, 39, issued=True)
    A('v_cvt_pk_bf16_f32 v16, v16, v17\ns_waitcnt lgkmcnt(0)')
    mv = bcast(16, 64, 0xf)
    for o in mv[:6]: A(o)
    mv = mv[6:]
    for t in range(4):
        for cb in range(2):
            c = f'v[{40+4*cb}:{43+4*cb}]'
            A(f'v_mfma_f32_16x16x32_bf16 {c}, v[{64+4*t}:{67+4*t}], v[{128+8*t+4*cb}:{131+8*t+4*cb}], {c if t else 0}')
            for o in mv[:2]: A(o)
            mv = mv[2:]
    A(f'''; the wave that finds all four partials published sums them and stores the record
s_mov_b64 exec, 0xffff
ds_write2_b32 v37, v40, v44 offset0:0 offset1:64
ds_write_b32 v26, v11 offset:{L_SY+96}
s_mov_b64 exec, -1
ds_read_b128 v[20:23], v24 offset:96
ds_read_b128 v[16:19], v13 offset:{L_RED}
s_waitcnt lgkmcnt(1)
v_min3_u32 v20, v20, v21, v22
v_min_u32 v20, v20, v23
v_cmp_ne_u32 vcc, 0, v20
s_waitcnt lgkmcnt(0)
v_pk_add_f32 v[16:17], v[16:17], v[18:19]
s_mov_b64 exec, vcc
v_add_f32 v16, v16, v17
v_bfi_b32 v16, v10, v9, v16
global_store_dword v38, v16, s[26:27] sc1
global_store_dword v38, v16, s[56:57] sc1
global_store_dword v38, v16, s[58:59] sc1
global_store_dword v38, v16, s[68:69] sc1
global_load_dword v62, v35, s[20:21]
s_and_b32 exec_lo, exec_lo, 0xffffff
s_mov_b32 exec_hi, 0
global_load_dword v62, v36, s[20:21]''')
    finish()

    A(f'''L_notw:
s_and_b32 s34, s30, 15
s_lshl2_add_u32 s34, s34, s28
s_andn2_b32 s35, s34, 7
s_add_u32 s35, s35, s34
s_add_u32 s35, s35, 8
s_lshl_b32 s64, s29, 7
s_add_u32 s35, s35, s64
s_lshl_b32 s35, s35, 12
v_lshl_add_u32 v127, v0, 7, s35
s_lshr_b32 s34, s34, 1
s_lshl_b32 s34, s34, 4
v_lshrrev_b32 v61, 2, v0
v_add_u32 v61, s34, v61
v_mul_u32_u24 v61, 2752, v61
v_and_b32 v15, 3, v0
v_lshlrev_b32 v62, 7, v15
v_min_u32 v62, 348, v62
s_mul_i32 s34, s29, 352
v_add3_u32 v61, v61, v62, s34
s_bitcmp1_b32 s28, 0
s_cselect_b32 s64, s18, s16
s_cselect_b32 s65, s19, s17
s_mov_b32 s66, {512*2752}
s_mov_b32 s67, 0x20000
s_cmp_lt_u32 s30, 27
s_cbranch_scc1 L_rolef''')
    def bars():
        A(f'''{BAR12}
s_mov_b32 exec_hi, 0
global_load_dword v62, v127, s[12:13]
s_mov_b32 exec_hi, -1
{BAR3}
buffer_load_dword v62, v61, s[64:67], 0 offen''')

    A(f'''s_cmp_lt_u32 s30, 28
s_cbranch_scc1 L_norole
s_cmp_lg_u32 s28, 0
s_cbranch_scc1 L_norole
s_lshl2_add_u32 s63, s29, s30
s_sub_u32 s63, s63, 28
s_lshr_b32 s34, s63, 1
s_xor_b32 s34, s34, s63
s_and_b32 s34, s34, 2
s_mul_i32 s34, s34, 3
s_xor_b32 s63, s63, s34
s_lshl_b32 s34, s63, 6
s_add_u32 s34, s34, {WS_C}
v_lshrrev_b32 v44, 2, v0
v_and_b32 v45, 12, v44
v_add_u32 v44, v44, v45
v_lshl_add_u32 v44, v44, 11, v10
v_lshl_add_u32 v44, v15, 4, v44
v_add_u32 v44, s34, v44''')
    for n in range(1, 6): A(f'v_add_u32 v{44+n}, {65536*n}, v44')
    A(f'''s_lshr_b32 s34, s63, 3
s_lshl_b32 s34, s34, 7
s_and_b32 s35, s63, 3
s_lshl_b32 s35, s35, 5
s_add_u32 s34, s34, s35
s_and_b32 s35, s63, 4
s_add_u32 s34, s34, s35
v_lshl_add_u32 v51, v15, 3, v14
v_add_lshl_u32 v51, v51, s34, 1
global_load_ushort v43, v51, s[4:5]
s_lshl_b32 s34, s34, 2
s_and_b32 s35, s29, 3
s_lshl_b32 s35, s35, 15
s_add_u32 s34, s34, s35
s_add_u32 s34, s34, {WS_B}
v_bfe_u32 v50, v0, 2, 3
v_and_b32 v52, 4, v50
v_add_u32 v50, v50, v52
v_lshl_add_u32 v50, v50, 11, v10
v_lshl_add_u32 v50, v15, 5, v50
v_add_u32 v50, s34, v50
v_mov_b32 v52, {WS_E}
v_mov_b32 v53, s3''')
    tagreg(9, 50, 8)
    A('v_mov_b32 v116, v8\nv_mov_b32 v117, 0\nv_mov_b32 v118, 0\nv_mov_b32 v119, 0')
    A('v_mov_b32 v36, v9\nv_mov_b32 v37, 0\nv_mov_b32 v38, 0\nv_mov_b32 v39, 0')
    bars()
    def cload():
        for n in range(6): A(('s_mov_b64 exec, 0xffffff\n' if n == 5 else '') + f'global_load_dwordx4 v[{96+4*n}:{99+4*n}], v{44+n}, s[26:27] sc1')
        A('s_mov_b64 exec, -1')
    cload()
    A(f'''; h = x + o @ wo for these columns
s_mov_b32 s62, {SPIN}
L_rb:
s_sleep 1
s_mov_b32 exec_hi, 0
global_load_dwordx4 v[36:39], v50, s[26:27] sc1
s_mov_b32 exec_hi, -1
s_sub_u32 s62, s62, 1
s_cbranch_scc1 L_rbok
s_waitcnt vmcnt(0)
v_xor_b32 v40, v36, v9
v_and_b32 v42, v11, v40
v_cmp_ne_u32 vcc, 0, v42
s_cbranch_vccnz L_rb
L_rbok:
{P(5)}s_cmp_eq_u32 s63, 0
s_cselect_b32 exec_lo, 1, 0
s_mov_b32 exec_hi, 0
global_store_dword v52, v53, s[26:27] sc1
s_mov_b64 exec, -1
v_permlane32_swap_b32 v40, v38
v_permlane32_swap_b32 v37, v39
v_permlane16_swap_b32 v40, v37
v_add_f32 v40, v40, v37
v_lshlrev_b32 v43, 16, v43
v_add_f32_dpp v40, v40, v40 row_ror:8 {FULL}
v_add_f32_dpp v40, v40, v40 row_ror:4 {FULL}
v_add_f32 v40, v40, v43''')
    rnd(40)
    gather(cload, 6, 42)
    A(f'''v_permlane16_swap_b32 v16, v17
v_add_f32 v16, v16, v17
v_add_f32_dpp v16, v16, v16 row_ror:8 {FULL}
v_add_f32_dpp v16, v16, v16 row_ror:4 {FULL}
s_mov_b32 exec_lo, 0x000f000f
v_add_f32 v16, v16, v40
s_mov_b32 exec_hi, 0x000f000f
v_cvt_pk_bf16_f32 v16, v16, v16
global_store_short v51, v16, s[22:23]''')
    if amp:
        A(P(6) + f'''s_memrealtime s[58:59]
s_waitcnt lgkmcnt(0)
s_sub_u32 s96, s100, s96
s_mul_i32 s96, s96, {amp[2]}
s_cmp_lg_u32 s2, {amp[3] if amp[3] >= 0 else 's2'}
s_cbranch_scc1 L_ampd
L_amp:
s_memrealtime s[100:101]
s_waitcnt lgkmcnt(0)
s_sub_u32 s100, s100, s58
s_cmp_lt_u32 s100, s96
s_cbranch_scc1 L_amp
L_ampd:''')
    finish(1)
    A('L_norole:')
    bars()
    finish()

    A(f'''.p2align 12
L_rolef:
s_mul_i32 s63, s29, 11
s_add_u32 s63, s63, s30
s_sub_u32 s63, s63, 16
s_cmp_ge_u32 s63, 86
s_cbranch_scc1 L_norole
s_mul_i32 s34, s28, {128*2752}
s_lshl_b32 s35, s63, 5
s_add_u32 s34, s34, s35
s_add_u32 s36, s16, s34
s_addc_u32 s37, s17, 0
s_mov_b32 s38, {127*2752+32}
s_mov_b32 s39, 0x20000
s_add_u32 s40, s18, s34
s_addc_u32 s41, s19, 0
s_mov_b32 s42, {127*2752+32}
s_mov_b32 s43, 0x20000
s_lshl_b32 s34, s63, 14
s_lshl_b32 s35, s28, 8
s_add_u32 s34, s34, s35
s_add_u32 s20, s20, s34
s_addc_u32 s21, s21, 0
s_add_u32 s4, s4, s35
s_addc_u32 s5, s5, 0
s_and_b32 s34, s29, 3
s_lshl_b32 s34, s34, 15
s_lshl1_add_u32 s34, s35, s34
s_add_u32 s34, s34, {WS_B+4096}
s_add_u32 s44, s26, s34
s_addc_u32 s45, s27, 0
v_lshl_add_u32 v6, v12, 14, v13
v_add_u32 v6, v6, v10
v_and_b32 v58, 12, v0
v_add_u32 v58, v58, v14
v_mul_u32_u24 v58, 80, v58
v_lshl_add_u32 v58, v15, 4, v58
v_bfe_u32 v15, v0, 3, 1
v_lshl_add_u32 v15, v15, 3, v12
v_bfe_u32 v33, v0, 2, 1
v_lshl_add_u32 v15, v15, 1, v33
v_bfe_u32 v33, v0, 4, 1
v_lshl_add_u32 v15, v15, 1, v33
v_bfe_u32 v33, v0, 1, 1
v_lshl_add_u32 v15, v15, 1, v33
v_mul_u32_u24 v15, 2752, v15
v_and_b32 v40, 1, v0
v_lshlrev_b32 v40, 4, v40
v_add_u32 v15, v15, v40
v_lshl_add_u32 v33, v0, 3, s47
v_lshrrev_b32 v36, 1, v13
v_lshl_add_u32 v36, v12, 2, v36
global_load_dword v32, v36, s[4:5]
v_and_b32 v38, 15, v0
v_lshlrev_b32 v34, 4, v38
v_lshl_add_u32 v34, v14, 10, v34
v_add_u32 v34, 0x1000, v34
v_add_u32 v35, 0x2000, v34
s_lshl_b32 s34, s28, 3
v_lshl_add_u32 v60, v12, 2, s34
s_add_u32 s34, s34, {L_OP}
v_mul_u32_u24 v57, 80, v38
v_add_u32 v57, s34, v57
v_lshl_add_u32 v57, v14, 2, v57
s_andn2_b32 s34, s63, 3
s_add_u32 s34, s34, s63
s_lshl2_add_u32 s34, s34, s28
s_lshl_b32 s34, s34, 9
s_add_u32 s34, s34, {WS_C}
v_lshl_add_u32 v59, v12, 13, v13
v_add_u32 v59, s34, v59
v_mov_b32 v44, 0x3f803f80
v_mov_b32 v63, {L_RED}
v_mov_b32 v46, {EPS:#x}
v_mov_b32 v41, 0xffff
v_lshlrev_b32 v40, v40, v41
v_bfe_u32 v41, v0, 1, 2
s_mov_b32 s60, 1
s_mov_b32 s61, 1''')
    for i in range(16): A(f'v_mov_b32 v{72+i}, v44')
    for w in range(4): A(f'v_cmp_eq_u32 vcc, {w}, v41\nv_cndmask_b32 v{48+w}, 0, v40, vcc')
    bars()
    for t in range(4):
        for m in range(2):
            A(f's_add_u32 m0, s47, {4096*m+1024*t}\ns_mov_b32 s34, {16*t*2752}')
            A(f'buffer_load_dwordx4 v15, s[{36+4*m}:{39+4*m}], s34 offen lds')
    def bload():
        for n in range(4): A(f'global_load_dwordx4 v[{96+4*n}:{99+4*n}], v6, s[44:45] offset:{2048*n-4096} sc1')
    for t in range(4):
        A(f's_waitcnt vmcnt({6-2*t})')
        if t == 3: bload()
        for m in range(2):
            for hf in range(2):
                r = 128 + 16 * m + 4 * t + 2 * hf
                A(f'ds_read_b64_tr_b16 v[{r}:{r+1}], v33 offset:{4096*m+1024*t+512*hf}')
        if t == 0: A('v_and_b32 v41, 0xffff0000, v32\nv_lshlrev_b32 v40, 16, v32')
    gather(bload, 4, 42, issued=True)
    A('''; h @ W with LN folded in: A rows 4-7 stay all ones and yield the column sums; moments of h on the side
v_pk_add_f32 v[16:17], v[16:17], v[40:41]
v_cvt_pk_bf16_f32 v18, v16, v17
v_dot2_f32_bf16 v16, v18, v44, 0
v_dot2_f32_bf16 v17, v18, v18, 0
s_waitcnt lgkmcnt(0)''')
    op = {f'm{i}': o for i, o in enumerate(bcast(18, 72, 0xd))}
    op.update({f'd{r}': f'v_add_f32_dpp v16, v16, v16 row_ror:{r} {FULL}' for r in (8, 4, 2, 1)})
    op.update({f'L{n}': f'global_load_dwordx4 v[{160+4*n}:{163+4*n}], v{34+(n>>1)}, s[20:21] offset:{4096*(n&1)-4096}' for n in range(4)})
    for n in range(8):
        t, m = n >> 1, n & 1
        c = f'v[{64+4*m}:{67+4*m}]'
        op[f'M{n}'] = f'v_mfma_f32_16x16x32_bf16 {c}, v[{72+4*t}:{75+4*t}], v[{128+16*m+4*t}:{131+16*m+4*t}], {c if t else 0}'
    op.update(S32='v_permlane32_swap_b32 v16, v17', S16='v_permlane16_swap_b32 v16, v17', A='v_add_f32 v16, v16, v17', mv='v_mov_b32 v17, v16',
              wr=f's_mov_b64 exec, s[60:61]\nds_write_b32 v60, v16 offset:{L_RED}\ns_mov_b64 exec, -1', bar='s_waitcnt lgkmcnt(0)\ns_barrier',
              rd='ds_read_b128 v[24:27], v63\nds_read_b128 v[28:31], v63 offset:16')
    for o in 'm0 m1 S32 m2 A m3 m4 d8 M0 m5 d4 m6 M1 d2 m7 m8 d1 mv M2 m9 S16 A wr M3 m10 m11 L0 L1 M4 m12 m13 m14 m15 M5 L2 L3 bar M6 rd M7'.split(): A(op[o])
    A(f'''s_mov_b32 exec_hi, 0
ds_write2_b32 v57, v64, v68 offset0:0 offset1:8
s_mov_b32 exec_hi, -1
s_waitcnt lgkmcnt(1)
v_pk_add_f32 v[24:25], v[24:25], v[26:27]
v_pk_add_f32 v[28:29], v[28:29], v[30:31]
v_pk_add_f32 v[24:25], v[24:25], v[28:29]
s_waitcnt lgkmcnt(0)
s_barrier
ds_read_b128 v[16:19], v58 offset:{L_OP}
v_mul_f32 v24, 0xbb000000, v24       ; -mean
v_fmamk_f32 v28, v25, 0x3b000000, v46
v_fma_f32 v28, -v24, v24, v28
v_max_f32 v28, v28, v46
v_rsq_f32 v29, v28
s_waitcnt lgkmcnt(0)
v_pk_add_f32 v[16:17], v[16:17], v[18:19]
v_fmac_f32 v16, v24, v17
v_rcp_f32 v28, v28
v_mul_f32 v29, {LOG2E ^ 0x80000000:#x}, v29
v_add_f32_dpp v16, v16, v16 quad_perm:[1,0,3,2] {FULL}
v_mul_f32 v17, v16, v29
v_exp_f32 v17, v17
v_mul_f32_dpp v18, v16, v16 quad_perm:[2,3,0,1] {FULL}
v_add_f32 v17, 1.0, v17
v_rcp_f32 v17, v17
v_mul_f32 v18, v18, v28
v_mul_f32 v16, v18, v17
v_cvt_pk_bf16_f32 v16, v16, v16
s_waitcnt vmcnt(0)
; act @ w_down on row-major weights: A holds act on a diagonal''')
    ops = [f'v_and_b32_dpp v{72+4*n+w}, v16, v{48+w} row_newbcast:{4*n} {FULL}' for n in range(4) for w in range(4)]
    for n in range(4):
        for o in ops[(4 * n + 2 if n else 0):4 * n + 6]: A(o)
        A(f'v_mfma_f32_16x16x32_bf16 v[64:67], v[{72+4*n}:{75+4*n}], v[{160+4*n}:{163+4*n}], {"v[64:67]" if n else 0}')
    A('v_bfi_b32 v64, v11, v8, v64\nglobal_store_dwordx4 v59, v[64:67], s[26:27] sc1')
    finish()

    A(f'''.p2align 12
L_vwave:
s_add_u32 s36, s8, s34
s_addc_u32 s37, s9, 0
s_lshl3_add_u32 s35, s31, s32
s_lshl_b32 s35, s35, 10
s_add_u32 s44, s26, s35
s_addc_u32 s45, s27, 0
v_mov_b32 v56, {L_SY}
s_lshr_b32 s56, s2, 6
s_lshl_b32 s56, s56, 7
s_and_b32 s35, s2, 63
s_add_u32 s56, s56, s35
s_lshl_b32 s56, s56, 7
s_add_u32 s56, s56, {WS_PR}
s_cmp_lg_u32 s28, 5
s_cbranch_scc1 L_nowarm
s_load_dword s54, s[26:27], s56 glc
s_load_dword s55, s[26:27], s56 offset:0x2000 glc
L_nowarm:
v_and_b32 v28, 1, v0
v_cmp_eq_u32 vcc, 1, v28
v_mov_b32 v29, 0x0c0c0100
v_mov_b32 v30, 0x01000c0c
v_cndmask_b32 v29, v29, v30, vcc
v_mov_b32 v30, 0x0c0c0302
v_mov_b32 v31, 0x03020c0c
v_cndmask_b32 v30, v30, v31, vcc
v_mov_b32 v31, 0x0c0c0c0c
v_bfe_u32 v28, v0, 1, 2''')
    for w in range(4): A(f'v_cmp_eq_u32 vcc, {w}, v28\nv_cndmask_b32 v{40+w}, v31, v29, vcc\nv_cndmask_b32 v{44+w}, v31, v30, vcc')
    A(f'''s_lshl_b32 s34, s63, 10
s_add_u32 s34, s34, {L_OP}
v_lshrrev_b32 v12, 5, v0
v_lshl_add_u32 v12, v12, 9, s34
v_lshl_add_u32 v12, v4, 1, v12
v_bfe_u32 v13, v0, 4, 1
v_lshl_add_u32 v12, v13, 4, v12
v_lshlrev_b32 v14, 3, v0
s_lshl_b32 s34, s32, 5
s_add_u32 s34, s34, s63
s_lshl_b32 s34, s34, 2
v_lshl_add_u32 v6, v3, 4, s34
v_mov_b32 v57, 1
s_waitcnt vmcnt(4)''')
    layernorm(24, 28)
    A(f'ds_write_b128 v5, v[24:27] offset:{L_H}\ns_waitcnt lgkmcnt(0)\nds_read_b32 v48, v6 offset:{L_H}\ns_add_u32 s3, s3, {EPOCH_STEP:#x}')
    tagreg(8, 14, 4)
    A('s_waitcnt lgkmcnt(0)')
    for n in range(2): afrag(24 + 4 * n, 48, n)
    A('s_waitcnt vmcnt(0)')
    for n in range(2):
        for hf in range(2):
            c = f'v[{16+4*hf}:{19+4*hf}]'
            A(f'v_mfma_f32_16x16x32_bf16 {c}, v[{24+4*n}:{27+4*n}], v[{64+8*n+4*hf}:{67+8*n+4*hf}], {c if n else 0}')
    part_write = '''s_mov_b32 exec_lo, 0x00ff00ff
s_mov_b32 exec_hi, 0xff00ff00
ds_write_b128 v12, v[16:19]
ds_write_b128 v12, v[20:23] offset:256'''
    A(f'''{part_write}
s_mov_b64 exec, 1
s_waitcnt lgkmcnt(0)
ds_add_u32 v56, v57 offset:48
s_mov_b64 exec, -1
s_cmp_lg_u32 s28, 4
s_cbranch_scc1 L_vstream''')
    ldsspin('ds_read_b32 v15, v56 offset:48', 'v_cmp_ne_u32 vcc, 4, v15')
    for n in range(4): A(f'ds_read_b128 v[{16+4*n}:{19+4*n}], v5 offset:{L_OP+1024*n}')
    A('s_waitcnt lgkmcnt(0)')
    for i in (0, 2, 8, 10): A(f'v_pk_add_f32 v[{16+i}:{17+i}], v[{16+i}:{17+i}], v[{20+i}:{21+i}]')
    for i in (0, 2): A(f'v_pk_add_f32 v[{16+i}:{17+i}], v[{16+i}:{17+i}], v[{24+i}:{25+i}]')
    A(f'''v_permlane32_swap_b32 v16, v18
v_permlane32_swap_b32 v17, v19
v_pk_add_f32 v[16:17], v[16:17], v[18:19]
v_and_or_b32 v16, v16, -16, v8
v_and_or_b32 v17, v17, -16, v8
global_store_dwordx2 v14, v[16:17], s[44:45]
L_vstream:
s_setprio 0
s_getreg_b32 s34, hwreg(HW_REG_XCC_ID, 0, 4)
s_andn2_b32 s46, s3, 31
s_or_b32 s46, s46, s34
s_lshl_b32 s47, s29, 8
s_add_u32 s47, s47, {WS_X}
s_cmp_lg_u32 s28, 5
s_cbranch_scc1 L_noprobe
s_mov_b32 s54, -1
s_mov_b32 s55, -1
s_waitcnt lgkmcnt(0)''')
    for i in range(4):
        A(f's_memtime s[50:51]\ns_load_dword s35, s[26:27], s56 offset:{0x2000 * (i & 1)} glc\ns_waitcnt lgkmcnt(0)\ns_memtime s[52:53]\ns_waitcnt lgkmcnt(0)\ns_sub_u32 s35, s52, s50\ns_min_u32 s{54 + (i & 1)}, s{54 + (i & 1)}, s35')
    A(f'''s_cmp_lt_u32 s55, s54
s_cselect_b32 s35, 16, 0
s_or_b32 s34, s46, s35
v_mov_b32 v31, s34
s_lshl2_add_u32 s34, s30, s47
v_mov_b32 v30, s34
s_mov_b64 exec, 1
global_store_dword v30, v31, s[26:27]
s_mov_b64 exec, -1
L_noprobe:
s_lshl_b32 s34, s63, 2
v_mov_b32 v28, s34
v_and_b32 v30, 31, v0
v_lshl_add_u32 v30, v30, 2, s47''')
    ldsspin(f'ds_read_b32 v15, v28 offset:{L_SY+64}', 'v_cmp_eq_u32 vcc, 0, v15', 1)
    stream({XPOS: 'global_load_dword v29, v30, s[26:27] sc1',
            XPOS + THR: '''v_and_b32 v29, -17, v29
v_cmp_ne_u32 s[48:49], s46, v29
s_cmp_eq_u64 s[48:49], 0
s_cselect_b64 s[50:51], -1, 0
s_cselect_b64 s[52:53], 0, -1
s_cbranch_scc0 L_requeue
L_requeued:'''}, XPOS)
    cold.append(lambda: A('''L_requeue:
s_cmp_lg_u32 s28, 4
s_cbranch_scc1 L_requeued
global_store_dwordx2 v14, v[16:17], s[44:45] sc1
s_waitcnt vmcnt(0)
s_branch L_requeued'''))
    A('v_mov_b32 v11, 0xff')
    tagreg(8, 14, 8)
    tagmask(10, 14)
    A(f'''s_lshl_b32 s34, s63, 8
v_lshl_add_u32 v6, v3, 5, s34
s_barrier
ds_read_b128 v[48:51], v6 offset:{L_P}
ds_read_b128 v[52:55], v6 offset:{L_P+16}
s_waitcnt lgkmcnt(0)''')
    for i in range(16): afrag(64 + 4 * i, 48 + i // 2, i & 1)
    for i in range(16):
        for hf in range(2):
            if (i, hf) == (12, 0): A('s_setprio 3')
            if i >= 12: A(f's_waitcnt vmcnt({31-2*i-hf})')
            if (i, hf) == (12, 0): A('s_barrier')
            c = f'v[{16+4*hf}:{19+4*hf}]'
            A(f'v_mfma_f32_16x16x32_bf16 {c}, v[{64+4*i}:{67+4*i}], v[{128+8*i+4*hf}:{131+8*i+4*hf}], {c if i else 0}')
    A(f'''; the wave that finds all four partials published sums them and stores the record
{part_write}
ds_write_b32 v28, v11 offset:{L_SY+80}
s_mov_b64 exec, -1
ds_read_b128 v[32:35], v56 offset:80''')
    for n in range(4): A(f'ds_read_b128 v[{64+4*n}:{67+4*n}], v5 offset:{L_OP+1024*n}')
    A('''s_waitcnt lgkmcnt(4)
v_min3_u32 v32, v32, v33, v34
v_min_u32 v32, v32, v35
v_cmp_ne_u32 vcc, 0, v32
s_waitcnt lgkmcnt(2)
v_pk_add_f32 v[64:65], v[64:65], v[68:69]
v_pk_add_f32 v[66:67], v[66:67], v[70:71]
s_and_b64 s[50:51], s[50:51], vcc
s_and_b64 s[52:53], s[52:53], vcc
s_waitcnt lgkmcnt(0)
v_pk_add_f32 v[72:73], v[72:73], v[76:77]
v_pk_add_f32 v[74:75], v[74:75], v[78:79]
v_pk_add_f32 v[64:65], v[64:65], v[72:73]
v_pk_add_f32 v[66:67], v[66:67], v[74:75]
v_permlane32_swap_b32 v64, v66
v_permlane32_swap_b32 v65, v67
v_pk_add_f32 v[64:65], v[64:65], v[66:67]
v_bfi_b32 v64, v10, v8, v64
s_mov_b64 exec, s[50:51]
global_store_dwordx2 v14, v[64:65], s[44:45]
s_mov_b64 exec, s[52:53]
global_store_dwordx2 v14, v[64:65], s[44:45] sc1
s_barrier''')
    if span == 2: A('s_cmp_lg_u32 s30, 31\ns_cbranch_scc1 L_exit\ns_cmp_lg_u32 s28, 5\ns_cbranch_scc1 L_exit\ns_mov_b32 s28, 1')
    finish(2)
    A(f'L_exit:\ns_endpgm\nL_code_end:\n.fill (L_pc+16384-L_code_end)/4, 4, 0xbf810000')
    A.raw(f'''.section .rodata,"a"
.p2align 6
.amdhsa_kernel {NAME}_kernel
  .amdhsa_next_free_vgpr 256
  .amdhsa_next_free_sgpr 102
  .amdhsa_accum_offset 256
  .amdhsa_group_segment_fixed_size 0
  .amdhsa_kernarg_size 96
  .amdhsa_user_sgpr_count 2
  .amdhsa_user_sgpr_kernarg_segment_ptr 1
  .amdhsa_system_sgpr_workgroup_id_x 1
  .amdhsa_float_denorm_mode_32 3
.end_amdhsa_kernel''')
    return A.text()

if __name__ == '__main__':
    out = sys.argv[1] if len(sys.argv) > 1 else f'cdna_kernels/{NAME}.s'
    open(out, 'w').write(gen(**eval('dict(' + (sys.argv[2] if len(sys.argv) > 2 else '') + ')')))
```

```python
import sys
from asmlib import Asm

NAME = 'sequential_preLN__sliding_block_cached__swiglu_ffn__decode'
WS_QA, WS_B, WS_PR, WS_ML, WS_X, WS_E, WS_C, WS_ST = 0x0, 0x40000, 0x60000, 0x70000, 0x72000, 0x73000, 0x80000, 0x100000
EPOCH_STEP = 0x5bd1e3c7
L_P, L_OP, L_H, L_RED, L_SY, L_Q, L_W = 0x0, 0x400, 0x1400, 0x1800, 0x1a00, 0x1b00, 0x1c00
LDS_BYTES = L_W + 0x8000
SPIN = 0x40000
LOG2E, SCALE, EPS = 0x3fb8aa3b, 0x3db504f3, 0x3727c5ac
FULL = 'row_mask:0xf bank_mask:0xf'
THR, KPRE, QPOS, XPOS, GOW = 8, 2, 24, 16, 8

BAR12 = 's_barrier\ns_barrier'
BAR3 = 's_barrier'

DOC = '''\
;   found nearer. Either copy holds the same data.'''

def gen(span=0, amp=None, lat=None):
    def P(n):
        return ('s_memrealtime s[96:97]\n' if amp and amp[0] == n else '') + ('s_memrealtime s[100:101]\n' if amp and amp[1] == n else '')
    global BAR12, BAR3
    BAR12 = 's_barrier\n' + P(3) + 's_barrier'
    BAR3 = 's_barrier\n' + P(4)
    A = Asm()
    cold = []
    uid = [0]
    def lab(s):
        uid[0] += 1
        return f'L_{s}_{uid[0]}'
    def finish(last=0):
        if span and last == span:
            A(f'''s_memrealtime s[96:97]
s_waitcnt lgkmcnt(0)
v_writelane_b32 v7, s96, 15
v_writelane_b32 v7, s98, 0
s_mov_b64 exec, 0xffff
s_lshl3_add_u32 s34, s2, s28
s_lshl_b32 s34, s34, 6
s_add_u32 s34, s34, {WS_ST}
v_lshl_add_u32 v1, v0, 2, s34
global_store_dword v1, v7, s[26:27]''')
        A('s_endpgm')
        for f in cold: f()
        cold.clear()
    def wred(op, v, t):
        for r in (8, 4, 2, 1): A(f'{op}_dpp v{v}, v{v}, v{v} row_ror:{r} {FULL}')
        for sw in (16, 32): A(f'v_mov_b32 v{t}, v{v}\nv_permlane{sw}_swap_b32 v{v}, v{t}\n{op} v{v}, v{v}, v{t}')
    def rnd(v):
        A(f'v_cvt_pk_bf16_f32 v{v}, v{v}, v{v}\nv_lshlrev_b32 v{v}, 16, v{v}')
    def layernorm(x, u):
        s, t, mb, dl = u + 8, u + 9, u + 10, u + 11
        for i in range(4): A(f'v_lshlrev_b32 v{u+2*i}, 16, v{x+i}\nv_and_b32 v{u+2*i+1}, 0xffff0000, v{x+i}')
        A(f'v_add_f32 v{s}, v{u}, v{u+1}\nv_add_f32 v{t}, v{u+2}, v{u+3}\nv_add_f32 v{mb}, v{u+4}, v{u+5}\nv_add_f32 v{dl}, v{u+6}, v{u+7}')
        A(f'v_add_f32 v{s}, v{s}, v{t}\nv_add_f32 v{mb}, v{mb}, v{dl}\nv_add_f32 v{s}, v{s}, v{mb}')
        wred('v_add_f32', s, t)
        A(f'v_mul_f32 v{dl}, 0x3b000000, v{s}')
        A(f'v_cvt_pk_bf16_f32 v{mb}, v{dl}, v{dl}\nv_lshlrev_b32 v{mb}, 16, v{mb}')
        for i in range(8): A(f'v_sub_f32 v{u+i}, v{u+i}, v{mb}')
        A(f'v_sub_f32 v{dl}, v{dl}, v{mb}')
        A(f'v_mul_f32 v{s}, v{u}, v{u}\nv_mul_f32 v{t}, v{u+1}, v{u+1}')
        for i in range(2, 8, 2): A(f'v_fmac_f32 v{s}, v{u+i}, v{u+i}\nv_fmac_f32 v{t}, v{u+i+1}, v{u+i+1}')
        A(f'v_add_f32 v{s}, v{s}, v{t}')
        fill = [f'v_cvt_pk_bf16_f32 v{x+i}, v{u+2*i}, v{u+2*i+1}' for i in range(4)]
        for i in range(4): fill += [f'v_lshlrev_b32 v{u+2*i}, 16, v{x+i}', f'v_and_b32 v{u+2*i+1}, 0xffff0000, v{x+i}']
        fill.append(f'v_mul_f32 v{dl}, v{dl}, v{dl}')
        for r in (8, 4, 2, 1):
            A(fill.pop(0)); A(fill.pop(0))
            A(f'v_add_f32_dpp v{s}, v{s}, v{s} row_ror:{r} {FULL}')
        for sw in (16, 32):
            A(f'v_mov_b32 v{t}, v{s}'); A(fill.pop(0)); A(fill.pop(0))
            A(f'v_permlane{sw}_swap_b32 v{s}, v{t}\nv_add_f32 v{s}, v{s}, v{t}')
        A(fill.pop(0))
        A(f'v_mul_f32 v{s}, 0x3b000000, v{s}\nv_sub_f32 v{s}, v{s}, v{dl}\nv_max_f32 v{s}, 0, v{s}')
        rnd(s)
        A(f'v_add_f32 v{s}, {EPS:#x}, v{s}'); rnd(s)
        A(f'v_sqrt_f32 v{s}, v{s}'); rnd(s)
        A(f'v_rcp_f32 v{s}, v{s}')
        for i in range(8): A(f'v_mul_f32 v{u+i}, v{u+i}, v{s}')
        for i in range(4): A(f'v_cvt_pk_bf16_f32 v{x+i}, v{u+2*i}, v{u+2*i+1}')
    def afrag(dst, src, par):
        for w in range(4): A(f'v_perm_b32 v{dst+w}, v{src}, v{src}, v{40+4*par+w}')
    def bcast(src, dst, bank):
        return [f'v_mov_b32_dpp v{dst+i}, v{src} row_newbcast:{i} row_mask:0xf bank_mask:{bank:#x}' for i in range(16)]
    def tagreg(dst, addr, bits):
        A(f'v_lshrrev_b32 v{dst}, 1, v{addr}\nv_xor_b32 v{dst}, v{dst}, v{addr}\nv_bfe_u32 v{dst}, v{dst}, 4, 1\nv_lshlrev_b32 v{dst}, {bits-1}, v{dst}\nv_xor_b32 v{dst}, s3, v{dst}')
        if bits == 4: A(f'v_xor_b32 v{dst}, 4, v{dst}')
        A(f'v_and_b32 v{dst}, {(1 << bits) - 1}, v{dst}')
    def tagmask(dst, addr):
        A(f'v_and_b32 v{dst}, 15, v{addr}\nv_cmp_eq_u32 vcc, 0, v{dst}\nv_cndmask_b32 v{dst}, 0, v11, vcc')
    def gather(load, n, t, issued=False):
        x, y, T, d = 96, 120, 8, 16
        L, Lc, Lo = lab('again'), lab('chk'), lab('ok')
        A(f'; repeat the round until word 0 of every granule carries the tag, then sum the partials\ns_mov_b32 s62, {SPIN}')
        if issued: A(f's_branch {Lc}')
        A(f'{L}:')
        load()
        A(f's_sub_u32 s62, s62, 1\ns_cbranch_scc1 {Lo}\n{Lc}:')
        for i in range(n):
            if i % 2 == 0: A(f's_waitcnt vmcnt({n-2-i})')
            A(f'v_xor_b32 v{y+i}, v{x+4*i}, v{T}')
            if i % 2 == 1:
                dd = d + 2 * (i - 1)
                if i == 1: A(f'v_or_b32 v{t}, v{y}, v{y+1}')
                elif i < n - 1: A(f'v_or3_b32 v{t}, v{t}, v{y+i-1}, v{y+i}')
                else: A(f'v_or_b32 v{t}, v{t}, v{y+i-1}\nv_bitop3_b32 v{t}, v{t}, v{y+i}, v11 bitop3:0xa8\nv_cmp_ne_u32 vcc, 0, v{t}')
                A(f'v_pk_add_f32 v[{dd+2}:{dd+3}], v[{x+4*i-2}:{x+4*i-1}], v[{x+4*i+2}:{x+4*i+3}]')
                if i == n - 1: A(f's_cbranch_vccnz {L}\n{Lo}:')
                A(f'v_add_f32 v{dd}, v{y+i-1}, v{y+i}\nv_add_f32 v{dd+1}, v{x+4*i-3}, v{x+4*i+1}')
                if i > 1:
                    for r in (2, 0): A(f'v_pk_add_f32 v[{d+r}:{d+r+1}], v[{d+r}:{d+r+1}], v[{dd+r}:{dd+r+1}]')
        A(f'v_permlane32_swap_b32 v{d}, v{d+2}\nv_permlane32_swap_b32 v{d+1}, v{d+3}')
        A(f'v_pk_add_f32 v[{d}:{d+1}], v[{d}:{d+1}], v[{d+2}:{d+3}]')
    def ldsspin(reads, test, slp=0):
        L, Ld = lab('spin'), lab('spun')
        A(f's_mov_b32 s62, {SPIN}\n{L}:')
        if slp: A(f's_sleep {slp}')
        A(f'{reads}\ns_waitcnt lgkmcnt(0)\n{test}\ns_cbranch_vccz {Ld}\ns_sub_u32 s62, s62, 1\ns_cbranch_scc0 {L}\n{Ld}:')
    def stream(hooks, extra_at):
        A(f'; 16 tiles of 8 keys x 256 B, at most {THR} loads in flight per wave')
        for i in range(16):
            if i: A('s_addk_i32 s33, 0x100\ns_bitset0_b32 s33, 12')
            if 2 * i >= THR:
                A(f's_waitcnt vmcnt({THR - 2 + (1 if 2 * i - (THR - 2) < extra_at <= 2 * i else 0)})')
            for hf in range(2):
                A(f'buffer_load_dwordx4 v[{128+8*i+4*hf}:{131+8*i+4*hf}], v2, s[36:39], s33 offen offset:{128*hf} nt')
                if 2 * i + hf + 1 in hooks: A(hooks[2 * i + hf + 1])

    for ln in open('cdna_kernels/' + NAME + '.s.ref').read().split('\n'):
        if ln.startswith('; @launch'): A.raw(f'; @launch grid=(256,1,1) block=(512,1,1) lds={LDS_BYTES}'); break
        A.raw(ln)
    A.raw(DOC)
    A.raw(f'.amdgcn_target "amdgcn-amd-amdhsa--gfx950"\n.text\n.globl {NAME}_kernel\n.p2align 12\n.p2align 8\n.type {NAME}_kernel,@function\n{NAME}_kernel:')

    if span: A('s_memrealtime s[98:99]')
    A(P(0))
    A(f'''s_load_dwordx16 s[4:19], s[0:1], 0
s_load_dwordx8 s[20:27], s[0:1], 64
s_getpc_b64 s[40:41]
L_pc:
v_lshrrev_b32 v1, 6, v0
s_lshr_b32 s30, s2, 3                ; k
v_readfirstlane_b32 s28, v1          ; wave
v_and_b32 v0, 63, v0                 ; lane
s_cmp_ge_u32 s2, 256
s_cbranch_scc1 L_exit
s_lshl3_add_u32 s43, s30, s28
s_lshl_b32 s43, s43, 6
v_mov_b32 v1, s43
global_load_dword v1, v1, s[40:41]
s_and_b32 s29, s2, 7                 ; g
s_and_b32 s31, s30, 3
s_lshl2_add_u32 s31, s29, s31        ; head
s_lshr_b32 s32, s30, 2
v_lshrrev_b32 v3, 3, v0              ; lane >> 3
v_and_b32 v4, 7, v0
v_lshlrev_b32 v4, 4, v4              ; (lane & 7) * 16
v_lshl_add_u32 v2, v3, 12, v4
v_lshlrev_b32 v5, 4, v0              ; lane * 16
s_and_b32 s63, s28, 3
s_lshl2_add_u32 s33, s31, s32
s_add_u32 s33, s33, s29
s_and_b32 s33, s33, 15
s_lshl_b32 s33, s33, 8
s_lshl_b32 s34, s31, 6
s_add_u32 s34, s34, s32
s_add_u32 s34, s34, 56
s_lshl2_add_u32 s34, s34, s63
s_lshl_b32 s34, s34, 15
s_mov_b32 s38, 0x8000
s_mov_b32 s39, 0x20000
s_cmp_lt_u32 s28, 4
s_cbranch_scc1 L_kwave
s_setprio 3
s_lshl_b32 s35, s32, 5
s_add_u32 s35, s35, s63
s_lshl_b32 s35, s35, 6
s_add_u32 s35, s35, s31
s_lshl_b32 s35, s35, 8
v_lshl_add_u32 v6, v3, 16, v4
v_add_u32 v12, 0x2000, v6
v_subrev_u32 v13, 12, v0
v_ashrrev_i32 v13, 31, v13
v_lshlrev_b32 v14, 2, v0
ds_write_b32 v14, v13 offset:{L_SY}
s_waitcnt lgkmcnt(0)
global_load_dwordx4 v[24:27], v5, s[4:5]
s_load_dword s3, s[26:27], {WS_E:#x}
s_add_u32 s10, s10, s35
s_addc_u32 s11, s11, 0''')
    for n in range(2):
        for hf in range(2): A(f'global_load_dwordx4 v[{64+8*n+4*hf}:{67+8*n+4*hf}], v{(6, 12)[n]}, s[10:11] offset:{128*hf} nt')
    A('s_barrier\ns_branch L_vwave')

    A('''L_kwave:
s_setprio 2
s_waitcnt lgkmcnt(0)
s_add_u32 s36, s6, s34
s_addc_u32 s37, s7, 0''')
    probe = lambda p: f's_cmp_lg_u32 s2, 219\ns_cbranch_scc1 L_nl\ns_cmp_lg_u32 s28, 0\ns_cbranch_scc1 L_nl\ns_memrealtime s[96:97]\ns_waitcnt lgkmcnt(0)\ns_load_dword s100, {p} glc\ns_waitcnt lgkmcnt(0)\ns_memrealtime s[100:101]\nL_nl:'
    if lat and lat[0] == 0: A(probe(lat[1]))
    qload = 'global_load_dwordx4 v[16:19], v6, s[44:45] sc1'
    stream({KPRE: f's_load_dword s3, s[26:27], {WS_E:#x}\ns_barrier',
            8: '''s_lshl_b32 s34, s31, 6
s_add_u32 s34, s34, s28
s_lshl_b32 s34, s34, 7
s_add_u32 s44, s26, s34
s_addc_u32 s45, s27, 0
v_lshl_add_u32 v6, v3, 10, v4''',
            10: P(1), 32: P(2), QPOS: qload + '   ; 32 columns of the 8 partial q records'}, QPOS)
    A(f'''v_lshrrev_b32 v12, 5, v0             ; lane >> 5
v_and_b32 v13, 31, v0
v_lshlrev_b32 v13, 4, v13            ; (lane & 31) * 16
s_and_b32 s34, s28, 1
s_lshl_b32 s34, s34, 7
s_and_b32 s35, s28, 2
s_lshl1_add_u32 s34, s35, s34
v_bfe_u32 v14, v0, 4, 1
v_lshl_add_u32 v14, v12, 2, v14
v_lshlrev_b32 v14, 1, v14
v_add3_u32 v14, v14, v4, s34
v_mov_b32 v24, {L_SY}
v_mov_b32 v25, 1
s_lshl_b32 s34, s28, 2
v_mov_b32 v26, s34
s_waitcnt lgkmcnt(0)
s_add_u32 s3, s3, {EPOCH_STEP:#x}''')
    tagreg(8, 5, 4)
    A(f's_waitcnt vmcnt({GOW})\nds_write_b32 v26, v25 offset:{L_SY+64}')
    A(f's_mov_b32 s62, {SPIN}\nL_qchk:')
    for i in range(4): A(f'v_xor_b32 v{20+i}, v{16+i}, v8')
    A('v_or3_b32 v15, v20, v21, v22\nv_bitop3_b32 v15, v15, v23, 15 bitop3:0xa8\nv_cmp_ne_u32 vcc, 0, v15\ns_cbranch_vccnz L_qagain\nL_qok:')
    cold.append(lambda: A(f'L_qagain:\n{qload}\ns_sub_u32 s62, s62, 1\ns_waitcnt vmcnt(0)\ns_cbranch_scc0 L_qchk\ns_branch L_qok'))
    A(f'''v_permlane32_swap_b32 v20, v22
v_permlane32_swap_b32 v21, v23
v_add_f32 v20, v20, v22
v_add_f32 v21, v21, v23
v_permlane16_swap_b32 v20, v21
v_add_f32 v20, v20, v21
v_add_f32_dpp v20, v20, v20 row_ror:8 {FULL}
v_cvt_pk_bf16_f32 v20, v20, v20
ds_write_b16 v14, v20 offset:{L_Q}
s_mov_b64 exec, 1
s_waitcnt lgkmcnt(0)
ds_add_u32 v24, v25 offset:52
s_mov_b64 exec, -1''')
    ldsspin('ds_read_b32 v15, v24 offset:52', 'v_cmp_ne_u32 vcc, 4, v15')
    A(f'ds_read_b128 v[16:19], v4 offset:{L_Q}\nds_read_b128 v[20:23], v4 offset:{L_Q+128}\ns_waitcnt lgkmcnt(0)')
    for i0 in range(0, 16, 4):
        if i0 == 12: A('s_waitcnt vmcnt(0)')
        for e in range(8):
            for i in range(i0, i0 + 4):
                A(f'v_dot2_f32_bf16 v{32+i}, v{128+8*i+e}, v{16+e}, {"v%d" % (32+i) if e else 0}')
    for i in range(8): A(f'v_add_f32_dpp v{32+i}, v{32+i}, v{32+i} row_half_mirror row_mask:0xf bank_mask:0x5')
    for i in range(8): A(f'v_add_f32_dpp v{32+i}, v{40+i}, v{40+i} row_half_mirror row_mask:0xf bank_mask:0xa')
    A('s_mov_b32 vcc_lo, 0xcccccccc\ns_mov_b32 vcc_hi, 0xcccccccc')
    for i in range(4): A(f'v_cndmask_b32 v{40+i}, v{36+i}, v{32+i}, vcc\nv_cndmask_b32 v{32+i}, v{32+i}, v{36+i}, vcc')
    for i in range(4): A(f'v_add_f32_dpp v{32+i}, v{40+i}, v{32+i} quad_perm:[2,3,0,1] {FULL}')
    A('s_mov_b32 vcc_lo, 0xaaaaaaaa\ns_mov_b32 vcc_hi, 0xaaaaaaaa')
    for i in range(2): A(f'v_cndmask_b32 v{40+i}, v{34+i}, v{32+i}, vcc\nv_cndmask_b32 v{32+i}, v{32+i}, v{34+i}, vcc')
    for i in range(2): A(f'v_add_f32_dpp v{32+i}, v{40+i}, v{32+i} quad_perm:[1,0,3,2] {FULL}')
    r2 = 'v_cvt_pk_bf16_f32 v34, v32, v33\nv_lshlrev_b32 v32, 16, v34\nv_and_b32 v33, 0xffff0000, v34'
    A(f'{r2}\nv_mul_f32 v32, {SCALE:#x}, v32\nv_mul_f32 v33, {SCALE:#x}, v33\n{r2}       ; v32, v33 = two scores per lane')
    A('v_max_f32 v34, v32, v33')
    wred('v_max_f32', 34, 36)
    A(f'''v_sub_f32 v35, v32, v34
v_sub_f32 v36, v33, v34
v_mul_f32 v35, {LOG2E:#x}, v35
v_mul_f32 v36, {LOG2E:#x}, v36
v_exp_f32 v35, v35
v_exp_f32 v36, v36
v_add_f32 v35, v35, v36''')
    wred('v_add_f32', 35, 36)
    A(f'''s_lshl_b32 s34, s29, 8
s_add_u32 s34, s34, {WS_X}
v_lshrrev_b32 v10, 2, v13
v_add_u32 v10, s34, v10
global_load_dword v9, v10, s[26:27] sc1
v_min_u32 v34, -2, v34
v_min_u32 v35, -2, v35
v_lshl_add_u32 v37, v26, 1, v24
ds_write_b64 v37, v[34:35]
s_cmp_lg_u32 s28, 0
s_cbranch_scc1 L_mlwait''')
    ldsspin('ds_read_b128 v[40:43], v24\nds_read_b128 v[44:47], v24 offset:16',
            'v_max3_u32 v37, v40, v41, v42\nv_max3_u32 v37, v37, v43, v44\nv_max3_u32 v37, v37, v45, v46\nv_max_u32 v37, v37, v47\nv_cmp_eq_u32 vcc, -1, v37')
    A(f'''s_lshl_b32 s35, s31, 8
s_add_u32 s35, s35, {WS_ML}
v_max3_f32 v48, v40, v42, v44
v_max_f32 v48, v48, v46''')
    for w in range(4): A(f'v_sub_f32 v{40+2*w}, v{40+2*w}, v48')
    for w in range(4): A(f'v_mul_f32 v{40+2*w}, {LOG2E:#x}, v{40+2*w}')
    for w in range(4): A(f'v_exp_f32 v{40+2*w}, v{40+2*w}')
    A('v_mov_b32 v49, s3\nv_mov_b32 v51, s3\nv_mul_f32 v50, v40, v41')
    for w in range(1, 4): A(f'v_fmac_f32 v50, v{40+2*w}, v{41+2*w}')
    A(f'''s_lshl4_add_u32 s34, s32, s35
v_mov_b32 v37, s34
s_mov_b64 exec, 1
global_store_dwordx4 v37, v[48:51], s[26:27] sc1
s_mov_b64 exec, -1
s_mov_b32 s62, {SPIN}
L_ml:
s_sleep 2
s_load_dwordx16 s[64:79], s[26:27], s35 glc
s_load_dwordx16 s[80:95], s[26:27], s35 offset:64 glc
s_waitcnt lgkmcnt(0)
s_and_b32 s34, s65, s3
s_or_b32 s47, s65, s3''')
    for i in range(1, 16): A(f's_and_b32 s34, s34, s{65+2*i}\ns_or_b32 s47, s47, s{65+2*i}')
    A('s_cmp_eq_u32 s34, s47\ns_cbranch_scc1 L_mlgot\ns_sub_u32 s62, s62, 1\ns_cbranch_scc0 L_ml\nL_mlgot:\nv_mov_b32 v34, s64')
    for c in range(1, 8): A(f'v_max_f32 v34, s{64+4*c}, v34')
    for c in range(8): A(f'v_sub_f32 v{40+c}, s{64+4*c}, v34')
    for c in range(8): A(f'v_mul_f32 v{40+c}, {LOG2E:#x}, v{40+c}')
    for c in range(8): A(f'v_exp_f32 v{40+c}, v{40+c}')
    A('v_mul_f32 v35, s66, v40')
    for c in range(1, 8): A(f'v_fmac_f32 v35, s{66+4*c}, v{40+c}')
    A('''v_rcp_f32 v35, v35
v_min_u32 v34, -2, v34
v_min_u32 v35, -2, v35
ds_write_b64 v24, v[34:35] offset:32
s_branch L_mlok
L_mlwait:''')
    ldsspin('ds_read_b64 v[34:35], v24 offset:32', 'v_max_u32 v37, v34, v35\nv_cmp_eq_u32 vcc, -1, v37', 1)
    A(f'''L_mlok:
v_sub_f32 v32, v32, v34
v_sub_f32 v33, v33, v34
v_mul_f32 v32, {LOG2E:#x}, v32
v_mul_f32 v33, {LOG2E:#x}, v33
v_exp_f32 v32, v32
v_exp_f32 v33, v33
s_lshl_b32 s34, s28, 8
v_lshl_add_u32 v36, v0, 2, s34
v_mul_f32 v32, v32, v35
v_mul_f32 v33, v33, v35
v_cvt_pk_bf16_f32 v32, v32, v33
ds_write_b32 v36, v32 offset:{L_P}
s_getreg_b32 s34, hwreg(HW_REG_XCC_ID, 0, 4)
s_andn2_b32 s35, s3, 31
s_or_b32 s34, s34, s35
s_or_b32 s35, s34, 16
s_waitcnt vmcnt(0)
v_cmp_eq_u32 s[48:49], s34, v9
v_cmp_eq_u32 s[50:51], s35, v9
s_bcnt1_i32_b32 s48, s48
s_bcnt1_i32_b32 s50, s50
s_cmp_gt_u32 s50, s48
s_cselect_b32 s34, 0x2000, 0
v_mov_b32 v10, s34''')
    tagreg(8, 5, 8)
    A(f'''v_mov_b32 v11, 0xff
s_lshl_b32 s47, s28, 13
s_add_u32 s47, s47, {L_W}
v_lshrrev_b32 v14, 4, v0             ; lane >> 4
s_lshr_b32 s34, s30, 1
s_and_b32 s35, s30, 1
s_lshl4_add_u32 s30, s35, s34        ; r
s_waitcnt lgkmcnt(0)
s_cmp_ge_u32 s30, 16
s_cbranch_scc1 L_notw''')

    A(f'''; role W: wave w owns head 4g + w, columns 32r .. 32r + 31 of wo
s_lshl2_add_u32 s34, s29, s28
s_lshl_b32 s35, s34, 13
s_add_u32 s44, s26, s35
s_addc_u32 s45, s27, 0
v_lshl_add_u32 v6, v12, 12, v13
s_lshl_b32 s34, s34, 17
s_lshl_b32 s35, s30, 6
s_add_u32 s34, s34, s35
s_add_u32 s40, s12, s34
s_addc_u32 s41, s13, 0
s_mov_b32 s42, {127*1024+64}
s_mov_b32 s43, 0x20000
v_and_b32 v32, 1, v14
v_bfe_u32 v15, v0, 3, 1
v_lshl_add_u32 v15, v15, 2, v14
v_bfe_u32 v33, v0, 2, 1
v_lshl_add_u32 v15, v15, 1, v33
v_lshlrev_b32 v33, 1, v32
v_and_b32 v34, 3, v0
v_xor_b32 v33, v33, v34
v_lshlrev_b32 v33, 4, v33
v_lshl_add_u32 v15, v15, 10, v33
v_lshrrev_b32 v33, 2, v0
v_lshlrev_b32 v33, 6, v33
v_lshl_add_u32 v33, v34, 3, v33
v_lshl_add_u32 v33, v32, 5, v33
v_add_u32 v33, s47, v33
v_xor_b32 v34, 32, v33
v_add_u32 v37, v26, v13
v_add_u32 v37, {L_RED}, v37
s_and_b32 s34, s29, 4
s_add_u32 s34, s34, s29
s_lshl4_add_u32 s34, s34, s30
s_lshl_b32 s34, s34, 7
s_add_u32 s34, s34, {WS_B}
s_add_u32 s56, s26, 0x8000
s_addc_u32 s57, s27, 0
s_add_u32 s58, s26, 0x10000
s_addc_u32 s59, s27, 0
s_add_u32 s68, s26, 0x18000
s_addc_u32 s69, s27, 0
v_lshrrev_b32 v38, 2, v13
v_lshl_add_u32 v38, v12, 13, v38
v_add_u32 v38, s34, v38''')
    tagreg(9, 38, 8)
    tagmask(10, 38)
    A('s_and_b32 s60, s30, 1\ns_lshl_b32 s61, s60, 16\ns_lshl_b32 s60, s60, 7\nv_xor_b32 v6, s60, v6')
    A(f'''s_mul_i32 s34, s30, {88*128}
s_mul_i32 s35, s29, {176*1024}
s_add_u32 s34, s34, s35
v_lshl_add_u32 v35, v0, 7, s34
v_add_u32 v36, 0x2000, v35
v_min_u32 v35, {1376*1024-4}, v35
v_min_u32 v36, {1376*1024-4}, v36''')
    for n in range(8):
        if n == 0: A(BAR12)
        if n == 2: A(BAR3)
        A(f's_add_u32 m0, s47, {1024*n}\ns_xor_b32 s34, s61, {16384*n}')
        A('buffer_load_dwordx4 v15, s[40:43], s34 offen lds')
    def aload():
        for n in range(4): A(f'global_load_dwordx4 v[{96+4*n}:{99+4*n}], v6, s[44:45] offset:{1024*n} sc1')
    aload()
    for t in range(4):
        A(f's_waitcnt vmcnt({10-2*t})')
        for cb in range(2):
            for hf in range(2):
                r = 128 + 8 * t + 4 * cb + 2 * hf
                A(f'ds_read_b64_tr_b16 v[{r}:{r+1}], v{33+cb} offset:{1024*(2*t+hf)}')
    gather(aload, 4, 39, issued=True)
    A('v_cvt_pk_bf16_f32 v16, v16, v17\ns_waitcnt lgkmcnt(0)')
    mv = bcast(16, 64, 0xf)
    for o in mv[:6]: A(o)
    mv = mv[6:]
    for t in range(4):
        for cb in range(2):
            c = f'v[{40+4*cb}:{43+4*cb}]'
            A(f'v_mfma_f32_16x16x32_bf16 {c}, v[{64+4*t}:{67+4*t}], v[{128+8*t+4*cb}:{131+8*t+4*cb}], {c if t else 0}')
            for o in mv[:2]: A(o)
            mv = mv[2:]
    A(f'''; the wave that finds all four partials published sums them and stores the record
s_mov_b64 exec, 0xffff
ds_write2_b32 v37, v40, v44 offset0:0 offset1:64
ds_write_b32 v26, v11 offset:{L_SY+96}
s_mov_b64 exec, -1
ds_read_b128 v[20:23], v24 offset:96
ds_read_b128 v[16:19], v13 offset:{L_RED}
s_waitcnt lgkmcnt(1)
v_min3_u32 v20, v20, v21, v22
v_min_u32 v20, v20, v23
v_cmp_ne_u32 vcc, 0, v20
s_waitcnt lgkmcnt(0)
v_pk_add_f32 v[16:17], v[16:17], v[18:19]
s_mov_b64 exec, vcc
v_add_f32 v16, v16, v17
v_bfi_b32 v16, v10, v9, v16
global_store_dword v38, v16, s[26:27] sc1
global_store_dword v38, v16, s[56:57] sc1
global_store_dword v38, v16, s[58:59] sc1
global_store_dword v38, v16, s[68:69] sc1
global_load_dword v62, v35, s[20:21]
s_and_b32 exec_lo, exec_lo, 0xffffff
s_mov_b32 exec_hi, 0
global_load_dword v62, v36, s[20:21]''')
    finish()

    A(f'''L_notw:
s_and_b32 s34, s30, 15
s_lshl2_add_u32 s34, s34, s28
s_andn2_b32 s35, s34, 7
s_add_u32 s35, s35, s34
s_add_u32 s35, s35, 8
s_lshl_b32 s64, s29, 7
s_add_u32 s35, s35, s64
s_lshl_b32 s35, s35, 12
v_lshl_add_u32 v127, v0, 7, s35
s_lshr_b32 s34, s34, 1
s_lshl_b32 s34, s34, 4
v_lshrrev_b32 v61, 2, v0
v_add_u32 v61, s34, v61
v_mul_u32_u24 v61, 2752, v61
v_and_b32 v15, 3, v0
v_lshlrev_b32 v62, 7, v15
v_min_u32 v62, 348, v62
s_mul_i32 s34, s29, 352
v_add3_u32 v61, v61, v62, s34
s_bitcmp1_b32 s28, 0
s_cselect_b32 s64, s18, s16
s_cselect_b32 s65, s19, s17
s_mov_b32 s66, {512*2752}
s_mov_b32 s67, 0x20000
s_cmp_lt_u32 s30, 27
s_cbranch_scc1 L_rolef''')
    def bars():
        A(f'''{BAR12}
s_mov_b32 exec_hi, 0
global_load_dword v62, v127, s[12:13]
s_mov_b32 exec_hi, -1
{BAR3}
buffer_load_dword v62, v61, s[64:67], 0 offen''')

    A(f'''s_cmp_lt_u32 s30, 28
s_cbranch_scc1 L_norole
s_cmp_lg_u32 s28, 0
s_cbranch_scc1 L_norole
s_lshl2_add_u32 s63, s29, s30
s_sub_u32 s63, s63, 28
s_lshr_b32 s34, s63, 1
s_xor_b32 s34, s34, s63
s_and_b32 s34, s34, 2
s_mul_i32 s34, s34, 3
s_xor_b32 s63, s63, s34
s_lshl_b32 s34, s63, 6
s_add_u32 s34, s34, {WS_C}
v_lshrrev_b32 v44, 2, v0
v_and_b32 v45, 12, v44
v_add_u32 v44, v44, v45
v_lshl_add_u32 v44, v44, 11, v10
v_lshl_add_u32 v44, v15, 4, v44
v_add_u32 v44, s34, v44''')
    for n in range(1, 6): A(f'v_add_u32 v{44+n}, {65536*n}, v44')
    A(f'''s_lshr_b32 s34, s63, 3
s_lshl_b32 s34, s34, 7
s_and_b32 s35, s63, 3
s_lshl_b32 s35, s35, 5
s_add_u32 s34, s34, s35
s_and_b32 s35, s63, 4
s_add_u32 s34, s34, s35
v_lshl_add_u32 v51, v15, 3, v14
v_add_lshl_u32 v51, v51, s34, 1
global_load_ushort v43, v51, s[4:5]
s_lshl_b32 s34, s34, 2
s_and_b32 s35, s29, 3
s_lshl_b32 s35, s35, 15
s_add_u32 s34, s34, s35
s_add_u32 s34, s34, {WS_B}
v_bfe_u32 v50, v0, 2, 3
v_and_b32 v52, 4, v50
v_add_u32 v50, v50, v52
v_lshl_add_u32 v50, v50, 11, v10
v_lshl_add_u32 v50, v15, 5, v50
v_add_u32 v50, s34, v50
v_mov_b32 v52, {WS_E}
v_mov_b32 v53, s3''')
    tagreg(9, 50, 8)
    A('v_mov_b32 v116, v8\nv_mov_b32 v117, 0\nv_mov_b32 v118, 0\nv_mov_b32 v119, 0')
    A('v_mov_b32 v36, v9\nv_mov_b32 v37, 0\nv_mov_b32 v38, 0\nv_mov_b32 v39, 0')
    bars()
    def cload():
        for n in range(6): A(('s_mov_b64 exec, 0xffffff\n' if n == 5 else '') + f'global_load_dwordx4 v[{96+4*n}:{99+4*n}], v{44+n}, s[26:27] sc1')
        A('s_mov_b64 exec, -1')
    cload()
    A(f'''; h = x + o @ wo for these columns
s_mov_b32 s62, {SPIN}
L_rb:
s_sleep 1
s_mov_b32 exec_hi, 0
global_load_dwordx4 v[36:39], v50, s[26:27] sc1
s_mov_b32 exec_hi, -1
s_sub_u32 s62, s62, 1
s_cbranch_scc1 L_rbok
s_waitcnt vmcnt(0)
v_xor_b32 v40, v36, v9
v_and_b32 v42, v11, v40
v_cmp_ne_u32 vcc, 0, v42
s_cbranch_vccnz L_rb
L_rbok:
{probe(lat[1]) if lat and lat[0] == 1 else ''}
{P(5)}s_cmp_eq_u32 s63, 0
s_cselect_b32 exec_lo, 1, 0
s_mov_b32 exec_hi, 0
global_store_dword v52, v53, s[26:27] sc1
s_mov_b64 exec, -1
v_permlane32_swap_b32 v40, v38
v_permlane32_swap_b32 v37, v39
v_permlane16_swap_b32 v40, v37
v_add_f32 v40, v40, v37
v_lshlrev_b32 v43, 16, v43
v_add_f32_dpp v40, v40, v40 row_ror:8 {FULL}
v_add_f32_dpp v40, v40, v40 row_ror:4 {FULL}
v_add_f32 v40, v40, v43''')
    rnd(40)
    gather(cload, 6, 42)
    A(f'''v_permlane16_swap_b32 v16, v17
v_add_f32 v16, v16, v17
v_add_f32_dpp v16, v16, v16 row_ror:8 {FULL}
v_add_f32_dpp v16, v16, v16 row_ror:4 {FULL}
s_mov_b32 exec_lo, 0x000f000f
v_add_f32 v16, v16, v40
s_mov_b32 exec_hi, 0x000f000f
v_cvt_pk_bf16_f32 v16, v16, v16
global_store_short v51, v16, s[22:23]''')
    if amp:
        A(P(6) + f'''s_memrealtime s[58:59]
s_waitcnt lgkmcnt(0)
s_sub_u32 s96, s100, s96
s_mul_i32 s96, s96, {amp[2]}
s_cmp_lg_u32 s2, {amp[3] if amp[3] >= 0 else 's2'}
s_cbranch_scc1 L_ampd
L_amp:
s_memrealtime s[100:101]
s_waitcnt lgkmcnt(0)
s_sub_u32 s100, s100, s58
s_cmp_lt_u32 s100, s96
s_cbranch_scc1 L_amp
L_ampd:''')
    finish(1)
    A('L_norole:')
    bars()
    finish()

    A(f'''.p2align 12
L_rolef:
s_mul_i32 s63, s29, 11
s_add_u32 s63, s63, s30
s_sub_u32 s63, s63, 16
s_cmp_ge_u32 s63, 86
s_cbranch_scc1 L_norole
s_mul_i32 s34, s28, {128*2752}
s_lshl_b32 s35, s63, 5
s_add_u32 s34, s34, s35
s_add_u32 s36, s16, s34
s_addc_u32 s37, s17, 0
s_mov_b32 s38, {127*2752+32}
s_mov_b32 s39, 0x20000
s_add_u32 s40, s18, s34
s_addc_u32 s41, s19, 0
s_mov_b32 s42, {127*2752+32}
s_mov_b32 s43, 0x20000
s_lshl_b32 s34, s63, 14
s_lshl_b32 s35, s28, 8
s_add_u32 s34, s34, s35
s_add_u32 s20, s20, s34
s_addc_u32 s21, s21, 0
s_add_u32 s4, s4, s35
s_addc_u32 s5, s5, 0
s_and_b32 s34, s29, 3
s_lshl_b32 s34, s34, 15
s_lshl1_add_u32 s34, s35, s34
s_add_u32 s34, s34, {WS_B+4096}
s_add_u32 s44, s26, s34
s_addc_u32 s45, s27, 0
v_lshl_add_u32 v6, v12, 14, v13
v_add_u32 v6, v6, v10
v_and_b32 v58, 12, v0
v_add_u32 v58, v58, v14
v_mul_u32_u24 v58, 80, v58
v_lshl_add_u32 v58, v15, 4, v58
v_bfe_u32 v15, v0, 3, 1
v_lshl_add_u32 v15, v15, 3, v12
v_bfe_u32 v33, v0, 2, 1
v_lshl_add_u32 v15, v15, 1, v33
v_bfe_u32 v33, v0, 4, 1
v_lshl_add_u32 v15, v15, 1, v33
v_bfe_u32 v33, v0, 1, 1
v_lshl_add_u32 v15, v15, 1, v33
v_mul_u32_u24 v15, 2752, v15
v_and_b32 v40, 1, v0
v_lshlrev_b32 v40, 4, v40
v_add_u32 v15, v15, v40
v_lshl_add_u32 v33, v0, 3, s47
v_lshrrev_b32 v36, 1, v13
v_lshl_add_u32 v36, v12, 2, v36
global_load_dword v32, v36, s[4:5]
v_and_b32 v38, 15, v0
v_lshlrev_b32 v34, 4, v38
v_lshl_add_u32 v34, v14, 10, v34
v_add_u32 v34, 0x1000, v34
v_add_u32 v35, 0x2000, v34
s_lshl_b32 s34, s28, 3
v_lshl_add_u32 v60, v12, 2, s34
s_add_u32 s34, s34, {L_OP}
v_mul_u32_u24 v57, 80, v38
v_add_u32 v57, s34, v57
v_lshl_add_u32 v57, v14, 2, v57
s_andn2_b32 s34, s63, 3
s_add_u32 s34, s34, s63
s_lshl2_add_u32 s34, s34, s28
s_lshl_b32 s34, s34, 9
s_add_u32 s34, s34, {WS_C}
v_lshl_add_u32 v59, v12, 13, v13
v_add_u32 v59, s34, v59
v_mov_b32 v44, 0x3f803f80
v_mov_b32 v63, {L_RED}
v_mov_b32 v46, {EPS:#x}
v_mov_b32 v41, 0xffff
v_lshlrev_b32 v40, v40, v41
v_bfe_u32 v41, v0, 1, 2
s_mov_b32 s60, 1
s_mov_b32 s61, 1''')
    for i in range(16): A(f'v_mov_b32 v{72+i}, v44')
    for w in range(4): A(f'v_cmp_eq_u32 vcc, {w}, v41\nv_cndmask_b32 v{48+w}, 0, v40, vcc')
    bars()
    for t in range(4):
        for m in range(2):
            A(f's_add_u32 m0, s47, {4096*m+1024*t}\ns_mov_b32 s34, {16*t*2752}')
            A(f'buffer_load_dwordx4 v15, s[{36+4*m}:{39+4*m}], s34 offen lds')
    def bload():
        for n in range(4): A(f'global_load_dwordx4 v[{96+4*n}:{99+4*n}], v6, s[44:45] offset:{2048*n-4096} sc1')
    for t in range(4):
        A(f's_waitcnt vmcnt({6-2*t})')
        if t == 3: bload()
        for m in range(2):
            for hf in range(2):
                r = 128 + 16 * m + 4 * t + 2 * hf
                A(f'ds_read_b64_tr_b16 v[{r}:{r+1}], v33 offset:{4096*m+1024*t+512*hf}')
        if t == 0: A('v_and_b32 v41, 0xffff0000, v32\nv_lshlrev_b32 v40, 16, v32')
    gather(bload, 4, 42, issued=True)
    A('''; h @ W with LN folded in: A rows 4-7 stay all ones and yield the column sums; moments of h on the side
v_pk_add_f32 v[16:17], v[16:17], v[40:41]
v_cvt_pk_bf16_f32 v18, v16, v17
v_dot2_f32_bf16 v16, v18, v44, 0
v_dot2_f32_bf16 v17, v18, v18, 0
s_waitcnt lgkmcnt(0)''')
    op = {f'm{i}': o for i, o in enumerate(bcast(18, 72, 0xd))}
    op.update({f'd{r}': f'v_add_f32_dpp v16, v16, v16 row_ror:{r} {FULL}' for r in (8, 4, 2, 1)})
    op.update({f'L{n}': f'global_load_dwordx4 v[{160+4*n}:{163+4*n}], v{34+(n>>1)}, s[20:21] offset:{4096*(n&1)-4096}' for n in range(4)})
    for n in range(8):
        t, m = n >> 1, n & 1
        c = f'v[{64+4*m}:{67+4*m}]'
        op[f'M{n}'] = f'v_mfma_f32_16x16x32_bf16 {c}, v[{72+4*t}:{75+4*t}], v[{128+16*m+4*t}:{131+16*m+4*t}], {c if t else 0}'
    op.update(S32='v_permlane32_swap_b32 v16, v17', S16='v_permlane16_swap_b32 v16, v17', A='v_add_f32 v16, v16, v17', mv='v_mov_b32 v17, v16',
              wr=f's_mov_b64 exec, s[60:61]\nds_write_b32 v60, v16 offset:{L_RED}\ns_mov_b64 exec, -1', bar='s_waitcnt lgkmcnt(0)\ns_barrier',
              rd='ds_read_b128 v[24:27], v63\nds_read_b128 v[28:31], v63 offset:16')
    for o in 'm0 m1 S32 m2 A m3 m4 d8 M0 m5 d4 m6 M1 d2 m7 m8 d1 mv M2 m9 S16 A wr M3 m10 m11 L0 L1 M4 m12 m13 m14 m15 M5 L2 L3 bar M6 rd M7'.split(): A(op[o])
    A(f'''s_mov_b32 exec_hi, 0
ds_write2_b32 v57, v64, v68 offset0:0 offset1:8
s_mov_b32 exec_hi, -1
s_waitcnt lgkmcnt(1)
v_pk_add_f32 v[24:25], v[24:25], v[26:27]
v_pk_add_f32 v[28:29], v[28:29], v[30:31]
v_pk_add_f32 v[24:25], v[24:25], v[28:29]
s_waitcnt lgkmcnt(0)
s_barrier
ds_read_b128 v[16:19], v58 offset:{L_OP}
v_mul_f32 v24, 0xbb000000, v24       ; -mean
v_fmamk_f32 v28, v25, 0x3b000000, v46
v_fma_f32 v28, -v24, v24, v28
v_max_f32 v28, v28, v46
v_rsq_f32 v29, v28
s_waitcnt lgkmcnt(0)
v_pk_add_f32 v[16:17], v[16:17], v[18:19]
v_fmac_f32 v16, v24, v17
v_rcp_f32 v28, v28
v_mul_f32 v29, {LOG2E ^ 0x80000000:#x}, v29
v_add_f32_dpp v16, v16, v16 quad_perm:[1,0,3,2] {FULL}
v_mul_f32 v17, v16, v29
v_exp_f32 v17, v17
v_mul_f32_dpp v18, v16, v16 quad_perm:[2,3,0,1] {FULL}
v_add_f32 v17, 1.0, v17
v_rcp_f32 v17, v17
v_mul_f32 v18, v18, v28
v_mul_f32 v16, v18, v17
v_cvt_pk_bf16_f32 v16, v16, v16
s_waitcnt vmcnt(0)
; act @ w_down on row-major weights: A holds act on a diagonal''')
    ops = [f'v_and_b32_dpp v{72+4*n+w}, v16, v{48+w} row_newbcast:{4*n} {FULL}' for n in range(4) for w in range(4)]
    for n in range(4):
        for o in ops[(4 * n + 2 if n else 0):4 * n + 6]: A(o)
        A(f'v_mfma_f32_16x16x32_bf16 v[64:67], v[{72+4*n}:{75+4*n}], v[{160+4*n}:{163+4*n}], {"v[64:67]" if n else 0}')
    A('v_bfi_b32 v64, v11, v8, v64\nglobal_store_dwordx4 v59, v[64:67], s[26:27] sc1')
    finish()

    A(f'''.p2align 12
L_vwave:
s_add_u32 s36, s8, s34
s_addc_u32 s37, s9, 0
s_lshl3_add_u32 s35, s31, s32
s_lshl_b32 s35, s35, 10
s_add_u32 s44, s26, s35
s_addc_u32 s45, s27, 0
v_mov_b32 v56, {L_SY}
s_lshr_b32 s56, s2, 6
s_lshl_b32 s56, s56, 7
s_and_b32 s35, s2, 63
s_add_u32 s56, s56, s35
s_lshl_b32 s56, s56, 7
s_add_u32 s56, s56, {WS_PR}
s_cmp_lg_u32 s28, 5
s_cbranch_scc1 L_nowarm
s_load_dword s54, s[26:27], s56 glc
s_load_dword s55, s[26:27], s56 offset:0x2000 glc
L_nowarm:
v_and_b32 v28, 1, v0
v_cmp_eq_u32 vcc, 1, v28
v_mov_b32 v29, 0x0c0c0100
v_mov_b32 v30, 0x01000c0c
v_cndmask_b32 v29, v29, v30, vcc
v_mov_b32 v30, 0x0c0c0302
v_mov_b32 v31, 0x03020c0c
v_cndmask_b32 v30, v30, v31, vcc
v_mov_b32 v31, 0x0c0c0c0c
v_bfe_u32 v28, v0, 1, 2''')
    for w in range(4): A(f'v_cmp_eq_u32 vcc, {w}, v28\nv_cndmask_b32 v{40+w}, v31, v29, vcc\nv_cndmask_b32 v{44+w}, v31, v30, vcc')
    A(f'''s_lshl_b32 s34, s63, 10
s_add_u32 s34, s34, {L_OP}
v_lshrrev_b32 v12, 5, v0
v_lshl_add_u32 v12, v12, 9, s34
v_lshl_add_u32 v12, v4, 1, v12
v_bfe_u32 v13, v0, 4, 1
v_lshl_add_u32 v12, v13, 4, v12
v_lshlrev_b32 v14, 3, v0
s_lshl_b32 s34, s32, 5
s_add_u32 s34, s34, s63
s_lshl_b32 s34, s34, 2
v_lshl_add_u32 v6, v3, 4, s34
v_mov_b32 v57, 1
s_waitcnt vmcnt(4)''')
    layernorm(24, 28)
    A(f'ds_write_b128 v5, v[24:27] offset:{L_H}\ns_waitcnt lgkmcnt(0)\nds_read_b32 v48, v6 offset:{L_H}\ns_add_u32 s3, s3, {EPOCH_STEP:#x}')
    tagreg(8, 14, 4)
    A('s_waitcnt lgkmcnt(0)')
    for n in range(2): afrag(24 + 4 * n, 48, n)
    A('s_waitcnt vmcnt(0)')
    for n in range(2):
        for hf in range(2):
            c = f'v[{16+4*hf}:{19+4*hf}]'
            A(f'v_mfma_f32_16x16x32_bf16 {c}, v[{24+4*n}:{27+4*n}], v[{64+8*n+4*hf}:{67+8*n+4*hf}], {c if n else 0}')
    part_write = '''s_mov_b32 exec_lo, 0x00ff00ff
s_mov_b32 exec_hi, 0xff00ff00
ds_write_b128 v12, v[16:19]
ds_write_b128 v12, v[20:23] offset:256'''
    A(f'''{part_write}
s_mov_b64 exec, 1
s_waitcnt lgkmcnt(0)
ds_add_u32 v56, v57 offset:48
s_mov_b64 exec, -1
s_cmp_lg_u32 s28, 4
s_cbranch_scc1 L_vstream''')
    ldsspin('ds_read_b32 v15, v56 offset:48', 'v_cmp_ne_u32 vcc, 4, v15')
    for n in range(4): A(f'ds_read_b128 v[{16+4*n}:{19+4*n}], v5 offset:{L_OP+1024*n}')
    A('s_waitcnt lgkmcnt(0)')
    for i in (0, 2, 8, 10): A(f'v_pk_add_f32 v[{16+i}:{17+i}], v[{16+i}:{17+i}], v[{20+i}:{21+i}]')
    for i in (0, 2): A(f'v_pk_add_f32 v[{16+i}:{17+i}], v[{16+i}:{17+i}], v[{24+i}:{25+i}]')
    A(f'''v_permlane32_swap_b32 v16, v18
v_permlane32_swap_b32 v17, v19
v_pk_add_f32 v[16:17], v[16:17], v[18:19]
v_and_or_b32 v16, v16, -16, v8
v_and_or_b32 v17, v17, -16, v8
global_store_dwordx2 v14, v[16:17], s[44:45]
L_vstream:
s_setprio 0
s_getreg_b32 s34, hwreg(HW_REG_XCC_ID, 0, 4)
s_andn2_b32 s46, s3, 31
s_or_b32 s46, s46, s34
s_lshl_b32 s47, s29, 8
s_add_u32 s47, s47, {WS_X}
s_cmp_lg_u32 s28, 5
s_cbranch_scc1 L_noprobe
s_mov_b32 s54, -1
s_mov_b32 s55, -1
s_waitcnt lgkmcnt(0)''')
    for i in range(4):
        A(f's_memtime s[50:51]\ns_load_dword s35, s[26:27], s56 offset:{0x2000 * (i & 1)} glc\ns_waitcnt lgkmcnt(0)\ns_memtime s[52:53]\ns_waitcnt lgkmcnt(0)\ns_sub_u32 s35, s52, s50\ns_min_u32 s{54 + (i & 1)}, s{54 + (i & 1)}, s35')
    A(f'''s_cmp_lt_u32 s55, s54
s_cselect_b32 s35, 16, 0
s_or_b32 s34, s46, s35
v_mov_b32 v31, s34
s_lshl2_add_u32 s34, s30, s47
v_mov_b32 v30, s34
s_mov_b64 exec, 1
global_store_dword v30, v31, s[26:27]
s_mov_b64 exec, -1
L_noprobe:
s_lshl_b32 s34, s63, 2
v_mov_b32 v28, s34
v_and_b32 v30, 31, v0
v_lshl_add_u32 v30, v30, 2, s47''')
    ldsspin(f'ds_read_b32 v15, v28 offset:{L_SY+64}', 'v_cmp_eq_u32 vcc, 0, v15', 1)
    stream({XPOS: 'global_load_dword v29, v30, s[26:27] sc1',
            XPOS + THR: '''v_and_b32 v29, -17, v29
v_cmp_ne_u32 s[48:49], s46, v29
s_cmp_eq_u64 s[48:49], 0
s_cselect_b64 s[50:51], -1, 0
s_cselect_b64 s[52:53], 0, -1
s_cbranch_scc0 L_requeue
L_requeued:'''}, XPOS)
    cold.append(lambda: A('''L_requeue:
s_cmp_lg_u32 s28, 4
s_cbranch_scc1 L_requeued
global_store_dwordx2 v14, v[16:17], s[44:45] sc1
s_waitcnt vmcnt(0)
s_branch L_requeued'''))
    A('v_mov_b32 v11, 0xff')
    tagreg(8, 14, 8)
    tagmask(10, 14)
    A(f'''s_lshl_b32 s34, s63, 8
v_lshl_add_u32 v6, v3, 5, s34
s_barrier
ds_read_b128 v[48:51], v6 offset:{L_P}
ds_read_b128 v[52:55], v6 offset:{L_P+16}
s_waitcnt lgkmcnt(0)''')
    for i in range(16): afrag(64 + 4 * i, 48 + i // 2, i & 1)
    for i in range(16):
        for hf in range(2):
            if (i, hf) == (12, 0): A('s_setprio 3')
            if i >= 12: A(f's_waitcnt vmcnt({31-2*i-hf})')
            if (i, hf) == (12, 0): A('s_barrier')
            c = f'v[{16+4*hf}:{19+4*hf}]'
            A(f'v_mfma_f32_16x16x32_bf16 {c}, v[{64+4*i}:{67+4*i}], v[{128+8*i+4*hf}:{131+8*i+4*hf}], {c if i else 0}')
    A(f'''; the wave that finds all four partials published sums them and stores the record
{part_write}
ds_write_b32 v28, v11 offset:{L_SY+80}
s_mov_b64 exec, -1
ds_read_b128 v[32:35], v56 offset:80''')
    for n in range(4): A(f'ds_read_b128 v[{64+4*n}:{67+4*n}], v5 offset:{L_OP+1024*n}')
    A('''s_waitcnt lgkmcnt(4)
v_min3_u32 v32, v32, v33, v34
v_min_u32 v32, v32, v35
v_cmp_ne_u32 vcc, 0, v32
s_waitcnt lgkmcnt(2)
v_pk_add_f32 v[64:65], v[64:65], v[68:69]
v_pk_add_f32 v[66:67], v[66:67], v[70:71]
s_and_b64 s[50:51], s[50:51], vcc
s_and_b64 s[52:53], s[52:53], vcc
s_waitcnt lgkmcnt(0)
v_pk_add_f32 v[72:73], v[72:73], v[76:77]
v_pk_add_f32 v[74:75], v[74:75], v[78:79]
v_pk_add_f32 v[64:65], v[64:65], v[72:73]
v_pk_add_f32 v[66:67], v[66:67], v[74:75]
v_permlane32_swap_b32 v64, v66
v_permlane32_swap_b32 v65, v67
v_pk_add_f32 v[64:65], v[64:65], v[66:67]
v_bfi_b32 v64, v10, v8, v64
s_mov_b64 exec, s[50:51]
global_store_dwordx2 v14, v[64:65], s[44:45]
s_mov_b64 exec, s[52:53]
global_store_dwordx2 v14, v[64:65], s[44:45] sc1
s_barrier''')
    if span == 2: A('s_cmp_lg_u32 s30, 31\ns_cbranch_scc1 L_exit\ns_cmp_lg_u32 s28, 5\ns_cbranch_scc1 L_exit\ns_mov_b32 s28, 1')
    finish(2)
    A(f'L_exit:\ns_endpgm\nL_code_end:\n.fill (L_pc+16384-L_code_end)/4, 4, 0xbf810000')
    A.raw(f'''.section .rodata,"a"
.p2align 6
.amdhsa_kernel {NAME}_kernel
  .amdhsa_next_free_vgpr 256
  .amdhsa_next_free_sgpr 102
  .amdhsa_accum_offset 256
  .amdhsa_group_segment_fixed_size 0
  .amdhsa_kernarg_size 96
  .amdhsa_user_sgpr_count 2
  .amdhsa_user_sgpr_kernarg_segment_ptr 1
  .amdhsa_system_sgpr_workgroup_id_x 1
  .amdhsa_float_denorm_mode_32 3
.end_amdhsa_kernel''')
    return A.text()

if __name__ == '__main__':
    out = sys.argv[1] if len(sys.argv) > 1 else f'cdna_kernels/{NAME}.s'
    open(out, 'w').write(gen(**eval('dict(' + (sys.argv[2] if len(sys.argv) > 2 else '') + ')')))
```

```python
import sys
from asmlib import Asm

NAME = 'sequential_preLN__sliding_block_cached__swiglu_ffn__decode'
WS_QA, WS_B, WS_PR, WS_ML, WS_X, WS_E, WS_C, WS_ST = 0x0, 0x40000, 0x60000, 0x70000, 0x72000, 0x73000, 0x80000, 0x100000
EPOCH_STEP = 0x5bd1e3c7
L_P, L_OP, L_H, L_RED, L_SY, L_Q, L_W = 0x0, 0x400, 0x1400, 0x1800, 0x1a00, 0x1b00, 0x1c00
LDS_BYTES = L_W + 0x8000
SPIN = 0x40000
LOG2E, SCALE, EPS = 0x3fb8aa3b, 0x3db504f3, 0x3727c5ac
FULL = 'row_mask:0xf bank_mask:0xf'
THR, KPRE, QPOS, XPOS, GOW = 8, 2, 24, 16, 8

BAR12 = 's_barrier\ns_barrier'
BAR3 = 's_barrier'

DOC = '''\
;   found nearer. Either copy holds the same data.'''

def gen(span=0, amp=None, tt='xwqqVVVVguood...', tw=4, kpre=2, vaft=True, gl='glc', par=0, pa=0, pb=0, pc=0, lateprio=True, epos=None):
    def P(n):
        return ('s_memrealtime s[96:97]\n' if amp and amp[0] == n else '') + ('s_memrealtime s[100:101]\n' if amp and amp[1] == n else '')
    global BAR12, BAR3
    BAR12 = 's_barrier\n' + P(3) + 's_barrier'
    BAR3 = 's_barrier\n' + P(4)
    global KPRE
    KPRE = kpre
    if tt:
        slot = {'x': 0, 'K': 1, 'V': 2, 'q': 3, 'o': 4, 'g': 6, 'u': 7, 'd': 8, 'O': 9, 'w': 11, '.': 15}
        nib = sum(slot[c] << (4 * i) for i, c in enumerate(tt))
        tsel = f'''; one uncached scalar read per page and group starts every address translation at once
s_and_b32 s51, s32, 1
s_lshl3_add_u32 s51, s51, s28
s_cmp_lg_u32 s51, {tw + 8 * par}
s_cbranch_scc1 L_nosel
s_mov_b32 s48, {nib & 0xffffffff:#x}
s_mov_b32 s49, {nib >> 32:#x}
s_lshr_b32 s50, s30, 3
s_and_b32 s51, s30, 3
s_lshl2_add_u32 s50, s50, s51
s_lshl_b32 s50, s50, 2
s_lshr_b64 s[48:49], s[48:49], s50
s_and_b32 s48, s48, 15
s_lshl_b32 m0, s48, 1
s_cmp_eq_u32 s51, 3
s_cselect_b32 s50, 0x200000, 0
s_sub_u32 s51, s48, 1
s_cmp_lt_u32 s51, 2
s_cselect_b32 s50, s34, s50
s_cmp_eq_u32 s48, 15
L_nosel:'''
        tdo = f's_cbranch_scc1 L_nott\ns_movrels_b64 s[48:49], s[4:5]\ns_load_dword s51, s[48:49], s50 {gl}\nL_nott:'
    A = Asm()
    cold = []
    uid = [0]
    def lab(s):
        uid[0] += 1
        return f'L_{s}_{uid[0]}'
    def finish(last=0):
        if span and last == span:
            A(f'''s_memrealtime s[96:97]
s_waitcnt lgkmcnt(0)
v_writelane_b32 v7, s96, 15
v_writelane_b32 v7, s98, 0
s_mov_b64 exec, 0xffff
s_lshl3_add_u32 s34, s2, s28
s_lshl_b32 s34, s34, 6
s_add_u32 s34, s34, {WS_ST}
v_lshl_add_u32 v1, v0, 2, s34
global_store_dword v1, v7, s[26:27]''')
        A('s_endpgm')
        for f in cold: f()
        cold.clear()
    def wred(op, v, t):
        for r in (8, 4, 2, 1): A(f'{op}_dpp v{v}, v{v}, v{v} row_ror:{r} {FULL}')
        for sw in (16, 32): A(f'v_mov_b32 v{t}, v{v}\nv_permlane{sw}_swap_b32 v{v}, v{t}\n{op} v{v}, v{v}, v{t}')
    def rnd(v):
        A(f'v_cvt_pk_bf16_f32 v{v}, v{v}, v{v}\nv_lshlrev_b32 v{v}, 16, v{v}')
    def layernorm(x, u):
        s, t, mb, dl = u + 8, u + 9, u + 10, u + 11
        for i in range(4): A(f'v_lshlrev_b32 v{u+2*i}, 16, v{x+i}\nv_and_b32 v{u+2*i+1}, 0xffff0000, v{x+i}')
        A(f'v_add_f32 v{s}, v{u}, v{u+1}\nv_add_f32 v{t}, v{u+2}, v{u+3}\nv_add_f32 v{mb}, v{u+4}, v{u+5}\nv_add_f32 v{dl}, v{u+6}, v{u+7}')
        A(f'v_add_f32 v{s}, v{s}, v{t}\nv_add_f32 v{mb}, v{mb}, v{dl}\nv_add_f32 v{s}, v{s}, v{mb}')
        wred('v_add_f32', s, t)
        A(f'v_mul_f32 v{dl}, 0x3b000000, v{s}')
        A(f'v_cvt_pk_bf16_f32 v{mb}, v{dl}, v{dl}\nv_lshlrev_b32 v{mb}, 16, v{mb}')
        for i in range(8): A(f'v_sub_f32 v{u+i}, v{u+i}, v{mb}')
        A(f'v_sub_f32 v{dl}, v{dl}, v{mb}')
        A(f'v_mul_f32 v{s}, v{u}, v{u}\nv_mul_f32 v{t}, v{u+1}, v{u+1}')
        for i in range(2, 8, 2): A(f'v_fmac_f32 v{s}, v{u+i}, v{u+i}\nv_fmac_f32 v{t}, v{u+i+1}, v{u+i+1}')
        A(f'v_add_f32 v{s}, v{s}, v{t}')
        fill = [f'v_cvt_pk_bf16_f32 v{x+i}, v{u+2*i}, v{u+2*i+1}' for i in range(4)]
        for i in range(4): fill += [f'v_lshlrev_b32 v{u+2*i}, 16, v{x+i}', f'v_and_b32 v{u+2*i+1}, 0xffff0000, v{x+i}']
        fill.append(f'v_mul_f32 v{dl}, v{dl}, v{dl}')
        for r in (8, 4, 2, 1):
            A(fill.pop(0)); A(fill.pop(0))
            A(f'v_add_f32_dpp v{s}, v{s}, v{s} row_ror:{r} {FULL}')
        for sw in (16, 32):
            A(f'v_mov_b32 v{t}, v{s}'); A(fill.pop(0)); A(fill.pop(0))
            A(f'v_permlane{sw}_swap_b32 v{s}, v{t}\nv_add_f32 v{s}, v{s}, v{t}')
        A(fill.pop(0))
        A(f'v_mul_f32 v{s}, 0x3b000000, v{s}\nv_sub_f32 v{s}, v{s}, v{dl}\nv_max_f32 v{s}, 0, v{s}')
        rnd(s)
        A(f'v_add_f32 v{s}, {EPS:#x}, v{s}'); rnd(s)
        A(f'v_sqrt_f32 v{s}, v{s}'); rnd(s)
        A(f'v_rcp_f32 v{s}, v{s}')
        for i in range(8): A(f'v_mul_f32 v{u+i}, v{u+i}, v{s}')
        for i in range(4): A(f'v_cvt_pk_bf16_f32 v{x+i}, v{u+2*i}, v{u+2*i+1}')
    def afrag(dst, src, par):
        for w in range(4): A(f'v_perm_b32 v{dst+w}, v{src}, v{src}, v{40+4*par+w}')
    def bcast(src, dst, bank):
        return [f'v_mov_b32_dpp v{dst+i}, v{src} row_newbcast:{i} row_mask:0xf bank_mask:{bank:#x}' for i in range(16)]
    def tagreg(dst, addr, bits):
        A(f'v_lshrrev_b32 v{dst}, 1, v{addr}\nv_xor_b32 v{dst}, v{dst}, v{addr}\nv_bfe_u32 v{dst}, v{dst}, 4, 1\nv_lshlrev_b32 v{dst}, {bits-1}, v{dst}\nv_xor_b32 v{dst}, s3, v{dst}')
        if bits == 4: A(f'v_xor_b32 v{dst}, 4, v{dst}')
        A(f'v_and_b32 v{dst}, {(1 << bits) - 1}, v{dst}')
    def tagmask(dst, addr):
        A(f'v_and_b32 v{dst}, 15, v{addr}\nv_cmp_eq_u32 vcc, 0, v{dst}\nv_cndmask_b32 v{dst}, 0, v11, vcc')
    def gather(load, n, t, issued=False):
        x, y, T, d = 96, 120, 8, 16
        L, Lc, Lo = lab('again'), lab('chk'), lab('ok')
        A(f'; repeat the round until word 0 of every granule carries the tag, then sum the partials\ns_mov_b32 s62, {SPIN}')
        if issued: A(f's_branch {Lc}')
        A(f'{L}:')
        load()
        A(f's_sub_u32 s62, s62, 1\ns_cbranch_scc1 {Lo}\n{Lc}:')
        for i in range(n):
            if i % 2 == 0: A(f's_waitcnt vmcnt({n-2-i})')
            A(f'v_xor_b32 v{y+i}, v{x+4*i}, v{T}')
            if i % 2 == 1:
                dd = d + 2 * (i - 1)
                if i == 1: A(f'v_or_b32 v{t}, v{y}, v{y+1}')
                elif i < n - 1: A(f'v_or3_b32 v{t}, v{t}, v{y+i-1}, v{y+i}')
                else: A(f'v_or_b32 v{t}, v{t}, v{y+i-1}\nv_bitop3_b32 v{t}, v{t}, v{y+i}, v11 bitop3:0xa8\nv_cmp_ne_u32 vcc, 0, v{t}')
                A(f'v_pk_add_f32 v[{dd+2}:{dd+3}], v[{x+4*i-2}:{x+4*i-1}], v[{x+4*i+2}:{x+4*i+3}]')
                if i == n - 1: A(f's_cbranch_vccnz {L}\n{Lo}:')
                A(f'v_add_f32 v{dd}, v{y+i-1}, v{y+i}\nv_add_f32 v{dd+1}, v{x+4*i-3}, v{x+4*i+1}')
                if i > 1:
                    for r in (2, 0): A(f'v_pk_add_f32 v[{d+r}:{d+r+1}], v[{d+r}:{d+r+1}], v[{dd+r}:{dd+r+1}]')
        A(f'v_permlane32_swap_b32 v{d}, v{d+2}\nv_permlane32_swap_b32 v{d+1}, v{d+3}')
        A(f'v_pk_add_f32 v[{d}:{d+1}], v[{d}:{d+1}], v[{d+2}:{d+3}]')
    def ldsspin(reads, test, slp=0):
        L, Ld = lab('spin'), lab('spun')
        A(f's_mov_b32 s62, {SPIN}\n{L}:')
        if slp: A(f's_sleep {slp}')
        A(f'{reads}\ns_waitcnt lgkmcnt(0)\n{test}\ns_cbranch_vccz {Ld}\ns_sub_u32 s62, s62, 1\ns_cbranch_scc0 {L}\n{Ld}:')
    def stream(hooks, extra_at):
        A(f'; 16 tiles of 8 keys x 256 B, at most {THR} loads in flight per wave')
        for i in range(16):
            if i: A('s_addk_i32 s33, 0x100\ns_bitset0_b32 s33, 12')
            if 2 * i >= THR:
                A(f's_waitcnt vmcnt({THR - 2 + (1 if 2 * i - (THR - 2) < extra_at <= 2 * i else 0)})')
            for hf in range(2):
                A(f'buffer_load_dwordx4 v[{128+8*i+4*hf}:{131+8*i+4*hf}], v2, s[36:39], s33 offen offset:{128*hf} nt')
                if 2 * i + hf + 1 in hooks: A(hooks[2 * i + hf + 1])

    for ln in open('cdna_kernels/' + NAME + '.s.ref').read().split('\n'):
        if ln.startswith('; @launch'): A.raw(f'; @launch grid=(256,1,1) block=(512,1,1) lds={LDS_BYTES}'); break
        A.raw(ln)
    A.raw(DOC)
    A.raw(f'.amdgcn_target "amdgcn-amd-amdhsa--gfx950"\n.text\n.globl {NAME}_kernel\n.p2align 12\n.p2align 8\n.type {NAME}_kernel,@function\n{NAME}_kernel:')

    if span: A('s_memrealtime s[98:99]')
    A(P(0))
    A(f'''s_load_dwordx16 s[4:19], s[0:1], 0
s_load_dwordx8 s[20:27], s[0:1], 64
s_getpc_b64 s[40:41]
L_pc:
v_lshrrev_b32 v1, 6, v0
s_lshr_b32 s30, s2, 3                ; k
v_readfirstlane_b32 s28, v1          ; wave
v_and_b32 v0, 63, v0                 ; lane
s_cmp_ge_u32 s2, 256
s_cbranch_scc1 L_exit
s_lshl3_add_u32 s43, s30, s28
s_lshl_b32 s43, s43, 6
v_mov_b32 v1, s43
global_load_dword v1, v1, s[40:41]
s_and_b32 s29, s2, 7                 ; g
s_and_b32 s31, s30, 3
s_lshl2_add_u32 s31, s29, s31        ; head
s_lshr_b32 s32, s30, 2
v_lshrrev_b32 v3, 3, v0              ; lane >> 3
v_and_b32 v4, 7, v0
v_lshlrev_b32 v4, 4, v4              ; (lane & 7) * 16
v_lshl_add_u32 v2, v3, 12, v4
v_lshlrev_b32 v5, 4, v0              ; lane * 16
s_and_b32 s63, s28, 3
s_lshl2_add_u32 s33, s31, s32
s_add_u32 s33, s33, s29
s_and_b32 s33, s33, 15
s_lshl_b32 s33, s33, 8
s_lshl_b32 s34, s31, 6
s_add_u32 s34, s34, s32
s_add_u32 s34, s34, 56
s_lshl2_add_u32 s34, s34, s63
s_lshl_b32 s34, s34, 15
s_mov_b32 s38, 0x8000
s_mov_b32 s39, 0x20000
s_cmp_lt_u32 s28, 4
s_cbranch_scc1 L_kwave
{'' if lateprio else 's_setprio 3'}
s_lshl_b32 s35, s32, 5
s_add_u32 s35, s35, s63
s_lshl_b32 s35, s35, 6
s_add_u32 s35, s35, s31
s_lshl_b32 s35, s35, 8
v_lshl_add_u32 v6, v3, 16, v4
v_add_u32 v12, 0x2000, v6
v_subrev_u32 v13, 12, v0
v_ashrrev_i32 v13, 31, v13
v_lshlrev_b32 v14, 2, v0
ds_write_b32 v14, v13 offset:{L_SY}
{tsel if tt else ''}
s_waitcnt lgkmcnt(0)
{tdo if tt else ''}
{'s_setprio 3' if lateprio else ''}
{'s_barrier' if vaft else ''}
global_load_dwordx4 v[24:27], v5, s[4:5]
s_load_dword s3, s[26:27], {WS_E:#x}
s_add_u32 s10, s10, s35
s_addc_u32 s11, s11, 0''')
    for n in range(2):
        for hf in range(2): A(f'global_load_dwordx4 v[{64+8*n+4*hf}:{67+8*n+4*hf}], v{(6, 12)[n]}, s[10:11] offset:{128*hf} nt')
    A(('' if vaft else 's_barrier\n') + 's_branch L_vwave')

    if pa: A(f'.fill {pa//4}, 4, 0xbf810000')
    A('''L_kwave:
s_setprio 2
s_waitcnt lgkmcnt(0)
s_add_u32 s36, s6, s34
s_addc_u32 s37, s7, 0''')
    qload = 'global_load_dwordx4 v[16:19], v6, s[44:45] sc1'
    eld = f's_load_dword s3, s[26:27], {WS_E:#x}\n'
    stream({KPRE: ('' if epos else eld) + 's_barrier', epos or 99: eld,
            8: '''s_lshl_b32 s34, s31, 6
s_add_u32 s34, s34, s28
s_lshl_b32 s34, s34, 7
s_add_u32 s44, s26, s34
s_addc_u32 s45, s27, 0
v_lshl_add_u32 v6, v3, 10, v4''',
            10: P(1), 32: P(2), QPOS: qload + '   ; 32 columns of the 8 partial q records'}, QPOS)
    if pb: A(f's_branch L_pb\n.fill {pb//4-1}, 4, 0xbf810000\nL_pb:')
    A(f'''v_lshrrev_b32 v12, 5, v0             ; lane >> 5
v_and_b32 v13, 31, v0
v_lshlrev_b32 v13, 4, v13            ; (lane & 31) * 16
s_and_b32 s34, s28, 1
s_lshl_b32 s34, s34, 7
s_and_b32 s35, s28, 2
s_lshl1_add_u32 s34, s35, s34
v_bfe_u32 v14, v0, 4, 1
v_lshl_add_u32 v14, v12, 2, v14
v_lshlrev_b32 v14, 1, v14
v_add3_u32 v14, v14, v4, s34
v_mov_b32 v24, {L_SY}
v_mov_b32 v25, 1
s_lshl_b32 s34, s28, 2
v_mov_b32 v26, s34
s_waitcnt lgkmcnt(0)
s_add_u32 s3, s3, {EPOCH_STEP:#x}''')
    tagreg(8, 5, 4)
    A(f's_waitcnt vmcnt({GOW})\nds_write_b32 v26, v25 offset:{L_SY+64}')
    A(f's_mov_b32 s62, {SPIN}\nL_qchk:')
    for i in range(4): A(f'v_xor_b32 v{20+i}, v{16+i}, v8')
    A('v_or3_b32 v15, v20, v21, v22\nv_bitop3_b32 v15, v15, v23, 15 bitop3:0xa8\nv_cmp_ne_u32 vcc, 0, v15\ns_cbranch_vccnz L_qagain\nL_qok:')
    cold.append(lambda: A(f'L_qagain:\n{qload}\ns_sub_u32 s62, s62, 1\ns_waitcnt vmcnt(0)\ns_cbranch_scc0 L_qchk\ns_branch L_qok'))
    A(f'''v_permlane32_swap_b32 v20, v22
v_permlane32_swap_b32 v21, v23
v_add_f32 v20, v20, v22
v_add_f32 v21, v21, v23
v_permlane16_swap_b32 v20, v21
v_add_f32 v20, v20, v21
v_add_f32_dpp v20, v20, v20 row_ror:8 {FULL}
v_cvt_pk_bf16_f32 v20, v20, v20
ds_write_b16 v14, v20 offset:{L_Q}
s_mov_b64 exec, 1
s_waitcnt lgkmcnt(0)
ds_add_u32 v24, v25 offset:52
s_mov_b64 exec, -1''')
    ldsspin('ds_read_b32 v15, v24 offset:52', 'v_cmp_ne_u32 vcc, 4, v15')
    A(f'ds_read_b128 v[16:19], v4 offset:{L_Q}\nds_read_b128 v[20:23], v4 offset:{L_Q+128}\ns_waitcnt lgkmcnt(0)')
    for i0 in range(0, 16, 4):
        if i0 == 12: A('s_waitcnt vmcnt(0)')
        for e in range(8):
            for i in range(i0, i0 + 4):
                A(f'v_dot2_f32_bf16 v{32+i}, v{128+8*i+e}, v{16+e}, {"v%d" % (32+i) if e else 0}')
    for i in range(8): A(f'v_add_f32_dpp v{32+i}, v{32+i}, v{32+i} row_half_mirror row_mask:0xf bank_mask:0x5')
    for i in range(8): A(f'v_add_f32_dpp v{32+i}, v{40+i}, v{40+i} row_half_mirror row_mask:0xf bank_mask:0xa')
    A('s_mov_b32 vcc_lo, 0xcccccccc\ns_mov_b32 vcc_hi, 0xcccccccc')
    for i in range(4): A(f'v_cndmask_b32 v{40+i}, v{36+i}, v{32+i}, vcc\nv_cndmask_b32 v{32+i}, v{32+i}, v{36+i}, vcc')
    for i in range(4): A(f'v_add_f32_dpp v{32+i}, v{40+i}, v{32+i} quad_perm:[2,3,0,1] {FULL}')
    A('s_mov_b32 vcc_lo, 0xaaaaaaaa\ns_mov_b32 vcc_hi, 0xaaaaaaaa')
    for i in range(2): A(f'v_cndmask_b32 v{40+i}, v{34+i}, v{32+i}, vcc\nv_cndmask_b32 v{32+i}, v{32+i}, v{34+i}, vcc')
    for i in range(2): A(f'v_add_f32_dpp v{32+i}, v{40+i}, v{32+i} quad_perm:[1,0,3,2] {FULL}')
    r2 = 'v_cvt_pk_bf16_f32 v34, v32, v33\nv_lshlrev_b32 v32, 16, v34\nv_and_b32 v33, 0xffff0000, v34'
    A(f'{r2}\nv_mul_f32 v32, {SCALE:#x}, v32\nv_mul_f32 v33, {SCALE:#x}, v33\n{r2}       ; v32, v33 = two scores per lane')
    A('v_max_f32 v34, v32, v33')
    wred('v_max_f32', 34, 36)
    A(f'''v_sub_f32 v35, v32, v34
v_sub_f32 v36, v33, v34
v_mul_f32 v35, {LOG2E:#x}, v35
v_mul_f32 v36, {LOG2E:#x}, v36
v_exp_f32 v35, v35
v_exp_f32 v36, v36
v_add_f32 v35, v35, v36''')
    wred('v_add_f32', 35, 36)
    A(f'''s_lshl_b32 s34, s29, 8
s_add_u32 s34, s34, {WS_X}
v_lshrrev_b32 v10, 2, v13
v_add_u32 v10, s34, v10
global_load_dword v9, v10, s[26:27] sc1
v_min_u32 v34, -2, v34
v_min_u32 v35, -2, v35
v_lshl_add_u32 v37, v26, 1, v24
ds_write_b64 v37, v[34:35]
s_cmp_lg_u32 s28, 0
s_cbranch_scc1 L_mlwait''')
    ldsspin('ds_read_b128 v[40:43], v24\nds_read_b128 v[44:47], v24 offset:16',
            'v_max3_u32 v37, v40, v41, v42\nv_max3_u32 v37, v37, v43, v44\nv_max3_u32 v37, v37, v45, v46\nv_max_u32 v37, v37, v47\nv_cmp_eq_u32 vcc, -1, v37')
    A(f'''s_lshl_b32 s35, s31, 8
s_add_u32 s35, s35, {WS_ML}
v_max3_f32 v48, v40, v42, v44
v_max_f32 v48, v48, v46''')
    for w in range(4): A(f'v_sub_f32 v{40+2*w}, v{40+2*w}, v48')
    for w in range(4): A(f'v_mul_f32 v{40+2*w}, {LOG2E:#x}, v{40+2*w}')
    for w in range(4): A(f'v_exp_f32 v{40+2*w}, v{40+2*w}')
    A('v_mov_b32 v49, s3\nv_mov_b32 v51, s3\nv_mul_f32 v50, v40, v41')
    for w in range(1, 4): A(f'v_fmac_f32 v50, v{40+2*w}, v{41+2*w}')
    A(f'''s_lshl4_add_u32 s34, s32, s35
v_mov_b32 v37, s34
s_mov_b64 exec, 1
global_store_dwordx4 v37, v[48:51], s[26:27] sc1
s_mov_b64 exec, -1
s_mov_b32 s62, {SPIN}
L_ml:
s_sleep 2
s_load_dwordx16 s[64:79], s[26:27], s35 glc
s_load_dwordx16 s[80:95], s[26:27], s35 offset:64 glc
s_waitcnt lgkmcnt(0)
s_and_b32 s34, s65, s3
s_or_b32 s47, s65, s3''')
    for i in range(1, 16): A(f's_and_b32 s34, s34, s{65+2*i}\ns_or_b32 s47, s47, s{65+2*i}')
    A('s_cmp_eq_u32 s34, s47\ns_cbranch_scc1 L_mlgot\ns_sub_u32 s62, s62, 1\ns_cbranch_scc0 L_ml\nL_mlgot:\nv_mov_b32 v34, s64')
    for c in range(1, 8): A(f'v_max_f32 v34, s{64+4*c}, v34')
    for c in range(8): A(f'v_sub_f32 v{40+c}, s{64+4*c}, v34')
    for c in range(8): A(f'v_mul_f32 v{40+c}, {LOG2E:#x}, v{40+c}')
    for c in range(8): A(f'v_exp_f32 v{40+c}, v{40+c}')
    A('v_mul_f32 v35, s66, v40')
    for c in range(1, 8): A(f'v_fmac_f32 v35, s{66+4*c}, v{40+c}')
    A('''v_rcp_f32 v35, v35
v_min_u32 v34, -2, v34
v_min_u32 v35, -2, v35
ds_write_b64 v24, v[34:35] offset:32
s_branch L_mlok
L_mlwait:''')
    ldsspin('ds_read_b64 v[34:35], v24 offset:32', 'v_max_u32 v37, v34, v35\nv_cmp_eq_u32 vcc, -1, v37', 1)
    A(f'''L_mlok:
v_sub_f32 v32, v32, v34
v_sub_f32 v33, v33, v34
v_mul_f32 v32, {LOG2E:#x}, v32
v_mul_f32 v33, {LOG2E:#x}, v33
v_exp_f32 v32, v32
v_exp_f32 v33, v33
s_lshl_b32 s34, s28, 8
v_lshl_add_u32 v36, v0, 2, s34
v_mul_f32 v32, v32, v35
v_mul_f32 v33, v33, v35
v_cvt_pk_bf16_f32 v32, v32, v33
ds_write_b32 v36, v32 offset:{L_P}
s_getreg_b32 s34, hwreg(HW_REG_XCC_ID, 0, 4)
s_andn2_b32 s35, s3, 31
s_or_b32 s34, s34, s35
s_or_b32 s35, s34, 16
s_waitcnt vmcnt(0)
v_cmp_eq_u32 s[48:49], s34, v9
v_cmp_eq_u32 s[50:51], s35, v9
s_bcnt1_i32_b32 s48, s48
s_bcnt1_i32_b32 s50, s50
s_cmp_gt_u32 s50, s48
s_cselect_b32 s34, 0x2000, 0
v_mov_b32 v10, s34''')
    tagreg(8, 5, 8)
    A(f'''v_mov_b32 v11, 0xff
s_lshl_b32 s47, s28, 13
s_add_u32 s47, s47, {L_W}
v_lshrrev_b32 v14, 4, v0             ; lane >> 4
s_lshr_b32 s34, s30, 1
s_and_b32 s35, s30, 1
s_lshl4_add_u32 s30, s35, s34        ; r
s_waitcnt lgkmcnt(0)
s_cmp_ge_u32 s30, 16
s_cbranch_scc1 L_notw''')

    if pc: A(f's_branch L_pc2\n.fill {pc//4-1}, 4, 0xbf810000\nL_pc2:')
    A(f'''; role W: wave w owns head 4g + w, columns 32r .. 32r + 31 of wo
s_lshl2_add_u32 s34, s29, s28
s_lshl_b32 s35, s34, 13
s_add_u32 s44, s26, s35
s_addc_u32 s45, s27, 0
v_lshl_add_u32 v6, v12, 12, v13
s_lshl_b32 s34, s34, 17
s_lshl_b32 s35, s30, 6
s_add_u32 s34, s34, s35
s_add_u32 s40, s12, s34
s_addc_u32 s41, s13, 0
s_mov_b32 s42, {127*1024+64}
s_mov_b32 s43, 0x20000
v_and_b32 v32, 1, v14
v_bfe_u32 v15, v0, 3, 1
v_lshl_add_u32 v15, v15, 2, v14
v_bfe_u32 v33, v0, 2, 1
v_lshl_add_u32 v15, v15, 1, v33
v_lshlrev_b32 v33, 1, v32
v_and_b32 v34, 3, v0
v_xor_b32 v33, v33, v34
v_lshlrev_b32 v33, 4, v33
v_lshl_add_u32 v15, v15, 10, v33
v_lshrrev_b32 v33, 2, v0
v_lshlrev_b32 v33, 6, v33
v_lshl_add_u32 v33, v34, 3, v33
v_lshl_add_u32 v33, v32, 5, v33
v_add_u32 v33, s47, v33
v_xor_b32 v34, 32, v33
v_add_u32 v37, v26, v13
v_add_u32 v37, {L_RED}, v37
s_and_b32 s34, s29, 4
s_add_u32 s34, s34, s29
s_lshl4_add_u32 s34, s34, s30
s_lshl_b32 s34, s34, 7
s_add_u32 s34, s34, {WS_B}
s_add_u32 s56, s26, 0x8000
s_addc_u32 s57, s27, 0
s_add_u32 s58, s26, 0x10000
s_addc_u32 s59, s27, 0
s_add_u32 s68, s26, 0x18000
s_addc_u32 s69, s27, 0
v_lshrrev_b32 v38, 2, v13
v_lshl_add_u32 v38, v12, 13, v38
v_add_u32 v38, s34, v38''')
    tagreg(9, 38, 8)
    tagmask(10, 38)
    A('s_and_b32 s60, s30, 1\ns_lshl_b32 s61, s60, 16\ns_lshl_b32 s60, s60, 7\nv_xor_b32 v6, s60, v6')
    A(f'''s_mul_i32 s34, s30, {88*128}
s_mul_i32 s35, s29, {176*1024}
s_add_u32 s34, s34, s35
v_lshl_add_u32 v35, v0, 7, s34
v_add_u32 v36, 0x2000, v35
v_min_u32 v35, {1376*1024-4}, v35
v_min_u32 v36, {1376*1024-4}, v36''')
    for n in range(8):
        if n == 0: A(BAR12)
        if n == 2: A(BAR3)
        A(f's_add_u32 m0, s47, {1024*n}\ns_xor_b32 s34, s61, {16384*n}')
        A('buffer_load_dwordx4 v15, s[40:43], s34 offen lds')
    def aload():
        for n in range(4): A(f'global_load_dwordx4 v[{96+4*n}:{99+4*n}], v6, s[44:45] offset:{1024*n} sc1')
    aload()
    for t in range(4):
        A(f's_waitcnt vmcnt({10-2*t})')
        for cb in range(2):
            for hf in range(2):
                r = 128 + 8 * t + 4 * cb + 2 * hf
                A(f'ds_read_b64_tr_b16 v[{r}:{r+1}], v{33+cb} offset:{1024*(2*t+hf)}')
    gather(aload, 4, 39, issued=True)
    A('v_cvt_pk_bf16_f32 v16, v16, v17\ns_waitcnt lgkmcnt(0)')
    mv = bcast(16, 64, 0xf)
    for o in mv[:6]: A(o)
    mv = mv[6:]
    for t in range(4):
        for cb in range(2):
            c = f'v[{40+4*cb}:{43+4*cb}]'
            A(f'v_mfma_f32_16x16x32_bf16 {c}, v[{64+4*t}:{67+4*t}], v[{128+8*t+4*cb}:{131+8*t+4*cb}], {c if t else 0}')
            for o in mv[:2]: A(o)
            mv = mv[2:]
    A(f'''; the wave that finds all four partials published sums them and stores the record
s_mov_b64 exec, 0xffff
ds_write2_b32 v37, v40, v44 offset0:0 offset1:64
ds_write_b32 v26, v11 offset:{L_SY+96}
s_mov_b64 exec, -1
ds_read_b128 v[20:23], v24 offset:96
ds_read_b128 v[16:19], v13 offset:{L_RED}
s_waitcnt lgkmcnt(1)
v_min3_u32 v20, v20, v21, v22
v_min_u32 v20, v20, v23
v_cmp_ne_u32 vcc, 0, v20
s_waitcnt lgkmcnt(0)
v_pk_add_f32 v[16:17], v[16:17], v[18:19]
s_mov_b64 exec, vcc
v_add_f32 v16, v16, v17
v_bfi_b32 v16, v10, v9, v16
global_store_dword v38, v16, s[26:27] sc1
global_store_dword v38, v16, s[56:57] sc1
global_store_dword v38, v16, s[58:59] sc1
global_store_dword v38, v16, s[68:69] sc1
global_load_dword v62, v35, s[20:21]
s_and_b32 exec_lo, exec_lo, 0xffffff
s_mov_b32 exec_hi, 0
global_load_dword v62, v36, s[20:21]''')
    finish()

    A(f'''L_notw:
s_and_b32 s34, s30, 15
s_lshl2_add_u32 s34, s34, s28
s_andn2_b32 s35, s34, 7
s_add_u32 s35, s35, s34
s_add_u32 s35, s35, 8
s_lshl_b32 s64, s29, 7
s_add_u32 s35, s35, s64
s_lshl_b32 s35, s35, 12
v_lshl_add_u32 v127, v0, 7, s35
s_lshr_b32 s34, s34, 1
s_lshl_b32 s34, s34, 4
v_lshrrev_b32 v61, 2, v0
v_add_u32 v61, s34, v61
v_mul_u32_u24 v61, 2752, v61
v_and_b32 v15, 3, v0
v_lshlrev_b32 v62, 7, v15
v_min_u32 v62, 348, v62
s_mul_i32 s34, s29, 352
v_add3_u32 v61, v61, v62, s34
s_bitcmp1_b32 s28, 0
s_cselect_b32 s64, s18, s16
s_cselect_b32 s65, s19, s17
s_mov_b32 s66, {512*2752}
s_mov_b32 s67, 0x20000
s_cmp_lt_u32 s30, 27
s_cbranch_scc1 L_rolef''')
    def bars():
        A(f'''{BAR12}
s_mov_b32 exec_hi, 0
global_load_dword v62, v127, s[12:13]
s_mov_b32 exec_hi, -1
{BAR3}
buffer_load_dword v62, v61, s[64:67], 0 offen''')

    A(f'''s_cmp_lt_u32 s30, 28
s_cbranch_scc1 L_norole
s_cmp_lg_u32 s28, 0
s_cbranch_scc1 L_norole
s_lshl2_add_u32 s63, s29, s30
s_sub_u32 s63, s63, 28
s_lshr_b32 s34, s63, 1
s_xor_b32 s34, s34, s63
s_and_b32 s34, s34, 2
s_mul_i32 s34, s34, 3
s_xor_b32 s63, s63, s34
s_lshl_b32 s34, s63, 6
s_add_u32 s34, s34, {WS_C}
v_lshrrev_b32 v44, 2, v0
v_and_b32 v45, 12, v44
v_add_u32 v44, v44, v45
v_lshl_add_u32 v44, v44, 11, v10
v_lshl_add_u32 v44, v15, 4, v44
v_add_u32 v44, s34, v44''')
    for n in range(1, 6): A(f'v_add_u32 v{44+n}, {65536*n}, v44')
    A(f'''s_lshr_b32 s34, s63, 3
s_lshl_b32 s34, s34, 7
s_and_b32 s35, s63, 3
s_lshl_b32 s35, s35, 5
s_add_u32 s34, s34, s35
s_and_b32 s35, s63, 4
s_add_u32 s34, s34, s35
v_lshl_add_u32 v51, v15, 3, v14
v_add_lshl_u32 v51, v51, s34, 1
global_load_ushort v43, v51, s[4:5]
s_lshl_b32 s34, s34, 2
s_and_b32 s35, s29, 3
s_lshl_b32 s35, s35, 15
s_add_u32 s34, s34, s35
s_add_u32 s34, s34, {WS_B}
v_bfe_u32 v50, v0, 2, 3
v_and_b32 v52, 4, v50
v_add_u32 v50, v50, v52
v_lshl_add_u32 v50, v50, 11, v10
v_lshl_add_u32 v50, v15, 5, v50
v_add_u32 v50, s34, v50
v_mov_b32 v52, {WS_E}
v_mov_b32 v53, s3''')
    tagreg(9, 50, 8)
    A('v_mov_b32 v116, v8\nv_mov_b32 v117, 0\nv_mov_b32 v118, 0\nv_mov_b32 v119, 0')
    A('v_mov_b32 v36, v9\nv_mov_b32 v37, 0\nv_mov_b32 v38, 0\nv_mov_b32 v39, 0')
    bars()
    def cload():
        for n in range(6): A(('s_mov_b64 exec, 0xffffff\n' if n == 5 else '') + f'global_load_dwordx4 v[{96+4*n}:{99+4*n}], v{44+n}, s[26:27] sc1')
        A('s_mov_b64 exec, -1')
    cload()
    A(f'''; h = x + o @ wo for these columns
s_mov_b32 s62, {SPIN}
L_rb:
s_sleep 1
s_mov_b32 exec_hi, 0
global_load_dwordx4 v[36:39], v50, s[26:27] sc1
s_mov_b32 exec_hi, -1
s_sub_u32 s62, s62, 1
s_cbranch_scc1 L_rbok
s_waitcnt vmcnt(0)
v_xor_b32 v40, v36, v9
v_and_b32 v42, v11, v40
v_cmp_ne_u32 vcc, 0, v42
s_cbranch_vccnz L_rb
L_rbok:
{P(5)}s_cmp_eq_u32 s63, 0
s_cselect_b32 exec_lo, 1, 0
s_mov_b32 exec_hi, 0
global_store_dword v52, v53, s[26:27] sc1
s_mov_b64 exec, -1
v_permlane32_swap_b32 v40, v38
v_permlane32_swap_b32 v37, v39
v_permlane16_swap_b32 v40, v37
v_add_f32 v40, v40, v37
v_lshlrev_b32 v43, 16, v43
v_add_f32_dpp v40, v40, v40 row_ror:8 {FULL}
v_add_f32_dpp v40, v40, v40 row_ror:4 {FULL}
v_add_f32 v40, v40, v43''')
    rnd(40)
    gather(cload, 6, 42)
    A(f'''v_permlane16_swap_b32 v16, v17
v_add_f32 v16, v16, v17
v_add_f32_dpp v16, v16, v16 row_ror:8 {FULL}
v_add_f32_dpp v16, v16, v16 row_ror:4 {FULL}
s_mov_b32 exec_lo, 0x000f000f
v_add_f32 v16, v16, v40
s_mov_b32 exec_hi, 0x000f000f
v_cvt_pk_bf16_f32 v16, v16, v16
global_store_short v51, v16, s[22:23]''')
    if amp:
        A(P(6) + f'''s_memrealtime s[58:59]
s_waitcnt lgkmcnt(0)
s_sub_u32 s96, s100, s96
s_mul_i32 s96, s96, {amp[2]}
s_cmp_lg_u32 s2, {amp[3] if amp[3] >= 0 else 's2'}
s_cbranch_scc1 L_ampd
L_amp:
s_memrealtime s[100:101]
s_waitcnt lgkmcnt(0)
s_sub_u32 s100, s100, s58
s_cmp_lt_u32 s100, s96
s_cbranch_scc1 L_amp
L_ampd:''')
    finish(1)
    A('L_norole:')
    bars()
    finish()

    A(f'''.p2align 12
L_rolef:
s_mul_i32 s63, s29, 11
s_add_u32 s63, s63, s30
s_sub_u32 s63, s63, 16
s_cmp_ge_u32 s63, 86
s_cbranch_scc1 L_norole
s_mul_i32 s34, s28, {128*2752}
s_lshl_b32 s35, s63, 5
s_add_u32 s34, s34, s35
s_add_u32 s36, s16, s34
s_addc_u32 s37, s17, 0
s_mov_b32 s38, {127*2752+32}
s_mov_b32 s39, 0x20000
s_add_u32 s40, s18, s34
s_addc_u32 s41, s19, 0
s_mov_b32 s42, {127*2752+32}
s_mov_b32 s43, 0x20000
s_lshl_b32 s34, s63, 14
s_lshl_b32 s35, s28, 8
s_add_u32 s34, s34, s35
s_add_u32 s20, s20, s34
s_addc_u32 s21, s21, 0
s_add_u32 s4, s4, s35
s_addc_u32 s5, s5, 0
s_and_b32 s34, s29, 3
s_lshl_b32 s34, s34, 15
s_lshl1_add_u32 s34, s35, s34
s_add_u32 s34, s34, {WS_B+4096}
s_add_u32 s44, s26, s34
s_addc_u32 s45, s27, 0
v_lshl_add_u32 v6, v12, 14, v13
v_add_u32 v6, v6, v10
v_and_b32 v58, 12, v0
v_add_u32 v58, v58, v14
v_mul_u32_u24 v58, 80, v58
v_lshl_add_u32 v58, v15, 4, v58
v_bfe_u32 v15, v0, 3, 1
v_lshl_add_u32 v15, v15, 3, v12
v_bfe_u32 v33, v0, 2, 1
v_lshl_add_u32 v15, v15, 1, v33
v_bfe_u32 v33, v0, 4, 1
v_lshl_add_u32 v15, v15, 1, v33
v_bfe_u32 v33, v0, 1, 1
v_lshl_add_u32 v15, v15, 1, v33
v_mul_u32_u24 v15, 2752, v15
v_and_b32 v40, 1, v0
v_lshlrev_b32 v40, 4, v40
v_add_u32 v15, v15, v40
v_lshl_add_u32 v33, v0, 3, s47
v_lshrrev_b32 v36, 1, v13
v_lshl_add_u32 v36, v12, 2, v36
global_load_dword v32, v36, s[4:5]
v_and_b32 v38, 15, v0
v_lshlrev_b32 v34, 4, v38
v_lshl_add_u32 v34, v14, 10, v34
v_add_u32 v34, 0x1000, v34
v_add_u32 v35, 0x2000, v34
s_lshl_b32 s34, s28, 3
v_lshl_add_u32 v60, v12, 2, s34
s_add_u32 s34, s34, {L_OP}
v_mul_u32_u24 v57, 80, v38
v_add_u32 v57, s34, v57
v_lshl_add_u32 v57, v14, 2, v57
s_andn2_b32 s34, s63, 3
s_add_u32 s34, s34, s63
s_lshl2_add_u32 s34, s34, s28
s_lshl_b32 s34, s34, 9
s_add_u32 s34, s34, {WS_C}
v_lshl_add_u32 v59, v12, 13, v13
v_add_u32 v59, s34, v59
v_mov_b32 v44, 0x3f803f80
v_mov_b32 v63, {L_RED}
v_mov_b32 v46, {EPS:#x}
v_mov_b32 v41, 0xffff
v_lshlrev_b32 v40, v40, v41
v_bfe_u32 v41, v0, 1, 2
s_mov_b32 s60, 1
s_mov_b32 s61, 1''')
    for i in range(16): A(f'v_mov_b32 v{72+i}, v44')
    for w in range(4): A(f'v_cmp_eq_u32 vcc, {w}, v41\nv_cndmask_b32 v{48+w}, 0, v40, vcc')
    bars()
    for t in range(4):
        for m in range(2):
            A(f's_add_u32 m0, s47, {4096*m+1024*t}\ns_mov_b32 s34, {16*t*2752}')
            A(f'buffer_load_dwordx4 v15, s[{36+4*m}:{39+4*m}], s34 offen lds')
    def bload():
        for n in range(4): A(f'global_load_dwordx4 v[{96+4*n}:{99+4*n}], v6, s[44:45] offset:{2048*n-4096} sc1')
    for t in range(4):
        A(f's_waitcnt vmcnt({6-2*t})')
        if t == 3: bload()
        for m in range(2):
            for hf in range(2):
                r = 128 + 16 * m + 4 * t + 2 * hf
                A(f'ds_read_b64_tr_b16 v[{r}:{r+1}], v33 offset:{4096*m+1024*t+512*hf}')
        if t == 0: A('v_and_b32 v41, 0xffff0000, v32\nv_lshlrev_b32 v40, 16, v32')
    gather(bload, 4, 42, issued=True)
    A('''; h @ W with LN folded in: A rows 4-7 stay all ones and yield the column sums; moments of h on the side
v_pk_add_f32 v[16:17], v[16:17], v[40:41]
v_cvt_pk_bf16_f32 v18, v16, v17
v_dot2_f32_bf16 v16, v18, v44, 0
v_dot2_f32_bf16 v17, v18, v18, 0
s_waitcnt lgkmcnt(0)''')
    op = {f'm{i}': o for i, o in enumerate(bcast(18, 72, 0xd))}
    op.update({f'd{r}': f'v_add_f32_dpp v16, v16, v16 row_ror:{r} {FULL}' for r in (8, 4, 2, 1)})
    op.update({f'L{n}': f'global_load_dwordx4 v[{160+4*n}:{163+4*n}], v{34+(n>>1)}, s[20:21] offset:{4096*(n&1)-4096}' for n in range(4)})
    for n in range(8):
        t, m = n >> 1, n & 1
        c = f'v[{64+4*m}:{67+4*m}]'
        op[f'M{n}'] = f'v_mfma_f32_16x16x32_bf16 {c}, v[{72+4*t}:{75+4*t}], v[{128+16*m+4*t}:{131+16*m+4*t}], {c if t else 0}'
    op.update(S32='v_permlane32_swap_b32 v16, v17', S16='v_permlane16_swap_b32 v16, v17', A='v_add_f32 v16, v16, v17', mv='v_mov_b32 v17, v16',
              wr=f's_mov_b64 exec, s[60:61]\nds_write_b32 v60, v16 offset:{L_RED}\ns_mov_b64 exec, -1', bar='s_waitcnt lgkmcnt(0)\ns_barrier',
              rd='ds_read_b128 v[24:27], v63\nds_read_b128 v[28:31], v63 offset:16')
    for o in 'm0 m1 S32 m2 A m3 m4 d8 M0 m5 d4 m6 M1 d2 m7 m8 d1 mv M2 m9 S16 A wr M3 m10 m11 L0 L1 M4 m12 m13 m14 m15 M5 L2 L3 bar M6 rd M7'.split(): A(op[o])
    A(f'''s_mov_b32 exec_hi, 0
ds_write2_b32 v57, v64, v68 offset0:0 offset1:8
s_mov_b32 exec_hi, -1
s_waitcnt lgkmcnt(1)
v_pk_add_f32 v[24:25], v[24:25], v[26:27]
v_pk_add_f32 v[28:29], v[28:29], v[30:31]
v_pk_add_f32 v[24:25], v[24:25], v[28:29]
s_waitcnt lgkmcnt(0)
s_barrier
ds_read_b128 v[16:19], v58 offset:{L_OP}
v_mul_f32 v24, 0xbb000000, v24       ; -mean
v_fmamk_f32 v28, v25, 0x3b000000, v46
v_fma_f32 v28, -v24, v24, v28
v_max_f32 v28, v28, v46
v_rsq_f32 v29, v28
s_waitcnt lgkmcnt(0)
v_pk_add_f32 v[16:17], v[16:17], v[18:19]
v_fmac_f32 v16, v24, v17
v_rcp_f32 v28, v28
v_mul_f32 v29, {LOG2E ^ 0x80000000:#x}, v29
v_add_f32_dpp v16, v16, v16 quad_perm:[1,0,3,2] {FULL}
v_mul_f32 v17, v16, v29
v_exp_f32 v17, v17
v_mul_f32_dpp v18, v16, v16 quad_perm:[2,3,0,1] {FULL}
v_add_f32 v17, 1.0, v17
v_rcp_f32 v17, v17
v_mul_f32 v18, v18, v28
v_mul_f32 v16, v18, v17
v_cvt_pk_bf16_f32 v16, v16, v16
s_waitcnt vmcnt(0)
; act @ w_down on row-major weights: A holds act on a diagonal''')
    ops = [f'v_and_b32_dpp v{72+4*n+w}, v16, v{48+w} row_newbcast:{4*n} {FULL}' for n in range(4) for w in range(4)]
    for n in range(4):
        for o in ops[(4 * n + 2 if n else 0):4 * n + 6]: A(o)
        A(f'v_mfma_f32_16x16x32_bf16 v[64:67], v[{72+4*n}:{75+4*n}], v[{160+4*n}:{163+4*n}], {"v[64:67]" if n else 0}')
    A('v_bfi_b32 v64, v11, v8, v64\nglobal_store_dwordx4 v59, v[64:67], s[26:27] sc1')
    finish()

    A(f'''.p2align 12
L_vwave:
s_add_u32 s36, s8, s34
s_addc_u32 s37, s9, 0
s_lshl3_add_u32 s35, s31, s32
s_lshl_b32 s35, s35, 10
s_add_u32 s44, s26, s35
s_addc_u32 s45, s27, 0
v_mov_b32 v56, {L_SY}
s_lshr_b32 s56, s2, 6
s_lshl_b32 s56, s56, 7
s_and_b32 s35, s2, 63
s_add_u32 s56, s56, s35
s_lshl_b32 s56, s56, 7
s_add_u32 s56, s56, {WS_PR}
s_cmp_lg_u32 s28, 5
s_cbranch_scc1 L_nowarm
s_load_dword s54, s[26:27], s56 glc
s_load_dword s55, s[26:27], s56 offset:0x2000 glc
L_nowarm:
v_and_b32 v28, 1, v0
v_cmp_eq_u32 vcc, 1, v28
v_mov_b32 v29, 0x0c0c0100
v_mov_b32 v30, 0x01000c0c
v_cndmask_b32 v29, v29, v30, vcc
v_mov_b32 v30, 0x0c0c0302
v_mov_b32 v31, 0x03020c0c
v_cndmask_b32 v30, v30, v31, vcc
v_mov_b32 v31, 0x0c0c0c0c
v_bfe_u32 v28, v0, 1, 2''')
    for w in range(4): A(f'v_cmp_eq_u32 vcc, {w}, v28\nv_cndmask_b32 v{40+w}, v31, v29, vcc\nv_cndmask_b32 v{44+w}, v31, v30, vcc')
    A(f'''s_lshl_b32 s34, s63, 10
s_add_u32 s34, s34, {L_OP}
v_lshrrev_b32 v12, 5, v0
v_lshl_add_u32 v12, v12, 9, s34
v_lshl_add_u32 v12, v4, 1, v12
v_bfe_u32 v13, v0, 4, 1
v_lshl_add_u32 v12, v13, 4, v12
v_lshlrev_b32 v14, 3, v0
s_lshl_b32 s34, s32, 5
s_add_u32 s34, s34, s63
s_lshl_b32 s34, s34, 2
v_lshl_add_u32 v6, v3, 4, s34
v_mov_b32 v57, 1
s_waitcnt vmcnt(4)''')
    layernorm(24, 28)
    A(f'ds_write_b128 v5, v[24:27] offset:{L_H}\ns_waitcnt lgkmcnt(0)\nds_read_b32 v48, v6 offset:{L_H}\ns_add_u32 s3, s3, {EPOCH_STEP:#x}')
    tagreg(8, 14, 4)
    A('s_waitcnt lgkmcnt(0)')
    for n in range(2): afrag(24 + 4 * n, 48, n)
    A('s_waitcnt vmcnt(0)')
    for n in range(2):
        for hf in range(2):
            c = f'v[{16+4*hf}:{19+4*hf}]'
            A(f'v_mfma_f32_16x16x32_bf16 {c}, v[{24+4*n}:{27+4*n}], v[{64+8*n+4*hf}:{67+8*n+4*hf}], {c if n else 0}')
    part_write = '''s_mov_b32 exec_lo, 0x00ff00ff
s_mov_b32 exec_hi, 0xff00ff00
ds_write_b128 v12, v[16:19]
ds_write_b128 v12, v[20:23] offset:256'''
    A(f'''{part_write}
s_mov_b64 exec, 1
s_waitcnt lgkmcnt(0)
ds_add_u32 v56, v57 offset:48
s_mov_b64 exec, -1
s_cmp_lg_u32 s28, 4
s_cbranch_scc1 L_vstream''')
    ldsspin('ds_read_b32 v15, v56 offset:48', 'v_cmp_ne_u32 vcc, 4, v15')
    for n in range(4): A(f'ds_read_b128 v[{16+4*n}:{19+4*n}], v5 offset:{L_OP+1024*n}')
    A('s_waitcnt lgkmcnt(0)')
    for i in (0, 2, 8, 10): A(f'v_pk_add_f32 v[{16+i}:{17+i}], v[{16+i}:{17+i}], v[{20+i}:{21+i}]')
    for i in (0, 2): A(f'v_pk_add_f32 v[{16+i}:{17+i}], v[{16+i}:{17+i}], v[{24+i}:{25+i}]')
    A(f'''v_permlane32_swap_b32 v16, v18
v_permlane32_swap_b32 v17, v19
v_pk_add_f32 v[16:17], v[16:17], v[18:19]
v_and_or_b32 v16, v16, -16, v8
v_and_or_b32 v17, v17, -16, v8
global_store_dwordx2 v14, v[16:17], s[44:45]
L_vstream:
s_setprio 0
s_getreg_b32 s34, hwreg(HW_REG_XCC_ID, 0, 4)
s_andn2_b32 s46, s3, 31
s_or_b32 s46, s46, s34
s_lshl_b32 s47, s29, 8
s_add_u32 s47, s47, {WS_X}
s_cmp_lg_u32 s28, 5
s_cbranch_scc1 L_noprobe
s_mov_b32 s54, -1
s_mov_b32 s55, -1
s_waitcnt lgkmcnt(0)''')
    for i in range(4):
        A(f's_memtime s[50:51]\ns_load_dword s35, s[26:27], s56 offset:{0x2000 * (i & 1)} glc\ns_waitcnt lgkmcnt(0)\ns_memtime s[52:53]\ns_waitcnt lgkmcnt(0)\ns_sub_u32 s35, s52, s50\ns_min_u32 s{54 + (i & 1)}, s{54 + (i & 1)}, s35')
    A(f'''s_cmp_lt_u32 s55, s54
s_cselect_b32 s35, 16, 0
s_or_b32 s34, s46, s35
v_mov_b32 v31, s34
s_lshl2_add_u32 s34, s30, s47
v_mov_b32 v30, s34
s_mov_b64 exec, 1
global_store_dword v30, v31, s[26:27]
s_mov_b64 exec, -1
L_noprobe:
s_lshl_b32 s34, s63, 2
v_mov_b32 v28, s34
v_and_b32 v30, 31, v0
v_lshl_add_u32 v30, v30, 2, s47''')
    ldsspin(f'ds_read_b32 v15, v28 offset:{L_SY+64}', 'v_cmp_eq_u32 vcc, 0, v15', 1)
    stream({XPOS: 'global_load_dword v29, v30, s[26:27] sc1',
            XPOS + THR: '''v_and_b32 v29, -17, v29
v_cmp_ne_u32 s[48:49], s46, v29
s_cmp_eq_u64 s[48:49], 0
s_cselect_b64 s[50:51], -1, 0
s_cselect_b64 s[52:53], 0, -1
s_cbranch_scc0 L_requeue
L_requeued:'''}, XPOS)
    cold.append(lambda: A('''L_requeue:
s_cmp_lg_u32 s28, 4
s_cbranch_scc1 L_requeued
global_store_dwordx2 v14, v[16:17], s[44:45] sc1
s_waitcnt vmcnt(0)
s_branch L_requeued'''))
    A('v_mov_b32 v11, 0xff')
    tagreg(8, 14, 8)
    tagmask(10, 14)
    A(f'''s_lshl_b32 s34, s63, 8
v_lshl_add_u32 v6, v3, 5, s34
s_barrier
ds_read_b128 v[48:51], v6 offset:{L_P}
ds_read_b128 v[52:55], v6 offset:{L_P+16}
s_waitcnt lgkmcnt(0)''')
    for i in range(16): afrag(64 + 4 * i, 48 + i // 2, i & 1)
    for i in range(16):
        for hf in range(2):
            if (i, hf) == (12, 0): A('s_setprio 3')
            if i >= 12: A(f's_waitcnt vmcnt({31-2*i-hf})')
            if (i, hf) == (12, 0): A('s_barrier')
            c = f'v[{16+4*hf}:{19+4*hf}]'
            A(f'v_mfma_f32_16x16x32_bf16 {c}, v[{64+4*i}:{67+4*i}], v[{128+8*i+4*hf}:{131+8*i+4*hf}], {c if i else 0}')
    A(f'''; the wave that finds all four partials published sums them and stores the record
{part_write}
ds_write_b32 v28, v11 offset:{L_SY+80}
s_mov_b64 exec, -1
ds_read_b128 v[32:35], v56 offset:80''')
    for n in range(4): A(f'ds_read_b128 v[{64+4*n}:{67+4*n}], v5 offset:{L_OP+1024*n}')
    A('''s_waitcnt lgkmcnt(4)
v_min3_u32 v32, v32, v33, v34
v_min_u32 v32, v32, v35
v_cmp_ne_u32 vcc, 0, v32
s_waitcnt lgkmcnt(2)
v_pk_add_f32 v[64:65], v[64:65], v[68:69]
v_pk_add_f32 v[66:67], v[66:67], v[70:71]
s_and_b64 s[50:51], s[50:51], vcc
s_and_b64 s[52:53], s[52:53], vcc
s_waitcnt lgkmcnt(0)
v_pk_add_f32 v[72:73], v[72:73], v[76:77]
v_pk_add_f32 v[74:75], v[74:75], v[78:79]
v_pk_add_f32 v[64:65], v[64:65], v[72:73]
v_pk_add_f32 v[66:67], v[66:67], v[74:75]
v_permlane32_swap_b32 v64, v66
v_permlane32_swap_b32 v65, v67
v_pk_add_f32 v[64:65], v[64:65], v[66:67]
v_bfi_b32 v64, v10, v8, v64
s_mov_b64 exec, s[50:51]
global_store_dwordx2 v14, v[64:65], s[44:45]
s_mov_b64 exec, s[52:53]
global_store_dwordx2 v14, v[64:65], s[44:45] sc1
s_barrier''')
    if span == 2: A('s_cmp_lg_u32 s30, 31\ns_cbranch_scc1 L_exit\ns_cmp_lg_u32 s28, 5\ns_cbranch_scc1 L_exit\ns_mov_b32 s28, 1')
    finish(2)
    A(f'L_exit:\ns_endpgm\nL_code_end:\n.fill (L_pc+16384-L_code_end)/4, 4, 0xbf810000')
    A.raw(f'''.section .rodata,"a"
.p2align 6
.amdhsa_kernel {NAME}_kernel
  .amdhsa_next_free_vgpr 256
  .amdhsa_next_free_sgpr 102
  .amdhsa_accum_offset 256
  .amdhsa_group_segment_fixed_size 0
  .amdhsa_kernarg_size 96
  .amdhsa_user_sgpr_count 2
  .amdhsa_user_sgpr_kernarg_segment_ptr 1
  .amdhsa_system_sgpr_workgroup_id_x 1
  .amdhsa_float_denorm_mode_32 3
.end_amdhsa_kernel''')
    return A.text()

if __name__ == '__main__':
    out = sys.argv[1] if len(sys.argv) > 1 else f'cdna_kernels/{NAME}.s'
    open(out, 'w').write(gen(**eval('dict(' + (sys.argv[2] if len(sys.argv) > 2 else '') + ')')))
```

```python
import sys
from asmlib import Asm

NAME = 'sequential_preLN__sliding_block_cached__swiglu_ffn__decode'
WS_QA, WS_B, WS_PR, WS_ML, WS_X, WS_E, WS_C, WS_ST = 0x0, 0x40000, 0x60000, 0x70000, 0x72000, 0x73000, 0x80000, 0x100000
EPOCH_STEP = 0x5bd1e3c7
L_P, L_OP, L_H, L_RED, L_SY, L_Q, L_W = 0x0, 0x400, 0x1400, 0x1800, 0x1a00, 0x1b00, 0x1c00
LDS_BYTES = L_W + 0x8000
SPIN = 0x40000
LOG2E, SCALE, EPS = 0x3fb8aa3b, 0x3db504f3, 0x3727c5ac
FULL = 'row_mask:0xf bank_mask:0xf'
THR, KPRE, QPOS, XPOS, GOW = 8, 2, 24, 16, 8

BAR12 = 's_barrier\ns_barrier'
BAR3 = 's_barrier'

DOC = '''\
;   found nearer. Either copy holds the same data.'''

def gen(span=0, amp=None,):
    def P(n):
        return ('s_memrealtime s[96:97]\n' if amp and amp[0] == n else '') + ('s_memrealtime s[100:101]\n' if amp and amp[1] == n else '')
    global BAR12, BAR3
    BAR12 = 's_barrier\n' + P(3) + 's_barrier'
    BAR3 = 's_barrier\n' + P(4)
    slot = {'x': 0, 'V': 2, 'q': 3, 'o': 4, 'g': 6, 'u': 7, 'd': 8, '.': 15}
    nib = sum(slot[c] << (4 * i) for i, c in enumerate('x.qqVVVVguood...'))
    A = Asm()
    cold = []
    uid = [0]
    def lab(s):
        uid[0] += 1
        return f'L_{s}_{uid[0]}'
    def finish(last=0):
        if span and last == span:
            A(f'''s_memrealtime s[96:97]
s_waitcnt lgkmcnt(0)
v_writelane_b32 v7, s96, 15
v_writelane_b32 v7, s98, 0
s_mov_b64 exec, 0xffff
s_lshl3_add_u32 s34, s2, s28
s_lshl_b32 s34, s34, 6
s_add_u32 s34, s34, {WS_ST}
v_lshl_add_u32 v1, v0, 2, s34
global_store_dword v1, v7, s[26:27]''')
        A('s_endpgm')
        for f in cold: f()
        cold.clear()
    def wred(op, v, t):
        for r in (8, 4, 2, 1): A(f'{op}_dpp v{v}, v{v}, v{v} row_ror:{r} {FULL}')
        for sw in (16, 32): A(f'v_mov_b32 v{t}, v{v}\nv_permlane{sw}_swap_b32 v{v}, v{t}\n{op} v{v}, v{v}, v{t}')
    def rnd(v):
        A(f'v_cvt_pk_bf16_f32 v{v}, v{v}, v{v}\nv_lshlrev_b32 v{v}, 16, v{v}')
    def layernorm(x, u):
        s, t, mb, dl = u + 8, u + 9, u + 10, u + 11
        for i in range(4): A(f'v_lshlrev_b32 v{u+2*i}, 16, v{x+i}\nv_and_b32 v{u+2*i+1}, 0xffff0000, v{x+i}')
        A(f'v_add_f32 v{s}, v{u}, v{u+1}\nv_add_f32 v{t}, v{u+2}, v{u+3}\nv_add_f32 v{mb}, v{u+4}, v{u+5}\nv_add_f32 v{dl}, v{u+6}, v{u+7}')
        A(f'v_add_f32 v{s}, v{s}, v{t}\nv_add_f32 v{mb}, v{mb}, v{dl}\nv_add_f32 v{s}, v{s}, v{mb}')
        wred('v_add_f32', s, t)
        A(f'v_mul_f32 v{dl}, 0x3b000000, v{s}')
        A(f'v_cvt_pk_bf16_f32 v{mb}, v{dl}, v{dl}\nv_lshlrev_b32 v{mb}, 16, v{mb}')
        for i in range(8): A(f'v_sub_f32 v{u+i}, v{u+i}, v{mb}')
        A(f'v_sub_f32 v{dl}, v{dl}, v{mb}')
        A(f'v_mul_f32 v{s}, v{u}, v{u}\nv_mul_f32 v{t}, v{u+1}, v{u+1}')
        for i in range(2, 8, 2): A(f'v_fmac_f32 v{s}, v{u+i}, v{u+i}\nv_fmac_f32 v{t}, v{u+i+1}, v{u+i+1}')
        A(f'v_add_f32 v{s}, v{s}, v{t}')
        fill = [f'v_cvt_pk_bf16_f32 v{x+i}, v{u+2*i}, v{u+2*i+1}' for i in range(4)]
        for i in range(4): fill += [f'v_lshlrev_b32 v{u+2*i}, 16, v{x+i}', f'v_and_b32 v{u+2*i+1}, 0xffff0000, v{x+i}']
        fill.append(f'v_mul_f32 v{dl}, v{dl}, v{dl}')
        for r in (8, 4, 2, 1):
            A(fill.pop(0)); A(fill.pop(0))
            A(f'v_add_f32_dpp v{s}, v{s}, v{s} row_ror:{r} {FULL}')
        for sw in (16, 32):
            A(f'v_mov_b32 v{t}, v{s}'); A(fill.pop(0)); A(fill.pop(0))
            A(f'v_permlane{sw}_swap_b32 v{s}, v{t}\nv_add_f32 v{s}, v{s}, v{t}')
        A(fill.pop(0))
        A(f'v_mul_f32 v{s}, 0x3b000000, v{s}\nv_sub_f32 v{s}, v{s}, v{dl}\nv_max_f32 v{s}, 0, v{s}')
        rnd(s)
        A(f'v_add_f32 v{s}, {EPS:#x}, v{s}'); rnd(s)
        A(f'v_sqrt_f32 v{s}, v{s}'); rnd(s)
        A(f'v_rcp_f32 v{s}, v{s}')
        for i in range(8): A(f'v_mul_f32 v{u+i}, v{u+i}, v{s}')
        for i in range(4): A(f'v_cvt_pk_bf16_f32 v{x+i}, v{u+2*i}, v{u+2*i+1}')
    def afrag(dst, src, par):
        for w in range(4): A(f'v_perm_b32 v{dst+w}, v{src}, v{src}, v{40+4*par+w}')
    def bcast(src, dst, bank):
        return [f'v_mov_b32_dpp v{dst+i}, v{src} row_newbcast:{i} row_mask:0xf bank_mask:{bank:#x}' for i in range(16)]
    def tagreg(dst, addr, bits):
        A(f'v_lshrrev_b32 v{dst}, 1, v{addr}\nv_xor_b32 v{dst}, v{dst}, v{addr}\nv_bfe_u32 v{dst}, v{dst}, 4, 1\nv_lshlrev_b32 v{dst}, {bits-1}, v{dst}\nv_xor_b32 v{dst}, s3, v{dst}')
        if bits == 4: A(f'v_xor_b32 v{dst}, 4, v{dst}')
        A(f'v_and_b32 v{dst}, {(1 << bits) - 1}, v{dst}')
    def tagmask(dst, addr):
        A(f'v_and_b32 v{dst}, 15, v{addr}\nv_cmp_eq_u32 vcc, 0, v{dst}\nv_cndmask_b32 v{dst}, 0, v11, vcc')
    def gather(load, n, t, issued=False):
        x, y, T, d = 96, 120, 8, 16
        L, Lc, Lo = lab('again'), lab('chk'), lab('ok')
        A(f'; repeat the round until word 0 of every granule carries the tag, then sum the partials\ns_mov_b32 s62, {SPIN}')
        if issued: A(f's_branch {Lc}')
        A(f'{L}:')
        load()
        A(f's_sub_u32 s62, s62, 1\ns_cbranch_scc1 {Lo}\n{Lc}:')
        for i in range(n):
            if i % 2 == 0: A(f's_waitcnt vmcnt({n-2-i})')
            A(f'v_xor_b32 v{y+i}, v{x+4*i}, v{T}')
            if i % 2 == 1:
                dd = d + 2 * (i - 1)
                if i == 1: A(f'v_or_b32 v{t}, v{y}, v{y+1}')
                elif i < n - 1: A(f'v_or3_b32 v{t}, v{t}, v{y+i-1}, v{y+i}')
                else: A(f'v_or_b32 v{t}, v{t}, v{y+i-1}\nv_bitop3_b32 v{t}, v{t}, v{y+i}, v11 bitop3:0xa8\nv_cmp_ne_u32 vcc, 0, v{t}')
                A(f'v_pk_add_f32 v[{dd+2}:{dd+3}], v[{x+4*i-2}:{x+4*i-1}], v[{x+4*i+2}:{x+4*i+3}]')
                if i == n - 1: A(f's_cbranch_vccnz {L}\n{Lo}:')
                A(f'v_add_f32 v{dd}, v{y+i-1}, v{y+i}\nv_add_f32 v{dd+1}, v{x+4*i-3}, v{x+4*i+1}')
                if i > 1:
                    for r in (2, 0): A(f'v_pk_add_f32 v[{d+r}:{d+r+1}], v[{d+r}:{d+r+1}], v[{dd+r}:{dd+r+1}]')
        A(f'v_permlane32_swap_b32 v{d}, v{d+2}\nv_permlane32_swap_b32 v{d+1}, v{d+3}')
        A(f'v_pk_add_f32 v[{d}:{d+1}], v[{d}:{d+1}], v[{d+2}:{d+3}]')
    def ldsspin(reads, test, slp=0):
        L, Ld = lab('spin'), lab('spun')
        A(f's_mov_b32 s62, {SPIN}\n{L}:')
        if slp: A(f's_sleep {slp}')
        A(f'{reads}\ns_waitcnt lgkmcnt(0)\n{test}\ns_cbranch_vccz {Ld}\ns_sub_u32 s62, s62, 1\ns_cbranch_scc0 {L}\n{Ld}:')
    def stream(hooks, extra_at):
        A(f'; 16 tiles of 8 keys x 256 B, at most {THR} loads in flight per wave')
        for i in range(16):
            if i: A('s_addk_i32 s33, 0x100\ns_bitset0_b32 s33, 12')
            if 2 * i >= THR:
                A(f's_waitcnt vmcnt({THR - 2 + (1 if 2 * i - (THR - 2) < extra_at <= 2 * i else 0)})')
            for hf in range(2):
                A(f'buffer_load_dwordx4 v[{128+8*i+4*hf}:{131+8*i+4*hf}], v2, s[36:39], s33 offen offset:{128*hf} nt')
                if 2 * i + hf + 1 in hooks: A(hooks[2 * i + hf + 1])

    for ln in open('cdna_kernels/' + NAME + '.s.ref').read().split('\n'):
        if ln.startswith('; @launch'): A.raw(f'; @launch grid=(256,1,1) block=(512,1,1) lds={LDS_BYTES}'); break
        A.raw(ln)
    A.raw(DOC)
    A.raw(f'.amdgcn_target "amdgcn-amd-amdhsa--gfx950"\n.text\n.globl {NAME}_kernel\n.p2align 12\n.p2align 8\n.type {NAME}_kernel,@function\n{NAME}_kernel:')

    if span: A('s_memrealtime s[98:99]')
    A(P(0))
    A(f'''s_load_dwordx16 s[4:19], s[0:1], 0
s_load_dwordx8 s[20:27], s[0:1], 64
s_getpc_b64 s[40:41]
L_pc:
v_lshrrev_b32 v1, 6, v0
s_lshr_b32 s30, s2, 3                ; k
v_readfirstlane_b32 s28, v1          ; wave
v_and_b32 v0, 63, v0                 ; lane
s_cmp_ge_u32 s2, 256
s_cbranch_scc1 L_exit
s_lshl3_add_u32 s43, s30, s28
s_lshl_b32 s43, s43, 6
v_mov_b32 v1, s43
global_load_dword v1, v1, s[40:41]
s_and_b32 s29, s2, 7                 ; g
s_and_b32 s31, s30, 3
s_lshl2_add_u32 s31, s29, s31        ; head
s_lshr_b32 s32, s30, 2
v_lshrrev_b32 v3, 3, v0              ; lane >> 3
v_and_b32 v4, 7, v0
v_lshlrev_b32 v4, 4, v4              ; (lane & 7) * 16
v_lshl_add_u32 v2, v3, 12, v4
v_lshlrev_b32 v5, 4, v0              ; lane * 16
s_and_b32 s63, s28, 3
s_lshl2_add_u32 s33, s31, s32
s_add_u32 s33, s33, s29
s_and_b32 s33, s33, 15
s_lshl_b32 s33, s33, 8
s_lshl_b32 s34, s31, 6
s_add_u32 s34, s34, s32
s_add_u32 s34, s34, 56
s_lshl2_add_u32 s34, s34, s63
s_lshl_b32 s34, s34, 15
s_mov_b32 s38, 0x8000
s_mov_b32 s39, 0x20000
s_cmp_lt_u32 s28, 4
s_cbranch_scc1 L_kwave
s_lshl_b32 s35, s32, 5
s_add_u32 s35, s35, s63
s_lshl_b32 s35, s35, 6
s_add_u32 s35, s35, s31
s_lshl_b32 s35, s35, 8
v_lshl_add_u32 v6, v3, 16, v4
v_add_u32 v12, 0x2000, v6
v_subrev_u32 v13, 12, v0
v_ashrrev_i32 v13, 31, v13
v_lshlrev_b32 v14, 2, v0
ds_write_b32 v14, v13 offset:{L_SY}
s_and_b32 s51, s32, 1
s_lshl3_add_u32 s51, s51, s28
s_cmp_lg_u32 s51, 4
s_cbranch_scc1 L_nosel
s_mov_b32 s48, {nib & 0xffffffff:#x}
s_mov_b32 s49, {nib >> 32:#x}
s_lshr_b32 s50, s30, 3
s_and_b32 s51, s30, 3
s_lshl2_add_u32 s50, s50, s51
s_lshl_b32 s50, s50, 2
s_lshr_b64 s[48:49], s[48:49], s50
s_and_b32 s48, s48, 15
s_lshl_b32 m0, s48, 1
s_cmp_eq_u32 s51, 3
s_cselect_b32 s50, 0x200000, 0
s_cmp_eq_u32 s48, 2
s_cselect_b32 s50, s34, s50
s_cmp_eq_u32 s48, 15
L_nosel:
s_waitcnt lgkmcnt(0)
s_cbranch_scc1 L_notouch
s_movrels_b64 s[48:49], s[4:5]
s_load_dword s51, s[48:49], s50
L_notouch:
s_setprio 3
global_load_dwordx4 v[24:27], v5, s[4:5]
s_load_dword s3, s[26:27], {WS_E:#x}
s_add_u32 s10, s10, s35
s_addc_u32 s11, s11, 0''')
    for n in range(2):
        for hf in range(2): A(f'global_load_dwordx4 v[{64+8*n+4*hf}:{67+8*n+4*hf}], v{(6, 12)[n]}, s[10:11] offset:{128*hf} nt')
    A('s_barrier\ns_branch L_vwave')

    A('''L_kwave:
s_setprio 2
s_waitcnt lgkmcnt(0)
s_add_u32 s36, s6, s34
s_addc_u32 s37, s7, 0''')
    A(P(7))
    qload = 'global_load_dwordx4 v[16:19], v6, s[44:45] sc1'
    stream({KPRE: 's_barrier\n' + P(8), 12: f's_load_dword s3, s[26:27], {WS_E:#x}',
            8: '''s_lshl_b32 s34, s31, 6
s_add_u32 s34, s34, s28
s_lshl_b32 s34, s34, 7
s_add_u32 s44, s26, s34
s_addc_u32 s45, s27, 0
v_lshl_add_u32 v6, v3, 10, v4''',
            10: P(1), 32: P(2), QPOS: qload + '   ; 32 columns of the 8 partial q records'}, QPOS)
    A(f'''v_lshrrev_b32 v12, 5, v0             ; lane >> 5
v_and_b32 v13, 31, v0
v_lshlrev_b32 v13, 4, v13            ; (lane & 31) * 16
s_and_b32 s34, s28, 1
s_lshl_b32 s34, s34, 7
s_and_b32 s35, s28, 2
s_lshl1_add_u32 s34, s35, s34
v_bfe_u32 v14, v0, 4, 1
v_lshl_add_u32 v14, v12, 2, v14
v_lshlrev_b32 v14, 1, v14
v_add3_u32 v14, v14, v4, s34
v_mov_b32 v24, {L_SY}
v_mov_b32 v25, 1
s_lshl_b32 s34, s28, 2
v_mov_b32 v26, s34
s_waitcnt lgkmcnt(0)
s_add_u32 s3, s3, {EPOCH_STEP:#x}''')
    tagreg(8, 5, 4)
    A(f's_waitcnt vmcnt({GOW})\nds_write_b32 v26, v25 offset:{L_SY+64}')
    A(f's_mov_b32 s62, {SPIN}\nL_qchk:')
    for i in range(4): A(f'v_xor_b32 v{20+i}, v{16+i}, v8')
    A('v_or3_b32 v15, v20, v21, v22\nv_bitop3_b32 v15, v15, v23, 15 bitop3:0xa8\nv_cmp_ne_u32 vcc, 0, v15\ns_cbranch_vccnz L_qagain\nL_qok:')
    cold.append(lambda: A(f'L_qagain:\n{qload}\ns_sub_u32 s62, s62, 1\ns_waitcnt vmcnt(0)\ns_cbranch_scc0 L_qchk\ns_branch L_qok'))
    A(f'''v_permlane32_swap_b32 v20, v22
v_permlane32_swap_b32 v21, v23
v_add_f32 v20, v20, v22
v_add_f32 v21, v21, v23
v_permlane16_swap_b32 v20, v21
v_add_f32 v20, v20, v21
v_add_f32_dpp v20, v20, v20 row_ror:8 {FULL}
v_cvt_pk_bf16_f32 v20, v20, v20
ds_write_b16 v14, v20 offset:{L_Q}
s_mov_b64 exec, 1
s_waitcnt lgkmcnt(0)
ds_add_u32 v24, v25 offset:52
s_mov_b64 exec, -1''')
    ldsspin('ds_read_b32 v15, v24 offset:52', 'v_cmp_ne_u32 vcc, 4, v15')
    A(f'ds_read_b128 v[16:19], v4 offset:{L_Q}\nds_read_b128 v[20:23], v4 offset:{L_Q+128}\ns_waitcnt lgkmcnt(0)')
    for i0 in range(0, 16, 4):
        if i0 == 12: A('s_waitcnt vmcnt(0)')
        for e in range(8):
            for i in range(i0, i0 + 4):
                A(f'v_dot2_f32_bf16 v{32+i}, v{128+8*i+e}, v{16+e}, {"v%d" % (32+i) if e else 0}')
    for i in range(8): A(f'v_add_f32_dpp v{32+i}, v{32+i}, v{32+i} row_half_mirror row_mask:0xf bank_mask:0x5')
    for i in range(8): A(f'v_add_f32_dpp v{32+i}, v{40+i}, v{40+i} row_half_mirror row_mask:0xf bank_mask:0xa')
    A('s_mov_b32 vcc_lo, 0xcccccccc\ns_mov_b32 vcc_hi, 0xcccccccc')
    for i in range(4): A(f'v_cndmask_b32 v{40+i}, v{36+i}, v{32+i}, vcc\nv_cndmask_b32 v{32+i}, v{32+i}, v{36+i}, vcc')
    for i in range(4): A(f'v_add_f32_dpp v{32+i}, v{40+i}, v{32+i} quad_perm:[2,3,0,1] {FULL}')
    A('s_mov_b32 vcc_lo, 0xaaaaaaaa\ns_mov_b32 vcc_hi, 0xaaaaaaaa')
    for i in range(2): A(f'v_cndmask_b32 v{40+i}, v{34+i}, v{32+i}, vcc\nv_cndmask_b32 v{32+i}, v{32+i}, v{34+i}, vcc')
    for i in range(2): A(f'v_add_f32_dpp v{32+i}, v{40+i}, v{32+i} quad_perm:[1,0,3,2] {FULL}')
    r2 = 'v_cvt_pk_bf16_f32 v34, v32, v33\nv_lshlrev_b32 v32, 16, v34\nv_and_b32 v33, 0xffff0000, v34'
    A(f'{r2}\nv_mul_f32 v32, {SCALE:#x}, v32\nv_mul_f32 v33, {SCALE:#x}, v33\n{r2}       ; v32, v33 = two scores per lane')
    A('v_max_f32 v34, v32, v33')
    wred('v_max_f32', 34, 36)
    A(f'''v_sub_f32 v35, v32, v34
v_sub_f32 v36, v33, v34
v_mul_f32 v35, {LOG2E:#x}, v35
v_mul_f32 v36, {LOG2E:#x}, v36
v_exp_f32 v35, v35
v_exp_f32 v36, v36
v_add_f32 v35, v35, v36''')
    wred('v_add_f32', 35, 36)
    A(f'''s_lshl_b32 s34, s29, 8
s_add_u32 s34, s34, {WS_X}
v_lshrrev_b32 v10, 2, v13
v_add_u32 v10, s34, v10
global_load_dword v9, v10, s[26:27] sc1
v_min_u32 v34, -2, v34
v_min_u32 v35, -2, v35
v_lshl_add_u32 v37, v26, 1, v24
ds_write_b64 v37, v[34:35]
s_cmp_lg_u32 s28, 0
s_cbranch_scc1 L_mlwait''')
    ldsspin('ds_read_b128 v[40:43], v24\nds_read_b128 v[44:47], v24 offset:16',
            'v_max3_u32 v37, v40, v41, v42\nv_max3_u32 v37, v37, v43, v44\nv_max3_u32 v37, v37, v45, v46\nv_max_u32 v37, v37, v47\nv_cmp_eq_u32 vcc, -1, v37')
    A(f'''s_lshl_b32 s35, s31, 8
s_add_u32 s35, s35, {WS_ML}
v_max3_f32 v48, v40, v42, v44
v_max_f32 v48, v48, v46''')
    for w in range(4): A(f'v_sub_f32 v{40+2*w}, v{40+2*w}, v48')
    for w in range(4): A(f'v_mul_f32 v{40+2*w}, {LOG2E:#x}, v{40+2*w}')
    for w in range(4): A(f'v_exp_f32 v{40+2*w}, v{40+2*w}')
    A('v_mov_b32 v49, s3\nv_mov_b32 v51, s3\nv_mul_f32 v50, v40, v41')
    for w in range(1, 4): A(f'v_fmac_f32 v50, v{40+2*w}, v{41+2*w}')
    A(f'''s_lshl4_add_u32 s34, s32, s35
v_mov_b32 v37, s34
s_mov_b64 exec, 1
global_store_dwordx4 v37, v[48:51], s[26:27] sc1
s_mov_b64 exec, -1
s_mov_b32 s62, {SPIN}
L_ml:
s_sleep 2
s_load_dwordx16 s[64:79], s[26:27], s35 glc
s_load_dwordx16 s[80:95], s[26:27], s35 offset:64 glc
s_waitcnt lgkmcnt(0)
s_and_b32 s34, s65, s3
s_or_b32 s47, s65, s3''')
    for i in range(1, 16): A(f's_and_b32 s34, s34, s{65+2*i}\ns_or_b32 s47, s47, s{65+2*i}')
    A('s_cmp_eq_u32 s34, s47\ns_cbranch_scc1 L_mlgot\ns_sub_u32 s62, s62, 1\ns_cbranch_scc0 L_ml\nL_mlgot:\nv_mov_b32 v34, s64')
    for c in range(1, 8): A(f'v_max_f32 v34, s{64+4*c}, v34')
    for c in range(8): A(f'v_sub_f32 v{40+c}, s{64+4*c}, v34')
    for c in range(8): A(f'v_mul_f32 v{40+c}, {LOG2E:#x}, v{40+c}')
    for c in range(8): A(f'v_exp_f32 v{40+c}, v{40+c}')
    A('v_mul_f32 v35, s66, v40')
    for c in range(1, 8): A(f'v_fmac_f32 v35, s{66+4*c}, v{40+c}')
    A('''v_rcp_f32 v35, v35
v_min_u32 v34, -2, v34
v_min_u32 v35, -2, v35
ds_write_b64 v24, v[34:35] offset:32
s_branch L_mlok
L_mlwait:''')
    ldsspin('ds_read_b64 v[34:35], v24 offset:32', 'v_max_u32 v37, v34, v35\nv_cmp_eq_u32 vcc, -1, v37', 1)
    A(f'''L_mlok:
v_sub_f32 v32, v32, v34
v_sub_f32 v33, v33, v34
v_mul_f32 v32, {LOG2E:#x}, v32
v_mul_f32 v33, {LOG2E:#x}, v33
v_exp_f32 v32, v32
v_exp_f32 v33, v33
s_lshl_b32 s34, s28, 8
v_lshl_add_u32 v36, v0, 2, s34
v_mul_f32 v32, v32, v35
v_mul_f32 v33, v33, v35
v_cvt_pk_bf16_f32 v32, v32, v33
ds_write_b32 v36, v32 offset:{L_P}
s_getreg_b32 s34, hwreg(HW_REG_XCC_ID, 0, 4)
s_andn2_b32 s35, s3, 31
s_or_b32 s34, s34, s35
s_or_b32 s35, s34, 16
s_waitcnt vmcnt(0)
v_cmp_eq_u32 s[48:49], s34, v9
v_cmp_eq_u32 s[50:51], s35, v9
s_bcnt1_i32_b32 s48, s48
s_bcnt1_i32_b32 s50, s50
s_cmp_gt_u32 s50, s48
s_cselect_b32 s34, 0x2000, 0
v_mov_b32 v10, s34''')
    tagreg(8, 5, 8)
    A(f'''v_mov_b32 v11, 0xff
s_lshl_b32 s47, s28, 13
s_add_u32 s47, s47, {L_W}
v_lshrrev_b32 v14, 4, v0             ; lane >> 4
s_lshr_b32 s34, s30, 1
s_and_b32 s35, s30, 1
s_lshl4_add_u32 s30, s35, s34        ; r
s_waitcnt lgkmcnt(0)
s_cmp_ge_u32 s30, 16
s_cbranch_scc1 L_notw''')

    A(f'''; role W: wave w owns head 4g + w, columns 32r .. 32r + 31 of wo
s_lshl2_add_u32 s34, s29, s28
s_lshl_b32 s35, s34, 13
s_add_u32 s44, s26, s35
s_addc_u32 s45, s27, 0
v_lshl_add_u32 v6, v12, 12, v13
s_lshl_b32 s34, s34, 17
s_lshl_b32 s35, s30, 6
s_add_u32 s34, s34, s35
s_add_u32 s40, s12, s34
s_addc_u32 s41, s13, 0
s_mov_b32 s42, {127*1024+64}
s_mov_b32 s43, 0x20000
v_and_b32 v32, 1, v14
v_bfe_u32 v15, v0, 3, 1
v_lshl_add_u32 v15, v15, 2, v14
v_bfe_u32 v33, v0, 2, 1
v_lshl_add_u32 v15, v15, 1, v33
v_lshlrev_b32 v33, 1, v32
v_and_b32 v34, 3, v0
v_xor_b32 v33, v33, v34
v_lshlrev_b32 v33, 4, v33
v_lshl_add_u32 v15, v15, 10, v33
v_lshrrev_b32 v33, 2, v0
v_lshlrev_b32 v33, 6, v33
v_lshl_add_u32 v33, v34, 3, v33
v_lshl_add_u32 v33, v32, 5, v33
v_add_u32 v33, s47, v33
v_xor_b32 v34, 32, v33
v_add_u32 v37, v26, v13
v_add_u32 v37, {L_RED}, v37
s_and_b32 s34, s29, 4
s_add_u32 s34, s34, s29
s_lshl4_add_u32 s34, s34, s30
s_lshl_b32 s34, s34, 7
s_add_u32 s34, s34, {WS_B}
s_add_u32 s56, s26, 0x8000
s_addc_u32 s57, s27, 0
s_add_u32 s58, s26, 0x10000
s_addc_u32 s59, s27, 0
s_add_u32 s68, s26, 0x18000
s_addc_u32 s69, s27, 0
v_lshrrev_b32 v38, 2, v13
v_lshl_add_u32 v38, v12, 13, v38
v_add_u32 v38, s34, v38''')
    tagreg(9, 38, 8)
    tagmask(10, 38)
    A('s_and_b32 s60, s30, 1\ns_lshl_b32 s61, s60, 16\ns_lshl_b32 s60, s60, 7\nv_xor_b32 v6, s60, v6')
    A(f'''s_mul_i32 s34, s30, {88*128}
s_mul_i32 s35, s29, {176*1024}
s_add_u32 s34, s34, s35
v_lshl_add_u32 v35, v0, 7, s34
v_add_u32 v36, 0x2000, v35
v_min_u32 v35, {1376*1024-4}, v35
v_min_u32 v36, {1376*1024-4}, v36''')
    for n in range(8):
        if n == 0: A(BAR12)
        if n == 2: A(BAR3)
        A(f's_add_u32 m0, s47, {1024*n}\ns_xor_b32 s34, s61, {16384*n}')
        A('buffer_load_dwordx4 v15, s[40:43], s34 offen lds')
    def aload():
        for n in range(4): A(f'global_load_dwordx4 v[{96+4*n}:{99+4*n}], v6, s[44:45] offset:{1024*n} sc1')
    aload()
    for t in range(4):
        A(f's_waitcnt vmcnt({10-2*t})')
        for cb in range(2):
            for hf in range(2):
                r = 128 + 8 * t + 4 * cb + 2 * hf
                A(f'ds_read_b64_tr_b16 v[{r}:{r+1}], v{33+cb} offset:{1024*(2*t+hf)}')
    gather(aload, 4, 39, issued=True)
    A('v_cvt_pk_bf16_f32 v16, v16, v17\ns_waitcnt lgkmcnt(0)')
    mv = bcast(16, 64, 0xf)
    for o in mv[:6]: A(o)
    mv = mv[6:]
    for t in range(4):
        for cb in range(2):
            c = f'v[{40+4*cb}:{43+4*cb}]'
            A(f'v_mfma_f32_16x16x32_bf16 {c}, v[{64+4*t}:{67+4*t}], v[{128+8*t+4*cb}:{131+8*t+4*cb}], {c if t else 0}')
            for o in mv[:2]: A(o)
            mv = mv[2:]
    A(f'''; the wave that finds all four partials published sums them and stores the record
s_mov_b64 exec, 0xffff
ds_write2_b32 v37, v40, v44 offset0:0 offset1:64
ds_write_b32 v26, v11 offset:{L_SY+96}
s_mov_b64 exec, -1
ds_read_b128 v[20:23], v24 offset:96
ds_read_b128 v[16:19], v13 offset:{L_RED}
s_waitcnt lgkmcnt(1)
v_min3_u32 v20, v20, v21, v22
v_min_u32 v20, v20, v23
v_cmp_ne_u32 vcc, 0, v20
s_waitcnt lgkmcnt(0)
v_pk_add_f32 v[16:17], v[16:17], v[18:19]
s_mov_b64 exec, vcc
v_add_f32 v16, v16, v17
v_bfi_b32 v16, v10, v9, v16
global_store_dword v38, v16, s[26:27] sc1
global_store_dword v38, v16, s[56:57] sc1
global_store_dword v38, v16, s[58:59] sc1
global_store_dword v38, v16, s[68:69] sc1
global_load_dword v62, v35, s[20:21]
s_and_b32 exec_lo, exec_lo, 0xffffff
s_mov_b32 exec_hi, 0
global_load_dword v62, v36, s[20:21]''')
    finish()

    A(f'''L_notw:
s_and_b32 s34, s30, 15
s_lshl2_add_u32 s34, s34, s28
s_andn2_b32 s35, s34, 7
s_add_u32 s35, s35, s34
s_add_u32 s35, s35, 8
s_lshl_b32 s64, s29, 7
s_add_u32 s35, s35, s64
s_lshl_b32 s35, s35, 12
v_lshl_add_u32 v127, v0, 7, s35
s_lshr_b32 s34, s34, 1
s_lshl_b32 s34, s34, 4
v_lshrrev_b32 v61, 2, v0
v_add_u32 v61, s34, v61
v_mul_u32_u24 v61, 2752, v61
v_and_b32 v15, 3, v0
v_lshlrev_b32 v62, 7, v15
v_min_u32 v62, 348, v62
s_mul_i32 s34, s29, 352
v_add3_u32 v61, v61, v62, s34
s_bitcmp1_b32 s28, 0
s_cselect_b32 s64, s18, s16
s_cselect_b32 s65, s19, s17
s_mov_b32 s66, {512*2752}
s_mov_b32 s67, 0x20000
s_cmp_lt_u32 s30, 27
s_cbranch_scc1 L_rolef''')
    def bars():
        A(f'''{BAR12}
s_mov_b32 exec_hi, 0
global_load_dword v62, v127, s[12:13]
s_mov_b32 exec_hi, -1
{BAR3}
buffer_load_dword v62, v61, s[64:67], 0 offen''')

    A(f'''s_cmp_lt_u32 s30, 28
s_cbranch_scc1 L_norole
s_cmp_lg_u32 s28, 0
s_cbranch_scc1 L_norole
s_load_dword s48, s[22:23], 0 glc
s_lshl2_add_u32 s63, s29, s30
s_sub_u32 s63, s63, 28
s_lshr_b32 s34, s63, 1
s_xor_b32 s34, s34, s63
s_and_b32 s34, s34, 2
s_mul_i32 s34, s34, 3
s_xor_b32 s63, s63, s34
s_lshl_b32 s34, s63, 6
s_add_u32 s34, s34, {WS_C}
v_lshrrev_b32 v44, 2, v0
v_and_b32 v45, 12, v44
v_add_u32 v44, v44, v45
v_lshl_add_u32 v44, v44, 11, v10
v_lshl_add_u32 v44, v15, 4, v44
v_add_u32 v44, s34, v44''')
    for n in range(1, 6): A(f'v_add_u32 v{44+n}, {65536*n}, v44')
    A(f'''s_lshr_b32 s34, s63, 3
s_lshl_b32 s34, s34, 7
s_and_b32 s35, s63, 3
s_lshl_b32 s35, s35, 5
s_add_u32 s34, s34, s35
s_and_b32 s35, s63, 4
s_add_u32 s34, s34, s35
v_lshl_add_u32 v51, v15, 3, v14
v_add_lshl_u32 v51, v51, s34, 1
global_load_ushort v43, v51, s[4:5]
s_lshl_b32 s34, s34, 2
s_and_b32 s35, s29, 3
s_lshl_b32 s35, s35, 15
s_add_u32 s34, s34, s35
s_add_u32 s34, s34, {WS_B}
v_bfe_u32 v50, v0, 2, 3
v_and_b32 v52, 4, v50
v_add_u32 v50, v50, v52
v_lshl_add_u32 v50, v50, 11, v10
v_lshl_add_u32 v50, v15, 5, v50
v_add_u32 v50, s34, v50
v_mov_b32 v52, {WS_E}
v_mov_b32 v53, s3''')
    tagreg(9, 50, 8)
    A('v_mov_b32 v116, v8\nv_mov_b32 v117, 0\nv_mov_b32 v118, 0\nv_mov_b32 v119, 0')
    A('v_mov_b32 v36, v9\nv_mov_b32 v37, 0\nv_mov_b32 v38, 0\nv_mov_b32 v39, 0')
    bars()
    def cload():
        for n in range(6): A(('s_mov_b64 exec, 0xffffff\n' if n == 5 else '') + f'global_load_dwordx4 v[{96+4*n}:{99+4*n}], v{44+n}, s[26:27] sc1')
        A('s_mov_b64 exec, -1')
    cload()
    A(f'''; h = x + o @ wo for these columns
s_mov_b32 s62, {SPIN}
L_rb:
s_sleep 1
s_mov_b32 exec_hi, 0
global_load_dwordx4 v[36:39], v50, s[26:27] sc1
s_mov_b32 exec_hi, -1
s_sub_u32 s62, s62, 1
s_cbranch_scc1 L_rbok
s_waitcnt vmcnt(0)
v_xor_b32 v40, v36, v9
v_and_b32 v42, v11, v40
v_cmp_ne_u32 vcc, 0, v42
s_cbranch_vccnz L_rb
L_rbok:
{P(5)}s_cmp_eq_u32 s63, 0
s_cselect_b32 exec_lo, 1, 0
s_mov_b32 exec_hi, 0
global_store_dword v52, v53, s[26:27] sc1
s_mov_b64 exec, -1
v_permlane32_swap_b32 v40, v38
v_permlane32_swap_b32 v37, v39
v_permlane16_swap_b32 v40, v37
v_add_f32 v40, v40, v37
v_lshlrev_b32 v43, 16, v43
v_add_f32_dpp v40, v40, v40 row_ror:8 {FULL}
v_add_f32_dpp v40, v40, v40 row_ror:4 {FULL}
v_add_f32 v40, v40, v43''')
    rnd(40)
    gather(cload, 6, 42)
    A(f'''v_permlane16_swap_b32 v16, v17
v_add_f32 v16, v16, v17
v_add_f32_dpp v16, v16, v16 row_ror:8 {FULL}
v_add_f32_dpp v16, v16, v16 row_ror:4 {FULL}
s_mov_b32 exec_lo, 0x000f000f
v_add_f32 v16, v16, v40
s_mov_b32 exec_hi, 0x000f000f
v_cvt_pk_bf16_f32 v16, v16, v16
global_store_short v51, v16, s[22:23]''')
    if amp:
        A(P(6) + f'''s_memrealtime s[58:59]
s_waitcnt lgkmcnt(0)
s_sub_u32 s96, s100, s96
s_mul_i32 s96, s96, {amp[2]}
s_cmp_lg_u32 s2, {amp[3] if amp[3] >= 0 else 's2'}
s_cbranch_scc1 L_ampd
L_amp:
s_memrealtime s[100:101]
s_waitcnt lgkmcnt(0)
s_sub_u32 s100, s100, s58
s_cmp_lt_u32 s100, s96
s_cbranch_scc1 L_amp
L_ampd:''')
    finish(1)
    A('L_norole:')
    bars()
    finish()

    A(f'''.p2align 12
L_rolef:
s_mul_i32 s63, s29, 11
s_add_u32 s63, s63, s30
s_sub_u32 s63, s63, 16
s_cmp_ge_u32 s63, 86
s_cbranch_scc1 L_norole
s_mul_i32 s34, s28, {128*2752}
s_lshl_b32 s35, s63, 5
s_add_u32 s34, s34, s35
s_add_u32 s36, s16, s34
s_addc_u32 s37, s17, 0
s_mov_b32 s38, {127*2752+32}
s_mov_b32 s39, 0x20000
s_add_u32 s40, s18, s34
s_addc_u32 s41, s19, 0
s_mov_b32 s42, {127*2752+32}
s_mov_b32 s43, 0x20000
s_lshl_b32 s34, s63, 14
s_lshl_b32 s35, s28, 8
s_add_u32 s34, s34, s35
s_add_u32 s20, s20, s34
s_addc_u32 s21, s21, 0
s_add_u32 s4, s4, s35
s_addc_u32 s5, s5, 0
s_and_b32 s34, s29, 3
s_lshl_b32 s34, s34, 15
s_lshl1_add_u32 s34, s35, s34
s_add_u32 s34, s34, {WS_B+4096}
s_add_u32 s44, s26, s34
s_addc_u32 s45, s27, 0
v_lshl_add_u32 v6, v12, 14, v13
v_add_u32 v6, v6, v10
v_and_b32 v58, 12, v0
v_add_u32 v58, v58, v14
v_mul_u32_u24 v58, 80, v58
v_lshl_add_u32 v58, v15, 4, v58
v_bfe_u32 v15, v0, 3, 1
v_lshl_add_u32 v15, v15, 3, v12
v_bfe_u32 v33, v0, 2, 1
v_lshl_add_u32 v15, v15, 1, v33
v_bfe_u32 v33, v0, 4, 1
v_lshl_add_u32 v15, v15, 1, v33
v_bfe_u32 v33, v0, 1, 1
v_lshl_add_u32 v15, v15, 1, v33
v_mul_u32_u24 v15, 2752, v15
v_and_b32 v40, 1, v0
v_lshlrev_b32 v40, 4, v40
v_add_u32 v15, v15, v40
v_lshl_add_u32 v33, v0, 3, s47
v_lshrrev_b32 v36, 1, v13
v_lshl_add_u32 v36, v12, 2, v36
global_load_dword v32, v36, s[4:5]
v_and_b32 v38, 15, v0
v_lshlrev_b32 v34, 4, v38
v_lshl_add_u32 v34, v14, 10, v34
v_add_u32 v34, 0x1000, v34
v_add_u32 v35, 0x2000, v34
s_lshl_b32 s34, s28, 3
v_lshl_add_u32 v60, v12, 2, s34
s_add_u32 s34, s34, {L_OP}
v_mul_u32_u24 v57, 80, v38
v_add_u32 v57, s34, v57
v_lshl_add_u32 v57, v14, 2, v57
s_andn2_b32 s34, s63, 3
s_add_u32 s34, s34, s63
s_lshl2_add_u32 s34, s34, s28
s_lshl_b32 s34, s34, 9
s_add_u32 s34, s34, {WS_C}
v_lshl_add_u32 v59, v12, 13, v13
v_add_u32 v59, s34, v59
v_mov_b32 v44, 0x3f803f80
v_mov_b32 v63, {L_RED}
v_mov_b32 v46, {EPS:#x}
v_mov_b32 v41, 0xffff
v_lshlrev_b32 v40, v40, v41
v_bfe_u32 v41, v0, 1, 2
s_mov_b32 s60, 1
s_mov_b32 s61, 1''')
    for i in range(16): A(f'v_mov_b32 v{72+i}, v44')
    for w in range(4): A(f'v_cmp_eq_u32 vcc, {w}, v41\nv_cndmask_b32 v{48+w}, 0, v40, vcc')
    bars()
    for t in range(4):
        for m in range(2):
            A(f's_add_u32 m0, s47, {4096*m+1024*t}\ns_mov_b32 s34, {16*t*2752}')
            A(f'buffer_load_dwordx4 v15, s[{36+4*m}:{39+4*m}], s34 offen lds')
    def bload():
        for n in range(4): A(f'global_load_dwordx4 v[{96+4*n}:{99+4*n}], v6, s[44:45] offset:{2048*n-4096} sc1')
    for t in range(4):
        A(f's_waitcnt vmcnt({6-2*t})')
        if t == 3: bload()
        for m in range(2):
            for hf in range(2):
                r = 128 + 16 * m + 4 * t + 2 * hf
                A(f'ds_read_b64_tr_b16 v[{r}:{r+1}], v33 offset:{4096*m+1024*t+512*hf}')
        if t == 0: A('v_and_b32 v41, 0xffff0000, v32\nv_lshlrev_b32 v40, 16, v32')
    gather(bload, 4, 42, issued=True)
    A('''; h @ W with LN folded in: A rows 4-7 stay all ones and yield the column sums; moments of h on the side
v_pk_add_f32 v[16:17], v[16:17], v[40:41]
v_cvt_pk_bf16_f32 v18, v16, v17
v_dot2_f32_bf16 v16, v18, v44, 0
v_dot2_f32_bf16 v17, v18, v18, 0
s_waitcnt lgkmcnt(0)''')
    op = {f'm{i}': o for i, o in enumerate(bcast(18, 72, 0xd))}
    op.update({f'd{r}': f'v_add_f32_dpp v16, v16, v16 row_ror:{r} {FULL}' for r in (8, 4, 2, 1)})
    op.update({f'L{n}': f'global_load_dwordx4 v[{160+4*n}:{163+4*n}], v{34+(n>>1)}, s[20:21] offset:{4096*(n&1)-4096}' for n in range(4)})
    for n in range(8):
        t, m = n >> 1, n & 1
        c = f'v[{64+4*m}:{67+4*m}]'
        op[f'M{n}'] = f'v_mfma_f32_16x16x32_bf16 {c}, v[{72+4*t}:{75+4*t}], v[{128+16*m+4*t}:{131+16*m+4*t}], {c if t else 0}'
    op.update(S32='v_permlane32_swap_b32 v16, v17', S16='v_permlane16_swap_b32 v16, v17', A='v_add_f32 v16, v16, v17', mv='v_mov_b32 v17, v16',
              wr=f's_mov_b64 exec, s[60:61]\nds_write_b32 v60, v16 offset:{L_RED}\ns_mov_b64 exec, -1', bar='s_waitcnt lgkmcnt(0)\ns_barrier',
              rd='ds_read_b128 v[24:27], v63\nds_read_b128 v[28:31], v63 offset:16')
    for o in 'm0 m1 S32 m2 A m3 m4 d8 M0 m5 d4 m6 M1 d2 m7 m8 d1 mv M2 m9 S16 A wr M3 m10 m11 L0 L1 M4 m12 m13 m14 m15 M5 L2 L3 bar M6 rd M7'.split(): A(op[o])
    A(f'''s_mov_b32 exec_hi, 0
ds_write2_b32 v57, v64, v68 offset0:0 offset1:8
s_mov_b32 exec_hi, -1
s_waitcnt lgkmcnt(1)
v_pk_add_f32 v[24:25], v[24:25], v[26:27]
v_pk_add_f32 v[28:29], v[28:29], v[30:31]
v_pk_add_f32 v[24:25], v[24:25], v[28:29]
s_waitcnt lgkmcnt(0)
s_barrier
ds_read_b128 v[16:19], v58 offset:{L_OP}
v_mul_f32 v24, 0xbb000000, v24       ; -mean
v_fmamk_f32 v28, v25, 0x3b000000, v46
v_fma_f32 v28, -v24, v24, v28
v_max_f32 v28, v28, v46
v_rsq_f32 v29, v28
s_waitcnt lgkmcnt(0)
v_pk_add_f32 v[16:17], v[16:17], v[18:19]
v_fmac_f32 v16, v24, v17
v_rcp_f32 v28, v28
v_mul_f32 v29, {LOG2E ^ 0x80000000:#x}, v29
v_add_f32_dpp v16, v16, v16 quad_perm:[1,0,3,2] {FULL}
v_mul_f32 v17, v16, v29
v_exp_f32 v17, v17
v_mul_f32_dpp v18, v16, v16 quad_perm:[2,3,0,1] {FULL}
v_add_f32 v17, 1.0, v17
v_rcp_f32 v17, v17
v_mul_f32 v18, v18, v28
v_mul_f32 v16, v18, v17
v_cvt_pk_bf16_f32 v16, v16, v16
s_waitcnt vmcnt(0)
; act @ w_down on row-major weights: A holds act on a diagonal''')
    ops = [f'v_and_b32_dpp v{72+4*n+w}, v16, v{48+w} row_newbcast:{4*n} {FULL}' for n in range(4) for w in range(4)]
    for n in range(4):
        for o in ops[(4 * n + 2 if n else 0):4 * n + 6]: A(o)
        A(f'v_mfma_f32_16x16x32_bf16 v[64:67], v[{72+4*n}:{75+4*n}], v[{160+4*n}:{163+4*n}], {"v[64:67]" if n else 0}')
    A('v_bfi_b32 v64, v11, v8, v64\nglobal_store_dwordx4 v59, v[64:67], s[26:27] sc1')
    finish()

    A(f'''.p2align 12
L_vwave:
s_add_u32 s36, s8, s34
s_addc_u32 s37, s9, 0
s_lshl3_add_u32 s35, s31, s32
s_lshl_b32 s35, s35, 10
s_add_u32 s44, s26, s35
s_addc_u32 s45, s27, 0
v_mov_b32 v56, {L_SY}
s_lshr_b32 s56, s2, 6
s_lshl_b32 s56, s56, 7
s_and_b32 s35, s2, 63
s_add_u32 s56, s56, s35
s_lshl_b32 s56, s56, 7
s_add_u32 s56, s56, {WS_PR}
s_cmp_lg_u32 s28, 5
s_cbranch_scc1 L_nowarm
s_load_dword s54, s[26:27], s56 glc
s_load_dword s55, s[26:27], s56 offset:0x2000 glc
L_nowarm:
v_and_b32 v28, 1, v0
v_cmp_eq_u32 vcc, 1, v28
v_mov_b32 v29, 0x0c0c0100
v_mov_b32 v30, 0x01000c0c
v_cndmask_b32 v29, v29, v30, vcc
v_mov_b32 v30, 0x0c0c0302
v_mov_b32 v31, 0x03020c0c
v_cndmask_b32 v30, v30, v31, vcc
v_mov_b32 v31, 0x0c0c0c0c
v_bfe_u32 v28, v0, 1, 2''')
    for w in range(4): A(f'v_cmp_eq_u32 vcc, {w}, v28\nv_cndmask_b32 v{40+w}, v31, v29, vcc\nv_cndmask_b32 v{44+w}, v31, v30, vcc')
    A(f'''s_lshl_b32 s34, s63, 10
s_add_u32 s34, s34, {L_OP}
v_lshrrev_b32 v12, 5, v0
v_lshl_add_u32 v12, v12, 9, s34
v_lshl_add_u32 v12, v4, 1, v12
v_bfe_u32 v13, v0, 4, 1
v_lshl_add_u32 v12, v13, 4, v12
v_lshlrev_b32 v14, 3, v0
s_lshl_b32 s34, s32, 5
s_add_u32 s34, s34, s63
s_lshl_b32 s34, s34, 2
v_lshl_add_u32 v6, v3, 4, s34
v_mov_b32 v57, 1
s_waitcnt vmcnt(4)''')
    layernorm(24, 28)
    A(f'ds_write_b128 v5, v[24:27] offset:{L_H}\ns_waitcnt lgkmcnt(0)\nds_read_b32 v48, v6 offset:{L_H}\ns_add_u32 s3, s3, {EPOCH_STEP:#x}')
    tagreg(8, 14, 4)
    A('s_waitcnt lgkmcnt(0)')
    for n in range(2): afrag(24 + 4 * n, 48, n)
    A('s_waitcnt vmcnt(0)')
    for n in range(2):
        for hf in range(2):
            c = f'v[{16+4*hf}:{19+4*hf}]'
            A(f'v_mfma_f32_16x16x32_bf16 {c}, v[{24+4*n}:{27+4*n}], v[{64+8*n+4*hf}:{67+8*n+4*hf}], {c if n else 0}')
    part_write = '''s_mov_b32 exec_lo, 0x00ff00ff
s_mov_b32 exec_hi, 0xff00ff00
ds_write_b128 v12, v[16:19]
ds_write_b128 v12, v[20:23] offset:256'''
    A(f'''{part_write}
s_mov_b64 exec, 1
s_waitcnt lgkmcnt(0)
ds_add_u32 v56, v57 offset:48
s_mov_b64 exec, -1
s_cmp_lg_u32 s28, 4
s_cbranch_scc1 L_vstream''')
    ldsspin('ds_read_b32 v15, v56 offset:48', 'v_cmp_ne_u32 vcc, 4, v15')
    for n in range(4): A(f'ds_read_b128 v[{16+4*n}:{19+4*n}], v5 offset:{L_OP+1024*n}')
    A('s_waitcnt lgkmcnt(0)')
    for i in (0, 2, 8, 10): A(f'v_pk_add_f32 v[{16+i}:{17+i}], v[{16+i}:{17+i}], v[{20+i}:{21+i}]')
    for i in (0, 2): A(f'v_pk_add_f32 v[{16+i}:{17+i}], v[{16+i}:{17+i}], v[{24+i}:{25+i}]')
    A(f'''v_permlane32_swap_b32 v16, v18
v_permlane32_swap_b32 v17, v19
v_pk_add_f32 v[16:17], v[16:17], v[18:19]
v_and_or_b32 v16, v16, -16, v8
v_and_or_b32 v17, v17, -16, v8
global_store_dwordx2 v14, v[16:17], s[44:45]
L_vstream:
s_setprio 0
s_getreg_b32 s34, hwreg(HW_REG_XCC_ID, 0, 4)
s_andn2_b32 s46, s3, 31
s_or_b32 s46, s46, s34
s_lshl_b32 s47, s29, 8
s_add_u32 s47, s47, {WS_X}
s_cmp_lg_u32 s28, 5
s_cbranch_scc1 L_noprobe
s_mov_b32 s54, -1
s_mov_b32 s55, -1
s_waitcnt lgkmcnt(0)''')
    for i in range(4):
        A(f's_memtime s[50:51]\ns_load_dword s35, s[26:27], s56 offset:{0x2000 * (i & 1)} glc\ns_waitcnt lgkmcnt(0)\ns_memtime s[52:53]\ns_waitcnt lgkmcnt(0)\ns_sub_u32 s35, s52, s50\ns_min_u32 s{54 + (i & 1)}, s{54 + (i & 1)}, s35')
    A(f'''s_cmp_lt_u32 s55, s54
s_cselect_b32 s35, 16, 0
s_or_b32 s34, s46, s35
v_mov_b32 v31, s34
s_lshl2_add_u32 s34, s30, s47
v_mov_b32 v30, s34
s_mov_b64 exec, 1
global_store_dword v30, v31, s[26:27]
s_mov_b64 exec, -1
L_noprobe:
s_lshl_b32 s34, s63, 2
v_mov_b32 v28, s34
v_and_b32 v30, 31, v0
v_lshl_add_u32 v30, v30, 2, s47''')
    ldsspin(f'ds_read_b32 v15, v28 offset:{L_SY+64}', 'v_cmp_eq_u32 vcc, 0, v15', 1)
    stream({XPOS: 'global_load_dword v29, v30, s[26:27] sc1',
            XPOS + THR: '''v_and_b32 v29, -17, v29
v_cmp_ne_u32 s[48:49], s46, v29
s_cmp_eq_u64 s[48:49], 0
s_cselect_b64 s[50:51], -1, 0
s_cselect_b64 s[52:53], 0, -1
s_cbranch_scc0 L_requeue
L_requeued:'''}, XPOS)
    cold.append(lambda: A('''L_requeue:
s_cmp_lg_u32 s28, 4
s_cbranch_scc1 L_requeued
global_store_dwordx2 v14, v[16:17], s[44:45] sc1
s_waitcnt vmcnt(0)
s_branch L_requeued'''))
    A('v_mov_b32 v11, 0xff')
    tagreg(8, 14, 8)
    tagmask(10, 14)
    A(f'''s_lshl_b32 s34, s63, 8
v_lshl_add_u32 v6, v3, 5, s34
s_barrier
ds_read_b128 v[48:51], v6 offset:{L_P}
ds_read_b128 v[52:55], v6 offset:{L_P+16}
s_waitcnt lgkmcnt(0)''')
    for i in range(16): afrag(64 + 4 * i, 48 + i // 2, i & 1)
    for i in range(16):
        for hf in range(2):
            if (i, hf) == (12, 0): A('s_setprio 3')
            if i >= 12: A(f's_waitcnt vmcnt({31-2*i-hf})')
            if (i, hf) == (12, 0): A('s_barrier')
            c = f'v[{16+4*hf}:{19+4*hf}]'
            A(f'v_mfma_f32_16x16x32_bf16 {c}, v[{64+4*i}:{67+4*i}], v[{128+8*i+4*hf}:{131+8*i+4*hf}], {c if i else 0}')
    A(f'''; the wave that finds all four partials published sums them and stores the record
{part_write}
ds_write_b32 v28, v11 offset:{L_SY+80}
s_mov_b64 exec, -1
ds_read_b128 v[32:35], v56 offset:80''')
    for n in range(4): A(f'ds_read_b128 v[{64+4*n}:{67+4*n}], v5 offset:{L_OP+1024*n}')
    A('''s_waitcnt lgkmcnt(4)
v_min3_u32 v32, v32, v33, v34
v_min_u32 v32, v32, v35
v_cmp_ne_u32 vcc, 0, v32
s_waitcnt lgkmcnt(2)
v_pk_add_f32 v[64:65], v[64:65], v[68:69]
v_pk_add_f32 v[66:67], v[66:67], v[70:71]
s_and_b64 s[50:51], s[50:51], vcc
s_and_b64 s[52:53], s[52:53], vcc
s_waitcnt lgkmcnt(0)
v_pk_add_f32 v[72:73], v[72:73], v[76:77]
v_pk_add_f32 v[74:75], v[74:75], v[78:79]
v_pk_add_f32 v[64:65], v[64:65], v[72:73]
v_pk_add_f32 v[66:67], v[66:67], v[74:75]
v_permlane32_swap_b32 v64, v66
v_permlane32_swap_b32 v65, v67
v_pk_add_f32 v[64:65], v[64:65], v[66:67]
v_bfi_b32 v64, v10, v8, v64
s_mov_b64 exec, s[50:51]
global_store_dwordx2 v14, v[64:65], s[44:45]
s_mov_b64 exec, s[52:53]
global_store_dwordx2 v14, v[64:65], s[44:45] sc1
s_barrier''')
    if span == 2: A('s_cmp_lg_u32 s30, 31\ns_cbranch_scc1 L_exit\ns_cmp_lg_u32 s28, 5\ns_cbranch_scc1 L_exit\ns_mov_b32 s28, 1')
    finish(2)
    A(f'L_exit:\ns_endpgm\nL_code_end:\n.fill (L_pc+16384-L_code_end)/4, 4, 0xbf810000')
    A.raw(f'''.section .rodata,"a"
.p2align 6
.amdhsa_kernel {NAME}_kernel
  .amdhsa_next_free_vgpr 256
  .amdhsa_next_free_sgpr 102
  .amdhsa_accum_offset 256
  .amdhsa_group_segment_fixed_size 0
  .amdhsa_kernarg_size 96
  .amdhsa_user_sgpr_count 2
  .amdhsa_user_sgpr_kernarg_segment_ptr 1
  .amdhsa_system_sgpr_workgroup_id_x 1
  .amdhsa_float_denorm_mode_32 3
.end_amdhsa_kernel''')
    return A.text()

if __name__ == '__main__':
    out = sys.argv[1] if len(sys.argv) > 1 else f'cdna_kernels/{NAME}.s'
    open(out, 'w').write(gen(**eval('dict(' + (sys.argv[2] if len(sys.argv) > 2 else '') + ')')))
```

```python
import sys
from asmlib import Asm

NAME = 'sequential_preLN__sliding_block_cached__swiglu_ffn__decode'
WS_QA, WS_B, WS_PR, WS_ML, WS_X, WS_E, WS_C, WS_ST = 0x0, 0x40000, 0x60000, 0x70000, 0x72000, 0x73000, 0x80000, 0x100000
EPOCH_STEP = 0x5bd1e3c7
L_P, L_OP, L_H, L_RED, L_SY, L_Q, L_W = 0x0, 0x400, 0x1400, 0x1800, 0x1a00, 0x1b00, 0x1c00
LDS_BYTES = L_W + 0x8000
SPIN = 0x40000
LOG2E, SCALE, EPS = 0x3fb8aa3b, 0x3db504f3, 0x3727c5ac
FULL = 'row_mask:0xf bank_mask:0xf'
THR, KPRE, QPOS, XPOS, GOW = 8, 2, 24, 16, 8

BAR12 = 's_barrier\ns_barrier'
BAR3 = 's_barrier'

DOC = '''\
;   found nearer. Either copy holds the same data.'''

def gen(span=0):
    slot = {'x': 0, 'V': 2, 'q': 3, 'o': 4, 'g': 6, 'u': 7, 'd': 8, '.': 15}
    nib = sum(slot[c] << (4 * i) for i, c in enumerate('x.qqVVVVguood...'))
    A = Asm()
    cold = []
    uid = [0]
    def lab(s):
        uid[0] += 1
        return f'L_{s}_{uid[0]}'
    def finish(last=0):
        if span and last == span:
            A(f'''s_memrealtime s[96:97]
s_waitcnt lgkmcnt(0)
v_writelane_b32 v7, s96, 15
v_writelane_b32 v7, s98, 0
s_mov_b64 exec, 0xffff
s_lshl3_add_u32 s34, s2, s28
s_lshl_b32 s34, s34, 6
s_add_u32 s34, s34, {WS_ST}
v_lshl_add_u32 v1, v0, 2, s34
global_store_dword v1, v7, s[26:27]''')
        A('s_endpgm')
        for f in cold: f()
        cold.clear()
    def wred(op, v, t):
        for r in (8, 4, 2, 1): A(f'{op}_dpp v{v}, v{v}, v{v} row_ror:{r} {FULL}')
        for sw in (16, 32): A(f'v_mov_b32 v{t}, v{v}\nv_permlane{sw}_swap_b32 v{v}, v{t}\n{op} v{v}, v{v}, v{t}')
    def rnd(v):
        A(f'v_cvt_pk_bf16_f32 v{v}, v{v}, v{v}\nv_lshlrev_b32 v{v}, 16, v{v}')
    def layernorm(x, u):
        s, t, mb, dl = u + 8, u + 9, u + 10, u + 11
        for i in range(4): A(f'v_lshlrev_b32 v{u+2*i}, 16, v{x+i}\nv_and_b32 v{u+2*i+1}, 0xffff0000, v{x+i}')
        A(f'v_add_f32 v{s}, v{u}, v{u+1}\nv_add_f32 v{t}, v{u+2}, v{u+3}\nv_add_f32 v{mb}, v{u+4}, v{u+5}\nv_add_f32 v{dl}, v{u+6}, v{u+7}')
        A(f'v_add_f32 v{s}, v{s}, v{t}\nv_add_f32 v{mb}, v{mb}, v{dl}\nv_add_f32 v{s}, v{s}, v{mb}')
        wred('v_add_f32', s, t)
        A(f'v_mul_f32 v{dl}, 0x3b000000, v{s}')
        A(f'v_cvt_pk_bf16_f32 v{mb}, v{dl}, v{dl}\nv_lshlrev_b32 v{mb}, 16, v{mb}')
        for i in range(8): A(f'v_sub_f32 v{u+i}, v{u+i}, v{mb}')
        A(f'v_sub_f32 v{dl}, v{dl}, v{mb}')
        A(f'v_mul_f32 v{s}, v{u}, v{u}\nv_mul_f32 v{t}, v{u+1}, v{u+1}')
        for i in range(2, 8, 2): A(f'v_fmac_f32 v{s}, v{u+i}, v{u+i}\nv_fmac_f32 v{t}, v{u+i+1}, v{u+i+1}')
        A(f'v_add_f32 v{s}, v{s}, v{t}')
        fill = [f'v_cvt_pk_bf16_f32 v{x+i}, v{u+2*i}, v{u+2*i+1}' for i in range(4)]
        for i in range(4): fill += [f'v_lshlrev_b32 v{u+2*i}, 16, v{x+i}', f'v_and_b32 v{u+2*i+1}, 0xffff0000, v{x+i}']
        fill.append(f'v_mul_f32 v{dl}, v{dl}, v{dl}')
        for r in (8, 4, 2, 1):
            A(fill.pop(0)); A(fill.pop(0))
            A(f'v_add_f32_dpp v{s}, v{s}, v{s} row_ror:{r} {FULL}')
        for sw in (16, 32):
            A(f'v_mov_b32 v{t}, v{s}'); A(fill.pop(0)); A(fill.pop(0))
            A(f'v_permlane{sw}_swap_b32 v{s}, v{t}\nv_add_f32 v{s}, v{s}, v{t}')
        A(fill.pop(0))
        A(f'v_mul_f32 v{s}, 0x3b000000, v{s}\nv_sub_f32 v{s}, v{s}, v{dl}\nv_max_f32 v{s}, 0, v{s}')
        rnd(s)
        A(f'v_add_f32 v{s}, {EPS:#x}, v{s}'); rnd(s)
        A(f'v_sqrt_f32 v{s}, v{s}'); rnd(s)
        A(f'v_rcp_f32 v{s}, v{s}')
        for i in range(8): A(f'v_mul_f32 v{u+i}, v{u+i}, v{s}')
        for i in range(4): A(f'v_cvt_pk_bf16_f32 v{x+i}, v{u+2*i}, v{u+2*i+1}')
    def afrag(dst, src, par):
        for w in range(4): A(f'v_perm_b32 v{dst+w}, v{src}, v{src}, v{40+4*par+w}')
    def bcast(src, dst, bank):
        return [f'v_mov_b32_dpp v{dst+i}, v{src} row_newbcast:{i} row_mask:0xf bank_mask:{bank:#x}' for i in range(16)]
    def tagreg(dst, addr, bits):
        A(f'v_lshrrev_b32 v{dst}, 1, v{addr}\nv_xor_b32 v{dst}, v{dst}, v{addr}\nv_bfe_u32 v{dst}, v{dst}, 4, 1\nv_lshlrev_b32 v{dst}, {bits-1}, v{dst}\nv_xor_b32 v{dst}, s3, v{dst}')
        if bits == 4: A(f'v_xor_b32 v{dst}, 4, v{dst}')
        A(f'v_and_b32 v{dst}, {(1 << bits) - 1}, v{dst}')
    def tagmask(dst, addr):
        A(f'v_and_b32 v{dst}, 15, v{addr}\nv_cmp_eq_u32 vcc, 0, v{dst}\nv_cndmask_b32 v{dst}, 0, v11, vcc')
    def gather(load, n, t, issued=False):
        x, y, T, d = 96, 120, 8, 16
        L, Lc, Lo = lab('again'), lab('chk'), lab('ok')
        A(f'; repeat the round until word 0 of every granule carries the tag, then sum the partials\ns_mov_b32 s62, {SPIN}')
        if issued: A(f's_branch {Lc}')
        A(f'{L}:')
        load()
        A(f's_sub_u32 s62, s62, 1\ns_cbranch_scc1 {Lo}\n{Lc}:')
        for i in range(n):
            if i % 2 == 0: A(f's_waitcnt vmcnt({n-2-i})')
            A(f'v_xor_b32 v{y+i}, v{x+4*i}, v{T}')
            if i % 2 == 1:
                dd = d + 2 * (i - 1)
                if i == 1: A(f'v_or_b32 v{t}, v{y}, v{y+1}')
                elif i < n - 1: A(f'v_or3_b32 v{t}, v{t}, v{y+i-1}, v{y+i}')
                else: A(f'v_or_b32 v{t}, v{t}, v{y+i-1}\nv_bitop3_b32 v{t}, v{t}, v{y+i}, v11 bitop3:0xa8\nv_cmp_ne_u32 vcc, 0, v{t}')
                A(f'v_pk_add_f32 v[{dd+2}:{dd+3}], v[{x+4*i-2}:{x+4*i-1}], v[{x+4*i+2}:{x+4*i+3}]')
                if i == n - 1: A(f's_cbranch_vccnz {L}\n{Lo}:')
                A(f'v_add_f32 v{dd}, v{y+i-1}, v{y+i}\nv_add_f32 v{dd+1}, v{x+4*i-3}, v{x+4*i+1}')
                if i > 1:
                    for r in (2, 0): A(f'v_pk_add_f32 v[{d+r}:{d+r+1}], v[{d+r}:{d+r+1}], v[{dd+r}:{dd+r+1}]')
        A(f'v_permlane32_swap_b32 v{d}, v{d+2}\nv_permlane32_swap_b32 v{d+1}, v{d+3}')
        A(f'v_pk_add_f32 v[{d}:{d+1}], v[{d}:{d+1}], v[{d+2}:{d+3}]')
    def ldsspin(reads, test, slp=0):
        L, Ld = lab('spin'), lab('spun')
        A(f's_mov_b32 s62, {SPIN}\n{L}:')
        if slp: A(f's_sleep {slp}')
        A(f'{reads}\ns_waitcnt lgkmcnt(0)\n{test}\ns_cbranch_vccz {Ld}\ns_sub_u32 s62, s62, 1\ns_cbranch_scc0 {L}\n{Ld}:')
    def stream(hooks, extra_at):
        A(f'; 16 tiles of 8 keys x 256 B, at most {THR} loads in flight per wave')
        for i in range(16):
            if i: A('s_addk_i32 s33, 0x100\ns_bitset0_b32 s33, 12')
            if 2 * i >= THR:
                A(f's_waitcnt vmcnt({THR - 2 + (1 if 2 * i - (THR - 2) < extra_at <= 2 * i else 0)})')
            for hf in range(2):
                A(f'buffer_load_dwordx4 v[{128+8*i+4*hf}:{131+8*i+4*hf}], v2, s[36:39], s33 offen offset:{128*hf} nt')
                if 2 * i + hf + 1 in hooks: A(hooks[2 * i + hf + 1])

    for ln in open('cdna_kernels/' + NAME + '.s.ref').read().split('\n'):
        if ln.startswith('; @launch'): A.raw(f'; @launch grid=(256,1,1) block=(512,1,1) lds={LDS_BYTES}'); break
        A.raw(ln)
    A.raw(DOC)
    A.raw(f'.amdgcn_target "amdgcn-amd-amdhsa--gfx950"\n.text\n.globl {NAME}_kernel\n.p2align 12\n.p2align 8\n.type {NAME}_kernel,@function\n{NAME}_kernel:')

    if span: A('s_memrealtime s[98:99]')
    A(f'''s_load_dwordx16 s[4:19], s[0:1], 0
s_load_dwordx8 s[20:27], s[0:1], 64
s_getpc_b64 s[40:41]
L_pc:
v_lshrrev_b32 v1, 6, v0
s_lshr_b32 s30, s2, 3                ; k
v_readfirstlane_b32 s28, v1          ; wave
v_and_b32 v0, 63, v0                 ; lane
s_cmp_ge_u32 s2, 256
s_cbranch_scc1 L_exit
s_lshl3_add_u32 s43, s30, s28
s_lshl_b32 s43, s43, 6
v_mov_b32 v1, s43
global_load_dword v1, v1, s[40:41]
s_and_b32 s29, s2, 7                 ; g
s_and_b32 s31, s30, 3
s_lshl2_add_u32 s31, s29, s31        ; head
s_lshr_b32 s32, s30, 2
v_lshrrev_b32 v3, 3, v0              ; lane >> 3
v_and_b32 v4, 7, v0
v_lshlrev_b32 v4, 4, v4              ; (lane & 7) * 16
v_lshl_add_u32 v2, v3, 12, v4
v_lshlrev_b32 v5, 4, v0              ; lane * 16
s_and_b32 s63, s28, 3
s_lshl2_add_u32 s33, s31, s32
s_add_u32 s33, s33, s29
s_and_b32 s33, s33, 15
s_lshl_b32 s33, s33, 8
s_lshl_b32 s34, s31, 6
s_add_u32 s34, s34, s32
s_add_u32 s34, s34, 56
s_lshl2_add_u32 s34, s34, s63
s_lshl_b32 s34, s34, 15
s_mov_b32 s38, 0x8000
s_mov_b32 s39, 0x20000
s_cmp_lt_u32 s28, 4
s_cbranch_scc1 L_kwave
s_lshl_b32 s35, s32, 5
s_add_u32 s35, s35, s63
s_lshl_b32 s35, s35, 6
s_add_u32 s35, s35, s31
s_lshl_b32 s35, s35, 8
v_lshl_add_u32 v6, v3, 16, v4
v_add_u32 v12, 0x2000, v6
v_subrev_u32 v13, 12, v0
v_ashrrev_i32 v13, 31, v13
v_lshlrev_b32 v14, 2, v0
ds_write_b32 v14, v13 offset:{L_SY}
s_and_b32 s51, s32, 1
s_lshl3_add_u32 s51, s51, s28
s_cmp_lg_u32 s51, 4
s_cbranch_scc1 L_nosel
s_mov_b32 s48, {nib & 0xffffffff:#x}
s_mov_b32 s49, {nib >> 32:#x}
s_lshr_b32 s50, s30, 3
s_and_b32 s51, s30, 3
s_lshl2_add_u32 s50, s50, s51
s_lshl_b32 s50, s50, 2
s_lshr_b64 s[48:49], s[48:49], s50
s_and_b32 s48, s48, 15
s_lshl_b32 m0, s48, 1
s_cmp_eq_u32 s51, 3
s_cselect_b32 s50, 0x200000, 0
s_cmp_eq_u32 s48, 2
s_cselect_b32 s50, s34, s50
s_cmp_eq_u32 s48, 15
L_nosel:
s_waitcnt lgkmcnt(0)
s_cbranch_scc1 L_notouch
s_movrels_b64 s[48:49], s[4:5]
s_load_dword s51, s[48:49], s50
L_notouch:
s_setprio 3
global_load_dwordx4 v[24:27], v5, s[4:5]
s_load_dword s3, s[26:27], {WS_E:#x}
s_add_u32 s10, s10, s35
s_addc_u32 s11, s11, 0''')
    for n in range(2):
        for hf in range(2): A(f'global_load_dwordx4 v[{64+8*n+4*hf}:{67+8*n+4*hf}], v{(6, 12)[n]}, s[10:11] offset:{128*hf} nt')
    A('s_barrier\ns_branch L_vwave')

    A('''L_kwave:
s_setprio 2
s_waitcnt lgkmcnt(0)
s_add_u32 s36, s6, s34
s_addc_u32 s37, s7, 0''')
    qload = 'global_load_dwordx4 v[16:19], v6, s[44:45] sc1'
    stream({KPRE: 's_barrier', 12: f's_load_dword s3, s[26:27], {WS_E:#x}',
            8: '''s_lshl_b32 s34, s31, 6
s_add_u32 s34, s34, s28
s_lshl_b32 s34, s34, 7
s_add_u32 s44, s26, s34
s_addc_u32 s45, s27, 0
v_lshl_add_u32 v6, v3, 10, v4''',
            QPOS: qload + '   ; 32 columns of the 8 partial q records'}, QPOS)
    A(f'''v_lshrrev_b32 v12, 5, v0             ; lane >> 5
v_and_b32 v13, 31, v0
v_lshlrev_b32 v13, 4, v13            ; (lane & 31) * 16
s_and_b32 s34, s28, 1
s_lshl_b32 s34, s34, 7
s_and_b32 s35, s28, 2
s_lshl1_add_u32 s34, s35, s34
v_bfe_u32 v14, v0, 4, 1
v_lshl_add_u32 v14, v12, 2, v14
v_lshlrev_b32 v14, 1, v14
v_add3_u32 v14, v14, v4, s34
v_mov_b32 v24, {L_SY}
v_mov_b32 v25, 1
s_lshl_b32 s34, s28, 2
v_mov_b32 v26, s34
s_waitcnt lgkmcnt(0)
s_add_u32 s3, s3, {EPOCH_STEP:#x}''')
    tagreg(8, 5, 4)
    A(f's_waitcnt vmcnt({GOW})\nds_write_b32 v26, v25 offset:{L_SY+64}')
    A(f's_mov_b32 s62, {SPIN}\nL_qchk:')
    for i in range(4): A(f'v_xor_b32 v{20+i}, v{16+i}, v8')
    A('v_or3_b32 v15, v20, v21, v22\nv_bitop3_b32 v15, v15, v23, 15 bitop3:0xa8\nv_cmp_ne_u32 vcc, 0, v15\ns_cbranch_vccnz L_qagain\nL_qok:')
    cold.append(lambda: A(f'L_qagain:\n{qload}\ns_sub_u32 s62, s62, 1\ns_waitcnt vmcnt(0)\ns_cbranch_scc0 L_qchk\ns_branch L_qok'))
    A(f'''v_permlane32_swap_b32 v20, v22
v_permlane32_swap_b32 v21, v23
v_add_f32 v20, v20, v22
v_add_f32 v21, v21, v23
v_permlane16_swap_b32 v20, v21
v_add_f32 v20, v20, v21
v_add_f32_dpp v20, v20, v20 row_ror:8 {FULL}
v_cvt_pk_bf16_f32 v20, v20, v20
ds_write_b16 v14, v20 offset:{L_Q}
s_mov_b64 exec, 1
s_waitcnt lgkmcnt(0)
ds_add_u32 v24, v25 offset:52
s_mov_b64 exec, -1''')
    ldsspin('ds_read_b32 v15, v24 offset:52', 'v_cmp_ne_u32 vcc, 4, v15')
    A(f'ds_read_b128 v[16:19], v4 offset:{L_Q}\nds_read_b128 v[20:23], v4 offset:{L_Q+128}\ns_waitcnt lgkmcnt(0)')
    for i0 in range(0, 16, 4):
        if i0 == 12: A('s_waitcnt vmcnt(0)')
        for e in range(8):
            for i in range(i0, i0 + 4):
                A(f'v_dot2_f32_bf16 v{32+i}, v{128+8*i+e}, v{16+e}, {"v%d" % (32+i) if e else 0}')
    for i in range(8): A(f'v_add_f32_dpp v{32+i}, v{32+i}, v{32+i} row_half_mirror row_mask:0xf bank_mask:0x5')
    for i in range(8): A(f'v_add_f32_dpp v{32+i}, v{40+i}, v{40+i} row_half_mirror row_mask:0xf bank_mask:0xa')
    A('s_mov_b32 vcc_lo, 0xcccccccc\ns_mov_b32 vcc_hi, 0xcccccccc')
    for i in range(4): A(f'v_cndmask_b32 v{40+i}, v{36+i}, v{32+i}, vcc\nv_cndmask_b32 v{32+i}, v{32+i}, v{36+i}, vcc')
    for i in range(4): A(f'v_add_f32_dpp v{32+i}, v{40+i}, v{32+i} quad_perm:[2,3,0,1] {FULL}')
    A('s_mov_b32 vcc_lo, 0xaaaaaaaa\ns_mov_b32 vcc_hi, 0xaaaaaaaa')
    for i in range(2): A(f'v_cndmask_b32 v{40+i}, v{34+i}, v{32+i}, vcc\nv_cndmask_b32 v{32+i}, v{32+i}, v{34+i}, vcc')
    for i in range(2): A(f'v_add_f32_dpp v{32+i}, v{40+i}, v{32+i} quad_perm:[1,0,3,2] {FULL}')
    r2 = 'v_cvt_pk_bf16_f32 v34, v32, v33\nv_lshlrev_b32 v32, 16, v34\nv_and_b32 v33, 0xffff0000, v34'
    A(f'{r2}\nv_mul_f32 v32, {SCALE:#x}, v32\nv_mul_f32 v33, {SCALE:#x}, v33\n{r2}       ; v32, v33 = two scores per lane')
    A('v_max_f32 v34, v32, v33')
    wred('v_max_f32', 34, 36)
    A(f'''v_sub_f32 v35, v32, v34
v_sub_f32 v36, v33, v34
v_mul_f32 v35, {LOG2E:#x}, v35
v_mul_f32 v36, {LOG2E:#x}, v36
v_exp_f32 v35, v35
v_exp_f32 v36, v36
v_add_f32 v35, v35, v36''')
    wred('v_add_f32', 35, 36)
    A(f'''s_lshl_b32 s34, s29, 8
s_add_u32 s34, s34, {WS_X}
v_lshrrev_b32 v10, 2, v13
v_add_u32 v10, s34, v10
global_load_dword v9, v10, s[26:27] sc1
v_min_u32 v34, -2, v34
v_min_u32 v35, -2, v35
v_lshl_add_u32 v37, v26, 1, v24
ds_write_b64 v37, v[34:35]
s_cmp_lg_u32 s28, 0
s_cbranch_scc1 L_mlwait''')
    ldsspin('ds_read_b128 v[40:43], v24\nds_read_b128 v[44:47], v24 offset:16',
            'v_max3_u32 v37, v40, v41, v42\nv_max3_u32 v37, v37, v43, v44\nv_max3_u32 v37, v37, v45, v46\nv_max_u32 v37, v37, v47\nv_cmp_eq_u32 vcc, -1, v37')
    A(f'''s_lshl_b32 s35, s31, 8
s_add_u32 s35, s35, {WS_ML}
v_max3_f32 v48, v40, v42, v44
v_max_f32 v48, v48, v46''')
    for w in range(4): A(f'v_sub_f32 v{40+2*w}, v{40+2*w}, v48')
    for w in range(4): A(f'v_mul_f32 v{40+2*w}, {LOG2E:#x}, v{40+2*w}')
    for w in range(4): A(f'v_exp_f32 v{40+2*w}, v{40+2*w}')
    A('v_mov_b32 v49, s3\nv_mov_b32 v51, s3\nv_mul_f32 v50, v40, v41')
    for w in range(1, 4): A(f'v_fmac_f32 v50, v{40+2*w}, v{41+2*w}')
    A(f'''s_lshl4_add_u32 s34, s32, s35
v_mov_b32 v37, s34
s_mov_b64 exec, 1
global_store_dwordx4 v37, v[48:51], s[26:27] sc1
s_mov_b64 exec, -1
s_mov_b32 s62, {SPIN}
L_ml:
s_sleep 2
s_load_dwordx16 s[64:79], s[26:27], s35 glc
s_load_dwordx16 s[80:95], s[26:27], s35 offset:64 glc
s_waitcnt lgkmcnt(0)
s_and_b32 s34, s65, s3
s_or_b32 s47, s65, s3''')
    for i in range(1, 16): A(f's_and_b32 s34, s34, s{65+2*i}\ns_or_b32 s47, s47, s{65+2*i}')
    A('s_cmp_eq_u32 s34, s47\ns_cbranch_scc1 L_mlgot\ns_sub_u32 s62, s62, 1\ns_cbranch_scc0 L_ml\nL_mlgot:\nv_mov_b32 v34, s64')
    for c in range(1, 8): A(f'v_max_f32 v34, s{64+4*c}, v34')
    for c in range(8): A(f'v_sub_f32 v{40+c}, s{64+4*c}, v34')
    for c in range(8): A(f'v_mul_f32 v{40+c}, {LOG2E:#x}, v{40+c}')
    for c in range(8): A(f'v_exp_f32 v{40+c}, v{40+c}')
    A('v_mul_f32 v35, s66, v40')
    for c in range(1, 8): A(f'v_fmac_f32 v35, s{66+4*c}, v{40+c}')
    A('''v_rcp_f32 v35, v35
v_min_u32 v34, -2, v34
v_min_u32 v35, -2, v35
ds_write_b64 v24, v[34:35] offset:32
s_branch L_mlok
L_mlwait:''')
    ldsspin('ds_read_b64 v[34:35], v24 offset:32', 'v_max_u32 v37, v34, v35\nv_cmp_eq_u32 vcc, -1, v37', 1)
    A(f'''L_mlok:
v_sub_f32 v32, v32, v34
v_sub_f32 v33, v33, v34
v_mul_f32 v32, {LOG2E:#x}, v32
v_mul_f32 v33, {LOG2E:#x}, v33
v_exp_f32 v32, v32
v_exp_f32 v33, v33
s_lshl_b32 s34, s28, 8
v_lshl_add_u32 v36, v0, 2, s34
v_mul_f32 v32, v32, v35
v_mul_f32 v33, v33, v35
v_cvt_pk_bf16_f32 v32, v32, v33
ds_write_b32 v36, v32 offset:{L_P}
s_getreg_b32 s34, hwreg(HW_REG_XCC_ID, 0, 4)
s_andn2_b32 s35, s3, 31
s_or_b32 s34, s34, s35
s_or_b32 s35, s34, 16
s_waitcnt vmcnt(0)
v_cmp_eq_u32 s[48:49], s34, v9
v_cmp_eq_u32 s[50:51], s35, v9
s_bcnt1_i32_b32 s48, s48
s_bcnt1_i32_b32 s50, s50
s_cmp_gt_u32 s50, s48
s_cselect_b32 s34, 0x2000, 0
v_mov_b32 v10, s34''')
    tagreg(8, 5, 8)
    A(f'''v_mov_b32 v11, 0xff
s_lshl_b32 s47, s28, 13
s_add_u32 s47, s47, {L_W}
v_lshrrev_b32 v14, 4, v0             ; lane >> 4
s_lshr_b32 s34, s30, 1
s_and_b32 s35, s30, 1
s_lshl4_add_u32 s30, s35, s34        ; r
s_waitcnt lgkmcnt(0)
s_cmp_ge_u32 s30, 16
s_cbranch_scc1 L_notw''')

    A(f'''; role W: wave w owns head 4g + w, columns 32r .. 32r + 31 of wo
s_lshl2_add_u32 s34, s29, s28
s_lshl_b32 s35, s34, 13
s_add_u32 s44, s26, s35
s_addc_u32 s45, s27, 0
v_lshl_add_u32 v6, v12, 12, v13
s_lshl_b32 s34, s34, 17
s_lshl_b32 s35, s30, 6
s_add_u32 s34, s34, s35
s_add_u32 s40, s12, s34
s_addc_u32 s41, s13, 0
s_mov_b32 s42, {127*1024+64}
s_mov_b32 s43, 0x20000
v_and_b32 v32, 1, v14
v_bfe_u32 v15, v0, 3, 1
v_lshl_add_u32 v15, v15, 2, v14
v_bfe_u32 v33, v0, 2, 1
v_lshl_add_u32 v15, v15, 1, v33
v_lshlrev_b32 v33, 1, v32
v_and_b32 v34, 3, v0
v_xor_b32 v33, v33, v34
v_lshlrev_b32 v33, 4, v33
v_lshl_add_u32 v15, v15, 10, v33
v_lshrrev_b32 v33, 2, v0
v_lshlrev_b32 v33, 6, v33
v_lshl_add_u32 v33, v34, 3, v33
v_lshl_add_u32 v33, v32, 5, v33
v_add_u32 v33, s47, v33
v_xor_b32 v34, 32, v33
v_add_u32 v37, v26, v13
v_add_u32 v37, {L_RED}, v37
s_and_b32 s34, s29, 4
s_add_u32 s34, s34, s29
s_lshl4_add_u32 s34, s34, s30
s_lshl_b32 s34, s34, 7
s_add_u32 s34, s34, {WS_B}
s_add_u32 s56, s26, 0x8000
s_addc_u32 s57, s27, 0
s_add_u32 s58, s26, 0x10000
s_addc_u32 s59, s27, 0
s_add_u32 s68, s26, 0x18000
s_addc_u32 s69, s27, 0
v_lshrrev_b32 v38, 2, v13
v_lshl_add_u32 v38, v12, 13, v38
v_add_u32 v38, s34, v38''')
    tagreg(9, 38, 8)
    tagmask(10, 38)
    A('s_and_b32 s60, s30, 1\ns_lshl_b32 s61, s60, 16\ns_lshl_b32 s60, s60, 7\nv_xor_b32 v6, s60, v6')
    A(f'''s_mul_i32 s34, s30, {88*128}
s_mul_i32 s35, s29, {176*1024}
s_add_u32 s34, s34, s35
v_lshl_add_u32 v35, v0, 7, s34
v_add_u32 v36, 0x2000, v35
v_min_u32 v35, {1376*1024-4}, v35
v_min_u32 v36, {1376*1024-4}, v36''')
    for n in range(8):
        if n == 0: A(BAR12)
        if n == 2: A(BAR3)
        A(f's_add_u32 m0, s47, {1024*n}\ns_xor_b32 s34, s61, {16384*n}')
        A('buffer_load_dwordx4 v15, s[40:43], s34 offen lds')
    def aload():
        for n in range(4): A(f'global_load_dwordx4 v[{96+4*n}:{99+4*n}], v6, s[44:45] offset:{1024*n} sc1')
    aload()
    for t in range(4):
        A(f's_waitcnt vmcnt({10-2*t})')
        for cb in range(2):
            for hf in range(2):
                r = 128 + 8 * t + 4 * cb + 2 * hf
                A(f'ds_read_b64_tr_b16 v[{r}:{r+1}], v{33+cb} offset:{1024*(2*t+hf)}')
    gather(aload, 4, 39, issued=True)
    A('v_cvt_pk_bf16_f32 v16, v16, v17\ns_waitcnt lgkmcnt(0)')
    mv = bcast(16, 64, 0xf)
    for o in mv[:6]: A(o)
    mv = mv[6:]
    for t in range(4):
        for cb in range(2):
            c = f'v[{40+4*cb}:{43+4*cb}]'
            A(f'v_mfma_f32_16x16x32_bf16 {c}, v[{64+4*t}:{67+4*t}], v[{128+8*t+4*cb}:{131+8*t+4*cb}], {c if t else 0}')
            for o in mv[:2]: A(o)
            mv = mv[2:]
    A(f'''; the wave that finds all four partials published sums them and stores the record
s_mov_b64 exec, 0xffff
ds_write2_b32 v37, v40, v44 offset0:0 offset1:64
ds_write_b32 v26, v11 offset:{L_SY+96}
s_mov_b64 exec, -1
ds_read_b128 v[20:23], v24 offset:96
ds_read_b128 v[16:19], v13 offset:{L_RED}
s_waitcnt lgkmcnt(1)
v_min3_u32 v20, v20, v21, v22
v_min_u32 v20, v20, v23
v_cmp_ne_u32 vcc, 0, v20
s_waitcnt lgkmcnt(0)
v_pk_add_f32 v[16:17], v[16:17], v[18:19]
s_mov_b64 exec, vcc
v_add_f32 v16, v16, v17
v_bfi_b32 v16, v10, v9, v16
global_store_dword v38, v16, s[26:27] sc1
global_store_dword v38, v16, s[56:57] sc1
global_store_dword v38, v16, s[58:59] sc1
global_store_dword v38, v16, s[68:69] sc1
global_load_dword v62, v35, s[20:21]
s_and_b32 exec_lo, exec_lo, 0xffffff
s_mov_b32 exec_hi, 0
global_load_dword v62, v36, s[20:21]''')
    finish()

    A(f'''L_notw:
s_and_b32 s34, s30, 15
s_lshl2_add_u32 s34, s34, s28
s_andn2_b32 s35, s34, 7
s_add_u32 s35, s35, s34
s_add_u32 s35, s35, 8
s_lshl_b32 s64, s29, 7
s_add_u32 s35, s35, s64
s_lshl_b32 s35, s35, 12
v_lshl_add_u32 v127, v0, 7, s35
s_lshr_b32 s34, s34, 1
s_lshl_b32 s34, s34, 4
v_lshrrev_b32 v61, 2, v0
v_add_u32 v61, s34, v61
v_mul_u32_u24 v61, 2752, v61
v_and_b32 v15, 3, v0
v_lshlrev_b32 v62, 7, v15
v_min_u32 v62, 348, v62
s_mul_i32 s34, s29, 352
v_add3_u32 v61, v61, v62, s34
s_bitcmp1_b32 s28, 0
s_cselect_b32 s64, s18, s16
s_cselect_b32 s65, s19, s17
s_mov_b32 s66, {512*2752}
s_mov_b32 s67, 0x20000
s_cmp_lt_u32 s30, 27
s_cbranch_scc1 L_rolef''')
    def bars():
        A(f'''{BAR12}
s_mov_b32 exec_hi, 0
global_load_dword v62, v127, s[12:13]
s_mov_b32 exec_hi, -1
{BAR3}
buffer_load_dword v62, v61, s[64:67], 0 offen''')

    A(f'''s_cmp_lt_u32 s30, 28
s_cbranch_scc1 L_norole
s_cmp_lg_u32 s28, 0
s_cbranch_scc1 L_norole
s_load_dword s48, s[22:23], 0 glc
s_lshl2_add_u32 s63, s29, s30
s_sub_u32 s63, s63, 28
s_lshr_b32 s34, s63, 1
s_xor_b32 s34, s34, s63
s_and_b32 s34, s34, 2
s_mul_i32 s34, s34, 3
s_xor_b32 s63, s63, s34
s_lshl_b32 s34, s63, 6
s_add_u32 s34, s34, {WS_C}
v_lshrrev_b32 v44, 2, v0
v_and_b32 v45, 12, v44
v_add_u32 v44, v44, v45
v_lshl_add_u32 v44, v44, 11, v10
v_lshl_add_u32 v44, v15, 4, v44
v_add_u32 v44, s34, v44''')
    for n in range(1, 6): A(f'v_add_u32 v{44+n}, {65536*n}, v44')
    A(f'''s_lshr_b32 s34, s63, 3
s_lshl_b32 s34, s34, 7
s_and_b32 s35, s63, 3
s_lshl_b32 s35, s35, 5
s_add_u32 s34, s34, s35
s_and_b32 s35, s63, 4
s_add_u32 s34, s34, s35
v_lshl_add_u32 v51, v15, 3, v14
v_add_lshl_u32 v51, v51, s34, 1
global_load_ushort v43, v51, s[4:5]
s_lshl_b32 s34, s34, 2
s_and_b32 s35, s29, 3
s_lshl_b32 s35, s35, 15
s_add_u32 s34, s34, s35
s_add_u32 s34, s34, {WS_B}
v_bfe_u32 v50, v0, 2, 3
v_and_b32 v52, 4, v50
v_add_u32 v50, v50, v52
v_lshl_add_u32 v50, v50, 11, v10
v_lshl_add_u32 v50, v15, 5, v50
v_add_u32 v50, s34, v50
v_mov_b32 v52, {WS_E}
v_mov_b32 v53, s3''')
    tagreg(9, 50, 8)
    A('v_mov_b32 v116, v8\nv_mov_b32 v117, 0\nv_mov_b32 v118, 0\nv_mov_b32 v119, 0')
    A('v_mov_b32 v36, v9\nv_mov_b32 v37, 0\nv_mov_b32 v38, 0\nv_mov_b32 v39, 0')
    bars()
    def cload():
        for n in range(6): A(('s_mov_b64 exec, 0xffffff\n' if n == 5 else '') + f'global_load_dwordx4 v[{96+4*n}:{99+4*n}], v{44+n}, s[26:27] sc1')
        A('s_mov_b64 exec, -1')
    cload()
    A(f'''; h = x + o @ wo for these columns
s_mov_b32 s62, {SPIN}
L_rb:
s_sleep 1
s_mov_b32 exec_hi, 0
global_load_dwordx4 v[36:39], v50, s[26:27] sc1
s_mov_b32 exec_hi, -1
s_sub_u32 s62, s62, 1
s_cbranch_scc1 L_rbok
s_waitcnt vmcnt(0)
v_xor_b32 v40, v36, v9
v_and_b32 v42, v11, v40
v_cmp_ne_u32 vcc, 0, v42
s_cbranch_vccnz L_rb
L_rbok:
s_cmp_eq_u32 s63, 0
s_cselect_b32 exec_lo, 1, 0
s_mov_b32 exec_hi, 0
global_store_dword v52, v53, s[26:27] sc1
s_mov_b64 exec, -1
v_permlane32_swap_b32 v40, v38
v_permlane32_swap_b32 v37, v39
v_permlane16_swap_b32 v40, v37
v_add_f32 v40, v40, v37
v_lshlrev_b32 v43, 16, v43
v_add_f32_dpp v40, v40, v40 row_ror:8 {FULL}
v_add_f32_dpp v40, v40, v40 row_ror:4 {FULL}
v_add_f32 v40, v40, v43''')
    rnd(40)
    gather(cload, 6, 42)
    A(f'''v_permlane16_swap_b32 v16, v17
v_add_f32 v16, v16, v17
v_add_f32_dpp v16, v16, v16 row_ror:8 {FULL}
v_add_f32_dpp v16, v16, v16 row_ror:4 {FULL}
s_mov_b32 exec_lo, 0x000f000f
v_add_f32 v16, v16, v40
s_mov_b32 exec_hi, 0x000f000f
v_cvt_pk_bf16_f32 v16, v16, v16
global_store_short v51, v16, s[22:23]''')
    finish(1)
    A('L_norole:')
    bars()
    finish()

    A(f'''.p2align 12
L_rolef:
s_mul_i32 s63, s29, 11
s_add_u32 s63, s63, s30
s_sub_u32 s63, s63, 16
s_cmp_ge_u32 s63, 86
s_cbranch_scc1 L_norole
s_mul_i32 s34, s28, {128*2752}
s_lshl_b32 s35, s63, 5
s_add_u32 s34, s34, s35
s_add_u32 s36, s16, s34
s_addc_u32 s37, s17, 0
s_mov_b32 s38, {127*2752+32}
s_mov_b32 s39, 0x20000
s_add_u32 s40, s18, s34
s_addc_u32 s41, s19, 0
s_mov_b32 s42, {127*2752+32}
s_mov_b32 s43, 0x20000
s_lshl_b32 s34, s63, 14
s_lshl_b32 s35, s28, 8
s_add_u32 s34, s34, s35
s_add_u32 s20, s20, s34
s_addc_u32 s21, s21, 0
s_add_u32 s4, s4, s35
s_addc_u32 s5, s5, 0
s_and_b32 s34, s29, 3
s_lshl_b32 s34, s34, 15
s_lshl1_add_u32 s34, s35, s34
s_add_u32 s34, s34, {WS_B+4096}
s_add_u32 s44, s26, s34
s_addc_u32 s45, s27, 0
v_lshl_add_u32 v6, v12, 14, v13
v_add_u32 v6, v6, v10
v_and_b32 v58, 12, v0
v_add_u32 v58, v58, v14
v_mul_u32_u24 v58, 80, v58
v_lshl_add_u32 v58, v15, 4, v58
v_bfe_u32 v15, v0, 3, 1
v_lshl_add_u32 v15, v15, 3, v12
v_bfe_u32 v33, v0, 2, 1
v_lshl_add_u32 v15, v15, 1, v33
v_bfe_u32 v33, v0, 4, 1
v_lshl_add_u32 v15, v15, 1, v33
v_bfe_u32 v33, v0, 1, 1
v_lshl_add_u32 v15, v15, 1, v33
v_mul_u32_u24 v15, 2752, v15
v_and_b32 v40, 1, v0
v_lshlrev_b32 v40, 4, v40
v_add_u32 v15, v15, v40
v_lshl_add_u32 v33, v0, 3, s47
v_lshrrev_b32 v36, 1, v13
v_lshl_add_u32 v36, v12, 2, v36
global_load_dword v32, v36, s[4:5]
v_and_b32 v38, 15, v0
v_lshlrev_b32 v34, 4, v38
v_lshl_add_u32 v34, v14, 10, v34
v_add_u32 v34, 0x1000, v34
v_add_u32 v35, 0x2000, v34
s_lshl_b32 s34, s28, 3
v_lshl_add_u32 v60, v12, 2, s34
s_add_u32 s34, s34, {L_OP}
v_mul_u32_u24 v57, 80, v38
v_add_u32 v57, s34, v57
v_lshl_add_u32 v57, v14, 2, v57
s_andn2_b32 s34, s63, 3
s_add_u32 s34, s34, s63
s_lshl2_add_u32 s34, s34, s28
s_lshl_b32 s34, s34, 9
s_add_u32 s34, s34, {WS_C}
v_lshl_add_u32 v59, v12, 13, v13
v_add_u32 v59, s34, v59
v_mov_b32 v44, 0x3f803f80
v_mov_b32 v63, {L_RED}
v_mov_b32 v46, {EPS:#x}
v_mov_b32 v41, 0xffff
v_lshlrev_b32 v40, v40, v41
v_bfe_u32 v41, v0, 1, 2
s_mov_b32 s60, 1
s_mov_b32 s61, 1''')
    for i in range(16): A(f'v_mov_b32 v{72+i}, v44')
    for w in range(4): A(f'v_cmp_eq_u32 vcc, {w}, v41\nv_cndmask_b32 v{48+w}, 0, v40, vcc')
    bars()
    for t in range(4):
        for m in range(2):
            A(f's_add_u32 m0, s47, {4096*m+1024*t}\ns_mov_b32 s34, {16*t*2752}')
            A(f'buffer_load_dwordx4 v15, s[{36+4*m}:{39+4*m}], s34 offen lds')
    def bload():
        for n in range(4): A(f'global_load_dwordx4 v[{96+4*n}:{99+4*n}], v6, s[44:45] offset:{2048*n-4096} sc1')
    for t in range(4):
        A(f's_waitcnt vmcnt({6-2*t})')
        if t == 3: bload()
        for m in range(2):
            for hf in range(2):
                r = 128 + 16 * m + 4 * t + 2 * hf
                A(f'ds_read_b64_tr_b16 v[{r}:{r+1}], v33 offset:{4096*m+1024*t+512*hf}')
        if t == 0: A('v_and_b32 v41, 0xffff0000, v32\nv_lshlrev_b32 v40, 16, v32')
    gather(bload, 4, 42, issued=True)
    A('''; h @ W with LN folded in: A rows 4-7 stay all ones and yield the column sums; moments of h on the side
v_pk_add_f32 v[16:17], v[16:17], v[40:41]
v_cvt_pk_bf16_f32 v18, v16, v17
v_dot2_f32_bf16 v16, v18, v44, 0
v_dot2_f32_bf16 v17, v18, v18, 0
s_waitcnt lgkmcnt(0)''')
    op = {f'm{i}': o for i, o in enumerate(bcast(18, 72, 0xd))}
    op.update({f'd{r}': f'v_add_f32_dpp v16, v16, v16 row_ror:{r} {FULL}' for r in (8, 4, 2, 1)})
    op.update({f'L{n}': f'global_load_dwordx4 v[{160+4*n}:{163+4*n}], v{34+(n>>1)}, s[20:21] offset:{4096*(n&1)-4096}' for n in range(4)})
    for n in range(8):
        t, m = n >> 1, n & 1
        c = f'v[{64+4*m}:{67+4*m}]'
        op[f'M{n}'] = f'v_mfma_f32_16x16x32_bf16 {c}, v[{72+4*t}:{75+4*t}], v[{128+16*m+4*t}:{131+16*m+4*t}], {c if t else 0}'
    op.update(S32='v_permlane32_swap_b32 v16, v17', S16='v_permlane16_swap_b32 v16, v17', A='v_add_f32 v16, v16, v17', mv='v_mov_b32 v17, v16',
              wr=f's_mov_b64 exec, s[60:61]\nds_write_b32 v60, v16 offset:{L_RED}\ns_mov_b64 exec, -1', bar='s_waitcnt lgkmcnt(0)\ns_barrier',
              rd='ds_read_b128 v[24:27], v63\nds_read_b128 v[28:31], v63 offset:16')
    for o in 'm0 m1 S32 m2 A m3 m4 d8 M0 m5 d4 m6 M1 d2 m7 m8 d1 mv M2 m9 S16 A wr M3 m10 m11 L0 L1 M4 m12 m13 m14 m15 M5 L2 L3 bar M6 rd M7'.split(): A(op[o])
    A(f'''s_mov_b32 exec_hi, 0
ds_write2_b32 v57, v64, v68 offset0:0 offset1:8
s_mov_b32 exec_hi, -1
s_waitcnt lgkmcnt(1)
v_pk_add_f32 v[24:25], v[24:25], v[26:27]
v_pk_add_f32 v[28:29], v[28:29], v[30:31]
v_pk_add_f32 v[24:25], v[24:25], v[28:29]
s_waitcnt lgkmcnt(0)
s_barrier
ds_read_b128 v[16:19], v58 offset:{L_OP}
v_mul_f32 v24, 0xbb000000, v24       ; -mean
v_fmamk_f32 v28, v25, 0x3b000000, v46
v_fma_f32 v28, -v24, v24, v28
v_max_f32 v28, v28, v46
v_rsq_f32 v29, v28
s_waitcnt lgkmcnt(0)
v_pk_add_f32 v[16:17], v[16:17], v[18:19]
v_fmac_f32 v16, v24, v17
v_rcp_f32 v28, v28
v_mul_f32 v29, {LOG2E ^ 0x80000000:#x}, v29
v_add_f32_dpp v16, v16, v16 quad_perm:[1,0,3,2] {FULL}
v_mul_f32 v17, v16, v29
v_exp_f32 v17, v17
v_mul_f32_dpp v18, v16, v16 quad_perm:[2,3,0,1] {FULL}
v_add_f32 v17, 1.0, v17
v_rcp_f32 v17, v17
v_mul_f32 v18, v18, v28
v_mul_f32 v16, v18, v17
v_cvt_pk_bf16_f32 v16, v16, v16
s_waitcnt vmcnt(0)
; act @ w_down on row-major weights: A holds act on a diagonal''')
    ops = [f'v_and_b32_dpp v{72+4*n+w}, v16, v{48+w} row_newbcast:{4*n} {FULL}' for n in range(4) for w in range(4)]
    for n in range(4):
        for o in ops[(4 * n + 2 if n else 0):4 * n + 6]: A(o)
        A(f'v_mfma_f32_16x16x32_bf16 v[64:67], v[{72+4*n}:{75+4*n}], v[{160+4*n}:{163+4*n}], {"v[64:67]" if n else 0}')
    A('v_bfi_b32 v64, v11, v8, v64\nglobal_store_dwordx4 v59, v[64:67], s[26:27] sc1')
    finish()

    A(f'''.p2align 12
L_vwave:
s_add_u32 s36, s8, s34
s_addc_u32 s37, s9, 0
s_lshl3_add_u32 s35, s31, s32
s_lshl_b32 s35, s35, 10
s_add_u32 s44, s26, s35
s_addc_u32 s45, s27, 0
v_mov_b32 v56, {L_SY}
s_lshr_b32 s56, s2, 6
s_lshl_b32 s56, s56, 7
s_and_b32 s35, s2, 63
s_add_u32 s56, s56, s35
s_lshl_b32 s56, s56, 7
s_add_u32 s56, s56, {WS_PR}
s_cmp_lg_u32 s28, 5
s_cbranch_scc1 L_nowarm
s_load_dword s54, s[26:27], s56 glc
s_load_dword s55, s[26:27], s56 offset:0x2000 glc
L_nowarm:
v_and_b32 v28, 1, v0
v_cmp_eq_u32 vcc, 1, v28
v_mov_b32 v29, 0x0c0c0100
v_mov_b32 v30, 0x01000c0c
v_cndmask_b32 v29, v29, v30, vcc
v_mov_b32 v30, 0x0c0c0302
v_mov_b32 v31, 0x03020c0c
v_cndmask_b32 v30, v30, v31, vcc
v_mov_b32 v31, 0x0c0c0c0c
v_bfe_u32 v28, v0, 1, 2''')
    for w in range(4): A(f'v_cmp_eq_u32 vcc, {w}, v28\nv_cndmask_b32 v{40+w}, v31, v29, vcc\nv_cndmask_b32 v{44+w}, v31, v30, vcc')
    A(f'''s_lshl_b32 s34, s63, 10
s_add_u32 s34, s34, {L_OP}
v_lshrrev_b32 v12, 5, v0
v_lshl_add_u32 v12, v12, 9, s34
v_lshl_add_u32 v12, v4, 1, v12
v_bfe_u32 v13, v0, 4, 1
v_lshl_add_u32 v12, v13, 4, v12
v_lshlrev_b32 v14, 3, v0
s_lshl_b32 s34, s32, 5
s_add_u32 s34, s34, s63
s_lshl_b32 s34, s34, 2
v_lshl_add_u32 v6, v3, 4, s34
v_mov_b32 v57, 1
s_waitcnt vmcnt(4)''')
    layernorm(24, 28)
    A(f'ds_write_b128 v5, v[24:27] offset:{L_H}\ns_waitcnt lgkmcnt(0)\nds_read_b32 v48, v6 offset:{L_H}\ns_add_u32 s3, s3, {EPOCH_STEP:#x}')
    tagreg(8, 14, 4)
    A('s_waitcnt lgkmcnt(0)')
    for n in range(2): afrag(24 + 4 * n, 48, n)
    A('s_waitcnt vmcnt(0)')
    for n in range(2):
        for hf in range(2):
            c = f'v[{16+4*hf}:{19+4*hf}]'
            A(f'v_mfma_f32_16x16x32_bf16 {c}, v[{24+4*n}:{27+4*n}], v[{64+8*n+4*hf}:{67+8*n+4*hf}], {c if n else 0}')
    part_write = '''s_mov_b32 exec_lo, 0x00ff00ff
s_mov_b32 exec_hi, 0xff00ff00
ds_write_b128 v12, v[16:19]
ds_write_b128 v12, v[20:23] offset:256'''
    A(f'''{part_write}
s_mov_b64 exec, 1
s_waitcnt lgkmcnt(0)
ds_add_u32 v56, v57 offset:48
s_mov_b64 exec, -1
s_cmp_lg_u32 s28, 4
s_cbranch_scc1 L_vstream''')
    ldsspin('ds_read_b32 v15, v56 offset:48', 'v_cmp_ne_u32 vcc, 4, v15')
    for n in range(4): A(f'ds_read_b128 v[{16+4*n}:{19+4*n}], v5 offset:{L_OP+1024*n}')
    A('s_waitcnt lgkmcnt(0)')
    for i in (0, 2, 8, 10): A(f'v_pk_add_f32 v[{16+i}:{17+i}], v[{16+i}:{17+i}], v[{20+i}:{21+i}]')
    for i in (0, 2): A(f'v_pk_add_f32 v[{16+i}:{17+i}], v[{16+i}:{17+i}], v[{24+i}:{25+i}]')
    A(f'''v_permlane32_swap_b32 v16, v18
v_permlane32_swap_b32 v17, v19
v_pk_add_f32 v[16:17], v[16:17], v[18:19]
v_and_or_b32 v16, v16, -16, v8
v_and_or_b32 v17, v17, -16, v8
global_store_dwordx2 v14, v[16:17], s[44:45]
L_vstream:
s_setprio 0
s_getreg_b32 s34, hwreg(HW_REG_XCC_ID, 0, 4)
s_andn2_b32 s46, s3, 31
s_or_b32 s46, s46, s34
s_lshl_b32 s47, s29, 8
s_add_u32 s47, s47, {WS_X}
s_cmp_lg_u32 s28, 5
s_cbranch_scc1 L_noprobe
s_mov_b32 s54, -1
s_mov_b32 s55, -1
s_waitcnt lgkmcnt(0)''')
    for i in range(4):
        A(f's_memtime s[50:51]\ns_load_dword s35, s[26:27], s56 offset:{0x2000 * (i & 1)} glc\ns_waitcnt lgkmcnt(0)\ns_memtime s[52:53]\ns_waitcnt lgkmcnt(0)\ns_sub_u32 s35, s52, s50\ns_min_u32 s{54 + (i & 1)}, s{54 + (i & 1)}, s35')
    A(f'''s_cmp_lt_u32 s55, s54
s_cselect_b32 s35, 16, 0
s_or_b32 s34, s46, s35
v_mov_b32 v31, s34
s_lshl2_add_u32 s34, s30, s47
v_mov_b32 v30, s34
s_mov_b64 exec, 1
global_store_dword v30, v31, s[26:27]
s_mov_b64 exec, -1
L_noprobe:
s_lshl_b32 s34, s63, 2
v_mov_b32 v28, s34
v_and_b32 v30, 31, v0
v_lshl_add_u32 v30, v30, 2, s47''')
    ldsspin(f'ds_read_b32 v15, v28 offset:{L_SY+64}', 'v_cmp_eq_u32 vcc, 0, v15', 1)
    stream({XPOS: 'global_load_dword v29, v30, s[26:27] sc1',
            XPOS + THR: '''v_and_b32 v29, -17, v29
v_cmp_ne_u32 s[48:49], s46, v29
s_cmp_eq_u64 s[48:49], 0
s_cselect_b64 s[50:51], -1, 0
s_cselect_b64 s[52:53], 0, -1
s_cbranch_scc0 L_requeue
L_requeued:'''}, XPOS)
    cold.append(lambda: A('''L_requeue:
s_cmp_lg_u32 s28, 4
s_cbranch_scc1 L_requeued
global_store_dwordx2 v14, v[16:17], s[44:45] sc1
s_waitcnt vmcnt(0)
s_branch L_requeued'''))
    A('v_mov_b32 v11, 0xff')
    tagreg(8, 14, 8)
    tagmask(10, 14)
    A(f'''s_lshl_b32 s34, s63, 8
v_lshl_add_u32 v6, v3, 5, s34
s_barrier
ds_read_b128 v[48:51], v6 offset:{L_P}
ds_read_b128 v[52:55], v6 offset:{L_P+16}
s_waitcnt lgkmcnt(0)''')
    for i in range(16): afrag(64 + 4 * i, 48 + i // 2, i & 1)
    for i in range(16):
        for hf in range(2):
            if (i, hf) == (12, 0): A('s_setprio 3')
            if i >= 12: A(f's_waitcnt vmcnt({31-2*i-hf})')
            if (i, hf) == (12, 0): A('s_barrier')
            c = f'v[{16+4*hf}:{19+4*hf}]'
            A(f'v_mfma_f32_16x16x32_bf16 {c}, v[{64+4*i}:{67+4*i}], v[{128+8*i+4*hf}:{131+8*i+4*hf}], {c if i else 0}')
    A(f'''; the wave that finds all four partials published sums them and stores the record
{part_write}
ds_write_b32 v28, v11 offset:{L_SY+80}
s_mov_b64 exec, -1
ds_read_b128 v[32:35], v56 offset:80''')
    for n in range(4): A(f'ds_read_b128 v[{64+4*n}:{67+4*n}], v5 offset:{L_OP+1024*n}')
    A('''s_waitcnt lgkmcnt(4)
v_min3_u32 v32, v32, v33, v34
v_min_u32 v32, v32, v35
v_cmp_ne_u32 vcc, 0, v32
s_waitcnt lgkmcnt(2)
v_pk_add_f32 v[64:65], v[64:65], v[68:69]
v_pk_add_f32 v[66:67], v[66:67], v[70:71]
s_and_b64 s[50:51], s[50:51], vcc
s_and_b64 s[52:53], s[52:53], vcc
s_waitcnt lgkmcnt(0)
v_pk_add_f32 v[72:73], v[72:73], v[76:77]
v_pk_add_f32 v[74:75], v[74:75], v[78:79]
v_pk_add_f32 v[64:65], v[64:65], v[72:73]
v_pk_add_f32 v[66:67], v[66:67], v[74:75]
v_permlane32_swap_b32 v64, v66
v_permlane32_swap_b32 v65, v67
v_pk_add_f32 v[64:65], v[64:65], v[66:67]
v_bfi_b32 v64, v10, v8, v64
s_mov_b64 exec, s[50:51]
global_store_dwordx2 v14, v[64:65], s[44:45]
s_mov_b64 exec, s[52:53]
global_store_dwordx2 v14, v[64:65], s[44:45] sc1
s_barrier''')
    if span == 2: A('s_cmp_lg_u32 s30, 31\ns_cbranch_scc1 L_exit\ns_cmp_lg_u32 s28, 5\ns_cbranch_scc1 L_exit\ns_mov_b32 s28, 1')
    finish(2)
    A(f'L_exit:\ns_endpgm\nL_code_end:\n.fill (L_pc+16384-L_code_end)/4, 4, 0xbf810000')
    A.raw(f'''.section .rodata,"a"
.p2align 6
.amdhsa_kernel {NAME}_kernel
  .amdhsa_next_free_vgpr 256
  .amdhsa_next_free_sgpr 102
  .amdhsa_accum_offset 256
  .amdhsa_group_segment_fixed_size 0
  .amdhsa_kernarg_size 96
  .amdhsa_user_sgpr_count 2
  .amdhsa_user_sgpr_kernarg_segment_ptr 1
  .amdhsa_system_sgpr_workgroup_id_x 1
  .amdhsa_float_denorm_mode_32 3
.end_amdhsa_kernel''')
    return A.text()

if __name__ == '__main__':
    out = sys.argv[1] if len(sys.argv) > 1 else f'cdna_kernels/{NAME}.s'
    open(out, 'w').write(gen(**eval('dict(' + (sys.argv[2] if len(sys.argv) > 2 else '') + ')')))
```

```python
import sys
from asmlib import Asm

NAME = 'sequential_preLN__sliding_block_cached__swiglu_ffn__decode'
WS_QA, WS_B, WS_PR, WS_ML, WS_X, WS_E, WS_C, WS_ST = 0x0, 0x40000, 0x60000, 0x70000, 0x72000, 0x73000, 0x80000, 0x100000
EPOCH_STEP = 0x5bd1e3c7
L_P, L_OP, L_H, L_RED, L_SY, L_Q, L_W = 0x0, 0x400, 0x1400, 0x1800, 0x1a00, 0x1b00, 0x1c00
LDS_BYTES = L_W + 0x8000
SPIN = 0x40000
LOG2E, SCALE, EPS = 0x3fb8aa3b, 0x3db504f3, 0x3727c5ac
FULL = 'row_mask:0xf bank_mask:0xf'
THR, KPRE, QPOS, XPOS, GOW = 8, 2, 24, 16, 8

BAR12 = 's_barrier\ns_barrier'
BAR3 = 's_barrier'

DOC = '''\
;   found nearer. Either copy holds the same data.'''

def gen(span=0):
    slot = {'x': 0, 'V': 2, 'q': 3, 'o': 4, 'g': 6, 'u': 7, 'd': 8, '.': 15}
    nib = sum(slot[c] << (4 * i) for i, c in enumerate('x.qqVVVVguood...'))
    A = Asm()
    cold = []
    uid = [0]
    def lab(s):
        uid[0] += 1
        return f'L_{s}_{uid[0]}'
    def finish(last=0):
        if span and last == span:
            A(f'''s_memrealtime s[96:97]
s_waitcnt lgkmcnt(0)
v_writelane_b32 v7, s96, 15
v_writelane_b32 v7, s98, 0
s_mov_b64 exec, 0xffff
s_lshl3_add_u32 s34, s2, s28
s_lshl_b32 s34, s34, 6
s_add_u32 s34, s34, {WS_ST}
v_lshl_add_u32 v1, v0, 2, s34
global_store_dword v1, v7, s[26:27]''')
        A('s_endpgm')
        for f in cold: f()
        cold.clear()
    def wred(op, v, t):
        for r in (8, 4, 2, 1): A(f'{op}_dpp v{v}, v{v}, v{v} row_ror:{r} {FULL}')
        for sw in (16, 32): A(f'v_mov_b32 v{t}, v{v}\nv_permlane{sw}_swap_b32 v{v}, v{t}\n{op} v{v}, v{v}, v{t}')
    def rnd(v):
        A(f'v_cvt_pk_bf16_f32 v{v}, v{v}, v{v}\nv_lshlrev_b32 v{v}, 16, v{v}')
    def layernorm(x, u):
        s, t, mb, dl = u + 8, u + 9, u + 10, u + 11
        for i in range(4): A(f'v_lshlrev_b32 v{u+2*i}, 16, v{x+i}\nv_and_b32 v{u+2*i+1}, 0xffff0000, v{x+i}')
        A(f'v_add_f32 v{s}, v{u}, v{u+1}\nv_add_f32 v{t}, v{u+2}, v{u+3}\nv_add_f32 v{mb}, v{u+4}, v{u+5}\nv_add_f32 v{dl}, v{u+6}, v{u+7}')
        A(f'v_add_f32 v{s}, v{s}, v{t}\nv_add_f32 v{mb}, v{mb}, v{dl}\nv_add_f32 v{s}, v{s}, v{mb}')
        wred('v_add_f32', s, t)
        A(f'v_mul_f32 v{dl}, 0x3b000000, v{s}')
        A(f'v_cvt_pk_bf16_f32 v{mb}, v{dl}, v{dl}\nv_lshlrev_b32 v{mb}, 16, v{mb}')
        for i in range(8): A(f'v_sub_f32 v{u+i}, v{u+i}, v{mb}')
        A(f'v_sub_f32 v{dl}, v{dl}, v{mb}')
        A(f'v_mul_f32 v{s}, v{u}, v{u}\nv_mul_f32 v{t}, v{u+1}, v{u+1}')
        for i in range(2, 8, 2): A(f'v_fmac_f32 v{s}, v{u+i}, v{u+i}\nv_fmac_f32 v{t}, v{u+i+1}, v{u+i+1}')
        A(f'v_add_f32 v{s}, v{s}, v{t}')
        fill = [f'v_cvt_pk_bf16_f32 v{x+i}, v{u+2*i}, v{u+2*i+1}' for i in range(4)]
        for i in range(4): fill += [f'v_lshlrev_b32 v{u+2*i}, 16, v{x+i}', f'v_and_b32 v{u+2*i+1}, 0xffff0000, v{x+i}']
        fill.append(f'v_mul_f32 v{dl}, v{dl}, v{dl}')
        for r in (8, 4, 2, 1):
            A(fill.pop(0)); A(fill.pop(0))
            A(f'v_add_f32_dpp v{s}, v{s}, v{s} row_ror:{r} {FULL}')
        for sw in (16, 32):
            A(f'v_mov_b32 v{t}, v{s}'); A(fill.pop(0)); A(fill.pop(0))
            A(f'v_permlane{sw}_swap_b32 v{s}, v{t}\nv_add_f32 v{s}, v{s}, v{t}')
        A(fill.pop(0))
        A(f'v_mul_f32 v{s}, 0x3b000000, v{s}\nv_sub_f32 v{s}, v{s}, v{dl}\nv_max_f32 v{s}, 0, v{s}')
        rnd(s)
        A(f'v_add_f32 v{s}, {EPS:#x}, v{s}'); rnd(s)
        A(f'v_sqrt_f32 v{s}, v{s}'); rnd(s)
        A(f'v_rcp_f32 v{s}, v{s}')
        for i in range(8): A(f'v_mul_f32 v{u+i}, v{u+i}, v{s}')
        for i in range(4): A(f'v_cvt_pk_bf16_f32 v{x+i}, v{u+2*i}, v{u+2*i+1}')
    def afrag(dst, src, par):
        for w in range(4): A(f'v_perm_b32 v{dst+w}, v{src}, v{src}, v{40+4*par+w}')
    def bcast(src, dst, bank):
        return [f'v_mov_b32_dpp v{dst+i}, v{src} row_newbcast:{i} row_mask:0xf bank_mask:{bank:#x}' for i in range(16)]
    def tagreg(dst, addr, bits):
        A(f'v_lshrrev_b32 v{dst}, 1, v{addr}\nv_xor_b32 v{dst}, v{dst}, v{addr}\nv_bfe_u32 v{dst}, v{dst}, 4, 1\nv_lshlrev_b32 v{dst}, {bits-1}, v{dst}\nv_xor_b32 v{dst}, s3, v{dst}')
        if bits == 4: A(f'v_xor_b32 v{dst}, 4, v{dst}')
        A(f'v_and_b32 v{dst}, {(1 << bits) - 1}, v{dst}')
    def tagmask(dst, addr):
        A(f'v_and_b32 v{dst}, 15, v{addr}\nv_cmp_eq_u32 vcc, 0, v{dst}\nv_cndmask_b32 v{dst}, 0, v11, vcc')
    def gather(load, n, t, issued=False):
        x, y, T, d = 96, 120, 8, 16
        L, Lc, Lo = lab('again'), lab('chk'), lab('ok')
        A(f'; repeat the round until word 0 of every granule carries the tag, then sum the partials\ns_mov_b32 s62, {SPIN}')
        if issued: A(f's_branch {Lc}')
        A(f'{L}:')
        load()
        A(f's_sub_u32 s62, s62, 1\ns_cbranch_scc1 {Lo}\n{Lc}:')
        for i in range(n):
            if i % 2 == 0: A(f's_waitcnt vmcnt({n-2-i})')
            A(f'v_xor_b32 v{y+i}, v{x+4*i}, v{T}')
            if i % 2 == 1:
                dd = d + 2 * (i - 1)
                if i == 1: A(f'v_or_b32 v{t}, v{y}, v{y+1}')
                elif i < n - 1: A(f'v_or3_b32 v{t}, v{t}, v{y+i-1}, v{y+i}')
                else: A(f'v_or_b32 v{t}, v{t}, v{y+i-1}\nv_bitop3_b32 v{t}, v{t}, v{y+i}, v11 bitop3:0xa8\nv_cmp_ne_u32 vcc, 0, v{t}')
                A(f'v_pk_add_f32 v[{dd+2}:{dd+3}], v[{x+4*i-2}:{x+4*i-1}], v[{x+4*i+2}:{x+4*i+3}]')
                if i == n - 1: A(f's_cbranch_vccnz {L}\n{Lo}:')
                A(f'v_add_f32 v{dd}, v{y+i-1}, v{y+i}\nv_add_f32 v{dd+1}, v{x+4*i-3}, v{x+4*i+1}')
                if i > 1:
                    for r in (2, 0): A(f'v_pk_add_f32 v[{d+r}:{d+r+1}], v[{d+r}:{d+r+1}], v[{dd+r}:{dd+r+1}]')
        A(f'v_permlane32_swap_b32 v{d}, v{d+2}\nv_permlane32_swap_b32 v{d+1}, v{d+3}')
        A(f'v_pk_add_f32 v[{d}:{d+1}], v[{d}:{d+1}], v[{d+2}:{d+3}]')
    def ldsspin(reads, test, slp=0):
        L, Ld = lab('spin'), lab('spun')
        A(f's_mov_b32 s62, {SPIN}\n{L}:')
        if slp: A(f's_sleep {slp}')
        A(f'{reads}\ns_waitcnt lgkmcnt(0)\n{test}\ns_cbranch_vccz {Ld}\ns_sub_u32 s62, s62, 1\ns_cbranch_scc0 {L}\n{Ld}:')
    def stream(hooks, extra_at):
        A(f'; 16 tiles of 8 keys x 256 B, at most {THR} loads in flight per wave')
        for i in range(16):
            if i: A('s_addk_i32 s33, 0x100\ns_bitset0_b32 s33, 12')
            if 2 * i >= THR:
                A(f's_waitcnt vmcnt({THR - 2 + (1 if 2 * i - (THR - 2) < extra_at <= 2 * i else 0)})')
            for hf in range(2):
                A(f'buffer_load_dwordx4 v[{128+8*i+4*hf}:{131+8*i+4*hf}], v2, s[36:39], s33 offen offset:{128*hf} nt')
                if 2 * i + hf + 1 in hooks: A(hooks[2 * i + hf + 1])

    for ln in open('cdna_kernels/' + NAME + '.s.ref').read().split('\n'):
        if ln.startswith('; @launch'): A.raw(f'; @launch grid=(256,1,1) block=(512,1,1) lds={LDS_BYTES}'); break
        A.raw(ln)
    A.raw(DOC)
    A.raw(f'.amdgcn_target "amdgcn-amd-amdhsa--gfx950"\n.text\n.globl {NAME}_kernel\n.p2align 12\n.p2align 8\n.type {NAME}_kernel,@function\n{NAME}_kernel:')

    if span: A('s_memrealtime s[98:99]')
    A(f'''s_load_dwordx16 s[4:19], s[0:1], 0
s_load_dwordx8 s[20:27], s[0:1], 64
s_getpc_b64 s[40:41]
L_pc:
v_lshrrev_b32 v1, 6, v0
s_lshr_b32 s30, s2, 3                ; k
v_readfirstlane_b32 s28, v1          ; wave
v_and_b32 v0, 63, v0                 ; lane
s_cmp_ge_u32 s2, 256
s_cbranch_scc1 L_exit
s_lshl3_add_u32 s43, s30, s28
s_lshl_b32 s43, s43, 6
v_mov_b32 v1, s43
global_load_dword v1, v1, s[40:41]
s_and_b32 s29, s2, 7                 ; g
s_and_b32 s31, s30, 3
s_lshl2_add_u32 s31, s29, s31        ; head
s_lshr_b32 s32, s30, 2
v_lshrrev_b32 v3, 3, v0              ; lane >> 3
v_and_b32 v4, 7, v0
v_lshlrev_b32 v4, 4, v4              ; (lane & 7) * 16
v_lshl_add_u32 v2, v3, 12, v4
v_lshlrev_b32 v5, 4, v0              ; lane * 16
s_and_b32 s63, s28, 3
s_lshl2_add_u32 s33, s31, s32
s_add_u32 s33, s33, s29
s_and_b32 s33, s33, 15
s_lshl_b32 s33, s33, 8
s_lshl_b32 s34, s31, 6
s_add_u32 s34, s34, s32
s_add_u32 s34, s34, 56
s_lshl2_add_u32 s34, s34, s63
s_lshl_b32 s34, s34, 15
s_mov_b32 s38, 0x8000
s_mov_b32 s39, 0x20000
s_cmp_lt_u32 s28, 4
s_cbranch_scc1 L_kwave
s_lshl_b32 s35, s32, 5
s_add_u32 s35, s35, s63
s_lshl_b32 s35, s35, 6
s_add_u32 s35, s35, s31
s_lshl_b32 s35, s35, 8
v_lshl_add_u32 v6, v3, 16, v4
v_add_u32 v12, 0x2000, v6
v_subrev_u32 v13, 12, v0
v_ashrrev_i32 v13, 31, v13
v_lshlrev_b32 v14, 2, v0
ds_write_b32 v14, v13 offset:{L_SY}
s_and_b32 s51, s32, 1
s_lshl3_add_u32 s51, s51, s28
s_cmp_lg_u32 s51, 4
s_cbranch_scc1 L_nosel
s_mov_b32 s48, {nib & 0xffffffff:#x}
s_mov_b32 s49, {nib >> 32:#x}
s_lshr_b32 s50, s30, 3
s_and_b32 s51, s30, 3
s_lshl2_add_u32 s50, s50, s51
s_lshl_b32 s50, s50, 2
s_lshr_b64 s[48:49], s[48:49], s50
s_and_b32 s48, s48, 15
s_lshl_b32 m0, s48, 1
s_cmp_eq_u32 s51, 3
s_cselect_b32 s50, 0x200000, 0
s_cmp_eq_u32 s48, 2
s_cselect_b32 s50, s34, s50
s_cmp_eq_u32 s48, 15
L_nosel:
s_waitcnt lgkmcnt(0)
s_cbranch_scc1 L_notouch
s_movrels_b64 s[48:49], s[4:5]
s_load_dword s51, s[48:49], s50
L_notouch:
s_setprio 3
global_load_dwordx4 v[24:27], v5, s[4:5]
s_load_dword s3, s[26:27], {WS_E:#x}
s_add_u32 s10, s10, s35
s_addc_u32 s11, s11, 0''')
    for n in range(2):
        for hf in range(2): A(f'global_load_dwordx4 v[{64+8*n+4*hf}:{67+8*n+4*hf}], v{(6, 12)[n]}, s[10:11] offset:{128*hf} nt')
    A('s_barrier\ns_branch L_vwave')

    A('''L_kwave:
s_setprio 2
s_waitcnt lgkmcnt(0)
s_add_u32 s36, s6, s34
s_addc_u32 s37, s7, 0''')
    qload = 'global_load_dwordx4 v[16:19], v6, s[44:45] sc1'
    stream({KPRE: 's_barrier', 12: f's_load_dword s3, s[26:27], {WS_E:#x}',
            8: '''s_lshl_b32 s34, s31, 6
s_add_u32 s34, s34, s28
s_lshl_b32 s34, s34, 7
s_add_u32 s44, s26, s34
s_addc_u32 s45, s27, 0
v_lshl_add_u32 v6, v3, 10, v4''',
            QPOS: qload + '   ; 32 columns of the 8 partial q records'}, QPOS)
    A(f'''v_lshrrev_b32 v12, 5, v0             ; lane >> 5
v_and_b32 v13, 31, v0
v_lshlrev_b32 v13, 4, v13            ; (lane & 31) * 16
s_and_b32 s34, s28, 1
s_lshl_b32 s34, s34, 7
s_and_b32 s35, s28, 2
s_lshl1_add_u32 s34, s35, s34
v_bfe_u32 v14, v0, 4, 1
v_lshl_add_u32 v14, v12, 2, v14
v_lshlrev_b32 v14, 1, v14
v_add3_u32 v14, v14, v4, s34
v_mov_b32 v24, {L_SY}
v_mov_b32 v25, 1
s_lshl_b32 s34, s28, 2
v_mov_b32 v26, s34
s_waitcnt lgkmcnt(0)
s_add_u32 s3, s3, {EPOCH_STEP:#x}''')
    tagreg(8, 5, 4)
    A(f's_waitcnt vmcnt({GOW})\nds_write_b32 v26, v25 offset:{L_SY+64}')
    A(f's_mov_b32 s62, {SPIN}\nL_qchk:')
    for i in range(4): A(f'v_xor_b32 v{20+i}, v{16+i}, v8')
    A('v_or3_b32 v15, v20, v21, v22\nv_bitop3_b32 v15, v15, v23, 15 bitop3:0xa8\nv_cmp_ne_u32 vcc, 0, v15\ns_cbranch_vccnz L_qagain\nL_qok:')
    cold.append(lambda: A(f'L_qagain:\n{qload}\ns_sub_u32 s62, s62, 1\ns_waitcnt vmcnt(0)\ns_cbranch_scc0 L_qchk\ns_branch L_qok'))
    A(f'''v_permlane32_swap_b32 v20, v22
v_permlane32_swap_b32 v21, v23
v_add_f32 v20, v20, v22
v_add_f32 v21, v21, v23
v_permlane16_swap_b32 v20, v21
v_add_f32 v20, v20, v21
v_add_f32_dpp v20, v20, v20 row_ror:8 {FULL}
v_cvt_pk_bf16_f32 v20, v20, v20
ds_write_b16 v14, v20 offset:{L_Q}
s_mov_b64 exec, 1
s_waitcnt lgkmcnt(0)
ds_add_u32 v24, v25 offset:52
s_mov_b64 exec, -1''')
    ldsspin('ds_read_b32 v15, v24 offset:52', 'v_cmp_ne_u32 vcc, 4, v15')
    A(f'ds_read_b128 v[16:19], v4 offset:{L_Q}\nds_read_b128 v[20:23], v4 offset:{L_Q+128}\ns_waitcnt lgkmcnt(0)')
    for i0 in range(0, 16, 4):
        if i0 == 12: A('s_waitcnt vmcnt(0)')
        for e in range(8):
            for i in range(i0, i0 + 4):
                A(f'v_dot2_f32_bf16 v{32+i}, v{128+8*i+e}, v{16+e}, {"v%d" % (32+i) if e else 0}')
    for i in range(8): A(f'v_add_f32_dpp v{32+i}, v{32+i}, v{32+i} row_half_mirror row_mask:0xf bank_mask:0x5')
    for i in range(8): A(f'v_add_f32_dpp v{32+i}, v{40+i}, v{40+i} row_half_mirror row_mask:0xf bank_mask:0xa')
    A('s_mov_b32 vcc_lo, 0xcccccccc\ns_mov_b32 vcc_hi, 0xcccccccc')
    for i in range(4): A(f'v_cndmask_b32 v{40+i}, v{36+i}, v{32+i}, vcc\nv_cndmask_b32 v{32+i}, v{32+i}, v{36+i}, vcc')
    for i in range(4): A(f'v_add_f32_dpp v{32+i}, v{40+i}, v{32+i} quad_perm:[2,3,0,1] {FULL}')
    A('s_mov_b32 vcc_lo, 0xaaaaaaaa\ns_mov_b32 vcc_hi, 0xaaaaaaaa')
    for i in range(2): A(f'v_cndmask_b32 v{40+i}, v{34+i}, v{32+i}, vcc\nv_cndmask_b32 v{32+i}, v{32+i}, v{34+i}, vcc')
    for i in range(2): A(f'v_add_f32_dpp v{32+i}, v{40+i}, v{32+i} quad_perm:[1,0,3,2] {FULL}')
    r2 = 'v_cvt_pk_bf16_f32 v34, v32, v33\nv_lshlrev_b32 v32, 16, v34\nv_and_b32 v33, 0xffff0000, v34'
    A(f'{r2}\nv_mul_f32 v32, {SCALE:#x}, v32\nv_mul_f32 v33, {SCALE:#x}, v33\n{r2}       ; v32, v33 = two scores per lane')
    A('v_max_f32 v34, v32, v33')
    wred('v_max_f32', 34, 36)
    A(f'''v_sub_f32 v35, v32, v34
v_sub_f32 v36, v33, v34
v_mul_f32 v35, {LOG2E:#x}, v35
v_mul_f32 v36, {LOG2E:#x}, v36
v_exp_f32 v35, v35
v_exp_f32 v36, v36
v_add_f32 v35, v35, v36''')
    wred('v_add_f32', 35, 36)
    A(f'''s_lshl_b32 s34, s29, 8
s_add_u32 s34, s34, {WS_X}
v_lshrrev_b32 v10, 2, v13
v_add_u32 v10, s34, v10
global_load_dword v9, v10, s[26:27] sc1
v_min_u32 v34, -2, v34
v_min_u32 v35, -2, v35
v_lshl_add_u32 v37, v26, 1, v24
ds_write_b64 v37, v[34:35]
s_cmp_lg_u32 s28, 0
s_cbranch_scc1 L_mlwait''')
    ldsspin('ds_read_b128 v[40:43], v24\nds_read_b128 v[44:47], v24 offset:16',
            'v_max3_u32 v37, v40, v41, v42\nv_max3_u32 v37, v37, v43, v44\nv_max3_u32 v37, v37, v45, v46\nv_max_u32 v37, v37, v47\nv_cmp_eq_u32 vcc, -1, v37')
    A(f'''s_lshl_b32 s35, s31, 8
s_add_u32 s35, s35, {WS_ML}
v_max3_f32 v48, v40, v42, v44
v_max_f32 v48, v48, v46''')
    for w in range(4): A(f'v_sub_f32 v{40+2*w}, v{40+2*w}, v48')
    for w in range(4): A(f'v_mul_f32 v{40+2*w}, {LOG2E:#x}, v{40+2*w}')
    for w in range(4): A(f'v_exp_f32 v{40+2*w}, v{40+2*w}')
    A('v_mov_b32 v49, s3\nv_mov_b32 v51, s3\nv_mul_f32 v50, v40, v41')
    for w in range(1, 4): A(f'v_fmac_f32 v50, v{40+2*w}, v{41+2*w}')
    A(f'''s_lshl4_add_u32 s34, s32, s35
v_mov_b32 v37, s34
s_mov_b64 exec, 1
global_store_dwordx4 v37, v[48:51], s[26:27] sc1
s_mov_b64 exec, -1
s_mov_b32 s62, {SPIN}
L_ml:
s_sleep 2
s_load_dwordx16 s[64:79], s[26:27], s35 glc
s_load_dwordx16 s[80:95], s[26:27], s35 offset:64 glc
s_waitcnt lgkmcnt(0)
s_and_b32 s34, s65, s3
s_or_b32 s47, s65, s3''')
    for i in range(1, 16): A(f's_and_b32 s34, s34, s{65+2*i}\ns_or_b32 s47, s47, s{65+2*i}')
    A('s_cmp_eq_u32 s34, s47\ns_cbranch_scc1 L_mlgot\ns_sub_u32 s62, s62, 1\ns_cbranch_scc0 L_ml\nL_mlgot:\nv_mov_b32 v34, s64')
    for c in range(1, 8): A(f'v_max_f32 v34, s{64+4*c}, v34')
    for c in range(8): A(f'v_sub_f32 v{40+c}, s{64+4*c}, v34')
    for c in range(8): A(f'v_mul_f32 v{40+c}, {LOG2E:#x}, v{40+c}')
    for c in range(8): A(f'v_exp_f32 v{40+c}, v{40+c}')
    A('v_mul_f32 v35, s66, v40')
    for c in range(1, 8): A(f'v_fmac_f32 v35, s{66+4*c}, v{40+c}')
    A('''v_rcp_f32 v35, v35
v_min_u32 v34, -2, v34
v_min_u32 v35, -2, v35
ds_write_b64 v24, v[34:35] offset:32
s_branch L_mlok
L_mlwait:''')
    ldsspin('ds_read_b64 v[34:35], v24 offset:32', 'v_max_u32 v37, v34, v35\nv_cmp_eq_u32 vcc, -1, v37', 1)
    A(f'''L_mlok:
v_sub_f32 v32, v32, v34
v_sub_f32 v33, v33, v34
v_mul_f32 v32, {LOG2E:#x}, v32
v_mul_f32 v33, {LOG2E:#x}, v33
v_exp_f32 v32, v32
v_exp_f32 v33, v33
s_lshl_b32 s34, s28, 8
v_lshl_add_u32 v36, v0, 2, s34
v_mul_f32 v32, v32, v35
v_mul_f32 v33, v33, v35
v_cvt_pk_bf16_f32 v32, v32, v33
ds_write_b32 v36, v32 offset:{L_P}
s_getreg_b32 s34, hwreg(HW_REG_XCC_ID, 0, 4)
s_andn2_b32 s35, s3, 31
s_or_b32 s34, s34, s35
s_or_b32 s35, s34, 16
s_waitcnt vmcnt(0)
v_cmp_eq_u32 s[48:49], s34, v9
v_cmp_eq_u32 s[50:51], s35, v9
s_bcnt1_i32_b32 s48, s48
s_bcnt1_i32_b32 s50, s50
s_cmp_gt_u32 s50, s48
s_cselect_b32 s34, 0x2000, 0
v_mov_b32 v10, s34''')
    tagreg(8, 5, 8)
    A(f'''v_mov_b32 v11, 0xff
s_lshl_b32 s47, s28, 13
s_add_u32 s47, s47, {L_W}
v_lshrrev_b32 v14, 4, v0             ; lane >> 4
s_lshr_b32 s34, s30, 1
s_and_b32 s35, s30, 1
s_lshl4_add_u32 s30, s35, s34        ; r
s_waitcnt lgkmcnt(0)
s_cmp_ge_u32 s30, 16
s_cbranch_scc1 L_notw''')

    A(f'''; role W: wave w owns head 4g + w, columns 32r .. 32r + 31 of wo
s_lshl2_add_u32 s34, s29, s28
s_lshl_b32 s35, s34, 13
s_add_u32 s44, s26, s35
s_addc_u32 s45, s27, 0
v_lshl_add_u32 v6, v12, 12, v13
s_lshl_b32 s34, s34, 17
s_lshl_b32 s35, s30, 6
s_add_u32 s34, s34, s35
s_add_u32 s40, s12, s34
s_addc_u32 s41, s13, 0
s_mov_b32 s42, {127*1024+64}
s_mov_b32 s43, 0x20000
v_and_b32 v32, 1, v14
v_bfe_u32 v15, v0, 3, 1
v_lshl_add_u32 v15, v15, 2, v14
v_bfe_u32 v33, v0, 2, 1
v_lshl_add_u32 v15, v15, 1, v33
v_lshlrev_b32 v33, 1, v32
v_and_b32 v34, 3, v0
v_xor_b32 v33, v33, v34
v_lshlrev_b32 v33, 4, v33
v_lshl_add_u32 v15, v15, 10, v33
v_lshrrev_b32 v33, 2, v0
v_lshlrev_b32 v33, 6, v33
v_lshl_add_u32 v33, v34, 3, v33
v_lshl_add_u32 v33, v32, 5, v33
v_add_u32 v33, s47, v33
v_xor_b32 v34, 32, v33
v_add_u32 v37, v26, v13
v_add_u32 v37, {L_RED}, v37
s_and_b32 s34, s29, 4
s_add_u32 s34, s34, s29
s_lshl4_add_u32 s34, s34, s30
s_lshl_b32 s34, s34, 7
s_add_u32 s34, s34, {WS_B}
s_add_u32 s56, s26, 0x8000
s_addc_u32 s57, s27, 0
s_add_u32 s58, s26, 0x10000
s_addc_u32 s59, s27, 0
s_add_u32 s68, s26, 0x18000
s_addc_u32 s69, s27, 0
v_lshrrev_b32 v38, 2, v13
v_lshl_add_u32 v38, v12, 13, v38
v_add_u32 v38, s34, v38''')
    tagreg(9, 38, 8)
    tagmask(10, 38)
    A('s_and_b32 s60, s30, 1\ns_lshl_b32 s61, s60, 16\ns_lshl_b32 s60, s60, 7\nv_xor_b32 v6, s60, v6')
    A(f'''s_mul_i32 s34, s30, {88*128}
s_mul_i32 s35, s29, {176*1024}
s_add_u32 s34, s34, s35
v_lshl_add_u32 v35, v0, 7, s34
v_add_u32 v36, 0x2000, v35
v_min_u32 v35, {1376*1024-4}, v35
v_min_u32 v36, {1376*1024-4}, v36''')
    for n in range(8):
        if n == 0: A(BAR12)
        if n == 2: A(BAR3)
        A(f's_add_u32 m0, s47, {1024*n}\ns_xor_b32 s34, s61, {16384*n}')
        A('buffer_load_dwordx4 v15, s[40:43], s34 offen lds')
    def aload():
        for n in range(4): A(f'global_load_dwordx4 v[{96+4*n}:{99+4*n}], v6, s[44:45] offset:{1024*n} sc1')
    aload()
    for t in range(4):
        A(f's_waitcnt vmcnt({10-2*t})')
        for cb in range(2):
            for hf in range(2):
                r = 128 + 8 * t + 4 * cb + 2 * hf
                A(f'ds_read_b64_tr_b16 v[{r}:{r+1}], v{33+cb} offset:{1024*(2*t+hf)}')
    gather(aload, 4, 39, issued=True)
    A('v_cvt_pk_bf16_f32 v16, v16, v17\ns_waitcnt lgkmcnt(0)')
    mv = bcast(16, 64, 0xf)
    for o in mv[:6]: A(o)
    mv = mv[6:]
    for t in range(4):
        for cb in range(2):
            c = f'v[{40+4*cb}:{43+4*cb}]'
            A(f'v_mfma_f32_16x16x32_bf16 {c}, v[{64+4*t}:{67+4*t}], v[{128+8*t+4*cb}:{131+8*t+4*cb}], {c if t else 0}')
            for o in mv[:2]: A(o)
            mv = mv[2:]
    A(f'''; the wave that finds all four partials published sums them and stores the record
s_mov_b64 exec, 0xffff
ds_write2_b32 v37, v40, v44 offset0:0 offset1:64
s_mov_b64 exec, 1
ds_add_u32 v24, v25 offset:96
s_mov_b64 exec, -1
ds_read_b32 v20, v24 offset:96
ds_read_b128 v[16:19], v13 offset:{L_RED}
s_waitcnt lgkmcnt(1)
v_cmp_eq_u32 vcc, 4, v20
s_waitcnt lgkmcnt(0)
v_pk_add_f32 v[16:17], v[16:17], v[18:19]
s_cbranch_vccz L_wend
v_add_f32 v16, v16, v17
v_bfi_b32 v16, v10, v9, v16
global_store_dword v38, v16, s[26:27] sc1
global_store_dword v38, v16, s[56:57] sc1
global_store_dword v38, v16, s[58:59] sc1
global_store_dword v38, v16, s[68:69] sc1
global_load_dword v62, v35, s[20:21]
s_mov_b64 exec, 0xffffff
global_load_dword v62, v36, s[20:21]
L_wend:''')
    finish()

    A(f'''L_notw:
s_and_b32 s34, s30, 15
s_lshl2_add_u32 s34, s34, s28
s_andn2_b32 s35, s34, 7
s_add_u32 s35, s35, s34
s_add_u32 s35, s35, 8
s_lshl_b32 s64, s29, 7
s_add_u32 s35, s35, s64
s_lshl_b32 s35, s35, 12
v_lshl_add_u32 v127, v0, 7, s35
s_lshr_b32 s34, s34, 1
s_lshl_b32 s34, s34, 4
v_lshrrev_b32 v61, 2, v0
v_add_u32 v61, s34, v61
v_mul_u32_u24 v61, 2752, v61
v_and_b32 v15, 3, v0
v_lshlrev_b32 v62, 7, v15
v_min_u32 v62, 348, v62
s_mul_i32 s34, s29, 352
v_add3_u32 v61, v61, v62, s34
s_bitcmp1_b32 s28, 0
s_cselect_b32 s64, s18, s16
s_cselect_b32 s65, s19, s17
s_mov_b32 s66, {512*2752}
s_mov_b32 s67, 0x20000
s_cmp_lt_u32 s30, 27
s_cbranch_scc1 L_rolef''')
    def bars():
        A(f'''{BAR12}
s_mov_b32 exec_hi, 0
global_load_dword v62, v127, s[12:13]
s_mov_b32 exec_hi, -1
{BAR3}
buffer_load_dword v62, v61, s[64:67], 0 offen''')

    A(f'''s_cmp_lt_u32 s30, 28
s_cbranch_scc1 L_norole
s_cmp_lg_u32 s28, 0
s_cbranch_scc1 L_norole
s_load_dword s48, s[22:23], 0 glc
s_lshl2_add_u32 s63, s29, s30
s_sub_u32 s63, s63, 28
s_lshr_b32 s34, s63, 1
s_xor_b32 s34, s34, s63
s_and_b32 s34, s34, 2
s_mul_i32 s34, s34, 3
s_xor_b32 s63, s63, s34
s_lshl_b32 s34, s63, 6
s_add_u32 s34, s34, {WS_C}
v_lshrrev_b32 v44, 2, v0
v_and_b32 v45, 12, v44
v_add_u32 v44, v44, v45
v_lshl_add_u32 v44, v44, 11, v10
v_lshl_add_u32 v44, v15, 4, v44
v_add_u32 v44, s34, v44''')
    for n in range(1, 6): A(f'v_add_u32 v{44+n}, {65536*n}, v44')
    A(f'''s_lshr_b32 s34, s63, 3
s_lshl_b32 s34, s34, 7
s_and_b32 s35, s63, 3
s_lshl_b32 s35, s35, 5
s_add_u32 s34, s34, s35
s_and_b32 s35, s63, 4
s_add_u32 s34, s34, s35
v_lshl_add_u32 v51, v15, 3, v14
v_add_lshl_u32 v51, v51, s34, 1
global_load_ushort v43, v51, s[4:5]
s_lshl_b32 s34, s34, 2
s_and_b32 s35, s29, 3
s_lshl_b32 s35, s35, 15
s_add_u32 s34, s34, s35
s_add_u32 s34, s34, {WS_B}
v_bfe_u32 v50, v0, 2, 3
v_and_b32 v52, 4, v50
v_add_u32 v50, v50, v52
v_lshl_add_u32 v50, v50, 11, v10
v_lshl_add_u32 v50, v15, 5, v50
v_add_u32 v50, s34, v50
v_mov_b32 v52, {WS_E}
v_mov_b32 v53, s3''')
    tagreg(9, 50, 8)
    A('v_mov_b32 v116, v8\nv_mov_b32 v117, 0\nv_mov_b32 v118, 0\nv_mov_b32 v119, 0')
    A('v_mov_b32 v36, v9\nv_mov_b32 v37, 0\nv_mov_b32 v38, 0\nv_mov_b32 v39, 0')
    def cload():
        for n in range(6): A(('s_mov_b64 exec, 0xffffff\n' if n == 5 else '') + f'global_load_dwordx4 v[{96+4*n}:{99+4*n}], v{44+n}, s[26:27] sc1')
        A('s_mov_b64 exec, -1')
    bars()
    cload()
    A(f'''; h = x + o @ wo for these columns
s_mov_b32 s62, {SPIN}
L_rb:
s_sleep 1
s_mov_b32 exec_hi, 0
global_load_dwordx4 v[36:39], v50, s[26:27] sc1
s_mov_b32 exec_hi, -1
s_sub_u32 s62, s62, 1
s_cbranch_scc1 L_rbok
s_waitcnt vmcnt(0)
v_xor_b32 v40, v36, v9
v_and_b32 v42, v11, v40
v_cmp_ne_u32 vcc, 0, v42
s_cbranch_vccnz L_rb
L_rbok:
s_cmp_lg_u32 s63, 0
s_cbranch_scc1 L_notag
s_mov_b64 exec, 1
global_store_dword v52, v53, s[26:27] sc1
s_mov_b64 exec, -1
L_notag:
v_permlane32_swap_b32 v40, v38
v_permlane32_swap_b32 v37, v39
v_permlane16_swap_b32 v40, v37
v_add_f32 v40, v40, v37
v_lshlrev_b32 v43, 16, v43
v_add_f32_dpp v40, v40, v40 row_ror:8 {FULL}
v_add_f32_dpp v40, v40, v40 row_ror:4 {FULL}
v_add_f32 v40, v40, v43''')
    rnd(40)
    gather(cload, 6, 42)
    A(f'''v_permlane16_swap_b32 v16, v17
v_add_f32 v16, v16, v17
v_add_f32_dpp v16, v16, v16 row_ror:8 {FULL}
v_add_f32_dpp v16, v16, v16 row_ror:4 {FULL}
s_mov_b32 exec_lo, 0x000f000f
v_add_f32 v16, v16, v40
s_mov_b32 exec_hi, 0x000f000f
v_cvt_pk_bf16_f32 v16, v16, v16
global_store_short v51, v16, s[22:23]''')
    finish(1)
    A('L_norole:')
    bars()
    finish()

    A(f'''.p2align 12
L_rolef:
s_mul_i32 s63, s29, 11
s_add_u32 s63, s63, s30
s_sub_u32 s63, s63, 16
s_cmp_ge_u32 s63, 86
s_cbranch_scc1 L_norole
s_mul_i32 s34, s28, {128*2752}
s_lshl_b32 s35, s63, 5
s_add_u32 s34, s34, s35
s_add_u32 s36, s16, s34
s_addc_u32 s37, s17, 0
s_mov_b32 s38, {127*2752+32}
s_mov_b32 s39, 0x20000
s_add_u32 s40, s18, s34
s_addc_u32 s41, s19, 0
s_mov_b32 s42, {127*2752+32}
s_mov_b32 s43, 0x20000
s_lshl_b32 s34, s63, 14
s_lshl_b32 s35, s28, 8
s_add_u32 s34, s34, s35
s_add_u32 s20, s20, s34
s_addc_u32 s21, s21, 0
s_add_u32 s4, s4, s35
s_addc_u32 s5, s5, 0
s_and_b32 s34, s29, 3
s_lshl_b32 s34, s34, 15
s_lshl1_add_u32 s34, s35, s34
s_add_u32 s34, s34, {WS_B+4096}
s_add_u32 s44, s26, s34
s_addc_u32 s45, s27, 0
v_lshl_add_u32 v6, v12, 14, v13
v_add_u32 v6, v6, v10
v_and_b32 v58, 12, v0
v_add_u32 v58, v58, v14
v_mul_u32_u24 v58, 80, v58
v_lshl_add_u32 v58, v15, 4, v58
v_bfe_u32 v15, v0, 3, 1
v_lshl_add_u32 v15, v15, 3, v12
v_bfe_u32 v33, v0, 2, 1
v_lshl_add_u32 v15, v15, 1, v33
v_bfe_u32 v33, v0, 4, 1
v_lshl_add_u32 v15, v15, 1, v33
v_bfe_u32 v33, v0, 1, 1
v_lshl_add_u32 v15, v15, 1, v33
v_mul_u32_u24 v15, 2752, v15
v_and_b32 v40, 1, v0
v_lshlrev_b32 v40, 4, v40
v_add_u32 v15, v15, v40
v_lshl_add_u32 v33, v0, 3, s47
v_lshrrev_b32 v36, 1, v13
v_lshl_add_u32 v36, v12, 2, v36
global_load_dword v32, v36, s[4:5]
v_and_b32 v38, 15, v0
v_lshlrev_b32 v34, 4, v38
v_lshl_add_u32 v34, v14, 10, v34
v_add_u32 v34, 0x1000, v34
v_add_u32 v35, 0x2000, v34
s_lshl_b32 s34, s28, 3
v_lshl_add_u32 v60, v12, 2, s34
s_add_u32 s34, s34, {L_OP}
v_mul_u32_u24 v57, 80, v38
v_add_u32 v57, s34, v57
v_lshl_add_u32 v57, v14, 2, v57
s_andn2_b32 s34, s63, 3
s_add_u32 s34, s34, s63
s_lshl2_add_u32 s34, s34, s28
s_lshl_b32 s34, s34, 9
s_add_u32 s34, s34, {WS_C}
v_lshl_add_u32 v59, v12, 13, v13
v_add_u32 v59, s34, v59
v_mov_b32 v44, 0x3f803f80
v_mov_b32 v63, {L_RED}
v_mov_b32 v46, 0xbb000000
v_mov_b32 v47, 0x3b000000
v_mov_b32 v41, 0xffff
v_lshlrev_b32 v40, v40, v41
v_bfe_u32 v41, v0, 1, 2
s_mov_b32 s60, 1
s_mov_b32 s61, 1''')
    for i in range(16): A(f'v_mov_b32 v{72+i}, v44')
    for w in range(4): A(f'v_cmp_eq_u32 vcc, {w}, v41\nv_cndmask_b32 v{48+w}, 0, v40, vcc')
    bars()
    for t in range(4):
        for m in range(2):
            A(f's_add_u32 m0, s47, {4096*m+1024*t}\ns_mov_b32 s34, {16*t*2752}')
            A(f'buffer_load_dwordx4 v15, s[{36+4*m}:{39+4*m}], s34 offen lds')
    def bload():
        for n in range(4): A(f'global_load_dwordx4 v[{96+4*n}:{99+4*n}], v6, s[44:45] offset:{2048*n-4096} sc1')
    for t in range(4):
        A(f's_waitcnt vmcnt({6-2*t + (4 if t == 3 else 0)})')
        if t == 2: bload()
        for m in range(2):
            for hf in range(2):
                r = 128 + 16 * m + 4 * t + 2 * hf
                A(f'ds_read_b64_tr_b16 v[{r}:{r+1}], v33 offset:{4096*m+1024*t+512*hf}')
        if t == 0: A('v_and_b32 v41, 0xffff0000, v32\nv_lshlrev_b32 v40, 16, v32')
    gather(bload, 4, 42, issued=True)
    A('''; h @ W with LN folded in: A rows 4-7 stay all ones and yield the column sums; moments of h on the side
v_pk_add_f32 v[16:17], v[16:17], v[40:41]
v_cvt_pk_bf16_f32 v18, v16, v17
v_dot2_f32_bf16 v16, v18, v44, 0
v_dot2_f32_bf16 v17, v18, v18, 0
s_waitcnt lgkmcnt(0)''')
    op = {f'm{i}': o for i, o in enumerate(bcast(18, 72, 0xd))}
    op.update({f'd{r}': f'v_add_f32_dpp v16, v16, v16 row_ror:{r} {FULL}' for r in (8, 4, 2, 1)})
    op.update({f'L{n}': f'global_load_dwordx4 v[{160+4*n}:{163+4*n}], v{34+(n>>1)}, s[20:21] offset:{4096*(n&1)-4096}' for n in range(4)})
    for n in range(8):
        t, m = n >> 1, n & 1
        c = f'v[{64+4*m}:{67+4*m}]'
        op[f'M{n}'] = f'v_mfma_f32_16x16x32_bf16 {c}, v[{72+4*t}:{75+4*t}], v[{128+16*m+4*t}:{131+16*m+4*t}], {c if t else 0}'
    op.update(S32='v_permlane32_swap_b32 v16, v17', S16='v_permlane16_swap_b32 v16, v17', A='v_add_f32 v16, v16, v17', mv='v_mov_b32 v17, v16',
              wr=f's_mov_b64 exec, s[60:61]\nds_write_b32 v60, v16 offset:{L_RED}\ns_mov_b64 exec, -1', bar='s_waitcnt lgkmcnt(0)\ns_barrier',
              rd='ds_read_b128 v[24:27], v63\nds_read_b128 v[28:31], v63 offset:16')
    for o in 'L0 L1 L2 L3 m0 m1 S32 m2 A m3 m4 d8 M0 m5 d4 m6 M1 d2 m7 m8 d1 mv M2 m9 S16 A wr M3 m10 m11 m12 m13 M4 m14 m15 M5 M6 bar M7 rd'.split(): A(op[o])
    A(f'''s_mov_b32 exec_hi, 0
ds_write2_b32 v57, v64, v68 offset0:0 offset1:8
s_mov_b32 exec_hi, -1
s_waitcnt lgkmcnt(1)
v_pk_add_f32 v[24:25], v[24:25], v[26:27]
v_pk_add_f32 v[28:29], v[28:29], v[30:31]
v_pk_add_f32 v[24:25], v[24:25], v[28:29]
s_waitcnt lgkmcnt(0)
s_barrier
ds_read_b128 v[16:19], v58 offset:{L_OP}
v_pk_mul_f32 v[24:25], v[24:25], v[46:47]
v_fma_f32 v28, -v24, v24, v25
v_max_f32 v28, 0, v28
v_add_f32 v28, {EPS:#x}, v28
v_rsq_f32 v29, v28
s_waitcnt lgkmcnt(0)
v_pk_add_f32 v[16:17], v[16:17], v[18:19]
v_fmac_f32 v16, v24, v17
v_rcp_f32 v28, v28
v_mul_f32 v29, {LOG2E ^ 0x80000000:#x}, v29
v_add_f32_dpp v16, v16, v16 quad_perm:[1,0,3,2] {FULL}
v_mul_f32 v17, v16, v29
v_exp_f32 v17, v17
v_mul_f32_dpp v18, v16, v16 quad_perm:[2,3,0,1] {FULL}
v_add_f32 v17, 1.0, v17
v_rcp_f32 v17, v17
v_mul_f32 v18, v18, v28
v_mul_f32 v16, v18, v17
v_cvt_pk_bf16_f32 v16, v16, v16
s_waitcnt vmcnt(0)
; act @ w_down on row-major weights: A holds act on a diagonal''')
    ops = [f'v_and_b32_dpp v{72+4*n+w}, v16, v{48+w} row_newbcast:{4*n} {FULL}' for n in range(4) for w in range(4)]
    for n in range(4):
        for o in ops[(4 * n + 2 if n else 0):4 * n + 6]: A(o)
        A(f'v_mfma_f32_16x16x32_bf16 v[64:67], v[{72+4*n}:{75+4*n}], v[{160+4*n}:{163+4*n}], {"v[64:67]" if n else 0}')
    A('v_bfi_b32 v64, v11, v8, v64\nglobal_store_dwordx4 v59, v[64:67], s[26:27] sc1')
    finish()

    A(f'''.p2align 12
L_vwave:
s_add_u32 s36, s8, s34
s_addc_u32 s37, s9, 0
s_lshl3_add_u32 s35, s31, s32
s_lshl_b32 s35, s35, 10
s_add_u32 s44, s26, s35
s_addc_u32 s45, s27, 0
v_mov_b32 v56, {L_SY}
s_lshr_b32 s56, s2, 6
s_lshl_b32 s56, s56, 7
s_and_b32 s35, s2, 63
s_add_u32 s56, s56, s35
s_lshl_b32 s56, s56, 7
s_add_u32 s56, s56, {WS_PR}
s_cmp_lg_u32 s28, 5
s_cbranch_scc1 L_nowarm
s_load_dword s54, s[26:27], s56 glc
s_load_dword s55, s[26:27], s56 offset:0x2000 glc
L_nowarm:
v_and_b32 v28, 1, v0
v_cmp_eq_u32 vcc, 1, v28
v_mov_b32 v29, 0x0c0c0100
v_mov_b32 v30, 0x01000c0c
v_cndmask_b32 v29, v29, v30, vcc
v_mov_b32 v30, 0x0c0c0302
v_mov_b32 v31, 0x03020c0c
v_cndmask_b32 v30, v30, v31, vcc
v_mov_b32 v31, 0x0c0c0c0c
v_bfe_u32 v28, v0, 1, 2''')
    for w in range(4): A(f'v_cmp_eq_u32 vcc, {w}, v28\nv_cndmask_b32 v{40+w}, v31, v29, vcc\nv_cndmask_b32 v{44+w}, v31, v30, vcc')
    A(f'''s_lshl_b32 s34, s63, 10
s_add_u32 s34, s34, {L_OP}
v_lshrrev_b32 v12, 5, v0
v_lshl_add_u32 v12, v12, 9, s34
v_lshl_add_u32 v12, v4, 1, v12
v_bfe_u32 v13, v0, 4, 1
v_lshl_add_u32 v12, v13, 4, v12
v_lshlrev_b32 v14, 3, v0
s_lshl_b32 s34, s32, 5
s_add_u32 s34, s34, s63
s_lshl_b32 s34, s34, 2
v_lshl_add_u32 v6, v3, 4, s34
v_mov_b32 v57, 1
s_waitcnt vmcnt(4)''')
    layernorm(24, 28)
    A(f'ds_write_b128 v5, v[24:27] offset:{L_H}\ns_waitcnt lgkmcnt(0)\nds_read_b32 v48, v6 offset:{L_H}\ns_add_u32 s3, s3, {EPOCH_STEP:#x}')
    tagreg(8, 14, 4)
    A('s_waitcnt lgkmcnt(0)')
    for n in range(2): afrag(24 + 4 * n, 48, n)
    A('s_waitcnt vmcnt(0)')
    for n in range(2):
        for hf in range(2):
            c = f'v[{16+4*hf}:{19+4*hf}]'
            A(f'v_mfma_f32_16x16x32_bf16 {c}, v[{24+4*n}:{27+4*n}], v[{64+8*n+4*hf}:{67+8*n+4*hf}], {c if n else 0}')
    part_write = '''s_mov_b32 exec_lo, 0x00ff00ff
s_mov_b32 exec_hi, 0xff00ff00
ds_write_b128 v12, v[16:19]
ds_write_b128 v12, v[20:23] offset:256'''
    A(f'''{part_write}
s_mov_b64 exec, 1
s_waitcnt lgkmcnt(0)
ds_add_u32 v56, v57 offset:48
s_mov_b64 exec, -1
s_cmp_lg_u32 s28, 4
s_cbranch_scc1 L_vstream''')
    ldsspin('ds_read_b32 v15, v56 offset:48', 'v_cmp_ne_u32 vcc, 4, v15')
    for n in range(4): A(f'ds_read_b128 v[{16+4*n}:{19+4*n}], v5 offset:{L_OP+1024*n}')
    A('s_waitcnt lgkmcnt(0)')
    for i in (0, 2, 8, 10): A(f'v_pk_add_f32 v[{16+i}:{17+i}], v[{16+i}:{17+i}], v[{20+i}:{21+i}]')
    for i in (0, 2): A(f'v_pk_add_f32 v[{16+i}:{17+i}], v[{16+i}:{17+i}], v[{24+i}:{25+i}]')
    A(f'''v_permlane32_swap_b32 v16, v18
v_permlane32_swap_b32 v17, v19
v_pk_add_f32 v[16:17], v[16:17], v[18:19]
v_and_or_b32 v16, v16, -16, v8
v_and_or_b32 v17, v17, -16, v8
global_store_dwordx2 v14, v[16:17], s[44:45]
L_vstream:
s_setprio 0
s_getreg_b32 s34, hwreg(HW_REG_XCC_ID, 0, 4)
s_andn2_b32 s46, s3, 31
s_or_b32 s46, s46, s34
s_lshl_b32 s47, s29, 8
s_add_u32 s47, s47, {WS_X}
s_cmp_lg_u32 s28, 5
s_cbranch_scc1 L_noprobe
s_mov_b32 s54, -1
s_mov_b32 s55, -1
s_waitcnt lgkmcnt(0)''')
    for i in range(4):
        A(f's_memtime s[50:51]\ns_load_dword s35, s[26:27], s56 offset:{0x2000 * (i & 1)} glc\ns_waitcnt lgkmcnt(0)\ns_memtime s[52:53]\ns_waitcnt lgkmcnt(0)\ns_sub_u32 s35, s52, s50\ns_min_u32 s{54 + (i & 1)}, s{54 + (i & 1)}, s35')
    A(f'''s_cmp_lt_u32 s55, s54
s_cselect_b32 s35, 16, 0
s_or_b32 s34, s46, s35
v_mov_b32 v31, s34
s_lshl2_add_u32 s34, s30, s47
v_mov_b32 v30, s34
s_mov_b64 exec, 1
global_store_dword v30, v31, s[26:27]
s_mov_b64 exec, -1
L_noprobe:
s_lshl_b32 s34, s63, 2
v_mov_b32 v28, s34
v_and_b32 v30, 31, v0
v_lshl_add_u32 v30, v30, 2, s47''')
    ldsspin(f'ds_read_b32 v15, v28 offset:{L_SY+64}', 'v_cmp_eq_u32 vcc, 0, v15', 1)
    stream({XPOS: 'global_load_dword v29, v30, s[26:27] sc1',
            XPOS + THR: '''v_and_b32 v29, -17, v29
v_cmp_ne_u32 s[48:49], s46, v29
s_cmp_eq_u64 s[48:49], 0
s_cselect_b32 s50, 1, 0
s_cbranch_scc0 L_requeue
L_requeued:'''}, XPOS)
    cold.append(lambda: A('''L_requeue:
s_cmp_lg_u32 s28, 4
s_cbranch_scc1 L_requeued
global_store_dwordx2 v14, v[16:17], s[44:45] sc1
s_waitcnt vmcnt(0)
s_branch L_requeued'''))
    A('v_mov_b32 v11, 0xff')
    tagreg(8, 14, 8)
    tagmask(10, 14)
    A(f'''s_lshl_b32 s34, s63, 8
v_lshl_add_u32 v6, v3, 5, s34
s_barrier
ds_read_b128 v[48:51], v6 offset:{L_P}
ds_read_b128 v[52:55], v6 offset:{L_P+16}
s_waitcnt lgkmcnt(0)''')
    for i in range(16): afrag(64 + 4 * i, 48 + i // 2, i & 1)
    for i in range(16):
        for hf in range(2):
            if (i, hf) == (12, 0): A('s_setprio 3')
            if i >= 12: A(f's_waitcnt vmcnt({31-2*i-hf})')
            if (i, hf) == (12, 0): A('s_barrier')
            c = f'v[{16+4*hf}:{19+4*hf}]'
            A(f'v_mfma_f32_16x16x32_bf16 {c}, v[{64+4*i}:{67+4*i}], v[{128+8*i+4*hf}:{131+8*i+4*hf}], {c if i else 0}')
    A(f'''; the wave that finds all four partials published sums them and stores the record
{part_write}
s_mov_b64 exec, 1
ds_add_u32 v56, v57 offset:80
s_mov_b64 exec, -1
ds_read_b32 v32, v56 offset:80''')
    for n in range(4): A(f'ds_read_b128 v[{64+4*n}:{67+4*n}], v5 offset:{L_OP+1024*n}')
    A(f'''s_waitcnt lgkmcnt(4)
v_cmp_eq_u32 vcc, 4, v32
s_cmp_eq_u32 s50, 0
s_cbranch_vccz L_vend
s_waitcnt lgkmcnt(2)
v_pk_add_f32 v[64:65], v[64:65], v[68:69]
v_pk_add_f32 v[66:67], v[66:67], v[70:71]
s_waitcnt lgkmcnt(0)
v_pk_add_f32 v[72:73], v[72:73], v[76:77]
v_pk_add_f32 v[74:75], v[74:75], v[78:79]
v_pk_add_f32 v[64:65], v[64:65], v[72:73]
v_pk_add_f32 v[66:67], v[66:67], v[74:75]
s_cbranch_scc1 L_vthru
v_permlane32_swap_b32 v64, v66
v_permlane32_swap_b32 v65, v67
v_pk_add_f32 v[64:65], v[64:65], v[66:67]
v_bfi_b32 v64, v10, v8, v64
global_store_dwordx2 v14, v[64:65], s[44:45]
L_vend:
s_barrier''')
    cold.append(lambda: A(f'''L_vthru:
s_nop 1
v_permlane32_swap_b32 v64, v66
v_permlane32_swap_b32 v65, v67
v_pk_add_f32 v[64:65], v[64:65], v[66:67]
v_bfi_b32 v64, v10, v8, v64
global_store_dwordx2 v14, v[64:65], s[44:45] sc1
s_branch L_vend'''))
    if span == 2: A('s_cmp_lg_u32 s30, 31\ns_cbranch_scc1 L_exit\ns_cmp_lg_u32 s28, 5\ns_cbranch_scc1 L_exit\ns_mov_b32 s28, 1')
    finish(2)
    A(f'L_exit:\ns_endpgm\nL_code_end:\n.fill (L_pc+16384-L_code_end)/4, 4, 0xbf810000')
    A.raw(f'''.section .rodata,"a"
.p2align 6
.amdhsa_kernel {NAME}_kernel
  .amdhsa_next_free_vgpr 256
  .amdhsa_next_free_sgpr 102
  .amdhsa_accum_offset 256
  .amdhsa_group_segment_fixed_size 0
  .amdhsa_kernarg_size 96
  .amdhsa_user_sgpr_count 2
  .amdhsa_user_sgpr_kernarg_segment_ptr 1
  .amdhsa_system_sgpr_workgroup_id_x 1
  .amdhsa_float_denorm_mode_32 3
.end_amdhsa_kernel''')
    return A.text()

if __name__ == '__main__':
    out = sys.argv[1] if len(sys.argv) > 1 else f'cdna_kernels/{NAME}.s'
    open(out, 'w').write(gen(**eval('dict(' + (sys.argv[2] if len(sys.argv) > 2 else '') + ')')))
```
